```python
import torch

def _softmax(x, axis=-1):
    return torch.softmax(x, dim=axis)
def _gelu(x):
    return torch.nn.functional.gelu(x, approximate="tanh")
def _silu(x):
    return torch.nn.functional.silu(x)
def _sigmoid(x):
    return torch.sigmoid(x)
def _layernorm(x, axis=-1, eps=1e-5):
    m = x.mean(dim=axis, keepdim=True)
    v = x.var(dim=axis, keepdim=True, unbiased=False)
    return (x - m) / torch.sqrt(v + eps)
def _scatter_add(tgt, idx, src, axis=0):
    return tgt.clone().index_add_(axis, idx, src)
def _segment_sum(src, seg, n):
    out = torch.zeros((n,) + src.shape[1:], dtype=src.dtype)
    return out.index_add_(0, seg, src)
def _pad(x, pw):
    flat = tuple(v for pair in reversed(pw) for v in pair)
    return torch.nn.functional.pad(x, flat)

kernel_name = 'parallel_sum__mha_block_cached__glu_gated_reglu__decode'

def setup_inputs():

    _w = (lambda a: (lambda t: t.to(torch.bfloat16) if t.is_floating_point() else t)(torch.as_tensor(a)))
    def _A_setup():
        B, Sq, D = 1, 1, 640
        H, Sk, Dh = 32, 32768, 192
        return {
            "x": _w((lambda *s: torch.randn(*s, dtype=torch.bfloat16) * 0.05)(B, Sq, D)),
            "k_cache": _w((lambda *s: torch.randn(*s, dtype=torch.bfloat16) * 3.2)(B, H, Sk, Dh)),
            "v_cache": _w((lambda *s: torch.randn(*s, dtype=torch.bfloat16) * 1.6)(B, H, Sk, Dh)),
            "wq": _w((lambda *s: torch.randn(*s, dtype=torch.bfloat16) * 3.2)(D, H * Dh) * (D ** -0.5)),
            "wo": _w((lambda *s: torch.randn(*s, dtype=torch.bfloat16) * 1.6)(H * Dh, D) * ((H * Dh) ** -0.5)),
        }
    _A_in = _A_setup()

    def _B_setup():
        B, S, D, F = 1, 1, 640, 1536
        return {
            "x": _w((lambda *s: torch.randn(*s, dtype=torch.bfloat16) * 0.05)(B, S, D)),
            "W_gate": _w((lambda *s: torch.randn(*s, dtype=torch.bfloat16) * 1.6)(D, F) * (2.0 / D) ** 0.5),
            "W_up": _w((lambda *s: torch.randn(*s, dtype=torch.bfloat16) * 1.6)(D, F) * (2.0 / D) ** 0.5),
            "W_down": _w((lambda *s: torch.randn(*s, dtype=torch.bfloat16) * 1.6)(F, D) * (1.0 / F) ** 0.5),
        }
    _B_in = _B_setup()

    return {
        "A_x": _A_in["x"],
        "A_k_cache": _A_in["k_cache"],
        "A_v_cache": _A_in["v_cache"],
        "A_wq": _A_in["wq"],
        "A_wo": _A_in["wo"],
        "B_x": _B_in["x"],
        "B_W_gate": _B_in["W_gate"],
        "B_W_up": _B_in["W_up"],
        "B_W_down": _B_in["W_down"],
    }

def reference(A_x, A_k_cache, A_v_cache, A_wq, A_wo, B_x, B_W_gate, B_W_up, B_W_down):
    def _A_ref(x, k_cache, v_cache, wq, wo):
        B, Sq, D = x.shape
        H, Dh = 32, 192
        q = (lambda x, *d: x.permute(*d))((x @ wq).reshape(B, Sq, H, Dh), 0, 2, 1, 3)
        scores = torch.einsum("bhqd,bhkd->bhqk", q, k_cache) * (Dh ** -0.5)
        p = _softmax(scores, axis=-1)
        o = torch.einsum("bhqk,bhkd->bhqd", p, v_cache)
        return (lambda x, *d: x.permute(*d))(o, 0, 2, 1, 3).reshape(B, Sq, H * Dh) @ wo

    def _B_ref(x, W_gate, W_up, W_down):
        gate = torch.einsum("bsd,df->bsf", x, W_gate)
        up = torch.einsum("bsd,df->bsf", x, W_up)
        gate = gate * (lambda x, dt: x.to(dt))(gate > 0, gate.dtype)
        h = gate * up
        return torch.einsum("bsf,fd->bsd", h, W_down)

    x = A_x
    xn = _layernorm(x, axis=-1)
    return x + _A_ref(xn, A_k_cache, A_v_cache, A_wq, A_wo) + _B_ref(xn, B_W_gate, B_W_up, B_W_down)
```

```python
import re
TRANS = ("v_exp_f32","v_log_f32","v_rcp_f32","v_rsq_f32","v_sqrt_f32","v_sin_f32","v_cos_f32","v_rcp_iflag_f32")
def regs(tok):
    tok = tok.strip().lstrip("-")
    m = re.fullmatch(r"abs\((.*)\)", tok) or re.fullmatch(r"\|(.*)\|", tok)
    if m: tok = m.group(1)
    m = re.fullmatch(r"([vsa])(\d+)", tok)
    if m: return {(m.group(1), int(m.group(2)))}
    m = re.fullmatch(r"([vsa])\[(\d+):(\d+)\]", tok)
    if m: return {(m.group(1), i) for i in range(int(m.group(2)), int(m.group(3))+1)}
    if tok in ("vcc","vcc_lo","vcc_hi"): return {("s","vcc")}
    if tok == "m0": return {("s","m0")}
    if tok in ("exec","exec_lo","exec_hi"): return {("s","exec")}
    return set()
class Ins:
    def __init__(s, text):
        s.text = text
        t = text.split(";")[0].strip()
        p = t.split(None, 1)
        s.op = p[0]; rest = p[1] if len(p) > 1 else ""
        ops = [o.strip() for o in re.split(r",(?![^\[]*\])", rest)] if rest else []
        if ops:
            last = ops[-1].split()
            s.mods = " ".join(last[1:]); ops[-1] = last[0]
        else: s.mods = ""
        s.ops = ops
        op = s.op
        s.valu = op.startswith("v_")
        s.salu = op.startswith("s_")
        s.vmem = op.startswith(("buffer_","global_","flat_"))
        s.ds = op.startswith("ds_")
        s.trans = op.replace("_e32","").replace("_e64","") in TRANS
        s.dot = op.startswith("v_dot")
        s.mfma = op.startswith("v_mfma")
        s.dpp = "_dpp" in op
        s.perml = op.startswith("v_permlane")
        s.rdlane = op.startswith(("v_readlane","v_readfirstlane"))
        s.wrlane = op.startswith("v_writelane")
        s.nop = int(ops[0], 0) + 1 if op == "s_nop" else 1
        R = [regs(o) for o in ops]
        s.w = set(); s.r = set()
        if s.valu:
            s.w = set(R[0]); s.r = set().union(*R[1:]) if len(R) > 1 else set()
            if s.perml: s.w |= R[1]; s.r |= R[0]
            if op.startswith(("v_dot2c","v_fmac","v_writelane")) or s.dpp: s.r |= R[0]
            if op.startswith(("v_add_co","v_sub_co","v_addc_co","v_subb_co","v_div_scale")): s.w |= R[1]
            if op.startswith("v_cmpx"): s.w |= {("s","exec")}
        elif s.vmem:
            s.r = set().union(*R)
            s.store = "store" in op or "atomic" in op
            s.lds = " lds" in (" " + s.mods)
            s.wide_store_data = R[0] if (s.store and op.endswith(("x3","x4")) and op.startswith("buffer_")) else set()
            if not s.store and not s.lds: s.w = set(R[0]); s.r = set().union(*R[1:])
        elif s.ds:
            if op.startswith("ds_read") or "rtn" in op or "permute" in op or "swizzle" in op:
                s.w = set(R[0]); s.r = set().union(*R[1:])
            else: s.r = set().union(*R)
        elif s.salu and R:
            if op.startswith(("s_cmp","s_cbranch","s_branch","s_waitcnt","s_nop","s_setprio","s_barrier","s_bitcmp")): s.r = set().union(*R)
            else:
                s.w = set(R[0]); s.r = set().union(*R[1:]) if len(R) > 1 else set()
                if op.startswith(("s_bitset", "s_addk", "s_mulk", "s_cmov")): s.r |= R[0]
def need(p, c):
    n = 0
    vw = {x for x in p.w if x[0] in "va"}; sw = {x for x in p.w if x[0] == "s"}
    if p.valu:
        if vw & c.r:
            if c.dpp: n = max(n, 2)
            if c.perml: n = max(n, 2)
            if c.rdlane: n = max(n, 1)
            if p.trans and c.valu: n = max(n, 1)
            if p.trans and (c.vmem or c.ds): n = max(n, 1)
            if c.mfma and not p.mfma: n = max(n, 2)
        if p.dot and (vw & (c.r | c.w)):
            same_c = c.op == p.op and not (vw & set().union(*[regs(o) for o in c.ops[1:3]]))
            if not same_c: n = max(n, 3)
        if p.mfma and (vw & (c.r | c.w)):
            passes = 8 if "32x32" in p.op else (2 if "4x4" in p.op else 4)
            chain = c.mfma and c.op == p.op and regs(c.ops[3]) == vw and not (vw & (regs(c.ops[1]) | regs(c.ops[2])))
            n = max(n, (2 if passes == 2 else 0) if chain else passes + 4 if passes > 2 else 5)
        if sw & c.r:
            if c.valu: n = max(n, 4 if (c.rdlane or c.wrlane) else 2)
            if c.vmem: n = max(n, 5)
            if c.salu and not c.op.startswith("s_cbranch"): n = max(n, 1)
        if ("s","vcc") in sw and c.valu and c.op.startswith(("v_cndmask","v_addc","v_div_fmas")): n = max(n, 4 if "fmas" in c.op else 2)
        if ("s","exec") in sw and c.valu: n = max(n, 5)
    if p.mfma and c.valu and not c.mfma and (regs(p.ops[3]) & c.w):
        passes = 8 if "32x32" in p.op else (2 if "4x4" in p.op else 4)
        n = max(n, passes - 1)
    if p.salu and ("s","m0") in sw:
        if (c.vmem and c.lds) or c.wrlane or c.rdlane: n = max(n, 1)
    if p.vmem and p.store and p.wide_store_data & c.w: n = max(n, 2)
    return n
MAXD = 13
class Asm:
    def __init__(s): s.lines = []
    def __call__(s, text):
        for t in text.split("\n"):
            t = t.strip()
            if t: s.lines.append(t)
    def finish(s):
        items = []
        for t in s.lines:
            if t.startswith((".", ";")) : items.append(("raw", t))
            elif re.fullmatch(r"[\w.$]+:", t): items.append(("label", t[:-1]))
            else: items.append(("ins", Ins(t)))
        branches = {}
        for i, (k, v) in enumerate(items):
            if k == "ins":
                v.pad = 0
                if v.op.startswith(("s_cbranch","s_branch")): branches.setdefault(v.ops[0], []).append(i)
        def hist(i, d, seen):
            j = i - 1
            while j >= 0 and d < MAXD:
                k, v = items[j]
                if k == "label":
                    for b in branches.get(v, []):
                        if (b, d) not in seen:
                            seen.add((b, d))
                            yield from hist(b, d + 1 + items[b][1].pad, seen)
                elif k == "ins":
                    if v.op in ("s_branch","s_endpgm"): return
                    yield v, d
                    d += v.nop + v.pad
                j -= 1
        changed = True
        while changed:
            changed = False
            for i, (k, v) in enumerate(items):
                if k == "ins":
                    short = max([need(p, v) - d for p, d in hist(i, v.pad, set())] + [0])
                    if short > 0:
                        v.pad += short; changed = True
        res = []
        for k, v in items:
            if k == "ins" and v.pad: res.append(f"    s_nop {v.pad-1}")
            res.append(v if k == "raw" else (v + ":" if k == "label" else "    " + v.text))
        return "\n".join(res) + "\n"
```

```python
import sys, os
sys.path.insert(0, os.path.dirname(os.path.abspath(__file__)))
from asmlib import Asm
KN = "parallel_sum__mha_block_cached__glu_gated_reglu__decode_kernel"
HEADER = open("parallel_sum__mha_block_cached__glu_gated_reglu__decode.s.ref").read().split("; Override launch")[0]

HB = 32768*384
STEP = 4*3072
NSTEP = 1024
WS_QS, WS_H1, WS_H2, WS_CNT, WS_ST, WS_SIZE = 0, 0x60000, 0xA0000, 0x140000, 0x200000, 0x400000
L_W, L_QP, L_QB, L_HB, L_OP, L_OM, L_RED, L_CL, L_SIZE = 0, 38912, 45312, 45696, 45824, 49920, 50944, 51200, 51264
OOB = 0x40000000
SPIN = 1 << 20

def gen(P=4, D=2, S=128, pace=6, pol="nt", wpol="nt", stamps=False, R=40, pre0=2, rot=True, sizes=None, ahead=1):
    A = Asm()
    dyn = S < 128
    assert P % D == 0 and P + D <= S and D >= 2 and pre0 <= P
    if dyn:
        assert sum(n*z for n, z in sizes) == NSTEP - 8*S, (sum(n*z for n, z in sizes), NSTEP - 8*S)
    sW, sH, sS = "s3", "s4", "s5"
    K_, V_, WS_, TA_, TB_, TC_, X_ = "s[8:11]", "s[12:15]", "s[16:19]", "s[20:23]", "s[24:27]", "s[28:31]", "s[32:35]"
    pX, pK, pV, pWQ, pWO, pWG, pWU, pWD, pOUT, pDBG, pWS = 36, 38, 40, 42, 44, 48, 50, 52, 54, 56, 58
    sOFF, sCNT, sROT, sIT, sSTOP, sSCALE, sLOG2E, sT0, sT1, sT2, sT3, sWOFF = "s60", "s61", "s62", "s63", "s64", "s65", "s66", "s67", "s68", "s69", "s70", "s71"
    sU = 72
    sST = 84
    vLANE, vKV, vA, vB = "v0", "v1", "v2", "v3"
    ACC, Q, vM, vL = 8, 32, "v44", "v45"
    T = 46
    RING = 56
    PRE = RING + 24*D
    NV = PRE + 24*P
    assert NV <= 256
    nst = [0]
    def stamp():
        if stamps:
            A(f"s_memrealtime s[{sST+2*nst[0]}:{sST+2*nst[0]+1}]");
        nst[0] += 1
    def srd(name, ptr, size, off=None):
        b = int(name[2:name.index(":")])
        if off is None:
            A(f"s_mov_b32 s{b}, s{ptr}"); A(f"s_mov_b32 s{b+1}, s{ptr+1}")
        else:
            A(f"s_add_u32 s{b}, s{ptr}, {off}"); A(f"s_addc_u32 s{b+1}, s{ptr+1}, 0")
        A(f"s_mov_b32 s{b+2}, {size}"); A(f"s_mov_b32 s{b+3}, 0x20000")
    DPP = "row_mask:0xf bank_mask:0xf"
    def allred_lo(op, v):
        A(f"{op}_dpp {v}, {v}, {v} quad_perm:[1,0,3,2] {DPP}")
        A(f"{op}_dpp {v}, {v}, {v} quad_perm:[2,3,0,1] {DPP}")
        A(f"{op}_dpp {v}, {v}, {v} row_half_mirror {DPP}")
    def allred_hi(op, vs, ts):
        for v in vs: A(f"{op}_dpp {v}, {v}, {v} row_ror:8 {DPP}")
        for sw in ("v_permlane16_swap_b32", "v_permlane32_swap_b32"):
            for v, t in zip(vs, ts): A(f"v_mov_b32 {t}, {v}")
            for v, t in zip(vs, ts): A(f"{sw} {t}, {v}")
            for v, t in zip(vs, ts): A(f"{op} {v}, {v}, {t}")
    def redscat(base, n):
        for g in range(n):
            for e in range(4): A(f"v_permlane32_swap_b32 v{base+8*g+e}, v{base+8*g+e+4}")
        for g in range(n):
            for e in range(4): A(f"v_add_f32 v{base+8*g+e}, v{base+8*g+e}, v{base+8*g+e+4}")
        for g in range(n):
            for e in range(2): A(f"v_permlane16_swap_b32 v{base+8*g+e}, v{base+8*g+e+2}")
        for g in range(n):
            for e in range(2): A(f"v_add_f32 v{base+8*g+e}, v{base+8*g+e}, v{base+8*g+e+2}")
        for g in range(n):
            A(f"v_add_f32_dpp v{base+8*g}, v{base+8*g}, v{base+8*g} row_ror:8 row_mask:0xf bank_mask:0x3")
        for g in range(n):
            A(f"v_add_f32_dpp v{base+8*g}, v{base+8*g+1}, v{base+8*g+1} row_ror:8 row_mask:0xf bank_mask:0xc")
    def ld_tile(srdn, reg, paced=False):
        for j in range(3):
            if paced: A(f"s_waitcnt vmcnt({pace-1})")
            A(f"buffer_load_dwordx4 v[{reg+4*j}:{reg+4*j+3}], {vKV}, {srdn}, {sOFF} offen offset:{128*j} {pol}")
    def step2off(sreg):
        A(f"s_add_u32 {sOFF}, {sreg}, {sROT}"); A(f"s_and_b32 {sOFF}, {sOFF}, {NSTEP-1}")
        A(f"s_mul_i32 {sOFF}, {sOFF}, {STEP}"); A(f"s_add_u32 {sOFF}, {sOFF}, {sWOFF}")
    def next_static():
        step2off(sCNT); A(f"s_add_u32 {sCNT}, {sCNT}, 1")
    uid = [0]
    def qk(kreg):
        s0, s1, s2 = f"v{T}", f"v{T+1}", f"v{T+2}"
        for j, sj in enumerate((s0, s1, s2)):
            A(f"v_dot2_f32_bf16 {sj}, v{kreg+4*j}, v{Q+4*j}, 0")
        for e in range(1, 4):
            for j, sj in enumerate((s0, s1, s2)):
                A(f"v_dot2_f32_bf16 {sj}, v{kreg+4*j+e}, v{Q+4*j+e}, {sj}")
    def softmax():
        s0, s1, s2, pl, ph = f"v{T}", f"v{T+1}", f"v{T+2}", f"v{T+3}", f"v{T+4}"
        uid[0] += 1
        A(f"v_add_f32 {s0}, {s0}, {s1}"); A(f"v_add_f32 {s0}, {s0}, {s2}")
        allred_lo("v_add_f32", s0)
        A(f"v_cvt_pk_bf16_f32 {s0}, 0, {s0}"); A(f"v_mul_f32 {s0}, {sSCALE}, {s0}")
        A(f"v_cvt_pk_bf16_f32 {s0}, 0, {s0}"); A(f"v_mul_f32 {s0}, {sLOG2E}, {s0}")
        A(f"v_cmp_gt_f32 vcc, {s0}, {vM}")
        A(f"s_cbranch_vccz L_nors{uid[0]}")
        A(f"v_max_f32 {s1}, {s0}, {vM}"); A(f"v_sub_f32 {s2}, {vM}, {s1}"); A(f"v_exp_f32 {s2}, {s2}")
        A(f"v_mov_b32 {vM}, {s1}"); A(f"v_mul_f32 {vL}, {vL}, {s2}")
        for i in range(24): A(f"v_mul_f32 v{ACC+i}, v{ACC+i}, {s2}")
        A(f"L_nors{uid[0]}:")
        A(f"v_sub_f32 {s0}, {s0}, {vM}"); A(f"v_exp_f32 {s0}, {s0}")
        A(f"v_add_f32 {vL}, {vL}, {s0}")
        A(f"v_cvt_pk_bf16_f32 {pl}, {s0}, 0"); A(f"v_cvt_pk_bf16_f32 {ph}, 0, {s0}")
    def axpy(acc, data, n, pl, ph):
        for i in range(n):
            A(f"v_dot2c_f32_bf16 v{acc+2*i}, v{data+i}, {pl}"); A(f"v_dot2c_f32_bf16 v{acc+2*i+1}, v{data+i}, {ph}")
    def pv(vreg): axpy(ACC, vreg, 12, f"v{T+3}", f"v{T+4}")

    A(HEADER.rstrip())
    A(f"; @launch grid=(256,1,1) block=(320,1,1) lds={L_SIZE}")
    A('.amdgcn_target "amdgcn-amd-amdhsa--gfx950"\n.text')
    A(f".globl {KN}\n.p2align 8\n.type {KN},@function\n{KN}:")
    A("s_cmp_ge_u32 s2, 256\ns_cbranch_scc1 L_end")
    A("s_load_dwordx16 s[36:51], s[0:1], 0\ns_load_dwordx8 s[52:59], s[0:1], 64")
    stamp()
    A(f"v_lshrrev_b32 v1, 6, v0\nv_and_b32 {vLANE}, 63, v0\nv_readfirstlane_b32 {sW}, v1")
    A(f"s_lshr_b32 {sH}, s2, 3\ns_and_b32 {sS}, s2, 7")
    A(f"v_lshrrev_b32 {vA}, 3, {vLANE}\nv_and_b32 {vB}, 7, {vLANE}")
    A(f"v_lshlrev_b32 v7, 4, {vB}")
    A(f"v_mov_b32 v4, 384\nv_mad_u32_u24 {vKV}, {vA}, v4, v7")
    A(f"v_mov_b32 v4, 12288\nv_mad_u32_u24 v4, {vA}, v4, v7")
    A(f"v_mov_b32 v5, 3072\nv_mad_u32_u24 v5, {vA}, v5, v7")
    A(f"v_mov_b32 v6, {OOB}\nv_cmp_gt_u32 vcc, 6, {vB}\nv_cndmask_b32 v5, v6, v5, vcc")
    A(f"v_lshlrev_b32 v6, 1, {vA}\nv_lshlrev_b32 v7, 4, {vLANE}")
    A(f"s_mul_i32 {sT0}, {sS}, 80\ns_lshl_b32 {sT1}, {sW}, 4\ns_add_u32 {sT0}, {sT0}, {sT1}")
    A(f"s_mul_i32 {sT1}, {sT0}, 12288\ns_mul_i32 {sT2}, {sH}, 384\ns_add_u32 {sT1}, {sT1}, {sT2}")
    A(f"s_mul_i32 {sT2}, {sT0}, 3072\ns_mul_i32 {sT3}, {sH}, 96\ns_add_u32 {sT2}, {sT2}, {sT3}")
    A(f"s_lshl_b32 {sT0}, {sT0}, 1")
    A(f"s_mul_i32 {sT3}, {sH}, {HB}")
    A("s_waitcnt lgkmcnt(0)")
    srd(X_, pX, 1280); srd(TA_, pWQ, 640*12288); srd(TB_, pWG, 640*3072); srd(TC_, pWU, 640*3072)
    XR, WD, WA = RING + 40, RING, ACC
    A(f"buffer_load_dwordx4 v[{XR}:{XR+3}], v7, {X_}, 0 offen")
    A(f"buffer_load_dwordx4 v[{XR+4}:{XR+7}], v7, {X_}, 0 offen offset:1024")
    A(f"buffer_load_ushort v{T+8}, v6, {X_}, {sT0} offen")
    A(f"buffer_load_ushort v{T+9}, v6, {X_}, {sT0} offen offset:16")
    for t in range(2):
        for j in range(3):
            A(f"buffer_load_dwordx4 v[{WD+20*t+4*j}:{WD+20*t+4*j+3}], v4, {TA_}, {sT1} offen offset:{128*j} {wpol}")
        A(f"buffer_load_dwordx4 v[{WD+20*t+12}:{WD+20*t+15}], v5, {TB_}, {sT2} offen {wpol}")
        A(f"buffer_load_dwordx4 v[{WD+20*t+16}:{WD+20*t+19}], v5, {TC_}, {sT2} offen {wpol}")
        if t == 0: A(f"s_add_u32 {sT1}, {sT1}, {8*12288}\ns_add_u32 {sT2}, {sT2}, {8*3072}")
    srd(K_, pK, HB, sT3); srd(V_, pV, HB, sT3); srd(WS_, pWS, WS_SIZE)
    if rot: A(f"s_mul_i32 {sROT}, {sH}, 0x9E3779B1\ns_lshr_b32 {sROT}, {sROT}, 22")
    else: A(f"s_mov_b32 {sROT}, 0")
    A(f"s_mul_i32 {sCNT}, {sS}, {S}\ns_mul_i32 {sWOFF}, {sW}, 3072")
    A(f"s_mov_b32 {sSCALE}, 0x3d93cd3a\ns_mov_b32 {sLOG2E}, 0x3fb8aa3b")
    A(f"s_cmp_eq_u32 {sW}, 4\ns_cbranch_scc1 L_svc_pre")
    for p in range(pre0):
        next_static(); ld_tile(K_, PRE+24*p); ld_tile(V_, PRE+24*p+12)
    A("s_branch L_ln")
    A("L_svc_pre:")
    CL = PRE
    for i in range(4): A(f"v_mov_b32 v{CL+i}, -1")
    A(f"v_mov_b32 v{CL+4}, 0")
    A(f"s_lshl_b32 {sT0}, s2, 10\ns_add_u32 {sT0}, {sT0}, {WS_H1}")
    A(f"buffer_store_dwordx4 v[{CL}:{CL+3}], v7, {WS_}, {sT0} offen sc1")
    A(f"s_mul_i32 {sT0}, s2, 2560\ns_add_u32 {sT0}, {sT0}, {WS_H2}")
    A(f"buffer_store_dwordx4 v[{CL}:{CL+3}], v7, {WS_}, {sT0} offen sc1")
    A(f"buffer_store_dwordx4 v[{CL}:{CL+3}], v7, {WS_}, {sT0} offen offset:1024 sc1")
    A("s_mov_b32 exec_hi, 0")
    A(f"buffer_store_dwordx4 v[{CL}:{CL+3}], v7, {WS_}, {sT0} offen offset:2048 sc1")
    A("s_mov_b64 exec, -1")
    A(f"v_mov_b32 v{CL+5}, {OOB}")
    npad = 6*pre0 - 4
    if dyn:
        A(f"v_or_b32 v{CL+6}, {sS}, {vLANE}\nv_cmp_eq_u32 vcc, 0, v{CL+6}\nv_cndmask_b32 v{CL+6}, v{CL+5}, v{CL+4}, vcc")
        A(f"s_lshl_b32 {sT0}, {sH}, 8\ns_add_u32 {sT0}, {sT0}, {WS_CNT}")
        A(f"buffer_store_dword v{CL+4}, v{CL+6}, {WS_}, {sT0} offen sc1")
        npad -= 1
    assert npad >= 0
    for i in range(npad): A(f"buffer_load_dword v{CL+7}, v{CL+5}, {X_}, 0 offen")
    A("L_ln:")
    A(f"s_waitcnt vmcnt({10+6*pre0})")
    XF = WA
    for i in range(8):
        A(f"v_lshlrev_b32 v{XF+2*i}, 16, v{XR+i}\nv_and_b32 v{XF+2*i+1}, 0xffff0000, v{XR+i}")
    t0, t1, t2, t3 = f"v{T}", f"v{T+1}", f"v{T+2}", f"v{T+3}"
    A(f"v_add_f32 {t0}, v{XF}, v{XF+1}\nv_add_f32 {t1}, v{XF+2}, v{XF+3}")
    for i in range(4, 16, 2): A(f"v_add_f32 {t0}, {t0}, v{XF+i}\nv_add_f32 {t1}, {t1}, v{XF+i+1}")
    A(f"v_add_f32 {t0}, {t0}, {t1}")
    allred_lo("v_add_f32", t0); allred_hi("v_add_f32", [t0], [t1])
    A(f"v_mul_f32 {t0}, 0x3acccccd, {t0}")
    for i in range(16): A(f"v_sub_f32 v{XF+i}, v{XF+i}, {t0}")
    A(f"v_mul_f32 {t1}, v{XF}, v{XF}\nv_mul_f32 {t2}, v{XF+8}, v{XF+8}")
    for i in range(1, 8): A(f"v_fmac_f32 {t1}, v{XF+i}, v{XF+i}\nv_fmac_f32 {t2}, v{XF+8+i}, v{XF+8+i}")
    A(f"v_cmp_gt_u32 vcc, 16, {vLANE}\nv_cndmask_b32 {t2}, 0, {t2}, vcc\nv_add_f32 {t1}, {t1}, {t2}")
    allred_lo("v_add_f32", t1); allred_hi("v_add_f32", [t1], [t2])
    A(f"v_mul_f32 {t1}, 0x3acccccd, {t1}")
    A(f"v_cvt_pk_bf16_f32 {t0}, 0, {t0}\nv_cvt_pk_bf16_f32 {t1}, 0, {t1}")
    A(f"v_add_f32 {t1}, 0x3727c5ac, {t1}\nv_cvt_pk_bf16_f32 {t1}, 0, {t1}\nv_sqrt_f32 {t1}, {t1}")
    A(f"v_cvt_pk_bf16_f32 {t1}, 0, {t1}\nv_rcp_f32 {t2}, {t1}")
    for t in range(2):
        xr = f"v{T+8+t}"
        A(f"v_lshlrev_b32 {xr}, 16, {xr}\nv_sub_f32 {xr}, {xr}, {t0}\nv_cvt_pk_bf16_f32 {xr}, 0, {xr}")
        A(f"v_mul_f32 {t3}, {xr}, {t2}\nv_fma_f32 {xr}, -{t3}, {t1}, {xr}\nv_fma_f32 {xr}, {xr}, {t2}, {t3}")
        A(f"v_cvt_pk_bf16_f32 v{T+4+2*t}, {xr}, 0\nv_cvt_pk_bf16_f32 v{T+5+2*t}, 0, {xr}")
    for i in range(40): A(f"v_mov_b32 v{WA+i}, 0")
    stamp()
    A(f"s_waitcnt vmcnt({5+6*pre0})")
    axpy(WA, WD, 20, f"v{T+4}", f"v{T+5}")
    A(f"s_waitcnt vmcnt({6*pre0})")
    axpy(WA, WD+20, 20, f"v{T+6}", f"v{T+7}")
    redscat(WA, 5)
    A(f"s_mul_i32 {sT0}, {sW}, 1280\nv_lshl_add_u32 v4, {vLANE}, 2, {sT0}")
    for k in range(5): A(f"ds_write_b32 v4, v{WA+8*k} offset:{L_QP+256*k}")
    A("s_waitcnt lgkmcnt(0)")
    stamp()
    A("s_barrier")
    A(f"s_cmp_eq_u32 {sW}, 4\ns_cbranch_scc1 L_svc")
    srd(TA_, pWO, 6144*1280); srd(TB_, pWD, 1536*1280)
    A(f"s_mul_i32 {sT0}, {sH}, 192\ns_lshl_b32 {sT1}, {sS}, 3\ns_add_u32 {sT0}, {sT0}, {sT1}\ns_mul_i32 {sT0}, {sT0}, 1280")
    A(f"s_cmp_eq_u32 {sW}, 3\ns_cbranch_scc1 L_dma_wd")
    A(f"s_mul_i32 {sT1}, {sW}, {64*1280}\ns_add_u32 {sT0}, {sT0}, {sT1}\ns_mul_i32 {sT1}, {sW}, 10240")
    for i in range(10):
        A(f"s_add_u32 m0, {sT1}, {L_W+1024*i}")
        A(f"s_waitcnt vmcnt({pace-1})")
        A(f"buffer_load_dwordx4 v7, {TA_}, {sT0} offen {wpol} lds")
        A(f"s_add_u32 {sT0}, {sT0}, 1024")
    A("s_branch L_dma_done")
    A("L_dma_wd:")
    A(f"s_mul_i32 {sT0}, s2, {6*1280}")
    for i in range(8):
        A(f"s_mov_b32 m0, {L_W+30720+1024*i}")
        if i == 7: A("s_mov_b32 exec_hi, 0")
        A(f"s_waitcnt vmcnt({pace-1})")
        A(f"buffer_load_dwordx4 v7, {TB_}, {sT0} offen {wpol} lds")
        A(f"s_add_u32 {sT0}, {sT0}, 1024")
    A("s_mov_b64 exec, -1")
    A("L_dma_done:")
    for p in range(pre0, P):
        next_static(); ld_tile(K_, PRE+24*p, True); ld_tile(V_, PRE+24*p+12, True)
    for u in range(D):
        next_static(); ld_tile(K_, RING+24*u, True); ld_tile(V_, RING+24*u+12, True)
    for i in range(24): A(f"v_mov_b32 v{ACC+i}, 0")
    A(f"v_mov_b32 {vM}, 0xff800000\nv_mov_b32 {vL}, 0")
    A(f"v_lshlrev_b32 v4, 4, {vB}")
    A(f"s_mov_b32 {sIT}, {S-P-D}\ns_mov_b32 {sSTOP}, -1")
    stamp()
    A("s_barrier")
    for j in range(3): A(f"ds_read_b128 v[{Q+4*j}:{Q+4*j+3}], v4 offset:{L_QB+128*j}")
    A("s_waitcnt lgkmcnt(0)")
    stamp()
    def get_off(tag, u):
        A(f"s_cmp_eq_u32 {sIT}, 0\ns_cbranch_scc1 L_go1{tag}")
        A(f"s_sub_u32 {sIT}, {sIT}, 1"); next_static(); A(f"s_branch L_go3{tag}")
        A(f"L_go1{tag}:")
        A(f"s_cmp_lg_u32 {sSTOP}, -1\ns_cbranch_scc1 L_go3{tag}")
        if dyn:
            A("s_barrier")
            A(f"v_mov_b32 v4, 0\nds_read_b32 v4, v4 offset:{L_CL+4*(u%2)}\ns_waitcnt lgkmcnt(0)\nv_readfirstlane_b32 {sT0}, v4")
            step2off(sT0)
            A(f"s_cmp_lt_u32 {sT0}, {NSTEP}\ns_cbranch_scc1 L_go3{tag}")
        A(f"s_mov_b32 {sOFF}, 0\ns_mov_b32 s10, 0\ns_mov_b32 s14, 0\ns_mov_b32 {sSTOP}, {D}")
        A(f"L_go3{tag}:")
    def body(u, tag, static):
        kr, vr = RING+24*u, RING+24*u+12
        if static: A(f"s_sub_u32 {sIT}, {sIT}, 1"); next_static()
        else: get_off(tag, u)
        A(f"s_waitcnt vmcnt({6*D-3})")
        qk(kr); ld_tile(K_, kr); softmax()
        A(f"s_waitcnt vmcnt({6*D-3})")
        pv(vr); ld_tile(V_, vr)
    assert S - P - D >= P
    if dyn: assert D % 2 == 0 and (S - 2*P - D) % 2 == 0
    for p in range(P):
        body(p % D, f"p{p}", True)
        qk(PRE+24*p); softmax(); pv(PRE+24*p+12)
    A("L_main:")
    for u in range(D):
        body(u, f"m{u}", False)
        A(f"s_cmp_eq_u32 {sSTOP}, -1\ns_cbranch_scc1 L_cont{u}")
        A(f"s_sub_u32 {sSTOP}, {sSTOP}, 1\ns_cmp_eq_u32 {sSTOP}, 0\ns_cbranch_scc1 L_fin")
        A(f"L_cont{u}:")
    A("s_branch L_main")
    A("L_fin:")
    stamp()
    A(f"v_mov_b32 {t0}, {vM}")
    allred_hi("v_max_f32", [t0], [t1])
    A(f"v_sub_f32 {t1}, {vM}, {t0}\nv_exp_f32 {t1}, {t1}")
    A(f"v_mul_f32 {vL}, {vL}, {t1}")
    for i in range(24): A(f"v_mul_f32 v{ACC+i}, v{ACC+i}, {t1}")
    allred_hi("v_add_f32", [vL], [t2])
    redscat(ACC, 3)
    A(f"v_mov_b32 v{ACC+1}, v{ACC+8}\nv_mov_b32 v{ACC+2}, v{ACC+16}\nv_mov_b32 v{ACC+3}, {vL}")
    A(f"s_lshl_b32 {sT0}, {sW}, 10\nv_add_u32 v4, {sT0}, v7\nv_lshrrev_b32 v5, 2, v4")
    A(f"ds_write_b128 v4, v[{ACC}:{ACC+3}] offset:{L_OP}\nds_write_b32 v5, {t0} offset:{L_OM}")
    A("s_waitcnt vmcnt(0) lgkmcnt(0)")
    A("s_barrier")
    A("s_branch L_epi")
    A("L_svc:")
    nst[0] = 3
    G0 = RING
    A(f"v_lshlrev_b32 v4, 2, {vLANE}")
    for w in range(5):
        for k in range(5): A(f"ds_read_b32 v{G0+5*w+k}, v4 offset:{L_QP+1280*w+256*k}")
        if w == 2: A("s_waitcnt lgkmcnt(0)")
    A("s_waitcnt lgkmcnt(0)")
    for w in range(1, 5):
        for k in range(5): A(f"v_add_f32 v{G0+k}, v{G0+k}, v{G0+5*w+k}")
    A(f"s_mul_i32 {sT0}, s2, 1280")
    A(f"buffer_store_dwordx4 v[{G0}:{G0+3}], v7, {WS_}, {sT0} offen sc1")
    A(f"buffer_store_dword v{G0+4}, v4, {WS_}, {sT0} offen offset:1024 sc1")
    srd(TC_, pDBG, 256)
    A(f"s_lshl_b32 {sT1}, {sH}, 3\nv_mov_b32 v5, 1\nv_mov_b32 v6, 0")
    A("s_waitcnt vmcnt(0)")
    A("s_mov_b64 exec, 1")
    A(f"buffer_atomic_add v5, v6, {TC_}, {sT1} offen sc1")
    A(f"s_mov_b32 {sT2}, {SPIN}")
    A("L_pollq:")
    A(f"buffer_load_dword v8, v6, {TC_}, {sT1} offen sc1")
    A(f"s_sub_u32 {sT2}, {sT2}, 1\ns_cbranch_scc1 L_pollq_done")
    A(f"s_waitcnt vmcnt(0)\nv_readfirstlane_b32 {sT3}, v8\ns_cmp_lt_u32 {sT3}, 8\ns_cbranch_scc1 L_pollq")
    A("L_pollq_done:")
    A("s_mov_b64 exec, -1")
    stamp()
    A(f"s_mul_i32 {sT0}, {sH}, {8*1280}")
    for s in range(8):
        A(f"buffer_load_dwordx4 v[{G0+4*s}:{G0+4*s+3}], v7, {WS_}, {sT0} offen sc1")
        A(f"buffer_load_dword v{G0+32+s}, v4, {WS_}, {sT0} offen offset:1024 sc1")
        A(f"s_add_u32 {sT0}, {sT0}, 1280")
    A(f"v_lshl_add_u32 v5, {vB}, 3, {vA}\nv_lshlrev_b32 v5, 1, v5")
    A("s_waitcnt vmcnt(0)")
    for s in range(1, 8):
        for k in range(4): A(f"v_add_f32 v{G0+k}, v{G0+k}, v{G0+4*s+k}")
        A(f"v_add_f32 v{G0+32}, v{G0+32}, v{G0+32+s}")
    for k in range(3): A(f"v_cvt_pk_bf16_f32 v{G0+k}, v{G0+k}, 0")
    for k in range(3): A(f"ds_write_b16 v5, v{G0+k} offset:{L_QB+128*k}")
    g, uu = f"v{G0+3}", f"v{G0+32}"
    A(f"v_cvt_pk_bf16_f32 {g}, 0, {g}\nv_cvt_pk_bf16_f32 {uu}, 0, {uu}")
    A(f"v_cmp_lt_f32 vcc, 0, {g}\nv_cndmask_b32 v6, 0, 1.0, vcc\nv_mul_f32 {g}, {g}, v6\nv_mul_f32 {g}, {g}, {uu}\nv_cvt_pk_bf16_f32 {g}, {g}, 0")
    A(f"ds_write_b16 v5, {g} offset:{L_HB}")
    A("s_waitcnt lgkmcnt(0)")
    stamp()
    A("s_barrier")
    A(f"s_cmp_ge_u32 s2, {R}\ns_cbranch_scc1 L_noall")
    A(f"v_lshlrev_b32 v6, 3, {vLANE}\ns_mov_b32 exec_hi, 0\ns_mov_b32 {sT2}, {SPIN}")
    A("L_pollall:")
    A(f"buffer_load_dword v5, v6, {TC_}, 0 offen sc1")
    A(f"s_sub_u32 {sT2}, {sT2}, 1\ns_cbranch_scc1 L_pollall_done")
    A(f"s_waitcnt vmcnt(0)\nv_cmp_gt_u32 vcc, 8, v5\ns_cbranch_vccnz L_pollall")
    A("L_pollall_done:")
    A("s_mov_b64 exec, -1")
    A("L_noall:")
    if dyn:
        sCUR, sEND, sTK = sCNT, sIT, sSTOP
        A(f"s_lshl_b32 {sT0}, {sH}, 8\ns_add_u32 {sT0}, {sT0}, {WS_CNT}\ns_add_u32 s72, s{pWS}, {sT0}\ns_addc_u32 s73, s{pWS+1}, 0")
        raise NotImplementedError
    A("s_barrier")
    stamp()
    for w in range(4):
        A(f"ds_read_b128 v[{G0+4*w}:{G0+4*w+3}], v7 offset:{L_OP+1024*w}")
        A(f"ds_read_b32 v{G0+16+w}, v4 offset:{L_OM+256*w}")
    A(f"v_lshlrev_b32 v5, 10, {vB}\nv_lshl_add_u32 v5, {vA}, 4, v5")
    A(f"s_lshl_b32 {sT0}, {sH}, 13\ns_lshl_b32 {sT1}, {sS}, 7\ns_add_u32 {sT0}, {sT0}, {sT1}\ns_add_u32 {sT0}, {sT0}, {WS_H1}")
    A(f"v_and_b32 v6, 1, {vA}\nv_cmp_eq_u32 vcc, 0, v6")
    A("s_waitcnt lgkmcnt(0)")
    A(f"v_max3_f32 {t0}, v{G0+16}, v{G0+17}, v{G0+18}\nv_max_f32 {t0}, {t0}, v{G0+19}")
    for w in range(4): A(f"v_sub_f32 v{G0+16+w}, v{G0+16+w}, {t0}")
    for w in range(4): A(f"v_exp_f32 v{G0+16+w}, v{G0+16+w}")
    for k in range(4): A(f"v_mul_f32 v{G0+k}, v{G0+k}, v{G0+16}")
    for w in range(1, 4):
        for k in range(4): A(f"v_fmac_f32 v{G0+k}, v{G0+4*w+k}, v{G0+16+w}")
    A(f"v_cndmask_b32 v{G0+3}, v{G0+3}, {t0}, vcc")
    A(f"buffer_store_dwordx4 v[{G0}:{G0+3}], v5, {WS_}, {sT0} offen sc1")
    A("L_epi:")
    nst[0] = 6
    E = RING + 24
    Y0, Y1 = "v8", "v9"
    HP = 10
    GG = 16
    A(f"s_lshl_b32 {sT0}, s2, 10\ns_add_u32 {sT0}, {sT0}, {WS_H1}")
    A(f"buffer_load_dwordx4 v[{GG}:{GG+3}], v7, {WS_}, {sT0} offen sc1")
    A(f"s_lshl_b32 {sT1}, {sW}, 8\nv_lshl_add_u32 v4, {vLANE}, 2, {sT1}")
    A(f"s_mul_i32 {sT1}, {sS}, 12\nv_mov_b32 v5, {sT1}")
    for i in range(3): A(f"ds_read_b32 v{HP+i}, v5 offset:{L_HB+4*i}")
    for r in range(30):
        A(f"ds_read_b32 v{E+r}, v4 offset:{L_W+1280*r}")
        if r in (9, 19): A("s_waitcnt lgkmcnt(0)")
    A(f"s_mov_b32 {sT1}, 0x05040100\ns_mov_b32 {sT3}, 0x07060302\nv_mov_b32 {Y0}, 0\nv_mov_b32 {Y1}, 0")
    A("s_waitcnt lgkmcnt(0)")
    for r in range(0, 30, 2):
        A(f"v_perm_b32 {t0}, v{E+r+1}, v{E+r}, {sT1}\nv_perm_b32 v{E+r+1}, v{E+r+1}, v{E+r}, {sT3}\nv_mov_b32 v{E+r}, {t0}")
    for i in range(3):
        A(f"v_dot2c_f32_bf16 {Y0}, v{E+24+2*i}, v{HP+i}\nv_dot2c_f32_bf16 {Y1}, v{E+25+2*i}, v{HP+i}")
    A(f"s_mov_b32 {sT2}, {SPIN}\ns_branch L_p1chk")
    A("L_p1:")
    A(f"buffer_load_dwordx4 v[{GG}:{GG+3}], v7, {WS_}, {sT0} offen sc1")
    A(f"s_sub_u32 {sT2}, {sT2}, 1\ns_cbranch_scc1 L_p1done")
    A("L_p1chk:")
    A("s_waitcnt vmcnt(0)")
    A(f"v_max_u32 {t0}, v{GG}, v{GG+1}\nv_max3_u32 {t0}, {t0}, v{GG+2}, v{GG+3}\nv_cmp_eq_u32 vcc, -1, {t0}\ns_cbranch_vccnz L_p1")
    A("L_p1done:")
    A("s_waitcnt vmcnt(0)")
    stamp()
    A(f"v_mov_b32_dpp {t0}, v{GG+3} quad_perm:[0,0,2,2] {DPP}\nv_mov_b32_dpp v{GG+3}, v{GG+3} quad_perm:[1,1,3,3] {DPP}")
    A(f"v_mov_b32 {t1}, {t0}")
    allred_hi("v_max_f32", [t1], [t2])
    A(f"v_sub_f32 {t0}, {t0}, {t1}\nv_exp_f32 {t0}, {t0}")
    for k in range(4): A(f"v_mul_f32 v{GG+k}, v{GG+k}, {t0}")
    allred_hi("v_add_f32", [f"v{GG+k}" for k in range(4)], [f"v{GG+4+k}" for k in range(4)])
    A(f"v_rcp_f32 {t0}, v{GG+3}")
    for k in range(3): A(f"v_mul_f32 v{GG+k}, v{GG+k}, {t0}")
    for k in range(3): A(f"v_mov_b32_dpp v{GG+4+k}, v{GG+k} quad_perm:[1,1,3,3] {DPP}")
    for k in range(3): A(f"v_cvt_pk_bf16_f32 v{GG+k}, v{GG+k}, v{GG+4+k}")
    for k in range(3):
        for a2 in range(4): A(f"v_readlane_b32 s{sU+4*k+a2}, v{GG+k}, {2*a2}")
    for i in range(12):
        A(f"v_dot2c_f32_bf16 {Y0}, s{sU+i}, v{E+2*i}\nv_dot2c_f32_bf16 {Y1}, s{sU+i}, v{E+2*i+1}")
    A(f"s_mul_i32 {sT0}, s2, 2560\ns_add_u32 {sT0}, {sT0}, {WS_H2}\nv_lshlrev_b32 v5, 1, v4")
    A(f"buffer_store_dwordx2 v[8:9], v5, {WS_}, {sT0} offen sc1")
    stamp()
    A(f"s_cmp_ge_u32 s2, {R}\ns_cbranch_scc1 L_done")
    assert R == 40
    A(f"s_cmp_eq_u32 {sW}, 4\ns_cbranch_scc1 L_red_svc")
    A(f"v_lshrrev_b32 v4, 2, {vLANE}\nv_mul_u32_u24 v4, 2560, v4\nv_and_b32 v5, 3, {vLANE}\nv_lshl_add_u32 v4, v5, 4, v4")
    A(f"s_mul_i32 {sT0}, {sW}, {64*2560}\ns_lshl_b32 {sT1}, s2, 6\ns_add_u32 {sT0}, {sT0}, {sT1}\ns_add_u32 {sT0}, {sT0}, {WS_H2}")
    for k in range(1, 4): A(f"s_add_u32 s{sU+k}, {sT0}, {16*2560*k}")
    A(f"s_mov_b32 s{sU}, {sT0}\ns_mov_b32 {sT2}, {SPIN}")
    A("L_p2:")
    for k in range(4): A(f"buffer_load_dwordx4 v[{GG+4*k}:{GG+4*k+3}], v4, {WS_}, s{sU+k} offen sc1")
    A(f"s_sub_u32 {sT2}, {sT2}, 1\ns_cbranch_scc1 L_p2done")
    A("s_waitcnt vmcnt(0)")
    A(f"v_max_u32 {t0}, v{GG}, v{GG+1}")
    for k in range(2, 16, 2): A(f"v_max3_u32 {t0}, {t0}, v{GG+k}, v{GG+k+1}")
    A(f"v_cmp_eq_u32 vcc, -1, {t0}\ns_cbranch_vccnz L_p2")
    A("L_p2done:")
    A("s_waitcnt vmcnt(0)")
    for e in range(4): A(f"v_add_f32 v{GG+e}, v{GG+e}, v{GG+4+e}\nv_add_f32 v{GG+8+e}, v{GG+8+e}, v{GG+12+e}")
    for e in range(4): A(f"v_add_f32 v{GG+e}, v{GG+e}, v{GG+8+e}")
    for e in range(4): A(f"v_add_f32_dpp v{GG+e}, v{GG+e}, v{GG+e} row_ror:4 {DPP}")
    allred_hi("v_add_f32", [f"v{GG+k}" for k in range(4)], [f"v{GG+4+k}" for k in range(4)])
    A(f"s_lshl_b32 {sT0}, {sW}, 6\nv_add_u32 v4, {sT0}, v7\ns_mov_b64 exec, 0xf")
    A(f"ds_write_b128 v4, v[{GG}:{GG+3}] offset:{L_RED}")
    A("s_mov_b64 exec, -1\ns_waitcnt lgkmcnt(0)\ns_barrier\ns_branch L_done")
    A("L_red_svc:")
    srd(TA_, pOUT, 1280)
    A(f"v_lshlrev_b32 v5, 1, {vLANE}\ns_lshl_b32 {sT0}, s2, 5\ns_mov_b64 exec, 0xffff")
    A(f"buffer_load_ushort v10, v5, {X_}, {sT0} offen")
    A(f"v_lshlrev_b32 v4, 2, {vLANE}")
    A("s_barrier")
    for w in range(4): A(f"ds_read_b32 v{GG+w}, v4 offset:{L_RED+64*w}")
    A("s_waitcnt vmcnt(0) lgkmcnt(0)")
    A(f"v_add_f32 v{GG}, v{GG}, v{GG+1}\nv_add_f32 v{GG+2}, v{GG+2}, v{GG+3}\nv_lshlrev_b32 v10, 16, v10")
    A(f"v_add_f32 v{GG}, v{GG}, v{GG+2}\nv_add_f32 v{GG}, v{GG}, v10\nv_cvt_pk_bf16_f32 v{GG}, v{GG}, 0")
    A(f"buffer_store_short v{GG}, v5, {TA_}, {sT0} offen")
    A("s_mov_b64 exec, -1")
    A("L_done:")
    if stamps:
        nst[0] = 8; stamp()
        A(f"s_mul_i32 {sT0}, s2, 5\ns_add_u32 {sT0}, {sT0}, {sW}\ns_lshl_b32 {sT0}, {sT0}, 6\ns_add_u32 {sT0}, {sT0}, {WS_ST}")
        A(f"s_getreg_b32 {sT1}, hwreg(HW_REG_XCC_ID)")
        A("s_waitcnt lgkmcnt(0)\nv_mov_b32 v4, 0")
        for i in range(9): A(f"v_writelane_b32 v4, s{sST+2*i}, {i}")
        A(f"v_writelane_b32 v4, {sT1}, 15")
        A(f"v_lshlrev_b32 v5, 2, {vLANE}\ns_mov_b64 exec, 0xffff")
        A(f"buffer_store_dword v4, v5, {WS_}, {sT0} offen")
    A("L_end:\ns_endpgm")
    A('.section .rodata,"a"\n.p2align 6')
    A(f".amdhsa_kernel {KN}")
    nv4 = (NV+3)//4*4
    A(f".amdhsa_next_free_vgpr {nv4}\n.amdhsa_next_free_sgpr 102\n.amdhsa_accum_offset {nv4}")
    A(".amdhsa_group_segment_fixed_size 0\n.amdhsa_kernarg_size 96\n.amdhsa_user_sgpr_count 2")
    A(".amdhsa_user_sgpr_kernarg_segment_ptr 1\n.amdhsa_system_sgpr_workgroup_id_x 1")
    A(".amdhsa_float_denorm_mode_32 3\n.end_amdhsa_kernel")
    return A.finish()

if __name__ == "__main__":
    kw = eval("dict(" + (sys.argv[2] if len(sys.argv) > 2 else "") + ")")
    open(sys.argv[1], "w").write(gen(**kw))
```

```python
import sys, os
sys.path.insert(0, os.path.dirname(os.path.abspath(__file__)))
from asmlib import Asm
KN = "parallel_sum__mha_block_cached__glu_gated_reglu__decode_kernel"
HEADER = open("parallel_sum__mha_block_cached__glu_gated_reglu__decode.s.ref").read().split("; Override launch")[0]

HB = 32768*384
STEP = 4*3072
NSTEP = 1024
WS_QS, WS_H1, WS_H2, WS_CNT, WS_ST, WS_SIZE = 0, 0x60000, 0xA0000, 0x140000, 0x200000, 0x400000
L_W, L_QP, L_QB, L_HB, L_OP, L_OM, L_RED, L_CL, L_SIZE = 0, 38912, 45312, 45696, 45824, 49920, 50944, 51200, 51264
OOB = 0x40000000
SPIN = 1 << 20

def gen(P=4, D=2, S=128, pace=6, pol="nt", wpol="nt", stamps=False, R=40, pre0=2, rot=True, sizes=None, ahead=1, diag=None, noround=False):
    A = Asm()
    dyn = S < 128
    assert P % D == 0 and P + D <= S and D >= 2 and pre0 <= P
    if dyn:
        assert sum(n*z for n, z in sizes) == NSTEP - 8*S, (sum(n*z for n, z in sizes), NSTEP - 8*S)
    sW, sH, sS = "s3", "s4", "s5"
    K_, V_, WS_, TA_, TB_, TC_, X_ = "s[8:11]", "s[12:15]", "s[16:19]", "s[20:23]", "s[24:27]", "s[28:31]", "s[32:35]"
    pX, pK, pV, pWQ, pWO, pWG, pWU, pWD, pOUT, pDBG, pWS = 36, 38, 40, 42, 44, 48, 50, 52, 54, 56, 58
    sOFF, sCNT, sROT, sIT, sSTOP, sSCALE, sLOG2E, sT0, sT1, sT2, sT3, sWOFF = "s60", "s61", "s62", "s63", "s64", "s65", "s66", "s67", "s68", "s69", "s70", "s71"
    sU = 72
    sST = 84
    vLANE, vKV, vA, vB = "v0", "v1", "v2", "v3"
    ACC, Q, vM, vL = 8, 32, "v44", "v45"
    T = 46
    RING = 56
    PRE = RING + 24*D
    NV = PRE + 24*P
    assert NV <= 256
    nst = [0]
    def stamp():
        if stamps or diag is not None:
            A(f"s_memrealtime s[{sST+2*nst[0]}:{sST+2*nst[0]+1}]");
        nst[0] += 1
    def srd(name, ptr, size, off=None):
        b = int(name[2:name.index(":")])
        if off is None:
            A(f"s_mov_b32 s{b}, s{ptr}"); A(f"s_mov_b32 s{b+1}, s{ptr+1}")
        else:
            A(f"s_add_u32 s{b}, s{ptr}, {off}"); A(f"s_addc_u32 s{b+1}, s{ptr+1}, 0")
        A(f"s_mov_b32 s{b+2}, {size}"); A(f"s_mov_b32 s{b+3}, 0x20000")
    DPP = "row_mask:0xf bank_mask:0xf"
    def allred_lo(op, v):
        A(f"{op}_dpp {v}, {v}, {v} quad_perm:[1,0,3,2] {DPP}")
        A(f"{op}_dpp {v}, {v}, {v} quad_perm:[2,3,0,1] {DPP}")
        A(f"{op}_dpp {v}, {v}, {v} row_half_mirror {DPP}")
    def allred_hi(op, vs, ts):
        for v in vs: A(f"{op}_dpp {v}, {v}, {v} row_ror:8 {DPP}")
        for sw in ("v_permlane16_swap_b32", "v_permlane32_swap_b32"):
            for v, t in zip(vs, ts): A(f"v_mov_b32 {t}, {v}")
            for v, t in zip(vs, ts): A(f"{sw} {t}, {v}")
            for v, t in zip(vs, ts): A(f"{op} {v}, {v}, {t}")
    def redscat(base, n):
        for g in range(n):
            for e in range(4): A(f"v_permlane32_swap_b32 v{base+8*g+e}, v{base+8*g+e+4}")
        for g in range(n):
            for e in range(4): A(f"v_add_f32 v{base+8*g+e}, v{base+8*g+e}, v{base+8*g+e+4}")
        for g in range(n):
            for e in range(2): A(f"v_permlane16_swap_b32 v{base+8*g+e}, v{base+8*g+e+2}")
        for g in range(n):
            for e in range(2): A(f"v_add_f32 v{base+8*g+e}, v{base+8*g+e}, v{base+8*g+e+2}")
        for g in range(n):
            A(f"v_add_f32_dpp v{base+8*g}, v{base+8*g}, v{base+8*g} row_ror:8 row_mask:0xf bank_mask:0x3")
        for g in range(n):
            A(f"v_add_f32_dpp v{base+8*g}, v{base+8*g+1}, v{base+8*g+1} row_ror:8 row_mask:0xf bank_mask:0xc")
    def ld_tile(srdn, reg, paced=False):
        for j in range(3):
            if paced: A(f"s_waitcnt vmcnt({pace-1})")
            A(f"buffer_load_dwordx4 v[{reg+4*j}:{reg+4*j+3}], {vKV}, {srdn}, {sOFF} offen offset:{128*j} {pol}")
    def step2off(sreg):
        A(f"s_add_u32 {sOFF}, {sreg}, {sROT}"); A(f"s_and_b32 {sOFF}, {sOFF}, {NSTEP-1}")
        A(f"s_mul_i32 {sOFF}, {sOFF}, {STEP}"); A(f"s_add_u32 {sOFF}, {sOFF}, {sWOFF}")
    def next_static():
        step2off(sCNT); A(f"s_add_u32 {sCNT}, {sCNT}, 1")
    uid = [0]
    def qk(kreg):
        s0, s1, s2 = f"v{T}", f"v{T+1}", f"v{T+2}"
        for j, sj in enumerate((s0, s1, s2)):
            A(f"v_dot2_f32_bf16 {sj}, v{kreg+4*j}, v{Q+4*j}, 0")
        for e in range(1, 4):
            for j, sj in enumerate((s0, s1, s2)):
                A(f"v_dot2_f32_bf16 {sj}, v{kreg+4*j+e}, v{Q+4*j+e}, {sj}")
    def softmax():
        s0, s1, s2, pl, ph = f"v{T}", f"v{T+1}", f"v{T+2}", f"v{T+3}", f"v{T+4}"
        uid[0] += 1
        A(f"v_add_f32 {s0}, {s0}, {s1}"); A(f"v_add_f32 {s0}, {s0}, {s2}")
        allred_lo("v_add_f32", s0)
        if not noround: A(f"v_cvt_pk_bf16_f32 {s0}, 0, {s0}")
        A(f"v_mul_f32 {s0}, {sSCALE}, {s0}")
        if not noround: A(f"v_cvt_pk_bf16_f32 {s0}, 0, {s0}")
        A(f"v_mul_f32 {s0}, {sLOG2E}, {s0}")
        A(f"v_cmp_gt_f32 vcc, {s0}, {vM}")
        A(f"s_cbranch_vccz L_nors{uid[0]}")
        A(f"v_max_f32 {s1}, {s0}, {vM}"); A(f"v_sub_f32 {s2}, {vM}, {s1}"); A(f"v_exp_f32 {s2}, {s2}")
        A(f"v_mov_b32 {vM}, {s1}"); A(f"v_mul_f32 {vL}, {vL}, {s2}")
        for i in range(24): A(f"v_mul_f32 v{ACC+i}, v{ACC+i}, {s2}")
        A(f"L_nors{uid[0]}:")
        A(f"v_sub_f32 {s0}, {s0}, {vM}"); A(f"v_exp_f32 {s0}, {s0}")
        A(f"v_add_f32 {vL}, {vL}, {s0}")
        A(f"v_cvt_pk_bf16_f32 {pl}, {s0}, 0"); A(f"v_cvt_pk_bf16_f32 {ph}, 0, {s0}")
    def axpy(acc, data, n, pl, ph):
        for i in range(n):
            A(f"v_dot2c_f32_bf16 v{acc+2*i}, v{data+i}, {pl}"); A(f"v_dot2c_f32_bf16 v{acc+2*i+1}, v{data+i}, {ph}")
    def pv(vreg): axpy(ACC, vreg, 12, f"v{T+3}", f"v{T+4}")

    A(HEADER.rstrip())
    A(f"; @launch grid=(256,1,1) block=(320,1,1) lds={L_SIZE}")
    A('.amdgcn_target "amdgcn-amd-amdhsa--gfx950"\n.text')
    A(f".globl {KN}\n.p2align 8\n.type {KN},@function\n{KN}:")
    A("s_cmp_ge_u32 s2, 256\ns_cbranch_scc1 L_end")
    A("s_load_dwordx16 s[36:51], s[0:1], 0\ns_load_dwordx8 s[52:59], s[0:1], 64")
    stamp()
    A(f"v_lshrrev_b32 v1, 6, v0\nv_and_b32 {vLANE}, 63, v0\nv_readfirstlane_b32 {sW}, v1")
    A(f"s_lshr_b32 {sH}, s2, 3\ns_and_b32 {sS}, s2, 7")
    A(f"v_lshrrev_b32 {vA}, 3, {vLANE}\nv_and_b32 {vB}, 7, {vLANE}")
    A(f"v_lshlrev_b32 v7, 4, {vB}")
    A(f"v_mov_b32 v4, 384\nv_mad_u32_u24 {vKV}, {vA}, v4, v7")
    A(f"v_mov_b32 v4, 12288\nv_mad_u32_u24 v4, {vA}, v4, v7")
    A(f"v_mov_b32 v5, 3072\nv_mad_u32_u24 v5, {vA}, v5, v7")
    A(f"v_mov_b32 v6, {OOB}\nv_cmp_gt_u32 vcc, 6, {vB}\nv_cndmask_b32 v5, v6, v5, vcc")
    A(f"v_lshlrev_b32 v6, 1, {vA}\nv_lshlrev_b32 v7, 4, {vLANE}")
    A(f"s_mul_i32 {sT0}, {sS}, 80\ns_lshl_b32 {sT1}, {sW}, 4\ns_add_u32 {sT0}, {sT0}, {sT1}")
    A(f"s_mul_i32 {sT1}, {sT0}, 12288\ns_mul_i32 {sT2}, {sH}, 384\ns_add_u32 {sT1}, {sT1}, {sT2}")
    A(f"s_mul_i32 {sT2}, {sT0}, 3072\ns_mul_i32 {sT3}, {sH}, 96\ns_add_u32 {sT2}, {sT2}, {sT3}")
    A(f"s_lshl_b32 {sT0}, {sT0}, 1")
    A(f"s_mul_i32 {sT3}, {sH}, {HB}")
    A("s_waitcnt lgkmcnt(0)")
    srd(X_, pX, 1280); srd(TA_, pWQ, 640*12288); srd(TB_, pWG, 640*3072); srd(TC_, pWU, 640*3072)
    XR, WD, WA = RING + 40, RING, ACC
    A(f"buffer_load_dwordx4 v[{XR}:{XR+3}], v7, {X_}, 0 offen")
    A(f"buffer_load_dwordx4 v[{XR+4}:{XR+7}], v7, {X_}, 0 offen offset:1024")
    A(f"buffer_load_ushort v{T+8}, v6, {X_}, {sT0} offen")
    A(f"buffer_load_ushort v{T+9}, v6, {X_}, {sT0} offen offset:16")
    for t in range(2):
        for j in range(3):
            A(f"buffer_load_dwordx4 v[{WD+20*t+4*j}:{WD+20*t+4*j+3}], v4, {TA_}, {sT1} offen offset:{128*j} {wpol}")
        A(f"buffer_load_dwordx4 v[{WD+20*t+12}:{WD+20*t+15}], v5, {TB_}, {sT2} offen {wpol}")
        A(f"buffer_load_dwordx4 v[{WD+20*t+16}:{WD+20*t+19}], v5, {TC_}, {sT2} offen {wpol}")
        if t == 0: A(f"s_add_u32 {sT1}, {sT1}, {8*12288}\ns_add_u32 {sT2}, {sT2}, {8*3072}")
    srd(K_, pK, HB, sT3); srd(V_, pV, HB, sT3); srd(WS_, pWS, WS_SIZE)
    if rot: A(f"s_mul_i32 {sROT}, {sH}, 0x9E3779B1\ns_lshr_b32 {sROT}, {sROT}, 22")
    else: A(f"s_mov_b32 {sROT}, 0")
    A(f"s_mul_i32 {sCNT}, {sS}, {S}\ns_mul_i32 {sWOFF}, {sW}, 3072")
    A(f"s_mov_b32 {sSCALE}, 0x3d93cd3a\ns_mov_b32 {sLOG2E}, 0x3fb8aa3b")
    A(f"s_cmp_eq_u32 {sW}, 4\ns_cbranch_scc1 L_svc_pre")
    for p in range(pre0):
        next_static(); ld_tile(K_, PRE+24*p); ld_tile(V_, PRE+24*p+12)
    A("s_branch L_ln")
    A("L_svc_pre:")
    CL = PRE
    for i in range(4): A(f"v_mov_b32 v{CL+i}, -1")
    A(f"v_mov_b32 v{CL+4}, 0")
    A(f"s_lshl_b32 {sT0}, s2, 10\ns_add_u32 {sT0}, {sT0}, {WS_H1}")
    A(f"buffer_store_dwordx4 v[{CL}:{CL+3}], v7, {WS_}, {sT0} offen sc1")
    A(f"s_mul_i32 {sT0}, s2, 2560\ns_add_u32 {sT0}, {sT0}, {WS_H2}")
    A(f"buffer_store_dwordx4 v[{CL}:{CL+3}], v7, {WS_}, {sT0} offen sc1")
    A(f"buffer_store_dwordx4 v[{CL}:{CL+3}], v7, {WS_}, {sT0} offen offset:1024 sc1")
    A("s_mov_b32 exec_hi, 0")
    A(f"buffer_store_dwordx4 v[{CL}:{CL+3}], v7, {WS_}, {sT0} offen offset:2048 sc1")
    A("s_mov_b64 exec, -1")
    A(f"v_mov_b32 v{CL+5}, {OOB}")
    npad = 6*pre0 - 4
    if dyn:
        A(f"v_or_b32 v{CL+6}, {sS}, {vLANE}\nv_cmp_eq_u32 vcc, 0, v{CL+6}\nv_cndmask_b32 v{CL+6}, v{CL+5}, v{CL+4}, vcc")
        A(f"s_lshl_b32 {sT0}, {sH}, 8\ns_add_u32 {sT0}, {sT0}, {WS_CNT}")
        A(f"buffer_store_dword v{CL+4}, v{CL+6}, {WS_}, {sT0} offen sc1")
        npad -= 1
    assert npad >= 0
    for i in range(npad): A(f"buffer_load_dword v{CL+7}, v{CL+5}, {X_}, 0 offen")
    A("L_ln:")
    A(f"s_waitcnt vmcnt({10+6*pre0})")
    XF = WA
    for i in range(8):
        A(f"v_lshlrev_b32 v{XF+2*i}, 16, v{XR+i}\nv_and_b32 v{XF+2*i+1}, 0xffff0000, v{XR+i}")
    t0, t1, t2, t3 = f"v{T}", f"v{T+1}", f"v{T+2}", f"v{T+3}"
    A(f"v_add_f32 {t0}, v{XF}, v{XF+1}\nv_add_f32 {t1}, v{XF+2}, v{XF+3}")
    for i in range(4, 16, 2): A(f"v_add_f32 {t0}, {t0}, v{XF+i}\nv_add_f32 {t1}, {t1}, v{XF+i+1}")
    A(f"v_add_f32 {t0}, {t0}, {t1}")
    allred_lo("v_add_f32", t0); allred_hi("v_add_f32", [t0], [t1])
    A(f"v_mul_f32 {t0}, 0x3acccccd, {t0}")
    for i in range(16): A(f"v_sub_f32 v{XF+i}, v{XF+i}, {t0}")
    A(f"v_mul_f32 {t1}, v{XF}, v{XF}\nv_mul_f32 {t2}, v{XF+8}, v{XF+8}")
    for i in range(1, 8): A(f"v_fmac_f32 {t1}, v{XF+i}, v{XF+i}\nv_fmac_f32 {t2}, v{XF+8+i}, v{XF+8+i}")
    A(f"v_cmp_gt_u32 vcc, 16, {vLANE}\nv_cndmask_b32 {t2}, 0, {t2}, vcc\nv_add_f32 {t1}, {t1}, {t2}")
    allred_lo("v_add_f32", t1); allred_hi("v_add_f32", [t1], [t2])
    A(f"v_mul_f32 {t1}, 0x3acccccd, {t1}")
    A(f"v_cvt_pk_bf16_f32 {t0}, 0, {t0}\nv_cvt_pk_bf16_f32 {t1}, 0, {t1}")
    A(f"v_add_f32 {t1}, 0x3727c5ac, {t1}\nv_cvt_pk_bf16_f32 {t1}, 0, {t1}\nv_sqrt_f32 {t1}, {t1}")
    A(f"v_cvt_pk_bf16_f32 {t1}, 0, {t1}\nv_rcp_f32 {t2}, {t1}")
    for t in range(2):
        xr = f"v{T+8+t}"
        A(f"v_lshlrev_b32 {xr}, 16, {xr}\nv_sub_f32 {xr}, {xr}, {t0}\nv_cvt_pk_bf16_f32 {xr}, 0, {xr}")
        A(f"v_mul_f32 {t3}, {xr}, {t2}\nv_fma_f32 {xr}, -{t3}, {t1}, {xr}\nv_fma_f32 {xr}, {xr}, {t2}, {t3}")
        A(f"v_cvt_pk_bf16_f32 v{T+4+2*t}, {xr}, 0\nv_cvt_pk_bf16_f32 v{T+5+2*t}, 0, {xr}")
    for i in range(40): A(f"v_mov_b32 v{WA+i}, 0")
    stamp()
    A(f"s_waitcnt vmcnt({5+6*pre0})")
    axpy(WA, WD, 20, f"v{T+4}", f"v{T+5}")
    A(f"s_waitcnt vmcnt({6*pre0})")
    axpy(WA, WD+20, 20, f"v{T+6}", f"v{T+7}")
    redscat(WA, 5)
    A(f"s_mul_i32 {sT0}, {sW}, 1280\nv_lshl_add_u32 v4, {vLANE}, 2, {sT0}")
    for k in range(5): A(f"ds_write_b32 v4, v{WA+8*k} offset:{L_QP+256*k}")
    A("s_waitcnt lgkmcnt(0)")
    stamp()
    A("s_barrier")
    A(f"s_cmp_eq_u32 {sW}, 4\ns_cbranch_scc1 L_svc")
    srd(TA_, pWO, 6144*1280); srd(TB_, pWD, 1536*1280)
    A(f"s_mul_i32 {sT0}, {sH}, 192\ns_lshl_b32 {sT1}, {sS}, 3\ns_add_u32 {sT0}, {sT0}, {sT1}\ns_mul_i32 {sT0}, {sT0}, 1280")
    A(f"s_cmp_eq_u32 {sW}, 3\ns_cbranch_scc1 L_dma_wd")
    A(f"s_mul_i32 {sT1}, {sW}, {64*1280}\ns_add_u32 {sT0}, {sT0}, {sT1}\ns_mul_i32 {sT1}, {sW}, 10240")
    for i in range(10):
        A(f"s_add_u32 m0, {sT1}, {L_W+1024*i}")
        A(f"s_waitcnt vmcnt({pace-1})")
        A(f"buffer_load_dwordx4 v7, {TA_}, {sT0} offen {wpol} lds")
        A(f"s_add_u32 {sT0}, {sT0}, 1024")
    A("s_branch L_dma_done")
    A("L_dma_wd:")
    A(f"s_mul_i32 {sT0}, s2, {6*1280}")
    for i in range(8):
        A(f"s_mov_b32 m0, {L_W+30720+1024*i}")
        if i == 7: A("s_mov_b32 exec_hi, 0")
        A(f"s_waitcnt vmcnt({pace-1})")
        A(f"buffer_load_dwordx4 v7, {TB_}, {sT0} offen {wpol} lds")
        A(f"s_add_u32 {sT0}, {sT0}, 1024")
    A("s_mov_b64 exec, -1")
    A("L_dma_done:")
    for p in range(pre0, P):
        next_static(); ld_tile(K_, PRE+24*p, True); ld_tile(V_, PRE+24*p+12, True)
    for u in range(D):
        next_static(); ld_tile(K_, RING+24*u, True); ld_tile(V_, RING+24*u+12, True)
    for i in range(24): A(f"v_mov_b32 v{ACC+i}, 0")
    A(f"v_mov_b32 {vM}, 0xff800000\nv_mov_b32 {vL}, 0")
    A(f"v_lshlrev_b32 v4, 4, {vB}")
    A(f"s_mov_b32 {sIT}, {S-P-D}\ns_mov_b32 {sSTOP}, -1")
    stamp()
    A("s_barrier")
    for j in range(3): A(f"ds_read_b128 v[{Q+4*j}:{Q+4*j+3}], v4 offset:{L_QB+128*j}")
    A("s_waitcnt lgkmcnt(0)")
    stamp()
    def get_off(tag, u):
        A(f"s_cmp_eq_u32 {sIT}, 0\ns_cbranch_scc1 L_go1{tag}")
        A(f"s_sub_u32 {sIT}, {sIT}, 1"); next_static(); A(f"s_branch L_go3{tag}")
        A(f"L_go1{tag}:")
        A(f"s_cmp_lg_u32 {sSTOP}, -1\ns_cbranch_scc1 L_go3{tag}")
        if dyn:
            A("s_barrier")
            A(f"v_mov_b32 v4, 0\nds_read_b32 v4, v4 offset:{L_CL+4*(u%2)}\ns_waitcnt lgkmcnt(0)\nv_readfirstlane_b32 {sT0}, v4")
            step2off(sT0)
            A(f"s_cmp_lt_u32 {sT0}, {NSTEP}\ns_cbranch_scc1 L_go3{tag}")
        A(f"s_mov_b32 {sOFF}, 0\ns_mov_b32 s10, 0\ns_mov_b32 s14, 0\ns_mov_b32 {sSTOP}, {D}")
        A(f"L_go3{tag}:")
    def body(u, tag, static):
        kr, vr = RING+24*u, RING+24*u+12
        if static: A(f"s_sub_u32 {sIT}, {sIT}, 1"); next_static()
        else: get_off(tag, u)
        A(f"s_waitcnt vmcnt({6*D-3})")
        qk(kr); ld_tile(K_, kr); softmax()
        A(f"s_waitcnt vmcnt({6*D-3})")
        pv(vr); ld_tile(V_, vr)
    assert S - P - D >= P
    if dyn: assert D % 2 == 0 and (S - 2*P - D) % 2 == 0
    for p in range(P):
        body(p % D, f"p{p}", True)
        qk(PRE+24*p); softmax(); pv(PRE+24*p+12)
    A("L_main:")
    for u in range(D):
        body(u, f"m{u}", False)
        A(f"s_cmp_eq_u32 {sSTOP}, -1\ns_cbranch_scc1 L_cont{u}")
        A(f"s_sub_u32 {sSTOP}, {sSTOP}, 1\ns_cmp_eq_u32 {sSTOP}, 0\ns_cbranch_scc1 L_fin")
        A(f"L_cont{u}:")
    A("s_branch L_main")
    A("L_fin:")
    stamp()
    A(f"v_mov_b32 {t0}, {vM}")
    allred_hi("v_max_f32", [t0], [t1])
    A(f"v_sub_f32 {t1}, {vM}, {t0}\nv_exp_f32 {t1}, {t1}")
    A(f"v_mul_f32 {vL}, {vL}, {t1}")
    for i in range(24): A(f"v_mul_f32 v{ACC+i}, v{ACC+i}, {t1}")
    allred_hi("v_add_f32", [vL], [t2])
    redscat(ACC, 3)
    A(f"v_mov_b32 v{ACC+1}, v{ACC+8}\nv_mov_b32 v{ACC+2}, v{ACC+16}\nv_mov_b32 v{ACC+3}, {vL}")
    A(f"s_lshl_b32 {sT0}, {sW}, 10\nv_add_u32 v4, {sT0}, v7\nv_lshrrev_b32 v5, 2, v4")
    A(f"ds_write_b128 v4, v[{ACC}:{ACC+3}] offset:{L_OP}\nds_write_b32 v5, {t0} offset:{L_OM}")
    A("s_waitcnt vmcnt(0) lgkmcnt(0)")
    A("s_barrier")
    A("s_branch L_epi")
    A("L_svc:")
    nst[0] = 3
    G0 = RING
    A(f"v_lshlrev_b32 v4, 2, {vLANE}")
    for w in range(5):
        for k in range(5): A(f"ds_read_b32 v{G0+5*w+k}, v4 offset:{L_QP+1280*w+256*k}")
        if w == 2: A("s_waitcnt lgkmcnt(0)")
    A("s_waitcnt lgkmcnt(0)")
    for w in range(1, 5):
        for k in range(5): A(f"v_add_f32 v{G0+k}, v{G0+k}, v{G0+5*w+k}")
    A(f"s_mul_i32 {sT0}, s2, 1280")
    A(f"buffer_store_dwordx4 v[{G0}:{G0+3}], v7, {WS_}, {sT0} offen sc1")
    A(f"buffer_store_dword v{G0+4}, v4, {WS_}, {sT0} offen offset:1024 sc1")
    srd(TC_, pDBG, 256)
    A(f"s_lshl_b32 {sT1}, {sH}, 3\nv_mov_b32 v5, 1\nv_mov_b32 v6, 0")
    A("s_waitcnt vmcnt(0)")
    A("s_mov_b64 exec, 1")
    A(f"buffer_atomic_add v5, v6, {TC_}, {sT1} offen sc1")
    A(f"s_mov_b32 {sT2}, {SPIN}")
    A("L_pollq:")
    A(f"buffer_load_dword v8, v6, {TC_}, {sT1} offen sc1")
    A(f"s_sub_u32 {sT2}, {sT2}, 1\ns_cbranch_scc1 L_pollq_done")
    A(f"s_waitcnt vmcnt(0)\nv_readfirstlane_b32 {sT3}, v8\ns_cmp_lt_u32 {sT3}, 8\ns_cbranch_scc1 L_pollq")
    A("L_pollq_done:")
    A("s_mov_b64 exec, -1")
    stamp()
    A(f"s_mul_i32 {sT0}, {sH}, {8*1280}")
    for s in range(8):
        A(f"buffer_load_dwordx4 v[{G0+4*s}:{G0+4*s+3}], v7, {WS_}, {sT0} offen sc1")
        A(f"buffer_load_dword v{G0+32+s}, v4, {WS_}, {sT0} offen offset:1024 sc1")
        A(f"s_add_u32 {sT0}, {sT0}, 1280")
    A(f"v_lshl_add_u32 v5, {vB}, 3, {vA}\nv_lshlrev_b32 v5, 1, v5")
    A("s_waitcnt vmcnt(0)")
    for s in range(1, 8):
        for k in range(4): A(f"v_add_f32 v{G0+k}, v{G0+k}, v{G0+4*s+k}")
        A(f"v_add_f32 v{G0+32}, v{G0+32}, v{G0+32+s}")
    for k in range(3): A(f"v_cvt_pk_bf16_f32 v{G0+k}, v{G0+k}, 0")
    for k in range(3): A(f"ds_write_b16 v5, v{G0+k} offset:{L_QB+128*k}")
    g, uu = f"v{G0+3}", f"v{G0+32}"
    A(f"v_cvt_pk_bf16_f32 {g}, 0, {g}\nv_cvt_pk_bf16_f32 {uu}, 0, {uu}")
    A(f"v_cmp_lt_f32 vcc, 0, {g}\nv_cndmask_b32 v6, 0, 1.0, vcc\nv_mul_f32 {g}, {g}, v6\nv_mul_f32 {g}, {g}, {uu}\nv_cvt_pk_bf16_f32 {g}, {g}, 0")
    A(f"ds_write_b16 v5, {g} offset:{L_HB}")
    A("s_waitcnt lgkmcnt(0)")
    stamp()
    A("s_barrier")
    A(f"s_cmp_ge_u32 s2, {R}\ns_cbranch_scc1 L_noall")
    A(f"v_lshlrev_b32 v6, 3, {vLANE}\ns_mov_b32 exec_hi, 0\ns_mov_b32 {sT2}, {SPIN}")
    A("L_pollall:")
    A(f"buffer_load_dword v5, v6, {TC_}, 0 offen sc1")
    A(f"s_sub_u32 {sT2}, {sT2}, 1\ns_cbranch_scc1 L_pollall_done")
    A(f"s_waitcnt vmcnt(0)\nv_cmp_gt_u32 vcc, 8, v5\ns_cbranch_vccnz L_pollall")
    A("L_pollall_done:")
    A("s_mov_b64 exec, -1")
    A("L_noall:")
    if dyn:
        sCUR, sEND, sTK = sCNT, sIT, sSTOP
        A(f"s_lshl_b32 {sT0}, {sH}, 8\ns_add_u32 {sT0}, {sT0}, {WS_CNT}\ns_add_u32 s72, s{pWS}, {sT0}\ns_addc_u32 s73, s{pWS+1}, 0")
        raise NotImplementedError
    A("s_barrier")
    stamp()
    for w in range(4):
        A(f"ds_read_b128 v[{G0+4*w}:{G0+4*w+3}], v7 offset:{L_OP+1024*w}")
        A(f"ds_read_b32 v{G0+16+w}, v4 offset:{L_OM+256*w}")
    A(f"v_lshlrev_b32 v5, 10, {vB}\nv_lshl_add_u32 v5, {vA}, 4, v5")
    A(f"s_lshl_b32 {sT0}, {sH}, 13\ns_lshl_b32 {sT1}, {sS}, 7\ns_add_u32 {sT0}, {sT0}, {sT1}\ns_add_u32 {sT0}, {sT0}, {WS_H1}")
    A(f"v_and_b32 v6, 1, {vA}\nv_cmp_eq_u32 vcc, 0, v6")
    A("s_waitcnt lgkmcnt(0)")
    A(f"v_max3_f32 {t0}, v{G0+16}, v{G0+17}, v{G0+18}\nv_max_f32 {t0}, {t0}, v{G0+19}")
    for w in range(4): A(f"v_sub_f32 v{G0+16+w}, v{G0+16+w}, {t0}")
    for w in range(4): A(f"v_exp_f32 v{G0+16+w}, v{G0+16+w}")
    for k in range(4): A(f"v_mul_f32 v{G0+k}, v{G0+k}, v{G0+16}")
    for w in range(1, 4):
        for k in range(4): A(f"v_fmac_f32 v{G0+k}, v{G0+4*w+k}, v{G0+16+w}")
    A(f"v_cndmask_b32 v{G0+3}, v{G0+3}, {t0}, vcc")
    A(f"buffer_store_dwordx4 v[{G0}:{G0+3}], v5, {WS_}, {sT0} offen sc1")
    A("L_epi:")
    nst[0] = 6
    E = RING + 24
    Y0, Y1 = "v8", "v9"
    HP = 10
    GG = 16
    A(f"s_lshl_b32 {sT0}, s2, 10\ns_add_u32 {sT0}, {sT0}, {WS_H1}")
    A(f"buffer_load_dwordx4 v[{GG}:{GG+3}], v7, {WS_}, {sT0} offen sc1")
    A(f"s_lshl_b32 {sT1}, {sW}, 8\nv_lshl_add_u32 v4, {vLANE}, 2, {sT1}")
    A(f"s_mul_i32 {sT1}, {sS}, 12\nv_mov_b32 v5, {sT1}")
    for i in range(3): A(f"ds_read_b32 v{HP+i}, v5 offset:{L_HB+4*i}")
    for r in range(30):
        A(f"ds_read_b32 v{E+r}, v4 offset:{L_W+1280*r}")
        if r in (9, 19): A("s_waitcnt lgkmcnt(0)")
    A(f"s_mov_b32 {sT1}, 0x05040100\ns_mov_b32 {sT3}, 0x07060302\nv_mov_b32 {Y0}, 0\nv_mov_b32 {Y1}, 0")
    A("s_waitcnt lgkmcnt(0)")
    for r in range(0, 30, 2):
        A(f"v_perm_b32 {t0}, v{E+r+1}, v{E+r}, {sT1}\nv_perm_b32 v{E+r+1}, v{E+r+1}, v{E+r}, {sT3}\nv_mov_b32 v{E+r}, {t0}")
    for i in range(3):
        A(f"v_dot2c_f32_bf16 {Y0}, v{E+24+2*i}, v{HP+i}\nv_dot2c_f32_bf16 {Y1}, v{E+25+2*i}, v{HP+i}")
    A(f"s_mov_b32 {sT2}, {SPIN}\ns_branch L_p1chk")
    A("L_p1:")
    A(f"buffer_load_dwordx4 v[{GG}:{GG+3}], v7, {WS_}, {sT0} offen sc1")
    A(f"s_sub_u32 {sT2}, {sT2}, 1\ns_cbranch_scc1 L_p1done")
    A("L_p1chk:")
    A("s_waitcnt vmcnt(0)")
    A(f"v_max_u32 {t0}, v{GG}, v{GG+1}\nv_max3_u32 {t0}, {t0}, v{GG+2}, v{GG+3}\nv_cmp_eq_u32 vcc, -1, {t0}\ns_cbranch_vccnz L_p1")
    A("L_p1done:")
    A("s_waitcnt vmcnt(0)")
    stamp()
    A(f"v_mov_b32_dpp {t0}, v{GG+3} quad_perm:[0,0,2,2] {DPP}\nv_mov_b32_dpp v{GG+3}, v{GG+3} quad_perm:[1,1,3,3] {DPP}")
    A(f"v_mov_b32 {t1}, {t0}")
    allred_hi("v_max_f32", [t1], [t2])
    A(f"v_sub_f32 {t0}, {t0}, {t1}\nv_exp_f32 {t0}, {t0}")
    for k in range(4): A(f"v_mul_f32 v{GG+k}, v{GG+k}, {t0}")
    allred_hi("v_add_f32", [f"v{GG+k}" for k in range(4)], [f"v{GG+4+k}" for k in range(4)])
    A(f"v_rcp_f32 {t0}, v{GG+3}")
    for k in range(3): A(f"v_mul_f32 v{GG+k}, v{GG+k}, {t0}")
    for k in range(3): A(f"v_mov_b32_dpp v{GG+4+k}, v{GG+k} quad_perm:[1,1,3,3] {DPP}")
    for k in range(3): A(f"v_cvt_pk_bf16_f32 v{GG+k}, v{GG+k}, v{GG+4+k}")
    for k in range(3):
        for a2 in range(4): A(f"v_readlane_b32 s{sU+4*k+a2}, v{GG+k}, {2*a2}")
    for i in range(12):
        A(f"v_dot2c_f32_bf16 {Y0}, s{sU+i}, v{E+2*i}\nv_dot2c_f32_bf16 {Y1}, s{sU+i}, v{E+2*i+1}")
    A(f"s_mul_i32 {sT0}, s2, 2560\ns_add_u32 {sT0}, {sT0}, {WS_H2}\nv_lshlrev_b32 v5, 1, v4")
    A(f"buffer_store_dwordx2 v[8:9], v5, {WS_}, {sT0} offen sc1")
    stamp()
    A(f"s_cmp_ge_u32 s2, {R}\ns_cbranch_scc1 L_done")
    assert R == 40
    A(f"s_cmp_eq_u32 {sW}, 4\ns_cbranch_scc1 L_red_svc")
    A(f"v_lshrrev_b32 v4, 2, {vLANE}\nv_mul_u32_u24 v4, 2560, v4\nv_and_b32 v5, 3, {vLANE}\nv_lshl_add_u32 v4, v5, 4, v4")
    A(f"s_mul_i32 {sT0}, {sW}, {64*2560}\ns_lshl_b32 {sT1}, s2, 6\ns_add_u32 {sT0}, {sT0}, {sT1}\ns_add_u32 {sT0}, {sT0}, {WS_H2}")
    for k in range(1, 4): A(f"s_add_u32 s{sU+k}, {sT0}, {16*2560*k}")
    A(f"s_mov_b32 s{sU}, {sT0}\ns_mov_b32 {sT2}, {SPIN}")
    A("L_p2:")
    for k in range(4): A(f"buffer_load_dwordx4 v[{GG+4*k}:{GG+4*k+3}], v4, {WS_}, s{sU+k} offen sc1")
    A(f"s_sub_u32 {sT2}, {sT2}, 1\ns_cbranch_scc1 L_p2done")
    A("s_waitcnt vmcnt(0)")
    A(f"v_max_u32 {t0}, v{GG}, v{GG+1}")
    for k in range(2, 16, 2): A(f"v_max3_u32 {t0}, {t0}, v{GG+k}, v{GG+k+1}")
    A(f"v_cmp_eq_u32 vcc, -1, {t0}\ns_cbranch_vccnz L_p2")
    A("L_p2done:")
    A("s_waitcnt vmcnt(0)")
    for e in range(4): A(f"v_add_f32 v{GG+e}, v{GG+e}, v{GG+4+e}\nv_add_f32 v{GG+8+e}, v{GG+8+e}, v{GG+12+e}")
    for e in range(4): A(f"v_add_f32 v{GG+e}, v{GG+e}, v{GG+8+e}")
    for e in range(4): A(f"v_add_f32_dpp v{GG+e}, v{GG+e}, v{GG+e} row_ror:4 {DPP}")
    allred_hi("v_add_f32", [f"v{GG+k}" for k in range(4)], [f"v{GG+4+k}" for k in range(4)])
    A(f"s_lshl_b32 {sT0}, {sW}, 6\nv_add_u32 v4, {sT0}, v7\ns_mov_b64 exec, 0xf")
    A(f"ds_write_b128 v4, v[{GG}:{GG+3}] offset:{L_RED}")
    A("s_mov_b64 exec, -1\ns_waitcnt lgkmcnt(0)\ns_barrier\ns_branch L_done")
    A("L_red_svc:")
    srd(TA_, pOUT, 1280)
    A(f"v_lshlrev_b32 v5, 1, {vLANE}\ns_lshl_b32 {sT0}, s2, 5\ns_mov_b64 exec, 0xffff")
    A(f"buffer_load_ushort v10, v5, {X_}, {sT0} offen")
    A(f"v_lshlrev_b32 v4, 2, {vLANE}")
    A("s_barrier")
    for w in range(4): A(f"ds_read_b32 v{GG+w}, v4 offset:{L_RED+64*w}")
    A("s_waitcnt vmcnt(0) lgkmcnt(0)")
    A(f"v_add_f32 v{GG}, v{GG}, v{GG+1}\nv_add_f32 v{GG+2}, v{GG+2}, v{GG+3}\nv_lshlrev_b32 v10, 16, v10")
    A(f"v_add_f32 v{GG}, v{GG}, v{GG+2}\nv_add_f32 v{GG}, v{GG}, v10\nv_cvt_pk_bf16_f32 v{GG}, v{GG}, 0")
    A(f"buffer_store_short v{GG}, v5, {TA_}, {sT0} offen")
    A("s_mov_b64 exec, -1")
    A("L_done:")
    if diag is not None:
        wave, st, mult = diag
        nst[0] = 8; stamp()
        A(f"s_cmp_lg_u32 s2, 0\ns_cbranch_scc1 L_end\ns_cmp_lg_u32 {sW}, {wave}\ns_cbranch_scc1 L_end")
        A(f"s_waitcnt lgkmcnt(0)\ns_sub_u32 {sT0}, s{sST+2*st}, s{sST}\ns_mul_i32 {sT0}, {sT0}, {mult}\ns_add_u32 {sT0}, {sT0}, 30000")
        A(f"s_min_u32 {sT0}, {sT0}, 200000")
        A(f"L_dg:\ns_memrealtime s[72:73]\ns_waitcnt lgkmcnt(0)\ns_sub_u32 {sT1}, s72, s{sST}\ns_cmp_lt_u32 {sT1}, {sT0}\ns_cbranch_scc1 L_dg")
    if stamps:
        nst[0] = 8; stamp()
        A(f"s_mul_i32 {sT0}, s2, 5\ns_add_u32 {sT0}, {sT0}, {sW}\ns_lshl_b32 {sT0}, {sT0}, 6\ns_add_u32 {sT0}, {sT0}, {WS_ST}")
        A(f"s_getreg_b32 {sT1}, hwreg(HW_REG_XCC_ID)")
        A("s_waitcnt lgkmcnt(0)\nv_mov_b32 v4, 0")
        for i in range(9): A(f"v_writelane_b32 v4, s{sST+2*i}, {i}")
        A(f"v_writelane_b32 v4, {sT1}, 15")
        A(f"v_lshlrev_b32 v5, 2, {vLANE}\ns_mov_b64 exec, 0xffff")
        A(f"buffer_store_dword v4, v5, {WS_}, {sT0} offen")
    A("L_end:\ns_endpgm")
    A('.section .rodata,"a"\n.p2align 6')
    A(f".amdhsa_kernel {KN}")
    nv4 = (NV+3)//4*4
    A(f".amdhsa_next_free_vgpr {nv4}\n.amdhsa_next_free_sgpr 102\n.amdhsa_accum_offset {nv4}")
    A(".amdhsa_group_segment_fixed_size 0\n.amdhsa_kernarg_size 96\n.amdhsa_user_sgpr_count 2")
    A(".amdhsa_user_sgpr_kernarg_segment_ptr 1\n.amdhsa_system_sgpr_workgroup_id_x 1")
    A(".amdhsa_float_denorm_mode_32 3\n.end_amdhsa_kernel")
    return A.finish()

if __name__ == "__main__":
    kw = eval("dict(" + (sys.argv[2] if len(sys.argv) > 2 else "") + ")")
    open(sys.argv[1], "w").write(gen(**kw))
```

```python
import sys, os
sys.path.insert(0, os.path.dirname(os.path.abspath(__file__)))
from asmlib import Asm
KN = "parallel_sum__mha_block_cached__glu_gated_reglu__decode_kernel"
HEADER = open("parallel_sum__mha_block_cached__glu_gated_reglu__decode.s.ref").read().split("; Override launch")[0]

HB = 32768*384
TB = 32*HB
WS_EP, WS_LS, WS_PR, WS_QS, WS_ST, WS_H2, WS_H1, WS_SIZE = 0, 0x8000, 0x10000, 0x80000, 0x200000, 0x280000, 0x400000, 0x600000
OOB = 0x40000000
SPIN = 1 << 20

def gen(NSEG=4, G=6, F=5, RB=8, pace=5, deep=1, stamps=False, diag=None, R=80, psleep=4, pre0=3, pre1=8, FK=None, fb=24, FH=None, fbs=8, trig=20, spin=SPIN):
    A = Asm()
    NG = 32//NSEG; GS = 8*NSEG; BPS = 16//NSEG; LGS = GS.bit_length()-1
    TSTR = GS*4*3072
    assert G < RB and 24 % RB == 0
    if FK is None: FK = F
    L_OP = 0; L_W = 8192; L_QP = L_W + 38912; L_QB = L_QP + 6400; L_HB = L_QB + 384*NSEG
    L_ML = L_HB + 128; L_RED = L_ML + 64; L_U = L_RED + 512; L_CT = L_U + 64; L_SC = L_CT + 64; L_SIZE = L_SC + 16384
    sW, sHQ, sS, sG, sMEM = "s3", "s4", "s5", "s6", "s7"
    KV_, WS_, TA_, TB_, TC_, X_ = "s[8:11]", "s[16:19]", "s[20:23]", "s[24:27]", "s[28:31]", "s[32:35]"
    mB1, mB0 = "s[12:13]", "s[14:15]"
    pX, pK, pV, pWQ, pWO, pWG, pWU, pWD, pOUT, pDBG, pWS = 36, 38, 40, 42, 44, 48, 50, 52, 54, 56, 58
    sOFF, sOFF0, sIB, sBLK, sLIN, sT0, sT1, sT2, sT3, sT4 = "s60", "s61", "s62", "s63", "s64", "s67", "s68", "s69", "s70", "s71"
    sSCALE, sLOG2E = "s65", "s66"
    sU = 72
    sTAG = "s46"
    sST = 84
    vLANE, vKV, vA, vB = "v0", "v1", "v2", "v3"
    ACC, Q = 8, 32
    T = 44
    RING = 56
    PB = RING + 48
    assert 4*RB <= 48
    NV = PB + 96
    t0, t1, t2, t3 = f"v{T}", f"v{T+1}", f"v{T+2}", f"v{T+3}"
    nst = [0]
    def stamp(i):
        if stamps or diag is not None: A(f"s_memrealtime s[{sST+2*i}:{sST+2*i+1}]")
    def srd(name, ptr, size):
        b = int(name[2:name.index(":")])
        A(f"s_mov_b32 s{b}, s{ptr}\ns_mov_b32 s{b+1}, s{ptr+1}\ns_mov_b32 s{b+2}, {size}\ns_mov_b32 s{b+3}, 0x20000")
    DPP = "row_mask:0xf bank_mask:0xf"
    def allred16(op, vs):
        for pat in ("quad_perm:[1,0,3,2]", "quad_perm:[2,3,0,1]", "row_half_mirror", "row_mirror"):
            for v in vs: A(f"{op}_dpp {v}, {v}, {v} {pat} {DPP}")
    def allred_top(op, vs, ts):
        for sw in ("v_permlane16_swap_b32", "v_permlane32_swap_b32"):
            for v, t in zip(vs, ts): A(f"v_mov_b32 {t}, {v}")
            for v, t in zip(vs, ts): A(f"{sw} {t}, {v}")
            for v, t in zip(vs, ts): A(f"{op} {v}, {v}, {t}")
    def redscat(base, n):
        for g in range(n):
            for e in range(4): A(f"v_permlane32_swap_b32 v{base+8*g+e}, v{base+8*g+e+4}")
        for g in range(n):
            for e in range(4): A(f"v_add_f32 v{base+8*g+e}, v{base+8*g+e}, v{base+8*g+e+4}")
        for g in range(n):
            for e in range(2): A(f"v_permlane16_swap_b32 v{base+8*g+e}, v{base+8*g+e+2}")
        for g in range(n):
            for e in range(2): A(f"v_add_f32 v{base+8*g+e}, v{base+8*g+e}, v{base+8*g+e+2}")
        for g in range(n):
            A(f"v_add_f32_dpp v{base+8*g}, v{base+8*g}, v{base+8*g} row_ror:8 row_mask:0xf bank_mask:0x3")
        for g in range(n):
            A(f"v_add_f32_dpp v{base+8*g}, v{base+8*g+1}, v{base+8*g+1} row_ror:8 row_mask:0xf bank_mask:0xc")
    def redscat_lo(bases):
        for S in bases:
            for e in range(4): A(f"v_add_f32_dpp v{S+e}, v{S+e}, v{S+e} row_half_mirror row_mask:0xf bank_mask:0x5")
        for S in bases:
            for e in range(4): A(f"v_add_f32_dpp v{S+e}, v{S+e+4}, v{S+e+4} row_half_mirror row_mask:0xf bank_mask:0xa")
        for S in bases:
            for e in range(4): A(f"v_add_f32_dpp v{S+e}, v{S+e}, v{S+e} quad_perm:[2,3,0,1] {DPP}")
        for S in bases:
            for e in range(2): A(f"v_cndmask_b32 v{S+e}, v{S+e}, v{S+e+2}, {mB1}")
        for S in bases:
            for e in range(2): A(f"v_add_f32_dpp v{S+e}, v{S+e}, v{S+e} quad_perm:[1,0,3,2] {DPP}")
        for S in bases: A(f"v_cndmask_b32 v{S}, v{S}, v{S+1}, {mB0}")
    def axpy(acc, data, n, pl, ph):
        for i in range(n):
            A(f"v_dot2c_f32_bf16 v{acc+2*i}, v{data+i}, {pl}\nv_dot2c_f32_bf16 v{acc+2*i+1}, v{data+i}, {ph}")
    def ld(reg, j): A(f"buffer_load_dwordx4 v[{reg}:{reg+3}], {vKV}, {KV_}, {sOFF} offen offset:{128*j} nt")
    uid = [0]
    def next_block():
        uid[0] += 1; u = uid[0]
        A(f"s_add_u32 {sIB}, {sIB}, 1\ns_and_b32 {sT0}, {sIB}, {BPS-1}\ns_cbranch_scc1 L_nb{u}")
        A(f"s_add_u32 {sOFF}, {sOFF}, {(NG-1)*HB}")
        A(f"s_and_b32 {sT0}, {sIB}, 15\ns_cbranch_scc1 L_nb{u}")
        A(f"s_mov_b32 s8, s{pV}\ns_mov_b32 s9, s{pV+1}\ns_mov_b32 {sOFF}, {sOFF0}")
        A(f"s_cmp_lt_u32 {sIB}, 32\ns_cbranch_scc1 L_nb{u}\ns_mov_b32 s10, 0\ns_mov_b32 {sOFF}, 0")
        A(f"L_nb{u}:")
    if FH is None: FH = G
    sFB, sTHR, sREP = "s78", "s79", "s80"
    def lev(n, f):
        fr = f - int(f)
        return int(f) + (1 if int((n+1)*fr + 1e-9) != int(n*fr + 1e-9) else 0)
    def slot(n, f, last=False):
        uid[0] += 1; u = uid[0]
        fi, fh = lev(n, f), lev(n, FH)
        assert fi <= fh <= G
        m = n + G
        if m % 3 == 0:
            A(f"s_add_u32 {sOFF}, {sOFF}, {TSTR}")
            if m == 24: next_block()
        if fi < fh and (deep or fb):
            A(f"s_cbranch_vccnz L_dp{u}\ns_waitcnt vmcnt({fi-1})\nL_dp{u}:\ns_waitcnt vmcnt({fh-1})")
        else: A(f"s_waitcnt vmcnt({fi-1})")
        ld(RING + 4*(m % RB), m % 3)
        if fb and n == fbs - 2: A(f"ds_read_b32 v54, v55 offset:{L_CT+4}")
        if fb and n == fbs:
            A(f"s_waitcnt lgkmcnt(0)\nv_cmp_eq_u32 vcc, {sBLK}, v54")
            if stamps: A(f"s_and_b32 {sT0}, vcc_lo, 1\ns_add_u32 s81, s81, {sT0}")
            if last and deep: A(f"s_cmp_ge_u32 {sBLK}, {32-deep}\ns_cselect_b64 vcc, -1, vcc")
    def qk4(acc, data, j):
        for e in range(4):
            if j == 0 and e == 0: A(f"v_dot2_f32_bf16 v{acc}, v{data}, v{Q}, 0")
            else: A(f"v_dot2_f32_bf16 v{acc}, v{data+e}, v{Q+4*j+e}, v{acc}")

    E = PB + 16
    Y0, Y1 = "v48", "v49"
    HP = 12
    GG = 16
    NL = GS//16
    def wprep():
        A(f"s_lshl_b32 {sT1}, {sW}, 8\nv_lshl_add_u32 v4, {vLANE}, 2, {sT1}")
        A(f"v_mov_b32 v5, 0")
        for i in range(3): A(f"ds_read_b32 v{HP+i}, v5 offset:{L_HB+4*i}")
        for r in range(30):
            A(f"ds_read_b32 v{E+r}, v4 offset:{L_W+1280*r}")
            if r in (9, 19): A("s_waitcnt lgkmcnt(0)")
        A(f"s_mov_b32 {sT1}, 0x05040100\ns_mov_b32 {sT3}, 0x07060302\nv_mov_b32 {Y0}, 0\nv_mov_b32 {Y1}, 0\nv_mov_b32 v50, {sTAG}\nv_mov_b32 v51, {sTAG}")
        A("s_waitcnt lgkmcnt(0)")
        for r in range(0, 30, 2):
            A(f"v_perm_b32 {t0}, v{E+r+1}, v{E+r}, {sT1}\nv_perm_b32 v{E+r+1}, v{E+r+1}, v{E+r}, {sT3}\nv_mov_b32 v{E+r}, {t0}")
        for i in range(3):
            A(f"v_dot2c_f32_bf16 {Y0}, v{E+24+2*i}, v{HP+i}\nv_dot2c_f32_bf16 {Y1}, v{E+25+2*i}, v{HP+i}")
    A(HEADER.rstrip())
    A(f"; @launch grid=(256,1,1) block=(320,1,1) lds={L_SIZE}")
    A('.amdgcn_target "amdgcn-amd-amdhsa--gfx950"\n.text')
    A(f".globl {KN}\n.p2align 8\n.type {KN},@function\n{KN}:")
    A("s_cmp_ge_u32 s2, 256\ns_cbranch_scc1 L_end")
    A("s_load_dwordx16 s[36:51], s[0:1], 0\ns_load_dwordx8 s[52:59], s[0:1], 64")
    stamp(0)
    A(f"v_lshrrev_b32 v1, 6, v0\nv_and_b32 {vLANE}, 63, v0\nv_readfirstlane_b32 {sW}, v1\ns_setprio 3")
    A(f"s_and_b32 {sT0}, s2, 7\ns_lshl_b32 {sT0}, {sT0}, 5\ns_lshr_b32 {sT1}, s2, 3\ns_add_u32 {sLIN}, {sT0}, {sT1}")
    A(f"s_lshr_b32 {sG}, {sLIN}, {LGS}\ns_and_b32 {sMEM}, {sLIN}, {GS-1}\ns_and_b32 {sS}, {sMEM}, 7")
    A(f"s_lshr_b32 {sT0}, {sMEM}, 3\ns_mul_i32 {sHQ}, {sT0}, {NG}\ns_add_u32 {sHQ}, {sHQ}, {sG}")
    A(f"s_sub_u32 {sW}, {sW}, 1\ns_cselect_b32 {sW}, 4, {sW}")
    A(f"v_lshrrev_b32 {vA}, 3, {vLANE}\nv_and_b32 {vB}, 7, {vLANE}")
    A(f"v_lshlrev_b32 v7, 4, {vB}")
    A(f"v_mov_b32 v4, 384\nv_mad_u32_u24 {vKV}, {vA}, v4, v7")
    A(f"v_mov_b32 v4, 12288\nv_mad_u32_u24 v4, {vA}, v4, v7")
    A(f"v_mov_b32 v5, 3072\nv_mad_u32_u24 v5, {vA}, v5, v7")
    A(f"v_mov_b32 v6, {OOB}\nv_cmp_gt_u32 vcc, 6, {vB}\nv_cndmask_b32 v5, v6, v5, vcc")
    A(f"v_lshlrev_b32 v6, 1, {vA}\nv_lshlrev_b32 v7, 4, {vLANE}")
    A(f"s_mul_i32 {sT0}, {sS}, 80\ns_lshl_b32 {sT1}, {sW}, 4\ns_add_u32 {sT0}, {sT0}, {sT1}")
    A(f"s_mul_i32 {sT1}, {sT0}, 12288\ns_mul_i32 {sT2}, {sHQ}, 384\ns_add_u32 {sT1}, {sT1}, {sT2}")
    A(f"s_mul_i32 {sT2}, {sT0}, 3072\ns_mul_i32 {sT3}, {sHQ}, 96\ns_add_u32 {sT2}, {sT2}, {sT3}")
    A(f"s_lshl_b32 {sT0}, {sT0}, 1")
    A(f"v_mov_b32 v8, 0\nv_mov_b32 v9, 0\nds_write_b64 v8, v[8:9] offset:{L_CT}")
    A("s_waitcnt lgkmcnt(0)")
    A(f"s_load_dword {sTAG}, s[{pWS}:{pWS+1}], {WS_EP}")
    srd(X_, pX, 1280); srd(TA_, pWQ, 640*12288); srd(TB_, pWG, 640*3072); srd(TC_, pWU, 640*3072); srd(WS_, pWS, WS_SIZE)
    XR, WD, WA = RING + 40, RING, ACC
    A(f"buffer_load_dwordx4 v[{XR}:{XR+3}], v7, {X_}, 0 offen")
    A(f"buffer_load_dwordx4 v[{XR+4}:{XR+7}], v7, {X_}, 0 offen offset:1024")
    A(f"buffer_load_ushort v{T+10}, v6, {X_}, {sT0} offen")
    A(f"buffer_load_ushort v{T+11}, v6, {X_}, {sT0} offen offset:16")
    A("s_barrier")
    for t in range(2):
        for j in range(3):
            A(f"buffer_load_dwordx4 v[{WD+20*t+4*j}:{WD+20*t+4*j+3}], v4, {TA_}, {sT1} offen offset:{128*j} nt")
        A(f"buffer_load_dwordx4 v[{WD+20*t+12}:{WD+20*t+15}], v5, {TB_}, {sT2} offen nt")
        A(f"buffer_load_dwordx4 v[{WD+20*t+16}:{WD+20*t+19}], v5, {TC_}, {sT2} offen nt")
        if t == 0: A(f"s_add_u32 {sT1}, {sT1}, {8*12288}\ns_add_u32 {sT2}, {sT2}, {8*3072}")
    srd(KV_, pK, TB)
    A(f"s_lshl_b32 {sT0}, {sMEM}, 2\ns_add_u32 {sT0}, {sT0}, {sW}\ns_mul_i32 {sT0}, {sT0}, 3072")
    A(f"s_mul_i32 {sOFF0}, {sG}, {HB}\ns_add_u32 {sOFF0}, {sOFF0}, {sT0}\ns_mov_b32 {sOFF}, {sOFF0}\ns_mov_b32 {sIB}, 0")
    A(f"s_mov_b32 s12, 0xcccccccc\ns_mov_b32 s13, 0xcccccccc\ns_mov_b32 s14, 0xaaaaaaaa\ns_mov_b32 s15, 0xaaaaaaaa")
    A(f"s_cmp_eq_u32 {sW}, 4\ns_cbranch_scc1 L_ln\ns_setprio 1\nL_ln:\ns_waitcnt vmcnt(10) lgkmcnt(0)")
    A(f"s_mul_i32 {sTAG}, {sTAG}, 1664525\ns_add_u32 {sTAG}, {sTAG}, 1013904223")
    XF = WA
    for i in range(8):
        A(f"v_lshlrev_b32 v{XF+2*i}, 16, v{XR+i}\nv_and_b32 v{XF+2*i+1}, 0xffff0000, v{XR+i}")
    l0, l1, l2, l3 = "v24", "v25", "v26", "v27"
    A(f"v_add_f32 {l0}, v{XF}, v{XF+1}\nv_add_f32 {l1}, v{XF+2}, v{XF+3}")
    for i in range(4, 16, 2): A(f"v_add_f32 {l0}, {l0}, v{XF+i}\nv_add_f32 {l1}, {l1}, v{XF+i+1}")
    A(f"v_add_f32 {l0}, {l0}, {l1}")
    allred16("v_add_f32", [l0]); allred_top("v_add_f32", [l0], [l1])
    A(f"v_mul_f32 {l0}, 0x3acccccd, {l0}")
    for i in range(16): A(f"v_sub_f32 v{XF+i}, v{XF+i}, {l0}")
    A(f"v_mul_f32 {l1}, v{XF}, v{XF}\nv_mul_f32 {l2}, v{XF+8}, v{XF+8}")
    for i in range(1, 8): A(f"v_fmac_f32 {l1}, v{XF+i}, v{XF+i}\nv_fmac_f32 {l2}, v{XF+8+i}, v{XF+8+i}")
    A(f"v_cmp_gt_u32 vcc, 16, {vLANE}\nv_cndmask_b32 {l2}, 0, {l2}, vcc\nv_add_f32 {l1}, {l1}, {l2}")
    allred16("v_add_f32", [l1]); allred_top("v_add_f32", [l1], [l2])
    A(f"v_mul_f32 {l1}, 0x3acccccd, {l1}")
    A(f"v_cvt_pk_bf16_f32 {l0}, 0, {l0}\nv_cvt_pk_bf16_f32 {l1}, 0, {l1}")
    A(f"v_add_f32 {l1}, 0x3727c5ac, {l1}\nv_cvt_pk_bf16_f32 {l1}, 0, {l1}\nv_sqrt_f32 {l1}, {l1}")
    A(f"v_cvt_pk_bf16_f32 {l1}, 0, {l1}\nv_rcp_f32 {l2}, {l1}")
    for t in range(2):
        xr = f"v{T+10+t}"
        A(f"v_lshlrev_b32 {xr}, 16, {xr}\nv_sub_f32 {xr}, {xr}, {l0}\nv_cvt_pk_bf16_f32 {xr}, 0, {xr}")
        A(f"v_mul_f32 {l3}, {xr}, {l2}\nv_fma_f32 {xr}, -{l3}, {l1}, {xr}\nv_fma_f32 {xr}, {xr}, {l2}, {l3}")
        A(f"v_cvt_pk_bf16_f32 v{T+6+2*t}, {xr}, 0\nv_cvt_pk_bf16_f32 v{T+7+2*t}, 0, {xr}")
    for i in range(40): A(f"v_mov_b32 v{WA+i}, 0")
    stamp(1)
    def pb_load(n, paced):
        if n and n % 3 == 0: A(f"s_add_u32 {sOFF}, {sOFF}, {TSTR}")
        if paced: A(f"s_waitcnt vmcnt({pace-1})")
        ld(PB + 4*n, n % 3)
    A(f"s_waitcnt vmcnt(5)\ns_cmp_eq_u32 {sW}, 4\ns_cbranch_scc1 L_nopre0")
    for n in range(pre0): pb_load(n, False)
    A("L_nopre0:")
    axpy(WA, WD, 20, f"v{T+6}", f"v{T+7}")
    A(f"s_cmp_eq_u32 {sW}, 4\ns_cbranch_scc1 L_nopre1\ns_waitcnt vmcnt({pre0})")
    for n in range(pre0, pre1): pb_load(n, False)
    A("s_branch L_pre2\nL_nopre1:\ns_waitcnt vmcnt(0)\nL_pre2:")
    axpy(WA, WD+20, 20, f"v{T+8}", f"v{T+9}")
    redscat(WA, 5)
    A(f"s_mul_i32 {sT0}, {sW}, 1280\nv_lshl_add_u32 v4, {vLANE}, 2, {sT0}")
    for k in range(5): A(f"ds_write_b32 v4, v{WA+8*k} offset:{L_QP+256*k}")
    A(f"v_mov_b32 v5, 0\nv_mov_b32 v6, 1\ns_mov_b64 exec, 1\nds_add_u32 v5, v6 offset:{L_CT}\ns_mov_b64 exec, -1")
    stamp(2)
    A(f"s_cmp_eq_u32 {sW}, 4\ns_cbranch_scc1 L_svc")
    for n in range(pre1, 24):
        pb_load(n, True)
        if n == trig: A(f"v_mov_b32 v6, 64\ns_mov_b64 exec, 1\nds_add_u32 v5, v6 offset:{L_CT}\ns_mov_b64 exec, -1")
    srd(TA_, pWO, 6144*1280); srd(TB_, pWD, 1536*1280)
    if NSEG == 4: A(f"s_mov_b32 {sT0}, {sW}")
    else: A(f"s_lshr_b32 {sT0}, {sMEM}, 5\ns_lshl_b32 {sT1}, {sW}, 1\ns_add_u32 {sT0}, {sT0}, {sT1}")
    A(f"s_mul_i32 {sT0}, {sT0}, {NG}\ns_add_u32 {sT0}, {sT0}, {sG}\ns_mul_i32 {sT0}, {sT0}, 192")
    A(f"s_lshl_b32 {sT1}, {sS}, 3\ns_add_u32 {sT0}, {sT0}, {sT1}\ns_bfe_u32 {sT1}, {sMEM}, {(2<<16)|3}\ns_lshl_b32 {sT1}, {sT1}, 1")
    A(f"s_add_u32 {sT0}, {sT0}, {sT1}\ns_mul_i32 {sT0}, {sT0}, 1280\ns_mul_i32 {sT1}, {sW}, 7680")
    for jj in range(3):
        A(f"s_add_u32 m0, {sT1}, {L_W+2560*jj}")
        for i in range(3):
            if i == 2: A("s_mov_b32 exec_hi, 0")
            A(f"s_waitcnt vmcnt({pace-1})")
            A(f"buffer_load_dwordx4 v7, {TA_}, {sT0} offen offset:{1024*i} nt lds")
        A(f"s_mov_b32 exec_hi, -1\ns_add_u32 {sT0}, {sT0}, {64*1280}")
    A(f"s_lshl_b32 {sT0}, {sHQ}, 3\ns_add_u32 {sT0}, {sT0}, {sS}\ns_mul_i32 {sT0}, {sT0}, 7680\ns_lshl_b32 {sT1}, {sW}, 11")
    A(f"s_add_u32 {sT0}, {sT0}, {sT1}\ns_add_u32 m0, {sT1}, {L_W+30720}")
    A(f"s_waitcnt vmcnt({pace-1})\nbuffer_load_dwordx4 v7, {TB_}, {sT0} offen nt lds")
    A(f"s_cmp_eq_u32 {sW}, 3\ns_cselect_b32 exec_hi, 0, -1")
    A(f"s_waitcnt vmcnt({pace-1})\nbuffer_load_dwordx4 v7, {TB_}, {sT0} offen offset:1024 nt lds")
    A("s_mov_b32 exec_hi, -1")
    A(f"s_mov_b32 {sIB}, 1")
    for m in range(G):
        if m % 3 == 0: A(f"s_add_u32 {sOFF}, {sOFF}, {TSTR}")
        A(f"s_waitcnt vmcnt({pace-1})"); ld(RING + 4*m, m % 3)
    vQA, vSA = "v4", "v5"
    A(f"v_lshlrev_b32 {vQA}, 4, {vB}\nv_add_u32 {vQA}, {L_QB}, {vQA}")
    A(f"s_lshl_b32 {sT0}, {sW}, 12\ns_add_u32 {sT0}, {sT0}, {L_SC}\nv_lshl_add_u32 {vSA}, {vLANE}, 2, {sT0}")
    A("s_mov_b64 vcc, 0")
    A(f"v_mov_b32 v55, 0\ns_mov_b32 s81, 0\ns_mov_b32 {sBLK}, 1")
    stamp(3)
    A("s_barrier")
    for j in range(3): A(f"ds_read_b128 v[{Q+4*j}:{Q+4*j+3}], {vQA} offset:{128*j}")
    A("s_waitcnt lgkmcnt(0)")
    stamp(4)
    S1, S2 = ACC, ACC + 8
    for n in range(24):
        slot(n, FK)
        qk4(S2 + n//3, PB + 4*n, n % 3)
        qk4(S1 + n//3, RING + 4*(n % RB), n % 3)
    redscat_lo([S1, S2])
    A(f"ds_write_b32 {vSA}, v{S2}\nds_write_b32 {vSA}, v{S1} offset:256\nv_add_u32 {vSA}, 512, {vSA}")
    A(f"s_mov_b32 {sBLK}, 2\ns_branch L_kend")
    A("L_k:")
    for n in range(24):
        slot(n, FK)
        qk4(S1 + n//3, RING + 4*(n % RB), n % 3)
    redscat_lo([S1])
    A(f"ds_write_b32 {vSA}, v{S1}\nv_add_u32 {vSA}, 256, {vSA}\ns_add_u32 {sBLK}, {sBLK}, 1")
    A("L_kend:")
    if stamps: A(f"s_cmp_lg_u32 {sBLK}, 3\ns_cbranch_scc1 L_st1\ns_memrealtime s[42:43]\nL_st1:")
    A(f"s_waitcnt lgkmcnt(0)\ns_barrier\ns_and_b32 {sT0}, {sBLK}, {BPS-1}\ns_cbranch_scc1 L_k")
    A(f"v_add_u32 {vQA}, 384, {vQA}")
    A(f"s_cmp_eq_u32 {sBLK}, 16\ns_cbranch_scc1 L_v0")
    for j in range(3): A(f"ds_read_b128 v[{Q+4*j}:{Q+4*j+3}], {vQA} offset:{128*j}")
    A("s_waitcnt lgkmcnt(0)\ns_branch L_k")
    A("L_v0:")
    if stamps: A("s_memrealtime s[50:51]")
    vP, pl, ph, vOA = f"v{Q}", f"v{Q+1}", f"v{Q+2}", "v4"
    A(f"v_subrev_u32 {vSA}, 4096, {vSA}")
    A(f"s_lshl_b32 {sT0}, {sW}, 10\ns_add_u32 {sT0}, {sT0}, {L_OP}\nv_add_u32 {vOA}, {sT0}, v7")
    A("L_vseg:")
    for i in range(24): A(f"v_mov_b32 v{ACC+i}, 0")
    A("L_v:")
    A(f"ds_read_b32 {vP}, {vSA}\nv_add_u32 {vSA}, 256, {vSA}")
    if deep and not fb:
        A(f"s_cmp_ge_u32 {sBLK}, {32-deep}\ns_cselect_b64 vcc, -1, 0")
    for n in range(24):
        slot(n, F, True)
        if n == 0: A("s_waitcnt lgkmcnt(0)")
        if n % 3 == 0:
            t = n//3
            A(f"v_mov_b32_dpp {pl}, {vP} row_newbcast:{t} row_mask:0xf bank_mask:0x3")
            A(f"v_mov_b32_dpp {pl}, {vP} row_newbcast:{8+t} row_mask:0xf bank_mask:0xc")
            A(f"v_lshlrev_b32 {ph}, 16, {pl}")
        axpy(ACC + 8*(n % 3), RING + 4*(n % RB), 4, pl, ph)
    A(f"s_add_u32 {sBLK}, {sBLK}, 1")
    if stamps: A(f"s_cmp_lg_u32 {sBLK}, 29\ns_cbranch_scc1 L_st2\ns_memrealtime s[48:49]\nL_st2:\n; SSBYTES={26*8*3072}")
    A(f"s_and_b32 {sT0}, {sBLK}, {BPS-1}\ns_cbranch_scc0 L_vfl\ns_barrier\ns_branch L_v\nL_vfl:")
    stamp(5)
    redscat(ACC, 3)
    A(f"v_mov_b32 v{ACC+1}, v{ACC+8}\nv_mov_b32 v{ACC+2}, v{ACC+16}")
    A(f"ds_write_b96 {vOA}, v[{ACC}:{ACC+2}]\nv_xor_b32 {vOA}, 4096, {vOA}")
    A("s_waitcnt lgkmcnt(0)\ns_barrier")
    A(f"s_cmp_lt_u32 {sBLK}, 32\ns_cbranch_scc1 L_vseg")
    if stamps: A("s_mov_b32 s47, s81")
    A("s_waitcnt vmcnt(0)\ns_branch L_epi")
    A("L_svc:")
    G0 = RING
    A(f"v_lshlrev_b32 v4, 2, {vLANE}")
    A(f"L_wq:\nds_read_b32 v6, v5 offset:{L_CT}\ns_waitcnt lgkmcnt(0)\nv_and_b32 v6, 7, v6\nv_cmp_gt_u32 vcc, 5, v6\ns_cbranch_vccnz L_wq")
    for w in range(5):
        for k in range(5): A(f"ds_read_b32 v{G0+5*w+k}, v4 offset:{L_QP+1280*w+256*k}")
        if w == 2: A("s_waitcnt lgkmcnt(0)")
    A("s_waitcnt lgkmcnt(0)")
    for w in range(1, 5):
        for k in range(5): A(f"v_add_f32 v{G0+k}, v{G0+k}, v{G0+5*w+k}")
    A(f"v_lshl_add_u32 v5, {vB}, 3, {vA}\nv_lshlrev_b32 v6, 4, v5\nv_lshlrev_b32 v5, 1, v5")
    A(f"v_mov_b32 v{G0+5}, v{G0+4}\nv_mov_b32 v{G0+4}, v{G0+3}\nv_mov_b32 v{G0+3}, {sTAG}\nv_mov_b32 v{G0+6}, {sTAG}\nv_mov_b32 v{G0+7}, {sTAG}")
    A(f"s_lshl_b32 s72, {sHQ}, 3\ns_add_u32 s72, s72, {sS}\ns_lshl_b32 s72, s72, 11\ns_add_u32 s72, s72, {WS_QS}")
    A(f"buffer_store_dwordx4 v[{G0}:{G0+3}], v7, {WS_}, s72 offen sc1")
    A(f"s_mov_b32 exec_lo, 0x3f3f3f3f\ns_mov_b32 exec_hi, 0x3f3f3f3f")
    A(f"buffer_store_dwordx4 v[{G0+4}:{G0+7}], v6, {WS_}, s72 offen offset:1024 sc1")
    A("s_mov_b64 exec, -1")
    stamp(3)
    def poll(lab, loads, tags, sleep=0, first=None, mask=None):
        A(f"s_mov_b32 {sT2}, {spin}")
        if first is not None: loads(first); A(f"s_branch {lab}_chk")
        elif sleep or mask: A(f"s_branch {lab}_go")
        A(f"{lab}:")
        if mask == "lane": A("s_mov_b64 exec, vcc")
        if mask == "low3":
            A(f"s_or_b32 {sT0}, vcc_lo, vcc_hi\ns_lshr_b32 {sT1}, {sT0}, 16\ns_or_b32 {sT0}, {sT0}, {sT1}\ns_lshr_b32 {sT1}, {sT0}, 8\ns_or_b32 {sT0}, {sT0}, {sT1}")
            A(f"s_and_b32 {sT0}, {sT0}, 0xff\ns_mul_i32 exec_lo, {sT0}, 0x01010101\ns_mov_b32 exec_hi, exec_lo")
        if sleep: A(f"s_sleep {sleep}")
        A(f"{lab}_go:")
        loads("sc1")
        A(f"s_sub_u32 {sT2}, {sT2}, 1\ns_cbranch_scc1 {lab}_done\n{lab}_chk:\ns_waitcnt vmcnt(0)")
        if len(tags) == 1: A(f"v_cmp_ne_u32 vcc, {sTAG}, {tags[0]}")
        else:
            A(f"v_xor_b32 {t0}, {sTAG}, {tags[0]}")
            for t in tags[1:]: A(f"v_bitop3_b32 {t0}, {t}, {sTAG}, {t0} bitop3:0xbe")
            A(f"v_cmp_ne_u32 vcc, 0, {t0}")
        A(f"s_cbranch_vccnz {lab}\n{lab}_done:")
        if mask: A("s_mov_b64 exec, -1")
        A("s_waitcnt vmcnt(0)")
    G1 = G0 + 8
    vL4, vQW, vSC, vML, vOP, vLS, vM, vPW, vZ, vF0, vF1 = [f"v{32+i}" for i in range(11)]
    LP = 64//NSEG; LLP = LP.bit_length()-1; NLS = GS//LP; NR = 4*BPS; NL = GS//8
    HOLD = G0 + 24
    sF = [f"s{r}" for r in (20, 21, 22, 24, 25, 26, 28, 29)]
    sPR, sHD = "s30", "s47"
    A(f"v_mov_b32 {vL4}, v4\nv_mov_b32 {vQW}, v5\nv_add_u32 {vSC}, {L_SC}, v4\nv_mov_b32 {vML}, {L_ML}\nv_add_u32 {vOP}, {L_OP}, v7\nv_mov_b32 {vZ}, 0")
    A(f"s_lshr_b32 {sT0}, s2, 3\ns_lshl_b32 {sT0}, {sT0}, 2\nv_mov_b32 {vPW}, {sT0}")
    A(f"s_and_b32 {sPR}, s2, 7\ns_mul_i32 {sPR}, {sPR}, 4224\ns_add_u32 {sPR}, {sPR}, {WS_PR}")
    A(f"s_mov_b32 {sSCALE}, 0x3d93cd3a\ns_mov_b32 {sLOG2E}, 0x3fb8aa3b\ns_mov_b32 {sBLK}, 0\ns_mov_b32 {sHD}, {sG}")
    A(f"L_wt:\ns_sleep 2\nds_read_b32 v10, {vZ} offset:{L_CT}\ns_waitcnt lgkmcnt(0)\nv_cmp_gt_u32 vcc, 256, v10\ns_cbranch_vccnz L_wt")
    A("s_branch L_gq0")
    A("L_blk:")
    A(f"s_cmp_le_u32 {sBLK}, 16\ns_cbranch_scc1 L_nofl\ns_and_b32 {sT0}, {sBLK}, {BPS-1}\ns_cbranch_scc1 L_nofl")
    stamp(5)
    for w in range(4): A(f"ds_read_b96 v[{G0+4*w}:{G0+4*w+2}], {vOP} offset:{1024*w}")
    A(f"v_xor_b32 {vOP}, 4096, {vOP}\ns_waitcnt lgkmcnt(0)")
    for k in range(3): A(f"v_add_f32 v{G0+k}, v{G0+k}, v{G0+4+k}\nv_add_f32 v{G0+8+k}, v{G0+8+k}, v{G0+12+k}")
    for k in range(3): A(f"v_add_f32 v{HOLD+k}, v{G0+k}, v{G0+8+k}")
    A(f"s_cmp_eq_u32 {sBLK}, 32\ns_cbranch_scc1 L_flx")
    for i in reversed(range(NSEG-1)):
        for k in range(3): A(f"v_mov_b32 v{HOLD+4*i+4+k}, v{HOLD+4*i+k}")
    A("L_nofl:\ns_setprio 0")
    if fb:
        A(f"s_add_u32 {sT0}, {sTAG}, {sBLK}\nv_mov_b32 {vF0}, {sT0}\ns_mov_b64 exec, 1")
        A(f"buffer_store_dword {vF0}, {vPW}, {WS_}, {sPR} offen\ns_mov_b32 exec_lo, -1")
        A(f"buffer_load_dword {vF1}, {vL4}, {WS_}, {sPR} offen sc1\ns_waitcnt vmcnt(0)")
        A(f"v_sub_u32 {vF1}, {vF1}, {vF0}\nv_cmp_gt_u32 vcc, 32, {vF1}\ns_bcnt1_i32_b64 {sT0}, vcc\ns_mov_b64 exec, -1")
        A(f"s_cmp_gt_u32 {sT0}, {fb}\ns_cselect_b32 {sT0}, {sBLK}, 0\nv_mov_b32 {vF1}, {sT0}\nds_write_b32 {vZ}, {vF1} offset:{L_CT+4}")
    A(f"s_cmp_gt_u32 {sBLK}, 16\ns_cbranch_scc1 L_vpart")
    A(f"s_and_b32 {sT0}, {sBLK}, {BPS-1}\ns_cbranch_scc1 L_nosm")
    for w in range(4):
        for k in range(BPS): A(f"ds_read_b32 v{G0+BPS*w+k}, {vSC} offset:{4096*w+256*k}")
        if w == 1: A("s_waitcnt lgkmcnt(0)")
    A("s_waitcnt lgkmcnt(0)")
    for i in range(NR): A(f"v_cvt_pk_bf16_f32 v{G0+i}, 0, v{G0+i}")
    for i in range(NR): A(f"v_mul_f32 v{G0+i}, {sSCALE}, v{G0+i}")
    for i in range(NR): A(f"v_cvt_pk_bf16_f32 v{G0+i}, 0, v{G0+i}")
    for i in range(NR): A(f"v_mul_f32 v{G0+i}, {sLOG2E}, v{G0+i}")
    A(f"v_max_f32 {t0}, v{G0}, v{G0+1}")
    for i in range(2, NR, 2): A(f"v_max3_f32 {t0}, {t0}, v{G0+i}, v{G0+i+1}")
    allred16("v_max_f32", [t0]); allred_top("v_max_f32", [t0], [t1])
    for i in range(NR): A(f"v_sub_f32 v{G0+i}, v{G0+i}, {t0}")
    for i in range(NR): A(f"v_exp_f32 v{G0+i}, v{G0+i}")
    A(f"v_add_f32 {t1}, v{G0}, v{G0+1}")
    for i in range(2, NR): A(f"v_add_f32 {t1}, {t1}, v{G0+i}")
    for i in range(NR): A(f"v_cvt_pk_bf16_f32 v{G0+i}, v{G0+i}, 0")
    for w in range(4):
        for k in range(BPS): A(f"ds_write_b32 {vSC}, v{G0+BPS*w+k} offset:{4096*w+256*k}")
        if w == 1: A("s_waitcnt lgkmcnt(0)")
    allred16("v_add_f32", [t1]); allred_top("v_add_f32", [t1], [t2])
    A(f"v_log_f32 {t3}, {t1}\nv_mov_b32 {t2}, {t0}\nv_add_f32 {t3}, {t3}, {t0}")
    A(f"ds_write_b64 {vML}, v[{T+2}:{T+3}]")
    A(f"v_add_u32 {vSC}, {256*BPS}, {vSC}\nv_add_u32 {vML}, 8, {vML}")
    A("L_nosm:")
    A(f"s_cmp_ge_u32 {sBLK}, {NSEG}\ns_cbranch_scc1 L_noq")
    A("L_gq0:")
    A(f"s_lshl_b32 {sT1}, {sHD}, 14\ns_add_u32 {sT1}, {sT1}, {WS_QS}")
    def gq(p):
        for s in range(8):
            if s % 2 == 0: A(f"s_add_u32 {sT0}, {sT1}, {2048*s}")
            A(f"buffer_load_dwordx4 v[{G1+4*s}:{G1+4*s+3}], v7, {WS_}, {sT0} offen offset:{2048*(s%2)} {p}")
    poll("L_gq", gq, [f"v{G1+4*s+3}" for s in range(8)], first="", sleep=psleep)
    for s in range(1, 8):
        for k in range(3): A(f"v_add_f32 v{G1+k}, v{G1+k}, v{G1+4*s+k}")
    for k in range(3): A(f"v_cvt_pk_bf16_f32 v{G1+k}, v{G1+k}, 0")
    for k in range(3): A(f"ds_write_b16 {vQW}, v{G1+k} offset:{L_QB+128*k}")
    A(f"v_add_u32 {vQW}, 384, {vQW}\ns_add_u32 {sHD}, {sHD}, {NG}")
    if stamps or diag is not None:
        A(f"s_cmp_lg_u32 {sBLK}, 0\ns_cbranch_scc1 L_next"); stamp(4)
    A("s_branch L_next")
    A("L_noq:")
    A(f"s_cmp_lg_u32 {sBLK}, {NSEG+1}\ns_cbranch_scc1 L_nogu")
    A(f"v_lshlrev_b32 v8, 11, {vA}\nv_lshl_add_u32 v8, {vB}, 4, v8\nv_mov_b32 v{G1}, 0\nv_mov_b32 v{G1+1}, 0")
    A(f"s_lshl_b32 {sT1}, {sHQ}, 14\ns_mul_i32 {sT0}, {sS}, 96\ns_add_u32 {sT1}, {sT1}, {sT0}\ns_add_u32 {sT1}, {sT1}, {WS_QS}")
    A(f"s_mov_b32 exec_lo, 0x3f3f3f3f\ns_mov_b32 exec_hi, 0x3f3f3f3f")
    poll("L_gu", lambda p: A(f"buffer_load_dwordx4 v[{G1}:{G1+3}], v8, {WS_}, {sT1} offen offset:1024 {p}"), [f"v{G1+2}", f"v{G1+3}"], sleep=psleep)
    A("s_mov_b64 exec, -1")
    for k in range(2): A(f"v_add_f32_dpp v{G1+k}, v{G1+k}, v{G1+k} row_ror:8 {DPP}")
    allred_top("v_add_f32", [f"v{G1}", f"v{G1+1}"], [t0, t1])
    A(f"v_cvt_pk_bf16_f32 v{G1}, 0, v{G1}\nv_cvt_pk_bf16_f32 v{G1+1}, 0, v{G1+1}")
    A(f"v_cmp_lt_f32 vcc, 0, v{G1}\nv_cndmask_b32 {t0}, 0, 1.0, vcc\nv_mul_f32 {t3}, v{G1}, {t0}\nv_mul_f32 {t3}, {t3}, v{G1+1}\nv_cvt_pk_bf16_f32 {t3}, {t3}, 0")
    A(f"v_lshlrev_b32 v5, 1, {vB}\nds_write_b16 v5, {t3} offset:{L_HB}\ns_waitcnt lgkmcnt(0)")
    wprep()
    A(f"v_lshrrev_b32 v8, 4, {vLANE}\nv_lshl_add_u32 v8, v8, 3, {vB}\nv_lshlrev_b32 v8, 5, v8\nv_and_b32 v9, 8, {vLANE}\nv_lshl_add_u32 v8, v9, 1, v8")
    A(f"s_mul_i32 {sT4}, {sLIN}, {NSEG*1024}\ns_add_u32 {sT4}, {sT4}, {WS_H1}\ns_add_u32 s81, {sT4}, 4096")
    A(f"v_lshlrev_b32 v9, 1, v9\nv_mul_u32_u24 {t0}, {NSEG*1024}, {vB}\nv_add_u32 v9, v9, {t0}\nv_lshrrev_b32 {t0}, 4, {vLANE}")
    A(f"v_lshl_add_u32 v9, {t0}, {10 if NSEG == 4 else 11}, v9\nv_lshlrev_b32 v53, 4, {t0}")
    A(f"s_mul_i32 {sT0}, {sG}, {GS*NSEG*1024}\ns_lshl_b32 {sT1}, {sMEM}, 5\ns_add_u32 {sT0}, {sT0}, {sT1}\ns_add_u32 s{sU}, {sT0}, {WS_H1}")
    for r in range(1, NL): A(f"s_add_u32 s{sU+r}, s{sU}, {8*NSEG*1024*r}")
    for i in range(NSEG): A(f"v_mov_b32 v{HOLD+4*i+3}, {sTAG}")
    A("L_nogu:")
    A(f"s_cmp_lg_u32 {sBLK}, 16\ns_cbranch_scc1 L_next")
    A(f"v_lshrrev_b32 v10, {LLP}, {vLANE}\nv_lshlrev_b32 v10, 3, v10\ns_waitcnt lgkmcnt(0)\nds_read_b64 v[{T+2}:{T+3}], v10 offset:{L_ML}")
    A(f"s_lshl_b32 {sT1}, {sLIN}, 7\ns_add_u32 {sT1}, {sT1}, {WS_LS}\nv_and_b32 v11, {LP-1}, {vLANE}\nv_cmp_eq_u32 vcc, 0, v11")
    A(f"s_waitcnt lgkmcnt(0)\nv_mov_b32 {vM}, {t2}\nv_mov_b32 {t2}, {t3}\nv_mov_b32 {t3}, {sTAG}\ns_mov_b64 exec, vcc")
    A(f"buffer_store_dwordx2 v[{T+2}:{T+3}], v10, {WS_}, {sT1} offen sc1\ns_mov_b64 exec, -1")
    A(f"v_lshl_add_u32 {vLS}, v11, 7, v10\ns_branch L_next")
    A("L_vpart:")
    A(f"s_cmp_lg_u32 {sBLK}, 23\ns_cbranch_scc1 L_nols")
    A(f"s_mul_i32 {sT1}, {sG}, {GS*128}\ns_add_u32 {sT1}, {sT1}, {WS_LS}")
    def gl(p):
        for r in range(NLS):
            A(f"s_add_u32 {sT0}, {sT1}, {LP*128*r}\nbuffer_load_dwordx2 v[{G0+2*r}:{G0+2*r+1}], {vLS}, {WS_}, {sT0} offen {p}")
    poll("L_ls", gl, [f"v{G0+2*r+1}" for r in range(NLS)], sleep=32, first="")
    A(f"v_max_f32 {t0}, v{G0}, v{G0+2}")
    for r in range(2, NLS, 2): A(f"v_max3_f32 {t0}, {t0}, v{G0+2*r}, v{G0+2*r+2}")
    pats = ("quad_perm:[1,0,3,2]", "quad_perm:[2,3,0,1]", "row_half_mirror", "row_mirror")[:LLP]
    for pat in pats: A(f"v_max_f32_dpp {t0}, {t0}, {t0} {pat} {DPP}")
    for r in range(NLS): A(f"v_sub_f32 v{G0+2*r}, v{G0+2*r}, {t0}")
    for r in range(NLS): A(f"v_exp_f32 v{G0+2*r}, v{G0+2*r}")
    for r in range(1, NLS): A(f"v_add_f32 v{G0}, v{G0}, v{G0+2*r}")
    for pat in pats: A(f"v_add_f32_dpp v{G0}, v{G0}, v{G0} {pat} {DPP}")
    A(f"v_sub_f32 {t0}, {vM}, {t0}\nv_exp_f32 {t0}, {t0}\nv_rcp_f32 {t1}, v{G0}\nv_mul_f32 {t0}, {t0}, {t1}")
    for k in range(NSEG): A(f"v_readlane_b32 {sF[k]}, {t0}, {LP*k}")
    A("L_nols:")
    A(f"s_cmp_lg_u32 {sBLK}, 31\ns_cbranch_scc1 L_next")
    for i in range(1, NSEG):
        for k in range(3): A(f"v_mul_f32 v{HOLD+4*i+k}, {sF[NSEG-1-i]}, v{HOLD+4*i+k}")
    A("s_setprio 3\nL_next:")
    A(f"s_add_u32 {sBLK}, {sBLK}, 1\ns_waitcnt lgkmcnt(0)\ns_barrier\ns_branch L_blk")
    A("L_flx:")
    for k in range(3): A(f"v_mul_f32 v{HOLD+k}, {sF[NSEG-1]}, v{HOLD+k}")
    for i in range(NSEG):
        sg = NSEG-1-i
        A(f"buffer_store_dwordx4 v[{HOLD+4*i}:{HOLD+4*i+3}], v8, {WS_}, {sT4 if sg < 4 else 's81'} offen offset:{1024*(sg%4)} sc1")
    def g1(p):
        for r in range(NL): A(f"buffer_load_dwordx4 v[{GH+4*r}:{GH+4*r+3}], v9, {WS_}, s{sU+r} offen sc1")
    GH = PB + 48
    poll("L_p1", g1, [f"v{GH+4*r+3}" for r in range(NL)], mask="low3")
    stamp(6)
    st = 1
    while st < NL:
        for r in range(0, NL, 2*st):
            for k in range(3): A(f"v_add_f32 v{GH+4*r+k}, v{GH+4*r+k}, v{GH+4*(r+st)+k}")
        st *= 2
    for pat in ("quad_perm:[1,0,3,2]", "quad_perm:[2,3,0,1]", "row_half_mirror"):
        for k in range(3): A(f"v_add_f32_dpp v{GH+k}, v{GH+k}, v{GH+k} {pat} {DPP}")
    for k in range(3): A(f"v_mov_b32_dpp v{GH+4+k}, v{GH+k} row_ror:8 {DPP}")
    for k in range(3): A(f"v_cvt_pk_bf16_f32 v{GH+k}, v{GH+k}, v{GH+4+k}")
    A(f"s_mov_b32 exec_lo, 0x00010001\ns_mov_b32 exec_hi, 0x00010001")
    A(f"ds_write_b96 v53, v[{GH}:{GH+2}] offset:{L_U}\ns_mov_b64 exec, -1\ns_waitcnt lgkmcnt(0)\ns_branch L_epi2")
    A("L_epi:")
    wprep()
    stamp(6)
    A("L_epi2:")
    A("s_barrier\nv_mov_b32 v5, 0")
    for kk in range(4): A(f"ds_read_b96 v[{GG+4*kk}:{GG+4*kk+2}], v5 offset:{L_U+16*kk}")
    for kk in range(4):
        A(f"s_waitcnt lgkmcnt({0 if (stamps or diag is not None) else 3-kk})")
        for k in range(3):
            i = 3*kk + k
            A(f"v_dot2c_f32_bf16 {Y0}, v{GG+4*kk+k}, v{E+2*i}\nv_dot2c_f32_bf16 {Y1}, v{GG+4*kk+k}, v{E+2*i+1}")
    A(f"s_mul_i32 {sT0}, s2, 5120\ns_add_u32 {sT0}, {sT0}, {WS_H2}\nv_lshlrev_b32 v5, 2, v4")
    A(f"buffer_store_dwordx4 v[48:51], v5, {WS_}, {sT0} offen sc1")
    stamp(7)
    A(f"s_cmp_ge_u32 s2, {R}\ns_cbranch_scc1 L_done")
    assert R == 80
    A(f"s_cmp_eq_u32 {sW}, 4\ns_cbranch_scc1 L_red_svc")
    A(f"v_lshrrev_b32 v4, 2, {vLANE}\nv_mul_u32_u24 v4, 5120, v4\nv_and_b32 v5, 3, {vLANE}\nv_lshl_add_u32 v4, v5, 4, v4")
    A(f"s_mul_i32 {sT0}, {sW}, {64*5120}\ns_lshl_b32 {sT1}, s2, 6\ns_add_u32 {sT0}, {sT0}, {sT1}\ns_add_u32 s{sU}, {sT0}, {WS_H2}")
    for k in range(1, 4): A(f"s_add_u32 s{sU+k}, s{sU}, {16*5120*k}")
    def g2(p):
        for k in range(4): A(f"buffer_load_dwordx4 v[{GG+4*k}:{GG+4*k+3}], v4, {WS_}, s{sU+k} offen sc1")
    poll("L_p2", g2, [f"v{GG+4*k+e}" for k in range(4) for e in (2, 3)], mask="lane")
    for e in range(2): A(f"v_add_f32 v{GG+e}, v{GG+e}, v{GG+4+e}\nv_add_f32 v{GG+8+e}, v{GG+8+e}, v{GG+12+e}")
    for e in range(2): A(f"v_add_f32 v{GG+e}, v{GG+e}, v{GG+8+e}")
    for e in range(2): A(f"v_add_f32_dpp v{GG+e}, v{GG+e}, v{GG+e} row_ror:4 {DPP}")
    for e in range(2): A(f"v_add_f32_dpp v{GG+e}, v{GG+e}, v{GG+e} row_ror:8 {DPP}")
    A(f"v_lshrrev_b32 v4, 4, {vLANE}\nv_lshlrev_b32 v4, 5, v4\nv_lshl_add_u32 v4, v5, 3, v4\ns_lshl_b32 {sT0}, {sW}, 7\nv_add_u32 v4, {sT0}, v4")
    A(f"s_mov_b32 exec_lo, 0x000f000f\ns_mov_b32 exec_hi, 0x000f000f")
    A(f"ds_write_b64 v4, v[{GG}:{GG+1}] offset:{L_RED}")
    A("s_mov_b64 exec, -1\ns_waitcnt lgkmcnt(0)\ns_barrier\ns_branch L_done")
    A("L_red_svc:")
    srd(TA_, pOUT, 1280)
    A(f"v_lshlrev_b32 v5, 1, {vB}\ns_lshl_b32 {sT0}, s2, 4")
    A(f"buffer_load_ushort v12, v5, {X_}, {sT0} offen")
    A(f"v_lshlrev_b32 v4, 2, {vLANE}\nv_mov_b32 v13, {WS_EP}\nv_mov_b32 v14, {OOB}\nv_or_b32 v15, s2, {vLANE}\nv_cmp_eq_u32 vcc, 0, v15\nv_cndmask_b32 v13, v14, v13, vcc")
    A("s_waitcnt vmcnt(0)\nv_lshlrev_b32 v12, 16, v12")
    A("s_barrier")
    A(f"ds_read_b32 v{GG}, v4 offset:{L_RED}\nds_read_b32 v{GG+1}, v4 offset:{L_RED+256}")
    A("s_waitcnt lgkmcnt(0)")
    A(f"v_add_f32 v{GG}, v{GG}, v{GG+1}")
    A(f"v_add_f32_dpp v{GG}, v{GG}, v{GG} row_ror:8 {DPP}")
    allred_top("v_add_f32", [f"v{GG}"], [f"v{GG+1}"])
    A(f"v_add_f32 v{GG}, v{GG}, v12\nv_cvt_pk_bf16_f32 v{GG}, v{GG}, 0\ns_mov_b64 exec, 0xff")
    A(f"buffer_store_short v{GG}, v5, {TA_}, {sT0} offen")
    A(f"buffer_store_dword v50, v13, {WS_}, 0 offen")
    A("s_mov_b64 exec, -1")
    A("L_done:")
    if diag is not None:
        wave, st, mult = diag
        stamp(8)
        A(f"s_cmp_lg_u32 s2, 0\ns_cbranch_scc1 L_end\ns_cmp_lg_u32 {sW}, {wave}\ns_cbranch_scc1 L_end")
        A(f"s_waitcnt lgkmcnt(0)\ns_sub_u32 {sT0}, s{sST+2*st}, s{sST}\ns_mul_i32 {sT0}, {sT0}, {mult}\ns_add_u32 {sT0}, {sT0}, 30000")
        A(f"s_min_u32 {sT0}, {sT0}, 200000")
        A(f"L_dg:\ns_memrealtime s[72:73]\ns_waitcnt lgkmcnt(0)\ns_sub_u32 {sT1}, s72, s{sST}\ns_cmp_lt_u32 {sT1}, {sT0}\ns_cbranch_scc1 L_dg")
    if stamps:
        stamp(8)
        A(f"s_mul_i32 {sT0}, s2, 5\ns_add_u32 {sT0}, {sT0}, {sW}\ns_lshl_b32 {sT0}, {sT0}, 6\ns_add_u32 {sT0}, {sT0}, {WS_ST}")
        A(f"s_getreg_b32 {sT1}, hwreg(HW_REG_XCC_ID)")
        A("s_waitcnt lgkmcnt(0)\nv_mov_b32 v4, 0")
        for i in range(9): A(f"v_writelane_b32 v4, s{sST+2*i}, {i}")
        A(f"v_writelane_b32 v4, s42, 9\nv_writelane_b32 v4, s48, 10\nv_writelane_b32 v4, s50, 11\nv_writelane_b32 v4, s47, 12")
        A(f"v_writelane_b32 v4, {sT1}, 15")
        A(f"v_lshlrev_b32 v5, 2, {vLANE}\ns_mov_b64 exec, 0xffff")
        A(f"buffer_store_dword v4, v5, {WS_}, {sT0} offen")
    A("L_end:\ns_endpgm")
    A('.section .rodata,"a"\n.p2align 6')
    A(f".amdhsa_kernel {KN}")
    nv4 = (NV+3)//4*4
    A(f".amdhsa_next_free_vgpr {nv4}\n.amdhsa_next_free_sgpr 102\n.amdhsa_accum_offset {nv4}")
    A(".amdhsa_group_segment_fixed_size 0\n.amdhsa_kernarg_size 96\n.amdhsa_user_sgpr_count 2")
    A(".amdhsa_user_sgpr_kernarg_segment_ptr 1\n.amdhsa_system_sgpr_workgroup_id_x 1")
    A(".amdhsa_float_denorm_mode_32 3\n.end_amdhsa_kernel")
    return A.finish()

if __name__ == "__main__":
    kw = eval("dict(" + (sys.argv[2] if len(sys.argv) > 2 else "") + ")")
    open(sys.argv[1], "w").write(gen(**kw))
```

```python
import sys, os
sys.path.insert(0, os.path.dirname(os.path.abspath(__file__)))
from asmlib import Asm
KN = "parallel_sum__mha_block_cached__glu_gated_reglu__decode_kernel"
HEADER = open("parallel_sum__mha_block_cached__glu_gated_reglu__decode.s.ref").read().split("; Override launch")[0]

HB = 32768*384
TB = 32*HB
WS_EP, WS_LS, WS_PR, WS_H3, WS_QS, WS_H1, WS_ST, WS_H2, WS_SIZE = 0, 0x8000, 0x10000, 0x20000, 0x80000, 0x100000, 0x200000, 0x280000, 0x400000
OOB = 0x40000000
SPIN = 1 << 20

def gen(NSEG=4, G=6, F=5, RB=8, pace=5, deep=1, stamps=False, diag=None, R=80, psleep=4, pre0=3, pre1=8, FK=None, fb=22, FH=None, fbs=11, trig=20, spin=SPIN, dry=0, local=1, drymem=0, w2=0, late=(30,31), fbo=26, lp='nt', sp='', fp='nt', pf=None, qp='', st0=False):
    A = Asm()
    NG = 32//NSEG; GS = 8*NSEG; BPS = 16//NSEG; LGS = GS.bit_length()-1
    TSTR = GS*4*3072
    assert G < RB and 24 % RB == 0
    if FK is None: FK = F
    assert NSEG == 4
    L_OP = 0; L_W = 8192; L_QP = L_W + 38912; L_QB = L_QP + 6400; L_HB = L_QB + 384*NSEG
    L_ML = L_HB + 128; L_RED = L_ML + 64; L_U = L_RED + 512; L_CT = L_U + 64; L_SC = L_CT + 64; L_SIZE = L_SC + 16384
    sW, sHQ, sS, sG, sMEM = "s3", "s4", "s5", "s6", "s7"
    KV_, WS_, TA_, TB_, TC_, X_ = "s[8:11]", "s[16:19]", "s[20:23]", "s[24:27]", "s[28:31]", "s[32:35]"
    mB1, mB0 = "s[12:13]", "s[14:15]"
    pX, pK, pV, pWQ, pWO, pWG, pWU, pWD, pOUT, pDBG, pWS = 36, 38, 40, 42, 44, 48, 50, 52, 54, 56, 58
    sOFF, sOFF0, sIB, sBLK, sLIN, sT0, sT1, sT2, sT3, sT4 = "s60", "s61", "s62", "s63", "s64", "s67", "s68", "s69", "s70", "s71"
    sSCALE, sLOG2E = "s65", "s66"
    sU = 72
    sTAG = "s46"
    sST = 84
    vLANE, vKV, vA, vB = "v0", "v1", "v2", "v3"
    ACC, Q = 8, 32
    T = 44
    RING = 56
    PB = RING + 48
    assert 4*RB <= 48
    NV = PB + 96
    t0, t1, t2, t3 = f"v{T}", f"v{T+1}", f"v{T+2}", f"v{T+3}"
    nst = [0]
    def stamp(i, early=False):
        if st0 and (5 <= i <= 7) != early: return
        if early and not st0: return
        if stamps or diag is not None: A(f"s_memrealtime s[{sST+2*i}:{sST+2*i+1}]")
    def srd(name, ptr, size):
        b = int(name[2:name.index(":")])
        A(f"s_mov_b32 s{b}, s{ptr}\ns_mov_b32 s{b+1}, s{ptr+1}\ns_mov_b32 s{b+2}, {size}\ns_mov_b32 s{b+3}, 0x20000")
    DPP = "row_mask:0xf bank_mask:0xf"
    def allred16(op, vs):
        for pat in ("quad_perm:[1,0,3,2]", "quad_perm:[2,3,0,1]", "row_half_mirror", "row_mirror"):
            for v in vs: A(f"{op}_dpp {v}, {v}, {v} {pat} {DPP}")
    def allred_top(op, vs, ts):
        for sw in ("v_permlane16_swap_b32", "v_permlane32_swap_b32"):
            for v, t in zip(vs, ts): A(f"v_mov_b32 {t}, {v}")
            for v, t in zip(vs, ts): A(f"{sw} {t}, {v}")
            for v, t in zip(vs, ts): A(f"{op} {v}, {v}, {t}")
    def redscat(base, n):
        for g in range(n):
            for e in range(4): A(f"v_permlane32_swap_b32 v{base+8*g+e}, v{base+8*g+e+4}")
        for g in range(n):
            for e in range(4): A(f"v_add_f32 v{base+8*g+e}, v{base+8*g+e}, v{base+8*g+e+4}")
        for g in range(n):
            for e in range(2): A(f"v_permlane16_swap_b32 v{base+8*g+e}, v{base+8*g+e+2}")
        for g in range(n):
            for e in range(2): A(f"v_add_f32 v{base+8*g+e}, v{base+8*g+e}, v{base+8*g+e+2}")
        for g in range(n):
            A(f"v_add_f32_dpp v{base+8*g}, v{base+8*g}, v{base+8*g} row_ror:8 row_mask:0xf bank_mask:0x3")
        for g in range(n):
            A(f"v_add_f32_dpp v{base+8*g}, v{base+8*g+1}, v{base+8*g+1} row_ror:8 row_mask:0xf bank_mask:0xc")
    def redscat_lo(bases):
        for S in bases:
            for e in range(4): A(f"v_add_f32_dpp v{S+e}, v{S+e}, v{S+e} row_half_mirror row_mask:0xf bank_mask:0x5")
        for S in bases:
            for e in range(4): A(f"v_add_f32_dpp v{S+e}, v{S+e+4}, v{S+e+4} row_half_mirror row_mask:0xf bank_mask:0xa")
        for S in bases:
            for e in range(4): A(f"v_add_f32_dpp v{S+e}, v{S+e}, v{S+e} quad_perm:[2,3,0,1] {DPP}")
        for S in bases:
            for e in range(2): A(f"v_cndmask_b32 v{S+e}, v{S+e}, v{S+e+2}, {mB1}")
        for S in bases:
            for e in range(2): A(f"v_add_f32_dpp v{S+e}, v{S+e}, v{S+e} quad_perm:[1,0,3,2] {DPP}")
        for S in bases: A(f"v_cndmask_b32 v{S}, v{S}, v{S+1}, {mB0}")
    def axpy(acc, data, n, pl, ph):
        for i in range(n):
            A(f"v_dot2c_f32_bf16 v{acc+2*i}, v{data+i}, {pl}\nv_dot2c_f32_bf16 v{acc+2*i+1}, v{data+i}, {ph}")
    def ld(reg, j): A(f"buffer_load_dwordx4 v[{reg}:{reg+3}], {vKV}, {KV_}, {sOFF} offen offset:{128*j} nt")
    uid = [0]
    def next_block():
        uid[0] += 1; u = uid[0]
        A(f"s_add_u32 {sIB}, {sIB}, 1\ns_and_b32 {sT0}, {sIB}, {BPS-1}\ns_cbranch_scc1 L_nb{u}")
        A(f"s_add_u32 {sOFF}, {sOFF}, {(NG-1)*HB}")
        A(f"s_and_b32 {sT0}, {sIB}, 15\ns_cbranch_scc1 L_nb{u}")
        A(f"s_mov_b32 s8, s{pV}\ns_mov_b32 s9, s{pV+1}\ns_mov_b32 {sOFF}, {sOFF0}")
        A(f"s_cmp_lt_u32 {sIB}, 32\ns_cbranch_scc1 L_nb{u}\ns_mov_b32 s10, 0\ns_mov_b32 {sOFF}, 0")
        A(f"L_nb{u}:")
    if FH is None: FH = G
    sFB, sTHR, sREP = "s78", "s79", "s80"
    def lev(n, f):
        fr = f - int(f)
        return int(f) + (1 if int((n+1)*fr + 1e-9) != int(n*fr + 1e-9) else 0)
    def slot(n, f, last=False):
        uid[0] += 1; u = uid[0]
        fi, fh = lev(n, f), lev(n, FH)
        assert fi <= fh <= G
        m = n + G
        if m % 3 == 0:
            A(f"s_add_u32 {sOFF}, {sOFF}, {TSTR}")
            if m == 24: next_block()
        if fi < fh and (deep or fb):
            A(f"s_cbranch_vccnz L_dp{u}\ns_waitcnt vmcnt({fi-1})\nL_dp{u}:\ns_waitcnt vmcnt({fh-1})")
        else: A(f"s_waitcnt vmcnt({fi-1})")
        ld(RING + 4*(m % RB), m % 3)
        if fb and n == fbs - 2: A(f"ds_read_b32 v54, v55 offset:{L_CT+4}")
        if fb and n == fbs:
            A(f"s_waitcnt lgkmcnt(0)\nv_cmp_eq_u32 vcc, {sBLK}, v54")
            if stamps: A(f"s_and_b32 {sT0}, vcc_lo, 1\ns_add_u32 s81, s81, {sT0}")
            if last and deep: A(f"s_cmp_ge_u32 {sBLK}, {32-deep}\ns_cselect_b64 vcc, -1, vcc")
    def qk4(acc, data, j):
        for e in range(4):
            if j == 0 and e == 0: A(f"v_dot2_f32_bf16 v{acc}, v{data}, v{Q}, 0")
            else: A(f"v_dot2_f32_bf16 v{acc}, v{data+e}, v{Q+4*j+e}, v{acc}")

    A(HEADER.rstrip())
    A(f"; @launch grid=(256,1,1) block=(320,1,1) lds={L_SIZE}")
    A('.amdgcn_target "amdgcn-amd-amdhsa--gfx950"\n.text')
    A(f".globl {KN}\n.p2align 8\n.type {KN},@function\n{KN}:")
    A("s_cmp_ge_u32 s2, 256\ns_cbranch_scc1 L_end")
    A("s_load_dwordx16 s[36:51], s[0:1], 0\ns_load_dwordx8 s[52:59], s[0:1], 64")
    stamp(0)
    A(f"v_lshrrev_b32 v1, 6, v0\nv_and_b32 {vLANE}, 63, v0\nv_readfirstlane_b32 {sW}, v1\ns_setprio 3")
    A(f"s_and_b32 {sT0}, s2, 7\ns_lshl_b32 {sT0}, {sT0}, 5\ns_lshr_b32 {sT1}, s2, 3\ns_add_u32 {sLIN}, {sT0}, {sT1}")
    A(f"s_lshr_b32 {sG}, {sLIN}, {LGS}\ns_and_b32 {sMEM}, {sLIN}, {GS-1}\ns_and_b32 {sS}, {sMEM}, 7")
    A(f"s_lshr_b32 {sT0}, {sMEM}, 3\ns_mul_i32 {sHQ}, {sT0}, {NG}\ns_add_u32 {sHQ}, {sHQ}, {sG}")
    A(f"s_sub_u32 {sW}, {sW}, 1\ns_cselect_b32 {sW}, 4, {sW}")
    A(f"v_lshrrev_b32 {vA}, 3, {vLANE}\nv_and_b32 {vB}, 7, {vLANE}")
    A(f"v_lshlrev_b32 v7, 4, {vB}")
    A(f"v_mov_b32 v4, 384\nv_mad_u32_u24 {vKV}, {vA}, v4, v7")
    A(f"v_mov_b32 v4, 12288\nv_mad_u32_u24 v4, {vA}, v4, v7")
    A(f"v_mov_b32 v5, 3072\nv_mad_u32_u24 v5, {vA}, v5, v7")
    A(f"v_mov_b32 v6, {OOB}\nv_cmp_gt_u32 vcc, 6, {vB}\nv_cndmask_b32 v5, v6, v5, vcc")
    A(f"v_lshlrev_b32 v6, 1, {vA}\nv_lshlrev_b32 v7, 4, {vLANE}")
    A(f"s_mul_i32 {sT0}, {sS}, 80\ns_lshl_b32 {sT1}, {sW}, 4\ns_add_u32 {sT0}, {sT0}, {sT1}")
    A(f"s_mul_i32 {sT1}, {sT0}, 12288\ns_mul_i32 {sT2}, {sHQ}, 384\ns_add_u32 {sT1}, {sT1}, {sT2}")
    A(f"s_mul_i32 {sT2}, {sT0}, 3072\ns_mul_i32 {sT3}, {sHQ}, 96\ns_add_u32 {sT2}, {sT2}, {sT3}")
    A(f"s_lshl_b32 {sT0}, {sT0}, 1")
    A(f"v_mov_b32 v8, 0\nv_mov_b32 v9, 0\nds_write_b64 v8, v[8:9] offset:{L_CT}")
    A("s_waitcnt lgkmcnt(0)")
    stamp(5, True)
    A(f"s_load_dword {sTAG}, s[{pWS}:{pWS+1}], {WS_EP}")
    srd(X_, pX, 1280); srd(TA_, pWQ, 640*12288); srd(TB_, pWG, 640*3072); srd(TC_, pWU, 640*3072); srd(WS_, pWS, WS_SIZE)
    XR, WD, WA = RING + 40, RING, ACC
    A(f"buffer_load_dwordx4 v[{XR}:{XR+3}], v7, {X_}, 0 offen")
    A(f"buffer_load_dwordx4 v[{XR+4}:{XR+7}], v7, {X_}, 0 offen offset:1024")
    A(f"buffer_load_ushort v{T+10}, v6, {X_}, {sT0} offen")
    A(f"buffer_load_ushort v{T+11}, v6, {X_}, {sT0} offen offset:16")
    A("s_barrier")
    for t in range(2):
        for j in range(3):
            A(f"buffer_load_dwordx4 v[{WD+20*t+4*j}:{WD+20*t+4*j+3}], v4, {TA_}, {sT1} offen offset:{128*j} nt")
        A(f"buffer_load_dwordx4 v[{WD+20*t+12}:{WD+20*t+15}], v5, {TB_}, {sT2} offen nt")
        A(f"buffer_load_dwordx4 v[{WD+20*t+16}:{WD+20*t+19}], v5, {TC_}, {sT2} offen nt")
        if t == 0: A(f"s_add_u32 {sT1}, {sT1}, {8*12288}\ns_add_u32 {sT2}, {sT2}, {8*3072}")
    stamp(6, True)
    srd(KV_, pK, TB)
    A(f"s_lshl_b32 {sT0}, {sMEM}, 2\ns_add_u32 {sT0}, {sT0}, {sW}\ns_mul_i32 {sT0}, {sT0}, 3072")
    A(f"s_mul_i32 {sOFF0}, {sG}, {HB}\ns_add_u32 {sOFF0}, {sOFF0}, {sT0}\ns_mov_b32 {sOFF}, {sOFF0}\ns_mov_b32 {sIB}, 0")
    A(f"s_mov_b32 s12, 0xcccccccc\ns_mov_b32 s13, 0xcccccccc\ns_mov_b32 s14, 0xaaaaaaaa\ns_mov_b32 s15, 0xaaaaaaaa")
    A(f"s_cmp_eq_u32 {sW}, 4\ns_cbranch_scc1 L_ln\ns_setprio 1\nL_ln:\ns_waitcnt vmcnt(10) lgkmcnt(0)")
    stamp(7, True)
    A(f"s_mul_i32 {sTAG}, {sTAG}, 1664525\ns_add_u32 {sTAG}, {sTAG}, 1013904223")
    XF = WA
    for i in range(8):
        A(f"v_lshlrev_b32 v{XF+2*i}, 16, v{XR+i}\nv_and_b32 v{XF+2*i+1}, 0xffff0000, v{XR+i}")
    l0, l1, l2, l3 = "v24", "v25", "v26", "v27"
    A(f"v_add_f32 {l0}, v{XF}, v{XF+1}\nv_add_f32 {l1}, v{XF+2}, v{XF+3}")
    for i in range(4, 16, 2): A(f"v_add_f32 {l0}, {l0}, v{XF+i}\nv_add_f32 {l1}, {l1}, v{XF+i+1}")
    A(f"v_add_f32 {l0}, {l0}, {l1}")
    allred16("v_add_f32", [l0]); allred_top("v_add_f32", [l0], [l1])
    A(f"v_mul_f32 {l0}, 0x3acccccd, {l0}")
    for i in range(16): A(f"v_sub_f32 v{XF+i}, v{XF+i}, {l0}")
    A(f"v_mul_f32 {l1}, v{XF}, v{XF}\nv_mul_f32 {l2}, v{XF+8}, v{XF+8}")
    for i in range(1, 8): A(f"v_fmac_f32 {l1}, v{XF+i}, v{XF+i}\nv_fmac_f32 {l2}, v{XF+8+i}, v{XF+8+i}")
    A(f"v_cmp_gt_u32 vcc, 16, {vLANE}\nv_cndmask_b32 {l2}, 0, {l2}, vcc\nv_add_f32 {l1}, {l1}, {l2}")
    allred16("v_add_f32", [l1]); allred_top("v_add_f32", [l1], [l2])
    A(f"v_mul_f32 {l1}, 0x3acccccd, {l1}")
    A(f"v_cvt_pk_bf16_f32 {l0}, 0, {l0}\nv_cvt_pk_bf16_f32 {l1}, 0, {l1}")
    A(f"v_add_f32 {l1}, 0x3727c5ac, {l1}\nv_cvt_pk_bf16_f32 {l1}, 0, {l1}\nv_sqrt_f32 {l1}, {l1}")
    A(f"v_cvt_pk_bf16_f32 {l1}, 0, {l1}\nv_rcp_f32 {l2}, {l1}")
    for t in range(2):
        xr = f"v{T+10+t}"
        A(f"v_lshlrev_b32 {xr}, 16, {xr}\nv_sub_f32 {xr}, {xr}, {l0}\nv_cvt_pk_bf16_f32 {xr}, 0, {xr}")
        A(f"v_mul_f32 {l3}, {xr}, {l2}\nv_fma_f32 {xr}, -{l3}, {l1}, {xr}\nv_fma_f32 {xr}, {xr}, {l2}, {l3}")
        A(f"v_cvt_pk_bf16_f32 v{T+6+2*t}, {xr}, 0\nv_cvt_pk_bf16_f32 v{T+7+2*t}, 0, {xr}")
    for i in range(40): A(f"v_mov_b32 v{WA+i}, 0")
    stamp(1)
    def pb_load(n, paced):
        if n and n % 3 == 0: A(f"s_add_u32 {sOFF}, {sOFF}, {TSTR}")
        if paced: A(f"s_waitcnt vmcnt({pace-1})")
        ld(PB + 4*n, n % 3)
    A(f"s_waitcnt vmcnt(5)\ns_cmp_eq_u32 {sW}, 4\ns_cbranch_scc1 L_nopre0")
    for n in range(pre0): pb_load(n, False)
    A("L_nopre0:")
    axpy(WA, WD, 20, f"v{T+6}", f"v{T+7}")
    A(f"s_cmp_eq_u32 {sW}, 4\ns_cbranch_scc1 L_nopre1\ns_waitcnt vmcnt({pre0})")
    for n in range(pre0, pre1): pb_load(n, False)
    A("s_branch L_pre2\nL_nopre1:\ns_waitcnt vmcnt(0)\nL_pre2:")
    axpy(WA, WD+20, 20, f"v{T+8}", f"v{T+9}")
    redscat(WA, 5)
    A(f"s_mul_i32 {sT0}, {sW}, 1280\nv_lshl_add_u32 v4, {vLANE}, 2, {sT0}")
    for k in range(5): A(f"ds_write_b32 v4, v{WA+8*k} offset:{L_QP+256*k}")
    A(f"v_mov_b32 v5, 0\nv_mov_b32 v6, 1\ns_mov_b64 exec, 1\nds_add_u32 v5, v6 offset:{L_CT}\ns_mov_b64 exec, -1")
    stamp(2)
    A(f"s_cmp_eq_u32 {sW}, 4\ns_cbranch_scc1 L_svc")
    for n in range(pre1, 24):
        pb_load(n, True)
        if n == trig: A(f"v_mov_b32 v6, 64\ns_mov_b64 exec, 1\nds_add_u32 v5, v6 offset:{L_CT}\ns_mov_b64 exec, -1")
    srd(TA_, pWO, 6144*1280); srd(TB_, pWD, 1536*1280)
    if NSEG == 4: A(f"s_mov_b32 {sT0}, {sW}")
    else: A(f"s_lshr_b32 {sT0}, {sMEM}, 5\ns_lshl_b32 {sT1}, {sW}, 1\ns_add_u32 {sT0}, {sT0}, {sT1}")
    A(f"s_mul_i32 {sT0}, {sT0}, {NG}\ns_add_u32 {sT0}, {sT0}, {sG}\ns_mul_i32 {sT0}, {sT0}, 192")
    A(f"s_lshl_b32 {sT1}, {sS}, 3\ns_add_u32 {sT0}, {sT0}, {sT1}\ns_bfe_u32 {sT1}, {sMEM}, {(2<<16)|3}\ns_lshl_b32 {sT1}, {sT1}, 1")
    A(f"s_add_u32 {sT0}, {sT0}, {sT1}\ns_mul_i32 {sT0}, {sT0}, 1280\ns_mul_i32 {sT1}, {sW}, 7680")
    for jj in range(3):
        A(f"s_add_u32 m0, {sT1}, {L_W+7680+2560*jj}")
        for i in range(3):
            if i == 2: A("s_mov_b32 exec_hi, 0")
            A(f"s_waitcnt vmcnt({pace-1})")
            A(f"buffer_load_dwordx4 v7, {TA_}, {sT0} offen offset:{1024*i} nt lds")
        A(f"s_mov_b32 exec_hi, -1\ns_add_u32 {sT0}, {sT0}, {64*1280}")
    A(f"s_lshl_b32 {sT0}, {sHQ}, 3\ns_add_u32 {sT0}, {sT0}, {sS}\ns_mul_i32 {sT0}, {sT0}, 7680\ns_lshl_b32 {sT1}, {sW}, 11")
    A(f"s_add_u32 {sT0}, {sT0}, {sT1}\ns_add_u32 m0, {sT1}, {L_W}")
    A(f"s_waitcnt vmcnt({pace-1})\nbuffer_load_dwordx4 v7, {TB_}, {sT0} offen nt lds")
    A(f"s_cmp_eq_u32 {sW}, 3\ns_cselect_b32 exec_hi, 0, -1")
    A(f"s_waitcnt vmcnt({pace-1})\nbuffer_load_dwordx4 v7, {TB_}, {sT0} offen offset:1024 nt lds")
    A("s_mov_b32 exec_hi, -1")
    A(f"s_mov_b32 {sIB}, 1")
    for m in range(G):
        if m % 3 == 0: A(f"s_add_u32 {sOFF}, {sOFF}, {TSTR}")
        A(f"s_waitcnt vmcnt({pace-1})"); ld(RING + 4*m, m % 3)
    vQA, vSA = "v4", "v5"
    A(f"v_lshlrev_b32 {vQA}, 4, {vB}\nv_add_u32 {vQA}, {L_QB}, {vQA}")
    A(f"s_lshl_b32 {sT0}, {sW}, 12\ns_add_u32 {sT0}, {sT0}, {L_SC}\nv_lshl_add_u32 {vSA}, {vLANE}, 2, {sT0}")
    A("s_mov_b64 vcc, 0")
    A(f"v_mov_b32 v55, 0\ns_mov_b32 s81, 0\ns_mov_b32 {sBLK}, 1")
    stamp(3)
    A("s_barrier")
    for j in range(3): A(f"ds_read_b128 v[{Q+4*j}:{Q+4*j+3}], {vQA} offset:{128*j}")
    A("s_waitcnt lgkmcnt(0)")
    stamp(4)
    S1, S2 = ACC, ACC + 8
    for n in range(24):
        slot(n, FK)
        qk4(S2 + n//3, PB + 4*n, n % 3)
        qk4(S1 + n//3, RING + 4*(n % RB), n % 3)
    redscat_lo([S1, S2])
    A(f"ds_write_b32 {vSA}, v{S2}\nds_write_b32 {vSA}, v{S1} offset:256\nv_add_u32 {vSA}, 512, {vSA}")
    A(f"s_mov_b32 {sBLK}, 2\ns_branch L_kend")
    A("L_k:")
    for n in range(24):
        slot(n, FK)
        qk4(S1 + n//3, RING + 4*(n % RB), n % 3)
    redscat_lo([S1])
    A(f"ds_write_b32 {vSA}, v{S1}\nv_add_u32 {vSA}, 256, {vSA}\ns_add_u32 {sBLK}, {sBLK}, 1")
    A("L_kend:")
    if stamps: A(f"s_cmp_lg_u32 {sBLK}, 3\ns_cbranch_scc1 L_st1\ns_memrealtime s[42:43]\nL_st1:")
    A(f"s_waitcnt lgkmcnt(0)\ns_barrier\ns_and_b32 {sT0}, {sBLK}, {BPS-1}\ns_cbranch_scc1 L_k")
    A(f"v_add_u32 {vQA}, 384, {vQA}")
    A(f"s_cmp_eq_u32 {sBLK}, 16\ns_cbranch_scc1 L_v0")
    for j in range(3): A(f"ds_read_b128 v[{Q+4*j}:{Q+4*j+3}], {vQA} offset:{128*j}")
    A("s_waitcnt lgkmcnt(0)\ns_branch L_k")
    A("L_v0:")
    if stamps: A("s_memrealtime s[50:51]")
    vP, pl, ph, vOA = f"v{Q}", f"v{Q+1}", f"v{Q+2}", "v4"
    A(f"v_subrev_u32 {vSA}, 4096, {vSA}")
    A(f"s_lshl_b32 {sT0}, {sW}, 10\ns_add_u32 {sT0}, {sT0}, {L_OP}\nv_add_u32 {vOA}, {sT0}, v7")
    A("L_vseg:")
    for i in range(24): A(f"v_mov_b32 v{ACC+i}, 0")
    A("L_v:")
    A(f"ds_read_b32 {vP}, {vSA}\nv_add_u32 {vSA}, 256, {vSA}")
    if deep and not fb:
        A(f"s_cmp_ge_u32 {sBLK}, {32-deep}\ns_cselect_b64 vcc, -1, 0")
    for n in range(24):
        slot(n, F, True)
        if n == 0: A("s_waitcnt lgkmcnt(0)")
        if n % 3 == 0:
            t = n//3
            A(f"v_mov_b32_dpp {pl}, {vP} row_newbcast:{t} row_mask:0xf bank_mask:0x3")
            A(f"v_mov_b32_dpp {pl}, {vP} row_newbcast:{8+t} row_mask:0xf bank_mask:0xc")
            A(f"v_lshlrev_b32 {ph}, 16, {pl}")
        axpy(ACC + 8*(n % 3), RING + 4*(n % RB), 4, pl, ph)
    A(f"s_add_u32 {sBLK}, {sBLK}, 1")
    if stamps: A(f"s_cmp_lg_u32 {sBLK}, 29\ns_cbranch_scc1 L_st2\ns_memrealtime s[48:49]\nL_st2:\n; SSBYTES={26*8*3072}")
    A(f"s_and_b32 {sT0}, {sBLK}, {BPS-1}\ns_cbranch_scc0 L_vfl\ns_barrier\ns_branch L_v\nL_vfl:")
    stamp(5)
    redscat(ACC, 3)
    A(f"v_mov_b32 v{ACC+1}, v{ACC+8}\nv_mov_b32 v{ACC+2}, v{ACC+16}")
    A(f"ds_write_b96 {vOA}, v[{ACC}:{ACC+2}]\nv_xor_b32 {vOA}, 4096, {vOA}")
    A("s_waitcnt lgkmcnt(0)\ns_barrier")
    A(f"s_cmp_lt_u32 {sBLK}, 32\ns_cbranch_scc1 L_vseg")
    if stamps: A("s_mov_b32 s47, s81")
    stamp(6); stamp(7)
    A("s_branch L_done")
    A("L_svc:")
    G0 = RING
    A(f"v_lshlrev_b32 v4, 2, {vLANE}")
    A(f"L_wq:\nds_read_b32 v6, v5 offset:{L_CT}\ns_waitcnt lgkmcnt(0)\nv_and_b32 v6, 7, v6\nv_cmp_gt_u32 vcc, 5, v6\ns_cbranch_vccnz L_wq")
    for w in range(5):
        for k in range(5): A(f"ds_read_b32 v{G0+5*w+k}, v4 offset:{L_QP+1280*w+256*k}")
        if w == 2: A("s_waitcnt lgkmcnt(0)")
    A("s_waitcnt lgkmcnt(0)")
    for w in range(1, 5):
        for k in range(5): A(f"v_add_f32 v{G0+k}, v{G0+k}, v{G0+5*w+k}")
    A(f"v_lshl_add_u32 v5, {vB}, 3, {vA}\nv_lshlrev_b32 v6, 4, v5\nv_lshlrev_b32 v5, 1, v5")
    A(f"v_mov_b32 v{G0+5}, v{G0+4}\nv_mov_b32 v{G0+4}, v{G0+3}\nv_mov_b32 v{G0+3}, {sTAG}\nv_mov_b32 v{G0+6}, {sTAG}\nv_mov_b32 v{G0+7}, {sTAG}")
    A(f"s_lshl_b32 s72, {sHQ}, 3\ns_add_u32 s72, s72, {sS}\ns_lshl_b32 s72, s72, 11\ns_add_u32 s72, s72, {WS_QS}")
    A(f"buffer_store_dwordx4 v[{G0}:{G0+3}], v7, {WS_}, s72 offen sc1")
    A(f"s_mov_b32 exec_lo, 0x3f3f3f3f\ns_mov_b32 exec_hi, 0x3f3f3f3f")
    A(f"buffer_store_dwordx4 v[{G0+4}:{G0+7}], v6, {WS_}, s72 offen offset:1024 sc1")
    A("s_mov_b64 exec, -1")
    stamp(3)
    def poll(lab, loads, tags, sleep=0, first=None, mask=None, tag=sTAG, cnt=None, loc=False):
        A(f"s_mov_b32 {sT2}, {spin if cnt is None else cnt}")
        if first is not None: loads(first); A(f"s_branch {lab}_chk")
        elif sleep or mask: A(f"s_branch {lab}_go")
        A(f"{lab}:")
        if mask == "lane": A("s_mov_b64 exec, vcc")
        if mask == "low3":
            A(f"s_or_b32 {sT0}, vcc_lo, vcc_hi\ns_lshr_b32 {sT1}, {sT0}, 16\ns_or_b32 {sT0}, {sT0}, {sT1}\ns_lshr_b32 {sT1}, {sT0}, 8\ns_or_b32 {sT0}, {sT0}, {sT1}")
            A(f"s_and_b32 {sT0}, {sT0}, 0xff\ns_mul_i32 exec_lo, {sT0}, 0x01010101\ns_mov_b32 exec_hi, exec_lo")
        if sleep: A(f"s_sleep {sleep}")
        A(f"{lab}_go:")
        if loc and lp != "sc1":
            A(f"s_cmp_eq_u32 s72, 0\ns_cbranch_scc1 {lab}_rm"); loads(lp); A(f"s_branch {lab}_chk\n{lab}_rm:")
        loads("sc1")
        A(f"{lab}_chk:\ns_waitcnt vmcnt(0)")
        if len(tags) == 1: A(f"v_cmp_ne_u32 vcc, {tag}, {tags[0]}")
        else:
            A(f"v_xor_b32 {t0}, {tag}, {tags[0]}")
            for t in tags[1:]: A(f"v_bitop3_b32 {t0}, {t}, {tag}, {t0} bitop3:0xbe")
            A(f"v_cmp_ne_u32 vcc, 0, {t0}")
        A(f"s_cbranch_vccz {lab}_done\ns_sub_u32 {sT2}, {sT2}, 1\ns_cbranch_scc0 {lab}\n{lab}_done:")
        if mask: A("s_mov_b64 exec, -1")
    G1 = G0 + 8
    vL4, vQW, vSC, vML, vOP, vLS, vM, vPW, vZ, vF0, vF1 = [f"v{32+i}" for i in range(11)]
    LP = 64//NSEG; LLP = LP.bit_length()-1; NLS = GS//LP; NR = 4*BPS; NL = GS//8
    P0, P1, YY = PB, PB + 32, PB + 64
    vWA, vH1S, vH1G, vYS, vYG, vH3, vOUT, XV = "v16", "v17", "v18", "v19", "v20", "v21", 22, 26
    sLOC, sSEG, sTG2, sH1S, sH1G, sYS, sYG, sH3S, sH3G, sSP, sFL = [f"s{r}" for r in (72, 73, 74, 75, 76, 77, 78, 79, 80, 81, 82)]
    sUU = ["s60", "s61", "s62"]
    def yreg(c): return f"v{YY + c}"
    YT = YY + 12; vYW, vYR = "v30", "v31"
    def store2(lab, stores):
        A(f"s_cmp_eq_u32 {sLOC}, 0\ns_cbranch_scc1 {lab}_r"); stores(sp); A(f"s_branch {lab}_d\n{lab}_r:"); stores("sc1"); A(f"{lab}_d:")
    sF = [f"s{r}" for r in (20, 21, 22, 24, 25, 26, 28, 29)]
    sPR, sHD = "s30", "s47"
    A(f"v_mov_b32 {vL4}, v4\nv_mov_b32 {vQW}, v5\nv_add_u32 {vSC}, {L_SC}, v4\nv_mov_b32 {vML}, {L_ML}\nv_add_u32 {vOP}, {L_OP}, v7\nv_mov_b32 {vZ}, 0")
    A(f"s_lshr_b32 {sT0}, s2, 3\ns_lshl_b32 {sT0}, {sT0}, 2\nv_mov_b32 {vPW}, {sT0}")
    A(f"s_and_b32 {sPR}, s2, 7\ns_mul_i32 {sPR}, {sPR}, 4224\ns_add_u32 {sPR}, {sPR}, {WS_PR}")
    A(f"s_getreg_b32 s29, hwreg(HW_REG_XCC_ID)\ns_bitcmp1_b32 s29, 0\ns_cselect_b32 s29, {fb if fbo is None else fbo}, {fb}")
    A(f"s_mov_b32 {sSCALE}, 0x3d93cd3a\ns_mov_b32 {sLOG2E}, 0x3fb8aa3b\ns_mov_b32 {sBLK}, 0\ns_mov_b32 {sHD}, {sG}")
    A(f"L_wt:\ns_sleep 2\nds_read_b32 v10, {vZ} offset:{L_CT}\ns_waitcnt lgkmcnt(0)\nv_cmp_gt_u32 vcc, 256, v10\ns_cbranch_vccnz L_wt")
    A("s_branch L_gq0")
    A("L_blk:")
    A(f"s_cmp_le_u32 {sBLK}, 16\ns_cbranch_scc1 L_nofl\ns_and_b32 {sT0}, {sBLK}, {BPS-1}\ns_cbranch_scc1 L_nofl")
    stamp(5)
    for w in range(4): A(f"ds_read_b96 v[{G0+4*w}:{G0+4*w+2}], {vOP} offset:{1024*w}")
    A(f"v_xor_b32 {vOP}, 4096, {vOP}\nv_mov_b32 v{G0+19}, {sTG2}\ns_waitcnt lgkmcnt(0)")
    for k in range(3): A(f"v_add_f32 v{G0+k}, v{G0+k}, v{G0+4+k}\nv_add_f32 v{G0+8+k}, v{G0+8+k}, v{G0+12+k}")
    for k in range(3): A(f"v_add_f32 v{G0+k}, v{G0+k}, v{G0+8+k}")
    for k in range(3): A(f"v_mul_f32 v{G0+16+k}, {sF[0]}, v{G0+k}")
    HOLD = G0 + 20
    if late:
        A(f"s_cmp_lg_u32 {sBLK}, 32\ns_cbranch_scc1 L_keep")
        store2("L_s1", lambda p: A(f"buffer_store_dwordx4 v[{G0+16}:{G0+19}], {vH1S}, {WS_}, {sH1S} offen offset:3072 {p}"))
        A("s_branch L_g1\nL_keep:")
        for i in reversed(range(12)): A(f"v_mov_b32 v{HOLD+i}, v{HOLD+i-4}")
    else:
        store2("L_s1", lambda p: A(f"buffer_store_dwordx4 v[{G0+16}:{G0+19}], {vH1S}, {WS_}, {sH1S} offen {p}"))
        A(f"s_cmp_eq_u32 {sBLK}, 32\ns_cbranch_scc1 L_g1\ns_add_u32 {sH1S}, {sH1S}, 1024")
    for i in range(NSEG-1): A(f"s_mov_b32 {sF[i]}, {sF[i+1]}")
    A("L_nofl:\ns_setprio 0")
    if fb:
        A(f"s_add_u32 {sT0}, {sTAG}, {sBLK}\nv_mov_b32 {vF0}, {sT0}\ns_mov_b64 exec, 1")
        A(f"buffer_store_dword {vF0}, {vPW}, {WS_}, {sPR} offen\ns_mov_b32 exec_lo, -1")
        A(f"buffer_load_dword {vF1}, {vL4}, {WS_}, {sPR} offen {fp}\ns_waitcnt vmcnt(0)")
        A(f"v_sub_u32 {vF1}, {vF1}, {vF0}\nv_cmp_gt_u32 vcc, 32, {vF1}\ns_bcnt1_i32_b64 {sT0}, vcc\ns_mov_b64 exec, -1")
        A(f"s_cmp_gt_u32 {sT0}, s29\ns_cselect_b32 {sT0}, {sBLK}, 0\nv_mov_b32 {vF1}, {sT0}\nds_write_b32 {vZ}, {vF1} offset:{L_CT+4}")
    A(f"s_cmp_gt_u32 {sBLK}, 16\ns_cbranch_scc1 L_vpart")
    A(f"s_and_b32 {sT0}, {sBLK}, {BPS-1}\ns_cbranch_scc1 L_nosm")
    for w in range(4):
        for k in range(BPS): A(f"ds_read_b32 v{G0+BPS*w+k}, {vSC} offset:{4096*w+256*k}")
        if w == 1: A("s_waitcnt lgkmcnt(0)")
    A("s_waitcnt lgkmcnt(0)")
    for i in range(NR): A(f"v_cvt_pk_bf16_f32 v{G0+i}, 0, v{G0+i}")
    for i in range(NR): A(f"v_mul_f32 v{G0+i}, {sSCALE}, v{G0+i}")
    for i in range(NR): A(f"v_cvt_pk_bf16_f32 v{G0+i}, 0, v{G0+i}")
    for i in range(NR): A(f"v_mul_f32 v{G0+i}, {sLOG2E}, v{G0+i}")
    A(f"v_max_f32 {t0}, v{G0}, v{G0+1}")
    for i in range(2, NR, 2): A(f"v_max3_f32 {t0}, {t0}, v{G0+i}, v{G0+i+1}")
    allred16("v_max_f32", [t0]); allred_top("v_max_f32", [t0], [t1])
    for i in range(NR): A(f"v_sub_f32 v{G0+i}, v{G0+i}, {t0}")
    for i in range(NR): A(f"v_exp_f32 v{G0+i}, v{G0+i}")
    A(f"v_add_f32 {t1}, v{G0}, v{G0+1}")
    for i in range(2, NR): A(f"v_add_f32 {t1}, {t1}, v{G0+i}")
    for i in range(NR): A(f"v_cvt_pk_bf16_f32 v{G0+i}, v{G0+i}, 0")
    for w in range(4):
        for k in range(BPS): A(f"ds_write_b32 {vSC}, v{G0+BPS*w+k} offset:{4096*w+256*k}")
        if w == 1: A("s_waitcnt lgkmcnt(0)")
    allred16("v_add_f32", [t1]); allred_top("v_add_f32", [t1], [t2])
    A(f"v_log_f32 {t3}, {t1}\nv_mov_b32 {t2}, {t0}\nv_add_f32 {t3}, {t3}, {t0}")
    A(f"ds_write_b64 {vML}, v[{T+2}:{T+3}]")
    A(f"v_add_u32 {vSC}, {256*BPS}, {vSC}\nv_add_u32 {vML}, 8, {vML}")
    A("L_nosm:")
    A(f"s_cmp_ge_u32 {sBLK}, {NSEG}\ns_cbranch_scc1 L_noq")
    A("L_gq0:")
    A(f"s_lshl_b32 {sT1}, {sHD}, 14\ns_add_u32 {sT1}, {sT1}, {WS_QS}")
    def gq(p):
        for s in range(8):
            if s % 2 == 0: A(f"s_add_u32 {sT0}, {sT1}, {2048*s}")
            A(f"buffer_load_dwordx4 v[{G1+4*s}:{G1+4*s+3}], v7, {WS_}, {sT0} offen offset:{2048*(s%2)} {p}")
    poll("L_gq", gq, [f"v{G1+4*s+3}" for s in range(8)], first=qp, sleep=psleep)
    for s in range(1, 8):
        for k in range(3): A(f"v_add_f32 v{G1+k}, v{G1+k}, v{G1+4*s+k}")
    for k in range(3): A(f"v_cvt_pk_bf16_f32 v{G1+k}, v{G1+k}, 0")
    for k in range(3): A(f"ds_write_b16 {vQW}, v{G1+k} offset:{L_QB+128*k}")
    A(f"v_add_u32 {vQW}, 384, {vQW}\ns_add_u32 {sHD}, {sHD}, {NG}")
    if stamps or diag is not None:
        A(f"s_cmp_lg_u32 {sBLK}, 0\ns_cbranch_scc1 L_next"); stamp(4)
    A("s_branch L_next")
    A("L_noq:")
    A(f"s_cmp_lg_u32 {sBLK}, {NSEG+1}\ns_cbranch_scc1 L_nogu")
    A(f"v_lshlrev_b32 v8, 11, {vA}\nv_lshl_add_u32 v8, {vB}, 4, v8\nv_mov_b32 v{G1}, 0\nv_mov_b32 v{G1+1}, 0")
    A(f"s_lshl_b32 {sT1}, {sHQ}, 14\ns_mul_i32 {sT0}, {sS}, 96\ns_add_u32 {sT1}, {sT1}, {sT0}\ns_add_u32 {sT1}, {sT1}, {WS_QS}")
    A(f"s_mov_b32 exec_lo, 0x3f3f3f3f\ns_mov_b32 exec_hi, 0x3f3f3f3f")
    poll("L_gu", lambda p: A(f"buffer_load_dwordx4 v[{G1}:{G1+3}], v8, {WS_}, {sT1} offen offset:1024 {p}"), [f"v{G1+2}", f"v{G1+3}"], sleep=psleep)
    A("s_mov_b64 exec, -1")
    for k in range(2): A(f"v_add_f32_dpp v{G1+k}, v{G1+k}, v{G1+k} row_ror:8 {DPP}")
    allred_top("v_add_f32", [f"v{G1}", f"v{G1+1}"], [t0, t1])
    A(f"v_cvt_pk_bf16_f32 v{G1}, 0, v{G1}\nv_cvt_pk_bf16_f32 v{G1+1}, 0, v{G1+1}")
    A(f"v_cmp_lt_f32 vcc, 0, v{G1}\nv_cndmask_b32 {t0}, 0, 1.0, vcc\nv_mul_f32 {t3}, v{G1}, {t0}\nv_mul_f32 {t3}, {t3}, v{G1+1}\nv_cvt_pk_bf16_f32 {t3}, {t3}, 0")
    A(f"v_mov_b32_dpp {t0}, {t3} quad_perm:[1,1,3,3] {DPP}\nv_lshl_or_b32 {t3}, {t0}, 16, {t3}")
    for i in range(3): A(f"v_readlane_b32 {sUU[i]}, {t3}, {2*i}")
    A(f"v_mul_u32_u24 {vWA}, 20, {vLANE}\nv_add_u32 {vWA}, {L_W}, {vWA}")
    A(f"v_lshrrev_b32 {t0}, 4, {vLANE}\nv_lshl_add_u32 {t0}, {t0}, 3, {vB}\nv_and_b32 {t1}, 8, {vLANE}\nv_lshlrev_b32 {t1}, 1, {t1}")
    A(f"v_lshl_add_u32 {vH1S}, {t0}, 5, {t1}\nv_lshl_add_u32 {vH1G}, {t0}, 12, {t1}")
    A(f"s_lshl_b32 {sH1S}, {sLIN}, 12\ns_add_u32 {sH1S}, {sH1S}, {WS_H1}")
    A(f"s_lshl_b32 {sH1G}, {sG}, 17\ns_lshl_b32 {sT0}, {sMEM}, 5\ns_add_u32 {sH1G}, {sH1G}, {sT0}\ns_add_u32 {sH1G}, {sH1G}, {WS_H1}")
    A(f"v_mul_u32_u24 {vYW}, 40, {vLANE}\nv_mul_u32_u24 {vYR}, 80, {vA}\nv_mad_u32_u24 {vYR}, {vB}, 12, {vYR}\nv_add_u32 {vYR}, {L_QP}, {vYR}")
    A(f"v_lshlrev_b32 {t0}, 4, {vB}\nv_lshl_add_u32 {vYG}, {vA}, 12, {t0}\nv_lshl_add_u32 {vH3}, {vA}, 7, {t0}")
    A(f"s_lshl_b32 {sYS}, {sLIN}, 12\ns_add_u32 {sYS}, {sYS}, {WS_H2}")
    A(f"s_lshl_b32 {sYG}, {sG}, 17\ns_lshl_b32 {sT0}, {sMEM}, 7\ns_add_u32 {sYG}, {sYG}, {sT0}\ns_add_u32 {sYG}, {sYG}, {WS_H2}")
    A(f"s_lshl_b32 {sH3G}, {sMEM}, 10\ns_add_u32 {sH3G}, {sH3G}, {WS_H3}\ns_lshl_b32 {sT0}, {sG}, 7\ns_add_u32 {sH3S}, {sH3G}, {sT0}")
    A(f"s_add_u32 {sTG2}, {sTAG}, 64\ns_mov_b32 {sSP}, {spin}\ns_mov_b32 {sFL}, 1\ns_mov_b32 s83, 0")
    A(f"v_mul_u32_u24 {t0}, 3, {vB}\ns_mul_i32 {sT0}, {sMEM}, 20\nv_add_lshl_u32 {t0}, {t0}, {sT0}, 1\nv_mov_b32 {t2}, {OOB}")
    A(f"v_cmp_gt_u32 vcc, 7, {vB}\nv_cndmask_b32 v{vOUT}, {t2}, {t0}, vcc\nv_cmp_gt_u32 vcc, 6, {vB}\nv_cndmask_b32 v{vOUT+1}, {t2}, {t0}, vcc")
    A(f"v_mov_b32 {t0}, {WS_EP}\nv_or_b32 {t1}, s2, {vLANE}\nv_cmp_eq_u32 vcc, 0, {t1}\nv_cndmask_b32 v{vOUT+2}, {t2}, {t0}, vcc\nv_mov_b32 v{vOUT+3}, {sTAG}")
    A(f"buffer_load_ushort v{XV}, v{vOUT}, {X_}, 0 offen\nbuffer_load_ushort v{XV+1}, v{vOUT}, {X_}, 0 offen offset:2\nbuffer_load_ushort v{XV+2}, v{vOUT+1}, {X_}, 0 offen offset:4")
    for i in range(16): A(f"v_mov_b32 v{YY+i}, 0")
    A("s_waitcnt vmcnt(0)")
    for e in range(3): A(f"v_lshlrev_b32 v{XV+e}, 16, v{XV+e}")
    srd(X_, pOUT, 1280)
    A("s_branch L_prep")
    A("L_nogu:")
    A(f"s_cmp_lg_u32 {sBLK}, 16\ns_cbranch_scc1 L_next")
    A(f"v_lshrrev_b32 v10, {LLP}, {vLANE}\nv_lshlrev_b32 v10, 3, v10\ns_waitcnt lgkmcnt(0)\nds_read_b64 v[{T+2}:{T+3}], v10 offset:{L_ML}")
    A(f"s_lshl_b32 {sT1}, {sLIN}, 7\ns_add_u32 {sT1}, {sT1}, {WS_LS}\nv_and_b32 v11, {LP-1}, {vLANE}\nv_cmp_eq_u32 vcc, 0, v11")
    A(f"s_waitcnt lgkmcnt(0)\nv_mov_b32 {vM}, {t2}\nv_mov_b32 {t0}, {t3}\nv_mov_b32 {t1}, {sTAG}\nv_mov_b32 {t3}, {sTAG}")
    A(f"s_getreg_b32 {sLOC}, hwreg(HW_REG_XCC_ID)\nv_mov_b32 {t2}, {sLOC}\nv_lshlrev_b32 v10, 1, v10\ns_mov_b64 exec, vcc")
    A(f"buffer_store_dwordx4 v[{T}:{T+3}], v10, {WS_}, {sT1} offen sc1\ns_mov_b64 exec, -1")
    A(f"v_lshl_add_u32 {vLS}, v11, 7, v10\ns_branch L_next")
    A("L_vpart:")
    A(f"s_cmp_lg_u32 {sBLK}, 19\ns_cbranch_scc1 L_nols")
    A(f"s_mul_i32 {sT1}, {sG}, {GS*128}\ns_add_u32 {sT1}, {sT1}, {WS_LS}")
    def gl(p):
        for r in range(2): A(f"buffer_load_dwordx4 v[{G0+4*r}:{G0+4*r+3}], {vLS}, {WS_}, {sT1} offen offset:{LP*128*r} {p}")
    poll("L_ls", gl, [f"v{G0+1}", f"v{G0+3}", f"v{G0+5}", f"v{G0+7}"], sleep=32, first=qp)
    A(f"v_xor_b32 {t0}, {sLOC}, v{G0+2}\nv_bitop3_b32 {t0}, v{G0+6}, {sLOC}, {t0} bitop3:0xbe\nv_cmp_ne_u32 vcc, 0, {t0}")
    A(f"s_cmp_eq_u64 vcc, 0\ns_cselect_b32 {sLOC}, {local}, 0")
    A(f"v_max_f32 {t0}, v{G0}, v{G0+4}")
    allred16("v_max_f32", [t0])
    for r in range(2): A(f"v_sub_f32 v{G0+4*r}, v{G0+4*r}, {t0}")
    for r in range(2): A(f"v_exp_f32 v{G0+4*r}, v{G0+4*r}")
    A(f"v_add_f32 v{G0}, v{G0}, v{G0+4}")
    allred16("v_add_f32", [f"v{G0}"])
    A(f"v_sub_f32 {t0}, {vM}, {t0}\nv_exp_f32 {t0}, {t0}\nv_rcp_f32 {t1}, v{G0}\nv_mul_f32 {t0}, {t0}, {t1}")
    for k in range(NSEG): A(f"v_readlane_b32 {sF[k]}, {t0}, {LP*k}")
    A("L_nols:")
    if dry:
        A(f"s_cmp_lg_u32 {sBLK}, {dry}\ns_cbranch_scc1 L_nodry\ns_mov_b32 {sSP}, 0\ns_add_u32 {sSEG}, {sTAG}, 96\ns_mov_b32 s34, 0\ns_mov_b32 s18, {WS_SIZE if drymem else 0}\ns_branch L_tail\nL_nodry:")
    if late:
        A(f"s_cmp_lg_u32 {sBLK}, {late[0]}\ns_cbranch_scc1 L_nopub")
        def hs(p):
            for i in range(3): A(f"buffer_store_dwordx4 v[{HOLD+4*i}:{HOLD+4*i+3}], {vH1S}, {WS_}, {sH1S} offen offset:{1024*(2-i)} {p}")
        store2("L_s0", hs)
        if late[0] == late[1]: A(f"s_sleep {late[2]}")
        A("L_nopub:")
        A(f"s_cmp_lg_u32 {sBLK}, {late[1]}\ns_cbranch_scc1 L_last\ns_mov_b32 s83, 3")
        def g0(p):
            for i in range(3): A(f"buffer_load_dwordx4 v[{G0+4*i}:{G0+4*i+3}], {vH1G}, {WS_}, {sH1G} offen offset:{1024*i} {p}")
        poll("L_p0", g0, [f"v{G0+4*i+3}" for i in range(3)], tag=sTG2, sleep=8, loc=True)
        A("s_branch L_r1")
    else:
        A(f"s_cmp_lt_u32 {sBLK}, 22\ns_cbranch_scc1 L_next\ns_and_b32 {sT0}, {sBLK}, 3\ns_cmp_lg_u32 {sT0}, 2\ns_cbranch_scc1 L_last")
    A("L_g1:")
    poll("L_p1", lambda p: A(f"buffer_load_dwordx4 v[{G0}:{G0+3}], {vH1G}, {WS_}, {sH1G} offen {p}"), [f"v{G0+3}"], tag=sTG2, loc=True)
    stamp(6)
    A("L_r1:")
    A(f"v_mov_b32 v{G0+3}, 0\nv_permlane32_swap_b32 v{G0}, v{G0+1}\nv_permlane32_swap_b32 v{G0+2}, v{G0+3}")
    A(f"v_add_f32 v{G0}, v{G0}, v{G0+1}\nv_add_f32 v{G0+2}, v{G0+2}, v{G0+3}\nv_permlane16_swap_b32 v{G0}, v{G0+2}\nv_add_f32 v{G0}, v{G0}, v{G0+2}")
    for pat in ("quad_perm:[1,0,3,2]", "quad_perm:[2,3,0,1]", "row_half_mirror"): A(f"v_add_f32_dpp v{G0}, v{G0}, v{G0} {pat} {DPP}")
    A(f"v_mov_b32_dpp v{G0+1}, v{G0} row_ror:8 {DPP}\nv_cvt_pk_bf16_f32 v{G0}, v{G0}, v{G0+1}")
    for jj, ln in ((0, 0), (1, 32), (2, 16)): A(f"v_readlane_b32 {sUU[jj]}, v{G0}, {ln}")
    A(f"s_add_u32 {sH1G}, {sH1G}, 1024\ns_mov_b32 {sSEG}, {sTAG}")
    A("L_dot:")
    for p in range(3):
        for c in range(10): A(f"v_dot2c_f32_bf16 {yreg(c)}, {sUU[p]}, v{P1+10*p+c}")
    A(f"s_cmp_eq_u32 {sBLK}, 32\ns_cbranch_scc1 L_tail")
    A("L_prep:")
    for r in range(6):
        for d in range(5): A(f"ds_read_b32 v{P0+5*r+d}, {vWA} offset:{1280*r+4*d}")
        if r % 2: A("s_waitcnt lgkmcnt(0)")
    A(f"v_add_u32 {vWA}, 7680, {vWA}\ns_mov_b32 {sT1}, 0x05040100\ns_mov_b32 {sT3}, 0x07060302")
    for p in range(3):
        for d in range(5):
            A(f"v_perm_b32 v{P1+10*p+2*d}, v{P0+10*p+5+d}, v{P0+10*p+d}, {sT1}\nv_perm_b32 v{P1+10*p+2*d+1}, v{P0+10*p+5+d}, v{P0+10*p+d}, {sT3}")
    A(f"s_cmp_eq_u32 {sFL}, 0\ns_mov_b32 {sFL}, 0\ns_cbranch_scc0 L_dot")
    if late:
        for i in range(8): A(f"v_mov_b32 v{G0+i}, v{G0+4+i}")
        A("s_sub_u32 s83, s83, 1\ns_cmp_gt_i32 s83, 0\ns_cbranch_scc1 L_r1")
    A("L_last:")
    A(f"s_cmp_lg_u32 {sBLK}, 31\ns_cbranch_scc1 L_next\ns_setprio 3")
    if pf is not None:
        for r in range(4):
            A(f"s_add_u32 {sT0}, {sYG}, {8*4096*r}\nbuffer_load_dwordx4 v[{G0+4*r}:{G0+4*r+3}], {vYG}, {WS_}, {sT0} offen {pf}")
        A(f"buffer_load_dwordx4 v[{G0+16}:{G0+19}], v7, {WS_}, {sH1S} offen offset:{3072 if late else 0} {pf}\ns_waitcnt vmcnt(0)")
    A("L_next:")
    A(f"s_add_u32 {sBLK}, {sBLK}, 1\ns_waitcnt lgkmcnt(0)\ns_barrier\ns_branch L_blk")
    A("L_tail:")
    for d in range(5): A(f"ds_write_b64 {vYW}, v[{YY+2*d}:{YY+2*d+1}] offset:{L_QP+8*d}")
    for g in range(4):
        A(f"ds_read2_b32 v[{YT+4*g}:{YT+4*g+1}], {vYR} offset0:0 offset1:1\nds_read_b32 v{YT+4*g+2}, {vYR} offset:8")
        A(f"v_add_u32 {vYR}, {640 if g < 3 else -1920}, {vYR}\nv_mov_b32 v{YT+4*g+3}, {sSEG}")
    def ys(p):
        for g in range(4):
            A(f"s_waitcnt lgkmcnt({0 if (stamps or diag is not None) else 6-2*g})")
            A(f"buffer_store_dwordx4 v[{YT+4*g}:{YT+4*g+3}], v7, {WS_}, {sYS} offen offset:{1024*g} {p}")
    store2("L_s2", ys)
    if w2: A("s_waitcnt vmcnt(0)")
    stamp(7)
    def g2(p):
        for r in range(4):
            A(f"s_add_u32 {sT0}, {sYG}, {8*4096*r}\nbuffer_load_dwordx4 v[{G0+4*r}:{G0+4*r+3}], {vYG}, {WS_}, {sT0} offen {p}")
    poll("L_p2", g2, [f"v{G0+4*r+3}" for r in range(4)], tag=sSEG, cnt=sSP, loc=True)
    if stamps: A("s_memrealtime s[42:43]")
    for k in range(3): A(f"v_add_f32 v{G0+k}, v{G0+k}, v{G0+4+k}\nv_add_f32 v{G0+8+k}, v{G0+8+k}, v{G0+12+k}")
    for k in range(3): A(f"v_add_f32 v{G0+k}, v{G0+k}, v{G0+8+k}")
    def red_hi():
        for k in range(3): A(f"v_add_f32_dpp v{G0+k}, v{G0+k}, v{G0+k} row_ror:8 {DPP}")
        allred_top("v_add_f32", [f"v{G0+k}" for k in range(3)], [f"v{G0+4+k}" for k in range(3)])
    red_hi()
    A(f"s_cmp_eq_u32 {sSP}, 0\ns_cselect_b32 s18, 0, s18\ns_mov_b64 exec, 0xff")
    A(f"buffer_store_dwordx4 v[{G0}:{G0+3}], {vH3}, {WS_}, {sH3S} offen sc1\ns_mov_b64 exec, -1")
    A(f"s_cmp_lg_u32 {sS}, {sG}\ns_cbranch_scc1 L_nored")
    poll("L_p3", lambda p: A(f"buffer_load_dwordx4 v[{G0+8}:{G0+11}], {vH3}, {WS_}, {sH3G} offen {p}"), [f"v{G0+11}"], tag=sSEG, cnt=sSP)
    if stamps: A("s_memrealtime s[48:49]")
    G0 += 8
    red_hi()
    for e in range(3): A(f"v_add_f32 v{G0+e}, v{G0+e}, v{XV+e}")
    for e in range(3): A(f"v_cvt_pk_bf16_f32 v{G0+e}, v{G0+e}, 0")
    A("s_mov_b64 exec, 0xff")
    A(f"buffer_store_short v{G0}, v{vOUT}, {X_}, 0 offen\nbuffer_store_short v{G0+1}, v{vOUT}, {X_}, 0 offen offset:2\nbuffer_store_short v{G0+2}, v{vOUT+1}, {X_}, 0 offen offset:4")
    A(f"buffer_store_dword v{vOUT+3}, v{vOUT+2}, {WS_}, 0 offen")
    A("s_mov_b64 exec, -1\nL_nored:")
    if dry:
        A(f"s_cmp_lg_u32 {sSP}, 0\ns_cbranch_scc1 L_done\ns_mov_b32 {sSP}, {spin}\ns_mov_b32 s18, {WS_SIZE}\ns_mov_b32 s34, 1280\ns_branch L_next")
    A("L_done:")
    if diag is not None:
        wave, st, mult = diag
        stamp(8)
        A(f"s_cmp_lg_u32 s2, 0\ns_cbranch_scc1 L_end\ns_cmp_lg_u32 {sW}, {wave}\ns_cbranch_scc1 L_end")
        A(f"s_waitcnt lgkmcnt(0)\ns_sub_u32 {sT0}, s{sST+2*st}, s{sST}\ns_mul_i32 {sT0}, {sT0}, {mult}\ns_add_u32 {sT0}, {sT0}, 30000")
        A(f"s_min_u32 {sT0}, {sT0}, 200000")
        A(f"L_dg:\ns_memrealtime s[72:73]\ns_waitcnt lgkmcnt(0)\ns_sub_u32 {sT1}, s72, s{sST}\ns_cmp_lt_u32 {sT1}, {sT0}\ns_cbranch_scc1 L_dg")
    if stamps:
        stamp(8)
        A(f"s_mul_i32 {sT0}, s2, 5\ns_add_u32 {sT0}, {sT0}, {sW}\ns_lshl_b32 {sT0}, {sT0}, 6\ns_add_u32 {sT0}, {sT0}, {WS_ST}")
        A(f"s_getreg_b32 {sT1}, hwreg(HW_REG_XCC_ID)")
        A("s_waitcnt lgkmcnt(0)\nv_mov_b32 v4, 0")
        for i in range(9): A(f"v_writelane_b32 v4, s{sST+2*i}, {i}")
        A(f"v_writelane_b32 v4, s42, 9\nv_writelane_b32 v4, s48, 10\nv_writelane_b32 v4, s50, 11\nv_writelane_b32 v4, s47, 12")
        A(f"v_writelane_b32 v4, {sT1}, 15")
        A(f"v_lshlrev_b32 v5, 2, {vLANE}\ns_mov_b64 exec, 0xffff")
        A(f"buffer_store_dword v4, v5, {WS_}, {sT0} offen")
    A("L_end:\ns_endpgm")
    A('.section .rodata,"a"\n.p2align 6')
    A(f".amdhsa_kernel {KN}")
    nv4 = (NV+3)//4*4
    A(f".amdhsa_next_free_vgpr {nv4}\n.amdhsa_next_free_sgpr 102\n.amdhsa_accum_offset {nv4}")
    A(".amdhsa_group_segment_fixed_size 0\n.amdhsa_kernarg_size 96\n.amdhsa_user_sgpr_count 2")
    A(".amdhsa_user_sgpr_kernarg_segment_ptr 1\n.amdhsa_system_sgpr_workgroup_id_x 1")
    A(".amdhsa_float_denorm_mode_32 3\n.end_amdhsa_kernel")
    return A.finish()

if __name__ == "__main__":
    kw = eval("dict(" + (sys.argv[2] if len(sys.argv) > 2 else "") + ")")
    open(sys.argv[1], "w").write(gen(**kw))
```

```python
import sys, os
sys.path.insert(0, os.path.dirname(os.path.abspath(__file__)))
from asmlib import Asm
KN = "parallel_sum__mha_block_cached__glu_gated_reglu__decode_kernel"
HEADER = open("parallel_sum__mha_block_cached__glu_gated_reglu__decode.s.ref").read().split("; Override launch")[0]

HB = 32768*384
TB = 32*HB
WS_EP, WS_LS, WS_PR, WS_H3, WS_QS, WS_H1, WS_ST, WS_H2, WS_SIZE = 0, 0x8000, 0x10000, 0x20000, 0x80000, 0x100000, 0x200000, 0x280000, 0x400000
OOB = 0x40000000
SPIN = 1 << 20

def gen(NSEG=4, G=6, F=5, RB=8, pace=5, deep=1, stamps=False, diag=None, R=80, psleep=4, pre0=3, pre1=8, FK=None, fb=22, FH=None, fbs=11, trig=20, spin=SPIN, dry=0, local=1, drymem=0, w2=0, late=None, fbo=26, lp='nt', sp='', fp='nt', pf='sc1', qs='sc1', qp='', st0=False, gmap=0, gp='nt', wp='nt'):
    A = Asm()
    NG = 32//NSEG; GS = 8*NSEG; BPS = 16//NSEG; LGS = GS.bit_length()-1
    TSTR = GS*4*3072
    assert G < RB and 24 % RB == 0
    if FK is None: FK = F
    assert NSEG == 4
    L_OP = 0; L_W = 8192; L_QP = L_W + 38912; L_QB = L_QP + 6400; L_HB = L_QB + 384*NSEG
    L_ML = L_HB + 128; L_RED = L_ML + 64; L_U = L_RED + 512; L_CT = L_U + 64; L_SC = L_CT + 64; L_SIZE = L_SC + 16384
    sW, sHQ, sS, sG, sMEM = "s3", "s4", "s5", "s6", "s7"
    KV_, WS_, TA_, TB_, TC_, X_ = "s[8:11]", "s[16:19]", "s[20:23]", "s[24:27]", "s[28:31]", "s[32:35]"
    mB1, mB0 = "s[12:13]", "s[14:15]"
    pX, pK, pV, pWQ, pWO, pWG, pWU, pWD, pOUT, pDBG, pWS = 36, 38, 40, 42, 44, 48, 50, 52, 54, 56, 58
    sOFF, sOFF0, sIB, sBLK, sLIN, sT0, sT1, sT2, sT3, sT4 = "s60", "s61", "s62", "s63", "s64", "s67", "s68", "s69", "s70", "s71"
    sSCALE, sLOG2E = "s65", "s66"
    sU = 72
    sTAG = "s46"
    sST = 84
    vLANE, vKV, vA, vB = "v0", "v1", "v2", "v3"
    ACC, Q = 8, 32
    T = 44
    RING = 56
    PB = RING + 48
    assert 4*RB <= 48
    NV = PB + 96
    t0, t1, t2, t3 = f"v{T}", f"v{T+1}", f"v{T+2}", f"v{T+3}"
    nst = [0]
    def stamp(i, early=False):
        if st0 and (5 <= i <= 7) != bool(early): return
        if early and int(early) != int(st0): return
        if stamps or diag is not None: A(f"s_memrealtime s[{sST+2*i}:{sST+2*i+1}]")
    def srd(name, ptr, size):
        b = int(name[2:name.index(":")])
        A(f"s_mov_b32 s{b}, s{ptr}\ns_mov_b32 s{b+1}, s{ptr+1}\ns_mov_b32 s{b+2}, {size}\ns_mov_b32 s{b+3}, 0x20000")
    DPP = "row_mask:0xf bank_mask:0xf"
    def allred16(op, vs):
        for pat in ("quad_perm:[1,0,3,2]", "quad_perm:[2,3,0,1]", "row_half_mirror", "row_mirror"):
            for v in vs: A(f"{op}_dpp {v}, {v}, {v} {pat} {DPP}")
    def allred_top(op, vs, ts):
        for sw in ("v_permlane16_swap_b32", "v_permlane32_swap_b32"):
            for v, t in zip(vs, ts): A(f"v_mov_b32 {t}, {v}")
            for v, t in zip(vs, ts): A(f"{sw} {t}, {v}")
            for v, t in zip(vs, ts): A(f"{op} {v}, {v}, {t}")
    def redscat(base, n):
        for g in range(n):
            for e in range(4): A(f"v_permlane32_swap_b32 v{base+8*g+e}, v{base+8*g+e+4}")
        for g in range(n):
            for e in range(4): A(f"v_add_f32 v{base+8*g+e}, v{base+8*g+e}, v{base+8*g+e+4}")
        for g in range(n):
            for e in range(2): A(f"v_permlane16_swap_b32 v{base+8*g+e}, v{base+8*g+e+2}")
        for g in range(n):
            for e in range(2): A(f"v_add_f32 v{base+8*g+e}, v{base+8*g+e}, v{base+8*g+e+2}")
        for g in range(n):
            A(f"v_add_f32_dpp v{base+8*g}, v{base+8*g}, v{base+8*g} row_ror:8 row_mask:0xf bank_mask:0x3")
        for g in range(n):
            A(f"v_add_f32_dpp v{base+8*g}, v{base+8*g+1}, v{base+8*g+1} row_ror:8 row_mask:0xf bank_mask:0xc")
    def redscat_lo(bases):
        for S in bases:
            for e in range(4): A(f"v_add_f32_dpp v{S+e}, v{S+e}, v{S+e} row_half_mirror row_mask:0xf bank_mask:0x5")
        for S in bases:
            for e in range(4): A(f"v_add_f32_dpp v{S+e}, v{S+e+4}, v{S+e+4} row_half_mirror row_mask:0xf bank_mask:0xa")
        for S in bases:
            for e in range(4): A(f"v_add_f32_dpp v{S+e}, v{S+e}, v{S+e} quad_perm:[2,3,0,1] {DPP}")
        for S in bases:
            for e in range(2): A(f"v_cndmask_b32 v{S+e}, v{S+e}, v{S+e+2}, {mB1}")
        for S in bases:
            for e in range(2): A(f"v_add_f32_dpp v{S+e}, v{S+e}, v{S+e} quad_perm:[1,0,3,2] {DPP}")
        for S in bases: A(f"v_cndmask_b32 v{S}, v{S}, v{S+1}, {mB0}")
    def axpy(acc, data, n, pl, ph):
        for i in range(n):
            A(f"v_dot2c_f32_bf16 v{acc+2*i}, v{data+i}, {pl}\nv_dot2c_f32_bf16 v{acc+2*i+1}, v{data+i}, {ph}")
    def ld(reg, j): A(f"buffer_load_dwordx4 v[{reg}:{reg+3}], {vKV}, {KV_}, {sOFF} offen offset:{128*j} nt")
    uid = [0]
    def next_block():
        uid[0] += 1; u = uid[0]
        A(f"s_add_u32 {sIB}, {sIB}, 1\ns_and_b32 {sT0}, {sIB}, {BPS-1}\ns_cbranch_scc1 L_nb{u}")
        A(f"s_add_u32 {sOFF}, {sOFF}, {(NG-1)*HB}")
        A(f"s_and_b32 {sT0}, {sIB}, 15\ns_cbranch_scc1 L_nb{u}")
        A(f"s_mov_b32 s8, s{pV}\ns_mov_b32 s9, s{pV+1}\ns_mov_b32 {sOFF}, {sOFF0}")
        A(f"s_cmp_lt_u32 {sIB}, 32\ns_cbranch_scc1 L_nb{u}\ns_mov_b32 s10, 0\ns_mov_b32 {sOFF}, 0")
        A(f"L_nb{u}:")
    if FH is None: FH = G
    sFB, sTHR, sREP = "s78", "s79", "s80"
    def lev(n, f):
        fr = f - int(f)
        return int(f) + (1 if int((n+1)*fr + 1e-9) != int(n*fr + 1e-9) else 0)
    def slot(n, f, last=False):
        uid[0] += 1; u = uid[0]
        fi, fh = lev(n, f), lev(n, FH)
        assert fi <= fh <= G
        m = n + G
        if m % 3 == 0:
            A(f"s_add_u32 {sOFF}, {sOFF}, {TSTR}")
            if m == 24: next_block()
        if fi < fh and (deep or fb):
            A(f"s_cbranch_vccnz L_dp{u}\ns_waitcnt vmcnt({fi-1})\nL_dp{u}:\ns_waitcnt vmcnt({fh-1})")
        else: A(f"s_waitcnt vmcnt({fi-1})")
        ld(RING + 4*(m % RB), m % 3)
        if fb and n == fbs - 2: A(f"ds_read_b32 v54, v55 offset:{L_CT+4}")
        if fb and n == fbs:
            A(f"s_waitcnt lgkmcnt(0)\nv_cmp_eq_u32 vcc, {sBLK}, v54")
            if stamps: A(f"s_and_b32 {sT0}, vcc_lo, 1\ns_add_u32 s81, s81, {sT0}")
            if last and deep: A(f"s_cmp_ge_u32 {sBLK}, {32-deep}\ns_cselect_b64 vcc, -1, vcc")
    def qk4(acc, data, j):
        for e in range(4):
            if j == 0 and e == 0: A(f"v_dot2_f32_bf16 v{acc}, v{data}, v{Q}, 0")
            else: A(f"v_dot2_f32_bf16 v{acc}, v{data+e}, v{Q+4*j+e}, v{acc}")

    gsel = f"s_lshr_b32 {sT3}, {sLIN}, 3\n" if gmap else f"s_mov_b32 {sT3}, {sHQ}\n"
    A(HEADER.rstrip())
    A(f"; @launch grid=(256,1,1) block=(320,1,1) lds={L_SIZE}")
    A('.amdgcn_target "amdgcn-amd-amdhsa--gfx950"\n.text')
    A(f".globl {KN}\n.p2align 8\n.type {KN},@function\n{KN}:")
    A("s_cmp_ge_u32 s2, 256\ns_cbranch_scc1 L_end")
    A("s_load_dwordx16 s[36:51], s[0:1], 0\ns_load_dwordx8 s[52:59], s[0:1], 64")
    stamp(0)
    A(f"v_lshrrev_b32 v1, 6, v0\nv_and_b32 {vLANE}, 63, v0\nv_readfirstlane_b32 {sW}, v1\ns_setprio 3")
    A(f"s_and_b32 {sT0}, s2, 7\ns_lshl_b32 {sT0}, {sT0}, 5\ns_lshr_b32 {sT1}, s2, 3\ns_add_u32 {sLIN}, {sT0}, {sT1}")
    A(f"s_lshr_b32 {sG}, {sLIN}, {LGS}\ns_and_b32 {sMEM}, {sLIN}, {GS-1}\ns_and_b32 {sS}, {sMEM}, 7")
    A(f"s_lshr_b32 {sT0}, {sMEM}, 3\ns_mul_i32 {sHQ}, {sT0}, {NG}\ns_add_u32 {sHQ}, {sHQ}, {sG}")
    A(f"s_sub_u32 {sW}, {sW}, 1\ns_cselect_b32 {sW}, 4, {sW}")
    A(f"v_lshrrev_b32 {vA}, 3, {vLANE}\nv_and_b32 {vB}, 7, {vLANE}")
    A(f"v_lshlrev_b32 v7, 4, {vB}")
    A(f"v_mov_b32 v4, 384\nv_mad_u32_u24 {vKV}, {vA}, v4, v7")
    A(f"v_mov_b32 v4, 12288\nv_mad_u32_u24 v4, {vA}, v4, v7")
    A(f"v_mov_b32 v5, 3072\nv_mad_u32_u24 v5, {vA}, v5, v7")
    A(f"v_mov_b32 v6, {OOB}\nv_cmp_gt_u32 vcc, 6, {vB}\nv_cndmask_b32 v5, v6, v5, vcc")
    A(f"v_lshlrev_b32 v6, 1, {vA}\nv_lshlrev_b32 v7, 4, {vLANE}")
    A(f"s_mul_i32 {sT0}, {sS}, 80\ns_lshl_b32 {sT1}, {sW}, 4\ns_add_u32 {sT0}, {sT0}, {sT1}")
    A(f"s_mul_i32 {sT1}, {sT0}, 12288\ns_mul_i32 {sT2}, {sHQ}, 384\ns_add_u32 {sT1}, {sT1}, {sT2}")
    A(f"s_mul_i32 {sT2}, {sT0}, 3072\n{gsel}s_mul_i32 {sT3}, {sT3}, 96\ns_add_u32 {sT2}, {sT2}, {sT3}")
    A(f"s_lshl_b32 {sT0}, {sT0}, 1")
    A(f"v_mov_b32 v8, 0\nv_mov_b32 v9, 0\nds_write_b64 v8, v[8:9] offset:{L_CT}")
    A("s_waitcnt lgkmcnt(0)")
    stamp(5, True)
    A(f"s_load_dword {sTAG}, s[{pWS}:{pWS+1}], {WS_EP}")
    srd(X_, pX, 1280); srd(TA_, pWQ, 640*12288); srd(TB_, pWG, 640*3072); srd(TC_, pWU, 640*3072); srd(WS_, pWS, WS_SIZE)
    XR, WD, WA = RING + 40, RING, ACC
    A(f"buffer_load_dwordx4 v[{XR}:{XR+3}], v7, {X_}, 0 offen")
    A(f"buffer_load_dwordx4 v[{XR+4}:{XR+7}], v7, {X_}, 0 offen offset:1024")
    A(f"buffer_load_ushort v{T+10}, v6, {X_}, {sT0} offen")
    A(f"buffer_load_ushort v{T+11}, v6, {X_}, {sT0} offen offset:16")
    A("s_barrier")
    for t in range(2):
        for j in range(3):
            A(f"buffer_load_dwordx4 v[{WD+20*t+4*j}:{WD+20*t+4*j+3}], v4, {TA_}, {sT1} offen offset:{128*j} {wp}")
        A(f"buffer_load_dwordx4 v[{WD+20*t+12}:{WD+20*t+15}], v5, {TB_}, {sT2} offen {gp}")
        A(f"buffer_load_dwordx4 v[{WD+20*t+16}:{WD+20*t+19}], v5, {TC_}, {sT2} offen {gp}")
        if t == 0: A(f"s_add_u32 {sT1}, {sT1}, {8*12288}\ns_add_u32 {sT2}, {sT2}, {8*3072}")
    stamp(6, True)
    srd(KV_, pK, TB)
    A(f"s_lshl_b32 {sT0}, {sMEM}, 2\ns_add_u32 {sT0}, {sT0}, {sW}\ns_mul_i32 {sT0}, {sT0}, 3072")
    A(f"s_mul_i32 {sOFF0}, {sG}, {HB}\ns_add_u32 {sOFF0}, {sOFF0}, {sT0}\ns_mov_b32 {sOFF}, {sOFF0}\ns_mov_b32 {sIB}, 0")
    A(f"s_mov_b32 s12, 0xcccccccc\ns_mov_b32 s13, 0xcccccccc\ns_mov_b32 s14, 0xaaaaaaaa\ns_mov_b32 s15, 0xaaaaaaaa")
    A(f"s_cmp_eq_u32 {sW}, 4\ns_cbranch_scc1 L_ln\ns_setprio 1\nL_ln:\ns_waitcnt vmcnt(10) lgkmcnt(0)")
    stamp(7, True)
    A(f"s_mul_i32 {sTAG}, {sTAG}, 1664525\ns_add_u32 {sTAG}, {sTAG}, 1013904223")
    XF = WA
    for i in range(8):
        A(f"v_lshlrev_b32 v{XF+2*i}, 16, v{XR+i}\nv_and_b32 v{XF+2*i+1}, 0xffff0000, v{XR+i}")
    l0, l1, l2, l3 = "v24", "v25", "v26", "v27"
    A(f"v_add_f32 {l0}, v{XF}, v{XF+1}\nv_add_f32 {l1}, v{XF+2}, v{XF+3}")
    for i in range(4, 16, 2): A(f"v_add_f32 {l0}, {l0}, v{XF+i}\nv_add_f32 {l1}, {l1}, v{XF+i+1}")
    A(f"v_add_f32 {l0}, {l0}, {l1}")
    allred16("v_add_f32", [l0]); allred_top("v_add_f32", [l0], [l1])
    A(f"v_mul_f32 {l0}, 0x3acccccd, {l0}")
    for i in range(16): A(f"v_sub_f32 v{XF+i}, v{XF+i}, {l0}")
    A(f"v_mul_f32 {l1}, v{XF}, v{XF}\nv_mul_f32 {l2}, v{XF+8}, v{XF+8}")
    for i in range(1, 8): A(f"v_fmac_f32 {l1}, v{XF+i}, v{XF+i}\nv_fmac_f32 {l2}, v{XF+8+i}, v{XF+8+i}")
    A(f"v_cmp_gt_u32 vcc, 16, {vLANE}\nv_cndmask_b32 {l2}, 0, {l2}, vcc\nv_add_f32 {l1}, {l1}, {l2}")
    allred16("v_add_f32", [l1]); allred_top("v_add_f32", [l1], [l2])
    A(f"v_mul_f32 {l1}, 0x3acccccd, {l1}")
    A(f"v_cvt_pk_bf16_f32 {l0}, 0, {l0}\nv_cvt_pk_bf16_f32 {l1}, 0, {l1}")
    A(f"v_add_f32 {l1}, 0x3727c5ac, {l1}\nv_cvt_pk_bf16_f32 {l1}, 0, {l1}\nv_sqrt_f32 {l1}, {l1}")
    A(f"v_cvt_pk_bf16_f32 {l1}, 0, {l1}\nv_rcp_f32 {l2}, {l1}")
    for t in range(2):
        xr = f"v{T+10+t}"
        A(f"v_lshlrev_b32 {xr}, 16, {xr}\nv_sub_f32 {xr}, {xr}, {l0}\nv_cvt_pk_bf16_f32 {xr}, 0, {xr}")
        A(f"v_mul_f32 {l3}, {xr}, {l2}\nv_fma_f32 {xr}, -{l3}, {l1}, {xr}\nv_fma_f32 {xr}, {xr}, {l2}, {l3}")
        A(f"v_cvt_pk_bf16_f32 v{T+6+2*t}, {xr}, 0\nv_cvt_pk_bf16_f32 v{T+7+2*t}, 0, {xr}")
    for i in range(40): A(f"v_mov_b32 v{WA+i}, 0")
    stamp(1)
    def pb_load(n, paced):
        if n and n % 3 == 0: A(f"s_add_u32 {sOFF}, {sOFF}, {TSTR}")
        if paced: A(f"s_waitcnt vmcnt({pace-1})")
        ld(PB + 4*n, n % 3)
    A(f"s_waitcnt vmcnt(5)\ns_cmp_eq_u32 {sW}, 4\ns_cbranch_scc1 L_nopre0")
    for n in range(pre0): pb_load(n, False)
    A("L_nopre0:")
    axpy(WA, WD, 20, f"v{T+6}", f"v{T+7}")
    A(f"s_cmp_eq_u32 {sW}, 4\ns_cbranch_scc1 L_nopre1\ns_waitcnt vmcnt({pre0})")
    for n in range(pre0, pre1): pb_load(n, False)
    A("s_branch L_pre2\nL_nopre1:\ns_waitcnt vmcnt(0)\nL_pre2:")
    axpy(WA, WD+20, 20, f"v{T+8}", f"v{T+9}")
    redscat(WA, 5)
    A(f"s_mul_i32 {sT0}, {sW}, 1280\nv_lshl_add_u32 v4, {vLANE}, 2, {sT0}")
    for k in range(5): A(f"ds_write_b32 v4, v{WA+8*k} offset:{L_QP+256*k}")
    A(f"v_mov_b32 v5, 0\nv_mov_b32 v6, 1\ns_mov_b64 exec, 1\nds_add_u32 v5, v6 offset:{L_CT}\ns_mov_b64 exec, -1")
    stamp(2)
    A(f"s_cmp_eq_u32 {sW}, 4\ns_cbranch_scc1 L_svc")
    for n in range(pre1, 24):
        pb_load(n, True)
        if n == 15: stamp(5, 2)
        if n == 23: stamp(6, 2)
        if n == trig: A(f"v_mov_b32 v6, 64\ns_mov_b64 exec, 1\nds_add_u32 v5, v6 offset:{L_CT}\ns_mov_b64 exec, -1")
    srd(TA_, pWO, 6144*1280); srd(TB_, pWD, 1536*1280)
    if NSEG == 4: A(f"s_mov_b32 {sT0}, {sW}")
    else: A(f"s_lshr_b32 {sT0}, {sMEM}, 5\ns_lshl_b32 {sT1}, {sW}, 1\ns_add_u32 {sT0}, {sT0}, {sT1}")
    A(f"s_mul_i32 {sT0}, {sT0}, {NG}\ns_add_u32 {sT0}, {sT0}, {sG}\ns_mul_i32 {sT0}, {sT0}, 192")
    A(f"s_lshl_b32 {sT1}, {sS}, 3\ns_add_u32 {sT0}, {sT0}, {sT1}\ns_bfe_u32 {sT1}, {sMEM}, {(2<<16)|3}\ns_lshl_b32 {sT1}, {sT1}, 1")
    A(f"s_add_u32 {sT0}, {sT0}, {sT1}\ns_mul_i32 {sT0}, {sT0}, 1280\ns_mul_i32 {sT1}, {sW}, 7680")
    for jj in range(3):
        A(f"s_add_u32 m0, {sT1}, {L_W+7680+2560*jj}")
        for i in range(3):
            if i == 2: A("s_mov_b32 exec_hi, 0")
            A(f"s_waitcnt vmcnt({pace-1})")
            A(f"buffer_load_dwordx4 v7, {TA_}, {sT0} offen offset:{1024*i} nt lds")
        A(f"s_mov_b32 exec_hi, -1\ns_add_u32 {sT0}, {sT0}, {64*1280}")
    A(f"{gsel}s_lshl_b32 {sT0}, {sT3}, 3\ns_add_u32 {sT0}, {sT0}, {sS}\ns_mul_i32 {sT0}, {sT0}, 7680\ns_lshl_b32 {sT1}, {sW}, 11")
    A(f"s_add_u32 {sT0}, {sT0}, {sT1}\ns_add_u32 m0, {sT1}, {L_W}")
    A(f"s_waitcnt vmcnt({pace-1})\nbuffer_load_dwordx4 v7, {TB_}, {sT0} offen nt lds")
    A(f"s_cmp_eq_u32 {sW}, 3\ns_cselect_b32 exec_hi, 0, -1")
    A(f"s_waitcnt vmcnt({pace-1})\nbuffer_load_dwordx4 v7, {TB_}, {sT0} offen offset:1024 nt lds")
    A("s_mov_b32 exec_hi, -1")
    stamp(7, 2)
    A(f"s_mov_b32 {sIB}, 1")
    for m in range(G):
        if m % 3 == 0: A(f"s_add_u32 {sOFF}, {sOFF}, {TSTR}")
        A(f"s_waitcnt vmcnt({pace-1})"); ld(RING + 4*m, m % 3)
    vQA, vSA = "v4", "v5"
    A(f"v_lshlrev_b32 {vQA}, 4, {vB}\nv_add_u32 {vQA}, {L_QB}, {vQA}")
    A(f"s_lshl_b32 {sT0}, {sW}, 12\ns_add_u32 {sT0}, {sT0}, {L_SC}\nv_lshl_add_u32 {vSA}, {vLANE}, 2, {sT0}")
    A("s_mov_b64 vcc, 0")
    A(f"v_mov_b32 v55, 0\ns_mov_b32 s81, 0\ns_mov_b32 {sBLK}, 1")
    stamp(3)
    A("s_barrier")
    for j in range(3): A(f"ds_read_b128 v[{Q+4*j}:{Q+4*j+3}], {vQA} offset:{128*j}")
    A("s_waitcnt lgkmcnt(0)")
    stamp(4)
    S1, S2 = ACC, ACC + 8
    for n in range(24):
        slot(n, FK)
        qk4(S2 + n//3, PB + 4*n, n % 3)
        qk4(S1 + n//3, RING + 4*(n % RB), n % 3)
    redscat_lo([S1, S2])
    A(f"ds_write_b32 {vSA}, v{S2}\nds_write_b32 {vSA}, v{S1} offset:256\nv_add_u32 {vSA}, 512, {vSA}")
    A(f"s_mov_b32 {sBLK}, 2\ns_branch L_kend")
    A("L_k:")
    for n in range(24):
        slot(n, FK)
        qk4(S1 + n//3, RING + 4*(n % RB), n % 3)
    redscat_lo([S1])
    A(f"ds_write_b32 {vSA}, v{S1}\nv_add_u32 {vSA}, 256, {vSA}\ns_add_u32 {sBLK}, {sBLK}, 1")
    A("L_kend:")
    if stamps: A(f"s_cmp_lg_u32 {sBLK}, 3\ns_cbranch_scc1 L_st1\ns_memrealtime s[42:43]\nL_st1:")
    A(f"s_waitcnt lgkmcnt(0)\ns_barrier\ns_and_b32 {sT0}, {sBLK}, {BPS-1}\ns_cbranch_scc1 L_k")
    A(f"v_add_u32 {vQA}, 384, {vQA}")
    A(f"s_cmp_eq_u32 {sBLK}, 16\ns_cbranch_scc1 L_v0")
    for j in range(3): A(f"ds_read_b128 v[{Q+4*j}:{Q+4*j+3}], {vQA} offset:{128*j}")
    A("s_waitcnt lgkmcnt(0)\ns_branch L_k")
    A("L_v0:")
    if stamps: A("s_memrealtime s[50:51]")
    vP, pl, ph, vOA = f"v{Q}", f"v{Q+1}", f"v{Q+2}", "v4"
    A(f"v_subrev_u32 {vSA}, 4096, {vSA}")
    A(f"s_lshl_b32 {sT0}, {sW}, 10\ns_add_u32 {sT0}, {sT0}, {L_OP}\nv_add_u32 {vOA}, {sT0}, v7")
    A("L_vseg:")
    for i in range(24): A(f"v_mov_b32 v{ACC+i}, 0")
    A("L_v:")
    A(f"ds_read_b32 {vP}, {vSA}\nv_add_u32 {vSA}, 256, {vSA}")
    if deep and not fb:
        A(f"s_cmp_ge_u32 {sBLK}, {32-deep}\ns_cselect_b64 vcc, -1, 0")
    for n in range(24):
        slot(n, F, True)
        if n == 0: A("s_waitcnt lgkmcnt(0)")
        if n % 3 == 0:
            t = n//3
            A(f"v_mov_b32_dpp {pl}, {vP} row_newbcast:{t} row_mask:0xf bank_mask:0x3")
            A(f"v_mov_b32_dpp {pl}, {vP} row_newbcast:{8+t} row_mask:0xf bank_mask:0xc")
            A(f"v_lshlrev_b32 {ph}, 16, {pl}")
        axpy(ACC + 8*(n % 3), RING + 4*(n % RB), 4, pl, ph)
    A(f"s_add_u32 {sBLK}, {sBLK}, 1")
    if stamps: A(f"s_cmp_lg_u32 {sBLK}, 29\ns_cbranch_scc1 L_st2\ns_memrealtime s[48:49]\nL_st2:\n; SSBYTES={26*8*3072}")
    A(f"s_and_b32 {sT0}, {sBLK}, {BPS-1}\ns_cbranch_scc0 L_vfl\ns_barrier\ns_branch L_v\nL_vfl:")
    stamp(5)
    redscat(ACC, 3)
    A(f"v_mov_b32 v{ACC+1}, v{ACC+8}\nv_mov_b32 v{ACC+2}, v{ACC+16}")
    A(f"ds_write_b96 {vOA}, v[{ACC}:{ACC+2}]\nv_xor_b32 {vOA}, 4096, {vOA}")
    A("s_waitcnt lgkmcnt(0)\ns_barrier")
    A(f"s_cmp_lt_u32 {sBLK}, 32\ns_cbranch_scc1 L_vseg")
    if stamps: A("s_mov_b32 s47, s81")
    stamp(6); stamp(7)
    A("s_branch L_done")
    A("L_svc:")
    G0 = RING
    A(f"v_lshlrev_b32 v4, 2, {vLANE}")
    A(f"L_wq:\nds_read_b32 v6, v5 offset:{L_CT}\ns_waitcnt lgkmcnt(0)\nv_and_b32 v6, 7, v6\nv_cmp_gt_u32 vcc, 5, v6\ns_cbranch_vccnz L_wq")
    for w in range(5):
        for k in range(5): A(f"ds_read_b32 v{G0+5*w+k}, v4 offset:{L_QP+1280*w+256*k}")
        if w == 2: A("s_waitcnt lgkmcnt(0)")
    A("s_waitcnt lgkmcnt(0)")
    for w in range(1, 5):
        for k in range(5): A(f"v_add_f32 v{G0+k}, v{G0+k}, v{G0+5*w+k}")
    A(f"v_lshl_add_u32 v5, {vB}, 3, {vA}\nv_lshlrev_b32 v6, 4, v5\nv_lshlrev_b32 v5, 1, v5")
    A(f"v_mov_b32 v{G0+5}, v{G0+4}\nv_mov_b32 v{G0+4}, v{G0+3}\nv_mov_b32 v{G0+3}, {sTAG}\nv_mov_b32 v{G0+6}, {sTAG}\nv_mov_b32 v{G0+7}, {sTAG}")
    A(f"s_lshl_b32 s72, {sHQ}, 3\ns_add_u32 s72, s72, {sS}\ns_lshl_b32 s72, s72, 11\ns_add_u32 s72, s72, {WS_QS}")
    if qs != "none": A(f"buffer_store_dwordx4 v[{G0}:{G0+3}], v7, {WS_}, s72 offen {qs}")
    A(f"s_mov_b32 exec_lo, 0x3f3f3f3f\ns_mov_b32 exec_hi, 0x3f3f3f3f")
    if qs != "none": A(f"buffer_store_dwordx4 v[{G0+4}:{G0+7}], v6, {WS_}, s72 offen offset:1024 {qs}")
    A("s_mov_b64 exec, -1")
    stamp(3)
    def poll(lab, loads, tags, sleep=0, first=None, mask=None, tag=sTAG, cnt=None, loc=False):
        A(f"s_mov_b32 {sT2}, {spin if cnt is None else cnt}")
        if first is not None: loads(first); A(f"s_branch {lab}_chk")
        elif sleep or mask: A(f"s_branch {lab}_go")
        A(f"{lab}:")
        if mask == "lane": A("s_mov_b64 exec, vcc")
        if mask == "low3":
            A(f"s_or_b32 {sT0}, vcc_lo, vcc_hi\ns_lshr_b32 {sT1}, {sT0}, 16\ns_or_b32 {sT0}, {sT0}, {sT1}\ns_lshr_b32 {sT1}, {sT0}, 8\ns_or_b32 {sT0}, {sT0}, {sT1}")
            A(f"s_and_b32 {sT0}, {sT0}, 0xff\ns_mul_i32 exec_lo, {sT0}, 0x01010101\ns_mov_b32 exec_hi, exec_lo")
        if sleep: A(f"s_sleep {sleep}")
        A(f"{lab}_go:")
        if loc and lp != "sc1":
            A(f"s_cmp_eq_u32 s72, 0\ns_cbranch_scc1 {lab}_rm"); loads(lp); A(f"s_branch {lab}_chk\n{lab}_rm:")
        loads("sc1")
        A(f"{lab}_chk:\ns_waitcnt vmcnt(0)")
        if len(tags) == 1: A(f"v_cmp_ne_u32 vcc, {tag}, {tags[0]}")
        else:
            A(f"v_xor_b32 {t0}, {tag}, {tags[0]}")
            for t in tags[1:]: A(f"v_bitop3_b32 {t0}, {t}, {tag}, {t0} bitop3:0xbe")
            A(f"v_cmp_ne_u32 vcc, 0, {t0}")
        A(f"s_cbranch_vccz {lab}_done\ns_sub_u32 {sT2}, {sT2}, 1\ns_cbranch_scc0 {lab}\n{lab}_done:")
        if mask: A("s_mov_b64 exec, -1")
    G1 = G0 + 8
    vL4, vQW, vSC, vML, vOP, vLS, vM, vPW, vZ, vF0, vF1 = [f"v{32+i}" for i in range(11)]
    LP = 64//NSEG; LLP = LP.bit_length()-1; NLS = GS//LP; NR = 4*BPS; NL = GS//8
    P0, P1, YY = PB, PB + 32, PB + 64
    vWA, vH1S, vH1G, vYS, vYG, vH3, vOUT, XV = "v16", "v17", "v18", "v19", "v20", "v21", 22, 26
    sLOC, sSEG, sTG2, sH1S, sH1G, sYS, sYG, sH3S, sH3G, sSP, sFL = [f"s{r}" for r in (72, 73, 74, 75, 76, 77, 78, 79, 80, 81, 82)]
    sUU = ["s60", "s61", "s62"]
    def yreg(c): return f"v{YY + c}"
    YT = YY + 12; vYW, vYR = "v30", "v31"
    def store2(lab, stores):
        A(f"s_cmp_eq_u32 {sLOC}, 0\ns_cbranch_scc1 {lab}_r"); stores(sp); A(f"s_branch {lab}_d\n{lab}_r:"); stores("sc1"); A(f"{lab}_d:")
    sF = [f"s{r}" for r in (20, 21, 22, 24, 25, 26, 28, 29)]
    sPR, sHD = "s30", "s47"
    A(f"v_mov_b32 {vL4}, v4\nv_mov_b32 {vQW}, v5\nv_add_u32 {vSC}, {L_SC}, v4\nv_mov_b32 {vML}, {L_ML}\nv_add_u32 {vOP}, {L_OP}, v7\nv_mov_b32 {vZ}, 0")
    A(f"s_lshr_b32 {sT0}, s2, 3\ns_lshl_b32 {sT0}, {sT0}, 2\nv_mov_b32 {vPW}, {sT0}")
    A(f"s_and_b32 {sPR}, s2, 7\ns_mul_i32 {sPR}, {sPR}, 4224\ns_add_u32 {sPR}, {sPR}, {WS_PR}")
    A(f"s_getreg_b32 s29, hwreg(HW_REG_XCC_ID)\ns_bitcmp1_b32 s29, 0\ns_cselect_b32 s29, {fb if fbo is None else fbo}, {fb}")
    A(f"s_mov_b32 {sSCALE}, 0x3d93cd3a\ns_mov_b32 {sLOG2E}, 0x3fb8aa3b\ns_mov_b32 {sBLK}, 0\ns_mov_b32 {sHD}, {sG}")
    A(f"L_wt:\ns_sleep 2\nds_read_b32 v10, {vZ} offset:{L_CT}\ns_waitcnt lgkmcnt(0)\nv_cmp_gt_u32 vcc, 256, v10\ns_cbranch_vccnz L_wt")
    A("s_branch L_gq0")
    A("L_blk:")
    A(f"s_cmp_le_u32 {sBLK}, 16\ns_cbranch_scc1 L_nofl\ns_and_b32 {sT0}, {sBLK}, {BPS-1}\ns_cbranch_scc1 L_nofl")
    stamp(5)
    for w in range(4): A(f"ds_read_b96 v[{G0+4*w}:{G0+4*w+2}], {vOP} offset:{1024*w}")
    A(f"v_xor_b32 {vOP}, 4096, {vOP}\nv_mov_b32 v{G0+19}, {sTG2}\ns_waitcnt lgkmcnt(0)")
    for k in range(3): A(f"v_add_f32 v{G0+k}, v{G0+k}, v{G0+4+k}\nv_add_f32 v{G0+8+k}, v{G0+8+k}, v{G0+12+k}")
    for k in range(3): A(f"v_add_f32 v{G0+k}, v{G0+k}, v{G0+8+k}")
    for k in range(3): A(f"v_mul_f32 v{G0+16+k}, {sF[0]}, v{G0+k}")
    HOLD = G0 + 20
    if late:
        A(f"s_cmp_lg_u32 {sBLK}, 32\ns_cbranch_scc1 L_keep")
        store2("L_s1", lambda p: A(f"buffer_store_dwordx4 v[{G0+16}:{G0+19}], {vH1S}, {WS_}, {sH1S} offen offset:3072 {p}"))
        A("s_branch L_g1\nL_keep:")
        for i in reversed(range(12)): A(f"v_mov_b32 v{HOLD+i}, v{HOLD+i-4}")
    else:
        store2("L_s1", lambda p: A(f"buffer_store_dwordx4 v[{G0+16}:{G0+19}], {vH1S}, {WS_}, {sH1S} offen {p}"))
        A(f"s_cmp_eq_u32 {sBLK}, 32\ns_cbranch_scc1 L_g1\ns_add_u32 {sH1S}, {sH1S}, 1024")
    for i in range(NSEG-1): A(f"s_mov_b32 {sF[i]}, {sF[i+1]}")
    A("L_nofl:\ns_setprio 0")
    if fb:
        A(f"s_add_u32 {sT0}, {sTAG}, {sBLK}\nv_mov_b32 {vF0}, {sT0}\ns_mov_b64 exec, 1")
        A(f"buffer_store_dword {vF0}, {vPW}, {WS_}, {sPR} offen\ns_mov_b32 exec_lo, -1")
        A(f"buffer_load_dword {vF1}, {vL4}, {WS_}, {sPR} offen {fp}\ns_waitcnt vmcnt(0)")
        A(f"v_sub_u32 {vF1}, {vF1}, {vF0}\nv_cmp_gt_u32 vcc, 32, {vF1}\ns_bcnt1_i32_b64 {sT0}, vcc\ns_mov_b64 exec, -1")
        A(f"s_cmp_gt_u32 {sT0}, s29\ns_cselect_b32 {sT0}, {sBLK}, 0\nv_mov_b32 {vF1}, {sT0}\nds_write_b32 {vZ}, {vF1} offset:{L_CT+4}")
    A(f"s_cmp_gt_u32 {sBLK}, 16\ns_cbranch_scc1 L_vpart")
    A(f"s_and_b32 {sT0}, {sBLK}, {BPS-1}\ns_cbranch_scc1 L_nosm")
    for w in range(4):
        for k in range(BPS): A(f"ds_read_b32 v{G0+BPS*w+k}, {vSC} offset:{4096*w+256*k}")
        if w == 1: A("s_waitcnt lgkmcnt(0)")
    A("s_waitcnt lgkmcnt(0)")
    for i in range(NR): A(f"v_cvt_pk_bf16_f32 v{G0+i}, 0, v{G0+i}")
    for i in range(NR): A(f"v_mul_f32 v{G0+i}, {sSCALE}, v{G0+i}")
    for i in range(NR): A(f"v_cvt_pk_bf16_f32 v{G0+i}, 0, v{G0+i}")
    for i in range(NR): A(f"v_mul_f32 v{G0+i}, {sLOG2E}, v{G0+i}")
    A(f"v_max_f32 {t0}, v{G0}, v{G0+1}")
    for i in range(2, NR, 2): A(f"v_max3_f32 {t0}, {t0}, v{G0+i}, v{G0+i+1}")
    allred16("v_max_f32", [t0]); allred_top("v_max_f32", [t0], [t1])
    for i in range(NR): A(f"v_sub_f32 v{G0+i}, v{G0+i}, {t0}")
    for i in range(NR): A(f"v_exp_f32 v{G0+i}, v{G0+i}")
    A(f"v_add_f32 {t1}, v{G0}, v{G0+1}")
    for i in range(2, NR): A(f"v_add_f32 {t1}, {t1}, v{G0+i}")
    for i in range(NR): A(f"v_cvt_pk_bf16_f32 v{G0+i}, v{G0+i}, 0")
    for w in range(4):
        for k in range(BPS): A(f"ds_write_b32 {vSC}, v{G0+BPS*w+k} offset:{4096*w+256*k}")
        if w == 1: A("s_waitcnt lgkmcnt(0)")
    allred16("v_add_f32", [t1]); allred_top("v_add_f32", [t1], [t2])
    A(f"v_log_f32 {t3}, {t1}\nv_mov_b32 {t2}, {t0}\nv_add_f32 {t3}, {t3}, {t0}")
    A(f"ds_write_b64 {vML}, v[{T+2}:{T+3}]")
    A(f"v_add_u32 {vSC}, {256*BPS}, {vSC}\nv_add_u32 {vML}, 8, {vML}")
    A("L_nosm:")
    A(f"s_cmp_ge_u32 {sBLK}, {NSEG}\ns_cbranch_scc1 L_noq")
    A("L_gq0:")
    A(f"s_lshl_b32 {sT1}, {sHD}, 14\ns_add_u32 {sT1}, {sT1}, {WS_QS}")
    def gq(p):
        for s in range(8):
            if s % 2 == 0: A(f"s_add_u32 {sT0}, {sT1}, {2048*s}")
            A(f"buffer_load_dwordx4 v[{G1+4*s}:{G1+4*s+3}], v7, {WS_}, {sT0} offen offset:{2048*(s%2)} {p}")
    poll("L_gq", gq, [f"v{G1+4*s+3}" for s in range(8)], first=qp, sleep=psleep, cnt=(0 if qs == "none" else None))
    for s in range(1, 8):
        for k in range(3): A(f"v_add_f32 v{G1+k}, v{G1+k}, v{G1+4*s+k}")
    for k in range(3): A(f"v_cvt_pk_bf16_f32 v{G1+k}, v{G1+k}, 0")
    for k in range(3): A(f"ds_write_b16 {vQW}, v{G1+k} offset:{L_QB+128*k}")
    A(f"v_add_u32 {vQW}, 384, {vQW}\ns_add_u32 {sHD}, {sHD}, {NG}")
    if stamps or diag is not None:
        A(f"s_cmp_lg_u32 {sBLK}, 0\ns_cbranch_scc1 L_next"); stamp(4)
    A("s_branch L_next")
    A("L_noq:")
    A(f"s_cmp_lg_u32 {sBLK}, {NSEG+1}\ns_cbranch_scc1 L_nogu")
    A(f"v_lshlrev_b32 v8, 11, {vA}\nv_lshl_add_u32 v8, {vB}, 4, v8\nv_mov_b32 v{G1}, 0\nv_mov_b32 v{G1+1}, 0")
    A(f"s_lshl_b32 {sT1}, {sHQ}, 14\ns_mul_i32 {sT0}, {sS}, 96\ns_add_u32 {sT1}, {sT1}, {sT0}\ns_add_u32 {sT1}, {sT1}, {WS_QS}")
    A(f"s_mov_b32 exec_lo, 0x3f3f3f3f\ns_mov_b32 exec_hi, 0x3f3f3f3f")
    poll("L_gu", lambda p: A(f"buffer_load_dwordx4 v[{G1}:{G1+3}], v8, {WS_}, {sT1} offen offset:1024 {p}"), [f"v{G1+2}", f"v{G1+3}"], sleep=psleep, cnt=(0 if qs == "none" else None))
    A("s_mov_b64 exec, -1")
    for k in range(2): A(f"v_add_f32_dpp v{G1+k}, v{G1+k}, v{G1+k} row_ror:8 {DPP}")
    allred_top("v_add_f32", [f"v{G1}", f"v{G1+1}"], [t0, t1])
    A(f"v_cvt_pk_bf16_f32 v{G1}, 0, v{G1}\nv_cvt_pk_bf16_f32 v{G1+1}, 0, v{G1+1}")
    A(f"v_cmp_lt_f32 vcc, 0, v{G1}\nv_cndmask_b32 {t0}, 0, 1.0, vcc\nv_mul_f32 {t3}, v{G1}, {t0}\nv_mul_f32 {t3}, {t3}, v{G1+1}\nv_cvt_pk_bf16_f32 {t3}, {t3}, 0")
    A(f"v_mov_b32_dpp {t0}, {t3} quad_perm:[1,1,3,3] {DPP}\nv_lshl_or_b32 {t3}, {t0}, 16, {t3}")
    for i in range(3): A(f"v_readlane_b32 {sUU[i]}, {t3}, {2*i}")
    A(f"v_mul_u32_u24 {vWA}, 20, {vLANE}\nv_add_u32 {vWA}, {L_W}, {vWA}")
    A(f"v_lshrrev_b32 {t0}, 4, {vLANE}\nv_lshl_add_u32 {t0}, {t0}, 3, {vB}\nv_and_b32 {t1}, 8, {vLANE}\nv_lshlrev_b32 {t1}, 1, {t1}")
    A(f"v_lshl_add_u32 {vH1S}, {t0}, 5, {t1}\nv_lshl_add_u32 {vH1G}, {t0}, 12, {t1}")
    A(f"s_lshl_b32 {sH1S}, {sLIN}, 12\ns_add_u32 {sH1S}, {sH1S}, {WS_H1}")
    A(f"s_lshl_b32 {sH1G}, {sG}, 17\ns_lshl_b32 {sT0}, {sMEM}, 5\ns_add_u32 {sH1G}, {sH1G}, {sT0}\ns_add_u32 {sH1G}, {sH1G}, {WS_H1}")
    A(f"v_mul_u32_u24 {vYW}, 40, {vLANE}\nv_mul_u32_u24 {vYR}, 80, {vA}\nv_mad_u32_u24 {vYR}, {vB}, 12, {vYR}\nv_add_u32 {vYR}, {L_QP}, {vYR}")
    A(f"v_lshlrev_b32 {t0}, 4, {vB}\nv_lshl_add_u32 {vYG}, {vA}, 12, {t0}\nv_lshl_add_u32 {vH3}, {vA}, 7, {t0}")
    A(f"s_lshl_b32 {sYS}, {sLIN}, 12\ns_add_u32 {sYS}, {sYS}, {WS_H2}")
    A(f"s_lshl_b32 {sYG}, {sG}, 17\ns_lshl_b32 {sT0}, {sMEM}, 7\ns_add_u32 {sYG}, {sYG}, {sT0}\ns_add_u32 {sYG}, {sYG}, {WS_H2}")
    A(f"s_lshl_b32 {sH3G}, {sMEM}, 10\ns_add_u32 {sH3G}, {sH3G}, {WS_H3}\ns_lshl_b32 {sT0}, {sG}, 7\ns_add_u32 {sH3S}, {sH3G}, {sT0}")
    A(f"s_add_u32 {sTG2}, {sTAG}, 64\ns_mov_b32 {sSP}, {spin}\ns_mov_b32 {sFL}, 1\ns_mov_b32 s83, 0")
    A(f"v_mul_u32_u24 {t0}, 3, {vB}\ns_mul_i32 {sT0}, {sMEM}, 20\nv_add_lshl_u32 {t0}, {t0}, {sT0}, 1\nv_mov_b32 {t2}, {OOB}")
    A(f"v_cmp_gt_u32 vcc, 7, {vB}\nv_cndmask_b32 v{vOUT}, {t2}, {t0}, vcc\nv_cmp_gt_u32 vcc, 6, {vB}\nv_cndmask_b32 v{vOUT+1}, {t2}, {t0}, vcc")
    A(f"v_mov_b32 {t0}, {WS_EP}\nv_or_b32 {t1}, s2, {vLANE}\nv_cmp_eq_u32 vcc, 0, {t1}\nv_cndmask_b32 v{vOUT+2}, {t2}, {t0}, vcc\nv_mov_b32 v{vOUT+3}, {sTAG}")
    A(f"buffer_load_ushort v{XV}, v{vOUT}, {X_}, 0 offen\nbuffer_load_ushort v{XV+1}, v{vOUT}, {X_}, 0 offen offset:2\nbuffer_load_ushort v{XV+2}, v{vOUT+1}, {X_}, 0 offen offset:4")
    for i in range(16): A(f"v_mov_b32 v{YY+i}, 0")
    A("s_waitcnt vmcnt(0)")
    for e in range(3): A(f"v_lshlrev_b32 v{XV+e}, 16, v{XV+e}")
    srd(X_, pOUT, 1280)
    A("s_branch L_prep")
    A("L_nogu:")
    A(f"s_cmp_lg_u32 {sBLK}, 16\ns_cbranch_scc1 L_next")
    A(f"v_lshrrev_b32 v10, {LLP}, {vLANE}\nv_lshlrev_b32 v10, 3, v10\ns_waitcnt lgkmcnt(0)\nds_read_b64 v[{T+2}:{T+3}], v10 offset:{L_ML}")
    A(f"s_lshl_b32 {sT1}, {sLIN}, 7\ns_add_u32 {sT1}, {sT1}, {WS_LS}\nv_and_b32 v11, {LP-1}, {vLANE}\nv_cmp_eq_u32 vcc, 0, v11")
    A(f"s_waitcnt lgkmcnt(0)\nv_mov_b32 {vM}, {t2}\nv_mov_b32 {t0}, {t3}\nv_mov_b32 {t1}, {sTAG}\nv_mov_b32 {t3}, {sTAG}")
    A(f"s_getreg_b32 {sLOC}, hwreg(HW_REG_XCC_ID)\nv_mov_b32 {t2}, {sLOC}\nv_lshlrev_b32 v10, 1, v10\ns_mov_b64 exec, vcc")
    A(f"buffer_store_dwordx4 v[{T}:{T+3}], v10, {WS_}, {sT1} offen sc1\ns_mov_b64 exec, -1")
    A(f"v_lshl_add_u32 {vLS}, v11, 7, v10\ns_branch L_next")
    A("L_vpart:")
    A(f"s_cmp_lg_u32 {sBLK}, 19\ns_cbranch_scc1 L_nols")
    A(f"s_mul_i32 {sT1}, {sG}, {GS*128}\ns_add_u32 {sT1}, {sT1}, {WS_LS}")
    def gl(p):
        for r in range(2): A(f"buffer_load_dwordx4 v[{G0+4*r}:{G0+4*r+3}], {vLS}, {WS_}, {sT1} offen offset:{LP*128*r} {p}")
    poll("L_ls", gl, [f"v{G0+1}", f"v{G0+3}", f"v{G0+5}", f"v{G0+7}"], sleep=32, first=qp)
    A(f"v_xor_b32 {t0}, {sLOC}, v{G0+2}\nv_bitop3_b32 {t0}, v{G0+6}, {sLOC}, {t0} bitop3:0xbe\nv_cmp_ne_u32 vcc, 0, {t0}")
    A(f"s_cmp_eq_u64 vcc, 0\ns_cselect_b32 {sLOC}, {local}, 0")
    A(f"v_max_f32 {t0}, v{G0}, v{G0+4}")
    allred16("v_max_f32", [t0])
    for r in range(2): A(f"v_sub_f32 v{G0+4*r}, v{G0+4*r}, {t0}")
    for r in range(2): A(f"v_exp_f32 v{G0+4*r}, v{G0+4*r}")
    A(f"v_add_f32 v{G0}, v{G0}, v{G0+4}")
    allred16("v_add_f32", [f"v{G0}"])
    A(f"v_sub_f32 {t0}, {vM}, {t0}\nv_exp_f32 {t0}, {t0}\nv_rcp_f32 {t1}, v{G0}\nv_mul_f32 {t0}, {t0}, {t1}")
    for k in range(NSEG): A(f"v_readlane_b32 {sF[k]}, {t0}, {LP*k}")
    A("L_nols:")
    if dry:
        A(f"s_cmp_lg_u32 {sBLK}, {dry}\ns_cbranch_scc1 L_nodry\ns_mov_b32 {sSP}, 0\ns_add_u32 {sSEG}, {sTAG}, 96\ns_mov_b32 s34, 0\ns_mov_b32 s18, {WS_SIZE if drymem else 0}\ns_branch L_tail\nL_nodry:")
    if late:
        A(f"s_cmp_lg_u32 {sBLK}, {late[0]}\ns_cbranch_scc1 L_nopub")
        def hs(p):
            for i in range(3): A(f"buffer_store_dwordx4 v[{HOLD+4*i}:{HOLD+4*i+3}], {vH1S}, {WS_}, {sH1S} offen offset:{1024*(2-i)} {p}")
        store2("L_s0", hs)
        if late[0] == late[1]: A(f"s_sleep {late[2]}")
        A("L_nopub:")
        A(f"s_cmp_lg_u32 {sBLK}, {late[1]}\ns_cbranch_scc1 L_last\ns_mov_b32 s83, 3")
        def g0(p):
            for i in range(3): A(f"buffer_load_dwordx4 v[{G0+4*i}:{G0+4*i+3}], {vH1G}, {WS_}, {sH1G} offen offset:{1024*i} {p}")
        poll("L_p0", g0, [f"v{G0+4*i+3}" for i in range(3)], tag=sTG2, sleep=8, loc=True)
        A("s_branch L_r1")
    else:
        A(f"s_cmp_lt_u32 {sBLK}, 22\ns_cbranch_scc1 L_next\ns_and_b32 {sT0}, {sBLK}, 3\ns_cmp_lg_u32 {sT0}, 2\ns_cbranch_scc1 L_last")
    A("L_g1:")
    poll("L_p1", lambda p: A(f"buffer_load_dwordx4 v[{G0}:{G0+3}], {vH1G}, {WS_}, {sH1G} offen {p}"), [f"v{G0+3}"], tag=sTG2, loc=True)
    stamp(6)
    A("L_r1:")
    A(f"v_mov_b32 v{G0+3}, 0\nv_permlane32_swap_b32 v{G0}, v{G0+1}\nv_permlane32_swap_b32 v{G0+2}, v{G0+3}")
    A(f"v_add_f32 v{G0}, v{G0}, v{G0+1}\nv_add_f32 v{G0+2}, v{G0+2}, v{G0+3}\nv_permlane16_swap_b32 v{G0}, v{G0+2}\nv_add_f32 v{G0}, v{G0}, v{G0+2}")
    for pat in ("quad_perm:[1,0,3,2]", "quad_perm:[2,3,0,1]", "row_half_mirror"): A(f"v_add_f32_dpp v{G0}, v{G0}, v{G0} {pat} {DPP}")
    A(f"v_mov_b32_dpp v{G0+1}, v{G0} row_ror:8 {DPP}\nv_cvt_pk_bf16_f32 v{G0}, v{G0}, v{G0+1}")
    for jj, ln in ((0, 0), (1, 32), (2, 16)): A(f"v_readlane_b32 {sUU[jj]}, v{G0}, {ln}")
    A(f"s_add_u32 {sH1G}, {sH1G}, 1024\ns_mov_b32 {sSEG}, {sTAG}")
    A("L_dot:")
    for p in range(3):
        for c in range(10): A(f"v_dot2c_f32_bf16 {yreg(c)}, {sUU[p]}, v{P1+10*p+c}")
    A(f"s_cmp_eq_u32 {sBLK}, 32\ns_cbranch_scc1 L_tail")
    A("L_prep:")
    for r in range(6):
        for d in range(5): A(f"ds_read_b32 v{P0+5*r+d}, {vWA} offset:{1280*r+4*d}")
        if r % 2: A("s_waitcnt lgkmcnt(0)")
    A(f"v_add_u32 {vWA}, 7680, {vWA}\ns_mov_b32 {sT1}, 0x05040100\ns_mov_b32 {sT3}, 0x07060302")
    for p in range(3):
        for d in range(5):
            A(f"v_perm_b32 v{P1+10*p+2*d}, v{P0+10*p+5+d}, v{P0+10*p+d}, {sT1}\nv_perm_b32 v{P1+10*p+2*d+1}, v{P0+10*p+5+d}, v{P0+10*p+d}, {sT3}")
    A(f"s_cmp_eq_u32 {sFL}, 0\ns_mov_b32 {sFL}, 0\ns_cbranch_scc0 L_dot")
    if late:
        for i in range(8): A(f"v_mov_b32 v{G0+i}, v{G0+4+i}")
        A("s_sub_u32 s83, s83, 1\ns_cmp_gt_i32 s83, 0\ns_cbranch_scc1 L_r1")
    A("L_last:")
    A(f"s_cmp_lg_u32 {sBLK}, 31\ns_cbranch_scc1 L_next\ns_setprio 3")
    if pf is not None:
        for r in range(4):
            A(f"s_add_u32 {sT0}, {sYG}, {8*4096*r}\nbuffer_load_dwordx4 v[{G0+4*r}:{G0+4*r+3}], {vYG}, {WS_}, {sT0} offen {pf}")
        A(f"buffer_load_dwordx4 v[{G0+16}:{G0+19}], v7, {WS_}, {sH1S} offen offset:{3072 if late else 0} {pf}\ns_waitcnt vmcnt(0)")
    A("L_next:")
    A(f"s_add_u32 {sBLK}, {sBLK}, 1\ns_waitcnt lgkmcnt(0)\ns_barrier\ns_branch L_blk")
    A("L_tail:")
    for d in range(5): A(f"ds_write_b64 {vYW}, v[{YY+2*d}:{YY+2*d+1}] offset:{L_QP+8*d}")
    for g in range(4):
        A(f"ds_read2_b32 v[{YT+4*g}:{YT+4*g+1}], {vYR} offset0:0 offset1:1\nds_read_b32 v{YT+4*g+2}, {vYR} offset:8")
        A(f"v_add_u32 {vYR}, {640 if g < 3 else -1920}, {vYR}\nv_mov_b32 v{YT+4*g+3}, {sSEG}")
    def ys(p):
        for g in range(4):
            A(f"s_waitcnt lgkmcnt({0 if (stamps or diag is not None) else 6-2*g})")
            A(f"buffer_store_dwordx4 v[{YT+4*g}:{YT+4*g+3}], v7, {WS_}, {sYS} offen offset:{1024*g} {p}")
    store2("L_s2", ys)
    if w2: A("s_waitcnt vmcnt(0)")
    stamp(7)
    def g2(p):
        for r in range(4):
            A(f"s_add_u32 {sT0}, {sYG}, {8*4096*r}\nbuffer_load_dwordx4 v[{G0+4*r}:{G0+4*r+3}], {vYG}, {WS_}, {sT0} offen {p}")
    poll("L_p2", g2, [f"v{G0+4*r+3}" for r in range(4)], tag=sSEG, cnt=sSP, loc=True)
    if stamps: A("s_memrealtime s[42:43]")
    for k in range(3): A(f"v_add_f32 v{G0+k}, v{G0+k}, v{G0+4+k}\nv_add_f32 v{G0+8+k}, v{G0+8+k}, v{G0+12+k}")
    for k in range(3): A(f"v_add_f32 v{G0+k}, v{G0+k}, v{G0+8+k}")
    def red_hi():
        for k in range(3): A(f"v_add_f32_dpp v{G0+k}, v{G0+k}, v{G0+k} row_ror:8 {DPP}")
        allred_top("v_add_f32", [f"v{G0+k}" for k in range(3)], [f"v{G0+4+k}" for k in range(3)])
    red_hi()
    A(f"s_cmp_eq_u32 {sSP}, 0\ns_cselect_b32 s18, 0, s18\ns_mov_b64 exec, 0xff")
    A(f"buffer_store_dwordx4 v[{G0}:{G0+3}], {vH3}, {WS_}, {sH3S} offen sc1\ns_mov_b64 exec, -1")
    A(f"s_cmp_lg_u32 {sS}, {sG}\ns_cbranch_scc1 L_nored")
    poll("L_p3", lambda p: A(f"buffer_load_dwordx4 v[{G0+8}:{G0+11}], {vH3}, {WS_}, {sH3G} offen {p}"), [f"v{G0+11}"], tag=sSEG, cnt=sSP)
    if stamps: A("s_memrealtime s[48:49]")
    G0 += 8
    red_hi()
    for e in range(3): A(f"v_add_f32 v{G0+e}, v{G0+e}, v{XV+e}")
    for e in range(3): A(f"v_cvt_pk_bf16_f32 v{G0+e}, v{G0+e}, 0")
    A("s_mov_b64 exec, 0xff")
    A(f"buffer_store_short v{G0}, v{vOUT}, {X_}, 0 offen\nbuffer_store_short v{G0+1}, v{vOUT}, {X_}, 0 offen offset:2\nbuffer_store_short v{G0+2}, v{vOUT+1}, {X_}, 0 offen offset:4")
    A(f"buffer_store_dword v{vOUT+3}, v{vOUT+2}, {WS_}, 0 offen")
    A("s_mov_b64 exec, -1\nL_nored:")
    if dry:
        A(f"s_cmp_lg_u32 {sSP}, 0\ns_cbranch_scc1 L_done\ns_mov_b32 {sSP}, {spin}\ns_mov_b32 s18, {WS_SIZE}\ns_mov_b32 s34, 1280\ns_branch L_next")
    A("L_done:")
    if diag is not None:
        wave, st, mult = diag
        stamp(8)
        A(f"s_cmp_lg_u32 s2, 0\ns_cbranch_scc1 L_end\ns_cmp_lg_u32 {sW}, {wave}\ns_cbranch_scc1 L_end")
        A(f"s_waitcnt lgkmcnt(0)\ns_sub_u32 {sT0}, s{sST+2*st}, s{sST}\ns_mul_i32 {sT0}, {sT0}, {mult}\ns_add_u32 {sT0}, {sT0}, 30000")
        A(f"s_min_u32 {sT0}, {sT0}, 200000")
        A(f"L_dg:\ns_memrealtime s[72:73]\ns_waitcnt lgkmcnt(0)\ns_sub_u32 {sT1}, s72, s{sST}\ns_cmp_lt_u32 {sT1}, {sT0}\ns_cbranch_scc1 L_dg")
    if stamps:
        stamp(8)
        A(f"s_mul_i32 {sT0}, s2, 5\ns_add_u32 {sT0}, {sT0}, {sW}\ns_lshl_b32 {sT0}, {sT0}, 6\ns_add_u32 {sT0}, {sT0}, {WS_ST}")
        A(f"s_getreg_b32 {sT1}, hwreg(HW_REG_XCC_ID)")
        A("s_waitcnt lgkmcnt(0)\nv_mov_b32 v4, 0")
        for i in range(9): A(f"v_writelane_b32 v4, s{sST+2*i}, {i}")
        A(f"v_writelane_b32 v4, s42, 9\nv_writelane_b32 v4, s48, 10\nv_writelane_b32 v4, s50, 11\nv_writelane_b32 v4, s47, 12")
        A(f"v_writelane_b32 v4, {sT1}, 15")
        A(f"v_lshlrev_b32 v5, 2, {vLANE}\ns_mov_b64 exec, 0xffff")
        A(f"buffer_store_dword v4, v5, {WS_}, {sT0} offen")
    A("L_end:\ns_endpgm")
    A('.section .rodata,"a"\n.p2align 6')
    A(f".amdhsa_kernel {KN}")
    nv4 = (NV+3)//4*4
    A(f".amdhsa_next_free_vgpr {nv4}\n.amdhsa_next_free_sgpr 102\n.amdhsa_accum_offset {nv4}")
    A(".amdhsa_group_segment_fixed_size 0\n.amdhsa_kernarg_size 96\n.amdhsa_user_sgpr_count 2")
    A(".amdhsa_user_sgpr_kernarg_segment_ptr 1\n.amdhsa_system_sgpr_workgroup_id_x 1")
    A(".amdhsa_float_denorm_mode_32 3\n.end_amdhsa_kernel")
    return A.finish()

if __name__ == "__main__":
    kw = eval("dict(" + (sys.argv[2] if len(sys.argv) > 2 else "") + ")")
    open(sys.argv[1], "w").write(gen(**kw))
```

```python
import sys, os
sys.path.insert(0, os.path.dirname(os.path.abspath(__file__)))
from asmlib import Asm
KN = "parallel_sum__mha_block_cached__glu_gated_reglu__decode_kernel"
HEADER = open("parallel_sum__mha_block_cached__glu_gated_reglu__decode.s.ref").read().split("; Override launch")[0]

HB = 32768*384
TB = 32*HB
WS_EP, WS_LS, WS_H3, WS_XX, WS_PR, WS_QS, WS_H1, WS_ST, WS_H2, WS_SIZE = 0, 0x8000, 0x10000, 0x20000, 0x40000, 0x80000, 0x100000, 0x200000, 0x280000, 0x400000
OOB = 0x40000000
SPIN = 1 << 20

def gen(NSEG=8, G=6, F=5, FH=6, RB=8, pace=5, deep=1, per=12, bs=2, fb=22, fbo=26, pre0=3, pre1=8, trig=17, skip='', xmap=1, xd=(6,5,3,1,-1,-3,-5,-6), xp=4, xs=12, np3=3, s3=6, psleep=4,
        spin=SPIN, local=1, lp="nt", pf="sc1", own=1, lsb=17, stamps=False, diag=None):
    A = Asm()
    NG = 32//NSEG; GS = 8*NSEG; BPS = 16//NSEG; LGS = GS.bit_length()-1
    PAIR = NSEG == 8
    TSTR = GS*4*3072
    assert G < RB and 24 % RB == 0 and NSEG == 8
    timed = stamps or diag is not None
    L_OP = 0; L_W = 8192; L_QP = L_W + 7680*(6 if PAIR else 5); L_QB = L_QP + 6400; L_ML = L_QB + 384*NSEG
    L_CT = L_ML + 64; L_SC = L_CT + 64; L_SIZE = L_SC + 16384 + 256
    assert L_SC < 65536
    sW, sHQ, sS, sG, sMEM = "s3", "s4", "s5", "s6", "s7"
    KV_, WS_, TA_, TB_, TC_, X_ = "s[8:11]", "s[16:19]", "s[20:23]", "s[24:27]", "s[28:31]", "s[32:35]"
    mB1, mB0 = "s[12:13]", "s[14:15]"
    pX, pK, pV, pWQ, pWO, pWG, pWU, pWD, pOUT, pDBG, pWS = 36, 38, 40, 42, 44, 48, 50, 52, 54, 56, 58
    sOFF, sOFF0, sIB, sBLK, sLIN, sX, sC, sT0, sT1, sT2, sT3, sOWN = [f"s{r}" for r in range(60, 72)]
    sTAG = "s46"
    sST = 84
    vLANE, vKV, vA, vB = "v0", "v1", "v2", "v3"
    ACC, Q = 8, 32
    T = 44
    RING = 56
    PB = RING + 48
    NV = PB + 96
    t0, t1, t2, t3 = f"v{T}", f"v{T+1}", f"v{T+2}", f"v{T+3}"
    def stamp(i):
        if timed: A(f"s_memrealtime s[{sST+2*i}:{sST+2*i+1}]")
    def srd_hi(name, size):
        b = int(name[2:name.index(":")]); A(f"s_mov_b32 s{b+2}, {size}\ns_mov_b32 s{b+3}, 0x20000")
    def srd_lo(name, ptr):
        b = int(name[2:name.index(":")]); A(f"s_mov_b64 s[{b}:{b+1}], s[{ptr}:{ptr+1}]")
    def srd(name, ptr, size): srd_lo(name, ptr); srd_hi(name, size)
    DPP = "row_mask:0xf bank_mask:0xf"
    PATS = ("quad_perm:[1,0,3,2]", "quad_perm:[2,3,0,1]", "row_half_mirror", "row_mirror")
    def allred_lo(op, vs, n=4):
        for pat in PATS[:n]:
            for v in vs: A(f"{op}_dpp {v}, {v}, {v} {pat} {DPP}")
    def allred_top(op, vs, ts):
        for sw in ("v_permlane16_swap_b32", "v_permlane32_swap_b32"):
            for v, t in zip(vs, ts): A(f"v_mov_b32 {t}, {v}")
            for v, t in zip(vs, ts): A(f"{sw} {t}, {v}")
            for v, t in zip(vs, ts): A(f"{op} {v}, {v}, {t}")
    def redscat(base, n):
        for g in range(n):
            for e in range(4): A(f"v_permlane32_swap_b32 v{base+8*g+e}, v{base+8*g+e+4}")
        for g in range(n):
            for e in range(4): A(f"v_add_f32 v{base+8*g+e}, v{base+8*g+e}, v{base+8*g+e+4}")
        for g in range(n):
            for e in range(2): A(f"v_permlane16_swap_b32 v{base+8*g+e}, v{base+8*g+e+2}")
        for g in range(n):
            for e in range(2): A(f"v_add_f32 v{base+8*g+e}, v{base+8*g+e}, v{base+8*g+e+2}")
        for g in range(n):
            A(f"v_add_f32_dpp v{base+8*g}, v{base+8*g}, v{base+8*g} row_ror:8 row_mask:0xf bank_mask:0x3")
        for g in range(n):
            A(f"v_add_f32_dpp v{base+8*g}, v{base+8*g+1}, v{base+8*g+1} row_ror:8 row_mask:0xf bank_mask:0xc")
    def redscat_lo(bases):
        for S in bases:
            for e in range(4): A(f"v_add_f32_dpp v{S+e}, v{S+e}, v{S+e} row_half_mirror row_mask:0xf bank_mask:0x5")
        for S in bases:
            for e in range(4): A(f"v_add_f32_dpp v{S+e}, v{S+e+4}, v{S+e+4} row_half_mirror row_mask:0xf bank_mask:0xa")
        for S in bases:
            for e in range(4): A(f"v_add_f32_dpp v{S+e}, v{S+e}, v{S+e} quad_perm:[2,3,0,1] {DPP}")
        for S in bases:
            for e in range(2): A(f"v_cndmask_b32 v{S+e}, v{S+e}, v{S+e+2}, {mB1}")
        for S in bases:
            for e in range(2): A(f"v_add_f32_dpp v{S+e}, v{S+e}, v{S+e} quad_perm:[1,0,3,2] {DPP}")
        for S in bases: A(f"v_cndmask_b32 v{S}, v{S}, v{S+1}, {mB0}")
    def axpy(acc, data, n, pl, ph):
        for i in range(n):
            A(f"v_dot2c_f32_bf16 v{acc+2*i}, v{data+i}, {pl}\nv_dot2c_f32_bf16 v{acc+2*i+1}, v{data+i}, {ph}")
    def ld(reg, j): A(f"buffer_load_dwordx4 v[{reg}:{reg+3}], {vKV}, {KV_}, {sOFF} offen offset:{128*j} nt")
    uid = [0]
    def next_block():
        uid[0] += 1; u = uid[0]
        A(f"s_add_u32 {sIB}, {sIB}, 1\ns_and_b32 {sT0}, {sIB}, {BPS-1}\ns_cbranch_scc1 L_nb{u}")
        A(f"s_add_u32 {sOFF}, {sOFF}, {(NG-1)*HB}")
        A(f"s_and_b32 {sT0}, {sIB}, 15\ns_cbranch_scc1 L_nb{u}")
        A(f"s_mov_b64 s[8:9], s[{pV}:{pV+1}]\ns_mov_b32 {sOFF}, {sOFF0}")
        A(f"s_cmp_lt_u32 {sIB}, 32\ns_cbranch_scc1 L_nb{u}\ns_mov_b32 s10, 0\ns_mov_b32 {sOFF}, 0")
        A(f"L_nb{u}:")
    def lev(n, f):
        fr = f - int(f)
        return int(f) + (1 if int((n+1)*fr + 1e-9) != int(n*fr + 1e-9) else 0)
    cps = list(range(0, 24, per)) if fb else []
    assert all(c + G + 1 <= 23 for c in cps) and per > G
    PR_, sTHR, vPC, vPO, vPL, vPS = TC_, "s72", "v52", "v53", "v54", "v55"
    def slot(n, last=False):
        uid[0] += 1; u = uid[0]
        fi, fh = lev(n, F), lev(n, FH)
        assert fi <= fh <= G
        def cnt(x): return x - 1 + 2*sum(1 for c in cps if 0 < n - c <= x)
        m = n + G
        if m % 3 == 0:
            A(f"s_add_u32 {sOFF}, {sOFF}, {TSTR}")
            if m == 24: next_block()
        if fi < fh: A(f"s_cbranch_vccnz L_dp{u}\ns_waitcnt vmcnt({cnt(fi)})\nL_dp{u}:")
        A(f"s_waitcnt vmcnt({cnt(fh)})")
        ld(RING + 4*(m % RB), m % 3)
        if n - G - 1 in cps:
            if xd:
                A(f"v_readlane_b32 {sT1}, {vPO}, 32\ns_sub_u32 {sT1}, {sT1}, {sTAG}\ns_cmp_lt_u32 {sT1}, 33\ns_cselect_b32 {sTHR}, {sT1}, {sTHR}")
            A(f"v_sub_u32 {vPO}, {vPO}, {vPC}\nv_cmp_gt_u32 vcc, 64, {vPO}\ns_bcnt1_i32_b32 {sT0}, vcc_lo")
            A(f"s_cmp_gt_u32 {sT0}, {sTHR}\ns_cselect_b64 vcc, -1, 0")
            if stamps: A(f"s_and_b32 {sT0}, vcc_lo, 1\ns_add_u32 s47, s47, {sT0}")
            if last and deep: A(f"s_cmp_ge_u32 {sBLK}, {32-deep}\ns_cselect_b64 vcc, -1, vcc")
        if n in cps:
            A(f"v_add_u32 {vPC}, 1, {vPC}\nbuffer_store_dword {vPC}, {vPS}, {PR_}, 0 offen\nbuffer_load_dword {vPO}, {vPL}, {PR_}, 0 offen nt")
    def qk4(acc, data, j):
        for e in range(4):
            if j == 0 and e == 0: A(f"v_dot2_f32_bf16 v{acc}, v{data}, v{Q}, 0")
            else: A(f"v_dot2_f32_bf16 v{acc}, v{data+e}, v{Q+4*j+e}, v{acc}")

    A(HEADER.rstrip())
    A(f"; @launch grid=(256,1,1) block=(320,1,1) lds={L_SIZE}")
    A('.amdgcn_target "amdgcn-amd-amdhsa--gfx950"\n.text')
    A(f".globl {KN}\n.p2align 8\n.type {KN},@function\n{KN}:")
    A("s_cmp_ge_u32 s2, 256\ns_cbranch_scc1 L_end")
    A("s_load_dwordx16 s[36:51], s[0:1], 0\ns_load_dwordx8 s[52:59], s[0:1], 64")
    stamp(0)
    A(f"v_lshrrev_b32 v1, 6, v0\nv_and_b32 {vLANE}, 63, v0\nv_readfirstlane_b32 {sW}, v1\ns_setprio 3")
    A(f"v_mov_b32 v8, 0\nds_write_b32 v8, v8 offset:{L_CT}")
    order = []
    for v in range(8):
        if v not in order: order += [v, v ^ xmap] if (v & 1) == 0 or (xmap & 1) == 0 else [v ^ xmap, v]
    lut = sum(order.index(v) << (4*v) for v in range(8))
    A(f"s_and_b32 {sX}, s2, 7\ns_lshl_b32 {sX}, {sX}, 2\ns_lshr_b32 {sX}, {hex(lut)}, {sX}\ns_and_b32 {sX}, {sX}, 7")
    A(f"s_lshr_b32 {sC}, s2, 3\ns_lshl_b32 {sT0}, {sX}, 5\ns_add_u32 {sLIN}, {sT0}, {sC}")
    A(f"s_lshr_b32 {sG}, {sLIN}, {LGS}\ns_and_b32 {sMEM}, {sLIN}, {GS-1}\ns_and_b32 {sS}, {sMEM}, 7")
    A(f"s_lshr_b32 {sT0}, {sMEM}, 3\ns_mul_i32 {sHQ}, {sT0}, {NG}\ns_add_u32 {sHQ}, {sHQ}, {sG}")
    A(f"s_sub_u32 {sW}, {sW}, 1\ns_cselect_b32 {sW}, 4, {sW}")
    A(f"v_lshrrev_b32 {vA}, 3, {vLANE}\nv_and_b32 {vB}, 7, {vLANE}")
    A(f"v_lshlrev_b32 v7, 4, {vB}")
    A(f"v_mov_b32 v4, 384\nv_mad_u32_u24 {vKV}, {vA}, v4, v7")
    A(f"v_mov_b32 v4, 12288\nv_mad_u32_u24 v4, {vA}, v4, v7")
    A(f"v_mov_b32 v5, 3072\nv_mad_u32_u24 v5, {vA}, v5, v7")
    A(f"v_mov_b32 v6, {OOB}\nv_cmp_gt_u32 vcc, 6, {vB}\nv_cndmask_b32 v5, v6, v5, vcc")
    A(f"v_lshlrev_b32 v6, 1, {vA}\nv_lshlrev_b32 v7, 4, {vLANE}")
    A(f"s_mul_i32 {sT0}, {sS}, 80\ns_lshl_b32 {sT1}, {sW}, 4\ns_add_u32 {sT0}, {sT0}, {sT1}")
    A(f"s_mul_i32 {sT1}, {sT0}, 12288\ns_mul_i32 {sT2}, {sHQ}, 384\ns_add_u32 {sT1}, {sT1}, {sT2}")
    A(f"s_mul_i32 {sT2}, {sT0}, 3072\ns_lshr_b32 {sT3}, {sLIN}, 3\ns_mul_i32 {sT3}, {sT3}, 96\ns_add_u32 {sT2}, {sT2}, {sT3}")
    A(f"s_lshl_b32 {sT0}, {sT0}, 1")
    srd_hi(X_, 1280); srd_hi(TA_, 640*12288); srd_hi(TB_, 640*3072); srd_hi(TC_, 640*3072); srd_hi(WS_, WS_SIZE); srd_hi(KV_, TB)
    A("s_waitcnt lgkmcnt(0)")
    srd_lo(X_, pX)
    XR, WD, WA = RING + 40, RING, ACC
    A(f"buffer_load_dwordx4 v[{XR}:{XR+3}], v7, {X_}, 0 offen")
    A(f"buffer_load_dwordx4 v[{XR+4}:{XR+7}], v7, {X_}, 0 offen offset:1024")
    A(f"buffer_load_ushort v{T+10}, v6, {X_}, {sT0} offen")
    A(f"buffer_load_ushort v{T+11}, v6, {X_}, {sT0} offen offset:16")
    srd_lo(TA_, pWQ); srd_lo(TB_, pWG); srd_lo(TC_, pWU)
    A(f"s_load_dword {sTAG}, s[{pWS}:{pWS+1}], {WS_EP}")
    A("s_barrier")
    for t in range(2):
        for j in range(3):
            A(f"buffer_load_dwordx4 v[{WD+20*t+4*j}:{WD+20*t+4*j+3}], v4, {TA_}, {sT1} offen offset:{128*j} nt")
        A(f"buffer_load_dwordx4 v[{WD+20*t+12}:{WD+20*t+15}], v5, {TB_}, {sT2} offen nt")
        A(f"buffer_load_dwordx4 v[{WD+20*t+16}:{WD+20*t+19}], v5, {TC_}, {sT2} offen nt")
        if t == 0: A(f"s_add_u32 {sT1}, {sT1}, {8*12288}\ns_add_u32 {sT2}, {sT2}, {8*3072}")
    srd_lo(KV_, pK); srd_lo(WS_, pWS)
    A(f"s_lshl_b32 {sT0}, {sMEM}, 2\ns_add_u32 {sT0}, {sT0}, {sW}\ns_mul_i32 {sT0}, {sT0}, 3072")
    A(f"s_mul_i32 {sOFF0}, {sG}, {HB}\ns_add_u32 {sOFF0}, {sOFF0}, {sT0}\ns_mov_b32 {sOFF}, {sOFF0}")
    A(f"s_mov_b32 s12, 0xcccccccc\ns_mov_b32 s13, 0xcccccccc\ns_mov_b32 s14, 0xaaaaaaaa\ns_mov_b32 s15, 0xaaaaaaaa")
    A(f"s_and_b32 {sOWN}, {sX}, 1\ns_xor_b32 {sOWN}, {sOWN}, {own}")
    A(f"s_cmp_eq_u32 {sW}, 4\ns_cbranch_scc1 L_ln\ns_setprio 1\nL_ln:\ns_waitcnt vmcnt(10) lgkmcnt(0)")
    A(f"s_mul_i32 {sTAG}, {sTAG}, 1664525\ns_add_u32 {sTAG}, {sTAG}, 1013904223")
    XF = WA
    for i in range(8):
        A(f"v_lshlrev_b32 v{XF+2*i}, 16, v{XR+i}\nv_and_b32 v{XF+2*i+1}, 0xffff0000, v{XR+i}")
    l0, l1, l2, l3 = "v24", "v25", "v26", "v27"
    A(f"v_add_f32 {l0}, v{XF}, v{XF+1}\nv_add_f32 {l1}, v{XF+2}, v{XF+3}")
    for i in range(4, 16, 2): A(f"v_add_f32 {l0}, {l0}, v{XF+i}\nv_add_f32 {l1}, {l1}, v{XF+i+1}")
    A(f"v_add_f32 {l0}, {l0}, {l1}")
    allred_lo("v_add_f32", [l0]); allred_top("v_add_f32", [l0], [l1])
    A(f"v_mul_f32 {l0}, 0x3acccccd, {l0}")
    for i in range(16): A(f"v_sub_f32 v{XF+i}, v{XF+i}, {l0}")
    A(f"v_mul_f32 {l1}, v{XF}, v{XF}\nv_mul_f32 {l2}, v{XF+8}, v{XF+8}")
    for i in range(1, 8): A(f"v_fmac_f32 {l1}, v{XF+i}, v{XF+i}\nv_fmac_f32 {l2}, v{XF+8+i}, v{XF+8+i}")
    A(f"v_cmp_gt_u32 vcc, 16, {vLANE}\nv_cndmask_b32 {l2}, 0, {l2}, vcc\nv_add_f32 {l1}, {l1}, {l2}")
    allred_lo("v_add_f32", [l1]); allred_top("v_add_f32", [l1], [l2])
    A(f"v_mul_f32 {l1}, 0x3acccccd, {l1}")
    A(f"v_cvt_pk_bf16_f32 {l0}, 0, {l0}\nv_cvt_pk_bf16_f32 {l1}, 0, {l1}")
    A(f"v_add_f32 {l1}, 0x3727c5ac, {l1}\nv_cvt_pk_bf16_f32 {l1}, 0, {l1}\nv_sqrt_f32 {l1}, {l1}")
    A(f"v_cvt_pk_bf16_f32 {l1}, 0, {l1}\nv_rcp_f32 {l2}, {l1}")
    for t in range(2):
        xr = f"v{T+10+t}"
        A(f"v_lshlrev_b32 {xr}, 16, {xr}\nv_sub_f32 {xr}, {xr}, {l0}\nv_cvt_pk_bf16_f32 {xr}, 0, {xr}")
        A(f"v_mul_f32 {l3}, {xr}, {l2}\nv_fma_f32 {xr}, -{l3}, {l1}, {xr}\nv_fma_f32 {xr}, {xr}, {l2}, {l3}")
        A(f"v_cvt_pk_bf16_f32 v{T+6+2*t}, {xr}, 0\nv_cvt_pk_bf16_f32 v{T+7+2*t}, 0, {xr}")
    for i in range(40): A(f"v_mov_b32 v{WA+i}, 0")
    stamp(1)
    def pb_load(n, paced):
        if n and n % 3 == 0: A(f"s_add_u32 {sOFF}, {sOFF}, {TSTR}")
        if paced: A(f"s_waitcnt vmcnt({pace-1})")
        ld(PB + 4*n, n % 3)
    A(f"s_waitcnt vmcnt(5)\ns_cmp_eq_u32 {sW}, 4\ns_cbranch_scc1 L_nopre0")
    for n in range(pre0): pb_load(n, False)
    A("L_nopre0:")
    axpy(WA, WD, 20, f"v{T+6}", f"v{T+7}")
    A(f"s_cmp_eq_u32 {sW}, 4\ns_cbranch_scc1 L_nopre1\ns_waitcnt vmcnt({pre0})")
    for n in range(pre0, pre1): pb_load(n, False)
    A("s_branch L_pre2\nL_nopre1:\ns_waitcnt vmcnt(0)\nL_pre2:")
    axpy(WA, WD+20, 20, f"v{T+8}", f"v{T+9}")
    redscat(WA, 5)
    A(f"s_mul_i32 {sT0}, {sW}, 1280\nv_lshl_add_u32 v4, {vLANE}, 2, {sT0}")
    for k in range(5): A(f"ds_write_b32 v4, v{WA+8*k} offset:{L_QP+256*k}")
    A(f"v_mov_b32 v5, 0\nv_mov_b32 v6, 1\ns_mov_b64 exec, 1\nds_add_u32 v5, v6 offset:{L_CT}\ns_mov_b64 exec, -1")
    stamp(2)
    A(f"s_cmp_eq_u32 {sW}, 4\ns_cbranch_scc1 L_svc")
    for n in range(pre1, 24):
        pb_load(n, True)
        if n == trig: A(f"v_mov_b32 v6, 64\ns_mov_b64 exec, 1\nds_add_u32 v5, v6 offset:{L_CT}\ns_mov_b64 exec, -1")
    srd(TA_, pWO, 6144*1280); srd(TB_, pWD, 1536*1280)
    def dma_pair():
        for i in range(3):
            if i == 2: A("s_mov_b32 exec_hi, 0")
            A(f"s_waitcnt vmcnt({pace-1})\nbuffer_load_dwordx4 v7, {TA_}, {sT0} offen offset:{1024*i} nt lds")
        A("s_mov_b32 exec_hi, -1")
    A(f"s_lshl_b32 {sT2}, {sS}, 3\ns_lshr_b32 {sT1}, {sC}, 3\ns_lshl_b32 {sT1}, {sT1}, 1\ns_add_u32 {sT2}, {sT2}, {sT1}")
    A(f"s_mul_i32 {sT1}, {sG}, 192\ns_add_u32 {sT2}, {sT2}, {sT1}")
    if PAIR: A(f"s_lshl_b32 {sT0}, {sW}, 1\ns_add_u32 {sT0}, {sT0}, {sOWN}")
    else: A(f"s_mov_b32 {sT0}, {sW}")
    A(f"s_mul_i32 {sT0}, {sT0}, {NG*192}\ns_add_u32 {sT0}, {sT0}, {sT2}\ns_mul_i32 {sT0}, {sT0}, 1280\ns_mul_i32 {sT1}, {sW}, 7680")
    for jj in range(3):
        A(f"s_add_u32 m0, {sT1}, {L_W+7680+2560*jj}")
        dma_pair()
        if jj < 2: A(f"s_add_u32 {sT0}, {sT0}, {64*1280}")
    if PAIR:
        A(f"s_lshl_b32 {sT0}, {sOWN}, 2\ns_add_u32 {sT0}, {sT0}, {sW}\ns_cmp_ge_u32 {sT0}, 3\ns_cbranch_scc1 L_nos4")
        A(f"s_lshl_b32 {sT0}, {sW}, 6\ns_add_u32 {sT0}, {sT0}, {sT2}\ns_add_u32 {sT0}, {sT0}, {7*NG*192}\ns_mul_i32 {sT0}, {sT0}, 1280")
        A(f"s_mul_i32 {sT1}, {sW}, 2560\ns_add_u32 m0, {sT1}, {L_W+7680*5}")
        dma_pair()
        A("L_nos4:")
    A(f"s_mul_i32 {sT0}, {sLIN}, 7680\ns_lshl_b32 {sT1}, {sW}, 11\ns_add_u32 {sT0}, {sT0}, {sT1}\ns_add_u32 m0, {sT1}, {L_W}")
    A(f"s_waitcnt vmcnt({pace-1})\nbuffer_load_dwordx4 v7, {TB_}, {sT0} offen nt lds")
    A(f"s_cmp_eq_u32 {sW}, 3\ns_cselect_b32 exec_hi, 0, -1")
    A(f"s_waitcnt vmcnt({pace-1})\nbuffer_load_dwordx4 v7, {TB_}, {sT0} offen offset:1024 nt lds")
    A(f"s_mov_b32 exec_hi, -1\ns_mov_b32 {sIB}, 1")
    for m in range(G):
        if m % 3 == 0: A(f"s_add_u32 {sOFF}, {sOFF}, {TSTR}")
        A(f"s_waitcnt vmcnt({pace-1})"); ld(RING + 4*m, m % 3)
    vQA, vSA = "v4", "v5"
    A(f"v_lshlrev_b32 {vQA}, 4, {vB}\nv_add_u32 {vQA}, {L_QB}, {vQA}")
    A(f"s_lshl_b32 {sT0}, {sW}, 12\ns_add_u32 {sT0}, {sT0}, {L_SC}\nv_lshl_add_u32 {vSA}, {vLANE}, 2, {sT0}")
    A(f"s_lshl_b32 {sT0}, {sX}, 2\ns_add_u32 {sT0}, {sT0}, {sW}\ns_mul_i32 {sT0}, {sT0}, 4224\ns_add_u32 {sT0}, {sT0}, {WS_PR}")
    A(f"s_add_u32 s28, s{pWS}, {sT0}\ns_addc_u32 s29, s{pWS+1}, 0\ns_mov_b32 s30, {132 if xd else 128}")
    A(f"v_lshlrev_b32 {vPL}, 2, {vLANE}\nv_mov_b32 {vPS}, 0x1000\nv_cmp_eq_u32 vcc, {sC}, {vLANE}\nv_cndmask_b32 {vPS}, {vPS}, {vPL}, vcc\nv_mov_b32 {vPC}, {sTAG}")
    A(f"s_getreg_b32 {sTHR}, hwreg(HW_REG_XCC_ID)\ns_bitcmp1_b32 {sTHR}, 0\ns_cselect_b32 {sTHR}, {fbo}, {fb}")
    A(f"s_mov_b64 vcc, 0\ns_mov_b32 s47, 0")
    stamp(3)
    A("s_barrier")
    for j in range(3): A(f"ds_read_b128 v[{Q+4*j}:{Q+4*j+3}], {vQA} offset:{128*j}")
    A("s_waitcnt lgkmcnt(0)")
    stamp(4)
    SA, R, RT, S2 = ACC, ACC + 2, ACC + 6, ACC + 8
    def k_after_tile(t):
        A(f"v_add_f32_dpp v{R+(t&3)}, v{SA+(t&1)}, v{SA+(t&1)} row_half_mirror row_mask:0xf bank_mask:{'0xa' if t >= 4 else '0x5'}")
    def k_stage2(e): A(f"v_add_f32_dpp v{R+e}, v{R+e}, v{R+e} quad_perm:[2,3,0,1] {DPP}")
    def k_fin(which):
        if which == 0:
            k_after_tile(7); k_stage2(3)
            A(f"v_cndmask_b32 v{RT+1}, v{R+1}, v{R+3}, {mB1}")
        else:
            A(f"v_add_f32_dpp v{RT+1}, v{RT+1}, v{RT+1} quad_perm:[1,0,3,2] {DPP}\nv_cndmask_b32 v{RT}, v{RT}, v{RT+1}, {mB0}")
            A(f"ds_write_b32 {vSA}, v{RT}\nv_add_u32 {vSA}, 256, {vSA}")
    def k_body(first):
        for n in range(24):
            t, j = n//3, n % 3
            slot(n)
            if not first:
                if n < 2: k_fin(n)
                if n == 0: A("s_waitcnt lgkmcnt(0)")
                if n == bs: A("s_waitcnt lgkmcnt(0)\ns_barrier")
            else: qk4(S2 + t, PB + 4*n, j)
            if j == 0 and t >= 1: k_after_tile(t-1)
            if j == 1 and t >= 5: k_stage2(t-5)
            if n == 23: A(f"v_cndmask_b32 v{RT}, v{R}, v{R+2}, {mB1}")
            if n == 20: A(f"s_add_u32 {sBLK}, {sBLK}, 1\ns_and_b32 {sT0}, {sBLK}, {BPS-1}\ns_cselect_b32 {sT0}, 0, 384\nv_add_u32 {vQA}, {sT0}, {vQA}")
            if "c" not in skip: qk4(SA + (t & 1), RING + 4*(n % RB), j)
            if n == 23: A(f"v_add_f32_dpp v{RT}, v{RT}, v{RT} quad_perm:[1,0,3,2] {DPP}")
            if t == 7: A(f"ds_read_b128 v[{Q+4*j}:{Q+4*j+3}], {vQA} offset:{128*j}")
    A(f"s_mov_b32 {sBLK}, 1")
    k_body(True)
    redscat_lo([S2])
    A(f"ds_write_b32 {vSA}, v{S2}\nv_add_u32 {vSA}, 256, {vSA}")
    A("L_k:")
    k_body(False)
    if stamps: A(f"s_cmp_lg_u32 {sBLK}, 3\ns_cbranch_scc1 L_st1\ns_memrealtime s[42:43]\nL_st1:")
    A(f"s_cmp_lt_u32 {sBLK}, 16\ns_cbranch_scc1 L_k")
    if stamps: A("s_memrealtime s[50:51]")
    vP, vPN, pl, ph, vOA, RV = "v44", "v45", "v46", "v47", "v4", Q
    k_fin(0); k_fin(1)
    A(f"v_subrev_u32 {vSA}, 4096, {vSA}\nds_read_b32 {vPN}, {vSA}\nv_add_u32 {vSA}, 256, {vSA}")
    A(f"s_lshl_b32 {sT0}, {sW}, 10\ns_add_u32 {sT0}, {sT0}, {L_OP}\nv_add_u32 {vOA}, {sT0}, v7\ns_mov_b32 s73, 0\ns_waitcnt lgkmcnt(0)")
    for i in range(24): A(f"v_mov_b32 v{ACC+i}, 0")
    def v_a(g, zero=True):
        b = ACC + 8*g
        for e in range(4): A(f"v_permlane32_swap_b32 v{b+e}, v{b+e+4}")
        for e in range(4): A(f"v_add_f32 v{RV+4*g+e}, v{b+e}, v{b+e+4}")
        if zero:
            for e in range(8): A(f"v_mov_b32 v{b+e}, 0")
    def v_b(gs):
        for g in gs:
            for e in range(2): A(f"v_permlane16_swap_b32 v{RV+4*g+e}, v{RV+4*g+e+2}")
        for g in gs:
            for e in range(2): A(f"v_add_f32 v{RV+4*g+e}, v{RV+4*g+e}, v{RV+4*g+e+2}")
        for g in gs: A(f"v_add_f32_dpp v{48+g}, v{RV+4*g}, v{RV+4*g} row_ror:8 row_mask:0xf bank_mask:0x3")
        for g in gs: A(f"v_add_f32_dpp v{48+g}, v{RV+4*g+1}, v{RV+4*g+1} row_ror:8 row_mask:0xf bank_mask:0xc")
    def v_out(): A(f"ds_write_b96 {vOA}, v[48:50]\nv_xor_b32 {vOA}, 4096, {vOA}")
    def cond(lab, code): A(f"s_cmp_eq_u32 s73, 0\ns_cbranch_scc1 {lab}"); code(); A(f"{lab}:")
    A("L_v:")
    for n in range(24):
        slot(n, True)
        if n == 0: A(f"s_waitcnt lgkmcnt(0)\nv_mov_b32 {vP}, {vPN}"); cond("L_c0", lambda: v_a(2))
        if n == 1: cond("L_c1", lambda: (v_b([2]), v_out()))
        if n == bs: A("s_waitcnt lgkmcnt(0)\ns_barrier")
        if n == 20:
            A(f"s_add_u32 {sT1}, {sBLK}, 1\ns_and_b32 {sT0}, {sT1}, {BPS-1}\ns_cselect_b32 s73, 0, 1")
            A(f"ds_read_b32 {vPN}, {vSA}\nv_add_u32 {vSA}, 256, {vSA}")
        if n % 3 == 0:
            t = n//3
            A(f"v_mov_b32_dpp {pl}, {vP} row_newbcast:{t} row_mask:0xf bank_mask:0x3")
            A(f"v_mov_b32_dpp {pl}, {vP} row_newbcast:{8+t} row_mask:0xf bank_mask:0xc")
            A(f"v_lshlrev_b32 {ph}, 16, {pl}")
        if "c" not in skip: axpy(ACC + 8*(n % 3), RING + 4*(n % RB), 4, pl, ph)
        if n == 21: cond("L_c21", lambda: (v_a(0), v_b([0])))
        if n == 22: cond("L_c22", lambda: (v_a(1), v_b([1])))
    A(f"s_add_u32 {sBLK}, {sBLK}, 1")
    if stamps: A(f"s_cmp_lg_u32 {sBLK}, 29\ns_cbranch_scc1 L_st2\ns_memrealtime s[48:49]\nL_st2:\n; SSBYTES={26*8*3072}")
    A(f"s_cmp_lt_u32 {sBLK}, 32\ns_cbranch_scc1 L_v")
    stamp(5)
    v_a(2, False); v_b([2]); v_out()
    A("s_waitcnt lgkmcnt(0)\ns_barrier")
    stamp(6); stamp(7)
    A("s_branch L_done")
    A("L_svc:")
    G0 = RING; G1 = G0 + 8
    vQW, vSC, vML, vOP, vLS, vM, vZ, vZK, vXA = [f"v{32+i}" for i in range(7)] + ["v40", "v42"]
    ZS, ZM = 52, 8
    vWA, vH1S, vH1G, vYG, vH3, vYW, vYR, vOUT, XV = "v16", "v17", "v18", "v19", "v20", "v21", "v29", 22, 26
    P0, P1, YY = PB, PB + 32, PB + 64
    YT = YY + 12
    LP = 64//NSEG; LLP = LP.bit_length()-1; NLS = GS//LP; NR = 4*BPS
    sF = [f"s{r}" for r in (20, 21, 22, 24, 25, 26, 28, 29)]
    sLOC, sHD, sTG2, sH1S, sH1G, sYS, sYG, sH3S, sH3G, sXS, sXG, sFL = [f"s{r}" for r in range(72, 84)]
    sUU = ["s60", "s61", "s62"]
    sSCALE, sLOG2E = "s12", "s13"
    def store2(lab, stores):
        A(f"s_cmp_eq_u32 {sLOC}, 0\ns_cbranch_scc1 {lab}_r"); stores(""); A(f"s_branch {lab}_d\n{lab}_r:"); stores("sc1"); A(f"{lab}_d:")
    def poll(lab, loads, tags, sleep=0, first=None, tag=sTAG, loc=False):
        A(f"s_mov_b32 {sT2}, {spin}")
        if first is not None: loads(first); A(f"s_branch {lab}_chk")
        elif sleep: A(f"s_branch {lab}_go")
        A(f"{lab}:")
        if sleep: A(f"s_sleep {sleep}\n{lab}_go:")
        if loc and lp != "sc1":
            A(f"s_cmp_eq_u32 {sLOC}, 0\ns_cbranch_scc1 {lab}_rm"); loads(lp); A(f"s_branch {lab}_chk\n{lab}_rm:")
        loads("sc1")
        A(f"{lab}_chk:\ns_waitcnt vmcnt(0)")
        if len(tags) == 1: A(f"v_cmp_ne_u32 vcc, {tag}, {tags[0]}")
        else:
            A(f"v_xor_b32 {t0}, {tag}, {tags[0]}")
            for t in tags[1:]: A(f"v_bitop3_b32 {t0}, {t}, {tag}, {t0} bitop3:0xbe")
            A(f"v_cmp_ne_u32 vcc, 0, {t0}")
        A(f"s_cbranch_vccz {lab}_done\ns_sub_u32 {sT2}, {sT2}, 1\ns_cbranch_scc0 {lab}\n{lab}_done:")
    A(f"v_lshlrev_b32 v4, 2, {vLANE}")
    A(f"L_wq:\nds_read_b32 v6, v5 offset:{L_CT}\ns_waitcnt lgkmcnt(0)\nv_and_b32 v6, 7, v6\nv_cmp_gt_u32 vcc, 5, v6\ns_cbranch_vccnz L_wq")
    for w in range(5):
        for k in range(5): A(f"ds_read_b32 v{G0+5*w+k}, v4 offset:{L_QP+1280*w+256*k}")
        if w == 2: A("s_waitcnt lgkmcnt(0)")
    A("s_waitcnt lgkmcnt(0)")
    for w in range(1, 5):
        for k in range(5): A(f"v_add_f32 v{G0+k}, v{G0+k}, v{G0+5*w+k}")
    A(f"v_lshl_add_u32 v5, {vB}, 3, {vA}\nv_lshlrev_b32 {vQW}, 1, v5\nv_lshlrev_b32 v5, 4, v5")
    A(f"v_mov_b32 v48, v{G0+3}\nv_mov_b32 v49, v{G0+4}\nv_mov_b32 v{G0+3}, {sTAG}\nv_mov_b32 v50, {sTAG}\nv_mov_b32 v51, {sTAG}")
    A(f"s_lshl_b32 {sT0}, {sLIN}, 11\ns_add_u32 {sT0}, {sT0}, {WS_QS}")
    A(f"buffer_store_dwordx4 v[{G0}:{G0+3}], v7, {WS_}, {sT0} offen sc1")
    stamp(3)
    A(f"v_add_u32 {vSC}, {L_SC}, v4\nv_mov_b32 {vML}, {L_ML}\nv_add_u32 {vOP}, {L_OP}, v7\nv_mov_b32 {vZ}, 0")
    A(f"s_mov_b32 {sSCALE}, 0x3d93cd3a\ns_mov_b32 {sLOG2E}, 0x3fb8aa3b\ns_mov_b32 {sBLK}, -1")
    A(f"s_lshl_b32 {sHD}, {sG}, {11+LGS}\ns_add_u32 {sHD}, {sHD}, {WS_QS}")
    A(f"L_wt:\ns_sleep 2\nds_read_b32 v10, {vZ} offset:{L_CT}\ns_waitcnt lgkmcnt(0)\nv_cmp_gt_u32 vcc, 256, v10\ns_cbranch_vccnz L_wt")
    A("s_branch L_gq0")
    A("L_blk:")
    if xd:
        A(f"s_cmp_lg_u32 {sC}, 0\ns_cbranch_scc1 L_noxf\ns_and_b32 {sT0}, {sBLK}, {xp-1}\ns_cmp_lg_u32 {sT0}, {xp-1}\ns_cbranch_scc1 L_noxf\ns_cmp_gt_u32 {sBLK}, 28\ns_cbranch_scc1 L_noxf")
        A(f"s_add_u32 {sT0}, {sTAG}, {sBLK}\nv_mov_b32 v12, {sT0}\nv_mul_u32_u24 v13, 4224, {vLANE}\ns_mul_i32 {sT1}, {sX}, 4224\ns_add_u32 {sT1}, {sT1}, {WS_PR+0x30000}")
        A(f"s_mov_b64 exec, 1\nbuffer_store_dword v12, v13, {WS_}, {sT1} offen sc1\ns_mov_b32 {sT1}, {WS_PR+0x30000}")
        if xs < 0: A("s_waitcnt vmcnt(0)")
        if xs > 0: A(f"s_sleep {xs}")
        A(f"s_mov_b64 exec, 0xff\nbuffer_load_dword v14, v13, {WS_}, {sT1} offen sc1\ns_waitcnt vmcnt(0)")
        lutv = sum((d + 8) << (4*i) for i, d in enumerate(xd))
        A(f"v_sub_u32 v14, v14, v12\nv_cmp_gt_u32 vcc, 64, v14\ns_bitset0_b32 vcc_lo, {sX}\ns_bcnt1_i32_b64 {sT0}, vcc\ns_lshl_b32 {sT0}, {sT0}, 2")
        A(f"s_lshr_b32 {sT0}, {hex(lutv)}, {sT0}\ns_and_b32 {sT0}, {sT0}, 15\ns_getreg_b32 {sT1}, hwreg(HW_REG_XCC_ID)\ns_bitcmp1_b32 {sT1}, 0\ns_cselect_b32 {sT1}, {fbo-8}, {fb-8}")
        A(f"s_add_u32 {sT0}, {sT0}, {sT1}\ns_min_u32 {sT0}, {sT0}, 32\ns_add_u32 {sT0}, {sT0}, {sTAG}\nv_mov_b32 v12, {sT0}")
        A(f"s_mul_i32 {sT1}, {sX}, {4*4224}\ns_add_u32 {sT1}, {sT1}, {WS_PR+128}\ns_mov_b64 exec, 0xf")
        A(f"buffer_store_dword v12, v13, {WS_}, {sT1} offen\ns_mov_b64 exec, -1\nL_noxf:")
    A(f"s_cmp_le_u32 {sBLK}, 16\ns_cbranch_scc1 L_kpart\ns_and_b32 {sT0}, {sBLK}, {BPS-1}\ns_cbranch_scc1 L_vmid")
    stamp(5)
    for w in range(4): A(f"ds_read_b96 v[{G0+4*w}:{G0+4*w+2}], {vOP} offset:{1024*w}")
    A(f"v_xor_b32 {vOP}, 4096, {vOP}\nv_mov_b32 v{G0+19}, {sTG2}\ns_waitcnt lgkmcnt(0)")
    for k in range(3): A(f"v_add_f32 v{G0+k}, v{G0+k}, v{G0+4+k}\nv_add_f32 v{G0+8+k}, v{G0+8+k}, v{G0+12+k}")
    for k in range(3): A(f"v_add_f32 v{G0+k}, v{G0+k}, v{G0+8+k}")
    for k in range(3): A(f"v_mul_f32 v{G0+16+k}, {sF[0]}, v{G0+k}")
    if "h" in skip: A(f"s_cmp_lg_u32 {sBLK}, 32\ns_cbranch_scc1 L_p1_done")
    store2("L_s1", lambda p: A(f"buffer_store_dwordx4 v[{G0+16}:{G0+19}], {vH1S}, {WS_}, {sH1S} offen {p}"))
    poll("L_p1", lambda p: A(f"buffer_load_dwordx4 v[{G0}:{G0+3}], {vH1G}, {WS_}, {sH1G} offen {p}"), [f"v{G0+3}"], tag=sTG2, loc=True)
    stamp(6)
    A(f"v_mov_b32 v{G0+3}, 0\nv_permlane32_swap_b32 v{G0}, v{G0+1}\nv_permlane32_swap_b32 v{G0+2}, v{G0+3}")
    A(f"v_add_f32 v{G0}, v{G0}, v{G0+1}\nv_add_f32 v{G0+2}, v{G0+2}, v{G0+3}\nv_permlane16_swap_b32 v{G0}, v{G0+2}\nv_add_f32 {vZK}, v{G0}, v{G0+2}")
    allred_lo("v_add_f32", [vZK], 3)
    A(f"s_cmp_eq_u32 {sBLK}, 32\ns_cbranch_scc1 L_pack")
    for i in range(NSEG-1): A(f"s_mov_b32 {sF[i]}, {sF[i+1]}")
    A(f"s_add_u32 {sTG2}, {sTG2}, 1\ns_xor_b32 {sH1S}, {sH1S}, 1024\ns_xor_b32 {sH1G}, {sH1G}, 1024")
    A(f"s_lshr_b32 {sT0}, {sBLK}, 1\ns_xor_b32 {sT0}, {sT0}, {sOWN}\ns_bitcmp1_b32 {sT0}, 0\ns_cbranch_scc0 L_notmine")
    A(f"v_mov_b32 v{ZM}, v{ZM+1}\nv_mov_b32 v{ZM+1}, v{ZM+2}\nv_mov_b32 v{ZM+2}, {vZK}\ns_cmp_eq_u32 {sBLK}, 28\ns_cbranch_scc0 L_next\ns_branch L_send")
    A(f"L_notmine:\nv_mov_b32 v{ZS}, v{ZS+1}\nv_mov_b32 v{ZS+1}, v{ZS+2}\nv_mov_b32 v{ZS+2}, {vZK}\ns_cmp_ge_u32 {sBLK}, 28\ns_cbranch_scc0 L_next")
    A("L_send:")
    if "x" in skip: A("s_branch L_next")
    A(f"s_mov_b32 exec_lo, 0x01010101\ns_mov_b32 exec_hi, 0x01010101")
    A(f"buffer_store_dwordx4 v[{ZS}:{ZS+3}], {vXA}, {WS_}, {sXS} offen sc1\ns_mov_b64 exec, -1\ns_add_u32 {sXS}, {sXS}, 128")
    A("s_branch L_next")
    A("L_vmid:")
    A(f"s_cmp_lg_u32 {sBLK}, {lsb}\ns_cbranch_scc1 L_nols")
    A(f"s_mul_i32 {sT1}, {sG}, {GS*128}\ns_add_u32 {sT1}, {sT1}, {WS_LS}\ns_add_u32 {sT3}, {sT1}, 4096")
    def gl(p):
        for r in range(NLS): A(f"buffer_load_dwordx4 v[{G0+4*r}:{G0+4*r+3}], {vLS}, {WS_}, {sT1 if LP*128*r < 4096 else sT3} offen offset:{LP*128*r % 4096} {p}")
    poll("L_ls", gl, [f"v{G0+4*r+e}" for r in range(NLS) for e in (1, 3)], sleep=16, first="")
    hn = NLS//2 if PAIR else NLS
    for h, t in ((0, t0), (1, t1))[:2 if PAIR else 1]:
        A(f"v_xor_b32 {t}, {sLOC}, v{G0+4*hn*h+2}")
        for r in range(1, hn): A(f"v_bitop3_b32 {t}, v{G0+4*(hn*h+r)+2}, {sLOC}, {t} bitop3:0xbe")
    if PAIR: A(f"s_bitcmp1_b32 {sX}, 0\ns_cselect_b64 vcc, -1, 0\nv_cndmask_b32 {t0}, {t0}, {t1}, vcc")
    A(f"v_cmp_ne_u32 vcc, 0, {t0}\ns_cmp_eq_u64 vcc, 0\ns_cselect_b32 {sLOC}, {local}, 0")
    A(f"v_max_f32 {t0}, v{G0}, v{G0+4}")
    for r in range(2, NLS, 2): A(f"v_max3_f32 {t0}, {t0}, v{G0+4*r}, v{G0+4*r+4}")
    allred_lo("v_max_f32", [t0], LLP)
    for r in range(NLS): A(f"v_sub_f32 v{G0+4*r}, v{G0+4*r}, {t0}")
    for r in range(NLS): A(f"v_exp_f32 v{G0+4*r}, v{G0+4*r}")
    for r in range(1, NLS): A(f"v_add_f32 v{G0}, v{G0}, v{G0+4*r}")
    allred_lo("v_add_f32", [f"v{G0}"], LLP)
    A(f"v_sub_f32 {t0}, {vM}, {t0}\nv_exp_f32 {t0}, {t0}\nv_rcp_f32 {t1}, v{G0}\nv_mul_f32 {t0}, {t0}, {t1}")
    for k in range(NSEG): A(f"v_readlane_b32 {sF[k]}, {t0}, {LP*k}")
    A(f"s_lshl_b32 {sT0}, {sLIN}, 11\ns_add_u32 {sT0}, {sT0}, {WS_QS}\ns_mov_b32 exec_lo, 0x3f3f3f3f\ns_mov_b32 exec_hi, 0x3f3f3f3f")
    store2("L_s0", lambda p: A(f"buffer_store_dwordx4 v[48:51], v5, {WS_}, {sT0} offen offset:1024 {p}"))
    A("s_mov_b64 exec, -1\ns_branch L_next")
    A("L_nols:")
    A(f"s_cmp_lg_u32 {sBLK}, {lsb+2}\ns_cbranch_scc1 L_nogu2")
    A(f"v_lshlrev_b32 v6, 11, {vA}\nv_lshl_add_u32 v6, {vB}, 4, v6\nv_mov_b32 v{G1}, 0\nv_mov_b32 v{G1+1}, 0")
    A(f"s_lshr_b32 {sT1}, {sLIN}, 3\ns_lshl_b32 {sT1}, {sT1}, 14\ns_mul_i32 {sT0}, {sS}, 96\ns_add_u32 {sT1}, {sT1}, {sT0}\ns_add_u32 {sT1}, {sT1}, {WS_QS}")
    A(f"s_mov_b32 exec_lo, 0x3f3f3f3f\ns_mov_b32 exec_hi, 0x3f3f3f3f")
    poll("L_gu", lambda p: A(f"buffer_load_dwordx4 v[{G1}:{G1+3}], v6, {WS_}, {sT1} offen offset:1024 {p}"), [f"v{G1+2}", f"v{G1+3}"], sleep=psleep, loc=True)
    A("s_mov_b64 exec, -1")
    for k in range(2): A(f"v_add_f32_dpp v{G1+k}, v{G1+k}, v{G1+k} row_ror:8 {DPP}")
    allred_top("v_add_f32", [f"v{G1}", f"v{G1+1}"], [t0, t1])
    A(f"v_cvt_pk_bf16_f32 v{G1}, 0, v{G1}\nv_cvt_pk_bf16_f32 v{G1+1}, 0, v{G1+1}")
    A(f"v_cmp_lt_f32 vcc, 0, v{G1}\nv_cndmask_b32 {t0}, 0, 1.0, vcc\nv_mul_f32 {t3}, v{G1}, {t0}\nv_mul_f32 {t3}, {t3}, v{G1+1}\nv_cvt_pk_bf16_f32 {t3}, {t3}, 0")
    A(f"v_mov_b32_dpp {t0}, {t3} quad_perm:[1,1,3,3] {DPP}\nv_lshl_or_b32 {t3}, {t0}, 16, {t3}")
    for i in range(3): A(f"v_readlane_b32 {sUU[i]}, {t3}, {2*i}")
    A("s_branch L_dot")
    A("L_nogu2:")
    A(f"s_cmp_lg_u32 {sBLK}, 31\ns_cbranch_scc1 L_nopf")
    if pf is not None:
        for r in range(4):
            A(f"s_add_u32 {sT0}, {sYG}, {8*4096*r}\nbuffer_load_dwordx4 v[{G0+8+4*r}:{G0+8+4*r+3}], {vYG}, {WS_}, {sT0} offen {pf}")
        A(f"buffer_load_dwordx4 v[{G0+24}:{G0+27}], v7, {WS_}, {sH1S} offen {pf}")
    A("L_nopf:")
    A(f"s_cmp_lt_u32 {sBLK}, 29\ns_cbranch_scc1 L_next\ns_add_u32 {sT0}, {sBLK}, {sOWN}\ns_cmp_gt_u32 {sT0}, 31\ns_cbranch_scc1 L_last")
    if "x" not in skip:
        poll("L_px", lambda p: A(f"buffer_load_dwordx4 v[{G0}:{G0+3}], {vXA}, {WS_}, {sXG} offen {p}"), [f"v{G0+3}"], sleep=psleep)
    for k in range(3): A(f"v_add_f32 v{ZM+k}, v{ZM+k}, v{G0+k}")
    A(f"s_add_u32 {sXG}, {sXG}, 128\ns_mov_b32 {sFL}, 3\ns_cmp_eq_u32 {sBLK}, 29\ns_cbranch_scc1 L_take\ns_mov_b32 {sFL}, 1\nv_mov_b32 v{ZM}, v{ZM+2}")
    A(f"L_take:\nv_mov_b32 {vZK}, v{ZM}\nv_mov_b32 v{ZM}, v{ZM+1}\nv_mov_b32 v{ZM+1}, v{ZM+2}")
    A("L_pack:")
    A(f"v_mov_b32_dpp v{G0+1}, {vZK} row_ror:8 {DPP}\nv_cvt_pk_bf16_f32 v{G0}, {vZK}, v{G0+1}")
    for jj, ln in ((0, 0), (1, 32), (2, 16)): A(f"v_readlane_b32 {sUU[jj]}, v{G0}, {ln}")
    A("L_dot:")
    for p in range(3):
        for c in range(10): A(f"v_dot2c_f32_bf16 v{YY+c}, {sUU[p]}, v{P1+10*p+c}")
    A(f"s_cmp_eq_u32 {sBLK}, 32\ns_cbranch_scc1 L_tail")
    A("L_prep:")
    for r in range(6):
        for d in range(5): A(f"ds_read_b32 v{P0+5*r+d}, {vWA} offset:{1280*r+4*d}")
        if r % 2: A("s_waitcnt lgkmcnt(0)")
    A(f"v_add_u32 {vWA}, 7680, {vWA}\ns_mov_b32 {sT1}, 0x05040100\ns_mov_b32 {sT3}, 0x07060302")
    for p in range(3):
        for d in range(5):
            A(f"v_perm_b32 v{P1+10*p+2*d}, v{P0+10*p+5+d}, v{P0+10*p+d}, {sT1}\nv_perm_b32 v{P1+10*p+2*d+1}, v{P0+10*p+5+d}, v{P0+10*p+d}, {sT3}")
    A(f"s_sub_u32 {sFL}, {sFL}, 1\ns_cmp_gt_i32 {sFL}, 0\ns_cbranch_scc1 L_take")
    A("L_last:")
    A(f"s_cmp_lg_u32 {sBLK}, 31\ns_cbranch_scc1 L_next\ns_setprio 3\ns_waitcnt vmcnt(0)")
    A("L_next:")
    A(f"s_add_u32 {sBLK}, {sBLK}, 1\ns_waitcnt lgkmcnt(0)\ns_barrier\ns_branch L_blk")
    A("L_kpart:\ns_setprio 0")
    A(f"s_and_b32 {sT0}, {sBLK}, {BPS-1}\ns_cbranch_scc1 L_nosm")
    for w in range(4):
        for k in range(BPS): A(f"ds_read_b32 v{G0+BPS*w+k}, {vSC} offset:{4096*w+256*k}")
        if w == 1: A("s_waitcnt lgkmcnt(0)")
    A("s_waitcnt lgkmcnt(0)")
    for i in range(NR): A(f"v_cvt_pk_bf16_f32 v{G0+i}, 0, v{G0+i}")
    for i in range(NR): A(f"v_mul_f32 v{G0+i}, {sSCALE}, v{G0+i}")
    for i in range(NR): A(f"v_cvt_pk_bf16_f32 v{G0+i}, 0, v{G0+i}")
    for i in range(NR): A(f"v_mul_f32 v{G0+i}, {sLOG2E}, v{G0+i}")
    A(f"v_max_f32 {t0}, v{G0}, v{G0+1}")
    for i in range(2, NR, 2): A(f"v_max3_f32 {t0}, {t0}, v{G0+i}, v{G0+i+1}")
    allred_lo("v_max_f32", [t0]); allred_top("v_max_f32", [t0], [t1])
    for i in range(NR): A(f"v_sub_f32 v{G0+i}, v{G0+i}, {t0}")
    for i in range(NR): A(f"v_exp_f32 v{G0+i}, v{G0+i}")
    A(f"v_add_f32 {t1}, v{G0}, v{G0+1}")
    for i in range(2, NR): A(f"v_add_f32 {t1}, {t1}, v{G0+i}")
    for i in range(NR): A(f"v_cvt_pk_bf16_f32 v{G0+i}, v{G0+i}, 0")
    for w in range(4):
        for k in range(BPS): A(f"ds_write_b32 {vSC}, v{G0+BPS*w+k} offset:{4096*w+256*k}")
        if w == 1: A("s_waitcnt lgkmcnt(0)")
    allred_lo("v_add_f32", [t1]); allred_top("v_add_f32", [t1], [t2])
    A(f"v_log_f32 {t3}, {t1}\nv_mov_b32 {t2}, {t0}\nv_add_f32 {t3}, {t3}, {t0}")
    A(f"ds_write_b64 {vML}, v[{T+2}:{T+3}]")
    A(f"v_add_u32 {vSC}, {256*BPS}, {vSC}\nv_add_u32 {vML}, 8, {vML}")
    A("L_nosm:")
    A(f"s_cmp_ge_u32 {sBLK}, {0 if 'q' in skip else NSEG-1}\ns_cbranch_scc1 L_noq")
    A("L_gq0:")
    def gq(p):
        for s in range(8):
            if s % 2 == 0: A(f"s_add_u32 {sT0}, {sHD}, {2048*s}")
            A(f"buffer_load_dwordx4 v[{G1+4*s}:{G1+4*s+3}], v7, {WS_}, {sT0} offen offset:{2048*(s%2)} {p}")
    poll("L_gq", gq, [f"v{G1+4*s+3}" for s in range(8)], first="", sleep=psleep)
    for s in range(1, 8):
        for k in range(3): A(f"v_add_f32 v{G1+k}, v{G1+k}, v{G1+4*s+k}")
    for k in range(3): A(f"v_cvt_pk_bf16_f32 v{G1+k}, v{G1+k}, 0")
    for k in range(3): A(f"ds_write_b16 {vQW}, v{G1+k} offset:{L_QB+128*k}")
    A(f"v_add_u32 {vQW}, 384, {vQW}\ns_add_u32 {sHD}, {sHD}, 16384")
    A(f"s_cmp_lt_i32 {sBLK}, 0\ns_cselect_b32 {sBLK}, 0, {sBLK}\ns_cbranch_scc1 L_gq0")
    if timed:
        A(f"s_cmp_lg_u32 {sBLK}, 0\ns_cbranch_scc1 L_next"); stamp(4)
    A("s_branch L_next")
    A("L_noq:")
    A(f"s_cmp_lg_u32 {sBLK}, {NSEG+1}\ns_cbranch_scc1 L_nogu")
    A(f"v_mul_u32_u24 {vWA}, 20, {vLANE}\nv_add_u32 {vWA}, {L_W}, {vWA}")
    A(f"v_lshrrev_b32 {t0}, 4, {vLANE}\nv_lshl_add_u32 {t0}, {t0}, 3, {vB}\nv_and_b32 {t1}, 8, {vLANE}\nv_lshlrev_b32 {t1}, 1, {t1}")
    A(f"v_lshl_add_u32 {vH1S}, {t0}, 5, {t1}\nv_lshl_add_u32 {vH1G}, {t0}, 11, {t1}")
    A(f"s_lshl_b32 {sH1S}, {sLIN}, 11\ns_add_u32 {sH1S}, {sH1S}, {WS_H1}")
    A(f"s_lshl_b32 {sH1G}, {sX}, 16\ns_lshl_b32 {sT0}, {sC}, 5\ns_add_u32 {sH1G}, {sH1G}, {sT0}\ns_add_u32 {sH1G}, {sH1G}, {WS_H1}")
    A(f"v_mul_u32_u24 {vYW}, 40, {vLANE}\nv_mul_u32_u24 {vYR}, 80, {vA}\nv_mad_u32_u24 {vYR}, {vB}, 12, {vYR}\nv_add_u32 {vYR}, {L_QP}, {vYR}")
    A(f"v_lshlrev_b32 {t0}, 4, {vB}\nv_lshl_add_u32 {vYG}, {vA}, 12, {t0}\nv_lshlrev_b32 {vXA}, 4, {vA}\nv_mov_b32 v41, {sTAG}\nv_mov_b32 v{ZS+3}, {sTAG}")
    A(f"s_lshl_b32 {sYS}, {sLIN}, 12\ns_add_u32 {sYS}, {sYS}, {WS_H2}")
    A(f"s_lshl_b32 {sYG}, {sX}, 17\ns_lshl_b32 {sT0}, {sC}, 7\ns_add_u32 {sYG}, {sYG}, {sT0}\ns_add_u32 {sYG}, {sYG}, {WS_H2}")
    A(f"s_lshl_b32 {sH3G}, {sC}, 10\ns_add_u32 {sH3G}, {sH3G}, {WS_H3}\ns_lshl_b32 {sT0}, {sX}, 7\ns_add_u32 {sH3S}, {sH3G}, {sT0}")
    A(f"s_lshl_b32 {sXS}, {sLIN}, 8\ns_add_u32 {sXS}, {sXS}, {WS_XX}\ns_xor_b32 {sXG}, {sXS}, {32*256}")
    A(f"s_add_u32 {sTG2}, {sTAG}, 1\ns_mov_b32 {sFL}, 0")
    A(f"v_mul_u32_u24 {t0}, 3, {vB}\ns_mul_i32 {sT0}, {sC}, 20\nv_add_lshl_u32 {t0}, {t0}, {sT0}, 1\nv_mov_b32 {t2}, {OOB}")
    A(f"v_cmp_gt_u32 vcc, 7, {vB}\nv_cndmask_b32 v{vOUT}, {t2}, {t0}, vcc\nv_cmp_gt_u32 vcc, 6, {vB}\nv_cndmask_b32 v{vOUT+1}, {t2}, {t0}, vcc")
    A(f"v_mov_b32 {t0}, {WS_EP}\nv_or_b32 {t1}, s2, {vLANE}\nv_cmp_eq_u32 vcc, 0, {t1}\nv_cndmask_b32 v{vOUT+2}, {t2}, {t0}, vcc")
    A(f"buffer_load_ushort v{XV}, v{vOUT}, {X_}, 0 offen\nbuffer_load_ushort v{XV+1}, v{vOUT}, {X_}, 0 offen offset:2\nbuffer_load_ushort v{XV+2}, v{vOUT+1}, {X_}, 0 offen offset:4")
    for i in range(10): A(f"v_mov_b32 v{YY+i}, 0")
    for g in range(4): A(f"v_mov_b32 v{YT+4*g+3}, {sTAG}")
    A("s_waitcnt vmcnt(0)")
    for e in range(3): A(f"v_lshlrev_b32 v{XV+e}, 16, v{XV+e}")
    srd_lo(X_, pOUT)
    A("s_branch L_prep")
    A("L_nogu:")
    A(f"s_cmp_lg_u32 {sBLK}, 16\ns_cbranch_scc1 L_next")
    A(f"v_lshrrev_b32 v10, {LLP}, {vLANE}\nv_lshlrev_b32 v10, 3, v10\ns_waitcnt lgkmcnt(0)\nds_read_b64 v[{T+2}:{T+3}], v10 offset:{L_ML}")
    A(f"s_lshl_b32 {sT1}, {sLIN}, 7\ns_add_u32 {sT1}, {sT1}, {WS_LS}\nv_and_b32 v11, {LP-1}, {vLANE}\nv_cmp_eq_u32 vcc, 0, v11")
    A(f"s_waitcnt lgkmcnt(0)\nv_mov_b32 {vM}, {t2}\nv_mov_b32 {t0}, {t3}\nv_mov_b32 {t1}, {sTAG}\nv_mov_b32 {t3}, {sTAG}")
    A(f"s_getreg_b32 {sLOC}, hwreg(HW_REG_XCC_ID)\nv_mov_b32 {t2}, {sLOC}\nv_lshlrev_b32 v10, 1, v10\ns_mov_b64 exec, vcc")
    A(f"buffer_store_dwordx4 v[{T}:{T+3}], v10, {WS_}, {sT1} offen sc1\ns_mov_b64 exec, -1")
    A(f"v_lshl_add_u32 {vLS}, v11, 7, v10\ns_branch L_next")
    A("L_tail:")
    for d in range(5): A(f"ds_write_b64 {vYW}, v[{YY+2*d}:{YY+2*d+1}] offset:{L_QP+8*d}")
    for g in range(4):
        A(f"ds_read2_b32 v[{YT+4*g}:{YT+4*g+1}], {vYR} offset0:{(160*g) % 320} offset1:{(160*g) % 320 + 1}\nds_read_b32 v{YT+4*g+2}, {vYR} offset:{(640*g) % 1280 + 8}")
        if g == 1: A(f"v_add_u32 {vYR}, 1280, {vYR}")
    def ys(p):
        for g in range(4):
            A(f"s_waitcnt lgkmcnt({0 if timed else 6-2*g})")
            A(f"buffer_store_dwordx4 v[{YT+4*g}:{YT+4*g+3}], v7, {WS_}, {sYS} offen offset:{1024*g} {p}")
    store2("L_s2", ys)
    stamp(7)
    def g2(p):
        for r in range(4):
            A(f"s_add_u32 {sT0}, {sYG}, {8*4096*r}\nbuffer_load_dwordx4 v[{G0+4*r}:{G0+4*r+3}], {vYG}, {WS_}, {sT0} offen {p}")
    poll("L_p2", g2, [f"v{G0+4*r+3}" for r in range(4)], loc=True)
    if stamps: A("s_memrealtime s[42:43]")
    for k in range(3): A(f"v_add_f32 v{G0+k}, v{G0+k}, v{G0+4+k}\nv_add_f32 v{G0+8+k}, v{G0+8+k}, v{G0+12+k}")
    for k in range(3): A(f"v_add_f32 v{G0+k}, v{G0+k}, v{G0+8+k}")
    def red_hi(b):
        for k in range(3): A(f"v_add_f32_dpp v{b+k}, v{b+k}, v{b+k} row_ror:8 {DPP}")
        allred_top("v_add_f32", [f"v{b+k}" for k in range(3)], [f"v{b+4+k}" for k in range(3)])
    red_hi(G0)
    A(f"s_cmp_eq_u32 {sS}, {sX}\ns_cbranch_scc1 L_red")
    A(f"s_mov_b64 exec, 0xff\nbuffer_store_dwordx4 v[{G0}:{G0+3}], v7, {WS_}, {sH3S} offen sc1\ns_mov_b64 exec, -1\ns_branch L_done")
    A("L_red:")
    BUF = [G0 + 16 + 4*k for k in range(np3)]
    for b in BUF:
        for k in range(3): A(f"v_mov_b32 v{b+k}, v{G0+k}")
    A(f"v_cmp_ne_u32 vcc, {sX}, {vA}\ns_mov_b32 {sT2}, {spin}\ns_mov_b64 exec, vcc")
    def l3(k): A(f"buffer_load_dwordx4 v[{BUF[k]}:{BUF[k]+3}], v7, {WS_}, {sH3G} offen sc1")
    for k in range(np3-1):
        l3(k); A(f"s_sleep {s3}")
    A("L_p3:")
    for k in range(np3):
        l3((k + np3 - 1) % np3)
        A(f"s_waitcnt vmcnt({np3-1})\nv_cmp_ne_u32 vcc, {sTAG}, v{BUF[k]+3}\ns_cbranch_vccz L_p3d{k}")
    A(f"s_sub_u32 {sT2}, {sT2}, 1\ns_cbranch_scc0 L_p3")
    for k in reversed(range(np3)):
        A(f"L_p3d{k}:\ns_mov_b64 exec, -1")
        for e in range(3): A(f"v_add_f32_dpp v{G1+e}, v{BUF[k]+e}, v{BUF[k]+e} row_ror:8 {DPP}")
        if k: A("s_branch L_p3e")
    A("L_p3e:")
    if stamps: A("s_memrealtime s[48:49]")
    allred_top("v_add_f32", [f"v{G1+k}" for k in range(3)], [f"v{G1+4+k}" for k in range(3)])
    for e in range(3): A(f"v_add_f32 v{G1+e}, v{G1+e}, v{XV+e}")
    for e in range(3): A(f"v_cvt_pk_bf16_f32 v{G1+e}, v{G1+e}, 0")
    A("s_mov_b64 exec, 0xff")
    A(f"buffer_store_short v{G1}, v{vOUT}, {X_}, 0 offen\nbuffer_store_short v{G1+1}, v{vOUT}, {X_}, 0 offen offset:2\nbuffer_store_short v{G1+2}, v{vOUT+1}, {X_}, 0 offen offset:4")
    A(f"buffer_store_dword v41, v{vOUT+2}, {WS_}, 0 offen")
    A("s_mov_b64 exec, -1")
    A("L_done:")
    if diag is not None:
        wave, st, mult = diag
        stamp(8)
        A(f"s_cmp_lg_u32 s2, 0\ns_cbranch_scc1 L_end\ns_cmp_lg_u32 {sW}, {wave}\ns_cbranch_scc1 L_end")
        A(f"s_waitcnt lgkmcnt(0)\ns_sub_u32 {sT0}, s{sST+2*st}, s{sST}\ns_mul_i32 {sT0}, {sT0}, {mult}\ns_add_u32 {sT0}, {sT0}, 30000")
        A(f"s_min_u32 {sT0}, {sT0}, 200000")
        A(f"L_dg:\ns_memrealtime s[72:73]\ns_waitcnt lgkmcnt(0)\ns_sub_u32 {sT1}, s72, s{sST}\ns_cmp_lt_u32 {sT1}, {sT0}\ns_cbranch_scc1 L_dg")
    if stamps:
        stamp(8)
        A(f"s_mul_i32 {sT0}, s2, 5\ns_add_u32 {sT0}, {sT0}, {sW}\ns_lshl_b32 {sT0}, {sT0}, 6\ns_add_u32 {sT0}, {sT0}, {WS_ST}")
        A(f"s_getreg_b32 {sT1}, hwreg(HW_REG_XCC_ID)")
        A("s_waitcnt lgkmcnt(0)\nv_mov_b32 v4, 0")
        for i in range(9): A(f"v_writelane_b32 v4, s{sST+2*i}, {i}")
        A(f"v_writelane_b32 v4, s42, 9\nv_writelane_b32 v4, s48, 10\nv_writelane_b32 v4, s50, 11\nv_writelane_b32 v4, s47, 12")
        A(f"v_writelane_b32 v4, {sT1}, 15")
        A(f"v_lshlrev_b32 v5, 2, {vLANE}\ns_mov_b64 exec, 0xffff")
        A(f"buffer_store_dword v4, v5, {WS_}, {sT0} offen")
    A("L_end:\ns_endpgm")
    A('.section .rodata,"a"\n.p2align 6')
    A(f".amdhsa_kernel {KN}")
    nv4 = (NV+3)//4*4
    A(f".amdhsa_next_free_vgpr {nv4}\n.amdhsa_next_free_sgpr 102\n.amdhsa_accum_offset {nv4}")
    A(".amdhsa_group_segment_fixed_size 0\n.amdhsa_kernarg_size 96\n.amdhsa_user_sgpr_count 2")
    A(".amdhsa_user_sgpr_kernarg_segment_ptr 1\n.amdhsa_system_sgpr_workgroup_id_x 1")
    A(".amdhsa_float_denorm_mode_32 3\n.end_amdhsa_kernel")
    return A.finish()

if __name__ == "__main__":
    kw = eval("dict(" + (sys.argv[2] if len(sys.argv) > 2 else "") + ")")
    open(sys.argv[1], "w").write(gen(**kw))
```

```python
import sys, os
sys.path.insert(0, os.path.dirname(os.path.abspath(__file__)))
from asmlib import Asm
KN = "parallel_sum__mha_block_cached__glu_gated_reglu__decode_kernel"
HEADER = open("parallel_sum__mha_block_cached__glu_gated_reglu__decode.s.ref").read().split("; Override launch")[0]

HB = 32768*384
TB = 32*HB
WS_EP, WS_LS, WS_H3, WS_XX, WS_PR, WS_QS, WS_H1, WS_ST, WS_H2, WS_SIZE = 0, 0x8000, 0x10000, 0x20000, 0x40000, 0x80000, 0x100000, 0x200000, 0x280000, 0x400000
OOB = 0x40000000
SPIN = 1 << 20

def gen(NSEG=8, G=6, F=5, FH=6, RB=8, pace=5, deep=0, per=12, bs=2, fb=22, fbo=26, pre0=2, pre1=6, trig=13, skip='', xmap=1, xd=(6,5,3,1,-1,-3,-5,-6), xp=2, PI=(6,7,5,4,3,2,1,0), xs=0, np3=1, s3=6, dfirst=1, ab=0, psleep=4,
        spin=SPIN, local=1, lp="nt", pf="sc1", own=1, lsb=17, stamps=False, diag=None):
    A = Asm()
    NG = 32//NSEG; GS = 8*NSEG; BPS = 16//NSEG; LGS = GS.bit_length()-1
    PAIR = NSEG == 8
    TSTR = GS*4*3072
    assert G < RB and 24 % RB == 0 and NSEG == 8 and G == 6
    timed = stamps or diag is not None
    L_OP = 0; L_W = 8192; L_YP = L_W + 15360; L_U = L_YP + 12800 + 64; L_QP = L_U + 128; L_QB = L_QP + 6400; L_ML = L_QB + 384*NSEG
    L_CT = L_ML + 64; L_SC = L_CT + 64; L_SIZE = L_SC + 16384 + 256
    assert L_SC < 65536
    sW, sHQ, sS, sG, sMEM = "s3", "s4", "s5", "s6", "s7"
    KV_, WS_, TA_, TB_, TC_, X_ = "s[8:11]", "s[16:19]", "s[20:23]", "s[24:27]", "s[28:31]", "s[32:35]"
    mB1, mB0 = "s[12:13]", "s[14:15]"
    pX, pK, pV, pWQ, pWO, pWG, pWU, pWD, pOUT, pDBG, pWS = 36, 38, 40, 42, 44, 48, 50, 52, 54, 56, 58
    sOFF, sOFF0, sIB, sBLK, sLIN, sX, sC, sT0, sT1, sT2, sT3, sOWN = [f"s{r}" for r in range(60, 72)]
    sTAG = "s46"
    sST = 84
    vLANE, vKV, vA, vB = "v0", "v1", "v2", "v3"
    ACC, Q = 8, 32
    T = 44
    RING = 56
    PB = RING + 48
    NV = PB + 96
    t0, t1, t2, t3 = f"v{T}", f"v{T+1}", f"v{T+2}", f"v{T+3}"
    def stamp(i):
        if timed: A(f"s_memrealtime s[{sST+2*i}:{sST+2*i+1}]")
    def srd_hi(name, size):
        b = int(name[2:name.index(":")]); A(f"s_mov_b32 s{b+2}, {size}\ns_mov_b32 s{b+3}, 0x20000")
    def srd_lo(name, ptr):
        b = int(name[2:name.index(":")]); A(f"s_mov_b64 s[{b}:{b+1}], s[{ptr}:{ptr+1}]")
    def srd(name, ptr, size): srd_lo(name, ptr); srd_hi(name, size)
    DPP = "row_mask:0xf bank_mask:0xf"
    PATS = ("quad_perm:[1,0,3,2]", "quad_perm:[2,3,0,1]", "row_half_mirror", "row_mirror")
    def allred_lo(op, vs, n=4):
        for pat in PATS[:n]:
            for v in vs: A(f"{op}_dpp {v}, {v}, {v} {pat} {DPP}")
    def allred_top(op, vs, ts):
        for sw in ("v_permlane16_swap_b32", "v_permlane32_swap_b32"):
            for v, t in zip(vs, ts): A(f"v_mov_b32 {t}, {v}")
            for v, t in zip(vs, ts): A(f"{sw} {t}, {v}")
            for v, t in zip(vs, ts): A(f"{op} {v}, {v}, {t}")
    def redscat(base, n):
        for g in range(n):
            for e in range(4): A(f"v_permlane32_swap_b32 v{base+8*g+e}, v{base+8*g+e+4}")
        for g in range(n):
            for e in range(4): A(f"v_add_f32 v{base+8*g+e}, v{base+8*g+e}, v{base+8*g+e+4}")
        for g in range(n):
            for e in range(2): A(f"v_permlane16_swap_b32 v{base+8*g+e}, v{base+8*g+e+2}")
        for g in range(n):
            for e in range(2): A(f"v_add_f32 v{base+8*g+e}, v{base+8*g+e}, v{base+8*g+e+2}")
        for g in range(n):
            A(f"v_add_f32_dpp v{base+8*g}, v{base+8*g}, v{base+8*g} row_ror:8 row_mask:0xf bank_mask:0x3")
        for g in range(n):
            A(f"v_add_f32_dpp v{base+8*g}, v{base+8*g+1}, v{base+8*g+1} row_ror:8 row_mask:0xf bank_mask:0xc")
    def redscat_lo(bases):
        for S in bases:
            for e in range(4): A(f"v_add_f32_dpp v{S+e}, v{S+e}, v{S+e} row_half_mirror row_mask:0xf bank_mask:0x5")
        for S in bases:
            for e in range(4): A(f"v_add_f32_dpp v{S+e}, v{S+e+4}, v{S+e+4} row_half_mirror row_mask:0xf bank_mask:0xa")
        for S in bases:
            for e in range(4): A(f"v_add_f32_dpp v{S+e}, v{S+e}, v{S+e} quad_perm:[2,3,0,1] {DPP}")
        for S in bases:
            for e in range(2): A(f"v_cndmask_b32 v{S+e}, v{S+e}, v{S+e+2}, {mB1}")
        for S in bases:
            for e in range(2): A(f"v_add_f32_dpp v{S+e}, v{S+e}, v{S+e} quad_perm:[1,0,3,2] {DPP}")
        for S in bases: A(f"v_cndmask_b32 v{S}, v{S}, v{S+1}, {mB0}")
    def axpy(acc, data, n, pl, ph):
        for i in range(n):
            A(f"v_dot2c_f32_bf16 v{acc+2*i}, v{data+i}, {pl}\nv_dot2c_f32_bf16 v{acc+2*i+1}, v{data+i}, {ph}")
    def ld(reg, j): A(f"buffer_load_dwordx4 v[{reg}:{reg+3}], {vKV}, {KV_}, {sOFF} offen offset:{128*j} nt")
    uid = [0]
    PILUT = sum(p << (4*i) for i, p in enumerate(PI))
    assert PI[0] != 7 and sorted(PI) == list(range(8))
    def next_block(last):
        uid[0] += 1; u = uid[0]
        A(f"s_add_u32 {sIB}, {sIB}, 1\ns_and_b32 {sT0}, {sIB}, {BPS-1}\ns_cbranch_scc1 L_nb{u}")
        if not last:
            A(f"s_add_u32 {sOFF}, {sOFF}, {(NG-1)*HB}")
            A(f"s_cmp_lg_u32 {sIB}, 16\ns_cbranch_scc1 L_nb{u}")
            A(f"s_mov_b64 s[8:9], s[{pV}:{pV+1}]\ns_add_u32 {sOFF}, {sOFF0}, {PI[0]*NG*HB}")
        else:
            A(f"s_lshl_b32 {sT0}, {sIB}, 1\ns_lshr_b32 {sT0}, {hex(PILUT)}, {sT0}\ns_and_b32 {sT0}, {sT0}, 7")
            A(f"s_mul_i32 {sOFF}, {sT0}, {NG*HB}\ns_add_u32 {sOFF}, {sOFF}, {sOFF0}")
        A(f"L_nb{u}:")
    def lev(n, f):
        fr = f - int(f)
        return int(f) + (1 if int((n+1)*fr + 1e-9) != int(n*fr + 1e-9) else 0)
    cps = list(range(0, 24, per)) if fb else []
    assert all(c + G + 1 <= 23 for c in cps) and per > G
    PR_, sTHR, vPC, vPO, vPL, vPS = TC_, "s72", "v52", "v53", "v54", "v55"
    def slot(n, last=False):
        uid[0] += 1; u = uid[0]
        fi, fh = lev(n, F), lev(n, FH)
        assert fi <= fh <= G
        def cnt(x): return x - 1 + 2*sum(1 for c in cps if 0 < n - c <= x)
        m = n + G
        if m % 3 == 0:
            A(f"s_add_u32 {sOFF}, {sOFF}, {TSTR}")
            if m == 24: next_block(last)
        if fi < fh: A(f"s_cbranch_vccnz L_dp{u}\ns_waitcnt vmcnt({cnt(fi)})\nL_dp{u}:")
        A(f"s_waitcnt vmcnt({cnt(fh)})")
        if last and m >= 24: A(f"s_cmp_eq_u32 {sIB}, 32\ns_cbranch_scc1 L_wl{m-24}")
        ld(RING + 4*(m % RB), m % 3)
        if last and m >= 24: A(f"L_wb{m-24}:")
        if n - G - 1 in cps:
            if xd:
                A(f"v_readlane_b32 {sT1}, {vPO}, 32\ns_sub_u32 {sT1}, {sT1}, {sTAG}\ns_cmp_lt_u32 {sT1}, 33\ns_cselect_b32 {sTHR}, {sT1}, {sTHR}")
            A(f"v_sub_u32 {vPO}, {vPO}, {vPC}\nv_cmp_gt_u32 vcc, 64, {vPO}\ns_bcnt1_i32_b32 {sT0}, vcc_lo")
            A(f"s_cmp_gt_u32 {sT0}, {sTHR}\ns_cselect_b64 vcc, -1, 0")
            if stamps: A(f"s_and_b32 {sT0}, vcc_lo, 1\ns_add_u32 s47, s47, {sT0}")
            if last and deep: A(f"s_cmp_ge_u32 {sBLK}, {32-deep}\ns_cselect_b64 vcc, -1, vcc")
        if n in cps:
            A(f"v_add_u32 {vPC}, 1, {vPC}\nbuffer_store_dword {vPC}, {vPS}, {PR_}, 0 offen\nbuffer_load_dword {vPO}, {vPL}, {PR_}, 0 offen nt")
    def qk4(acc, data, j):
        for e in range(4):
            if j == 0 and e == 0: A(f"v_dot2_f32_bf16 v{acc}, v{data}, v{Q}, 0")
            else: A(f"v_dot2_f32_bf16 v{acc}, v{data+e}, v{Q+4*j+e}, v{acc}")

    A(HEADER.rstrip())
    A(f"; @launch grid=(256,1,1) block=(320,1,1) lds={L_SIZE}")
    A('.amdgcn_target "amdgcn-amd-amdhsa--gfx950"\n.text')
    A(f".globl {KN}\n.p2align 8\n.type {KN},@function\n{KN}:")
    A("s_cmp_ge_u32 s2, 256\ns_cbranch_scc1 L_end")
    A("s_load_dwordx16 s[36:51], s[0:1], 0\ns_load_dwordx8 s[52:59], s[0:1], 64")
    stamp(0)
    A(f"v_lshrrev_b32 v1, 6, v0\nv_and_b32 {vLANE}, 63, v0\nv_readfirstlane_b32 {sW}, v1\ns_setprio 3")
    A(f"v_mov_b32 v8, 0\nds_write_b32 v8, v8 offset:{L_CT}")
    order = []
    for v in range(8):
        if v not in order: order += [v, v ^ xmap] if (v & 1) == 0 or (xmap & 1) == 0 else [v ^ xmap, v]
    lut = sum(order.index(v) << (4*v) for v in range(8))
    A(f"s_and_b32 {sX}, s2, 7\ns_lshl_b32 {sX}, {sX}, 2\ns_lshr_b32 {sX}, {hex(lut)}, {sX}\ns_and_b32 {sX}, {sX}, 7")
    A(f"s_lshr_b32 {sC}, s2, 3\ns_lshl_b32 {sT0}, {sX}, 5\ns_add_u32 {sLIN}, {sT0}, {sC}")
    A(f"s_lshr_b32 {sG}, {sLIN}, {LGS}\ns_and_b32 {sMEM}, {sLIN}, {GS-1}\ns_and_b32 {sS}, {sMEM}, 7")
    A(f"s_lshr_b32 {sT0}, {sMEM}, 3\ns_mul_i32 {sHQ}, {sT0}, {NG}\ns_add_u32 {sHQ}, {sHQ}, {sG}")
    A(f"s_sub_u32 {sW}, {sW}, 1\ns_cselect_b32 {sW}, 4, {sW}")
    A(f"v_lshrrev_b32 {vA}, 3, {vLANE}\nv_and_b32 {vB}, 7, {vLANE}")
    A(f"v_lshlrev_b32 v7, 4, {vB}")
    A(f"v_mov_b32 v4, 384\nv_mad_u32_u24 {vKV}, {vA}, v4, v7")
    A(f"v_mov_b32 v4, 12288\nv_mad_u32_u24 v4, {vA}, v4, v7")
    A(f"v_mov_b32 v5, 3072\nv_mad_u32_u24 v5, {vA}, v5, v7")
    A(f"v_mov_b32 v6, {OOB}\nv_cmp_gt_u32 vcc, 6, {vB}\nv_cndmask_b32 v5, v6, v5, vcc")
    A(f"v_lshlrev_b32 v6, 1, {vA}\nv_lshlrev_b32 v7, 4, {vLANE}")
    A(f"s_mul_i32 {sT0}, {sS}, 80\ns_lshl_b32 {sT1}, {sW}, 4\ns_add_u32 {sT0}, {sT0}, {sT1}")
    A(f"s_mul_i32 {sT1}, {sT0}, 12288\ns_mul_i32 {sT2}, {sHQ}, 384\ns_add_u32 {sT1}, {sT1}, {sT2}")
    A(f"s_mul_i32 {sT2}, {sT0}, 3072\ns_lshr_b32 {sT3}, {sLIN}, 3\ns_mul_i32 {sT3}, {sT3}, 96\ns_add_u32 {sT2}, {sT2}, {sT3}")
    A(f"s_lshl_b32 {sT0}, {sT0}, 1")
    srd_hi(X_, 1280); srd_hi(TA_, 640*12288); srd_hi(TB_, 640*3072); srd_hi(TC_, 640*3072); srd_hi(WS_, WS_SIZE); srd_hi(KV_, TB)
    A("s_waitcnt lgkmcnt(0)")
    srd_lo(X_, pX)
    XR, WD, WA = RING + 40, RING, ACC
    A(f"buffer_load_dwordx4 v[{XR}:{XR+3}], v7, {X_}, 0 offen")
    A(f"buffer_load_dwordx4 v[{XR+4}:{XR+7}], v7, {X_}, 0 offen offset:1024")
    A(f"buffer_load_ushort v{T+10}, v6, {X_}, {sT0} offen")
    A(f"buffer_load_ushort v{T+11}, v6, {X_}, {sT0} offen offset:16")
    srd_lo(TA_, pWQ); srd_lo(TB_, pWG); srd_lo(TC_, pWU)
    A(f"s_load_dword {sTAG}, s[{pWS}:{pWS+1}], {WS_EP}")
    A("s_barrier")
    for t in range(2):
        for j in range(3):
            A(f"buffer_load_dwordx4 v[{WD+20*t+4*j}:{WD+20*t+4*j+3}], v4, {TA_}, {sT1} offen offset:{128*j} nt")
        A(f"buffer_load_dwordx4 v[{WD+20*t+12}:{WD+20*t+15}], v5, {TB_}, {sT2} offen nt")
        A(f"buffer_load_dwordx4 v[{WD+20*t+16}:{WD+20*t+19}], v5, {TC_}, {sT2} offen nt")
        if t == 0: A(f"s_add_u32 {sT1}, {sT1}, {8*12288}\ns_add_u32 {sT2}, {sT2}, {8*3072}")
    srd_lo(KV_, pK); srd_lo(WS_, pWS)
    A(f"s_lshl_b32 {sT0}, {sMEM}, 2\ns_add_u32 {sT0}, {sT0}, {sW}\ns_mul_i32 {sT0}, {sT0}, 3072")
    A(f"s_mul_i32 {sOFF0}, {sG}, {HB}\ns_add_u32 {sOFF0}, {sOFF0}, {sT0}\ns_mov_b32 {sOFF}, {sOFF0}")
    A(f"s_mov_b32 s12, 0xcccccccc\ns_mov_b32 s13, 0xcccccccc\ns_mov_b32 s14, 0xaaaaaaaa\ns_mov_b32 s15, 0xaaaaaaaa")
    A(f"s_and_b32 {sOWN}, {sX}, 1\ns_xor_b32 {sOWN}, {sOWN}, {own}")
    A(f"s_cmp_eq_u32 {sW}, 4\ns_cbranch_scc1 L_ln\ns_setprio 1\nL_ln:\ns_waitcnt vmcnt(10) lgkmcnt(0)")
    A(f"s_mul_i32 {sTAG}, {sTAG}, 1664525\ns_add_u32 {sTAG}, {sTAG}, 1013904223")
    XF = WA
    for i in range(8):
        A(f"v_lshlrev_b32 v{XF+2*i}, 16, v{XR+i}\nv_and_b32 v{XF+2*i+1}, 0xffff0000, v{XR+i}")
    l0, l1, l2, l3 = "v24", "v25", "v26", "v27"
    A(f"v_add_f32 {l0}, v{XF}, v{XF+1}\nv_add_f32 {l1}, v{XF+2}, v{XF+3}")
    for i in range(4, 16, 2): A(f"v_add_f32 {l0}, {l0}, v{XF+i}\nv_add_f32 {l1}, {l1}, v{XF+i+1}")
    A(f"v_add_f32 {l0}, {l0}, {l1}")
    allred_lo("v_add_f32", [l0]); allred_top("v_add_f32", [l0], [l1])
    A(f"v_mul_f32 {l0}, 0x3acccccd, {l0}")
    for i in range(16): A(f"v_sub_f32 v{XF+i}, v{XF+i}, {l0}")
    A(f"v_mul_f32 {l1}, v{XF}, v{XF}\nv_mul_f32 {l2}, v{XF+8}, v{XF+8}")
    for i in range(1, 8): A(f"v_fmac_f32 {l1}, v{XF+i}, v{XF+i}\nv_fmac_f32 {l2}, v{XF+8+i}, v{XF+8+i}")
    A(f"v_cmp_gt_u32 vcc, 16, {vLANE}\nv_cndmask_b32 {l2}, 0, {l2}, vcc\nv_add_f32 {l1}, {l1}, {l2}")
    allred_lo("v_add_f32", [l1]); allred_top("v_add_f32", [l1], [l2])
    A(f"v_mul_f32 {l1}, 0x3acccccd, {l1}")
    A(f"v_cvt_pk_bf16_f32 {l0}, 0, {l0}\nv_cvt_pk_bf16_f32 {l1}, 0, {l1}")
    A(f"v_add_f32 {l1}, 0x3727c5ac, {l1}\nv_cvt_pk_bf16_f32 {l1}, 0, {l1}\nv_sqrt_f32 {l1}, {l1}")
    A(f"v_cvt_pk_bf16_f32 {l1}, 0, {l1}\nv_rcp_f32 {l2}, {l1}")
    for t in range(2):
        xr = f"v{T+10+t}"
        A(f"v_lshlrev_b32 {xr}, 16, {xr}\nv_sub_f32 {xr}, {xr}, {l0}\nv_cvt_pk_bf16_f32 {xr}, 0, {xr}")
        A(f"v_mul_f32 {l3}, {xr}, {l2}\nv_fma_f32 {xr}, -{l3}, {l1}, {xr}\nv_fma_f32 {xr}, {xr}, {l2}, {l3}")
        A(f"v_cvt_pk_bf16_f32 v{T+6+2*t}, {xr}, 0\nv_cvt_pk_bf16_f32 v{T+7+2*t}, 0, {xr}")
    for i in range(40): A(f"v_mov_b32 v{WA+i}, 0")
    stamp(1)
    sD = [f"s{r}" for r in range(74, 80)]; sL = ["s80", "s81", "s82"]
    def dma_setup():
        srd(TA_, pWO, 6144*1280); srd(TB_, pWD, 1536*1280)
        A(f"s_lshl_b32 {sT2}, {sS}, 3\ns_lshr_b32 {sT1}, {sC}, 3\ns_lshl_b32 {sT1}, {sT1}, 1\ns_add_u32 {sT2}, {sT2}, {sT1}")
        A(f"s_mul_i32 {sT1}, {sG}, 192\ns_add_u32 {sT2}, {sT2}, {sT1}")
        A(f"s_lshl_b32 {sT0}, {sW}, 1\ns_add_u32 {sT0}, {sT0}, {sOWN}\ns_lshl_b32 {sT0}, {sT0}, 2\ns_lshr_b32 {sT0}, {hex(PILUT)}, {sT0}\ns_and_b32 {sT0}, {sT0}, 7\ns_mul_i32 {sT0}, {sT0}, {NG*192}\ns_add_u32 {sT0}, {sT0}, {sT2}")
        A(f"s_mul_i32 {sL[0]}, {sT0}, 1280\ns_add_u32 {sL[1]}, {sL[0]}, {64*1280}\ns_add_u32 {sL[2]}, {sL[0]}, {128*1280}")
        A(f"s_lshl_b32 {sT0}, {sW}, 6\ns_add_u32 {sT0}, {sT0}, {sT2}\ns_add_u32 {sT0}, {sT0}, {PI[7]*NG*192}\ns_mul_i32 {sD[2]}, {sT0}, 1280\ns_mul_i32 {sD[3]}, {sW}, 2560")
        A(f"s_mul_i32 {sT0}, {sLIN}, 7680\ns_lshl_b32 {sD[5]}, {sW}, 11\ns_add_u32 {sD[4]}, {sT0}, {sD[5]}")
    def w(paced):
        if paced: A(f"s_waitcnt vmcnt({pace-1})")
    def op_pb(n):
        def f(paced):
            if n and n % 3 == 0: A(f"s_add_u32 {sOFF}, {sOFF}, {TSTR}")
            w(paced); ld(PB + 4*n, n % 3)
        return f
    def op_wo(jj, i, off=0, base=7680):
        def f(paced):
            if i == 0: A(f"s_add_u32 m0, {sD[off+1]}, {L_W+base+2560*jj}")
            if i == 2: A("s_mov_b32 exec_hi, 0")
            w(paced); A(f"buffer_load_dwordx4 v7, {TA_}, {sD[off]} offen offset:{1024*i} nt lds")
            if i == 2: A(f"s_mov_b32 exec_hi, -1\ns_add_u32 {sD[off]}, {sD[off]}, {64*1280}")
        return f
    def op_wd(i):
        def f(paced):
            if i == 0: A(f"s_add_u32 m0, {sD[5]}, {L_W}")
            else: A(f"s_cmp_eq_u32 {sW}, 3\ns_cselect_b32 exec_hi, 0, -1")
            w(paced); A(f"buffer_load_dwordx4 v7, {TB_}, {sD[4]} offen offset:{1024*i} nt lds")
            if i: A("s_mov_b32 exec_hi, -1")
        return f
    def op_s4(paced):
        A(f"s_cmp_eq_u32 {sW}, 3\ns_cbranch_scc1 L_nos4")
        for i in range(3): op_wo(0, i, 2, 7680)(paced)
        A("L_nos4:")
    dma = [op_wd(0), op_wd(1), op_s4]
    pbs = [op_pb(n) for n in range(24)]
    ops = dma + pbs if dfirst else pbs + dma
    assert pre0 <= 2 or not dfirst
    dma_setup()
    A(f"s_waitcnt vmcnt(5)\ns_cmp_eq_u32 {sW}, 4\ns_cbranch_scc1 L_nopre0")
    for n in range(pre0): ops[n](False)
    A("L_nopre0:")
    axpy(WA, WD, 20, f"v{T+6}", f"v{T+7}")
    A(f"s_cmp_eq_u32 {sW}, 4\ns_cbranch_scc1 L_nopre1\ns_waitcnt vmcnt({pre0})")
    for n in range(pre0, pre1): ops[n](False)
    A("s_branch L_pre2\nL_nopre1:\ns_waitcnt vmcnt(0)\nL_pre2:")
    axpy(WA, WD+20, 20, f"v{T+8}", f"v{T+9}")
    redscat(WA, 5)
    A(f"s_mul_i32 {sT0}, {sW}, 1280\nv_lshl_add_u32 v4, {vLANE}, 2, {sT0}")
    for k in range(5): A(f"ds_write_b32 v4, v{WA+8*k} offset:{L_QP+256*k}")
    A(f"v_mov_b32 v5, 0\nv_mov_b32 v6, 1\ns_mov_b64 exec, 1\nds_add_u32 v5, v6 offset:{L_CT}\ns_mov_b64 exec, -1")
    stamp(2)
    if ab: A("s_barrier")
    A(f"s_cmp_eq_u32 {sW}, 4\ns_cbranch_scc1 L_svc")
    for n in range(pre1, len(ops)):
        ops[n](True)
        if n == trig: A(f"v_mov_b32 v6, 64\ns_mov_b64 exec, 1\nds_add_u32 v5, v6 offset:{L_CT}\ns_mov_b64 exec, -1")
    A(f"s_mov_b32 {sIB}, 1")
    for m in range(G):
        if m % 3 == 0: A(f"s_add_u32 {sOFF}, {sOFF}, {TSTR}")
        A(f"s_waitcnt vmcnt({pace-1})"); ld(RING + 4*m, m % 3)
    vQA, vSA = "v4", "v5"
    A(f"v_lshlrev_b32 {vQA}, 4, {vB}\nv_add_u32 {vQA}, {L_QB}, {vQA}")
    A(f"s_lshl_b32 {sT0}, {sW}, 12\ns_add_u32 {sT0}, {sT0}, {L_SC}\nv_lshl_add_u32 {vSA}, {vLANE}, 2, {sT0}")
    A(f"s_lshl_b32 {sT0}, {sX}, 2\ns_add_u32 {sT0}, {sT0}, {sW}\ns_mul_i32 {sT0}, {sT0}, 4224\ns_add_u32 {sT0}, {sT0}, {WS_PR}")
    A(f"s_add_u32 s28, s{pWS}, {sT0}\ns_addc_u32 s29, s{pWS+1}, 0\ns_mov_b32 s30, {132 if xd else 128}")
    A(f"v_lshlrev_b32 {vPL}, 2, {vLANE}\nv_mov_b32 {vPS}, 0x1000\nv_cmp_eq_u32 vcc, {sC}, {vLANE}\nv_cndmask_b32 {vPS}, {vPS}, {vPL}, vcc\nv_mov_b32 {vPC}, {sTAG}")
    A(f"s_getreg_b32 {sTHR}, hwreg(HW_REG_XCC_ID)\ns_bitcmp1_b32 {sTHR}, 0\ns_cselect_b32 {sTHR}, {fbo}, {fb}")
    A(f"s_add_u32 {sT0}, {sW}, {sOWN}\ns_cmp_eq_u32 {sT0}, 4\ns_cselect_b32 s22, 0, s22\ns_cselect_b32 {sL[0]}, 0, {sL[0]}\ns_cselect_b32 {sL[1]}, 0, {sL[1]}\ns_cselect_b32 {sL[2]}, 0, {sL[2]}")
    A(f"s_mov_b64 vcc, 0\ns_mov_b32 s47, 0")
    stamp(3)
    A("s_barrier")
    for j in range(3): A(f"ds_read_b128 v[{Q+4*j}:{Q+4*j+3}], {vQA} offset:{128*j}")
    A("s_waitcnt lgkmcnt(0)")
    stamp(4)
    SA, R, RT, S2 = ACC, ACC + 2, ACC + 6, ACC + 8
    def k_after_tile(t):
        A(f"v_add_f32_dpp v{R+(t&3)}, v{SA+(t&1)}, v{SA+(t&1)} row_half_mirror row_mask:0xf bank_mask:{'0xa' if t >= 4 else '0x5'}")
    def k_stage2(e): A(f"v_add_f32_dpp v{R+e}, v{R+e}, v{R+e} quad_perm:[2,3,0,1] {DPP}")
    def k_fin(which):
        if which == 0:
            k_after_tile(7); k_stage2(3)
            A(f"v_cndmask_b32 v{RT+1}, v{R+1}, v{R+3}, {mB1}")
        else:
            A(f"v_add_f32_dpp v{RT+1}, v{RT+1}, v{RT+1} quad_perm:[1,0,3,2] {DPP}\nv_cndmask_b32 v{RT}, v{RT}, v{RT+1}, {mB0}")
            A(f"ds_write_b32 {vSA}, v{RT}\nv_add_u32 {vSA}, 256, {vSA}")
    def k_body(first):
        for n in range(24):
            t, j = n//3, n % 3
            slot(n)
            if not first:
                if n < 2: k_fin(n)
                if n == 0: A("s_waitcnt lgkmcnt(0)")
                if n == bs: A("s_waitcnt lgkmcnt(0)\ns_barrier")
            else: qk4(S2 + t, PB + 4*n, j)
            if j == 0 and t >= 1: k_after_tile(t-1)
            if j == 1 and t >= 5: k_stage2(t-5)
            if n == 23: A(f"v_cndmask_b32 v{RT}, v{R}, v{R+2}, {mB1}")
            if n == 20: A(f"s_add_u32 {sBLK}, {sBLK}, 1\ns_and_b32 {sT0}, {sBLK}, {BPS-1}\ns_cselect_b32 {sT0}, 0, 384\nv_add_u32 {vQA}, {sT0}, {vQA}")
            if "c" not in skip: qk4(SA + (t & 1), RING + 4*(n % RB), j)
            if n == 23: A(f"v_add_f32_dpp v{RT}, v{RT}, v{RT} quad_perm:[1,0,3,2] {DPP}")
            if t == 7: A(f"ds_read_b128 v[{Q+4*j}:{Q+4*j+3}], {vQA} offset:{128*j}")
    A(f"s_mov_b32 {sBLK}, 1")
    k_body(True)
    redscat_lo([S2])
    A(f"ds_write_b32 {vSA}, v{S2}\nv_add_u32 {vSA}, 256, {vSA}")
    A("L_k:")
    k_body(False)
    if stamps: A(f"s_cmp_lg_u32 {sBLK}, 3\ns_cbranch_scc1 L_st1\ns_memrealtime s[42:43]\nL_st1:")
    A(f"s_cmp_lt_u32 {sBLK}, 16\ns_cbranch_scc1 L_k")
    if stamps: A("s_memrealtime s[50:51]")
    vP, vPN, pl, ph, vOA, RV = "v44", "v45", "v46", "v47", "v4", Q
    k_fin(0); k_fin(1)
    A(f"v_subrev_u32 {vSA}, 4096, {vSA}\nds_read_b32 {vPN}, {vSA} offset:{512*PI[0]}")
    A(f"s_lshl_b32 {sT0}, {sW}, 10\ns_add_u32 {sT0}, {sT0}, {L_OP}\nv_add_u32 {vOA}, {sT0}, v7\ns_mov_b32 s73, 0\ns_waitcnt lgkmcnt(0)")
    for i in range(24): A(f"v_mov_b32 v{ACC+i}, 0")
    def v_a(g, zero=True):
        b = ACC + 8*g
        for e in range(4): A(f"v_permlane32_swap_b32 v{b+e}, v{b+e+4}")
        for e in range(4): A(f"v_add_f32 v{RV+4*g+e}, v{b+e}, v{b+e+4}")
        if zero:
            for e in range(8): A(f"v_mov_b32 v{b+e}, 0")
    def v_b(gs):
        for g in gs:
            for e in range(2): A(f"v_permlane16_swap_b32 v{RV+4*g+e}, v{RV+4*g+e+2}")
        for g in gs:
            for e in range(2): A(f"v_add_f32 v{RV+4*g+e}, v{RV+4*g+e}, v{RV+4*g+e+2}")
        for g in gs: A(f"v_add_f32_dpp v{48+g}, v{RV+4*g}, v{RV+4*g} row_ror:8 row_mask:0xf bank_mask:0x3")
        for g in gs: A(f"v_add_f32_dpp v{48+g}, v{RV+4*g+1}, v{RV+4*g+1} row_ror:8 row_mask:0xf bank_mask:0xc")
    def v_out(): A(f"ds_write_b96 {vOA}, v[48:50]\nv_xor_b32 {vOA}, 4096, {vOA}")
    def cond(lab, code): A(f"s_cmp_eq_u32 s73, 0\ns_cbranch_scc1 {lab}"); code(); A(f"{lab}:")
    A("L_v:")
    for n in range(24):
        slot(n, True)
        if n == 0: A(f"s_waitcnt lgkmcnt(0)\nv_mov_b32 {vP}, {vPN}"); cond("L_c0", lambda: v_a(2))
        if n == 1: cond("L_c1", lambda: (v_b([2]), v_out()))
        if n == bs: A("s_waitcnt lgkmcnt(0)\ns_barrier")
        if n == 20:
            A(f"s_add_u32 {sT1}, {sBLK}, 1\ns_and_b32 {sT0}, {sT1}, {BPS-1}\ns_cselect_b32 s73, 0, 1")
            A(f"s_and_b32 {sT1}, {sT1}, 14\ns_lshl_b32 {sT1}, {sT1}, 1\ns_lshr_b32 {sT1}, {hex(PILUT)}, {sT1}\ns_and_b32 {sT1}, {sT1}, 7")
            A(f"s_lshl_b32 {sT1}, {sT1}, 1\ns_add_u32 {sT1}, {sT1}, {sT0}\ns_lshl_b32 {sT1}, {sT1}, 8\nv_add_u32 v51, {sT1}, {vSA}\nds_read_b32 {vPN}, v51")
        if n % 3 == 0:
            t = n//3
            A(f"v_mov_b32_dpp {pl}, {vP} row_newbcast:{t} row_mask:0xf bank_mask:0x3")
            A(f"v_mov_b32_dpp {pl}, {vP} row_newbcast:{8+t} row_mask:0xf bank_mask:0xc")
            A(f"v_lshlrev_b32 {ph}, 16, {pl}")
        if "c" not in skip: axpy(ACC + 8*(n % 3), RING + 4*(n % RB), 4, pl, ph)
        if n == 21: cond("L_c21", lambda: (v_a(0), v_b([0])))
        if n == 22: cond("L_c22", lambda: (v_a(1), v_b([1])))
    A(f"s_add_u32 {sBLK}, {sBLK}, 1")
    if stamps: A(f"s_cmp_lg_u32 {sBLK}, 29\ns_cbranch_scc1 L_st2\ns_memrealtime s[48:49]\nL_st2:\n; SSBYTES={26*8*3072}")
    A(f"s_cmp_lt_u32 {sBLK}, 32\ns_cbranch_scc1 L_v")
    stamp(5)
    W4, W1, YA, UF = PB, PB + 24, PB + 32, PB + 44
    for r in range(6): A(f"buffer_load_dword v{W1+r}, {vPL}, {TA_}, {sL[r//2]} offen offset:{1024+1280*(r%2)} nt")
    v_a(2, False); v_b([2]); v_out()
    A(f"s_lshl_b32 {sT0}, {sW}, 4\nv_mov_b32 v8, {sT0}\ns_waitcnt lgkmcnt(0)\ns_barrier")
    stamp(6)
    LW = PB + 56
    A(f"ds_read_b128 v[12:15], v8 offset:{L_U}")
    A(f"s_mul_i32 {sT0}, {sW}, 640\nv_mul_u32_u24 v11, 80, {vA}\nv_mad_u32_u24 v11, {vB}, 12, v11\nv_add_u32 v11, {sT0}, v11\nv_lshrrev_b32 v40, 1, v11")
    for r in range(6):
        for e in range(3): A(f"ds_read_u16 v{LW+10+3*r+e}, v40 offset:{L_W+7680+1280*r+2*e}")
        if r == 3: A("s_waitcnt lgkmcnt(0)")
    A(f"s_mul_i32 {sT0}, {sW}, 2560\nv_lshl_add_u32 v9, {vLANE}, 5, {sT0}\nv_lshl_add_u32 v10, {vLANE}, 3, {sT0}\nv_add_u32 v11, {L_YP}, v11")
    A(f"s_lshl_b32 {sT1}, {sLIN}, 12\ns_lshl_b32 {sT0}, {sW}, 10\ns_add_u32 {sT1}, {sT1}, {sT0}\ns_add_u32 {sT1}, {sT1}, {WS_H2}\nv_mov_b32 v19, {sTAG}")
    A("v_mov_b32 v8, 0\nv_mov_b32 v41, 0x10000")
    for i in range(10): A(f"v_mov_b32 v{YA+i}, 0")
    for p in range(3):
        A(f"v_and_b32 v{UF+4*p}, 0xffff, v{12+p}\nv_lshlrev_b32 v{UF+4*p+1}, 16, v{12+p}\nv_lshrrev_b32 v{UF+4*p+2}, 16, v{12+p}\nv_and_b32 v{UF+4*p+3}, 0xffff0000, v{12+p}")
    A(f"v_readfirstlane_b32 {sT3}, v15\ns_waitcnt lgkmcnt(0)")
    for p in range(3):
        for e in range(3): A(f"v_lshl_or_b32 v{LW+3*p+e}, v{LW+10+6*p+3+e}, 16, v{LW+10+6*p+e}")
    for r in range(6):
        A(f"s_waitcnt vmcnt({11-r})"); axpy(YA, W4 + 4*r, 4, f"v{UF+2*r}", f"v{UF+2*r+1}")
    A(f"ds_write_b128 v9, v[{YA}:{YA+3}] offset:{L_YP}\nds_write_b128 v9, v[{YA+4}:{YA+7}] offset:{L_YP+16}")
    A("s_waitcnt vmcnt(0)")
    for r in range(6): axpy(YA + 8, W1 + r, 1, f"v{UF+2*r}", f"v{UF+2*r+1}")
    A(f"ds_write_b64 v10, v[{YA+8}:{YA+9}] offset:{L_YP+2048}\ns_mov_b64 exec, 1\nds_add_u32 v8, v41 offset:{L_CT}\ns_mov_b64 exec, -1")
    A(f"L_wy:\nds_read_b32 v41, v8 offset:{L_CT}\ns_waitcnt lgkmcnt(0)\nv_cmp_gt_u32 vcc, 0x40000, v41\ns_cbranch_vccnz L_wy")
    for k in range(5):
        A(f"ds_read2_b32 v[{20+4*k}:{21+4*k}], v11 offset0:0 offset1:1\nds_read_b32 v{22+4*k}, v11 offset:8")
        if k < 4: A("v_add_u32 v11, 2560, v11")
    A("s_waitcnt lgkmcnt(0)")
    for e in range(3): A(f"v_add_f32 v{20+e}, v{20+e}, v{24+e}\nv_add_f32 v{28+e}, v{28+e}, v{32+e}")
    for e in range(3): A(f"v_add_f32 v{20+e}, v{20+e}, v{36+e}")
    for e in range(3): A(f"v_add_f32 v{16+e}, v{20+e}, v{28+e}")
    stamp(7)
    A(f"s_barrier\nds_read_b96 v[12:14], v8 offset:{L_U+64}\ns_waitcnt lgkmcnt(0)")
    for p in range(3):
        for e in range(3): A(f"v_dot2c_f32_bf16 v{16+e}, v{12+p}, v{LW+3*p+e}")
    A(f"s_cmp_eq_u32 {sT3}, 0\ns_cbranch_scc1 L_yr\nbuffer_store_dwordx4 v[16:19], v7, {WS_}, {sT1} offen\ns_branch L_done")
    A(f"L_yr:\nbuffer_store_dwordx4 v[16:19], v7, {WS_}, {sT1} offen sc1\ns_branch L_done")
    for r in range(6):
        A(f"L_wl{r}:\nbuffer_load_dwordx4 v[{W4+4*r}:{W4+4*r+3}], v7, {TA_}, {sL[r//2]} offen offset:{1280*(r%2)} nt\ns_branch L_wb{r}")
    A("L_svc:")
    G0 = RING; G1 = G0 + 8
    vQW, vSC, vML, vOP, vLS, vM, vZ, vZK, vXA = [f"v{32+i}" for i in range(7)] + ["v40", "v42"]
    ZS, ZM = 52, 8
    vWA, vH1S, vH1G, vYG, vH3, vYW, vYR, vOUT, XV = "v16", "v17", "v18", "v19", "v20", "v21", "v29", 22, 26
    P0, P1, YY = PB, PB + 32, PB + 64
    YT = YY + 12
    LP = 64//NSEG; LLP = LP.bit_length()-1; NLS = GS//LP; NR = 4*BPS
    sF = [f"s{r}" for r in (20, 21, 22, 24, 25, 26, 28, 29)]
    sLOC, sHD, sTG2, sH1S, sH1G, sYS, sYG, sH3S, sH3G, sXS, sXG, sFL = [f"s{r}" for r in range(72, 84)]
    sUU = ["s60", "s61", "s62"]
    sSCALE, sLOG2E = "s12", "s13"
    def store2(lab, stores):
        A(f"s_cmp_eq_u32 {sLOC}, 0\ns_cbranch_scc1 {lab}_r"); stores(""); A(f"s_branch {lab}_d\n{lab}_r:"); stores("sc1"); A(f"{lab}_d:")
    def poll(lab, loads, tags, sleep=0, first=None, tag=sTAG, loc=False):
        A(f"s_mov_b32 {sT2}, {spin}")
        if first is not None: loads(first); A(f"s_branch {lab}_chk")
        elif sleep: A(f"s_branch {lab}_go")
        A(f"{lab}:")
        if sleep: A(f"s_sleep {sleep}\n{lab}_go:")
        if loc and lp != "sc1":
            A(f"s_cmp_eq_u32 {sLOC}, 0\ns_cbranch_scc1 {lab}_rm"); loads(lp); A(f"s_branch {lab}_chk\n{lab}_rm:")
        loads("sc1")
        A(f"{lab}_chk:\ns_waitcnt vmcnt(0)")
        if len(tags) == 1: A(f"v_cmp_ne_u32 vcc, {tag}, {tags[0]}")
        else:
            A(f"v_xor_b32 {t0}, {tag}, {tags[0]}")
            for t in tags[1:]: A(f"v_bitop3_b32 {t0}, {t}, {tag}, {t0} bitop3:0xbe")
            A(f"v_cmp_ne_u32 vcc, 0, {t0}")
        A(f"s_cbranch_vccz {lab}_done\ns_sub_u32 {sT2}, {sT2}, 1\ns_cbranch_scc0 {lab}\n{lab}_done:")
    A(f"v_lshlrev_b32 v4, 2, {vLANE}")
    A(f"L_wq:\nds_read_b32 v6, v5 offset:{L_CT}\ns_waitcnt lgkmcnt(0)\nv_and_b32 v6, 7, v6\nv_cmp_gt_u32 vcc, 5, v6\ns_cbranch_vccnz L_wq")
    for w in range(5):
        for k in range(5): A(f"ds_read_b32 v{G0+5*w+k}, v4 offset:{L_QP+1280*w+256*k}")
        if w == 2: A("s_waitcnt lgkmcnt(0)")
    A("s_waitcnt lgkmcnt(0)")
    for w in range(1, 5):
        for k in range(5): A(f"v_add_f32 v{G0+k}, v{G0+k}, v{G0+5*w+k}")
    A(f"v_lshl_add_u32 v5, {vB}, 3, {vA}\nv_lshlrev_b32 {vQW}, 1, v5\nv_lshlrev_b32 v5, 4, v5")
    A(f"v_mov_b32 v48, v{G0+3}\nv_mov_b32 v49, v{G0+4}\nv_mov_b32 v{G0+3}, {sTAG}\nv_mov_b32 v50, {sTAG}\nv_mov_b32 v51, {sTAG}")
    A(f"s_lshl_b32 {sT0}, {sLIN}, 11\ns_add_u32 {sT0}, {sT0}, {WS_QS}")
    A(f"buffer_store_dwordx4 v[{G0}:{G0+3}], v7, {WS_}, {sT0} offen sc1")
    stamp(3)
    A(f"v_add_u32 {vSC}, {L_SC}, v4\nv_mov_b32 {vML}, {L_ML}\nv_add_u32 {vOP}, {L_OP}, v7\nv_mov_b32 {vZ}, 0")
    A(f"s_mov_b32 {sSCALE}, 0x3d93cd3a\ns_mov_b32 {sLOG2E}, 0x3fb8aa3b\ns_mov_b32 {sBLK}, -1")
    A(f"s_lshl_b32 {sHD}, {sG}, {11+LGS}\ns_add_u32 {sHD}, {sHD}, {WS_QS}")
    A(f"L_wt:\ns_sleep 2\nds_read_b32 v10, {vZ} offset:{L_CT}\ns_waitcnt lgkmcnt(0)\nv_cmp_gt_u32 vcc, 256, v10\ns_cbranch_vccnz L_wt")
    A("s_branch L_gq0")
    A("L_blk:")
    if xd:
        A(f"s_cmp_lg_u32 {sC}, 0\ns_cbranch_scc1 L_noxf\ns_and_b32 {sT0}, {sBLK}, {xp-1}\ns_cmp_lg_u32 {sT0}, {xp-1}\ns_cbranch_scc1 L_noxf\ns_cmp_gt_u32 {sBLK}, 28\ns_cbranch_scc1 L_noxf")
        A(f"s_add_u32 {sT0}, {sTAG}, {sBLK}\nv_mov_b32 v12, {sT0}\nv_mul_u32_u24 v13, 4224, {vLANE}\ns_mul_i32 {sT1}, {sX}, 4224\ns_add_u32 {sT1}, {sT1}, {WS_PR+0x30000}")
        A(f"s_mov_b64 exec, 1\nbuffer_store_dword v12, v13, {WS_}, {sT1} offen sc1\ns_mov_b32 {sT1}, {WS_PR+0x30000}")
        if xs < 0: A("s_waitcnt vmcnt(0)")
        if xs > 0: A(f"s_sleep {xs}")
        A(f"s_mov_b64 exec, 0xff\nbuffer_load_dword v14, v13, {WS_}, {sT1} offen sc1\ns_waitcnt vmcnt(0)")
        lutv = sum((d + 8) << (4*i) for i, d in enumerate(xd))
        A(f"v_sub_u32 v14, v14, v12\nv_cmp_gt_u32 vcc, 64, v14\ns_bitset0_b32 vcc_lo, {sX}\ns_bcnt1_i32_b64 {sT0}, vcc\ns_lshl_b32 {sT0}, {sT0}, 2")
        A(f"s_lshr_b32 {sT0}, {hex(lutv)}, {sT0}\ns_and_b32 {sT0}, {sT0}, 15\ns_getreg_b32 {sT1}, hwreg(HW_REG_XCC_ID)\ns_bitcmp1_b32 {sT1}, 0\ns_cselect_b32 {sT1}, {fbo-8}, {fb-8}")
        A(f"s_add_u32 {sT0}, {sT0}, {sT1}\ns_min_u32 {sT0}, {sT0}, 32\ns_add_u32 {sT0}, {sT0}, {sTAG}\nv_mov_b32 v12, {sT0}")
        A(f"s_mul_i32 {sT1}, {sX}, {4*4224}\ns_add_u32 {sT1}, {sT1}, {WS_PR+128}\ns_mov_b64 exec, 0xf")
        A(f"buffer_store_dword v12, v13, {WS_}, {sT1} offen\ns_mov_b64 exec, -1\nL_noxf:")
    A(f"s_cmp_le_u32 {sBLK}, 16\ns_cbranch_scc1 L_kpart\ns_and_b32 {sT0}, {sBLK}, {BPS-1}\ns_cbranch_scc1 L_vmid")
    stamp(5)
    for w in range(4): A(f"ds_read_b96 v[{G0+4*w}:{G0+4*w+2}], {vOP} offset:{1024*w}")
    A(f"v_xor_b32 {vOP}, 4096, {vOP}\nv_mov_b32 v{G0+19}, {sTG2}\ns_waitcnt lgkmcnt(0)")
    for k in range(3): A(f"v_add_f32 v{G0+k}, v{G0+k}, v{G0+4+k}\nv_add_f32 v{G0+8+k}, v{G0+8+k}, v{G0+12+k}")
    for k in range(3): A(f"v_add_f32 v{G0+k}, v{G0+k}, v{G0+8+k}")
    for k in range(3): A(f"v_mul_f32 v{G0+16+k}, {sF[0]}, v{G0+k}")
    if "h" in skip: A(f"s_cmp_lg_u32 {sBLK}, 32\ns_cbranch_scc1 L_p1_done")
    store2("L_s1", lambda p: A(f"buffer_store_dwordx4 v[{G0+16}:{G0+19}], {vH1S}, {WS_}, {sH1S} offen {p}"))
    poll("L_p1", lambda p: A(f"buffer_load_dwordx4 v[{G0}:{G0+3}], {vH1G}, {WS_}, {sH1G} offen {p}"), [f"v{G0+3}"], tag=sTG2, loc=True)
    stamp(6)
    A(f"v_mov_b32 v{G0+3}, 0\nv_permlane32_swap_b32 v{G0}, v{G0+1}\nv_permlane32_swap_b32 v{G0+2}, v{G0+3}")
    A(f"v_add_f32 v{G0}, v{G0}, v{G0+1}\nv_add_f32 v{G0+2}, v{G0+2}, v{G0+3}\nv_permlane16_swap_b32 v{G0}, v{G0+2}\nv_add_f32 {vZK}, v{G0}, v{G0+2}")
    allred_lo("v_add_f32", [vZK], 3)
    A(f"s_cmp_eq_u32 {sBLK}, 32\ns_cbranch_scc1 L_tail")
    for i in range(NSEG-1): A(f"s_mov_b32 {sF[i]}, {sF[i+1]}")
    A(f"s_add_u32 {sTG2}, {sTG2}, 1\ns_xor_b32 {sH1S}, {sH1S}, 1024\ns_xor_b32 {sH1G}, {sH1G}, 1024")
    A(f"s_lshr_b32 {sT0}, {sBLK}, 1\ns_xor_b32 {sT0}, {sT0}, {sOWN}\ns_bitcmp1_b32 {sT0}, 0\ns_cbranch_scc0 L_notmine")
    A(f"v_mov_b32 v{ZM}, v{ZM+1}\nv_mov_b32 v{ZM+1}, v{ZM+2}\nv_mov_b32 v{ZM+2}, {vZK}\ns_cmp_eq_u32 {sBLK}, 28\ns_cbranch_scc0 L_next\ns_branch L_send")
    A(f"L_notmine:\nv_mov_b32 v{ZS}, v{ZS+1}\nv_mov_b32 v{ZS+1}, v{ZS+2}\nv_mov_b32 v{ZS+2}, {vZK}\ns_cmp_ge_u32 {sBLK}, 28\ns_cbranch_scc0 L_next")
    A("L_send:")
    if "x" in skip: A("s_branch L_next")
    A(f"s_mov_b32 exec_lo, 0x01010101\ns_mov_b32 exec_hi, 0x01010101")
    A(f"buffer_store_dwordx4 v[{ZS}:{ZS+3}], {vXA}, {WS_}, {sXS} offen sc1\ns_mov_b64 exec, -1\ns_add_u32 {sXS}, {sXS}, 128")
    A("s_branch L_next")
    A("L_vmid:")
    A(f"s_cmp_lg_u32 {sBLK}, {lsb}\ns_cbranch_scc1 L_nols")
    A(f"s_mul_i32 {sT1}, {sG}, {GS*128}\ns_add_u32 {sT1}, {sT1}, {WS_LS}\ns_add_u32 {sT3}, {sT1}, 4096")
    def gl(p):
        for r in range(NLS): A(f"buffer_load_dwordx4 v[{G0+4*r}:{G0+4*r+3}], {vLS}, {WS_}, {sT1 if LP*128*r < 4096 else sT3} offen offset:{LP*128*r % 4096} {p}")
    poll("L_ls", gl, [f"v{G0+4*r+e}" for r in range(NLS) for e in (1, 3)], sleep=16, first="")
    hn = NLS//2 if PAIR else NLS
    for h, t in ((0, t0), (1, t1))[:2 if PAIR else 1]:
        A(f"v_xor_b32 {t}, {sLOC}, v{G0+4*hn*h+2}")
        for r in range(1, hn): A(f"v_bitop3_b32 {t}, v{G0+4*(hn*h+r)+2}, {sLOC}, {t} bitop3:0xbe")
    if PAIR: A(f"s_bitcmp1_b32 {sX}, 0\ns_cselect_b64 vcc, -1, 0\nv_cndmask_b32 {t0}, {t0}, {t1}, vcc")
    A(f"v_cmp_ne_u32 vcc, 0, {t0}\ns_cmp_eq_u64 vcc, 0\ns_cselect_b32 {sLOC}, {local}, 0")
    A(f"v_max_f32 {t0}, v{G0}, v{G0+4}")
    for r in range(2, NLS, 2): A(f"v_max3_f32 {t0}, {t0}, v{G0+4*r}, v{G0+4*r+4}")
    allred_lo("v_max_f32", [t0], LLP)
    for r in range(NLS): A(f"v_sub_f32 v{G0+4*r}, v{G0+4*r}, {t0}")
    for r in range(NLS): A(f"v_exp_f32 v{G0+4*r}, v{G0+4*r}")
    for r in range(1, NLS): A(f"v_add_f32 v{G0}, v{G0}, v{G0+4*r}")
    allred_lo("v_add_f32", [f"v{G0}"], LLP)
    A(f"v_sub_f32 {t0}, {vM}, {t0}\nv_exp_f32 {t0}, {t0}\nv_rcp_f32 {t1}, v{G0}\nv_mul_f32 {t0}, {t0}, {t1}")
    for k in range(NSEG): A(f"v_readlane_b32 {sF[k]}, {t0}, {LP*PI[k]}")
    A(f"v_mov_b32 {t0}, 0\nv_mov_b32 {t1}, 0\nv_mov_b32 {t2}, 0\nv_mov_b32 {t3}, {sLOC}\ns_mov_b64 exec, 0xf\nds_write_b128 v7, v[{T}:{T+3}] offset:{L_U}")
    A(f"s_lshl_b32 {sT0}, {sLIN}, 11\ns_add_u32 {sT0}, {sT0}, {WS_QS}\ns_mov_b32 exec_lo, 0x3f3f3f3f\ns_mov_b32 exec_hi, 0x3f3f3f3f")
    store2("L_s0", lambda p: A(f"buffer_store_dwordx4 v[48:51], v5, {WS_}, {sT0} offen offset:1024 {p}"))
    A("s_mov_b64 exec, -1\ns_branch L_next")
    A("L_nols:")
    A(f"s_cmp_lg_u32 {sBLK}, {lsb+2}\ns_cbranch_scc1 L_nogu2")
    A(f"v_lshlrev_b32 v6, 11, {vA}\nv_lshl_add_u32 v6, {vB}, 4, v6\nv_mov_b32 v{G1}, 0\nv_mov_b32 v{G1+1}, 0")
    A(f"s_lshr_b32 {sT1}, {sLIN}, 3\ns_lshl_b32 {sT1}, {sT1}, 14\ns_mul_i32 {sT0}, {sS}, 96\ns_add_u32 {sT1}, {sT1}, {sT0}\ns_add_u32 {sT1}, {sT1}, {WS_QS}")
    A(f"s_mov_b32 exec_lo, 0x3f3f3f3f\ns_mov_b32 exec_hi, 0x3f3f3f3f")
    poll("L_gu", lambda p: A(f"buffer_load_dwordx4 v[{G1}:{G1+3}], v6, {WS_}, {sT1} offen offset:1024 {p}"), [f"v{G1+2}", f"v{G1+3}"], sleep=psleep, loc=True)
    A("s_mov_b64 exec, -1")
    for k in range(2): A(f"v_add_f32_dpp v{G1+k}, v{G1+k}, v{G1+k} row_ror:8 {DPP}")
    allred_top("v_add_f32", [f"v{G1}", f"v{G1+1}"], [t0, t1])
    A(f"v_cvt_pk_bf16_f32 v{G1}, 0, v{G1}\nv_cvt_pk_bf16_f32 v{G1+1}, 0, v{G1+1}")
    A(f"v_cmp_lt_f32 vcc, 0, v{G1}\nv_cndmask_b32 {t0}, 0, 1.0, vcc\nv_mul_f32 {t3}, v{G1}, {t0}\nv_mul_f32 {t3}, {t3}, v{G1+1}\nv_cvt_pk_bf16_f32 {t3}, {t3}, 0")
    A(f"v_mov_b32_dpp {t0}, {t3} quad_perm:[1,1,3,3] {DPP}\nv_lshl_or_b32 {t3}, {t0}, 16, {t3}")
    for i in range(3): A(f"v_readlane_b32 {sUU[i]}, {t3}, {2*i}")
    for r in range(6):
        for d in range(5): A(f"ds_read_b32 v{P0+5*r+d}, {vWA} offset:{1280*r+4*d}")
        if r % 2: A("s_waitcnt lgkmcnt(0)")
    A(f"s_mov_b32 {sT1}, 0x05040100\ns_mov_b32 {sT3}, 0x07060302")
    for p in range(3):
        for d in range(5):
            A(f"v_perm_b32 v{P1+10*p+2*d}, v{P0+10*p+5+d}, v{P0+10*p+d}, {sT1}\nv_perm_b32 v{P1+10*p+2*d+1}, v{P0+10*p+5+d}, v{P0+10*p+d}, {sT3}")
    for p in range(3):
        for c in range(10): A(f"v_dot2c_f32_bf16 v{YY+c}, {sUU[p]}, v{P1+10*p+c}")
    for d in range(5): A(f"ds_write_b64 {vYW}, v[{YY+2*d}:{YY+2*d+1}] offset:{L_YP+10240+8*d}")
    A("s_branch L_next")
    A("L_nogu2:")
    A(f"s_cmp_lg_u32 {sBLK}, 31\ns_cbranch_scc1 L_nopf")
    if pf is not None:
        for r in range(4):
            A(f"s_add_u32 {sT0}, {sYG}, {8*4096*r}\nbuffer_load_dwordx4 v[{G0+8+4*r}:{G0+8+4*r+3}], {vYG}, {WS_}, {sT0} offen {pf}")
        A(f"buffer_load_dwordx4 v[{G0+24}:{G0+27}], v7, {WS_}, {sH1S} offen {pf}")
    A("L_nopf:")
    A(f"s_cmp_lt_u32 {sBLK}, 29\ns_cbranch_scc1 L_next\ns_add_u32 {sT0}, {sBLK}, {sOWN}\ns_cmp_gt_u32 {sT0}, 31\ns_cbranch_scc1 L_last")
    if "x" not in skip:
        poll("L_px", lambda p: A(f"buffer_load_dwordx4 v[{G0}:{G0+3}], {vXA}, {WS_}, {sXG} offen {p}"), [f"v{G0+3}"], sleep=psleep)
    for k in range(3): A(f"v_add_f32 v{ZM+k}, v{ZM+k}, v{G0+k}")
    A(f"s_add_u32 {sXG}, {sXG}, 128\ns_mov_b32 {sFL}, 3\ns_cmp_eq_u32 {sBLK}, 29\ns_cbranch_scc1 L_take\ns_mov_b32 {sFL}, 1\nv_mov_b32 v{ZM}, v{ZM+2}")
    A(f"L_take:\nv_mov_b32_dpp v{G0+1}, v{ZM} row_ror:8 {DPP}\nv_cvt_pk_bf16_f32 v{G0}, v{ZM}, v{G0+1}\nv_mov_b32 v{ZM}, v{ZM+1}\nv_mov_b32 v{ZM+1}, v{ZM+2}")
    A(f"s_mov_b32 exec_lo, 0x00010001\ns_mov_b32 exec_hi, 1\nds_write_b32 {vYR}, v{G0}\ns_mov_b64 exec, -1\nv_add_u32 {vYR}, 16, {vYR}")
    A(f"s_sub_u32 {sFL}, {sFL}, 1\ns_cmp_gt_u32 {sFL}, 0\ns_cbranch_scc1 L_take")
    A("L_last:")
    A(f"s_cmp_lg_u32 {sBLK}, 31\ns_cbranch_scc1 L_next\ns_setprio 3\ns_waitcnt vmcnt(0)")
    A("L_next:")
    A(f"s_add_u32 {sBLK}, {sBLK}, 1\ns_waitcnt lgkmcnt(0)\ns_barrier\ns_branch L_blk")
    A("L_kpart:\ns_setprio 0")
    A(f"s_and_b32 {sT0}, {sBLK}, {BPS-1}\ns_cbranch_scc1 L_nosm")
    for w in range(4):
        for k in range(BPS): A(f"ds_read_b32 v{G0+BPS*w+k}, {vSC} offset:{4096*w+256*k}")
        if w == 1: A("s_waitcnt lgkmcnt(0)")
    A("s_waitcnt lgkmcnt(0)")
    for i in range(NR): A(f"v_cvt_pk_bf16_f32 v{G0+i}, 0, v{G0+i}")
    for i in range(NR): A(f"v_mul_f32 v{G0+i}, {sSCALE}, v{G0+i}")
    for i in range(NR): A(f"v_cvt_pk_bf16_f32 v{G0+i}, 0, v{G0+i}")
    for i in range(NR): A(f"v_mul_f32 v{G0+i}, {sLOG2E}, v{G0+i}")
    A(f"v_max_f32 {t0}, v{G0}, v{G0+1}")
    for i in range(2, NR, 2): A(f"v_max3_f32 {t0}, {t0}, v{G0+i}, v{G0+i+1}")
    allred_lo("v_max_f32", [t0]); allred_top("v_max_f32", [t0], [t1])
    for i in range(NR): A(f"v_sub_f32 v{G0+i}, v{G0+i}, {t0}")
    for i in range(NR): A(f"v_exp_f32 v{G0+i}, v{G0+i}")
    A(f"v_add_f32 {t1}, v{G0}, v{G0+1}")
    for i in range(2, NR): A(f"v_add_f32 {t1}, {t1}, v{G0+i}")
    for i in range(NR): A(f"v_cvt_pk_bf16_f32 v{G0+i}, v{G0+i}, 0")
    for w in range(4):
        for k in range(BPS): A(f"ds_write_b32 {vSC}, v{G0+BPS*w+k} offset:{4096*w+256*k}")
        if w == 1: A("s_waitcnt lgkmcnt(0)")
    allred_lo("v_add_f32", [t1]); allred_top("v_add_f32", [t1], [t2])
    A(f"v_log_f32 {t3}, {t1}\nv_mov_b32 {t2}, {t0}\nv_add_f32 {t3}, {t3}, {t0}")
    A(f"ds_write_b64 {vML}, v[{T+2}:{T+3}]")
    A(f"v_add_u32 {vSC}, {256*BPS}, {vSC}\nv_add_u32 {vML}, 8, {vML}")
    A("L_nosm:")
    A(f"s_cmp_ge_u32 {sBLK}, {0 if 'q' in skip else NSEG-1}\ns_cbranch_scc1 L_noq")
    A("L_gq0:")
    def gq(p):
        for s in range(8):
            if s % 2 == 0: A(f"s_add_u32 {sT0}, {sHD}, {2048*s}")
            A(f"buffer_load_dwordx4 v[{G1+4*s}:{G1+4*s+3}], v7, {WS_}, {sT0} offen offset:{2048*(s%2)} {p}")
    poll("L_gq", gq, [f"v{G1+4*s+3}" for s in range(8)], first="", sleep=psleep)
    for s in range(1, 8):
        for k in range(3): A(f"v_add_f32 v{G1+k}, v{G1+k}, v{G1+4*s+k}")
    for k in range(3): A(f"v_cvt_pk_bf16_f32 v{G1+k}, v{G1+k}, 0")
    for k in range(3): A(f"ds_write_b16 {vQW}, v{G1+k} offset:{L_QB+128*k}")
    A(f"v_add_u32 {vQW}, 384, {vQW}\ns_add_u32 {sHD}, {sHD}, 16384")
    A(f"s_cmp_lt_i32 {sBLK}, 0\ns_cselect_b32 {sBLK}, 0, {sBLK}\ns_cbranch_scc1 L_gq0")
    if timed:
        A(f"s_cmp_lg_u32 {sBLK}, 0\ns_cbranch_scc1 L_next"); stamp(4)
    A("s_branch L_next")
    A("L_noq:")
    A(f"s_cmp_lg_u32 {sBLK}, {NSEG+1}\ns_cbranch_scc1 L_nogu")
    A(f"v_mul_u32_u24 {vWA}, 20, {vLANE}\nv_add_u32 {vWA}, {L_W}, {vWA}")
    A(f"v_lshrrev_b32 {t0}, 4, {vLANE}\nv_lshl_add_u32 {t0}, {t0}, 3, {vB}\nv_and_b32 {t1}, 8, {vLANE}\nv_lshlrev_b32 {t1}, 1, {t1}")
    A(f"v_lshl_add_u32 {vH1S}, {t0}, 5, {t1}\nv_lshl_add_u32 {vH1G}, {t0}, 11, {t1}")
    A(f"s_lshl_b32 {sH1S}, {sLIN}, 11\ns_add_u32 {sH1S}, {sH1S}, {WS_H1}")
    A(f"s_lshl_b32 {sH1G}, {sX}, 16\ns_lshl_b32 {sT0}, {sC}, 5\ns_add_u32 {sH1G}, {sH1G}, {sT0}\ns_add_u32 {sH1G}, {sH1G}, {WS_H1}")
    A(f"v_mul_u32_u24 {vYW}, 40, {vLANE}\nv_lshrrev_b32 {vYR}, 1, {vLANE}\nv_and_b32 {vYR}, 8, {vYR}\nv_lshrrev_b32 {t0}, 3, {vLANE}\nv_and_or_b32 {vYR}, {t0}, 4, {vYR}\nv_add_u32 {vYR}, {L_U}, {vYR}\nv_mov_b32 v43, {vYR}")
    A(f"v_lshlrev_b32 {t0}, 4, {vB}\nv_lshl_add_u32 {vYG}, {vA}, 12, {t0}\nv_lshlrev_b32 {vXA}, 4, {vA}\nv_mov_b32 v41, {sTAG}\nv_mov_b32 v{ZS+3}, {sTAG}")
    A(f"s_lshl_b32 {sYS}, {sLIN}, 12\ns_add_u32 {sYS}, {sYS}, {WS_H2}")
    A(f"s_lshl_b32 {sYG}, {sX}, 17\ns_lshl_b32 {sT0}, {sC}, 7\ns_add_u32 {sYG}, {sYG}, {sT0}\ns_add_u32 {sYG}, {sYG}, {WS_H2}")
    A(f"s_lshl_b32 {sH3G}, {sC}, 10\ns_add_u32 {sH3G}, {sH3G}, {WS_H3}\ns_lshl_b32 {sT0}, {sX}, 7\ns_add_u32 {sH3S}, {sH3G}, {sT0}")
    A(f"s_lshl_b32 {sXS}, {sLIN}, 8\ns_add_u32 {sXS}, {sXS}, {WS_XX}\ns_xor_b32 {sXG}, {sXS}, {32*256}")
    A(f"s_add_u32 {sTG2}, {sTAG}, 1\ns_mov_b32 {sFL}, 0")
    A(f"v_mul_u32_u24 {t0}, 3, {vB}\ns_mul_i32 {sT0}, {sC}, 20\nv_add_lshl_u32 {t0}, {t0}, {sT0}, 1\nv_mov_b32 {t2}, {OOB}")
    A(f"v_cmp_gt_u32 vcc, 7, {vB}\nv_cndmask_b32 v{vOUT}, {t2}, {t0}, vcc\nv_cmp_gt_u32 vcc, 6, {vB}\nv_cndmask_b32 v{vOUT+1}, {t2}, {t0}, vcc")
    A(f"v_mov_b32 {t0}, {WS_EP}\nv_or_b32 {t1}, s2, {vLANE}\nv_cmp_eq_u32 vcc, 0, {t1}\nv_cndmask_b32 v{vOUT+2}, {t2}, {t0}, vcc")
    A(f"buffer_load_ushort v{XV}, v{vOUT}, {X_}, 0 offen\nbuffer_load_ushort v{XV+1}, v{vOUT}, {X_}, 0 offen offset:2\nbuffer_load_ushort v{XV+2}, v{vOUT+1}, {X_}, 0 offen offset:4")
    for i in range(10): A(f"v_mov_b32 v{YY+i}, 0")
    A("s_waitcnt vmcnt(0)")
    for e in range(3): A(f"v_lshlrev_b32 v{XV+e}, 16, v{XV+e}")
    srd_lo(X_, pOUT)
    A("s_branch L_next")
    A("L_nogu:")
    A(f"s_cmp_lg_u32 {sBLK}, 16\ns_cbranch_scc1 L_next")
    A(f"v_lshrrev_b32 v10, {LLP}, {vLANE}\nv_lshlrev_b32 v10, 3, v10\ns_waitcnt lgkmcnt(0)\nds_read_b64 v[{T+2}:{T+3}], v10 offset:{L_ML}")
    A(f"s_lshl_b32 {sT1}, {sLIN}, 7\ns_add_u32 {sT1}, {sT1}, {WS_LS}\nv_and_b32 v11, {LP-1}, {vLANE}\nv_cmp_eq_u32 vcc, 0, v11")
    A(f"s_waitcnt lgkmcnt(0)\nv_mov_b32 {vM}, {t2}\nv_mov_b32 {t0}, {t3}\nv_mov_b32 {t1}, {sTAG}\nv_mov_b32 {t3}, {sTAG}")
    A(f"s_getreg_b32 {sLOC}, hwreg(HW_REG_XCC_ID)\nv_mov_b32 {t2}, {sLOC}\nv_lshlrev_b32 v10, 1, v10\ns_mov_b64 exec, vcc")
    A(f"buffer_store_dwordx4 v[{T}:{T+3}], v10, {WS_}, {sT1} offen sc1\ns_mov_b64 exec, -1")
    A(f"v_lshl_add_u32 {vLS}, v11, 7, v10\ns_branch L_next")
    A("L_tail:")
    A(f"v_mov_b32_dpp v{G0+1}, {vZK} row_ror:8 {DPP}\nv_cvt_pk_bf16_f32 v{G0}, {vZK}, v{G0+1}")
    A(f"s_mov_b32 exec_lo, 0x00010001\ns_mov_b32 exec_hi, 1\nds_write_b32 v43, v{G0} offset:64\ns_mov_b64 exec, -1\ns_waitcnt lgkmcnt(0)")
    stamp(7)
    A("s_barrier")
    def g2(p):
        for r in range(4):
            A(f"s_add_u32 {sT0}, {sYG}, {8*4096*r}\nbuffer_load_dwordx4 v[{G0+4*r}:{G0+4*r+3}], {vYG}, {WS_}, {sT0} offen {p}")
    poll("L_p2", g2, [f"v{G0+4*r+3}" for r in range(4)], loc=True)
    if stamps: A("s_memrealtime s[42:43]")
    for k in range(3): A(f"v_add_f32 v{G0+k}, v{G0+k}, v{G0+4+k}\nv_add_f32 v{G0+8+k}, v{G0+8+k}, v{G0+12+k}")
    for k in range(3): A(f"v_add_f32 v{G0+k}, v{G0+k}, v{G0+8+k}")
    def red_hi(b):
        for k in range(3): A(f"v_add_f32_dpp v{b+k}, v{b+k}, v{b+k} row_ror:8 {DPP}")
        allred_top("v_add_f32", [f"v{b+k}" for k in range(3)], [f"v{b+4+k}" for k in range(3)])
    red_hi(G0)
    A(f"s_cmp_eq_u32 {sS}, {sX}\ns_cbranch_scc1 L_red")
    A(f"s_mov_b64 exec, 0xff\nbuffer_store_dwordx4 v[{G0}:{G0+3}], v7, {WS_}, {sH3S} offen sc1\ns_mov_b64 exec, -1\ns_branch L_done")
    A("L_red:")
    BUF = [G0 + 16 + 4*k for k in range(np3)]
    for b in BUF:
        for k in range(3): A(f"v_mov_b32 v{b+k}, v{G0+k}")
    A(f"v_cmp_ne_u32 vcc, {sX}, {vA}\ns_mov_b32 {sT2}, {spin}\ns_mov_b64 exec, vcc")
    def l3(k): A(f"buffer_load_dwordx4 v[{BUF[k]}:{BUF[k]+3}], v7, {WS_}, {sH3G} offen sc1")
    for k in range(np3-1):
        l3(k); A(f"s_sleep {s3}")
    A("L_p3:")
    for k in range(np3):
        l3((k + np3 - 1) % np3)
        A(f"s_waitcnt vmcnt({np3-1})\nv_cmp_ne_u32 vcc, {sTAG}, v{BUF[k]+3}\ns_cbranch_vccz L_p3d{k}")
    A(f"s_sub_u32 {sT2}, {sT2}, 1\ns_cbranch_scc0 L_p3")
    for k in reversed(range(np3)):
        A(f"L_p3d{k}:\ns_mov_b64 exec, -1")
        for e in range(3): A(f"v_add_f32_dpp v{G1+e}, v{BUF[k]+e}, v{BUF[k]+e} row_ror:8 {DPP}")
        if k: A("s_branch L_p3e")
    A("L_p3e:")
    if stamps: A("s_memrealtime s[48:49]")
    allred_top("v_add_f32", [f"v{G1+k}" for k in range(3)], [f"v{G1+4+k}" for k in range(3)])
    for e in range(3): A(f"v_add_f32 v{G1+e}, v{G1+e}, v{XV+e}")
    for e in range(3): A(f"v_cvt_pk_bf16_f32 v{G1+e}, v{G1+e}, 0")
    A("s_mov_b64 exec, 0xff")
    A(f"buffer_store_short v{G1}, v{vOUT}, {X_}, 0 offen\nbuffer_store_short v{G1+1}, v{vOUT}, {X_}, 0 offen offset:2\nbuffer_store_short v{G1+2}, v{vOUT+1}, {X_}, 0 offen offset:4")
    A(f"buffer_store_dword v41, v{vOUT+2}, {WS_}, 0 offen")
    A("s_mov_b64 exec, -1")
    A("L_done:")
    if diag is not None:
        wave, st, mult = diag
        stamp(8)
        A(f"s_cmp_lg_u32 s2, 0\ns_cbranch_scc1 L_end\ns_cmp_lg_u32 {sW}, {wave}\ns_cbranch_scc1 L_end")
        A(f"s_waitcnt lgkmcnt(0)\ns_sub_u32 {sT0}, s{sST+2*st}, s{sST}\ns_mul_i32 {sT0}, {sT0}, {mult}\ns_add_u32 {sT0}, {sT0}, 30000")
        A(f"s_min_u32 {sT0}, {sT0}, 200000")
        A(f"L_dg:\ns_memrealtime s[72:73]\ns_waitcnt lgkmcnt(0)\ns_sub_u32 {sT1}, s72, s{sST}\ns_cmp_lt_u32 {sT1}, {sT0}\ns_cbranch_scc1 L_dg")
    if stamps:
        stamp(8)
        A(f"s_mul_i32 {sT0}, s2, 5\ns_add_u32 {sT0}, {sT0}, {sW}\ns_lshl_b32 {sT0}, {sT0}, 6\ns_add_u32 {sT0}, {sT0}, {WS_ST}")
        A(f"s_getreg_b32 {sT1}, hwreg(HW_REG_XCC_ID)")
        A("s_waitcnt lgkmcnt(0)\nv_mov_b32 v4, 0")
        for i in range(9): A(f"v_writelane_b32 v4, s{sST+2*i}, {i}")
        A(f"v_writelane_b32 v4, s42, 9\nv_writelane_b32 v4, s48, 10\nv_writelane_b32 v4, s50, 11\nv_writelane_b32 v4, s47, 12")
        A(f"v_writelane_b32 v4, {sT1}, 15")
        A(f"v_lshlrev_b32 v5, 2, {vLANE}\ns_mov_b64 exec, 0xffff")
        A(f"buffer_store_dword v4, v5, {WS_}, {sT0} offen")
    A("L_end:\ns_endpgm")
    A('.section .rodata,"a"\n.p2align 6')
    A(f".amdhsa_kernel {KN}")
    nv4 = (NV+3)//4*4
    A(f".amdhsa_next_free_vgpr {nv4}\n.amdhsa_next_free_sgpr 102\n.amdhsa_accum_offset {nv4}")
    A(".amdhsa_group_segment_fixed_size 0\n.amdhsa_kernarg_size 96\n.amdhsa_user_sgpr_count 2")
    A(".amdhsa_user_sgpr_kernarg_segment_ptr 1\n.amdhsa_system_sgpr_workgroup_id_x 1")
    A(".amdhsa_float_denorm_mode_32 3\n.end_amdhsa_kernel")
    return A.finish()

if __name__ == "__main__":
    kw = eval("dict(" + (sys.argv[2] if len(sys.argv) > 2 else "") + ")")
    open(sys.argv[1], "w").write(gen(**kw))
```

```python
import sys, os
sys.path.insert(0, os.path.dirname(os.path.abspath(__file__)))
from asmlib import Asm
KN = "parallel_sum__mha_block_cached__glu_gated_reglu__decode_kernel"
HEADER = open("parallel_sum__mha_block_cached__glu_gated_reglu__decode.s.ref").read().split("; Override launch")[0]

HB = 32768*384
TB = 32*HB
WS_EP, WS_LS, WS_H3, WS_XX, WS_PR, WS_QS, WS_H1, WS_ST, WS_H2, WS_SIZE = 0, 0x8000, 0x10000, 0x20000, 0x40000, 0x80000, 0x100000, 0x200000, 0x280000, 0x400000
OOB = 0x40000000
SPIN = 1 << 20

def gen(NSEG=8, G=6, F=5, FH=6, RB=8, pace=5, deep=0, per=12, bs=2, fb=22, fbo=26, pre0=2, pre1=6, trig=13, skip='', xmap=1, xd=(6,5,3,1,-1,-3,-5,-6), xp=2, PI=(6,7,5,4,3,2,1,0), xs=0, np3=1, s3=6, dfirst=1, ab=0, psleep=4,
        spin=SPIN, local=1, lp="nt", pf="sc1", own=1, lsb=17, stamps=False, diag=None, diag2=None):
    A = Asm()
    NG = 32//NSEG; GS = 8*NSEG; BPS = 16//NSEG; LGS = GS.bit_length()-1
    PAIR = NSEG == 8
    TSTR = GS*4*3072
    assert G < RB and 24 % RB == 0 and NSEG == 8 and G == 6
    if diag2: stamps = True
    timed = stamps or diag is not None
    L_OP = 0; L_W = 8192; L_YP = L_W + 15360; L_U = L_YP + 12800 + 64; L_QP = L_U + 128; L_QB = L_QP + 6400; L_ML = L_QB + 384*NSEG
    L_CT = L_ML + 64; L_SC = L_CT + 64; L_SIZE = L_SC + 16384 + 256
    assert L_SC < 65536
    sW, sHQ, sS, sG, sMEM = "s3", "s4", "s5", "s6", "s7"
    KV_, WS_, TA_, TB_, TC_, X_ = "s[8:11]", "s[16:19]", "s[20:23]", "s[24:27]", "s[28:31]", "s[32:35]"
    mB1, mB0 = "s[12:13]", "s[14:15]"
    pX, pK, pV, pWQ, pWO, pWG, pWU, pWD, pOUT, pDBG, pWS = 36, 38, 40, 42, 44, 48, 50, 52, 54, 56, 58
    sOFF, sOFF0, sIB, sBLK, sLIN, sX, sC, sT0, sT1, sT2, sT3, sOWN = [f"s{r}" for r in range(60, 72)]
    sTAG = "s46"
    sST = 84
    vLANE, vKV, vA, vB = "v0", "v1", "v2", "v3"
    ACC, Q = 8, 32
    T = 44
    RING = 56
    PB = RING + 48
    NV = PB + 96
    t0, t1, t2, t3 = f"v{T}", f"v{T+1}", f"v{T+2}", f"v{T+3}"
    def stamp(i):
        if timed: A(f"s_memrealtime s[{sST+2*i}:{sST+2*i+1}]")
    def srd_hi(name, size):
        b = int(name[2:name.index(":")]); A(f"s_mov_b32 s{b+2}, {size}\ns_mov_b32 s{b+3}, 0x20000")
    def srd_lo(name, ptr):
        b = int(name[2:name.index(":")]); A(f"s_mov_b64 s[{b}:{b+1}], s[{ptr}:{ptr+1}]")
    def srd(name, ptr, size): srd_lo(name, ptr); srd_hi(name, size)
    DPP = "row_mask:0xf bank_mask:0xf"
    PATS = ("quad_perm:[1,0,3,2]", "quad_perm:[2,3,0,1]", "row_half_mirror", "row_mirror")
    def allred_lo(op, vs, n=4):
        for pat in PATS[:n]:
            for v in vs: A(f"{op}_dpp {v}, {v}, {v} {pat} {DPP}")
    def allred_top(op, vs, ts):
        for sw in ("v_permlane16_swap_b32", "v_permlane32_swap_b32"):
            for v, t in zip(vs, ts): A(f"v_mov_b32 {t}, {v}")
            for v, t in zip(vs, ts): A(f"{sw} {t}, {v}")
            for v, t in zip(vs, ts): A(f"{op} {v}, {v}, {t}")
    def redscat(base, n):
        for g in range(n):
            for e in range(4): A(f"v_permlane32_swap_b32 v{base+8*g+e}, v{base+8*g+e+4}")
        for g in range(n):
            for e in range(4): A(f"v_add_f32 v{base+8*g+e}, v{base+8*g+e}, v{base+8*g+e+4}")
        for g in range(n):
            for e in range(2): A(f"v_permlane16_swap_b32 v{base+8*g+e}, v{base+8*g+e+2}")
        for g in range(n):
            for e in range(2): A(f"v_add_f32 v{base+8*g+e}, v{base+8*g+e}, v{base+8*g+e+2}")
        for g in range(n):
            A(f"v_add_f32_dpp v{base+8*g}, v{base+8*g}, v{base+8*g} row_ror:8 row_mask:0xf bank_mask:0x3")
        for g in range(n):
            A(f"v_add_f32_dpp v{base+8*g}, v{base+8*g+1}, v{base+8*g+1} row_ror:8 row_mask:0xf bank_mask:0xc")
    def redscat_lo(bases):
        for S in bases:
            for e in range(4): A(f"v_add_f32_dpp v{S+e}, v{S+e}, v{S+e} row_half_mirror row_mask:0xf bank_mask:0x5")
        for S in bases:
            for e in range(4): A(f"v_add_f32_dpp v{S+e}, v{S+e+4}, v{S+e+4} row_half_mirror row_mask:0xf bank_mask:0xa")
        for S in bases:
            for e in range(4): A(f"v_add_f32_dpp v{S+e}, v{S+e}, v{S+e} quad_perm:[2,3,0,1] {DPP}")
        for S in bases:
            for e in range(2): A(f"v_cndmask_b32 v{S+e}, v{S+e}, v{S+e+2}, {mB1}")
        for S in bases:
            for e in range(2): A(f"v_add_f32_dpp v{S+e}, v{S+e}, v{S+e} quad_perm:[1,0,3,2] {DPP}")
        for S in bases: A(f"v_cndmask_b32 v{S}, v{S}, v{S+1}, {mB0}")
    def axpy(acc, data, n, pl, ph):
        for i in range(n):
            A(f"v_dot2c_f32_bf16 v{acc+2*i}, v{data+i}, {pl}\nv_dot2c_f32_bf16 v{acc+2*i+1}, v{data+i}, {ph}")
    def ld(reg, j): A(f"buffer_load_dwordx4 v[{reg}:{reg+3}], {vKV}, {KV_}, {sOFF} offen offset:{128*j} nt")
    uid = [0]
    PILUT = sum(p << (4*i) for i, p in enumerate(PI))
    assert PI[0] != 7 and sorted(PI) == list(range(8))
    def next_block(last):
        uid[0] += 1; u = uid[0]
        A(f"s_add_u32 {sIB}, {sIB}, 1\ns_and_b32 {sT0}, {sIB}, {BPS-1}\ns_cbranch_scc1 L_nb{u}")
        if not last:
            A(f"s_add_u32 {sOFF}, {sOFF}, {(NG-1)*HB}")
            A(f"s_cmp_lg_u32 {sIB}, 16\ns_cbranch_scc1 L_nb{u}")
            A(f"s_mov_b64 s[8:9], s[{pV}:{pV+1}]\ns_add_u32 {sOFF}, {sOFF0}, {PI[0]*NG*HB}")
        else:
            A(f"s_lshl_b32 {sT0}, {sIB}, 1\ns_lshr_b32 {sT0}, {hex(PILUT)}, {sT0}\ns_and_b32 {sT0}, {sT0}, 7")
            A(f"s_mul_i32 {sOFF}, {sT0}, {NG*HB}\ns_add_u32 {sOFF}, {sOFF}, {sOFF0}")
        A(f"L_nb{u}:")
    def lev(n, f):
        fr = f - int(f)
        return int(f) + (1 if int((n+1)*fr + 1e-9) != int(n*fr + 1e-9) else 0)
    cps = list(range(0, 24, per)) if fb else []
    assert all(c + G + 1 <= 23 for c in cps) and per > G
    PR_, sTHR, vPC, vPO, vPL, vPS = TC_, "s72", "v52", "v53", "v54", "v55"
    def slot(n, last=False):
        uid[0] += 1; u = uid[0]
        fi, fh = lev(n, F), lev(n, FH)
        assert fi <= fh <= G
        def cnt(x): return x - 1 + 2*sum(1 for c in cps if 0 < n - c <= x)
        m = n + G
        if m % 3 == 0:
            A(f"s_add_u32 {sOFF}, {sOFF}, {TSTR}")
            if m == 24: next_block(last)
        if fi < fh: A(f"s_cbranch_vccnz L_dp{u}\ns_waitcnt vmcnt({cnt(fi)})\nL_dp{u}:")
        A(f"s_waitcnt vmcnt({cnt(fh)})")
        if last and m >= 24: A(f"s_cmp_eq_u32 {sIB}, 32\ns_cbranch_scc1 L_wl{m-24}")
        ld(RING + 4*(m % RB), m % 3)
        if last and m >= 24: A(f"L_wb{m-24}:")
        if n - G - 1 in cps:
            if xd:
                A(f"v_readlane_b32 {sT1}, {vPO}, 32\ns_sub_u32 {sT1}, {sT1}, {sTAG}\ns_cmp_lt_u32 {sT1}, 33\ns_cselect_b32 {sTHR}, {sT1}, {sTHR}")
            A(f"v_sub_u32 {vPO}, {vPO}, {vPC}\nv_cmp_gt_u32 vcc, 64, {vPO}\ns_bcnt1_i32_b32 {sT0}, vcc_lo")
            A(f"s_cmp_gt_u32 {sT0}, {sTHR}\ns_cselect_b64 vcc, -1, 0")
            if stamps: A(f"s_and_b32 {sT0}, vcc_lo, 1\ns_add_u32 s47, s47, {sT0}")
            if last and deep: A(f"s_cmp_ge_u32 {sBLK}, {32-deep}\ns_cselect_b64 vcc, -1, vcc")
        if n in cps:
            A(f"v_add_u32 {vPC}, 1, {vPC}\nbuffer_store_dword {vPC}, {vPS}, {PR_}, 0 offen\nbuffer_load_dword {vPO}, {vPL}, {PR_}, 0 offen nt")
    def qk4(acc, data, j):
        for e in range(4):
            if j == 0 and e == 0: A(f"v_dot2_f32_bf16 v{acc}, v{data}, v{Q}, 0")
            else: A(f"v_dot2_f32_bf16 v{acc}, v{data+e}, v{Q+4*j+e}, v{acc}")

    A(HEADER.rstrip())
    A(f"; @launch grid=(256,1,1) block=(320,1,1) lds={L_SIZE}")
    A('.amdgcn_target "amdgcn-amd-amdhsa--gfx950"\n.text')
    A(f".globl {KN}\n.p2align 8\n.type {KN},@function\n{KN}:")
    A("s_cmp_ge_u32 s2, 256\ns_cbranch_scc1 L_end")
    A("s_load_dwordx16 s[36:51], s[0:1], 0\ns_load_dwordx8 s[52:59], s[0:1], 64")
    stamp(0)
    A(f"v_lshrrev_b32 v1, 6, v0\nv_and_b32 {vLANE}, 63, v0\nv_readfirstlane_b32 {sW}, v1\ns_setprio 3")
    A(f"v_mov_b32 v8, 0\nds_write_b32 v8, v8 offset:{L_CT}")
    order = []
    for v in range(8):
        if v not in order: order += [v, v ^ xmap] if (v & 1) == 0 or (xmap & 1) == 0 else [v ^ xmap, v]
    lut = sum(order.index(v) << (4*v) for v in range(8))
    A(f"s_and_b32 {sX}, s2, 7\ns_lshl_b32 {sX}, {sX}, 2\ns_lshr_b32 {sX}, {hex(lut)}, {sX}\ns_and_b32 {sX}, {sX}, 7")
    A(f"s_lshr_b32 {sC}, s2, 3\ns_lshl_b32 {sT0}, {sX}, 5\ns_add_u32 {sLIN}, {sT0}, {sC}")
    A(f"s_lshr_b32 {sG}, {sLIN}, {LGS}\ns_and_b32 {sMEM}, {sLIN}, {GS-1}\ns_and_b32 {sS}, {sMEM}, 7")
    A(f"s_lshr_b32 {sT0}, {sMEM}, 3\ns_mul_i32 {sHQ}, {sT0}, {NG}\ns_add_u32 {sHQ}, {sHQ}, {sG}")
    A(f"s_sub_u32 {sW}, {sW}, 1\ns_cselect_b32 {sW}, 4, {sW}")
    A(f"v_lshrrev_b32 {vA}, 3, {vLANE}\nv_and_b32 {vB}, 7, {vLANE}")
    A(f"v_lshlrev_b32 v7, 4, {vB}")
    A(f"v_mov_b32 v4, 384\nv_mad_u32_u24 {vKV}, {vA}, v4, v7")
    A(f"v_mov_b32 v4, 12288\nv_mad_u32_u24 v4, {vA}, v4, v7")
    A(f"v_mov_b32 v5, 3072\nv_mad_u32_u24 v5, {vA}, v5, v7")
    A(f"v_mov_b32 v6, {OOB}\nv_cmp_gt_u32 vcc, 6, {vB}\nv_cndmask_b32 v5, v6, v5, vcc")
    A(f"v_lshlrev_b32 v6, 1, {vA}\nv_lshlrev_b32 v7, 4, {vLANE}")
    A(f"s_mul_i32 {sT0}, {sS}, 80\ns_lshl_b32 {sT1}, {sW}, 4\ns_add_u32 {sT0}, {sT0}, {sT1}")
    A(f"s_mul_i32 {sT1}, {sT0}, 12288\ns_mul_i32 {sT2}, {sHQ}, 384\ns_add_u32 {sT1}, {sT1}, {sT2}")
    A(f"s_mul_i32 {sT2}, {sT0}, 3072\ns_lshr_b32 {sT3}, {sLIN}, 3\ns_mul_i32 {sT3}, {sT3}, 96\ns_add_u32 {sT2}, {sT2}, {sT3}")
    A(f"s_lshl_b32 {sT0}, {sT0}, 1")
    srd_hi(X_, 1280); srd_hi(TA_, 640*12288); srd_hi(TB_, 640*3072); srd_hi(TC_, 640*3072); srd_hi(WS_, WS_SIZE); srd_hi(KV_, TB)
    A("s_waitcnt lgkmcnt(0)")
    srd_lo(X_, pX)
    XR, WD, WA = RING + 40, RING, ACC
    A(f"buffer_load_dwordx4 v[{XR}:{XR+3}], v7, {X_}, 0 offen")
    A(f"buffer_load_dwordx4 v[{XR+4}:{XR+7}], v7, {X_}, 0 offen offset:1024")
    A(f"buffer_load_ushort v{T+10}, v6, {X_}, {sT0} offen")
    A(f"buffer_load_ushort v{T+11}, v6, {X_}, {sT0} offen offset:16")
    srd_lo(TA_, pWQ); srd_lo(TB_, pWG); srd_lo(TC_, pWU)
    A(f"s_load_dword {sTAG}, s[{pWS}:{pWS+1}], {WS_EP}")
    A("s_barrier")
    for t in range(2):
        for j in range(3):
            A(f"buffer_load_dwordx4 v[{WD+20*t+4*j}:{WD+20*t+4*j+3}], v4, {TA_}, {sT1} offen offset:{128*j} nt")
        A(f"buffer_load_dwordx4 v[{WD+20*t+12}:{WD+20*t+15}], v5, {TB_}, {sT2} offen nt")
        A(f"buffer_load_dwordx4 v[{WD+20*t+16}:{WD+20*t+19}], v5, {TC_}, {sT2} offen nt")
        if t == 0: A(f"s_add_u32 {sT1}, {sT1}, {8*12288}\ns_add_u32 {sT2}, {sT2}, {8*3072}")
    srd_lo(KV_, pK); srd_lo(WS_, pWS)
    A(f"s_lshl_b32 {sT0}, {sMEM}, 2\ns_add_u32 {sT0}, {sT0}, {sW}\ns_mul_i32 {sT0}, {sT0}, 3072")
    A(f"s_mul_i32 {sOFF0}, {sG}, {HB}\ns_add_u32 {sOFF0}, {sOFF0}, {sT0}\ns_mov_b32 {sOFF}, {sOFF0}")
    A(f"s_mov_b32 s12, 0xcccccccc\ns_mov_b32 s13, 0xcccccccc\ns_mov_b32 s14, 0xaaaaaaaa\ns_mov_b32 s15, 0xaaaaaaaa")
    A(f"s_and_b32 {sOWN}, {sX}, 1\ns_xor_b32 {sOWN}, {sOWN}, {own}")
    A(f"s_cmp_eq_u32 {sW}, 4\ns_cbranch_scc1 L_ln\ns_setprio 1\nL_ln:\ns_waitcnt vmcnt(10) lgkmcnt(0)")
    A(f"s_mul_i32 {sTAG}, {sTAG}, 1664525\ns_add_u32 {sTAG}, {sTAG}, 1013904223")
    XF = WA
    for i in range(8):
        A(f"v_lshlrev_b32 v{XF+2*i}, 16, v{XR+i}\nv_and_b32 v{XF+2*i+1}, 0xffff0000, v{XR+i}")
    l0, l1, l2, l3 = "v24", "v25", "v26", "v27"
    A(f"v_add_f32 {l0}, v{XF}, v{XF+1}\nv_add_f32 {l1}, v{XF+2}, v{XF+3}")
    for i in range(4, 16, 2): A(f"v_add_f32 {l0}, {l0}, v{XF+i}\nv_add_f32 {l1}, {l1}, v{XF+i+1}")
    A(f"v_add_f32 {l0}, {l0}, {l1}")
    allred_lo("v_add_f32", [l0]); allred_top("v_add_f32", [l0], [l1])
    A(f"v_mul_f32 {l0}, 0x3acccccd, {l0}")
    for i in range(16): A(f"v_sub_f32 v{XF+i}, v{XF+i}, {l0}")
    A(f"v_mul_f32 {l1}, v{XF}, v{XF}\nv_mul_f32 {l2}, v{XF+8}, v{XF+8}")
    for i in range(1, 8): A(f"v_fmac_f32 {l1}, v{XF+i}, v{XF+i}\nv_fmac_f32 {l2}, v{XF+8+i}, v{XF+8+i}")
    A(f"v_cmp_gt_u32 vcc, 16, {vLANE}\nv_cndmask_b32 {l2}, 0, {l2}, vcc\nv_add_f32 {l1}, {l1}, {l2}")
    allred_lo("v_add_f32", [l1]); allred_top("v_add_f32", [l1], [l2])
    A(f"v_mul_f32 {l1}, 0x3acccccd, {l1}")
    A(f"v_cvt_pk_bf16_f32 {l0}, 0, {l0}\nv_cvt_pk_bf16_f32 {l1}, 0, {l1}")
    A(f"v_add_f32 {l1}, 0x3727c5ac, {l1}\nv_cvt_pk_bf16_f32 {l1}, 0, {l1}\nv_sqrt_f32 {l1}, {l1}")
    A(f"v_cvt_pk_bf16_f32 {l1}, 0, {l1}\nv_rcp_f32 {l2}, {l1}")
    for t in range(2):
        xr = f"v{T+10+t}"
        A(f"v_lshlrev_b32 {xr}, 16, {xr}\nv_sub_f32 {xr}, {xr}, {l0}\nv_cvt_pk_bf16_f32 {xr}, 0, {xr}")
        A(f"v_mul_f32 {l3}, {xr}, {l2}\nv_fma_f32 {xr}, -{l3}, {l1}, {xr}\nv_fma_f32 {xr}, {xr}, {l2}, {l3}")
        A(f"v_cvt_pk_bf16_f32 v{T+6+2*t}, {xr}, 0\nv_cvt_pk_bf16_f32 v{T+7+2*t}, 0, {xr}")
    for i in range(40): A(f"v_mov_b32 v{WA+i}, 0")
    stamp(1)
    sD = [f"s{r}" for r in range(74, 80)]; sL = ["s80", "s81", "s82"]
    def dma_setup():
        srd(TA_, pWO, 6144*1280); srd(TB_, pWD, 1536*1280)
        A(f"s_lshl_b32 {sT2}, {sS}, 3\ns_lshr_b32 {sT1}, {sC}, 3\ns_lshl_b32 {sT1}, {sT1}, 1\ns_add_u32 {sT2}, {sT2}, {sT1}")
        A(f"s_mul_i32 {sT1}, {sG}, 192\ns_add_u32 {sT2}, {sT2}, {sT1}")
        A(f"s_lshl_b32 {sT0}, {sW}, 1\ns_add_u32 {sT0}, {sT0}, {sOWN}\ns_lshl_b32 {sT0}, {sT0}, 2\ns_lshr_b32 {sT0}, {hex(PILUT)}, {sT0}\ns_and_b32 {sT0}, {sT0}, 7\ns_mul_i32 {sT0}, {sT0}, {NG*192}\ns_add_u32 {sT0}, {sT0}, {sT2}")
        A(f"s_mul_i32 {sL[0]}, {sT0}, 1280\ns_add_u32 {sL[1]}, {sL[0]}, {64*1280}\ns_add_u32 {sL[2]}, {sL[0]}, {128*1280}")
        A(f"s_lshl_b32 {sT0}, {sW}, 6\ns_add_u32 {sT0}, {sT0}, {sT2}\ns_add_u32 {sT0}, {sT0}, {PI[7]*NG*192}\ns_mul_i32 {sD[2]}, {sT0}, 1280\ns_mul_i32 {sD[3]}, {sW}, 2560")
        A(f"s_mul_i32 {sT0}, {sLIN}, 7680\ns_lshl_b32 {sD[5]}, {sW}, 11\ns_add_u32 {sD[4]}, {sT0}, {sD[5]}")
    def w(paced):
        if paced: A(f"s_waitcnt vmcnt({pace-1})")
    def op_pb(n):
        def f(paced):
            if n and n % 3 == 0: A(f"s_add_u32 {sOFF}, {sOFF}, {TSTR}")
            w(paced); ld(PB + 4*n, n % 3)
        return f
    def op_wo(jj, i, off=0, base=7680):
        def f(paced):
            if i == 0: A(f"s_add_u32 m0, {sD[off+1]}, {L_W+base+2560*jj}")
            if i == 2: A("s_mov_b32 exec_hi, 0")
            w(paced); A(f"buffer_load_dwordx4 v7, {TA_}, {sD[off]} offen offset:{1024*i} nt lds")
            if i == 2: A(f"s_mov_b32 exec_hi, -1\ns_add_u32 {sD[off]}, {sD[off]}, {64*1280}")
        return f
    def op_wd(i):
        def f(paced):
            if i == 0: A(f"s_add_u32 m0, {sD[5]}, {L_W}")
            else: A(f"s_cmp_eq_u32 {sW}, 3\ns_cselect_b32 exec_hi, 0, -1")
            w(paced); A(f"buffer_load_dwordx4 v7, {TB_}, {sD[4]} offen offset:{1024*i} nt lds")
            if i: A("s_mov_b32 exec_hi, -1")
        return f
    def op_s4(paced):
        A(f"s_cmp_eq_u32 {sW}, 3\ns_cbranch_scc1 L_nos4")
        for i in range(3): op_wo(0, i, 2, 7680)(paced)
        A("L_nos4:")
    dma = [op_wd(0), op_wd(1), op_s4]
    pbs = [op_pb(n) for n in range(24)]
    ops = dma + pbs if dfirst else pbs + dma
    assert pre0 <= 2 or not dfirst
    dma_setup()
    A(f"s_waitcnt vmcnt(5)\ns_cmp_eq_u32 {sW}, 4\ns_cbranch_scc1 L_nopre0")
    for n in range(pre0): ops[n](False)
    A("L_nopre0:")
    axpy(WA, WD, 20, f"v{T+6}", f"v{T+7}")
    A(f"s_cmp_eq_u32 {sW}, 4\ns_cbranch_scc1 L_nopre1\ns_waitcnt vmcnt({pre0})")
    for n in range(pre0, pre1): ops[n](False)
    A("s_branch L_pre2\nL_nopre1:\ns_waitcnt vmcnt(0)\nL_pre2:")
    axpy(WA, WD+20, 20, f"v{T+8}", f"v{T+9}")
    redscat(WA, 5)
    A(f"s_mul_i32 {sT0}, {sW}, 1280\nv_lshl_add_u32 v4, {vLANE}, 2, {sT0}")
    for k in range(5): A(f"ds_write_b32 v4, v{WA+8*k} offset:{L_QP+256*k}")
    A(f"v_mov_b32 v5, 0\nv_mov_b32 v6, 1\ns_mov_b64 exec, 1\nds_add_u32 v5, v6 offset:{L_CT}\ns_mov_b64 exec, -1")
    stamp(2)
    if ab: A("s_barrier")
    A(f"s_cmp_eq_u32 {sW}, 4\ns_cbranch_scc1 L_svc")
    for n in range(pre1, len(ops)):
        ops[n](True)
        if n == trig: A(f"v_mov_b32 v6, 64\ns_mov_b64 exec, 1\nds_add_u32 v5, v6 offset:{L_CT}\ns_mov_b64 exec, -1")
    A(f"s_mov_b32 {sIB}, 1")
    for m in range(G):
        if m % 3 == 0: A(f"s_add_u32 {sOFF}, {sOFF}, {TSTR}")
        A(f"s_waitcnt vmcnt({pace-1})"); ld(RING + 4*m, m % 3)
    vQA, vSA = "v4", "v5"
    A(f"v_lshlrev_b32 {vQA}, 4, {vB}\nv_add_u32 {vQA}, {L_QB}, {vQA}")
    A(f"s_lshl_b32 {sT0}, {sW}, 12\ns_add_u32 {sT0}, {sT0}, {L_SC}\nv_lshl_add_u32 {vSA}, {vLANE}, 2, {sT0}")
    A(f"s_lshl_b32 {sT0}, {sX}, 2\ns_add_u32 {sT0}, {sT0}, {sW}\ns_mul_i32 {sT0}, {sT0}, 4224\ns_add_u32 {sT0}, {sT0}, {WS_PR}")
    A(f"s_add_u32 s28, s{pWS}, {sT0}\ns_addc_u32 s29, s{pWS+1}, 0\ns_mov_b32 s30, {132 if xd else 128}")
    A(f"v_lshlrev_b32 {vPL}, 2, {vLANE}\nv_mov_b32 {vPS}, 0x1000\nv_cmp_eq_u32 vcc, {sC}, {vLANE}\nv_cndmask_b32 {vPS}, {vPS}, {vPL}, vcc\nv_mov_b32 {vPC}, {sTAG}")
    A(f"s_getreg_b32 {sTHR}, hwreg(HW_REG_XCC_ID)\ns_bitcmp1_b32 {sTHR}, 0\ns_cselect_b32 {sTHR}, {fbo}, {fb}")
    A(f"s_add_u32 {sT0}, {sW}, {sOWN}\ns_cmp_eq_u32 {sT0}, 4\ns_cselect_b32 s22, 0, s22\ns_cselect_b32 {sL[0]}, 0, {sL[0]}\ns_cselect_b32 {sL[1]}, 0, {sL[1]}\ns_cselect_b32 {sL[2]}, 0, {sL[2]}")
    A(f"s_mov_b64 vcc, 0\ns_mov_b32 s47, 0")
    stamp(3)
    A("s_barrier")
    for j in range(3): A(f"ds_read_b128 v[{Q+4*j}:{Q+4*j+3}], {vQA} offset:{128*j}")
    A("s_waitcnt lgkmcnt(0)")
    stamp(4)
    SA, R, RT, S2 = ACC, ACC + 2, ACC + 6, ACC + 8
    def k_after_tile(t):
        A(f"v_add_f32_dpp v{R+(t&3)}, v{SA+(t&1)}, v{SA+(t&1)} row_half_mirror row_mask:0xf bank_mask:{'0xa' if t >= 4 else '0x5'}")
    def k_stage2(e): A(f"v_add_f32_dpp v{R+e}, v{R+e}, v{R+e} quad_perm:[2,3,0,1] {DPP}")
    def k_fin(which):
        if which == 0:
            k_after_tile(7); k_stage2(3)
            A(f"v_cndmask_b32 v{RT+1}, v{R+1}, v{R+3}, {mB1}")
        else:
            A(f"v_add_f32_dpp v{RT+1}, v{RT+1}, v{RT+1} quad_perm:[1,0,3,2] {DPP}\nv_cndmask_b32 v{RT}, v{RT}, v{RT+1}, {mB0}")
            A(f"ds_write_b32 {vSA}, v{RT}\nv_add_u32 {vSA}, 256, {vSA}")
    def k_body(first):
        for n in range(24):
            t, j = n//3, n % 3
            slot(n)
            if not first:
                if n < 2: k_fin(n)
                if n == 0: A("s_waitcnt lgkmcnt(0)")
                if n == bs: A("s_waitcnt lgkmcnt(0)\ns_barrier")
            else: qk4(S2 + t, PB + 4*n, j)
            if j == 0 and t >= 1: k_after_tile(t-1)
            if j == 1 and t >= 5: k_stage2(t-5)
            if n == 23: A(f"v_cndmask_b32 v{RT}, v{R}, v{R+2}, {mB1}")
            if n == 20: A(f"s_add_u32 {sBLK}, {sBLK}, 1\ns_and_b32 {sT0}, {sBLK}, {BPS-1}\ns_cselect_b32 {sT0}, 0, 384\nv_add_u32 {vQA}, {sT0}, {vQA}")
            if "c" not in skip: qk4(SA + (t & 1), RING + 4*(n % RB), j)
            if n == 23: A(f"v_add_f32_dpp v{RT}, v{RT}, v{RT} quad_perm:[1,0,3,2] {DPP}")
            if t == 7: A(f"ds_read_b128 v[{Q+4*j}:{Q+4*j+3}], {vQA} offset:{128*j}")
    A(f"s_mov_b32 {sBLK}, 1")
    k_body(True)
    redscat_lo([S2])
    A(f"ds_write_b32 {vSA}, v{S2}\nv_add_u32 {vSA}, 256, {vSA}")
    A("L_k:")
    k_body(False)
    if stamps: A(f"s_cmp_lg_u32 {sBLK}, 3\ns_cbranch_scc1 L_st1\ns_memrealtime s[42:43]\nL_st1:")
    A(f"s_cmp_lt_u32 {sBLK}, 16\ns_cbranch_scc1 L_k")
    if stamps: A("s_memrealtime s[50:51]")
    vP, vPN, pl, ph, vOA, RV = "v44", "v45", "v46", "v47", "v4", Q
    k_fin(0); k_fin(1)
    A(f"v_subrev_u32 {vSA}, 4096, {vSA}\nds_read_b32 {vPN}, {vSA} offset:{512*PI[0]}")
    A(f"s_lshl_b32 {sT0}, {sW}, 10\ns_add_u32 {sT0}, {sT0}, {L_OP}\nv_add_u32 {vOA}, {sT0}, v7\ns_mov_b32 s73, 0\ns_waitcnt lgkmcnt(0)")
    for i in range(24): A(f"v_mov_b32 v{ACC+i}, 0")
    def v_a(g, zero=True):
        b = ACC + 8*g
        for e in range(4): A(f"v_permlane32_swap_b32 v{b+e}, v{b+e+4}")
        for e in range(4): A(f"v_add_f32 v{RV+4*g+e}, v{b+e}, v{b+e+4}")
        if zero:
            for e in range(8): A(f"v_mov_b32 v{b+e}, 0")
    def v_b(gs):
        for g in gs:
            for e in range(2): A(f"v_permlane16_swap_b32 v{RV+4*g+e}, v{RV+4*g+e+2}")
        for g in gs:
            for e in range(2): A(f"v_add_f32 v{RV+4*g+e}, v{RV+4*g+e}, v{RV+4*g+e+2}")
        for g in gs: A(f"v_add_f32_dpp v{48+g}, v{RV+4*g}, v{RV+4*g} row_ror:8 row_mask:0xf bank_mask:0x3")
        for g in gs: A(f"v_add_f32_dpp v{48+g}, v{RV+4*g+1}, v{RV+4*g+1} row_ror:8 row_mask:0xf bank_mask:0xc")
    def v_out(): A(f"ds_write_b96 {vOA}, v[48:50]\nv_xor_b32 {vOA}, 4096, {vOA}")
    def cond(lab, code): A(f"s_cmp_eq_u32 s73, 0\ns_cbranch_scc1 {lab}"); code(); A(f"{lab}:")
    A("L_v:")
    for n in range(24):
        slot(n, True)
        if n == 0: A(f"s_waitcnt lgkmcnt(0)\nv_mov_b32 {vP}, {vPN}"); cond("L_c0", lambda: v_a(2))
        if n == 1: cond("L_c1", lambda: (v_b([2]), v_out()))
        if n == bs: A("s_waitcnt lgkmcnt(0)\ns_barrier")
        if n == 20:
            A(f"s_add_u32 {sT1}, {sBLK}, 1\ns_and_b32 {sT0}, {sT1}, {BPS-1}\ns_cselect_b32 s73, 0, 1")
            A(f"s_and_b32 {sT1}, {sT1}, 14\ns_lshl_b32 {sT1}, {sT1}, 1\ns_lshr_b32 {sT1}, {hex(PILUT)}, {sT1}\ns_and_b32 {sT1}, {sT1}, 7")
            A(f"s_lshl_b32 {sT1}, {sT1}, 1\ns_add_u32 {sT1}, {sT1}, {sT0}\ns_lshl_b32 {sT1}, {sT1}, 8\nv_add_u32 v51, {sT1}, {vSA}\nds_read_b32 {vPN}, v51")
        if n % 3 == 0:
            t = n//3
            A(f"v_mov_b32_dpp {pl}, {vP} row_newbcast:{t} row_mask:0xf bank_mask:0x3")
            A(f"v_mov_b32_dpp {pl}, {vP} row_newbcast:{8+t} row_mask:0xf bank_mask:0xc")
            A(f"v_lshlrev_b32 {ph}, 16, {pl}")
        if "c" not in skip: axpy(ACC + 8*(n % 3), RING + 4*(n % RB), 4, pl, ph)
        if n == 21: cond("L_c21", lambda: (v_a(0), v_b([0])))
        if n == 22: cond("L_c22", lambda: (v_a(1), v_b([1])))
    A(f"s_add_u32 {sBLK}, {sBLK}, 1")
    if stamps: A(f"s_cmp_lg_u32 {sBLK}, 29\ns_cbranch_scc1 L_st2\ns_memrealtime s[48:49]\nL_st2:\n; SSBYTES={26*8*3072}")
    A(f"s_cmp_lt_u32 {sBLK}, 32\ns_cbranch_scc1 L_v")
    stamp(5)
    W4, W1, YA, UF = PB, PB + 24, PB + 32, PB + 44
    for r in range(6): A(f"buffer_load_dword v{W1+r}, {vPL}, {TA_}, {sL[r//2]} offen offset:{1024+1280*(r%2)} nt")
    v_a(2, False); v_b([2]); v_out()
    A(f"s_lshl_b32 {sT0}, {sW}, 4\nv_mov_b32 v8, {sT0}\ns_waitcnt lgkmcnt(0)\ns_barrier")
    stamp(6)
    LW = PB + 56
    A(f"ds_read_b128 v[12:15], v8 offset:{L_U}")
    A(f"s_mul_i32 {sT0}, {sW}, 640\nv_mul_u32_u24 v11, 80, {vA}\nv_mad_u32_u24 v11, {vB}, 12, v11\nv_add_u32 v11, {sT0}, v11\nv_lshrrev_b32 v40, 1, v11")
    for r in range(6):
        for e in range(3): A(f"ds_read_u16 v{LW+10+3*r+e}, v40 offset:{L_W+7680+1280*r+2*e}")
        if r == 3: A("s_waitcnt lgkmcnt(0)")
    A(f"s_mul_i32 {sT0}, {sW}, 2560\nv_lshl_add_u32 v9, {vLANE}, 5, {sT0}\nv_lshl_add_u32 v10, {vLANE}, 3, {sT0}\nv_add_u32 v11, {L_YP}, v11")
    A(f"s_lshl_b32 {sT1}, {sLIN}, 12\ns_lshl_b32 {sT0}, {sW}, 10\ns_add_u32 {sT1}, {sT1}, {sT0}\ns_add_u32 {sT1}, {sT1}, {WS_H2}\nv_mov_b32 v19, {sTAG}")
    A("v_mov_b32 v8, 0\nv_mov_b32 v41, 0x10000")
    for i in range(10): A(f"v_mov_b32 v{YA+i}, 0")
    for p in range(3):
        A(f"v_and_b32 v{UF+4*p}, 0xffff, v{12+p}\nv_lshlrev_b32 v{UF+4*p+1}, 16, v{12+p}\nv_lshrrev_b32 v{UF+4*p+2}, 16, v{12+p}\nv_and_b32 v{UF+4*p+3}, 0xffff0000, v{12+p}")
    A(f"v_readfirstlane_b32 {sT3}, v15\ns_waitcnt lgkmcnt(0)")
    for p in range(3):
        for e in range(3): A(f"v_lshl_or_b32 v{LW+3*p+e}, v{LW+10+6*p+3+e}, 16, v{LW+10+6*p+e}")
    for r in range(6):
        A(f"s_waitcnt vmcnt({11-r})"); axpy(YA, W4 + 4*r, 4, f"v{UF+2*r}", f"v{UF+2*r+1}")
    A(f"ds_write_b128 v9, v[{YA}:{YA+3}] offset:{L_YP}\nds_write_b128 v9, v[{YA+4}:{YA+7}] offset:{L_YP+16}")
    A("s_waitcnt vmcnt(0)")
    for r in range(6): axpy(YA + 8, W1 + r, 1, f"v{UF+2*r}", f"v{UF+2*r+1}")
    A(f"ds_write_b64 v10, v[{YA+8}:{YA+9}] offset:{L_YP+2048}\ns_mov_b64 exec, 1\nds_add_u32 v8, v41 offset:{L_CT}\ns_mov_b64 exec, -1")
    A(f"L_wy:\nds_read_b32 v41, v8 offset:{L_CT}\ns_waitcnt lgkmcnt(0)\nv_cmp_gt_u32 vcc, 0x40000, v41\ns_cbranch_vccnz L_wy")
    for k in range(5):
        A(f"ds_read2_b32 v[{20+4*k}:{21+4*k}], v11 offset0:0 offset1:1\nds_read_b32 v{22+4*k}, v11 offset:8")
        if k < 4: A("v_add_u32 v11, 2560, v11")
    A("s_waitcnt lgkmcnt(0)")
    for e in range(3): A(f"v_add_f32 v{20+e}, v{20+e}, v{24+e}\nv_add_f32 v{28+e}, v{28+e}, v{32+e}")
    for e in range(3): A(f"v_add_f32 v{20+e}, v{20+e}, v{36+e}")
    for e in range(3): A(f"v_add_f32 v{16+e}, v{20+e}, v{28+e}")
    stamp(7)
    A(f"s_barrier\nds_read_b96 v[12:14], v8 offset:{L_U+64}\ns_waitcnt lgkmcnt(0)")
    for p in range(3):
        for e in range(3): A(f"v_dot2c_f32_bf16 v{16+e}, v{12+p}, v{LW+3*p+e}")
    A(f"s_cmp_eq_u32 {sT3}, 0\ns_cbranch_scc1 L_yr\nbuffer_store_dwordx4 v[16:19], v7, {WS_}, {sT1} offen\ns_branch L_done")
    A(f"L_yr:\nbuffer_store_dwordx4 v[16:19], v7, {WS_}, {sT1} offen sc1\ns_branch L_done")
    for r in range(6):
        A(f"L_wl{r}:\nbuffer_load_dwordx4 v[{W4+4*r}:{W4+4*r+3}], v7, {TA_}, {sL[r//2]} offen offset:{1280*(r%2)} nt\ns_branch L_wb{r}")
    A("L_svc:")
    G0 = RING; G1 = G0 + 8
    vQW, vSC, vML, vOP, vLS, vM, vZ, vZK, vXA = [f"v{32+i}" for i in range(7)] + ["v40", "v42"]
    ZS, ZM = 52, 8
    vWA, vH1S, vH1G, vYG, vH3, vYW, vYR, vOUT, XV = "v16", "v17", "v18", "v19", "v20", "v21", "v29", 22, 26
    P0, P1, YY = PB, PB + 32, PB + 64
    YT = YY + 12
    LP = 64//NSEG; LLP = LP.bit_length()-1; NLS = GS//LP; NR = 4*BPS
    sF = [f"s{r}" for r in (20, 21, 22, 24, 25, 26, 28, 29)]
    sLOC, sHD, sTG2, sH1S, sH1G, sYS, sYG, sH3S, sH3G, sXS, sXG, sFL = [f"s{r}" for r in range(72, 84)]
    sUU = ["s60", "s61", "s62"]
    sSCALE, sLOG2E = "s12", "s13"
    def store2(lab, stores):
        A(f"s_cmp_eq_u32 {sLOC}, 0\ns_cbranch_scc1 {lab}_r"); stores(""); A(f"s_branch {lab}_d\n{lab}_r:"); stores("sc1"); A(f"{lab}_d:")
    def poll(lab, loads, tags, sleep=0, first=None, tag=sTAG, loc=False):
        A(f"s_mov_b32 {sT2}, {spin}")
        if first is not None: loads(first); A(f"s_branch {lab}_chk")
        elif sleep: A(f"s_branch {lab}_go")
        A(f"{lab}:")
        if sleep: A(f"s_sleep {sleep}\n{lab}_go:")
        if loc and lp != "sc1":
            A(f"s_cmp_eq_u32 {sLOC}, 0\ns_cbranch_scc1 {lab}_rm"); loads(lp); A(f"s_branch {lab}_chk\n{lab}_rm:")
        loads("sc1")
        A(f"{lab}_chk:\ns_waitcnt vmcnt(0)")
        if len(tags) == 1: A(f"v_cmp_ne_u32 vcc, {tag}, {tags[0]}")
        else:
            A(f"v_xor_b32 {t0}, {tag}, {tags[0]}")
            for t in tags[1:]: A(f"v_bitop3_b32 {t0}, {t}, {tag}, {t0} bitop3:0xbe")
            A(f"v_cmp_ne_u32 vcc, 0, {t0}")
        A(f"s_cbranch_vccz {lab}_done\ns_sub_u32 {sT2}, {sT2}, 1\ns_cbranch_scc0 {lab}\n{lab}_done:")
    A(f"v_lshlrev_b32 v4, 2, {vLANE}")
    A(f"L_wq:\nds_read_b32 v6, v5 offset:{L_CT}\ns_waitcnt lgkmcnt(0)\nv_and_b32 v6, 7, v6\nv_cmp_gt_u32 vcc, 5, v6\ns_cbranch_vccnz L_wq")
    for w in range(5):
        for k in range(5): A(f"ds_read_b32 v{G0+5*w+k}, v4 offset:{L_QP+1280*w+256*k}")
        if w == 2: A("s_waitcnt lgkmcnt(0)")
    A("s_waitcnt lgkmcnt(0)")
    for w in range(1, 5):
        for k in range(5): A(f"v_add_f32 v{G0+k}, v{G0+k}, v{G0+5*w+k}")
    A(f"v_lshl_add_u32 v5, {vB}, 3, {vA}\nv_lshlrev_b32 {vQW}, 1, v5\nv_lshlrev_b32 v5, 4, v5")
    A(f"v_mov_b32 v48, v{G0+3}\nv_mov_b32 v49, v{G0+4}\nv_mov_b32 v{G0+3}, {sTAG}\nv_mov_b32 v50, {sTAG}\nv_mov_b32 v51, {sTAG}")
    A(f"s_lshl_b32 {sT0}, {sLIN}, 11\ns_add_u32 {sT0}, {sT0}, {WS_QS}")
    A(f"buffer_store_dwordx4 v[{G0}:{G0+3}], v7, {WS_}, {sT0} offen sc1")
    stamp(3)
    A(f"v_add_u32 {vSC}, {L_SC}, v4\nv_mov_b32 {vML}, {L_ML}\nv_add_u32 {vOP}, {L_OP}, v7\nv_mov_b32 {vZ}, 0")
    A(f"s_mov_b32 {sSCALE}, 0x3d93cd3a\ns_mov_b32 {sLOG2E}, 0x3fb8aa3b\ns_mov_b32 {sBLK}, -1")
    A(f"s_lshl_b32 {sHD}, {sG}, {11+LGS}\ns_add_u32 {sHD}, {sHD}, {WS_QS}")
    A(f"L_wt:\ns_sleep 2\nds_read_b32 v10, {vZ} offset:{L_CT}\ns_waitcnt lgkmcnt(0)\nv_cmp_gt_u32 vcc, 256, v10\ns_cbranch_vccnz L_wt")
    A("s_branch L_gq0")
    A("L_blk:")
    if xd:
        A(f"s_cmp_lg_u32 {sC}, 0\ns_cbranch_scc1 L_noxf\ns_and_b32 {sT0}, {sBLK}, {xp-1}\ns_cmp_lg_u32 {sT0}, {xp-1}\ns_cbranch_scc1 L_noxf\ns_cmp_gt_u32 {sBLK}, 28\ns_cbranch_scc1 L_noxf")
        A(f"s_add_u32 {sT0}, {sTAG}, {sBLK}\nv_mov_b32 v12, {sT0}\nv_mul_u32_u24 v13, 4224, {vLANE}\ns_mul_i32 {sT1}, {sX}, 4224\ns_add_u32 {sT1}, {sT1}, {WS_PR+0x30000}")
        A(f"s_mov_b64 exec, 1\nbuffer_store_dword v12, v13, {WS_}, {sT1} offen sc1\ns_mov_b32 {sT1}, {WS_PR+0x30000}")
        if xs < 0: A("s_waitcnt vmcnt(0)")
        if xs > 0: A(f"s_sleep {xs}")
        A(f"s_mov_b64 exec, 0xff\nbuffer_load_dword v14, v13, {WS_}, {sT1} offen sc1\ns_waitcnt vmcnt(0)")
        lutv = sum((d + 8) << (4*i) for i, d in enumerate(xd))
        A(f"v_sub_u32 v14, v14, v12\nv_cmp_gt_u32 vcc, 64, v14\ns_bitset0_b32 vcc_lo, {sX}\ns_bcnt1_i32_b64 {sT0}, vcc\ns_lshl_b32 {sT0}, {sT0}, 2")
        A(f"s_lshr_b32 {sT0}, {hex(lutv)}, {sT0}\ns_and_b32 {sT0}, {sT0}, 15\ns_getreg_b32 {sT1}, hwreg(HW_REG_XCC_ID)\ns_bitcmp1_b32 {sT1}, 0\ns_cselect_b32 {sT1}, {fbo-8}, {fb-8}")
        A(f"s_add_u32 {sT0}, {sT0}, {sT1}\ns_min_u32 {sT0}, {sT0}, 32\ns_add_u32 {sT0}, {sT0}, {sTAG}\nv_mov_b32 v12, {sT0}")
        A(f"s_mul_i32 {sT1}, {sX}, {4*4224}\ns_add_u32 {sT1}, {sT1}, {WS_PR+128}\ns_mov_b64 exec, 0xf")
        A(f"buffer_store_dword v12, v13, {WS_}, {sT1} offen\ns_mov_b64 exec, -1\nL_noxf:")
    A(f"s_cmp_le_u32 {sBLK}, 16\ns_cbranch_scc1 L_kpart\ns_and_b32 {sT0}, {sBLK}, {BPS-1}\ns_cbranch_scc1 L_vmid")
    stamp(5)
    for w in range(4): A(f"ds_read_b96 v[{G0+4*w}:{G0+4*w+2}], {vOP} offset:{1024*w}")
    A(f"v_xor_b32 {vOP}, 4096, {vOP}\nv_mov_b32 v{G0+19}, {sTG2}\ns_waitcnt lgkmcnt(0)")
    for k in range(3): A(f"v_add_f32 v{G0+k}, v{G0+k}, v{G0+4+k}\nv_add_f32 v{G0+8+k}, v{G0+8+k}, v{G0+12+k}")
    for k in range(3): A(f"v_add_f32 v{G0+k}, v{G0+k}, v{G0+8+k}")
    for k in range(3): A(f"v_mul_f32 v{G0+16+k}, {sF[0]}, v{G0+k}")
    if "h" in skip: A(f"s_cmp_lg_u32 {sBLK}, 32\ns_cbranch_scc1 L_p1_done")
    store2("L_s1", lambda p: A(f"buffer_store_dwordx4 v[{G0+16}:{G0+19}], {vH1S}, {WS_}, {sH1S} offen {p}"))
    poll("L_p1", lambda p: A(f"buffer_load_dwordx4 v[{G0}:{G0+3}], {vH1G}, {WS_}, {sH1G} offen {p}"), [f"v{G0+3}"], tag=sTG2, loc=True)
    stamp(6)
    A(f"v_mov_b32 v{G0+3}, 0\nv_permlane32_swap_b32 v{G0}, v{G0+1}\nv_permlane32_swap_b32 v{G0+2}, v{G0+3}")
    A(f"v_add_f32 v{G0}, v{G0}, v{G0+1}\nv_add_f32 v{G0+2}, v{G0+2}, v{G0+3}\nv_permlane16_swap_b32 v{G0}, v{G0+2}\nv_add_f32 {vZK}, v{G0}, v{G0+2}")
    allred_lo("v_add_f32", [vZK], 3)
    A(f"s_cmp_eq_u32 {sBLK}, 32\ns_cbranch_scc1 L_tail")
    for i in range(NSEG-1): A(f"s_mov_b32 {sF[i]}, {sF[i+1]}")
    A(f"s_add_u32 {sTG2}, {sTG2}, 1\ns_xor_b32 {sH1S}, {sH1S}, 1024\ns_xor_b32 {sH1G}, {sH1G}, 1024")
    A(f"s_lshr_b32 {sT0}, {sBLK}, 1\ns_xor_b32 {sT0}, {sT0}, {sOWN}\ns_bitcmp1_b32 {sT0}, 0\ns_cbranch_scc0 L_notmine")
    A(f"v_mov_b32 v{ZM}, v{ZM+1}\nv_mov_b32 v{ZM+1}, v{ZM+2}\nv_mov_b32 v{ZM+2}, {vZK}\ns_cmp_eq_u32 {sBLK}, 28\ns_cbranch_scc0 L_next\ns_branch L_send")
    A(f"L_notmine:\nv_mov_b32 v{ZS}, v{ZS+1}\nv_mov_b32 v{ZS+1}, v{ZS+2}\nv_mov_b32 v{ZS+2}, {vZK}\ns_cmp_ge_u32 {sBLK}, 28\ns_cbranch_scc0 L_next")
    A("L_send:")
    if "x" in skip: A("s_branch L_next")
    A(f"s_mov_b32 exec_lo, 0x01010101\ns_mov_b32 exec_hi, 0x01010101")
    A(f"buffer_store_dwordx4 v[{ZS}:{ZS+3}], {vXA}, {WS_}, {sXS} offen sc1\ns_mov_b64 exec, -1\ns_add_u32 {sXS}, {sXS}, 128")
    A("s_branch L_next")
    A("L_vmid:")
    A(f"s_cmp_lg_u32 {sBLK}, {lsb}\ns_cbranch_scc1 L_nols")
    A(f"s_mul_i32 {sT1}, {sG}, {GS*128}\ns_add_u32 {sT1}, {sT1}, {WS_LS}\ns_add_u32 {sT3}, {sT1}, 4096")
    def gl(p):
        for r in range(NLS): A(f"buffer_load_dwordx4 v[{G0+4*r}:{G0+4*r+3}], {vLS}, {WS_}, {sT1 if LP*128*r < 4096 else sT3} offen offset:{LP*128*r % 4096} {p}")
    poll("L_ls", gl, [f"v{G0+4*r+e}" for r in range(NLS) for e in (1, 3)], sleep=16, first="")
    hn = NLS//2 if PAIR else NLS
    for h, t in ((0, t0), (1, t1))[:2 if PAIR else 1]:
        A(f"v_xor_b32 {t}, {sLOC}, v{G0+4*hn*h+2}")
        for r in range(1, hn): A(f"v_bitop3_b32 {t}, v{G0+4*(hn*h+r)+2}, {sLOC}, {t} bitop3:0xbe")
    if PAIR: A(f"s_bitcmp1_b32 {sX}, 0\ns_cselect_b64 vcc, -1, 0\nv_cndmask_b32 {t0}, {t0}, {t1}, vcc")
    A(f"v_cmp_ne_u32 vcc, 0, {t0}\ns_cmp_eq_u64 vcc, 0\ns_cselect_b32 {sLOC}, {local}, 0")
    A(f"v_max_f32 {t0}, v{G0}, v{G0+4}")
    for r in range(2, NLS, 2): A(f"v_max3_f32 {t0}, {t0}, v{G0+4*r}, v{G0+4*r+4}")
    allred_lo("v_max_f32", [t0], LLP)
    for r in range(NLS): A(f"v_sub_f32 v{G0+4*r}, v{G0+4*r}, {t0}")
    for r in range(NLS): A(f"v_exp_f32 v{G0+4*r}, v{G0+4*r}")
    for r in range(1, NLS): A(f"v_add_f32 v{G0}, v{G0}, v{G0+4*r}")
    allred_lo("v_add_f32", [f"v{G0}"], LLP)
    A(f"v_sub_f32 {t0}, {vM}, {t0}\nv_exp_f32 {t0}, {t0}\nv_rcp_f32 {t1}, v{G0}\nv_mul_f32 {t0}, {t0}, {t1}")
    for k in range(NSEG): A(f"v_readlane_b32 {sF[k]}, {t0}, {LP*PI[k]}")
    A(f"v_mov_b32 {t0}, 0\nv_mov_b32 {t1}, 0\nv_mov_b32 {t2}, 0\nv_mov_b32 {t3}, {sLOC}\ns_mov_b64 exec, 0xf\nds_write_b128 v7, v[{T}:{T+3}] offset:{L_U}")
    A(f"s_lshl_b32 {sT0}, {sLIN}, 11\ns_add_u32 {sT0}, {sT0}, {WS_QS}\ns_mov_b32 exec_lo, 0x3f3f3f3f\ns_mov_b32 exec_hi, 0x3f3f3f3f")
    store2("L_s0", lambda p: A(f"buffer_store_dwordx4 v[48:51], v5, {WS_}, {sT0} offen offset:1024 {p}"))
    A("s_mov_b64 exec, -1\ns_branch L_next")
    A("L_nols:")
    A(f"s_cmp_lg_u32 {sBLK}, {lsb+2}\ns_cbranch_scc1 L_nogu2")
    A(f"v_lshlrev_b32 v6, 11, {vA}\nv_lshl_add_u32 v6, {vB}, 4, v6\nv_mov_b32 v{G1}, 0\nv_mov_b32 v{G1+1}, 0")
    A(f"s_lshr_b32 {sT1}, {sLIN}, 3\ns_lshl_b32 {sT1}, {sT1}, 14\ns_mul_i32 {sT0}, {sS}, 96\ns_add_u32 {sT1}, {sT1}, {sT0}\ns_add_u32 {sT1}, {sT1}, {WS_QS}")
    A(f"s_mov_b32 exec_lo, 0x3f3f3f3f\ns_mov_b32 exec_hi, 0x3f3f3f3f")
    poll("L_gu", lambda p: A(f"buffer_load_dwordx4 v[{G1}:{G1+3}], v6, {WS_}, {sT1} offen offset:1024 {p}"), [f"v{G1+2}", f"v{G1+3}"], sleep=psleep, loc=True)
    A("s_mov_b64 exec, -1")
    for k in range(2): A(f"v_add_f32_dpp v{G1+k}, v{G1+k}, v{G1+k} row_ror:8 {DPP}")
    allred_top("v_add_f32", [f"v{G1}", f"v{G1+1}"], [t0, t1])
    A(f"v_cvt_pk_bf16_f32 v{G1}, 0, v{G1}\nv_cvt_pk_bf16_f32 v{G1+1}, 0, v{G1+1}")
    A(f"v_cmp_lt_f32 vcc, 0, v{G1}\nv_cndmask_b32 {t0}, 0, 1.0, vcc\nv_mul_f32 {t3}, v{G1}, {t0}\nv_mul_f32 {t3}, {t3}, v{G1+1}\nv_cvt_pk_bf16_f32 {t3}, {t3}, 0")
    A(f"v_mov_b32_dpp {t0}, {t3} quad_perm:[1,1,3,3] {DPP}\nv_lshl_or_b32 {t3}, {t0}, 16, {t3}")
    for i in range(3): A(f"v_readlane_b32 {sUU[i]}, {t3}, {2*i}")
    for r in range(6):
        for d in range(5): A(f"ds_read_b32 v{P0+5*r+d}, {vWA} offset:{1280*r+4*d}")
        if r % 2: A("s_waitcnt lgkmcnt(0)")
    A(f"s_mov_b32 {sT1}, 0x05040100\ns_mov_b32 {sT3}, 0x07060302")
    for p in range(3):
        for d in range(5):
            A(f"v_perm_b32 v{P1+10*p+2*d}, v{P0+10*p+5+d}, v{P0+10*p+d}, {sT1}\nv_perm_b32 v{P1+10*p+2*d+1}, v{P0+10*p+5+d}, v{P0+10*p+d}, {sT3}")
    for p in range(3):
        for c in range(10): A(f"v_dot2c_f32_bf16 v{YY+c}, {sUU[p]}, v{P1+10*p+c}")
    for d in range(5): A(f"ds_write_b64 {vYW}, v[{YY+2*d}:{YY+2*d+1}] offset:{L_YP+10240+8*d}")
    A("s_branch L_next")
    A("L_nogu2:")
    A(f"s_cmp_lg_u32 {sBLK}, 31\ns_cbranch_scc1 L_nopf")
    if pf is not None:
        for r in range(4):
            A(f"s_add_u32 {sT0}, {sYG}, {8*4096*r}\nbuffer_load_dwordx4 v[{G0+8+4*r}:{G0+8+4*r+3}], {vYG}, {WS_}, {sT0} offen {pf}")
        A(f"buffer_load_dwordx4 v[{G0+24}:{G0+27}], v7, {WS_}, {sH1S} offen {pf}")
    A("L_nopf:")
    A(f"s_cmp_lt_u32 {sBLK}, 29\ns_cbranch_scc1 L_next\ns_add_u32 {sT0}, {sBLK}, {sOWN}\ns_cmp_gt_u32 {sT0}, 31\ns_cbranch_scc1 L_last")
    if "x" not in skip:
        poll("L_px", lambda p: A(f"buffer_load_dwordx4 v[{G0}:{G0+3}], {vXA}, {WS_}, {sXG} offen {p}"), [f"v{G0+3}"], sleep=psleep)
    for k in range(3): A(f"v_add_f32 v{ZM+k}, v{ZM+k}, v{G0+k}")
    A(f"s_add_u32 {sXG}, {sXG}, 128\ns_mov_b32 {sFL}, 3\ns_cmp_eq_u32 {sBLK}, 29\ns_cbranch_scc1 L_take\ns_mov_b32 {sFL}, 1\nv_mov_b32 v{ZM}, v{ZM+2}")
    A(f"L_take:\nv_mov_b32_dpp v{G0+1}, v{ZM} row_ror:8 {DPP}\nv_cvt_pk_bf16_f32 v{G0}, v{ZM}, v{G0+1}\nv_mov_b32 v{ZM}, v{ZM+1}\nv_mov_b32 v{ZM+1}, v{ZM+2}")
    A(f"s_mov_b32 exec_lo, 0x00010001\ns_mov_b32 exec_hi, 1\nds_write_b32 {vYR}, v{G0}\ns_mov_b64 exec, -1\nv_add_u32 {vYR}, 16, {vYR}")
    A(f"s_sub_u32 {sFL}, {sFL}, 1\ns_cmp_gt_u32 {sFL}, 0\ns_cbranch_scc1 L_take")
    A("L_last:")
    A(f"s_cmp_lg_u32 {sBLK}, 31\ns_cbranch_scc1 L_next\ns_setprio 3\ns_waitcnt vmcnt(0)")
    A("L_next:")
    A(f"s_add_u32 {sBLK}, {sBLK}, 1\ns_waitcnt lgkmcnt(0)\ns_barrier\ns_branch L_blk")
    A("L_kpart:\ns_setprio 0")
    A(f"s_and_b32 {sT0}, {sBLK}, {BPS-1}\ns_cbranch_scc1 L_nosm")
    for w in range(4):
        for k in range(BPS): A(f"ds_read_b32 v{G0+BPS*w+k}, {vSC} offset:{4096*w+256*k}")
        if w == 1: A("s_waitcnt lgkmcnt(0)")
    A("s_waitcnt lgkmcnt(0)")
    for i in range(NR): A(f"v_cvt_pk_bf16_f32 v{G0+i}, 0, v{G0+i}")
    for i in range(NR): A(f"v_mul_f32 v{G0+i}, {sSCALE}, v{G0+i}")
    for i in range(NR): A(f"v_cvt_pk_bf16_f32 v{G0+i}, 0, v{G0+i}")
    for i in range(NR): A(f"v_mul_f32 v{G0+i}, {sLOG2E}, v{G0+i}")
    A(f"v_max_f32 {t0}, v{G0}, v{G0+1}")
    for i in range(2, NR, 2): A(f"v_max3_f32 {t0}, {t0}, v{G0+i}, v{G0+i+1}")
    allred_lo("v_max_f32", [t0]); allred_top("v_max_f32", [t0], [t1])
    for i in range(NR): A(f"v_sub_f32 v{G0+i}, v{G0+i}, {t0}")
    for i in range(NR): A(f"v_exp_f32 v{G0+i}, v{G0+i}")
    A(f"v_add_f32 {t1}, v{G0}, v{G0+1}")
    for i in range(2, NR): A(f"v_add_f32 {t1}, {t1}, v{G0+i}")
    for i in range(NR): A(f"v_cvt_pk_bf16_f32 v{G0+i}, v{G0+i}, 0")
    for w in range(4):
        for k in range(BPS): A(f"ds_write_b32 {vSC}, v{G0+BPS*w+k} offset:{4096*w+256*k}")
        if w == 1: A("s_waitcnt lgkmcnt(0)")
    allred_lo("v_add_f32", [t1]); allred_top("v_add_f32", [t1], [t2])
    A(f"v_log_f32 {t3}, {t1}\nv_mov_b32 {t2}, {t0}\nv_add_f32 {t3}, {t3}, {t0}")
    A(f"ds_write_b64 {vML}, v[{T+2}:{T+3}]")
    A(f"v_add_u32 {vSC}, {256*BPS}, {vSC}\nv_add_u32 {vML}, 8, {vML}")
    A("L_nosm:")
    A(f"s_cmp_ge_u32 {sBLK}, {0 if 'q' in skip else NSEG-1}\ns_cbranch_scc1 L_noq")
    A("L_gq0:")
    def gq(p):
        for s in range(8):
            if s % 2 == 0: A(f"s_add_u32 {sT0}, {sHD}, {2048*s}")
            A(f"buffer_load_dwordx4 v[{G1+4*s}:{G1+4*s+3}], v7, {WS_}, {sT0} offen offset:{2048*(s%2)} {p}")
    poll("L_gq", gq, [f"v{G1+4*s+3}" for s in range(8)], first="", sleep=psleep)
    for s in range(1, 8):
        for k in range(3): A(f"v_add_f32 v{G1+k}, v{G1+k}, v{G1+4*s+k}")
    for k in range(3): A(f"v_cvt_pk_bf16_f32 v{G1+k}, v{G1+k}, 0")
    for k in range(3): A(f"ds_write_b16 {vQW}, v{G1+k} offset:{L_QB+128*k}")
    A(f"v_add_u32 {vQW}, 384, {vQW}\ns_add_u32 {sHD}, {sHD}, 16384")
    A(f"s_cmp_lt_i32 {sBLK}, 0\ns_cselect_b32 {sBLK}, 0, {sBLK}\ns_cbranch_scc1 L_gq0")
    if timed:
        A(f"s_cmp_lg_u32 {sBLK}, 0\ns_cbranch_scc1 L_next"); stamp(4)
    A("s_branch L_next")
    A("L_noq:")
    A(f"s_cmp_lg_u32 {sBLK}, {NSEG+1}\ns_cbranch_scc1 L_nogu")
    A(f"v_mul_u32_u24 {vWA}, 20, {vLANE}\nv_add_u32 {vWA}, {L_W}, {vWA}")
    A(f"v_lshrrev_b32 {t0}, 4, {vLANE}\nv_lshl_add_u32 {t0}, {t0}, 3, {vB}\nv_and_b32 {t1}, 8, {vLANE}\nv_lshlrev_b32 {t1}, 1, {t1}")
    A(f"v_lshl_add_u32 {vH1S}, {t0}, 5, {t1}\nv_lshl_add_u32 {vH1G}, {t0}, 11, {t1}")
    A(f"s_lshl_b32 {sH1S}, {sLIN}, 11\ns_add_u32 {sH1S}, {sH1S}, {WS_H1}")
    A(f"s_lshl_b32 {sH1G}, {sX}, 16\ns_lshl_b32 {sT0}, {sC}, 5\ns_add_u32 {sH1G}, {sH1G}, {sT0}\ns_add_u32 {sH1G}, {sH1G}, {WS_H1}")
    A(f"v_mul_u32_u24 {vYW}, 40, {vLANE}\nv_lshrrev_b32 {vYR}, 1, {vLANE}\nv_and_b32 {vYR}, 8, {vYR}\nv_lshrrev_b32 {t0}, 3, {vLANE}\nv_and_or_b32 {vYR}, {t0}, 4, {vYR}\nv_add_u32 {vYR}, {L_U}, {vYR}\nv_mov_b32 v43, {vYR}")
    A(f"v_lshlrev_b32 {t0}, 4, {vB}\nv_lshl_add_u32 {vYG}, {vA}, 12, {t0}\nv_lshlrev_b32 {vXA}, 4, {vA}\nv_mov_b32 v41, {sTAG}\nv_mov_b32 v{ZS+3}, {sTAG}")
    A(f"s_lshl_b32 {sYS}, {sLIN}, 12\ns_add_u32 {sYS}, {sYS}, {WS_H2}")
    A(f"s_lshl_b32 {sYG}, {sX}, 17\ns_lshl_b32 {sT0}, {sC}, 7\ns_add_u32 {sYG}, {sYG}, {sT0}\ns_add_u32 {sYG}, {sYG}, {WS_H2}")
    A(f"s_lshl_b32 {sH3G}, {sC}, 10\ns_add_u32 {sH3G}, {sH3G}, {WS_H3}\ns_lshl_b32 {sT0}, {sX}, 7\ns_add_u32 {sH3S}, {sH3G}, {sT0}")
    A(f"s_lshl_b32 {sXS}, {sLIN}, 8\ns_add_u32 {sXS}, {sXS}, {WS_XX}\ns_xor_b32 {sXG}, {sXS}, {32*256}")
    A(f"s_add_u32 {sTG2}, {sTAG}, 1\ns_mov_b32 {sFL}, 0")
    A(f"v_mul_u32_u24 {t0}, 3, {vB}\ns_mul_i32 {sT0}, {sC}, 20\nv_add_lshl_u32 {t0}, {t0}, {sT0}, 1\nv_mov_b32 {t2}, {OOB}")
    A(f"v_cmp_gt_u32 vcc, 7, {vB}\nv_cndmask_b32 v{vOUT}, {t2}, {t0}, vcc\nv_cmp_gt_u32 vcc, 6, {vB}\nv_cndmask_b32 v{vOUT+1}, {t2}, {t0}, vcc")
    A(f"v_mov_b32 {t0}, {WS_EP}\nv_or_b32 {t1}, s2, {vLANE}\nv_cmp_eq_u32 vcc, 0, {t1}\nv_cndmask_b32 v{vOUT+2}, {t2}, {t0}, vcc")
    A(f"buffer_load_ushort v{XV}, v{vOUT}, {X_}, 0 offen\nbuffer_load_ushort v{XV+1}, v{vOUT}, {X_}, 0 offen offset:2\nbuffer_load_ushort v{XV+2}, v{vOUT+1}, {X_}, 0 offen offset:4")
    for i in range(10): A(f"v_mov_b32 v{YY+i}, 0")
    A("s_waitcnt vmcnt(0)")
    for e in range(3): A(f"v_lshlrev_b32 v{XV+e}, 16, v{XV+e}")
    srd_lo(X_, pOUT)
    A("s_branch L_next")
    A("L_nogu:")
    A(f"s_cmp_lg_u32 {sBLK}, 16\ns_cbranch_scc1 L_next")
    A(f"v_lshrrev_b32 v10, {LLP}, {vLANE}\nv_lshlrev_b32 v10, 3, v10\ns_waitcnt lgkmcnt(0)\nds_read_b64 v[{T+2}:{T+3}], v10 offset:{L_ML}")
    A(f"s_lshl_b32 {sT1}, {sLIN}, 7\ns_add_u32 {sT1}, {sT1}, {WS_LS}\nv_and_b32 v11, {LP-1}, {vLANE}\nv_cmp_eq_u32 vcc, 0, v11")
    A(f"s_waitcnt lgkmcnt(0)\nv_mov_b32 {vM}, {t2}\nv_mov_b32 {t0}, {t3}\nv_mov_b32 {t1}, {sTAG}\nv_mov_b32 {t3}, {sTAG}")
    A(f"s_getreg_b32 {sLOC}, hwreg(HW_REG_XCC_ID)\nv_mov_b32 {t2}, {sLOC}\nv_lshlrev_b32 v10, 1, v10\ns_mov_b64 exec, vcc")
    A(f"buffer_store_dwordx4 v[{T}:{T+3}], v10, {WS_}, {sT1} offen sc1\ns_mov_b64 exec, -1")
    A(f"v_lshl_add_u32 {vLS}, v11, 7, v10\ns_branch L_next")
    A("L_tail:")
    A(f"v_mov_b32_dpp v{G0+1}, {vZK} row_ror:8 {DPP}\nv_cvt_pk_bf16_f32 v{G0}, {vZK}, v{G0+1}")
    A(f"s_mov_b32 exec_lo, 0x00010001\ns_mov_b32 exec_hi, 1\nds_write_b32 v43, v{G0} offset:64\ns_mov_b64 exec, -1\ns_waitcnt lgkmcnt(0)")
    stamp(7)
    A("s_barrier")
    def g2(p):
        for r in range(4):
            A(f"s_add_u32 {sT0}, {sYG}, {8*4096*r}\nbuffer_load_dwordx4 v[{G0+4*r}:{G0+4*r+3}], {vYG}, {WS_}, {sT0} offen {p}")
    poll("L_p2", g2, [f"v{G0+4*r+3}" for r in range(4)], loc=True)
    if stamps: A("s_memrealtime s[42:43]")
    for k in range(3): A(f"v_add_f32 v{G0+k}, v{G0+k}, v{G0+4+k}\nv_add_f32 v{G0+8+k}, v{G0+8+k}, v{G0+12+k}")
    for k in range(3): A(f"v_add_f32 v{G0+k}, v{G0+k}, v{G0+8+k}")
    def red_hi(b):
        for k in range(3): A(f"v_add_f32_dpp v{b+k}, v{b+k}, v{b+k} row_ror:8 {DPP}")
        allred_top("v_add_f32", [f"v{b+k}" for k in range(3)], [f"v{b+4+k}" for k in range(3)])
    red_hi(G0)
    A(f"s_cmp_eq_u32 {sS}, {sX}\ns_cbranch_scc1 L_red")
    A(f"s_mov_b64 exec, 0xff\nbuffer_store_dwordx4 v[{G0}:{G0+3}], v7, {WS_}, {sH3S} offen sc1\ns_mov_b64 exec, -1\ns_branch L_done")
    A("L_red:")
    BUF = [G0 + 16 + 4*k for k in range(np3)]
    for b in BUF:
        for k in range(3): A(f"v_mov_b32 v{b+k}, v{G0+k}")
    A(f"v_cmp_ne_u32 vcc, {sX}, {vA}\ns_mov_b32 {sT2}, {spin}\ns_mov_b64 exec, vcc")
    def l3(k): A(f"buffer_load_dwordx4 v[{BUF[k]}:{BUF[k]+3}], v7, {WS_}, {sH3G} offen sc1")
    for k in range(np3-1):
        l3(k); A(f"s_sleep {s3}")
    A("L_p3:")
    for k in range(np3):
        l3((k + np3 - 1) % np3)
        A(f"s_waitcnt vmcnt({np3-1})\nv_cmp_ne_u32 vcc, {sTAG}, v{BUF[k]+3}\ns_cbranch_vccz L_p3d{k}")
    A(f"s_sub_u32 {sT2}, {sT2}, 1\ns_cbranch_scc0 L_p3")
    for k in reversed(range(np3)):
        A(f"L_p3d{k}:\ns_mov_b64 exec, -1")
        for e in range(3): A(f"v_add_f32_dpp v{G1+e}, v{BUF[k]+e}, v{BUF[k]+e} row_ror:8 {DPP}")
        if k: A("s_branch L_p3e")
    A("L_p3e:")
    if stamps: A("s_memrealtime s[48:49]")
    allred_top("v_add_f32", [f"v{G1+k}" for k in range(3)], [f"v{G1+4+k}" for k in range(3)])
    for e in range(3): A(f"v_add_f32 v{G1+e}, v{G1+e}, v{XV+e}")
    for e in range(3): A(f"v_cvt_pk_bf16_f32 v{G1+e}, v{G1+e}, 0")
    A("s_mov_b64 exec, 0xff")
    A(f"buffer_store_short v{G1}, v{vOUT}, {X_}, 0 offen\nbuffer_store_short v{G1+1}, v{vOUT}, {X_}, 0 offen offset:2\nbuffer_store_short v{G1+2}, v{vOUT+1}, {X_}, 0 offen offset:4")
    A(f"buffer_store_dword v41, v{vOUT+2}, {WS_}, 0 offen")
    A("s_mov_b64 exec, -1")
    A("L_done:")
    if diag is not None:
        wave, st, mult = diag
        stamp(8)
        A(f"s_cmp_lg_u32 s2, 0\ns_cbranch_scc1 L_end\ns_cmp_lg_u32 {sW}, {wave}\ns_cbranch_scc1 L_end")
        A(f"s_waitcnt lgkmcnt(0)\ns_sub_u32 {sT0}, s{sST+2*st}, s{sST}\ns_mul_i32 {sT0}, {sT0}, {mult}\ns_add_u32 {sT0}, {sT0}, 30000")
        A(f"s_min_u32 {sT0}, {sT0}, 200000")
        A(f"L_dg:\ns_memrealtime s[72:73]\ns_waitcnt lgkmcnt(0)\ns_sub_u32 {sT1}, s72, s{sST}\ns_cmp_lt_u32 {sT1}, {sT0}\ns_cbranch_scc1 L_dg")
    if stamps:
        stamp(8)
        A(f"s_mul_i32 {sT0}, s2, 5\ns_add_u32 {sT0}, {sT0}, {sW}\ns_lshl_b32 {sT0}, {sT0}, 6\ns_add_u32 {sT0}, {sT0}, {WS_ST}")
        A(f"s_getreg_b32 {sT1}, hwreg(HW_REG_XCC_ID)")
        A("s_waitcnt lgkmcnt(0)\nv_mov_b32 v4, 0")
        for i in range(9): A(f"v_writelane_b32 v4, s{sST+2*i}, {i}")
        A(f"v_writelane_b32 v4, s42, 9\nv_writelane_b32 v4, s48, 10\nv_writelane_b32 v4, s50, 11\nv_writelane_b32 v4, s47, 12")
        A(f"v_writelane_b32 v4, {sT1}, 15")
        A(f"v_lshlrev_b32 v5, 2, {vLANE}\ns_mov_b64 exec, 0xffff")
        A(f"buffer_store_dword v4, v5, {WS_}, {sT0} offen sc1")
    if diag2:
        role, st, op, mult = diag2
        A(f"s_mov_b64 exec, -1\ns_cmp_lg_u32 s2, 0\ns_cbranch_scc1 L_end\ns_cmp_lg_u32 {sW}, 4\ns_cbranch_scc1 L_end")
        A(f"L_dh:\ns_memrealtime s[72:73]\ns_waitcnt lgkmcnt(0)\ns_sub_u32 {sT1}, s72, s{sST}\ns_cmp_lt_u32 {sT1}, 20000\ns_cbranch_scc1 L_dh")
        A(f"v_mul_u32_u24 v5, 320, {vLANE}")
        for k in range(4):
            A(f"s_mov_b32 {sT0}, {WS_ST + 64*320*k}\nbuffer_load_dword v{8+k}, v5, {WS_}, {sT0} offen sc1\nbuffer_load_dword v{12+k}, v5, {WS_}, {sT0} offen offset:{64*role+4*st} sc1")
        A("s_waitcnt vmcnt(0)")
        for k in range(8): A(f"v_subrev_u32 v{8+k}, s{sST}, v{8+k}")
        vop = {"max": "v_max_i32", "min": "v_min_i32", "mean": "v_add_u32"}[op]
        for k in range(1, 4): A(f"v_min_i32 v8, v8, v{8+k}\n{vop} v12, v12, v{12+k}")
        allred_lo("v_min_i32", ["v8"]); allred_top("v_min_i32", ["v8"], ["v9"])
        allred_lo(vop, ["v12"]); allred_top(vop, ["v12"], ["v13"])
        A(f"v_readfirstlane_b32 {sT0}, v12\nv_readfirstlane_b32 {sT1}, v8\ns_mul_i32 {sT0}, {sT0}, {mult}\ns_mul_i32 {sT1}, {sT1}, {mult}")
        if op == "mean": A(f"s_ashr_i32 {sT0}, {sT0}, 8")
        A(f"s_sub_u32 {sT0}, {sT0}, {sT1}\ns_add_u32 {sT0}, {sT0}, 30000\ns_min_u32 {sT0}, {sT0}, 200000")
        A(f"L_dg2:\ns_memrealtime s[72:73]\ns_waitcnt lgkmcnt(0)\ns_sub_u32 {sT1}, s72, s{sST}\ns_cmp_lt_u32 {sT1}, {sT0}\ns_cbranch_scc1 L_dg2")
    A("L_end:\ns_endpgm")
    A('.section .rodata,"a"\n.p2align 6')
    A(f".amdhsa_kernel {KN}")
    nv4 = (NV+3)//4*4
    A(f".amdhsa_next_free_vgpr {nv4}\n.amdhsa_next_free_sgpr 102\n.amdhsa_accum_offset {nv4}")
    A(".amdhsa_group_segment_fixed_size 0\n.amdhsa_kernarg_size 96\n.amdhsa_user_sgpr_count 2")
    A(".amdhsa_user_sgpr_kernarg_segment_ptr 1\n.amdhsa_system_sgpr_workgroup_id_x 1")
    A(".amdhsa_float_denorm_mode_32 3\n.end_amdhsa_kernel")
    return A.finish()

if __name__ == "__main__":
    kw = eval("dict(" + (sys.argv[2] if len(sys.argv) > 2 else "") + ")")
    open(sys.argv[1], "w").write(gen(**kw))
```

```python
import sys, os
sys.path.insert(0, os.path.dirname(os.path.abspath(__file__)))
from asmlib import Asm
KN = "parallel_sum__mha_block_cached__glu_gated_reglu__decode_kernel"
HEADER = open("parallel_sum__mha_block_cached__glu_gated_reglu__decode.s.ref").read().split("; Override launch")[0]

HB = 32768*384
TB = 32*HB
WS_EP, WS_LS, WS_H3, WS_XX, WS_PR, WS_QS, WS_H1, WS_ST, WS_H2, WS_SIZE = 0, 0x8000, 0x10000, 0x20000, 0x40000, 0x80000, 0x100000, 0x200000, 0x280000, 0x400000
OOB = 0x40000000
SPIN = 1 << 20

def gen(NSEG=8, G=6, F=5, FH=6, RB=8, pace=5, deep=1, per=12, bs=2, fb=22, fbo=26, pre0=3, pre1=8, trig=17, skip='', xmap=1, xd=(6,5,3,1,-1,-3,-5,-6), xp=4, xs=0, np3=1, s3=6, dfirst=0, ab=0, psleep=4,
        spin=SPIN, local=1, lp="nt", pf="sc1", own=1, lsb=17, stamps=False, diag=None, diag2=None):
    A = Asm()
    NG = 32//NSEG; GS = 8*NSEG; BPS = 16//NSEG; LGS = GS.bit_length()-1
    PAIR = NSEG == 8
    TSTR = GS*4*3072
    assert G < RB and 24 % RB == 0 and NSEG == 8
    if diag2: stamps = True
    timed = stamps or diag is not None
    L_OP = 0; L_W = 8192; L_QP = L_W + 7680*(6 if PAIR else 5); L_QB = L_QP + 6400; L_ML = L_QB + 384*NSEG
    L_CT = L_ML + 64; L_SC = L_CT + 64; L_SIZE = L_SC + 16384 + 256
    assert L_SC < 65536
    sW, sHQ, sS, sG, sMEM = "s3", "s4", "s5", "s6", "s7"
    KV_, WS_, TA_, TB_, TC_, X_ = "s[8:11]", "s[16:19]", "s[20:23]", "s[24:27]", "s[28:31]", "s[32:35]"
    mB1, mB0 = "s[12:13]", "s[14:15]"
    pX, pK, pV, pWQ, pWO, pWG, pWU, pWD, pOUT, pDBG, pWS = 36, 38, 40, 42, 44, 48, 50, 52, 54, 56, 58
    sOFF, sOFF0, sIB, sBLK, sLIN, sX, sC, sT0, sT1, sT2, sT3, sOWN = [f"s{r}" for r in range(60, 72)]
    sTAG = "s46"
    sST = 84
    vLANE, vKV, vA, vB = "v0", "v1", "v2", "v3"
    ACC, Q = 8, 32
    T = 44
    RING = 56
    PB = RING + 48
    NV = PB + 96
    t0, t1, t2, t3 = f"v{T}", f"v{T+1}", f"v{T+2}", f"v{T+3}"
    def stamp(i):
        if timed: A(f"s_memrealtime s[{sST+2*i}:{sST+2*i+1}]")
    def srd_hi(name, size):
        b = int(name[2:name.index(":")]); A(f"s_mov_b32 s{b+2}, {size}\ns_mov_b32 s{b+3}, 0x20000")
    def srd_lo(name, ptr):
        b = int(name[2:name.index(":")]); A(f"s_mov_b64 s[{b}:{b+1}], s[{ptr}:{ptr+1}]")
    def srd(name, ptr, size): srd_lo(name, ptr); srd_hi(name, size)
    DPP = "row_mask:0xf bank_mask:0xf"
    PATS = ("quad_perm:[1,0,3,2]", "quad_perm:[2,3,0,1]", "row_half_mirror", "row_mirror")
    def allred_lo(op, vs, n=4):
        for pat in PATS[:n]:
            for v in vs: A(f"{op}_dpp {v}, {v}, {v} {pat} {DPP}")
    def allred_top(op, vs, ts):
        for sw in ("v_permlane16_swap_b32", "v_permlane32_swap_b32"):
            for v, t in zip(vs, ts): A(f"v_mov_b32 {t}, {v}")
            for v, t in zip(vs, ts): A(f"{sw} {t}, {v}")
            for v, t in zip(vs, ts): A(f"{op} {v}, {v}, {t}")
    def redscat(base, n):
        for g in range(n):
            for e in range(4): A(f"v_permlane32_swap_b32 v{base+8*g+e}, v{base+8*g+e+4}")
        for g in range(n):
            for e in range(4): A(f"v_add_f32 v{base+8*g+e}, v{base+8*g+e}, v{base+8*g+e+4}")
        for g in range(n):
            for e in range(2): A(f"v_permlane16_swap_b32 v{base+8*g+e}, v{base+8*g+e+2}")
        for g in range(n):
            for e in range(2): A(f"v_add_f32 v{base+8*g+e}, v{base+8*g+e}, v{base+8*g+e+2}")
        for g in range(n):
            A(f"v_add_f32_dpp v{base+8*g}, v{base+8*g}, v{base+8*g} row_ror:8 row_mask:0xf bank_mask:0x3")
        for g in range(n):
            A(f"v_add_f32_dpp v{base+8*g}, v{base+8*g+1}, v{base+8*g+1} row_ror:8 row_mask:0xf bank_mask:0xc")
    def redscat_lo(bases):
        for S in bases:
            for e in range(4): A(f"v_add_f32_dpp v{S+e}, v{S+e}, v{S+e} row_half_mirror row_mask:0xf bank_mask:0x5")
        for S in bases:
            for e in range(4): A(f"v_add_f32_dpp v{S+e}, v{S+e+4}, v{S+e+4} row_half_mirror row_mask:0xf bank_mask:0xa")
        for S in bases:
            for e in range(4): A(f"v_add_f32_dpp v{S+e}, v{S+e}, v{S+e} quad_perm:[2,3,0,1] {DPP}")
        for S in bases:
            for e in range(2): A(f"v_cndmask_b32 v{S+e}, v{S+e}, v{S+e+2}, {mB1}")
        for S in bases:
            for e in range(2): A(f"v_add_f32_dpp v{S+e}, v{S+e}, v{S+e} quad_perm:[1,0,3,2] {DPP}")
        for S in bases: A(f"v_cndmask_b32 v{S}, v{S}, v{S+1}, {mB0}")
    def axpy(acc, data, n, pl, ph):
        for i in range(n):
            A(f"v_dot2c_f32_bf16 v{acc+2*i}, v{data+i}, {pl}\nv_dot2c_f32_bf16 v{acc+2*i+1}, v{data+i}, {ph}")
    def ld(reg, j): A(f"buffer_load_dwordx4 v[{reg}:{reg+3}], {vKV}, {KV_}, {sOFF} offen offset:{128*j} nt")
    uid = [0]
    def next_block():
        uid[0] += 1; u = uid[0]
        A(f"s_add_u32 {sIB}, {sIB}, 1\ns_and_b32 {sT0}, {sIB}, {BPS-1}\ns_cbranch_scc1 L_nb{u}")
        A(f"s_add_u32 {sOFF}, {sOFF}, {(NG-1)*HB}")
        A(f"s_and_b32 {sT0}, {sIB}, 15\ns_cbranch_scc1 L_nb{u}")
        A(f"s_mov_b64 s[8:9], s[{pV}:{pV+1}]\ns_mov_b32 {sOFF}, {sOFF0}")
        A(f"s_cmp_lt_u32 {sIB}, 32\ns_cbranch_scc1 L_nb{u}\ns_mov_b32 s10, 0\ns_mov_b32 {sOFF}, 0")
        A(f"L_nb{u}:")
    def lev(n, f):
        fr = f - int(f)
        return int(f) + (1 if int((n+1)*fr + 1e-9) != int(n*fr + 1e-9) else 0)
    cps = list(range(0, 24, per)) if fb else []
    assert all(c + G + 1 <= 23 for c in cps) and per > G
    PR_, sTHR, vPC, vPO, vPL, vPS = TC_, "s72", "v52", "v53", "v54", "v55"
    def slot(n, last=False):
        uid[0] += 1; u = uid[0]
        fi, fh = lev(n, F), lev(n, FH)
        assert fi <= fh <= G
        def cnt(x): return x - 1 + 2*sum(1 for c in cps if 0 < n - c <= x)
        m = n + G
        if m % 3 == 0:
            A(f"s_add_u32 {sOFF}, {sOFF}, {TSTR}")
            if m == 24: next_block()
        if fi < fh: A(f"s_cbranch_vccnz L_dp{u}\ns_waitcnt vmcnt({cnt(fi)})\nL_dp{u}:")
        A(f"s_waitcnt vmcnt({cnt(fh)})")
        ld(RING + 4*(m % RB), m % 3)
        if n - G - 1 in cps:
            if xd:
                A(f"v_readlane_b32 {sT1}, {vPO}, 32\ns_sub_u32 {sT1}, {sT1}, {sTAG}\ns_cmp_lt_u32 {sT1}, 33\ns_cselect_b32 {sTHR}, {sT1}, {sTHR}")
            A(f"v_sub_u32 {vPO}, {vPO}, {vPC}\nv_cmp_gt_u32 vcc, 64, {vPO}\ns_bcnt1_i32_b32 {sT0}, vcc_lo")
            A(f"s_cmp_gt_u32 {sT0}, {sTHR}\ns_cselect_b64 vcc, -1, 0")
            if stamps: A(f"s_and_b32 {sT0}, vcc_lo, 1\ns_add_u32 s47, s47, {sT0}")
            if last and deep: A(f"s_cmp_ge_u32 {sBLK}, {32-deep}\ns_cselect_b64 vcc, -1, vcc")
        if n in cps:
            A(f"v_add_u32 {vPC}, 1, {vPC}\nbuffer_store_dword {vPC}, {vPS}, {PR_}, 0 offen\nbuffer_load_dword {vPO}, {vPL}, {PR_}, 0 offen nt")
    def qk4(acc, data, j):
        for e in range(4):
            if j == 0 and e == 0: A(f"v_dot2_f32_bf16 v{acc}, v{data}, v{Q}, 0")
            else: A(f"v_dot2_f32_bf16 v{acc}, v{data+e}, v{Q+4*j+e}, v{acc}")

    A(HEADER.rstrip())
    A(f"; @launch grid=(256,1,1) block=(320,1,1) lds={L_SIZE}")
    A('.amdgcn_target "amdgcn-amd-amdhsa--gfx950"\n.text')
    A(f".globl {KN}\n.p2align 8\n.type {KN},@function\n{KN}:")
    A("s_cmp_ge_u32 s2, 256\ns_cbranch_scc1 L_end")
    A("s_load_dwordx16 s[36:51], s[0:1], 0\ns_load_dwordx8 s[52:59], s[0:1], 64")
    stamp(0)
    A(f"v_lshrrev_b32 v1, 6, v0\nv_and_b32 {vLANE}, 63, v0\nv_readfirstlane_b32 {sW}, v1\ns_setprio 3")
    A(f"v_mov_b32 v8, 0\nds_write_b32 v8, v8 offset:{L_CT}")
    order = []
    for v in range(8):
        if v not in order: order += [v, v ^ xmap] if (v & 1) == 0 or (xmap & 1) == 0 else [v ^ xmap, v]
    lut = sum(order.index(v) << (4*v) for v in range(8))
    A(f"s_and_b32 {sX}, s2, 7\ns_lshl_b32 {sX}, {sX}, 2\ns_lshr_b32 {sX}, {hex(lut)}, {sX}\ns_and_b32 {sX}, {sX}, 7")
    A(f"s_lshr_b32 {sC}, s2, 3\ns_lshl_b32 {sT0}, {sX}, 5\ns_add_u32 {sLIN}, {sT0}, {sC}")
    A(f"s_lshr_b32 {sG}, {sLIN}, {LGS}\ns_and_b32 {sMEM}, {sLIN}, {GS-1}\ns_and_b32 {sS}, {sMEM}, 7")
    A(f"s_lshr_b32 {sT0}, {sMEM}, 3\ns_mul_i32 {sHQ}, {sT0}, {NG}\ns_add_u32 {sHQ}, {sHQ}, {sG}")
    A(f"s_sub_u32 {sW}, {sW}, 1\ns_cselect_b32 {sW}, 4, {sW}")
    A(f"v_lshrrev_b32 {vA}, 3, {vLANE}\nv_and_b32 {vB}, 7, {vLANE}")
    A(f"v_lshlrev_b32 v7, 4, {vB}")
    A(f"v_mov_b32 v4, 384\nv_mad_u32_u24 {vKV}, {vA}, v4, v7")
    A(f"v_mov_b32 v4, 12288\nv_mad_u32_u24 v4, {vA}, v4, v7")
    A(f"v_mov_b32 v5, 3072\nv_mad_u32_u24 v5, {vA}, v5, v7")
    A(f"v_mov_b32 v6, {OOB}\nv_cmp_gt_u32 vcc, 6, {vB}\nv_cndmask_b32 v5, v6, v5, vcc")
    A(f"v_lshlrev_b32 v6, 1, {vA}\nv_lshlrev_b32 v7, 4, {vLANE}")
    A(f"s_mul_i32 {sT0}, {sS}, 80\ns_lshl_b32 {sT1}, {sW}, 4\ns_add_u32 {sT0}, {sT0}, {sT1}")
    A(f"s_mul_i32 {sT1}, {sT0}, 12288\ns_mul_i32 {sT2}, {sHQ}, 384\ns_add_u32 {sT1}, {sT1}, {sT2}")
    A(f"s_mul_i32 {sT2}, {sT0}, 3072\ns_lshr_b32 {sT3}, {sLIN}, 3\ns_mul_i32 {sT3}, {sT3}, 96\ns_add_u32 {sT2}, {sT2}, {sT3}")
    A(f"s_lshl_b32 {sT0}, {sT0}, 1")
    srd_hi(X_, 1280); srd_hi(TA_, 640*12288); srd_hi(TB_, 640*3072); srd_hi(TC_, 640*3072); srd_hi(WS_, WS_SIZE); srd_hi(KV_, TB)
    A("s_waitcnt lgkmcnt(0)")
    srd_lo(X_, pX)
    XR, WD, WA = RING + 40, RING, ACC
    A(f"buffer_load_dwordx4 v[{XR}:{XR+3}], v7, {X_}, 0 offen")
    A(f"buffer_load_dwordx4 v[{XR+4}:{XR+7}], v7, {X_}, 0 offen offset:1024")
    A(f"buffer_load_ushort v{T+10}, v6, {X_}, {sT0} offen")
    A(f"buffer_load_ushort v{T+11}, v6, {X_}, {sT0} offen offset:16")
    srd_lo(TA_, pWQ); srd_lo(TB_, pWG); srd_lo(TC_, pWU)
    A(f"s_load_dword {sTAG}, s[{pWS}:{pWS+1}], {WS_EP}")
    A("s_barrier")
    for t in range(2):
        for j in range(3):
            A(f"buffer_load_dwordx4 v[{WD+20*t+4*j}:{WD+20*t+4*j+3}], v4, {TA_}, {sT1} offen offset:{128*j} nt")
        A(f"buffer_load_dwordx4 v[{WD+20*t+12}:{WD+20*t+15}], v5, {TB_}, {sT2} offen nt")
        A(f"buffer_load_dwordx4 v[{WD+20*t+16}:{WD+20*t+19}], v5, {TC_}, {sT2} offen nt")
        if t == 0: A(f"s_add_u32 {sT1}, {sT1}, {8*12288}\ns_add_u32 {sT2}, {sT2}, {8*3072}")
    srd_lo(KV_, pK); srd_lo(WS_, pWS)
    A(f"s_lshl_b32 {sT0}, {sMEM}, 2\ns_add_u32 {sT0}, {sT0}, {sW}\ns_mul_i32 {sT0}, {sT0}, 3072")
    A(f"s_mul_i32 {sOFF0}, {sG}, {HB}\ns_add_u32 {sOFF0}, {sOFF0}, {sT0}\ns_mov_b32 {sOFF}, {sOFF0}")
    A(f"s_mov_b32 s12, 0xcccccccc\ns_mov_b32 s13, 0xcccccccc\ns_mov_b32 s14, 0xaaaaaaaa\ns_mov_b32 s15, 0xaaaaaaaa")
    A(f"s_and_b32 {sOWN}, {sX}, 1\ns_xor_b32 {sOWN}, {sOWN}, {own}")
    A(f"s_cmp_eq_u32 {sW}, 4\ns_cbranch_scc1 L_ln\ns_setprio 1\nL_ln:\ns_waitcnt vmcnt(10) lgkmcnt(0)")
    A(f"s_mul_i32 {sTAG}, {sTAG}, 1664525\ns_add_u32 {sTAG}, {sTAG}, 1013904223")
    XF = WA
    for i in range(8):
        A(f"v_lshlrev_b32 v{XF+2*i}, 16, v{XR+i}\nv_and_b32 v{XF+2*i+1}, 0xffff0000, v{XR+i}")
    l0, l1, l2, l3 = "v24", "v25", "v26", "v27"
    A(f"v_add_f32 {l0}, v{XF}, v{XF+1}\nv_add_f32 {l1}, v{XF+2}, v{XF+3}")
    for i in range(4, 16, 2): A(f"v_add_f32 {l0}, {l0}, v{XF+i}\nv_add_f32 {l1}, {l1}, v{XF+i+1}")
    A(f"v_add_f32 {l0}, {l0}, {l1}")
    allred_lo("v_add_f32", [l0]); allred_top("v_add_f32", [l0], [l1])
    A(f"v_mul_f32 {l0}, 0x3acccccd, {l0}")
    for i in range(16): A(f"v_sub_f32 v{XF+i}, v{XF+i}, {l0}")
    A(f"v_mul_f32 {l1}, v{XF}, v{XF}\nv_mul_f32 {l2}, v{XF+8}, v{XF+8}")
    for i in range(1, 8): A(f"v_fmac_f32 {l1}, v{XF+i}, v{XF+i}\nv_fmac_f32 {l2}, v{XF+8+i}, v{XF+8+i}")
    A(f"v_cmp_gt_u32 vcc, 16, {vLANE}\nv_cndmask_b32 {l2}, 0, {l2}, vcc\nv_add_f32 {l1}, {l1}, {l2}")
    allred_lo("v_add_f32", [l1]); allred_top("v_add_f32", [l1], [l2])
    A(f"v_mul_f32 {l1}, 0x3acccccd, {l1}")
    A(f"v_cvt_pk_bf16_f32 {l0}, 0, {l0}\nv_cvt_pk_bf16_f32 {l1}, 0, {l1}")
    A(f"v_add_f32 {l1}, 0x3727c5ac, {l1}\nv_cvt_pk_bf16_f32 {l1}, 0, {l1}\nv_sqrt_f32 {l1}, {l1}")
    A(f"v_cvt_pk_bf16_f32 {l1}, 0, {l1}\nv_rcp_f32 {l2}, {l1}")
    for t in range(2):
        xr = f"v{T+10+t}"
        A(f"v_lshlrev_b32 {xr}, 16, {xr}\nv_sub_f32 {xr}, {xr}, {l0}\nv_cvt_pk_bf16_f32 {xr}, 0, {xr}")
        A(f"v_mul_f32 {l3}, {xr}, {l2}\nv_fma_f32 {xr}, -{l3}, {l1}, {xr}\nv_fma_f32 {xr}, {xr}, {l2}, {l3}")
        A(f"v_cvt_pk_bf16_f32 v{T+6+2*t}, {xr}, 0\nv_cvt_pk_bf16_f32 v{T+7+2*t}, 0, {xr}")
    for i in range(40): A(f"v_mov_b32 v{WA+i}, 0")
    stamp(1)
    sD = [f"s{r}" for r in range(74, 80)]
    def dma_setup():
        srd(TA_, pWO, 6144*1280); srd(TB_, pWD, 1536*1280)
        A(f"s_lshl_b32 {sT2}, {sS}, 3\ns_lshr_b32 {sT1}, {sC}, 3\ns_lshl_b32 {sT1}, {sT1}, 1\ns_add_u32 {sT2}, {sT2}, {sT1}")
        A(f"s_mul_i32 {sT1}, {sG}, 192\ns_add_u32 {sT2}, {sT2}, {sT1}")
        A(f"s_lshl_b32 {sT0}, {sW}, 1\ns_add_u32 {sT0}, {sT0}, {sOWN}\ns_mul_i32 {sT0}, {sT0}, {NG*192}\ns_add_u32 {sT0}, {sT0}, {sT2}")
        A(f"s_mul_i32 {sD[0]}, {sT0}, 1280\ns_mul_i32 {sD[1]}, {sW}, 7680")
        A(f"s_lshl_b32 {sT0}, {sW}, 6\ns_add_u32 {sT0}, {sT0}, {sT2}\ns_add_u32 {sT0}, {sT0}, {7*NG*192}\ns_mul_i32 {sD[2]}, {sT0}, 1280\ns_mul_i32 {sD[3]}, {sW}, 2560")
        A(f"s_mul_i32 {sT0}, {sLIN}, 7680\ns_lshl_b32 {sD[5]}, {sW}, 11\ns_add_u32 {sD[4]}, {sT0}, {sD[5]}")
    def w(paced):
        if paced: A(f"s_waitcnt vmcnt({pace-1})")
    def op_pb(n):
        def f(paced):
            if n and n % 3 == 0: A(f"s_add_u32 {sOFF}, {sOFF}, {TSTR}")
            w(paced); ld(PB + 4*n, n % 3)
        return f
    def op_wo(jj, i, off=0, base=7680):
        def f(paced):
            if i == 0: A(f"s_add_u32 m0, {sD[off+1]}, {L_W+base+2560*jj}")
            if i == 2: A("s_mov_b32 exec_hi, 0")
            w(paced); A(f"buffer_load_dwordx4 v7, {TA_}, {sD[off]} offen offset:{1024*i} nt lds")
            if i == 2: A(f"s_mov_b32 exec_hi, -1\ns_add_u32 {sD[off]}, {sD[off]}, {64*1280}")
        return f
    def op_wd(i):
        def f(paced):
            if i == 0: A(f"s_add_u32 m0, {sD[5]}, {L_W}")
            else: A(f"s_cmp_eq_u32 {sW}, 3\ns_cselect_b32 exec_hi, 0, -1")
            w(paced); A(f"buffer_load_dwordx4 v7, {TB_}, {sD[4]} offen offset:{1024*i} nt lds")
            if i: A("s_mov_b32 exec_hi, -1")
        return f
    def op_s4(paced):
        A(f"s_lshl_b32 {sT0}, {sOWN}, 2\ns_add_u32 {sT0}, {sT0}, {sW}\ns_cmp_ge_u32 {sT0}, 3\ns_cbranch_scc1 L_nos4")
        for i in range(3): op_wo(0, i, 2, 7680*5)(paced)
        A("L_nos4:")
    dma = [op_wo(jj, i) for jj in range(3) for i in range(3)] + [op_wd(0), op_wd(1), op_s4]
    pbs = [op_pb(n) for n in range(24)]
    ops = dma + pbs if dfirst else pbs + dma
    assert pre0 <= 11
    dma_setup()
    A(f"s_waitcnt vmcnt(5)\ns_cmp_eq_u32 {sW}, 4\ns_cbranch_scc1 L_nopre0")
    for n in range(pre0): ops[n](False)
    A("L_nopre0:")
    axpy(WA, WD, 20, f"v{T+6}", f"v{T+7}")
    A(f"s_cmp_eq_u32 {sW}, 4\ns_cbranch_scc1 L_nopre1\ns_waitcnt vmcnt({pre0})")
    for n in range(pre0, pre1): ops[n](False)
    A("s_branch L_pre2\nL_nopre1:\ns_waitcnt vmcnt(0)\nL_pre2:")
    axpy(WA, WD+20, 20, f"v{T+8}", f"v{T+9}")
    redscat(WA, 5)
    A(f"s_mul_i32 {sT0}, {sW}, 1280\nv_lshl_add_u32 v4, {vLANE}, 2, {sT0}")
    for k in range(5): A(f"ds_write_b32 v4, v{WA+8*k} offset:{L_QP+256*k}")
    A(f"v_mov_b32 v5, 0\nv_mov_b32 v6, 1\ns_mov_b64 exec, 1\nds_add_u32 v5, v6 offset:{L_CT}\ns_mov_b64 exec, -1")
    stamp(2)
    if ab: A("s_barrier")
    A(f"s_cmp_eq_u32 {sW}, 4\ns_cbranch_scc1 L_svc")
    for n in range(pre1, len(ops)):
        ops[n](True)
        if n == trig: A(f"v_mov_b32 v6, 64\ns_mov_b64 exec, 1\nds_add_u32 v5, v6 offset:{L_CT}\ns_mov_b64 exec, -1")
    A(f"s_mov_b32 {sIB}, 1")
    for m in range(G):
        if m % 3 == 0: A(f"s_add_u32 {sOFF}, {sOFF}, {TSTR}")
        A(f"s_waitcnt vmcnt({pace-1})"); ld(RING + 4*m, m % 3)
    vQA, vSA = "v4", "v5"
    A(f"v_lshlrev_b32 {vQA}, 4, {vB}\nv_add_u32 {vQA}, {L_QB}, {vQA}")
    A(f"s_lshl_b32 {sT0}, {sW}, 12\ns_add_u32 {sT0}, {sT0}, {L_SC}\nv_lshl_add_u32 {vSA}, {vLANE}, 2, {sT0}")
    A(f"s_lshl_b32 {sT0}, {sX}, 2\ns_add_u32 {sT0}, {sT0}, {sW}\ns_mul_i32 {sT0}, {sT0}, 4224\ns_add_u32 {sT0}, {sT0}, {WS_PR}")
    A(f"s_add_u32 s28, s{pWS}, {sT0}\ns_addc_u32 s29, s{pWS+1}, 0\ns_mov_b32 s30, {132 if xd else 128}")
    A(f"v_lshlrev_b32 {vPL}, 2, {vLANE}\nv_mov_b32 {vPS}, 0x1000\nv_cmp_eq_u32 vcc, {sC}, {vLANE}\nv_cndmask_b32 {vPS}, {vPS}, {vPL}, vcc\nv_mov_b32 {vPC}, {sTAG}")
    A(f"s_getreg_b32 {sTHR}, hwreg(HW_REG_XCC_ID)\ns_bitcmp1_b32 {sTHR}, 0\ns_cselect_b32 {sTHR}, {fbo}, {fb}")
    A(f"s_mov_b64 vcc, 0\ns_mov_b32 s47, 0")
    stamp(3)
    A("s_barrier")
    for j in range(3): A(f"ds_read_b128 v[{Q+4*j}:{Q+4*j+3}], {vQA} offset:{128*j}")
    A("s_waitcnt lgkmcnt(0)")
    stamp(4)
    SA, R, RT, S2 = ACC, ACC + 2, ACC + 6, ACC + 8
    def k_after_tile(t):
        A(f"v_add_f32_dpp v{R+(t&3)}, v{SA+(t&1)}, v{SA+(t&1)} row_half_mirror row_mask:0xf bank_mask:{'0xa' if t >= 4 else '0x5'}")
    def k_stage2(e): A(f"v_add_f32_dpp v{R+e}, v{R+e}, v{R+e} quad_perm:[2,3,0,1] {DPP}")
    def k_fin(which):
        if which == 0:
            k_after_tile(7); k_stage2(3)
            A(f"v_cndmask_b32 v{RT+1}, v{R+1}, v{R+3}, {mB1}")
        else:
            A(f"v_add_f32_dpp v{RT+1}, v{RT+1}, v{RT+1} quad_perm:[1,0,3,2] {DPP}\nv_cndmask_b32 v{RT}, v{RT}, v{RT+1}, {mB0}")
            A(f"ds_write_b32 {vSA}, v{RT}\nv_add_u32 {vSA}, 256, {vSA}")
    def k_body(first):
        for n in range(24):
            t, j = n//3, n % 3
            slot(n)
            if not first:
                if n < 2: k_fin(n)
                if n == 0: A("s_waitcnt lgkmcnt(0)")
                if n == bs: A("s_waitcnt lgkmcnt(0)\ns_barrier")
            else: qk4(S2 + t, PB + 4*n, j)
            if j == 0 and t >= 1: k_after_tile(t-1)
            if j == 1 and t >= 5: k_stage2(t-5)
            if n == 23: A(f"v_cndmask_b32 v{RT}, v{R}, v{R+2}, {mB1}")
            if n == 20: A(f"s_add_u32 {sBLK}, {sBLK}, 1\ns_and_b32 {sT0}, {sBLK}, {BPS-1}\ns_cselect_b32 {sT0}, 0, 384\nv_add_u32 {vQA}, {sT0}, {vQA}")
            if "c" not in skip: qk4(SA + (t & 1), RING + 4*(n % RB), j)
            if n == 23: A(f"v_add_f32_dpp v{RT}, v{RT}, v{RT} quad_perm:[1,0,3,2] {DPP}")
            if t == 7: A(f"ds_read_b128 v[{Q+4*j}:{Q+4*j+3}], {vQA} offset:{128*j}")
    A(f"s_mov_b32 {sBLK}, 1")
    k_body(True)
    redscat_lo([S2])
    A(f"ds_write_b32 {vSA}, v{S2}\nv_add_u32 {vSA}, 256, {vSA}")
    A("L_k:")
    k_body(False)
    if stamps: A(f"s_cmp_lg_u32 {sBLK}, 3\ns_cbranch_scc1 L_st1\ns_memrealtime s[42:43]\nL_st1:")
    A(f"s_cmp_lt_u32 {sBLK}, 16\ns_cbranch_scc1 L_k")
    if stamps: A("s_memrealtime s[50:51]")
    vP, vPN, pl, ph, vOA, RV = "v44", "v45", "v46", "v47", "v4", Q
    k_fin(0); k_fin(1)
    A(f"v_subrev_u32 {vSA}, 4096, {vSA}\nds_read_b32 {vPN}, {vSA}\nv_add_u32 {vSA}, 256, {vSA}")
    A(f"s_lshl_b32 {sT0}, {sW}, 10\ns_add_u32 {sT0}, {sT0}, {L_OP}\nv_add_u32 {vOA}, {sT0}, v7\ns_mov_b32 s73, 0\ns_waitcnt lgkmcnt(0)")
    for i in range(24): A(f"v_mov_b32 v{ACC+i}, 0")
    def v_a(g, zero=True):
        b = ACC + 8*g
        for e in range(4): A(f"v_permlane32_swap_b32 v{b+e}, v{b+e+4}")
        for e in range(4): A(f"v_add_f32 v{RV+4*g+e}, v{b+e}, v{b+e+4}")
        if zero:
            for e in range(8): A(f"v_mov_b32 v{b+e}, 0")
    def v_b(gs):
        for g in gs:
            for e in range(2): A(f"v_permlane16_swap_b32 v{RV+4*g+e}, v{RV+4*g+e+2}")
        for g in gs:
            for e in range(2): A(f"v_add_f32 v{RV+4*g+e}, v{RV+4*g+e}, v{RV+4*g+e+2}")
        for g in gs: A(f"v_add_f32_dpp v{48+g}, v{RV+4*g}, v{RV+4*g} row_ror:8 row_mask:0xf bank_mask:0x3")
        for g in gs: A(f"v_add_f32_dpp v{48+g}, v{RV+4*g+1}, v{RV+4*g+1} row_ror:8 row_mask:0xf bank_mask:0xc")
    def v_out(): A(f"ds_write_b96 {vOA}, v[48:50]\nv_xor_b32 {vOA}, 4096, {vOA}")
    def cond(lab, code): A(f"s_cmp_eq_u32 s73, 0\ns_cbranch_scc1 {lab}"); code(); A(f"{lab}:")
    A("L_v:")
    for n in range(24):
        slot(n, True)
        if n == 0: A(f"s_waitcnt lgkmcnt(0)\nv_mov_b32 {vP}, {vPN}"); cond("L_c0", lambda: v_a(2))
        if n == 1: cond("L_c1", lambda: (v_b([2]), v_out()))
        if n == bs: A("s_waitcnt lgkmcnt(0)\ns_barrier")
        if n == 20:
            A(f"s_add_u32 {sT1}, {sBLK}, 1\ns_and_b32 {sT0}, {sT1}, {BPS-1}\ns_cselect_b32 s73, 0, 1")
            A(f"ds_read_b32 {vPN}, {vSA}\nv_add_u32 {vSA}, 256, {vSA}")
        if n % 3 == 0:
            t = n//3
            A(f"v_mov_b32_dpp {pl}, {vP} row_newbcast:{t} row_mask:0xf bank_mask:0x3")
            A(f"v_mov_b32_dpp {pl}, {vP} row_newbcast:{8+t} row_mask:0xf bank_mask:0xc")
            A(f"v_lshlrev_b32 {ph}, 16, {pl}")
        if "c" not in skip: axpy(ACC + 8*(n % 3), RING + 4*(n % RB), 4, pl, ph)
        if n == 21: cond("L_c21", lambda: (v_a(0), v_b([0])))
        if n == 22: cond("L_c22", lambda: (v_a(1), v_b([1])))
    A(f"s_add_u32 {sBLK}, {sBLK}, 1")
    if stamps: A(f"s_cmp_lg_u32 {sBLK}, 29\ns_cbranch_scc1 L_st2\ns_memrealtime s[48:49]\nL_st2:\n; SSBYTES={26*8*3072}")
    A(f"s_cmp_lt_u32 {sBLK}, 32\ns_cbranch_scc1 L_v")
    stamp(5)
    v_a(2, False); v_b([2]); v_out()
    A("s_waitcnt lgkmcnt(0)\ns_barrier")
    stamp(6); stamp(7)
    A("s_branch L_done")
    A("L_svc:")
    G0 = RING; G1 = G0 + 8
    vQW, vSC, vML, vOP, vLS, vM, vZ, vZK, vXA = [f"v{32+i}" for i in range(7)] + ["v40", "v42"]
    ZS, ZM = 52, 8
    vWA, vH1S, vH1G, vYG, vH3, vYW, vYR, vOUT, XV = "v16", "v17", "v18", "v19", "v20", "v21", "v29", 22, 26
    P0, P1, YY = PB, PB + 32, PB + 64
    YT = YY + 12
    LP = 64//NSEG; LLP = LP.bit_length()-1; NLS = GS//LP; NR = 4*BPS
    sF = [f"s{r}" for r in (20, 21, 22, 24, 25, 26, 28, 29)]
    sLOC, sHD, sTG2, sH1S, sH1G, sYS, sYG, sH3S, sH3G, sXS, sXG, sFL = [f"s{r}" for r in range(72, 84)]
    sUU = ["s60", "s61", "s62"]
    sSCALE, sLOG2E = "s12", "s13"
    def store2(lab, stores):
        A(f"s_cmp_eq_u32 {sLOC}, 0\ns_cbranch_scc1 {lab}_r"); stores(""); A(f"s_branch {lab}_d\n{lab}_r:"); stores("sc1"); A(f"{lab}_d:")
    def poll(lab, loads, tags, sleep=0, first=None, tag=sTAG, loc=False):
        A(f"s_mov_b32 {sT2}, {spin}")
        if first is not None: loads(first); A(f"s_branch {lab}_chk")
        elif sleep: A(f"s_branch {lab}_go")
        A(f"{lab}:")
        if sleep: A(f"s_sleep {sleep}\n{lab}_go:")
        if loc and lp != "sc1":
            A(f"s_cmp_eq_u32 {sLOC}, 0\ns_cbranch_scc1 {lab}_rm"); loads(lp); A(f"s_branch {lab}_chk\n{lab}_rm:")
        loads("sc1")
        A(f"{lab}_chk:\ns_waitcnt vmcnt(0)")
        if len(tags) == 1: A(f"v_cmp_ne_u32 vcc, {tag}, {tags[0]}")
        else:
            A(f"v_xor_b32 {t0}, {tag}, {tags[0]}")
            for t in tags[1:]: A(f"v_bitop3_b32 {t0}, {t}, {tag}, {t0} bitop3:0xbe")
            A(f"v_cmp_ne_u32 vcc, 0, {t0}")
        A(f"s_cbranch_vccz {lab}_done\ns_sub_u32 {sT2}, {sT2}, 1\ns_cbranch_scc0 {lab}\n{lab}_done:")
    A(f"v_lshlrev_b32 v4, 2, {vLANE}")
    A(f"L_wq:\nds_read_b32 v6, v5 offset:{L_CT}\ns_waitcnt lgkmcnt(0)\nv_and_b32 v6, 7, v6\nv_cmp_gt_u32 vcc, 5, v6\ns_cbranch_vccnz L_wq")
    for w in range(5):
        for k in range(5): A(f"ds_read_b32 v{G0+5*w+k}, v4 offset:{L_QP+1280*w+256*k}")
        if w == 2: A("s_waitcnt lgkmcnt(0)")
    A("s_waitcnt lgkmcnt(0)")
    for w in range(1, 5):
        for k in range(5): A(f"v_add_f32 v{G0+k}, v{G0+k}, v{G0+5*w+k}")
    A(f"v_lshl_add_u32 v5, {vB}, 3, {vA}\nv_lshlrev_b32 {vQW}, 1, v5\nv_lshlrev_b32 v5, 4, v5")
    A(f"v_mov_b32 v48, v{G0+3}\nv_mov_b32 v49, v{G0+4}\nv_mov_b32 v{G0+3}, {sTAG}\nv_mov_b32 v50, {sTAG}\nv_mov_b32 v51, {sTAG}")
    A(f"s_lshl_b32 {sT0}, {sLIN}, 11\ns_add_u32 {sT0}, {sT0}, {WS_QS}")
    A(f"buffer_store_dwordx4 v[{G0}:{G0+3}], v7, {WS_}, {sT0} offen sc1")
    stamp(3)
    A(f"v_add_u32 {vSC}, {L_SC}, v4\nv_mov_b32 {vML}, {L_ML}\nv_add_u32 {vOP}, {L_OP}, v7\nv_mov_b32 {vZ}, 0")
    A(f"s_mov_b32 {sSCALE}, 0x3d93cd3a\ns_mov_b32 {sLOG2E}, 0x3fb8aa3b\ns_mov_b32 {sBLK}, -1")
    A(f"s_lshl_b32 {sHD}, {sG}, {11+LGS}\ns_add_u32 {sHD}, {sHD}, {WS_QS}")
    A(f"L_wt:\ns_sleep 2\nds_read_b32 v10, {vZ} offset:{L_CT}\ns_waitcnt lgkmcnt(0)\nv_cmp_gt_u32 vcc, 256, v10\ns_cbranch_vccnz L_wt")
    A("s_branch L_gq0")
    A("L_blk:")
    if xd:
        A(f"s_cmp_lg_u32 {sC}, 0\ns_cbranch_scc1 L_noxf\ns_and_b32 {sT0}, {sBLK}, {xp-1}\ns_cmp_lg_u32 {sT0}, {xp-1}\ns_cbranch_scc1 L_noxf\ns_cmp_gt_u32 {sBLK}, 28\ns_cbranch_scc1 L_noxf")
        A(f"s_add_u32 {sT0}, {sTAG}, {sBLK}\nv_mov_b32 v12, {sT0}\nv_mul_u32_u24 v13, 4224, {vLANE}\ns_mul_i32 {sT1}, {sX}, 4224\ns_add_u32 {sT1}, {sT1}, {WS_PR+0x30000}")
        A(f"s_mov_b64 exec, 1\nbuffer_store_dword v12, v13, {WS_}, {sT1} offen sc1\ns_mov_b32 {sT1}, {WS_PR+0x30000}")
        if xs < 0: A("s_waitcnt vmcnt(0)")
        if xs > 0: A(f"s_sleep {xs}")
        A(f"s_mov_b64 exec, 0xff\nbuffer_load_dword v14, v13, {WS_}, {sT1} offen sc1\ns_waitcnt vmcnt(0)")
        lutv = sum((d + 8) << (4*i) for i, d in enumerate(xd))
        A(f"v_sub_u32 v14, v14, v12\nv_cmp_gt_u32 vcc, 64, v14\ns_bitset0_b32 vcc_lo, {sX}\ns_bcnt1_i32_b64 {sT0}, vcc\ns_lshl_b32 {sT0}, {sT0}, 2")
        A(f"s_lshr_b32 {sT0}, {hex(lutv)}, {sT0}\ns_and_b32 {sT0}, {sT0}, 15\ns_getreg_b32 {sT1}, hwreg(HW_REG_XCC_ID)\ns_bitcmp1_b32 {sT1}, 0\ns_cselect_b32 {sT1}, {fbo-8}, {fb-8}")
        A(f"s_add_u32 {sT0}, {sT0}, {sT1}\ns_min_u32 {sT0}, {sT0}, 32\ns_add_u32 {sT0}, {sT0}, {sTAG}\nv_mov_b32 v12, {sT0}")
        A(f"s_mul_i32 {sT1}, {sX}, {4*4224}\ns_add_u32 {sT1}, {sT1}, {WS_PR+128}\ns_mov_b64 exec, 0xf")
        A(f"buffer_store_dword v12, v13, {WS_}, {sT1} offen\ns_mov_b64 exec, -1\nL_noxf:")
    A(f"s_cmp_le_u32 {sBLK}, 16\ns_cbranch_scc1 L_kpart\ns_and_b32 {sT0}, {sBLK}, {BPS-1}\ns_cbranch_scc1 L_vmid")
    stamp(5)
    for w in range(4): A(f"ds_read_b96 v[{G0+4*w}:{G0+4*w+2}], {vOP} offset:{1024*w}")
    A(f"v_xor_b32 {vOP}, 4096, {vOP}\nv_mov_b32 v{G0+19}, {sTG2}\ns_waitcnt lgkmcnt(0)")
    for k in range(3): A(f"v_add_f32 v{G0+k}, v{G0+k}, v{G0+4+k}\nv_add_f32 v{G0+8+k}, v{G0+8+k}, v{G0+12+k}")
    for k in range(3): A(f"v_add_f32 v{G0+k}, v{G0+k}, v{G0+8+k}")
    for k in range(3): A(f"v_mul_f32 v{G0+16+k}, {sF[0]}, v{G0+k}")
    if "h" in skip: A(f"s_cmp_lg_u32 {sBLK}, 32\ns_cbranch_scc1 L_p1_done")
    store2("L_s1", lambda p: A(f"buffer_store_dwordx4 v[{G0+16}:{G0+19}], {vH1S}, {WS_}, {sH1S} offen {p}"))
    poll("L_p1", lambda p: A(f"buffer_load_dwordx4 v[{G0}:{G0+3}], {vH1G}, {WS_}, {sH1G} offen {p}"), [f"v{G0+3}"], tag=sTG2, loc=True)
    stamp(6)
    A(f"v_mov_b32 v{G0+3}, 0\nv_permlane32_swap_b32 v{G0}, v{G0+1}\nv_permlane32_swap_b32 v{G0+2}, v{G0+3}")
    A(f"v_add_f32 v{G0}, v{G0}, v{G0+1}\nv_add_f32 v{G0+2}, v{G0+2}, v{G0+3}\nv_permlane16_swap_b32 v{G0}, v{G0+2}\nv_add_f32 {vZK}, v{G0}, v{G0+2}")
    allred_lo("v_add_f32", [vZK], 3)
    A(f"s_cmp_eq_u32 {sBLK}, 32\ns_cbranch_scc1 L_pack")
    for i in range(NSEG-1): A(f"s_mov_b32 {sF[i]}, {sF[i+1]}")
    A(f"s_add_u32 {sTG2}, {sTG2}, 1\ns_xor_b32 {sH1S}, {sH1S}, 1024\ns_xor_b32 {sH1G}, {sH1G}, 1024")
    A(f"s_lshr_b32 {sT0}, {sBLK}, 1\ns_xor_b32 {sT0}, {sT0}, {sOWN}\ns_bitcmp1_b32 {sT0}, 0\ns_cbranch_scc0 L_notmine")
    A(f"v_mov_b32 v{ZM}, v{ZM+1}\nv_mov_b32 v{ZM+1}, v{ZM+2}\nv_mov_b32 v{ZM+2}, {vZK}\ns_cmp_eq_u32 {sBLK}, 28\ns_cbranch_scc0 L_next\ns_branch L_send")
    A(f"L_notmine:\nv_mov_b32 v{ZS}, v{ZS+1}\nv_mov_b32 v{ZS+1}, v{ZS+2}\nv_mov_b32 v{ZS+2}, {vZK}\ns_cmp_ge_u32 {sBLK}, 28\ns_cbranch_scc0 L_next")
    A("L_send:")
    if "x" in skip: A("s_branch L_next")
    A(f"s_mov_b32 exec_lo, 0x01010101\ns_mov_b32 exec_hi, 0x01010101")
    A(f"buffer_store_dwordx4 v[{ZS}:{ZS+3}], {vXA}, {WS_}, {sXS} offen sc1\ns_mov_b64 exec, -1\ns_add_u32 {sXS}, {sXS}, 128")
    A("s_branch L_next")
    A("L_vmid:")
    A(f"s_cmp_lg_u32 {sBLK}, {lsb}\ns_cbranch_scc1 L_nols")
    A(f"s_mul_i32 {sT1}, {sG}, {GS*128}\ns_add_u32 {sT1}, {sT1}, {WS_LS}\ns_add_u32 {sT3}, {sT1}, 4096")
    def gl(p):
        for r in range(NLS): A(f"buffer_load_dwordx4 v[{G0+4*r}:{G0+4*r+3}], {vLS}, {WS_}, {sT1 if LP*128*r < 4096 else sT3} offen offset:{LP*128*r % 4096} {p}")
    poll("L_ls", gl, [f"v{G0+4*r+e}" for r in range(NLS) for e in (1, 3)], sleep=16, first="")
    hn = NLS//2 if PAIR else NLS
    for h, t in ((0, t0), (1, t1))[:2 if PAIR else 1]:
        A(f"v_xor_b32 {t}, {sLOC}, v{G0+4*hn*h+2}")
        for r in range(1, hn): A(f"v_bitop3_b32 {t}, v{G0+4*(hn*h+r)+2}, {sLOC}, {t} bitop3:0xbe")
    if PAIR: A(f"s_bitcmp1_b32 {sX}, 0\ns_cselect_b64 vcc, -1, 0\nv_cndmask_b32 {t0}, {t0}, {t1}, vcc")
    A(f"v_cmp_ne_u32 vcc, 0, {t0}\ns_cmp_eq_u64 vcc, 0\ns_cselect_b32 {sLOC}, {local}, 0")
    A(f"v_max_f32 {t0}, v{G0}, v{G0+4}")
    for r in range(2, NLS, 2): A(f"v_max3_f32 {t0}, {t0}, v{G0+4*r}, v{G0+4*r+4}")
    allred_lo("v_max_f32", [t0], LLP)
    for r in range(NLS): A(f"v_sub_f32 v{G0+4*r}, v{G0+4*r}, {t0}")
    for r in range(NLS): A(f"v_exp_f32 v{G0+4*r}, v{G0+4*r}")
    for r in range(1, NLS): A(f"v_add_f32 v{G0}, v{G0}, v{G0+4*r}")
    allred_lo("v_add_f32", [f"v{G0}"], LLP)
    A(f"v_sub_f32 {t0}, {vM}, {t0}\nv_exp_f32 {t0}, {t0}\nv_rcp_f32 {t1}, v{G0}\nv_mul_f32 {t0}, {t0}, {t1}")
    for k in range(NSEG): A(f"v_readlane_b32 {sF[k]}, {t0}, {LP*k}")
    A(f"s_lshl_b32 {sT0}, {sLIN}, 11\ns_add_u32 {sT0}, {sT0}, {WS_QS}\ns_mov_b32 exec_lo, 0x3f3f3f3f\ns_mov_b32 exec_hi, 0x3f3f3f3f")
    store2("L_s0", lambda p: A(f"buffer_store_dwordx4 v[48:51], v5, {WS_}, {sT0} offen offset:1024 {p}"))
    A("s_mov_b64 exec, -1\ns_branch L_next")
    A("L_nols:")
    A(f"s_cmp_lg_u32 {sBLK}, {lsb+2}\ns_cbranch_scc1 L_nogu2")
    A(f"v_lshlrev_b32 v6, 11, {vA}\nv_lshl_add_u32 v6, {vB}, 4, v6\nv_mov_b32 v{G1}, 0\nv_mov_b32 v{G1+1}, 0")
    A(f"s_lshr_b32 {sT1}, {sLIN}, 3\ns_lshl_b32 {sT1}, {sT1}, 14\ns_mul_i32 {sT0}, {sS}, 96\ns_add_u32 {sT1}, {sT1}, {sT0}\ns_add_u32 {sT1}, {sT1}, {WS_QS}")
    A(f"s_mov_b32 exec_lo, 0x3f3f3f3f\ns_mov_b32 exec_hi, 0x3f3f3f3f")
    poll("L_gu", lambda p: A(f"buffer_load_dwordx4 v[{G1}:{G1+3}], v6, {WS_}, {sT1} offen offset:1024 {p}"), [f"v{G1+2}", f"v{G1+3}"], sleep=psleep, loc=True)
    A("s_mov_b64 exec, -1")
    for k in range(2): A(f"v_add_f32_dpp v{G1+k}, v{G1+k}, v{G1+k} row_ror:8 {DPP}")
    allred_top("v_add_f32", [f"v{G1}", f"v{G1+1}"], [t0, t1])
    A(f"v_cvt_pk_bf16_f32 v{G1}, 0, v{G1}\nv_cvt_pk_bf16_f32 v{G1+1}, 0, v{G1+1}")
    A(f"v_cmp_lt_f32 vcc, 0, v{G1}\nv_cndmask_b32 {t0}, 0, 1.0, vcc\nv_mul_f32 {t3}, v{G1}, {t0}\nv_mul_f32 {t3}, {t3}, v{G1+1}\nv_cvt_pk_bf16_f32 {t3}, {t3}, 0")
    A(f"v_mov_b32_dpp {t0}, {t3} quad_perm:[1,1,3,3] {DPP}\nv_lshl_or_b32 {t3}, {t0}, 16, {t3}")
    for i in range(3): A(f"v_readlane_b32 {sUU[i]}, {t3}, {2*i}")
    A("s_branch L_dot")
    A("L_nogu2:")
    A(f"s_cmp_lg_u32 {sBLK}, 31\ns_cbranch_scc1 L_nopf")
    if pf is not None:
        for r in range(4):
            A(f"s_add_u32 {sT0}, {sYG}, {8*4096*r}\nbuffer_load_dwordx4 v[{G0+8+4*r}:{G0+8+4*r+3}], {vYG}, {WS_}, {sT0} offen {pf}")
        A(f"buffer_load_dwordx4 v[{G0+24}:{G0+27}], v7, {WS_}, {sH1S} offen {pf}")
    A("L_nopf:")
    A(f"s_cmp_lt_u32 {sBLK}, 29\ns_cbranch_scc1 L_next\ns_add_u32 {sT0}, {sBLK}, {sOWN}\ns_cmp_gt_u32 {sT0}, 31\ns_cbranch_scc1 L_last")
    if "x" not in skip:
        poll("L_px", lambda p: A(f"buffer_load_dwordx4 v[{G0}:{G0+3}], {vXA}, {WS_}, {sXG} offen {p}"), [f"v{G0+3}"], sleep=psleep)
    for k in range(3): A(f"v_add_f32 v{ZM+k}, v{ZM+k}, v{G0+k}")
    A(f"s_add_u32 {sXG}, {sXG}, 128\ns_mov_b32 {sFL}, 3\ns_cmp_eq_u32 {sBLK}, 29\ns_cbranch_scc1 L_take\ns_mov_b32 {sFL}, 1\nv_mov_b32 v{ZM}, v{ZM+2}")
    A(f"L_take:\nv_mov_b32 {vZK}, v{ZM}\nv_mov_b32 v{ZM}, v{ZM+1}\nv_mov_b32 v{ZM+1}, v{ZM+2}")
    A("L_pack:")
    A(f"v_mov_b32_dpp v{G0+1}, {vZK} row_ror:8 {DPP}\nv_cvt_pk_bf16_f32 v{G0}, {vZK}, v{G0+1}")
    for jj, ln in ((0, 0), (1, 32), (2, 16)): A(f"v_readlane_b32 {sUU[jj]}, v{G0}, {ln}")
    A("L_dot:")
    for p in range(3):
        for c in range(10): A(f"v_dot2c_f32_bf16 v{YY+c}, {sUU[p]}, v{P1+10*p+c}")
    A(f"s_cmp_eq_u32 {sBLK}, 32\ns_cbranch_scc1 L_tail")
    A("L_prep:")
    for r in range(6):
        for d in range(5): A(f"ds_read_b32 v{P0+5*r+d}, {vWA} offset:{1280*r+4*d}")
        if r % 2: A("s_waitcnt lgkmcnt(0)")
    A(f"v_add_u32 {vWA}, 7680, {vWA}\ns_mov_b32 {sT1}, 0x05040100\ns_mov_b32 {sT3}, 0x07060302")
    for p in range(3):
        for d in range(5):
            A(f"v_perm_b32 v{P1+10*p+2*d}, v{P0+10*p+5+d}, v{P0+10*p+d}, {sT1}\nv_perm_b32 v{P1+10*p+2*d+1}, v{P0+10*p+5+d}, v{P0+10*p+d}, {sT3}")
    A(f"s_sub_u32 {sFL}, {sFL}, 1\ns_cmp_gt_i32 {sFL}, 0\ns_cbranch_scc1 L_take")
    A("L_last:")
    A(f"s_cmp_lg_u32 {sBLK}, 31\ns_cbranch_scc1 L_next\ns_setprio 3\ns_waitcnt vmcnt(0)")
    A("L_next:")
    A(f"s_add_u32 {sBLK}, {sBLK}, 1\ns_waitcnt lgkmcnt(0)\ns_barrier\ns_branch L_blk")
    A("L_kpart:\ns_setprio 0")
    A(f"s_and_b32 {sT0}, {sBLK}, {BPS-1}\ns_cbranch_scc1 L_nosm")
    for w in range(4):
        for k in range(BPS): A(f"ds_read_b32 v{G0+BPS*w+k}, {vSC} offset:{4096*w+256*k}")
        if w == 1: A("s_waitcnt lgkmcnt(0)")
    A("s_waitcnt lgkmcnt(0)")
    for i in range(NR): A(f"v_cvt_pk_bf16_f32 v{G0+i}, 0, v{G0+i}")
    for i in range(NR): A(f"v_mul_f32 v{G0+i}, {sSCALE}, v{G0+i}")
    for i in range(NR): A(f"v_cvt_pk_bf16_f32 v{G0+i}, 0, v{G0+i}")
    for i in range(NR): A(f"v_mul_f32 v{G0+i}, {sLOG2E}, v{G0+i}")
    A(f"v_max_f32 {t0}, v{G0}, v{G0+1}")
    for i in range(2, NR, 2): A(f"v_max3_f32 {t0}, {t0}, v{G0+i}, v{G0+i+1}")
    allred_lo("v_max_f32", [t0]); allred_top("v_max_f32", [t0], [t1])
    for i in range(NR): A(f"v_sub_f32 v{G0+i}, v{G0+i}, {t0}")
    for i in range(NR): A(f"v_exp_f32 v{G0+i}, v{G0+i}")
    A(f"v_add_f32 {t1}, v{G0}, v{G0+1}")
    for i in range(2, NR): A(f"v_add_f32 {t1}, {t1}, v{G0+i}")
    for i in range(NR): A(f"v_cvt_pk_bf16_f32 v{G0+i}, v{G0+i}, 0")
    for w in range(4):
        for k in range(BPS): A(f"ds_write_b32 {vSC}, v{G0+BPS*w+k} offset:{4096*w+256*k}")
        if w == 1: A("s_waitcnt lgkmcnt(0)")
    allred_lo("v_add_f32", [t1]); allred_top("v_add_f32", [t1], [t2])
    A(f"v_log_f32 {t3}, {t1}\nv_mov_b32 {t2}, {t0}\nv_add_f32 {t3}, {t3}, {t0}")
    A(f"ds_write_b64 {vML}, v[{T+2}:{T+3}]")
    A(f"v_add_u32 {vSC}, {256*BPS}, {vSC}\nv_add_u32 {vML}, 8, {vML}")
    A("L_nosm:")
    A(f"s_cmp_ge_u32 {sBLK}, {0 if 'q' in skip else NSEG-1}\ns_cbranch_scc1 L_noq")
    A("L_gq0:")
    def gq(p):
        for s in range(8):
            if s % 2 == 0: A(f"s_add_u32 {sT0}, {sHD}, {2048*s}")
            A(f"buffer_load_dwordx4 v[{G1+4*s}:{G1+4*s+3}], v7, {WS_}, {sT0} offen offset:{2048*(s%2)} {p}")
    poll("L_gq", gq, [f"v{G1+4*s+3}" for s in range(8)], first="", sleep=psleep)
    for s in range(1, 8):
        for k in range(3): A(f"v_add_f32 v{G1+k}, v{G1+k}, v{G1+4*s+k}")
    for k in range(3): A(f"v_cvt_pk_bf16_f32 v{G1+k}, v{G1+k}, 0")
    for k in range(3): A(f"ds_write_b16 {vQW}, v{G1+k} offset:{L_QB+128*k}")
    A(f"v_add_u32 {vQW}, 384, {vQW}\ns_add_u32 {sHD}, {sHD}, 16384")
    A(f"s_cmp_lt_i32 {sBLK}, 0\ns_cselect_b32 {sBLK}, 0, {sBLK}\ns_cbranch_scc1 L_gq0")
    if timed:
        A(f"s_cmp_lg_u32 {sBLK}, 0\ns_cbranch_scc1 L_next"); stamp(4)
    A("s_branch L_next")
    A("L_noq:")
    A(f"s_cmp_lg_u32 {sBLK}, {NSEG+1}\ns_cbranch_scc1 L_nogu")
    A(f"v_mul_u32_u24 {vWA}, 20, {vLANE}\nv_add_u32 {vWA}, {L_W}, {vWA}")
    A(f"v_lshrrev_b32 {t0}, 4, {vLANE}\nv_lshl_add_u32 {t0}, {t0}, 3, {vB}\nv_and_b32 {t1}, 8, {vLANE}\nv_lshlrev_b32 {t1}, 1, {t1}")
    A(f"v_lshl_add_u32 {vH1S}, {t0}, 5, {t1}\nv_lshl_add_u32 {vH1G}, {t0}, 11, {t1}")
    A(f"s_lshl_b32 {sH1S}, {sLIN}, 11\ns_add_u32 {sH1S}, {sH1S}, {WS_H1}")
    A(f"s_lshl_b32 {sH1G}, {sX}, 16\ns_lshl_b32 {sT0}, {sC}, 5\ns_add_u32 {sH1G}, {sH1G}, {sT0}\ns_add_u32 {sH1G}, {sH1G}, {WS_H1}")
    A(f"v_mul_u32_u24 {vYW}, 40, {vLANE}\nv_mul_u32_u24 {vYR}, 80, {vA}\nv_mad_u32_u24 {vYR}, {vB}, 12, {vYR}\nv_add_u32 {vYR}, {L_QP}, {vYR}")
    A(f"v_lshlrev_b32 {t0}, 4, {vB}\nv_lshl_add_u32 {vYG}, {vA}, 12, {t0}\nv_lshlrev_b32 {vXA}, 4, {vA}\nv_mov_b32 v41, {sTAG}\nv_mov_b32 v{ZS+3}, {sTAG}")
    A(f"s_lshl_b32 {sYS}, {sLIN}, 12\ns_add_u32 {sYS}, {sYS}, {WS_H2}")
    A(f"s_lshl_b32 {sYG}, {sX}, 17\ns_lshl_b32 {sT0}, {sC}, 7\ns_add_u32 {sYG}, {sYG}, {sT0}\ns_add_u32 {sYG}, {sYG}, {WS_H2}")
    A(f"s_lshl_b32 {sH3G}, {sC}, 10\ns_add_u32 {sH3G}, {sH3G}, {WS_H3}\ns_lshl_b32 {sT0}, {sX}, 7\ns_add_u32 {sH3S}, {sH3G}, {sT0}")
    A(f"s_lshl_b32 {sXS}, {sLIN}, 8\ns_add_u32 {sXS}, {sXS}, {WS_XX}\ns_xor_b32 {sXG}, {sXS}, {32*256}")
    A(f"s_add_u32 {sTG2}, {sTAG}, 1\ns_mov_b32 {sFL}, 0")
    A(f"v_mul_u32_u24 {t0}, 3, {vB}\ns_mul_i32 {sT0}, {sC}, 20\nv_add_lshl_u32 {t0}, {t0}, {sT0}, 1\nv_mov_b32 {t2}, {OOB}")
    A(f"v_cmp_gt_u32 vcc, 7, {vB}\nv_cndmask_b32 v{vOUT}, {t2}, {t0}, vcc\nv_cmp_gt_u32 vcc, 6, {vB}\nv_cndmask_b32 v{vOUT+1}, {t2}, {t0}, vcc")
    A(f"v_mov_b32 {t0}, {WS_EP}\nv_or_b32 {t1}, s2, {vLANE}\nv_cmp_eq_u32 vcc, 0, {t1}\nv_cndmask_b32 v{vOUT+2}, {t2}, {t0}, vcc")
    A(f"buffer_load_ushort v{XV}, v{vOUT}, {X_}, 0 offen\nbuffer_load_ushort v{XV+1}, v{vOUT}, {X_}, 0 offen offset:2\nbuffer_load_ushort v{XV+2}, v{vOUT+1}, {X_}, 0 offen offset:4")
    for i in range(10): A(f"v_mov_b32 v{YY+i}, 0")
    for g in range(4): A(f"v_mov_b32 v{YT+4*g+3}, {sTAG}")
    A("s_waitcnt vmcnt(0)")
    for e in range(3): A(f"v_lshlrev_b32 v{XV+e}, 16, v{XV+e}")
    srd_lo(X_, pOUT)
    A("s_branch L_prep")
    A("L_nogu:")
    A(f"s_cmp_lg_u32 {sBLK}, 16\ns_cbranch_scc1 L_next")
    A(f"v_lshrrev_b32 v10, {LLP}, {vLANE}\nv_lshlrev_b32 v10, 3, v10\ns_waitcnt lgkmcnt(0)\nds_read_b64 v[{T+2}:{T+3}], v10 offset:{L_ML}")
    A(f"s_lshl_b32 {sT1}, {sLIN}, 7\ns_add_u32 {sT1}, {sT1}, {WS_LS}\nv_and_b32 v11, {LP-1}, {vLANE}\nv_cmp_eq_u32 vcc, 0, v11")
    A(f"s_waitcnt lgkmcnt(0)\nv_mov_b32 {vM}, {t2}\nv_mov_b32 {t0}, {t3}\nv_mov_b32 {t1}, {sTAG}\nv_mov_b32 {t3}, {sTAG}")
    A(f"s_getreg_b32 {sLOC}, hwreg(HW_REG_XCC_ID)\nv_mov_b32 {t2}, {sLOC}\nv_lshlrev_b32 v10, 1, v10\ns_mov_b64 exec, vcc")
    A(f"buffer_store_dwordx4 v[{T}:{T+3}], v10, {WS_}, {sT1} offen sc1\ns_mov_b64 exec, -1")
    A(f"v_lshl_add_u32 {vLS}, v11, 7, v10\ns_branch L_next")
    A("L_tail:")
    for d in range(5): A(f"ds_write_b64 {vYW}, v[{YY+2*d}:{YY+2*d+1}] offset:{L_QP+8*d}")
    for g in range(4):
        A(f"ds_read2_b32 v[{YT+4*g}:{YT+4*g+1}], {vYR} offset0:{(160*g) % 320} offset1:{(160*g) % 320 + 1}\nds_read_b32 v{YT+4*g+2}, {vYR} offset:{(640*g) % 1280 + 8}")
        if g == 1: A(f"v_add_u32 {vYR}, 1280, {vYR}")
    def ys(p):
        for g in range(4):
            A(f"s_waitcnt lgkmcnt({0 if timed else 6-2*g})")
            A(f"buffer_store_dwordx4 v[{YT+4*g}:{YT+4*g+3}], v7, {WS_}, {sYS} offen offset:{1024*g} {p}")
    store2("L_s2", ys)
    stamp(7)
    def g2(p):
        for r in range(4):
            A(f"s_add_u32 {sT0}, {sYG}, {8*4096*r}\nbuffer_load_dwordx4 v[{G0+4*r}:{G0+4*r+3}], {vYG}, {WS_}, {sT0} offen {p}")
    poll("L_p2", g2, [f"v{G0+4*r+3}" for r in range(4)], loc=True)
    if stamps: A("s_memrealtime s[42:43]")
    for k in range(3): A(f"v_add_f32 v{G0+k}, v{G0+k}, v{G0+4+k}\nv_add_f32 v{G0+8+k}, v{G0+8+k}, v{G0+12+k}")
    for k in range(3): A(f"v_add_f32 v{G0+k}, v{G0+k}, v{G0+8+k}")
    def red_hi(b):
        for k in range(3): A(f"v_add_f32_dpp v{b+k}, v{b+k}, v{b+k} row_ror:8 {DPP}")
        allred_top("v_add_f32", [f"v{b+k}" for k in range(3)], [f"v{b+4+k}" for k in range(3)])
    red_hi(G0)
    A(f"s_cmp_eq_u32 {sS}, {sX}\ns_cbranch_scc1 L_red")
    A(f"s_mov_b64 exec, 0xff\nbuffer_store_dwordx4 v[{G0}:{G0+3}], v7, {WS_}, {sH3S} offen sc1\ns_mov_b64 exec, -1\ns_branch L_done")
    A("L_red:")
    BUF = [G0 + 16 + 4*k for k in range(np3)]
    for b in BUF:
        for k in range(3): A(f"v_mov_b32 v{b+k}, v{G0+k}")
    A(f"v_cmp_ne_u32 vcc, {sX}, {vA}\ns_mov_b32 {sT2}, {spin}\ns_mov_b64 exec, vcc")
    def l3(k): A(f"buffer_load_dwordx4 v[{BUF[k]}:{BUF[k]+3}], v7, {WS_}, {sH3G} offen sc1")
    for k in range(np3-1):
        l3(k); A(f"s_sleep {s3}")
    A("L_p3:")
    for k in range(np3):
        l3((k + np3 - 1) % np3)
        A(f"s_waitcnt vmcnt({np3-1})\nv_cmp_ne_u32 vcc, {sTAG}, v{BUF[k]+3}\ns_cbranch_vccz L_p3d{k}")
    A(f"s_sub_u32 {sT2}, {sT2}, 1\ns_cbranch_scc0 L_p3")
    for k in reversed(range(np3)):
        A(f"L_p3d{k}:\ns_mov_b64 exec, -1")
        for e in range(3): A(f"v_add_f32_dpp v{G1+e}, v{BUF[k]+e}, v{BUF[k]+e} row_ror:8 {DPP}")
        if k: A("s_branch L_p3e")
    A("L_p3e:")
    if stamps: A("s_memrealtime s[48:49]")
    allred_top("v_add_f32", [f"v{G1+k}" for k in range(3)], [f"v{G1+4+k}" for k in range(3)])
    for e in range(3): A(f"v_add_f32 v{G1+e}, v{G1+e}, v{XV+e}")
    for e in range(3): A(f"v_cvt_pk_bf16_f32 v{G1+e}, v{G1+e}, 0")
    A("s_mov_b64 exec, 0xff")
    A(f"buffer_store_short v{G1}, v{vOUT}, {X_}, 0 offen\nbuffer_store_short v{G1+1}, v{vOUT}, {X_}, 0 offen offset:2\nbuffer_store_short v{G1+2}, v{vOUT+1}, {X_}, 0 offen offset:4")
    A(f"buffer_store_dword v41, v{vOUT+2}, {WS_}, 0 offen")
    A("s_mov_b64 exec, -1")
    A("L_done:")
    if diag is not None:
        wave, st, mult = diag
        stamp(8)
        A(f"s_cmp_lg_u32 s2, 0\ns_cbranch_scc1 L_end\ns_cmp_lg_u32 {sW}, {wave}\ns_cbranch_scc1 L_end")
        A(f"s_waitcnt lgkmcnt(0)\ns_sub_u32 {sT0}, s{sST+2*st}, s{sST}\ns_mul_i32 {sT0}, {sT0}, {mult}\ns_add_u32 {sT0}, {sT0}, 30000")
        A(f"s_min_u32 {sT0}, {sT0}, 200000")
        A(f"L_dg:\ns_memrealtime s[72:73]\ns_waitcnt lgkmcnt(0)\ns_sub_u32 {sT1}, s72, s{sST}\ns_cmp_lt_u32 {sT1}, {sT0}\ns_cbranch_scc1 L_dg")
    if stamps:
        stamp(8)
        A(f"s_mul_i32 {sT0}, s2, 5\ns_add_u32 {sT0}, {sT0}, {sW}\ns_lshl_b32 {sT0}, {sT0}, 6\ns_add_u32 {sT0}, {sT0}, {WS_ST}")
        A(f"s_getreg_b32 {sT1}, hwreg(HW_REG_XCC_ID)")
        A("s_waitcnt lgkmcnt(0)\nv_mov_b32 v4, 0")
        for i in range(9): A(f"v_writelane_b32 v4, s{sST+2*i}, {i}")
        A(f"v_writelane_b32 v4, s42, 9\nv_writelane_b32 v4, s48, 10\nv_writelane_b32 v4, s50, 11\nv_writelane_b32 v4, s47, 12")
        A(f"v_writelane_b32 v4, {sT1}, 15")
        A(f"v_lshlrev_b32 v5, 2, {vLANE}\ns_mov_b64 exec, 0xffff")
        A(f"buffer_store_dword v4, v5, {WS_}, {sT0} offen sc1")
    if diag2:
        role, st, op, role0, st0, op0, mult = diag2
        A(f"s_mov_b64 exec, -1\ns_cmp_lg_u32 s2, 0\ns_cbranch_scc1 L_end\ns_cmp_lg_u32 {sW}, 4\ns_cbranch_scc1 L_end")
        A(f"L_dh:\ns_memrealtime s[72:73]\ns_waitcnt lgkmcnt(0)\ns_sub_u32 {sT1}, s72, s{sST}\ns_cmp_lt_u32 {sT1}, 20000\ns_cbranch_scc1 L_dh")
        A(f"v_mul_u32_u24 v5, 320, {vLANE}")
        for k in range(4):
            A(f"s_mov_b32 {sT0}, {WS_ST + 64*320*k}\nbuffer_load_dword v{8+k}, v5, {WS_}, {sT0} offen offset:{64*role0+4*st0} sc1\nbuffer_load_dword v{12+k}, v5, {WS_}, {sT0} offen offset:{64*role+4*st} sc1")
        A("s_waitcnt vmcnt(0)")
        for k in range(8): A(f"v_subrev_u32 v{8+k}, s{sST}, v{8+k}")
        vop = {"max": "v_max_i32", "min": "v_min_i32", "mean": "v_add_u32"}[op]; vop0 = {"max": "v_max_i32", "min": "v_min_i32", "mean": "v_add_u32"}[op0]
        for k in range(1, 4): A(f"{vop0} v8, v8, v{8+k}\n{vop} v12, v12, v{12+k}")
        allred_lo(vop0, ["v8"]); allred_top(vop0, ["v8"], ["v9"])
        allred_lo(vop, ["v12"]); allred_top(vop, ["v12"], ["v13"])
        A(f"v_readfirstlane_b32 {sT0}, v12\nv_readfirstlane_b32 {sT1}, v8\ns_mul_i32 {sT0}, {sT0}, {mult}\ns_mul_i32 {sT1}, {sT1}, {mult}")
        if op == "mean": A(f"s_ashr_i32 {sT0}, {sT0}, 8")
        if op0 == "mean": A(f"s_ashr_i32 {sT1}, {sT1}, 8")
        A(f"s_sub_u32 {sT0}, {sT0}, {sT1}\ns_add_u32 {sT0}, {sT0}, 30000\ns_min_u32 {sT0}, {sT0}, 200000")
        A(f"L_dg2:\ns_memrealtime s[72:73]\ns_waitcnt lgkmcnt(0)\ns_sub_u32 {sT1}, s72, s{sST}\ns_cmp_lt_u32 {sT1}, {sT0}\ns_cbranch_scc1 L_dg2")
    A("L_end:\ns_endpgm")
    A('.section .rodata,"a"\n.p2align 6')
    A(f".amdhsa_kernel {KN}")
    nv4 = (NV+3)//4*4
    A(f".amdhsa_next_free_vgpr {nv4}\n.amdhsa_next_free_sgpr 102\n.amdhsa_accum_offset {nv4}")
    A(".amdhsa_group_segment_fixed_size 0\n.amdhsa_kernarg_size 96\n.amdhsa_user_sgpr_count 2")
    A(".amdhsa_user_sgpr_kernarg_segment_ptr 1\n.amdhsa_system_sgpr_workgroup_id_x 1")
    A(".amdhsa_float_denorm_mode_32 3\n.end_amdhsa_kernel")
    return A.finish()

if __name__ == "__main__":
    kw = eval("dict(" + (sys.argv[2] if len(sys.argv) > 2 else "") + ")")
    open(sys.argv[1], "w").write(gen(**kw))
```

```python
import sys, os
sys.path.insert(0, os.path.dirname(os.path.abspath(__file__)))
from asmlib import Asm
KN = "parallel_sum__mha_block_cached__glu_gated_reglu__decode_kernel"
HEADER = open("parallel_sum__mha_block_cached__glu_gated_reglu__decode.s.ref").read().split("; Override launch")[0]

HB = 32768*384
TB = 32*HB
WS_EP, WS_LS, WS_H3, WS_XX, WS_PR, WS_QS, WS_H1, WS_ST, WS_H2, WS_SIZE = 0, 0x8000, 0x10000, 0x20000, 0x40000, 0x80000, 0x100000, 0x200000, 0x280000, 0x400000
OOB = 0x40000000
SPIN = 1 << 20

def gen(NSEG=8, G=6, F=5, FH=6, RB=8, pace=6, deep=0, per=8, bs=2, fb=22, fbo=26, pre0=2, pre1=6, trig=13, skip='', xmap=1, xd=(6,5,3,1,-1,-3,-5,-6), xp=4, PI=(6,7,5,4,3,2,1,0), xs=0, np3=1, s3=6, dfirst=1, ab=0, psleep=4,
        spin=SPIN, local=1, lp="nt", pf=None, pfw="yh", pt='sc1', p3s='sc1', p3l='sc1', sched=(4,3,3,3,0,0), ptpos=6, own=1, lsb=17, stamps=False, diag=None, diag2=None):
    A = Asm()
    NG = 32//NSEG; GS = 8*NSEG; BPS = 16//NSEG; LGS = GS.bit_length()-1
    PAIR = NSEG == 8
    TSTR = GS*4*3072
    assert G < RB and 24 % RB == 0 and NSEG == 8 and G == 6
    if diag2: stamps = True
    timed = stamps or diag is not None
    L_OP = 0; L_W = 8192; L_YP = L_W + 15360; L_U = L_YP + 12800 + 64; L_QP = L_U + 128; L_QB = L_QP + 6400; L_ML = L_QB + 384*NSEG
    L_CT = L_ML + 64; L_SC = L_CT + 64; L_SIZE = L_SC + 16384 + 256
    assert L_SC < 65536
    sW, sHQ, sS, sG, sMEM = "s3", "s4", "s5", "s6", "s7"
    KV_, WS_, TA_, TB_, TC_, X_ = "s[8:11]", "s[16:19]", "s[20:23]", "s[24:27]", "s[28:31]", "s[32:35]"
    mB1, mB0 = "s[12:13]", "s[14:15]"
    pX, pK, pV, pWQ, pWO, pWG, pWU, pWD, pOUT, pDBG, pWS = 36, 38, 40, 42, 44, 48, 50, 52, 54, 56, 58
    sOFF, sOFF0, sIB, sBLK, sLIN, sX, sC, sT0, sT1, sT2, sT3, sOWN = [f"s{r}" for r in range(60, 72)]
    sTAG = "s46"
    sST = 84
    vLANE, vKV, vA, vB = "v0", "v1", "v2", "v3"
    ACC, Q = 8, 32
    T = 44
    RING = 56
    PB = RING + 48
    NV = PB + 96
    t0, t1, t2, t3 = f"v{T}", f"v{T+1}", f"v{T+2}", f"v{T+3}"
    def stamp(i):
        if timed: A(f"s_memrealtime s[{sST+2*i}:{sST+2*i+1}]")
    def srd_hi(name, size):
        b = int(name[2:name.index(":")]); A(f"s_mov_b32 s{b+2}, {size}\ns_mov_b32 s{b+3}, 0x20000")
    def srd_lo(name, ptr):
        b = int(name[2:name.index(":")]); A(f"s_mov_b64 s[{b}:{b+1}], s[{ptr}:{ptr+1}]")
    def srd(name, ptr, size): srd_lo(name, ptr); srd_hi(name, size)
    DPP = "row_mask:0xf bank_mask:0xf"
    PATS = ("quad_perm:[1,0,3,2]", "quad_perm:[2,3,0,1]", "row_half_mirror", "row_mirror")
    def allred_lo(op, vs, n=4):
        for pat in PATS[:n]:
            for v in vs: A(f"{op}_dpp {v}, {v}, {v} {pat} {DPP}")
    def allred_top(op, vs, ts):
        for sw in ("v_permlane16_swap_b32", "v_permlane32_swap_b32"):
            for v, t in zip(vs, ts): A(f"v_mov_b32 {t}, {v}")
            for v, t in zip(vs, ts): A(f"{sw} {t}, {v}")
            for v, t in zip(vs, ts): A(f"{op} {v}, {v}, {t}")
    def redscat(base, n):
        for g in range(n):
            for e in range(4): A(f"v_permlane32_swap_b32 v{base+8*g+e}, v{base+8*g+e+4}")
        for g in range(n):
            for e in range(4): A(f"v_add_f32 v{base+8*g+e}, v{base+8*g+e}, v{base+8*g+e+4}")
        for g in range(n):
            for e in range(2): A(f"v_permlane16_swap_b32 v{base+8*g+e}, v{base+8*g+e+2}")
        for g in range(n):
            for e in range(2): A(f"v_add_f32 v{base+8*g+e}, v{base+8*g+e}, v{base+8*g+e+2}")
        for g in range(n):
            A(f"v_add_f32_dpp v{base+8*g}, v{base+8*g}, v{base+8*g} row_ror:8 row_mask:0xf bank_mask:0x3")
        for g in range(n):
            A(f"v_add_f32_dpp v{base+8*g}, v{base+8*g+1}, v{base+8*g+1} row_ror:8 row_mask:0xf bank_mask:0xc")
    def redscat_lo(bases):
        for S in bases:
            for e in range(4): A(f"v_add_f32_dpp v{S+e}, v{S+e}, v{S+e} row_half_mirror row_mask:0xf bank_mask:0x5")
        for S in bases:
            for e in range(4): A(f"v_add_f32_dpp v{S+e}, v{S+e+4}, v{S+e+4} row_half_mirror row_mask:0xf bank_mask:0xa")
        for S in bases:
            for e in range(4): A(f"v_add_f32_dpp v{S+e}, v{S+e}, v{S+e} quad_perm:[2,3,0,1] {DPP}")
        for S in bases:
            for e in range(2): A(f"v_cndmask_b32 v{S+e}, v{S+e}, v{S+e+2}, {mB1}")
        for S in bases:
            for e in range(2): A(f"v_add_f32_dpp v{S+e}, v{S+e}, v{S+e} quad_perm:[1,0,3,2] {DPP}")
        for S in bases: A(f"v_cndmask_b32 v{S}, v{S}, v{S+1}, {mB0}")
    def axpy(acc, data, n, pl, ph):
        for i in range(n):
            A(f"v_dot2c_f32_bf16 v{acc+2*i}, v{data+i}, {pl}\nv_dot2c_f32_bf16 v{acc+2*i+1}, v{data+i}, {ph}")
    def ld(reg, j): A(f"buffer_load_dwordx4 v[{reg}:{reg+3}], {vKV}, {KV_}, {sOFF} offen offset:{128*j} nt")
    uid = [0]
    PILUT = sum(p << (4*i) for i, p in enumerate(PI))
    assert PI[0] != 7 and sorted(PI) == list(range(8))
    def next_block(last):
        uid[0] += 1; u = uid[0]
        A(f"s_add_u32 {sIB}, {sIB}, 1\ns_and_b32 {sT0}, {sIB}, {BPS-1}\ns_cbranch_scc1 L_nb{u}")
        if not last:
            A(f"s_add_u32 {sOFF}, {sOFF}, {(NG-1)*HB}")
            A(f"s_cmp_lg_u32 {sIB}, 16\ns_cbranch_scc1 L_nb{u}")
            A(f"s_mov_b64 s[8:9], s[{pV}:{pV+1}]\ns_add_u32 {sOFF}, {sOFF0}, {PI[0]*NG*HB}")
        else:
            A(f"s_lshl_b32 {sT0}, {sIB}, 1\ns_lshr_b32 {sT0}, {hex(PILUT)}, {sT0}\ns_and_b32 {sT0}, {sT0}, 7")
            A(f"s_mul_i32 {sOFF}, {sT0}, {NG*HB}\ns_add_u32 {sOFF}, {sOFF}, {sOFF0}")
        A(f"L_nb{u}:")
    def lev(n, f):
        fr = f - int(f)
        return int(f) + (1 if int((n+1)*fr + 1e-9) != int(n*fr + 1e-9) else 0)
    cps = list(range(0, 24, per)) if fb else []
    assert all(c + G + 1 <= 23 for c in cps) and per > G
    PR_, sTHR, vPC, vPO, vPL, vPS = TC_, "s72", "v52", "v53", "v54", "v55"
    def slot(n, last=False):
        uid[0] += 1; u = uid[0]
        fi, fh = lev(n, F), lev(n, FH)
        assert fi <= fh <= G
        def cnt(x): return x - 1 + 2*sum(1 for c in cps if 0 < n - c <= x)
        m = n + G
        if m % 3 == 0:
            A(f"s_add_u32 {sOFF}, {sOFF}, {TSTR}")
            if m == 24: next_block(last)
        if fi < fh: A(f"s_cbranch_vccnz L_dp{u}\ns_waitcnt vmcnt({cnt(fi)})\nL_dp{u}:")
        A(f"s_waitcnt vmcnt({cnt(fh)})")
        ld(RING + 4*(m % RB), m % 3)
        if n - G - 1 in cps:
            if xd:
                A(f"v_readlane_b32 {sT1}, {vPO}, 32\ns_sub_u32 {sT1}, {sT1}, {sTAG}\ns_cmp_lt_u32 {sT1}, 33\ns_cselect_b32 {sTHR}, {sT1}, {sTHR}")
            A(f"v_sub_u32 {vPO}, {vPO}, {vPC}\nv_cmp_gt_u32 vcc, 64, {vPO}\ns_bcnt1_i32_b32 {sT0}, vcc_lo")
            A(f"s_cmp_gt_u32 {sT0}, {sTHR}\ns_cselect_b64 vcc, -1, 0")
            if stamps: A(f"s_and_b32 {sT0}, vcc_lo, 1\ns_add_u32 s47, s47, {sT0}")
            if last and deep: A(f"s_cmp_ge_u32 {sBLK}, {32-deep}\ns_cselect_b64 vcc, -1, vcc")
        if n in cps:
            A(f"v_add_u32 {vPC}, 1, {vPC}\nbuffer_store_dword {vPC}, {vPS}, {PR_}, 0 offen\nbuffer_load_dword {vPO}, {vPL}, {PR_}, 0 offen nt")
    def qk4(acc, data, j):
        for e in range(4):
            if j == 0 and e == 0: A(f"v_dot2_f32_bf16 v{acc}, v{data}, v{Q}, 0")
            else: A(f"v_dot2_f32_bf16 v{acc}, v{data+e}, v{Q+4*j+e}, v{acc}")

    A(HEADER.rstrip())
    A(f"; @launch grid=(256,1,1) block=(320,1,1) lds={L_SIZE}")
    A('.amdgcn_target "amdgcn-amd-amdhsa--gfx950"\n.text')
    A(f".globl {KN}\n.p2align 8\n.type {KN},@function\n{KN}:")
    A("s_cmp_ge_u32 s2, 256\ns_cbranch_scc1 L_end")
    A("s_load_dwordx16 s[36:51], s[0:1], 0\ns_load_dwordx8 s[52:59], s[0:1], 64")
    stamp(0)
    A(f"v_lshrrev_b32 v1, 6, v0\nv_and_b32 {vLANE}, 63, v0\nv_readfirstlane_b32 {sW}, v1\ns_setprio 3")
    A(f"v_mov_b32 v8, 0\nds_write_b32 v8, v8 offset:{L_CT}")
    order = []
    for v in range(8):
        if v not in order: order += [v, v ^ xmap] if (v & 1) == 0 or (xmap & 1) == 0 else [v ^ xmap, v]
    lut = sum(order.index(v) << (4*v) for v in range(8))
    A(f"s_and_b32 {sX}, s2, 7\ns_lshl_b32 {sX}, {sX}, 2\ns_lshr_b32 {sX}, {hex(lut)}, {sX}\ns_and_b32 {sX}, {sX}, 7")
    A(f"s_lshr_b32 {sC}, s2, 3\ns_lshl_b32 {sT0}, {sX}, 5\ns_add_u32 {sLIN}, {sT0}, {sC}")
    A(f"s_lshr_b32 {sG}, {sLIN}, {LGS}\ns_and_b32 {sMEM}, {sLIN}, {GS-1}\ns_and_b32 {sS}, {sMEM}, 7")
    A(f"s_lshr_b32 {sT0}, {sMEM}, 3\ns_mul_i32 {sHQ}, {sT0}, {NG}\ns_add_u32 {sHQ}, {sHQ}, {sG}")
    A(f"s_sub_u32 {sW}, {sW}, 1\ns_cselect_b32 {sW}, 4, {sW}")
    A(f"v_lshrrev_b32 {vA}, 3, {vLANE}\nv_and_b32 {vB}, 7, {vLANE}")
    A(f"v_lshlrev_b32 v7, 4, {vB}")
    A(f"v_mov_b32 v4, 384\nv_mad_u32_u24 {vKV}, {vA}, v4, v7")
    A(f"v_mov_b32 v4, 12288\nv_mad_u32_u24 v4, {vA}, v4, v7")
    A(f"v_mov_b32 v5, 3072\nv_mad_u32_u24 v5, {vA}, v5, v7")
    A(f"v_mov_b32 v6, {OOB}\nv_cmp_gt_u32 vcc, 6, {vB}\nv_cndmask_b32 v5, v6, v5, vcc")
    A(f"v_lshlrev_b32 v6, 1, {vA}\nv_lshlrev_b32 v7, 4, {vLANE}")
    A(f"s_mul_i32 {sT0}, {sS}, 80\ns_lshl_b32 {sT1}, {sW}, 4\ns_add_u32 {sT0}, {sT0}, {sT1}")
    A(f"s_mul_i32 {sT1}, {sT0}, 12288\ns_mul_i32 {sT2}, {sHQ}, 384\ns_add_u32 {sT1}, {sT1}, {sT2}")
    A(f"s_mul_i32 {sT2}, {sT0}, 3072\ns_lshr_b32 {sT3}, {sLIN}, 3\ns_mul_i32 {sT3}, {sT3}, 96\ns_add_u32 {sT2}, {sT2}, {sT3}")
    A(f"s_lshl_b32 {sT0}, {sT0}, 1")
    srd_hi(X_, 1280); srd_hi(TA_, 640*12288); srd_hi(TB_, 640*3072); srd_hi(TC_, 640*3072); srd_hi(WS_, WS_SIZE); srd_hi(KV_, TB)
    A("s_waitcnt lgkmcnt(0)")
    srd_lo(X_, pX)
    XR, WD, WA = RING + 40, RING, ACC
    A(f"buffer_load_dwordx4 v[{XR}:{XR+3}], v7, {X_}, 0 offen")
    A(f"buffer_load_dwordx4 v[{XR+4}:{XR+7}], v7, {X_}, 0 offen offset:1024")
    A(f"buffer_load_ushort v{T+10}, v6, {X_}, {sT0} offen")
    A(f"buffer_load_ushort v{T+11}, v6, {X_}, {sT0} offen offset:16")
    srd_lo(TA_, pWQ); srd_lo(TB_, pWG); srd_lo(TC_, pWU)
    A(f"s_load_dword {sTAG}, s[{pWS}:{pWS+1}], {WS_EP}")
    A("s_barrier")
    for t in range(2):
        for j in range(3):
            A(f"buffer_load_dwordx4 v[{WD+20*t+4*j}:{WD+20*t+4*j+3}], v4, {TA_}, {sT1} offen offset:{128*j} nt")
        A(f"buffer_load_dwordx4 v[{WD+20*t+12}:{WD+20*t+15}], v5, {TB_}, {sT2} offen nt")
        A(f"buffer_load_dwordx4 v[{WD+20*t+16}:{WD+20*t+19}], v5, {TC_}, {sT2} offen nt")
        if t == 0: A(f"s_add_u32 {sT1}, {sT1}, {8*12288}\ns_add_u32 {sT2}, {sT2}, {8*3072}")
    srd_lo(KV_, pK); srd_lo(WS_, pWS)
    A(f"s_lshl_b32 {sT0}, {sMEM}, 2\ns_add_u32 {sT0}, {sT0}, {sW}\ns_mul_i32 {sT0}, {sT0}, 3072")
    A(f"s_mul_i32 {sOFF0}, {sG}, {HB}\ns_add_u32 {sOFF0}, {sOFF0}, {sT0}\ns_mov_b32 {sOFF}, {sOFF0}")
    A(f"s_mov_b32 s12, 0xcccccccc\ns_mov_b32 s13, 0xcccccccc\ns_mov_b32 s14, 0xaaaaaaaa\ns_mov_b32 s15, 0xaaaaaaaa")
    A(f"s_and_b32 {sOWN}, {sX}, 1\ns_xor_b32 {sOWN}, {sOWN}, {own}")
    A(f"s_cmp_eq_u32 {sW}, 4\ns_cbranch_scc1 L_ln\ns_setprio 1\nL_ln:\ns_waitcnt vmcnt(10) lgkmcnt(0)")
    A(f"s_mul_i32 {sTAG}, {sTAG}, 1664525\ns_add_u32 {sTAG}, {sTAG}, 1013904223")
    XF = WA
    for i in range(8):
        A(f"v_lshlrev_b32 v{XF+2*i}, 16, v{XR+i}\nv_and_b32 v{XF+2*i+1}, 0xffff0000, v{XR+i}")
    l0, l1, l2, l3 = "v24", "v25", "v26", "v27"
    A(f"v_add_f32 {l0}, v{XF}, v{XF+1}\nv_add_f32 {l1}, v{XF+2}, v{XF+3}")
    for i in range(4, 16, 2): A(f"v_add_f32 {l0}, {l0}, v{XF+i}\nv_add_f32 {l1}, {l1}, v{XF+i+1}")
    A(f"v_add_f32 {l0}, {l0}, {l1}")
    allred_lo("v_add_f32", [l0]); allred_top("v_add_f32", [l0], [l1])
    A(f"v_mul_f32 {l0}, 0x3acccccd, {l0}")
    for i in range(16): A(f"v_sub_f32 v{XF+i}, v{XF+i}, {l0}")
    A(f"v_mul_f32 {l1}, v{XF}, v{XF}\nv_mul_f32 {l2}, v{XF+8}, v{XF+8}")
    for i in range(1, 8): A(f"v_fmac_f32 {l1}, v{XF+i}, v{XF+i}\nv_fmac_f32 {l2}, v{XF+8+i}, v{XF+8+i}")
    A(f"v_cmp_gt_u32 vcc, 16, {vLANE}\nv_cndmask_b32 {l2}, 0, {l2}, vcc\nv_add_f32 {l1}, {l1}, {l2}")
    allred_lo("v_add_f32", [l1]); allred_top("v_add_f32", [l1], [l2])
    A(f"v_mul_f32 {l1}, 0x3acccccd, {l1}")
    A(f"v_readfirstlane_b32 {sT0}, {l0}\nv_readfirstlane_b32 {sT1}, {l1}\ns_mul_i32 {sT0}, {sT0}, 0x9E3779B1\ns_add_u32 {sT0}, {sT0}, {sT1}")
    A(f"s_lshl_b32 {sT0}, {sT0}, 2\ns_add_u32 {sTAG}, {sTAG}, {sT0}")
    A(f"v_cvt_pk_bf16_f32 {l0}, 0, {l0}\nv_cvt_pk_bf16_f32 {l1}, 0, {l1}")
    A(f"v_add_f32 {l1}, 0x3727c5ac, {l1}\nv_cvt_pk_bf16_f32 {l1}, 0, {l1}\nv_sqrt_f32 {l1}, {l1}")
    A(f"v_cvt_pk_bf16_f32 {l1}, 0, {l1}\nv_rcp_f32 {l2}, {l1}")
    for t in range(2):
        xr = f"v{T+10+t}"
        A(f"v_lshlrev_b32 {xr}, 16, {xr}\nv_sub_f32 {xr}, {xr}, {l0}\nv_cvt_pk_bf16_f32 {xr}, 0, {xr}")
        A(f"v_mul_f32 {l3}, {xr}, {l2}\nv_fma_f32 {xr}, -{l3}, {l1}, {xr}\nv_fma_f32 {xr}, {xr}, {l2}, {l3}")
        A(f"v_cvt_pk_bf16_f32 v{T+6+2*t}, {xr}, 0\nv_cvt_pk_bf16_f32 v{T+7+2*t}, 0, {xr}")
    for i in range(40): A(f"v_mov_b32 v{WA+i}, 0")
    stamp(1)
    sD = [f"s{r}" for r in range(74, 80)]; sL = ["s80", "s81", "s82"]
    def dma_setup():
        srd(TA_, pWO, 6144*1280); srd(TB_, pWD, 1536*1280)
        A(f"s_lshl_b32 {sT2}, {sS}, 3\ns_lshr_b32 {sT1}, {sC}, 3\ns_lshl_b32 {sT1}, {sT1}, 1\ns_add_u32 {sT2}, {sT2}, {sT1}")
        A(f"s_mul_i32 {sT1}, {sG}, 192\ns_add_u32 {sT2}, {sT2}, {sT1}")
        A(f"s_lshl_b32 {sT0}, {sW}, 1\ns_add_u32 {sT0}, {sT0}, {sOWN}\ns_lshl_b32 {sT0}, {sT0}, 2\ns_lshr_b32 {sT0}, {hex(PILUT)}, {sT0}\ns_and_b32 {sT0}, {sT0}, 7\ns_mul_i32 {sT0}, {sT0}, {NG*192}\ns_add_u32 {sT0}, {sT0}, {sT2}")
        A(f"s_mul_i32 {sL[0]}, {sT0}, 1280\ns_add_u32 {sL[1]}, {sL[0]}, {64*1280}\ns_add_u32 {sL[2]}, {sL[0]}, {128*1280}")
        A(f"s_lshl_b32 {sT0}, {sW}, 6\ns_add_u32 {sT0}, {sT0}, {sT2}\ns_add_u32 {sT0}, {sT0}, {PI[7]*NG*192}\ns_mul_i32 {sD[2]}, {sT0}, 1280\ns_mul_i32 {sD[3]}, {sW}, 2560")
        A(f"s_mul_i32 {sT0}, {sLIN}, 7680\ns_lshl_b32 {sD[5]}, {sW}, 11\ns_add_u32 {sD[4]}, {sT0}, {sD[5]}")
    def w(paced):
        if paced: A(f"s_waitcnt vmcnt({pace-1})")
    def op_pb(n):
        def f(paced):
            if n and n % 3 == 0: A(f"s_add_u32 {sOFF}, {sOFF}, {TSTR}")
            w(paced); ld(PB + 4*n, n % 3)
        return f
    def op_wo(jj, i, off=0, base=7680):
        def f(paced):
            if i == 0: A(f"s_add_u32 m0, {sD[off+1]}, {L_W+base+2560*jj}")
            if i == 2: A("s_mov_b32 exec_hi, 0")
            w(paced); A(f"buffer_load_dwordx4 v7, {TA_}, {sD[off]} offen offset:{1024*i} nt lds")
            if i == 2: A(f"s_mov_b32 exec_hi, -1\ns_add_u32 {sD[off]}, {sD[off]}, {64*1280}")
        return f
    def op_wd(i):
        def f(paced):
            if i == 0: A(f"s_add_u32 m0, {sD[5]}, {L_W}")
            else: A(f"s_cmp_eq_u32 {sW}, 3\ns_cselect_b32 exec_hi, 0, -1")
            w(paced); A(f"buffer_load_dwordx4 v7, {TB_}, {sD[4]} offen offset:{1024*i} nt lds")
            if i: A("s_mov_b32 exec_hi, -1")
        return f
    def op_s4(paced):
        A(f"s_cmp_eq_u32 {sW}, 3\ns_cbranch_scc1 L_nos4")
        for i in range(3): op_wo(0, i, 2, 7680)(paced)
        A("L_nos4:")
    dma = [op_wd(0), op_wd(1), op_s4]
    pbs = [op_pb(n) for n in range(24)]
    ops = dma + pbs if dfirst else pbs + dma
    assert pre0 <= 2 or not dfirst
    dma_setup()
    A(f"s_waitcnt vmcnt(5)\ns_cmp_eq_u32 {sW}, 4\ns_cbranch_scc1 L_nopre0")
    for n in range(pre0): ops[n](False)
    A("L_nopre0:")
    axpy(WA, WD, 20, f"v{T+6}", f"v{T+7}")
    A(f"s_cmp_eq_u32 {sW}, 4\ns_cbranch_scc1 L_nopre1\ns_waitcnt vmcnt({pre0})")
    for n in range(pre0, pre1): ops[n](False)
    A("s_branch L_pre2\nL_nopre1:\ns_waitcnt vmcnt(0)\nL_pre2:")
    axpy(WA, WD+20, 20, f"v{T+8}", f"v{T+9}")
    redscat(WA, 5)
    A(f"s_mul_i32 {sT0}, {sW}, 1280\nv_lshl_add_u32 v4, {vLANE}, 2, {sT0}")
    for k in range(5): A(f"ds_write_b32 v4, v{WA+8*k} offset:{L_QP+256*k}")
    A(f"v_mov_b32 v5, 0\nv_mov_b32 v6, 1\ns_mov_b64 exec, 1\nds_add_u32 v5, v6 offset:{L_CT}\ns_mov_b64 exec, -1")
    stamp(2)
    if ab: A("s_barrier")
    A(f"s_cmp_eq_u32 {sW}, 4\ns_cbranch_scc1 L_svc")
    for n in range(pre1, len(ops)):
        ops[n](True)
        if n == trig: A(f"v_mov_b32 v6, 64\ns_mov_b64 exec, 1\nds_add_u32 v5, v6 offset:{L_CT}\ns_mov_b64 exec, -1")
    A(f"s_mov_b32 {sIB}, 1")
    for m in range(G):
        if m % 3 == 0: A(f"s_add_u32 {sOFF}, {sOFF}, {TSTR}")
        A(f"s_waitcnt vmcnt({pace-1})"); ld(RING + 4*m, m % 3)
    vQA, vSA = "v4", "v5"
    A(f"v_lshlrev_b32 {vQA}, 4, {vB}\nv_add_u32 {vQA}, {L_QB}, {vQA}")
    A(f"s_lshl_b32 {sT0}, {sW}, 12\ns_add_u32 {sT0}, {sT0}, {L_SC}\nv_lshl_add_u32 {vSA}, {vLANE}, 2, {sT0}")
    A(f"s_lshl_b32 {sT0}, {sX}, 2\ns_add_u32 {sT0}, {sT0}, {sW}\ns_mul_i32 {sT0}, {sT0}, 4224\ns_add_u32 {sT0}, {sT0}, {WS_PR}")
    A(f"s_add_u32 s28, s{pWS}, {sT0}\ns_addc_u32 s29, s{pWS+1}, 0\ns_mov_b32 s30, {132 if xd else 128}")
    A(f"v_lshlrev_b32 {vPL}, 2, {vLANE}\nv_mov_b32 {vPS}, 0x1000\nv_cmp_eq_u32 vcc, {sC}, {vLANE}\nv_cndmask_b32 {vPS}, {vPS}, {vPL}, vcc\nv_mov_b32 {vPC}, {sTAG}")
    A(f"s_getreg_b32 {sTHR}, hwreg(HW_REG_XCC_ID)\ns_bitcmp1_b32 {sTHR}, 0\ns_cselect_b32 {sTHR}, {fbo}, {fb}")
    A(f"s_add_u32 {sT0}, {sW}, {sOWN}\ns_cmp_eq_u32 {sT0}, 4\ns_cselect_b32 s22, 0, s22\ns_cselect_b32 {sL[0]}, 0, {sL[0]}\ns_cselect_b32 {sL[1]}, 0, {sL[1]}\ns_cselect_b32 {sL[2]}, 0, {sL[2]}")
    A(f"s_mov_b64 vcc, 0\ns_mov_b32 s47, 0")
    stamp(3)
    A("s_barrier")
    for j in range(3): A(f"ds_read_b128 v[{Q+4*j}:{Q+4*j+3}], {vQA} offset:{128*j}")
    A("s_waitcnt lgkmcnt(0)")
    stamp(4)
    SA, R, RT, S2 = ACC, ACC + 2, ACC + 6, ACC + 8
    def k_after_tile(t):
        A(f"v_add_f32_dpp v{R+(t&3)}, v{SA+(t&1)}, v{SA+(t&1)} row_half_mirror row_mask:0xf bank_mask:{'0xa' if t >= 4 else '0x5'}")
    def k_stage2(e): A(f"v_add_f32_dpp v{R+e}, v{R+e}, v{R+e} quad_perm:[2,3,0,1] {DPP}")
    def k_fin(which):
        if which == 0:
            k_after_tile(7); k_stage2(3)
            A(f"v_cndmask_b32 v{RT+1}, v{R+1}, v{R+3}, {mB1}")
        else:
            A(f"v_add_f32_dpp v{RT+1}, v{RT+1}, v{RT+1} quad_perm:[1,0,3,2] {DPP}\nv_cndmask_b32 v{RT}, v{RT}, v{RT+1}, {mB0}")
            A(f"ds_write_b32 {vSA}, v{RT}\nv_add_u32 {vSA}, 256, {vSA}")
    def k_body(first):
        for n in range(24):
            t, j = n//3, n % 3
            slot(n)
            if not first:
                if n < 2: k_fin(n)
                if n == 0: A("s_waitcnt lgkmcnt(0)")
                if n == bs: A("s_waitcnt lgkmcnt(0)\ns_barrier")
            else: qk4(S2 + t, PB + 4*n, j)
            if j == 0 and t >= 1: k_after_tile(t-1)
            if j == 1 and t >= 5: k_stage2(t-5)
            if n == 23: A(f"v_cndmask_b32 v{RT}, v{R}, v{R+2}, {mB1}")
            if n == 20: A(f"s_add_u32 {sBLK}, {sBLK}, 1\ns_and_b32 {sT0}, {sBLK}, {BPS-1}\ns_cselect_b32 {sT0}, 0, 384\nv_add_u32 {vQA}, {sT0}, {vQA}")
            if "c" not in skip: qk4(SA + (t & 1), RING + 4*(n % RB), j)
            if n == 23: A(f"v_add_f32_dpp v{RT}, v{RT}, v{RT} quad_perm:[1,0,3,2] {DPP}")
            if t == 7: A(f"ds_read_b128 v[{Q+4*j}:{Q+4*j+3}], {vQA} offset:{128*j}")
    A(f"s_mov_b32 {sBLK}, 1")
    k_body(True)
    redscat_lo([S2])
    A(f"ds_write_b32 {vSA}, v{S2}\nv_add_u32 {vSA}, 256, {vSA}")
    A("L_k:")
    k_body(False)
    if stamps: A(f"s_cmp_lg_u32 {sBLK}, 3\ns_cbranch_scc1 L_st1\ns_memrealtime s[42:43]\nL_st1:")
    A(f"s_cmp_lt_u32 {sBLK}, 16\ns_cbranch_scc1 L_k")
    if stamps: A("s_memrealtime s[50:51]")
    vP, vPN, pl, ph, vOA, RV = "v44", "v45", "v46", "v47", "v4", Q
    k_fin(0); k_fin(1)
    A(f"v_subrev_u32 {vSA}, 4096, {vSA}\nds_read_b32 {vPN}, {vSA} offset:{512*PI[0]}")
    A(f"s_lshl_b32 {sT0}, {sW}, 10\ns_add_u32 {sT0}, {sT0}, {L_OP}\nv_add_u32 {vOA}, {sT0}, v7\ns_mov_b32 s73, 0\ns_waitcnt lgkmcnt(0)")
    for i in range(24): A(f"v_mov_b32 v{ACC+i}, 0")
    def v_a(g, zero=True):
        b = ACC + 8*g
        for e in range(4): A(f"v_permlane32_swap_b32 v{b+e}, v{b+e+4}")
        for e in range(4): A(f"v_add_f32 v{RV+4*g+e}, v{b+e}, v{b+e+4}")
        if zero:
            for e in range(8): A(f"v_mov_b32 v{b+e}, 0")
    def v_b(gs):
        for g in gs:
            for e in range(2): A(f"v_permlane16_swap_b32 v{RV+4*g+e}, v{RV+4*g+e+2}")
        for g in gs:
            for e in range(2): A(f"v_add_f32 v{RV+4*g+e}, v{RV+4*g+e}, v{RV+4*g+e+2}")
        for g in gs: A(f"v_add_f32_dpp v{48+g}, v{RV+4*g}, v{RV+4*g} row_ror:8 row_mask:0xf bank_mask:0x3")
        for g in gs: A(f"v_add_f32_dpp v{48+g}, v{RV+4*g+1}, v{RV+4*g+1} row_ror:8 row_mask:0xf bank_mask:0xc")
    def v_out(): A(f"ds_write_b96 {vOA}, v[48:50]\nv_xor_b32 {vOA}, 4096, {vOA}")
    def cond(lab, code): A(f"s_cmp_eq_u32 s73, 0\ns_cbranch_scc1 {lab}"); code(); A(f"{lab}:")
    def v_comp(n):
        if n % 3 == 0:
            t = n//3
            A(f"v_mov_b32_dpp {pl}, {vP} row_newbcast:{t} row_mask:0xf bank_mask:0x3")
            A(f"v_mov_b32_dpp {pl}, {vP} row_newbcast:{8+t} row_mask:0xf bank_mask:0xc")
            A(f"v_lshlrev_b32 {ph}, 16, {pl}")
        if "c" not in skip: axpy(ACC + 8*(n % 3), RING + 4*(n % RB), 4, pl, ph)
    A("L_v:")
    for n in range(24):
        if n == 24 - G: A(f"s_cmp_eq_u32 {sBLK}, 31\ns_cbranch_scc1 L_vend")
        slot(n, True)
        if n == 0: A(f"s_waitcnt lgkmcnt(0)\nv_mov_b32 {vP}, {vPN}"); cond("L_c0", lambda: v_a(2))
        if n == 1: cond("L_c1", lambda: (v_b([2]), v_out()))
        if n == bs: A("s_waitcnt lgkmcnt(0)\ns_barrier")
        if n == 20:
            A(f"s_add_u32 {sT1}, {sBLK}, 1\ns_and_b32 {sT0}, {sT1}, {BPS-1}\ns_cselect_b32 s73, 0, 1")
            A(f"s_and_b32 {sT1}, {sT1}, 14\ns_lshl_b32 {sT1}, {sT1}, 1\ns_lshr_b32 {sT1}, {hex(PILUT)}, {sT1}\ns_and_b32 {sT1}, {sT1}, 7")
            A(f"s_lshl_b32 {sT1}, {sT1}, 1\ns_add_u32 {sT1}, {sT1}, {sT0}\ns_lshl_b32 {sT1}, {sT1}, 8\nv_add_u32 v51, {sT1}, {vSA}\nds_read_b32 {vPN}, v51")
        v_comp(n)
        if n == 21: cond("L_c21", lambda: (v_a(0), v_b([0])))
        if n == 22: cond("L_c22", lambda: (v_a(1), v_b([1])))
    A(f"s_add_u32 {sBLK}, {sBLK}, 1")
    if stamps: A(f"s_cmp_lg_u32 {sBLK}, 29\ns_cbranch_scc1 L_st2\ns_memrealtime s[48:49]\nL_st2:\n; SSBYTES={26*8*3072}")
    A("s_branch L_v")
    A("L_vend:")
    W4, W1, YA, UF = PB, PB + 24, PB + 32, PB + 44
    late = []
    for r in range(6):
        late.append(f"buffer_load_dwordx4 v[{W4+4*r}:{W4+4*r+3}], v7, {TA_}, {sL[r//2]} offen offset:{1280*(r%2)} nt")
        late.append(f"buffer_load_dword v{W1+r}, {vPL}, {TA_}, {sL[r//2]} offen offset:{1024+1280*(r%2)} nt")
    late.insert(ptpos, f"buffer_load_dword v{W1+6}, v7, {WS_}, {sT1} offen {pt}")
    assert sum(sched) == 13 and len(sched) == G
    A(f"s_lshl_b32 {sT1}, {sLIN}, 12\ns_lshl_b32 {sT0}, {sW}, 10\ns_add_u32 {sT1}, {sT1}, {sT0}\ns_add_u32 {sT1}, {sT1}, {WS_H2}")
    done = 0
    for n in range(24 - G, 24):
        A(f"s_waitcnt vmcnt({23 - n + 2*sum(1 for c in cps if n - G <= c < 24 - G) + done})")
        for i in range(sched[n - 24 + G]): A(late[done]); done += 1
        v_comp(n)
        if n == 23: stamp(5)
        if n >= 21: v_a(n - 21, False); v_b([n - 21])
    v_out()
    A(f"s_lshl_b32 {sT0}, {sW}, 4\nv_mov_b32 v8, {sT0}\ns_waitcnt lgkmcnt(0)\ns_barrier")
    stamp(6)
    LW = PB + 56
    A(f"ds_read_b128 v[12:15], v8 offset:{L_U}")
    A(f"s_mul_i32 {sT0}, {sW}, 640\nv_mul_u32_u24 v11, 80, {vA}\nv_mad_u32_u24 v11, {vB}, 12, v11\nv_add_u32 v11, {sT0}, v11\nv_lshrrev_b32 v40, 1, v11")
    for r in range(6):
        for e in range(3): A(f"ds_read_u16 v{LW+10+3*r+e}, v40 offset:{L_W+7680+1280*r+2*e}")
        if r == 3: A("s_waitcnt lgkmcnt(0)")
    A(f"s_mul_i32 {sT0}, {sW}, 2560\nv_lshl_add_u32 v9, {vLANE}, 5, {sT0}\nv_lshl_add_u32 v10, {vLANE}, 3, {sT0}\nv_add_u32 v11, {L_YP}, v11")
    A(f"v_mov_b32 v19, {sTAG}")
    A("v_mov_b32 v8, 0\nv_mov_b32 v41, 0x10000")
    for i in range(10): A(f"v_mov_b32 v{YA+i}, 0")
    for p in range(3):
        A(f"v_and_b32 v{UF+4*p}, 0xffff, v{12+p}\nv_lshlrev_b32 v{UF+4*p+1}, 16, v{12+p}\nv_lshrrev_b32 v{UF+4*p+2}, 16, v{12+p}\nv_and_b32 v{UF+4*p+3}, 0xffff0000, v{12+p}")
    A(f"v_readfirstlane_b32 {sT3}, v15\ns_waitcnt lgkmcnt(0)")
    for p in range(3):
        for e in range(3): A(f"v_lshl_or_b32 v{LW+3*p+e}, v{LW+10+6*p+3+e}, 16, v{LW+10+6*p+e}")
    for r in range(6):
        pos = [i for i, l in enumerate(late) if l.startswith(f"buffer_load_dword v{W1+r},")][0]
        A(f"s_waitcnt vmcnt({12-pos})")
        axpy(YA, W4 + 4*r, 4, f"v{UF+2*r}", f"v{UF+2*r+1}"); axpy(YA + 8, W1 + r, 1, f"v{UF+2*r}", f"v{UF+2*r+1}")
    A(f"ds_write_b128 v9, v[{YA}:{YA+3}] offset:{L_YP}\nds_write_b128 v9, v[{YA+4}:{YA+7}] offset:{L_YP+16}")
    A(f"ds_write_b64 v10, v[{YA+8}:{YA+9}] offset:{L_YP+2048}\ns_mov_b64 exec, 1\nds_add_u32 v8, v41 offset:{L_CT}\ns_mov_b64 exec, -1")
    A(f"L_wy:\nds_read_b32 v41, v8 offset:{L_CT}\ns_waitcnt lgkmcnt(0)\nv_cmp_gt_u32 vcc, 0x40000, v41\ns_cbranch_vccnz L_wy")
    for k in range(5):
        A(f"ds_read2_b32 v[{20+4*k}:{21+4*k}], v11 offset0:0 offset1:1\nds_read_b32 v{22+4*k}, v11 offset:8")
        if k < 4: A("v_add_u32 v11, 2560, v11")
    A("s_waitcnt lgkmcnt(0)")
    for e in range(3): A(f"v_add_f32 v{20+e}, v{20+e}, v{24+e}\nv_add_f32 v{28+e}, v{28+e}, v{32+e}")
    for e in range(3): A(f"v_add_f32 v{20+e}, v{20+e}, v{36+e}")
    for e in range(3): A(f"v_add_f32 v{16+e}, v{20+e}, v{28+e}")
    stamp(7)
    A(f"s_barrier\nds_read_b96 v[12:14], v8 offset:{L_U+64}\ns_waitcnt lgkmcnt(0)")
    for p in range(3):
        for e in range(3): A(f"v_dot2c_f32_bf16 v{16+e}, v{12+p}, v{LW+3*p+e}")
    A(f"s_cmp_eq_u32 {sT3}, 0\ns_cbranch_scc1 L_yr\nbuffer_store_dwordx4 v[16:19], v7, {WS_}, {sT1} offen\ns_branch L_done")
    A(f"L_yr:\nbuffer_store_dwordx4 v[16:19], v7, {WS_}, {sT1} offen sc1\ns_branch L_done")
    A("L_svc:")
    G0 = RING; G1 = G0 + 8
    vQW, vSC, vML, vOP, vLS, vM, vZ, vZK, vXA = [f"v{32+i}" for i in range(7)] + ["v40", "v42"]
    ZS, ZM = 52, 8
    vWA, vH1S, vH1G, vYG, vH3, vYW, vYR, vOUT, XV = "v16", "v17", "v18", "v19", "v20", "v21", "v29", 22, 26
    P0, P1, YY = PB, PB + 32, PB + 64
    YT = YY + 12
    LP = 64//NSEG; LLP = LP.bit_length()-1; NLS = GS//LP; NR = 4*BPS
    sF = [f"s{r}" for r in (20, 21, 22, 24, 25, 26, 28, 29)]
    sLOC, sHD, sTG2, sH1S, sH1G, sYS, sYG, sH3S, sH3G, sXS, sXG, sFL = [f"s{r}" for r in range(72, 84)]
    sUU = ["s60", "s61", "s62"]
    sSCALE, sLOG2E = "s12", "s13"
    def store2(lab, stores):
        A(f"s_cmp_eq_u32 {sLOC}, 0\ns_cbranch_scc1 {lab}_r"); stores(""); A(f"s_branch {lab}_d\n{lab}_r:"); stores("sc1"); A(f"{lab}_d:")
    def poll(lab, loads, tags, sleep=0, first=None, tag=sTAG, loc=False):
        A(f"s_mov_b32 {sT2}, {spin}")
        if first is not None: loads(first); A(f"s_branch {lab}_chk")
        elif sleep: A(f"s_branch {lab}_go")
        A(f"{lab}:")
        if sleep: A(f"s_sleep {sleep}\n{lab}_go:")
        if loc and lp != "sc1":
            A(f"s_cmp_eq_u32 {sLOC}, 0\ns_cbranch_scc1 {lab}_rm"); loads(lp); A(f"s_branch {lab}_chk\n{lab}_rm:")
        loads("sc1")
        A(f"{lab}_chk:\ns_waitcnt vmcnt(0)")
        if len(tags) == 1: A(f"v_cmp_ne_u32 vcc, {tag}, {tags[0]}")
        else:
            A(f"v_xor_b32 {t0}, {tag}, {tags[0]}")
            for t in tags[1:]: A(f"v_bitop3_b32 {t0}, {t}, {tag}, {t0} bitop3:0xbe")
            A(f"v_cmp_ne_u32 vcc, 0, {t0}")
        A(f"s_cbranch_vccz {lab}_done\ns_sub_u32 {sT2}, {sT2}, 1\ns_cbranch_scc0 {lab}\n{lab}_done:")
    A(f"v_lshlrev_b32 v4, 2, {vLANE}")
    A(f"L_wq:\nds_read_b32 v6, v5 offset:{L_CT}\ns_waitcnt lgkmcnt(0)\nv_and_b32 v6, 7, v6\nv_cmp_gt_u32 vcc, 5, v6\ns_cbranch_vccnz L_wq")
    for w in range(5):
        for k in range(5): A(f"ds_read_b32 v{G0+5*w+k}, v4 offset:{L_QP+1280*w+256*k}")
        if w == 2: A("s_waitcnt lgkmcnt(0)")
    A("s_waitcnt lgkmcnt(0)")
    for w in range(1, 5):
        for k in range(5): A(f"v_add_f32 v{G0+k}, v{G0+k}, v{G0+5*w+k}")
    A(f"v_lshl_add_u32 v5, {vB}, 3, {vA}\nv_lshlrev_b32 {vQW}, 1, v5\nv_lshlrev_b32 v5, 4, v5")
    A(f"v_mov_b32 v48, v{G0+3}\nv_mov_b32 v49, v{G0+4}\nv_mov_b32 v{G0+3}, {sTAG}\nv_mov_b32 v50, {sTAG}\nv_mov_b32 v51, {sTAG}")
    A(f"s_lshl_b32 {sT0}, {sLIN}, 11\ns_add_u32 {sT0}, {sT0}, {WS_QS}")
    A(f"buffer_store_dwordx4 v[{G0}:{G0+3}], v7, {WS_}, {sT0} offen sc1")
    stamp(3)
    A(f"v_add_u32 {vSC}, {L_SC}, v4\nv_mov_b32 {vML}, {L_ML}\nv_add_u32 {vOP}, {L_OP}, v7\nv_mov_b32 {vZ}, 0")
    A(f"s_mov_b32 {sSCALE}, 0x3d93cd3a\ns_mov_b32 {sLOG2E}, 0x3fb8aa3b\ns_mov_b32 {sBLK}, -1")
    A(f"s_lshl_b32 {sHD}, {sG}, {11+LGS}\ns_add_u32 {sHD}, {sHD}, {WS_QS}")
    A(f"L_wt:\ns_sleep 2\nds_read_b32 v10, {vZ} offset:{L_CT}\ns_waitcnt lgkmcnt(0)\nv_cmp_gt_u32 vcc, 256, v10\ns_cbranch_vccnz L_wt")
    A("s_branch L_gq0")
    A("L_blk:")
    if xd:
        A(f"s_cmp_lg_u32 {sC}, 0\ns_cbranch_scc1 L_noxf\ns_and_b32 {sT0}, {sBLK}, {xp-1}\ns_cmp_lg_u32 {sT0}, {xp-1}\ns_cbranch_scc1 L_noxf\ns_cmp_gt_u32 {sBLK}, 28\ns_cbranch_scc1 L_noxf")
        A(f"s_add_u32 {sT0}, {sTAG}, {sBLK}\nv_mov_b32 v12, {sT0}\nv_mul_u32_u24 v13, 4224, {vLANE}\ns_mul_i32 {sT1}, {sX}, 4224\ns_add_u32 {sT1}, {sT1}, {WS_PR+0x30000}")
        A(f"s_mov_b64 exec, 1\nbuffer_store_dword v12, v13, {WS_}, {sT1} offen sc1\ns_mov_b32 {sT1}, {WS_PR+0x30000}")
        if xs < 0: A("s_waitcnt vmcnt(0)")
        if xs > 0: A(f"s_sleep {xs}")
        A(f"s_mov_b64 exec, 0xff\nbuffer_load_dword v14, v13, {WS_}, {sT1} offen sc1\ns_waitcnt vmcnt(0)")
        lutv = sum((d + 8) << (4*i) for i, d in enumerate(xd))
        A(f"v_sub_u32 v14, v14, v12\nv_cmp_gt_u32 vcc, 64, v14\ns_bitset0_b32 vcc_lo, {sX}\ns_bcnt1_i32_b64 {sT0}, vcc\ns_lshl_b32 {sT0}, {sT0}, 2")
        A(f"s_lshr_b32 {sT0}, {hex(lutv)}, {sT0}\ns_and_b32 {sT0}, {sT0}, 15\ns_getreg_b32 {sT1}, hwreg(HW_REG_XCC_ID)\ns_bitcmp1_b32 {sT1}, 0\ns_cselect_b32 {sT1}, {fbo-8}, {fb-8}")
        A(f"s_add_u32 {sT0}, {sT0}, {sT1}\ns_min_u32 {sT0}, {sT0}, 32\ns_add_u32 {sT0}, {sT0}, {sTAG}\nv_mov_b32 v12, {sT0}")
        A(f"s_mul_i32 {sT1}, {sX}, {4*4224}\ns_add_u32 {sT1}, {sT1}, {WS_PR+128}\ns_mov_b64 exec, 0xf")
        A(f"buffer_store_dword v12, v13, {WS_}, {sT1} offen\ns_mov_b64 exec, -1\nL_noxf:")
    A(f"s_cmp_le_u32 {sBLK}, 16\ns_cbranch_scc1 L_kpart\ns_and_b32 {sT0}, {sBLK}, {BPS-1}\ns_cbranch_scc1 L_vmid")
    stamp(5)
    for w in range(4): A(f"ds_read_b96 v[{G0+4*w}:{G0+4*w+2}], {vOP} offset:{1024*w}")
    A(f"v_xor_b32 {vOP}, 4096, {vOP}\nv_mov_b32 v{G0+19}, {sTG2}\ns_waitcnt lgkmcnt(0)")
    for k in range(3): A(f"v_add_f32 v{G0+k}, v{G0+k}, v{G0+4+k}\nv_add_f32 v{G0+8+k}, v{G0+8+k}, v{G0+12+k}")
    for k in range(3): A(f"v_add_f32 v{G0+k}, v{G0+k}, v{G0+8+k}")
    for k in range(3): A(f"v_mul_f32 v{G0+16+k}, {sF[0]}, v{G0+k}")
    if "h" in skip: A(f"s_cmp_lg_u32 {sBLK}, 32\ns_cbranch_scc1 L_p1_done")
    store2("L_s1", lambda p: A(f"buffer_store_dwordx4 v[{G0+16}:{G0+19}], {vH1S}, {WS_}, {sH1S} offen {p}"))
    poll("L_p1", lambda p: A(f"buffer_load_dwordx4 v[{G0}:{G0+3}], {vH1G}, {WS_}, {sH1G} offen {p}"), [f"v{G0+3}"], tag=sTG2, loc=True)
    stamp(6)
    A(f"v_mov_b32 v{G0+3}, 0\nv_permlane32_swap_b32 v{G0}, v{G0+1}\nv_permlane32_swap_b32 v{G0+2}, v{G0+3}")
    A(f"v_add_f32 v{G0}, v{G0}, v{G0+1}\nv_add_f32 v{G0+2}, v{G0+2}, v{G0+3}\nv_permlane16_swap_b32 v{G0}, v{G0+2}\nv_add_f32 {vZK}, v{G0}, v{G0+2}")
    allred_lo("v_add_f32", [vZK], 3)
    A(f"s_cmp_eq_u32 {sBLK}, 32\ns_cbranch_scc1 L_tail")
    for i in range(NSEG-1): A(f"s_mov_b32 {sF[i]}, {sF[i+1]}")
    A(f"s_add_u32 {sTG2}, {sTG2}, 1\ns_xor_b32 {sH1S}, {sH1S}, 1024\ns_xor_b32 {sH1G}, {sH1G}, 1024")
    A(f"s_lshr_b32 {sT0}, {sBLK}, 1\ns_xor_b32 {sT0}, {sT0}, {sOWN}\ns_bitcmp1_b32 {sT0}, 0\ns_cbranch_scc0 L_notmine")
    A(f"v_mov_b32 v{ZM}, v{ZM+1}\nv_mov_b32 v{ZM+1}, v{ZM+2}\nv_mov_b32 v{ZM+2}, {vZK}\ns_cmp_eq_u32 {sBLK}, 28\ns_cbranch_scc0 L_next\ns_branch L_send")
    A(f"L_notmine:\nv_mov_b32 v{ZS}, v{ZS+1}\nv_mov_b32 v{ZS+1}, v{ZS+2}\nv_mov_b32 v{ZS+2}, {vZK}\ns_cmp_ge_u32 {sBLK}, 28\ns_cbranch_scc0 L_next")
    A("L_send:")
    if "x" in skip: A("s_branch L_next")
    A(f"s_mov_b32 exec_lo, 0x01010101\ns_mov_b32 exec_hi, 0x01010101")
    A(f"buffer_store_dwordx4 v[{ZS}:{ZS+3}], {vXA}, {WS_}, {sXS} offen sc1\ns_mov_b64 exec, -1\ns_add_u32 {sXS}, {sXS}, 128")
    A("s_branch L_next")
    A("L_vmid:")
    A(f"s_cmp_lg_u32 {sBLK}, {lsb}\ns_cbranch_scc1 L_nols")
    A(f"s_mul_i32 {sT1}, {sG}, {GS*128}\ns_add_u32 {sT1}, {sT1}, {WS_LS}\ns_add_u32 {sT3}, {sT1}, 4096")
    def gl(p):
        for r in range(NLS): A(f"buffer_load_dwordx4 v[{G0+4*r}:{G0+4*r+3}], {vLS}, {WS_}, {sT1 if LP*128*r < 4096 else sT3} offen offset:{LP*128*r % 4096} {p}")
    poll("L_ls", gl, [f"v{G0+4*r+e}" for r in range(NLS) for e in (1, 3)], sleep=16, first="")
    hn = NLS//2 if PAIR else NLS
    for h, t in ((0, t0), (1, t1))[:2 if PAIR else 1]:
        A(f"v_xor_b32 {t}, {sLOC}, v{G0+4*hn*h+2}")
        for r in range(1, hn): A(f"v_bitop3_b32 {t}, v{G0+4*(hn*h+r)+2}, {sLOC}, {t} bitop3:0xbe")
    if PAIR: A(f"s_bitcmp1_b32 {sX}, 0\ns_cselect_b64 vcc, -1, 0\nv_cndmask_b32 {t0}, {t0}, {t1}, vcc")
    A(f"v_cmp_ne_u32 vcc, 0, {t0}\ns_cmp_eq_u64 vcc, 0\ns_cselect_b32 {sLOC}, {local}, 0")
    A(f"v_max_f32 {t0}, v{G0}, v{G0+4}")
    for r in range(2, NLS, 2): A(f"v_max3_f32 {t0}, {t0}, v{G0+4*r}, v{G0+4*r+4}")
    allred_lo("v_max_f32", [t0], LLP)
    for r in range(NLS): A(f"v_sub_f32 v{G0+4*r}, v{G0+4*r}, {t0}")
    for r in range(NLS): A(f"v_exp_f32 v{G0+4*r}, v{G0+4*r}")
    for r in range(1, NLS): A(f"v_add_f32 v{G0}, v{G0}, v{G0+4*r}")
    allred_lo("v_add_f32", [f"v{G0}"], LLP)
    A(f"v_sub_f32 {t0}, {vM}, {t0}\nv_exp_f32 {t0}, {t0}\nv_rcp_f32 {t1}, v{G0}\nv_mul_f32 {t0}, {t0}, {t1}")
    for k in range(NSEG): A(f"v_readlane_b32 {sF[k]}, {t0}, {LP*PI[k]}")
    A(f"v_mov_b32 {t0}, 0\nv_mov_b32 {t1}, 0\nv_mov_b32 {t2}, 0\nv_mov_b32 {t3}, {sLOC}\ns_mov_b64 exec, 0xf\nds_write_b128 v7, v[{T}:{T+3}] offset:{L_U}")
    A(f"s_lshl_b32 {sT0}, {sLIN}, 11\ns_add_u32 {sT0}, {sT0}, {WS_QS}\ns_mov_b32 exec_lo, 0x3f3f3f3f\ns_mov_b32 exec_hi, 0x3f3f3f3f")
    store2("L_s0", lambda p: A(f"buffer_store_dwordx4 v[48:51], v5, {WS_}, {sT0} offen offset:1024 {p}"))
    A("s_mov_b64 exec, -1\ns_branch L_next")
    A("L_nols:")
    A(f"s_cmp_lg_u32 {sBLK}, {lsb+2}\ns_cbranch_scc1 L_nogu2")
    A(f"v_lshlrev_b32 v6, 11, {vA}\nv_lshl_add_u32 v6, {vB}, 4, v6\nv_mov_b32 v{G1}, 0\nv_mov_b32 v{G1+1}, 0")
    A(f"s_lshr_b32 {sT1}, {sLIN}, 3\ns_lshl_b32 {sT1}, {sT1}, 14\ns_mul_i32 {sT0}, {sS}, 96\ns_add_u32 {sT1}, {sT1}, {sT0}\ns_add_u32 {sT1}, {sT1}, {WS_QS}")
    A(f"s_mov_b32 exec_lo, 0x3f3f3f3f\ns_mov_b32 exec_hi, 0x3f3f3f3f")
    poll("L_gu", lambda p: A(f"buffer_load_dwordx4 v[{G1}:{G1+3}], v6, {WS_}, {sT1} offen offset:1024 {p}"), [f"v{G1+2}", f"v{G1+3}"], sleep=psleep, loc=True)
    A("s_mov_b64 exec, -1")
    for k in range(2): A(f"v_add_f32_dpp v{G1+k}, v{G1+k}, v{G1+k} row_ror:8 {DPP}")
    allred_top("v_add_f32", [f"v{G1}", f"v{G1+1}"], [t0, t1])
    A(f"v_cvt_pk_bf16_f32 v{G1}, 0, v{G1}\nv_cvt_pk_bf16_f32 v{G1+1}, 0, v{G1+1}")
    A(f"v_cmp_lt_f32 vcc, 0, v{G1}\nv_cndmask_b32 {t0}, 0, 1.0, vcc\nv_mul_f32 {t3}, v{G1}, {t0}\nv_mul_f32 {t3}, {t3}, v{G1+1}\nv_cvt_pk_bf16_f32 {t3}, {t3}, 0")
    A(f"v_mov_b32_dpp {t0}, {t3} quad_perm:[1,1,3,3] {DPP}\nv_lshl_or_b32 {t3}, {t0}, 16, {t3}")
    for i in range(3): A(f"v_readlane_b32 {sUU[i]}, {t3}, {2*i}")
    for r in range(6):
        for d in range(5): A(f"ds_read_b32 v{P0+5*r+d}, {vWA} offset:{1280*r+4*d}")
        if r % 2: A("s_waitcnt lgkmcnt(0)")
    A(f"s_mov_b32 {sT1}, 0x05040100\ns_mov_b32 {sT3}, 0x07060302")
    for p in range(3):
        for d in range(5):
            A(f"v_perm_b32 v{P1+10*p+2*d}, v{P0+10*p+5+d}, v{P0+10*p+d}, {sT1}\nv_perm_b32 v{P1+10*p+2*d+1}, v{P0+10*p+5+d}, v{P0+10*p+d}, {sT3}")
    for p in range(3):
        for c in range(10): A(f"v_dot2c_f32_bf16 v{YY+c}, {sUU[p]}, v{P1+10*p+c}")
    for d in range(5): A(f"ds_write_b64 {vYW}, v[{YY+2*d}:{YY+2*d+1}] offset:{L_YP+10240+8*d}")
    A("s_branch L_next")
    A("L_nogu2:")
    A(f"s_cmp_lg_u32 {sBLK}, 31\ns_cbranch_scc1 L_nopf")
    if pf is not None:
        for r in range(4 if "y" in pfw else 0):
            A(f"s_add_u32 {sT0}, {sYG}, {8*4096*r}\nbuffer_load_dwordx4 v[{G0+8+4*r}:{G0+8+4*r+3}], {vYG}, {WS_}, {sT0} offen {pf}")
        if "h" in pfw: A(f"buffer_load_dwordx4 v[{G0+24}:{G0+27}], v7, {WS_}, {sH1S} offen {pf}")
    A("L_nopf:")
    A(f"s_cmp_lt_u32 {sBLK}, 29\ns_cbranch_scc1 L_next\ns_add_u32 {sT0}, {sBLK}, {sOWN}\ns_cmp_gt_u32 {sT0}, 31\ns_cbranch_scc1 L_last")
    if "x" not in skip:
        poll("L_px", lambda p: A(f"buffer_load_dwordx4 v[{G0}:{G0+3}], {vXA}, {WS_}, {sXG} offen {p}"), [f"v{G0+3}"], sleep=psleep)
    for k in range(3): A(f"v_add_f32 v{ZM+k}, v{ZM+k}, v{G0+k}")
    A(f"s_add_u32 {sXG}, {sXG}, 128\ns_mov_b32 {sFL}, 3\ns_cmp_eq_u32 {sBLK}, 29\ns_cbranch_scc1 L_take\ns_mov_b32 {sFL}, 1\nv_mov_b32 v{ZM}, v{ZM+2}")
    A(f"L_take:\nv_mov_b32_dpp v{G0+1}, v{ZM} row_ror:8 {DPP}\nv_cvt_pk_bf16_f32 v{G0}, v{ZM}, v{G0+1}\nv_mov_b32 v{ZM}, v{ZM+1}\nv_mov_b32 v{ZM+1}, v{ZM+2}")
    A(f"s_mov_b32 exec_lo, 0x00010001\ns_mov_b32 exec_hi, 1\nds_write_b32 {vYR}, v{G0}\ns_mov_b64 exec, -1\nv_add_u32 {vYR}, 16, {vYR}")
    A(f"s_sub_u32 {sFL}, {sFL}, 1\ns_cmp_gt_u32 {sFL}, 0\ns_cbranch_scc1 L_take")
    A("L_last:")
    A(f"s_cmp_lg_u32 {sBLK}, 31\ns_cbranch_scc1 L_next\ns_setprio 3\ns_waitcnt vmcnt(0)")
    A("L_next:")
    A(f"s_add_u32 {sBLK}, {sBLK}, 1\ns_waitcnt lgkmcnt(0)\ns_barrier\ns_branch L_blk")
    A("L_kpart:\ns_setprio 0")
    A(f"s_and_b32 {sT0}, {sBLK}, {BPS-1}\ns_cbranch_scc1 L_nosm")
    for w in range(4):
        for k in range(BPS): A(f"ds_read_b32 v{G0+BPS*w+k}, {vSC} offset:{4096*w+256*k}")
        if w == 1: A("s_waitcnt lgkmcnt(0)")
    A("s_waitcnt lgkmcnt(0)")
    for i in range(NR): A(f"v_cvt_pk_bf16_f32 v{G0+i}, 0, v{G0+i}")
    for i in range(NR): A(f"v_mul_f32 v{G0+i}, {sSCALE}, v{G0+i}")
    for i in range(NR): A(f"v_cvt_pk_bf16_f32 v{G0+i}, 0, v{G0+i}")
    for i in range(NR): A(f"v_mul_f32 v{G0+i}, {sLOG2E}, v{G0+i}")
    A(f"v_max_f32 {t0}, v{G0}, v{G0+1}")
    for i in range(2, NR, 2): A(f"v_max3_f32 {t0}, {t0}, v{G0+i}, v{G0+i+1}")
    allred_lo("v_max_f32", [t0]); allred_top("v_max_f32", [t0], [t1])
    for i in range(NR): A(f"v_sub_f32 v{G0+i}, v{G0+i}, {t0}")
    for i in range(NR): A(f"v_exp_f32 v{G0+i}, v{G0+i}")
    A(f"v_add_f32 {t1}, v{G0}, v{G0+1}")
    for i in range(2, NR): A(f"v_add_f32 {t1}, {t1}, v{G0+i}")
    for i in range(NR): A(f"v_cvt_pk_bf16_f32 v{G0+i}, v{G0+i}, 0")
    for w in range(4):
        for k in range(BPS): A(f"ds_write_b32 {vSC}, v{G0+BPS*w+k} offset:{4096*w+256*k}")
        if w == 1: A("s_waitcnt lgkmcnt(0)")
    allred_lo("v_add_f32", [t1]); allred_top("v_add_f32", [t1], [t2])
    A(f"v_log_f32 {t3}, {t1}\nv_mov_b32 {t2}, {t0}\nv_add_f32 {t3}, {t3}, {t0}")
    A(f"ds_write_b64 {vML}, v[{T+2}:{T+3}]")
    A(f"v_add_u32 {vSC}, {256*BPS}, {vSC}\nv_add_u32 {vML}, 8, {vML}")
    A("L_nosm:")
    A(f"s_cmp_ge_u32 {sBLK}, {0 if 'q' in skip else NSEG-1}\ns_cbranch_scc1 L_noq")
    A("L_gq0:")
    def gq(p):
        for s in range(8):
            if s % 2 == 0: A(f"s_add_u32 {sT0}, {sHD}, {2048*s}")
            A(f"buffer_load_dwordx4 v[{G1+4*s}:{G1+4*s+3}], v7, {WS_}, {sT0} offen offset:{2048*(s%2)} {p}")
    poll("L_gq", gq, [f"v{G1+4*s+3}" for s in range(8)], first="", sleep=psleep)
    for s in range(1, 8):
        for k in range(3): A(f"v_add_f32 v{G1+k}, v{G1+k}, v{G1+4*s+k}")
    for k in range(3): A(f"v_cvt_pk_bf16_f32 v{G1+k}, v{G1+k}, 0")
    for k in range(3): A(f"ds_write_b16 {vQW}, v{G1+k} offset:{L_QB+128*k}")
    A(f"v_add_u32 {vQW}, 384, {vQW}\ns_add_u32 {sHD}, {sHD}, 16384")
    A(f"s_cmp_lt_i32 {sBLK}, 0\ns_cselect_b32 {sBLK}, 0, {sBLK}\ns_cbranch_scc1 L_gq0")
    if timed:
        A(f"s_cmp_lg_u32 {sBLK}, 0\ns_cbranch_scc1 L_next"); stamp(4)
    A("s_branch L_next")
    A("L_noq:")
    A(f"s_cmp_lg_u32 {sBLK}, {NSEG+1}\ns_cbranch_scc1 L_nogu")
    A(f"v_mul_u32_u24 {vWA}, 20, {vLANE}\nv_add_u32 {vWA}, {L_W}, {vWA}")
    A(f"v_lshrrev_b32 {t0}, 4, {vLANE}\nv_lshl_add_u32 {t0}, {t0}, 3, {vB}\nv_and_b32 {t1}, 8, {vLANE}\nv_lshlrev_b32 {t1}, 1, {t1}")
    A(f"v_lshl_add_u32 {vH1S}, {t0}, 5, {t1}\nv_lshl_add_u32 {vH1G}, {t0}, 11, {t1}")
    A(f"s_lshl_b32 {sH1S}, {sLIN}, 11\ns_add_u32 {sH1S}, {sH1S}, {WS_H1}")
    A(f"s_lshl_b32 {sH1G}, {sX}, 16\ns_lshl_b32 {sT0}, {sC}, 5\ns_add_u32 {sH1G}, {sH1G}, {sT0}\ns_add_u32 {sH1G}, {sH1G}, {WS_H1}")
    A(f"v_mul_u32_u24 {vYW}, 40, {vLANE}\nv_lshrrev_b32 {vYR}, 1, {vLANE}\nv_and_b32 {vYR}, 8, {vYR}\nv_lshrrev_b32 {t0}, 3, {vLANE}\nv_and_or_b32 {vYR}, {t0}, 4, {vYR}\nv_add_u32 {vYR}, {L_U}, {vYR}\nv_mov_b32 v43, {vYR}")
    A(f"v_lshlrev_b32 {t0}, 4, {vB}\nv_lshl_add_u32 {vYG}, {vA}, 12, {t0}\nv_lshlrev_b32 {vXA}, 4, {vA}\nv_mov_b32 v41, {sTAG}\nv_mov_b32 v{ZS+3}, {sTAG}")
    A(f"s_lshl_b32 {sYS}, {sLIN}, 12\ns_add_u32 {sYS}, {sYS}, {WS_H2}")
    A(f"s_lshl_b32 {sYG}, {sX}, 17\ns_lshl_b32 {sT0}, {sC}, 7\ns_add_u32 {sYG}, {sYG}, {sT0}\ns_add_u32 {sYG}, {sYG}, {WS_H2}")
    A(f"s_lshl_b32 {sH3G}, {sC}, 10\ns_add_u32 {sH3G}, {sH3G}, {WS_H3}\ns_lshl_b32 {sT0}, {sX}, 7\ns_add_u32 {sH3S}, {sH3G}, {sT0}")
    A(f"s_lshl_b32 {sXS}, {sLIN}, 8\ns_add_u32 {sXS}, {sXS}, {WS_XX}\ns_xor_b32 {sXG}, {sXS}, {32*256}")
    A(f"s_add_u32 {sTG2}, {sTAG}, 1\ns_mov_b32 {sFL}, 0")
    A(f"v_mul_u32_u24 {t0}, 3, {vB}\ns_mul_i32 {sT0}, {sC}, 20\nv_add_lshl_u32 {t0}, {t0}, {sT0}, 1\nv_mov_b32 {t2}, {OOB}")
    A(f"v_cmp_gt_u32 vcc, 7, {vB}\nv_cndmask_b32 v{vOUT}, {t2}, {t0}, vcc\nv_cmp_gt_u32 vcc, 6, {vB}\nv_cndmask_b32 v{vOUT+1}, {t2}, {t0}, vcc")
    A(f"v_mov_b32 {t0}, {WS_EP}\nv_or_b32 {t1}, s2, {vLANE}\nv_cmp_eq_u32 vcc, 0, {t1}\nv_cndmask_b32 v{vOUT+2}, {t2}, {t0}, vcc")
    A(f"buffer_load_ushort v{XV}, v{vOUT}, {X_}, 0 offen\nbuffer_load_ushort v{XV+1}, v{vOUT}, {X_}, 0 offen offset:2\nbuffer_load_ushort v{XV+2}, v{vOUT+1}, {X_}, 0 offen offset:4")
    for i in range(10): A(f"v_mov_b32 v{YY+i}, 0")
    A("s_waitcnt vmcnt(0)")
    for e in range(3): A(f"v_lshlrev_b32 v{XV+e}, 16, v{XV+e}")
    srd_lo(X_, pOUT)
    A("s_branch L_next")
    A("L_nogu:")
    A(f"s_cmp_lg_u32 {sBLK}, 16\ns_cbranch_scc1 L_next")
    A(f"v_lshrrev_b32 v10, {LLP}, {vLANE}\nv_lshlrev_b32 v10, 3, v10\ns_waitcnt lgkmcnt(0)\nds_read_b64 v[{T+2}:{T+3}], v10 offset:{L_ML}")
    A(f"s_lshl_b32 {sT1}, {sLIN}, 7\ns_add_u32 {sT1}, {sT1}, {WS_LS}\nv_and_b32 v11, {LP-1}, {vLANE}\nv_cmp_eq_u32 vcc, 0, v11")
    A(f"s_waitcnt lgkmcnt(0)\nv_mov_b32 {vM}, {t2}\nv_mov_b32 {t0}, {t3}\nv_mov_b32 {t1}, {sTAG}\nv_mov_b32 {t3}, {sTAG}")
    A(f"s_getreg_b32 {sLOC}, hwreg(HW_REG_XCC_ID)\nv_mov_b32 {t2}, {sLOC}\nv_lshlrev_b32 v10, 1, v10\ns_mov_b64 exec, vcc")
    A(f"buffer_store_dwordx4 v[{T}:{T+3}], v10, {WS_}, {sT1} offen sc1\ns_mov_b64 exec, -1")
    A(f"v_lshl_add_u32 {vLS}, v11, 7, v10\ns_branch L_next")
    A("L_tail:")
    A(f"v_mov_b32_dpp v{G0+1}, {vZK} row_ror:8 {DPP}\nv_cvt_pk_bf16_f32 v{G0}, {vZK}, v{G0+1}")
    A(f"s_mov_b32 exec_lo, 0x00010001\ns_mov_b32 exec_hi, 1\nds_write_b32 v43, v{G0} offset:64\ns_mov_b64 exec, -1\ns_waitcnt lgkmcnt(0)")
    stamp(7)
    A("s_barrier")
    def g2(p):
        for r in range(4):
            A(f"s_add_u32 {sT0}, {sYG}, {8*4096*r}\nbuffer_load_dwordx4 v[{G0+4*r}:{G0+4*r+3}], {vYG}, {WS_}, {sT0} offen {p}")
    poll("L_p2", g2, [f"v{G0+4*r+3}" for r in range(4)], loc=True)
    if stamps: A("s_memrealtime s[42:43]")
    for k in range(3): A(f"v_add_f32 v{G0+k}, v{G0+k}, v{G0+4+k}\nv_add_f32 v{G0+8+k}, v{G0+8+k}, v{G0+12+k}")
    for k in range(3): A(f"v_add_f32 v{G0+k}, v{G0+k}, v{G0+8+k}")
    def red_hi(b):
        for k in range(3): A(f"v_add_f32_dpp v{b+k}, v{b+k}, v{b+k} row_ror:8 {DPP}")
        allred_top("v_add_f32", [f"v{b+k}" for k in range(3)], [f"v{b+4+k}" for k in range(3)])
    red_hi(G0)
    A(f"s_cmp_eq_u32 {sS}, {sX}\ns_cbranch_scc1 L_red")
    A(f"s_mov_b64 exec, 0xff\nbuffer_store_dwordx4 v[{G0}:{G0+3}], v7, {WS_}, {sH3S} offen {p3s}\ns_mov_b64 exec, -1\ns_branch L_done")
    A("L_red:")
    BUF = [G0 + 16 + 4*k for k in range(np3)]
    for b in BUF:
        for k in range(3): A(f"v_mov_b32 v{b+k}, v{G0+k}")
    A(f"v_cmp_ne_u32 vcc, {sX}, {vA}\ns_mov_b32 {sT2}, {spin}\ns_mov_b64 exec, vcc")
    def l3(k): A(f"buffer_load_dwordx4 v[{BUF[k]}:{BUF[k]+3}], v7, {WS_}, {sH3G} offen {p3l}")
    for k in range(np3-1):
        l3(k); A(f"s_sleep {s3}")
    A("L_p3:")
    for k in range(np3):
        l3((k + np3 - 1) % np3)
        A(f"s_waitcnt vmcnt({np3-1})\nv_cmp_ne_u32 vcc, {sTAG}, v{BUF[k]+3}\ns_cbranch_vccz L_p3d{k}")
    A(f"s_sub_u32 {sT2}, {sT2}, 1\ns_cbranch_scc0 L_p3")
    for k in reversed(range(np3)):
        A(f"L_p3d{k}:\ns_mov_b64 exec, -1")
        for e in range(3): A(f"v_add_f32_dpp v{G1+e}, v{BUF[k]+e}, v{BUF[k]+e} row_ror:8 {DPP}")
        if k: A("s_branch L_p3e")
    A("L_p3e:")
    if stamps: A("s_memrealtime s[48:49]")
    allred_top("v_add_f32", [f"v{G1+k}" for k in range(3)], [f"v{G1+4+k}" for k in range(3)])
    for e in range(3): A(f"v_add_f32 v{G1+e}, v{G1+e}, v{XV+e}")
    for e in range(3): A(f"v_cvt_pk_bf16_f32 v{G1+e}, v{G1+e}, 0")
    A("s_mov_b64 exec, 0xff")
    A(f"buffer_store_short v{G1}, v{vOUT}, {X_}, 0 offen\nbuffer_store_short v{G1+1}, v{vOUT}, {X_}, 0 offen offset:2\nbuffer_store_short v{G1+2}, v{vOUT+1}, {X_}, 0 offen offset:4")
    A(f"buffer_store_dword v41, v{vOUT+2}, {WS_}, 0 offen")
    A("s_mov_b64 exec, -1")
    A("L_done:")
    if diag is not None:
        wave, st, mult = diag
        stamp(8)
        A(f"s_cmp_lg_u32 s2, 0\ns_cbranch_scc1 L_end\ns_cmp_lg_u32 {sW}, {wave}\ns_cbranch_scc1 L_end")
        A(f"s_waitcnt lgkmcnt(0)\ns_sub_u32 {sT0}, s{sST+2*st}, s{sST}\ns_mul_i32 {sT0}, {sT0}, {mult}\ns_add_u32 {sT0}, {sT0}, 30000")
        A(f"s_min_u32 {sT0}, {sT0}, 200000")
        A(f"L_dg:\ns_memrealtime s[72:73]\ns_waitcnt lgkmcnt(0)\ns_sub_u32 {sT1}, s72, s{sST}\ns_cmp_lt_u32 {sT1}, {sT0}\ns_cbranch_scc1 L_dg")
    if stamps:
        stamp(8)
        A(f"s_mul_i32 {sT0}, s2, 5\ns_add_u32 {sT0}, {sT0}, {sW}\ns_lshl_b32 {sT0}, {sT0}, 6\ns_add_u32 {sT0}, {sT0}, {WS_ST}")
        A(f"s_getreg_b32 {sT1}, hwreg(HW_REG_XCC_ID)")
        A("s_waitcnt lgkmcnt(0)\nv_mov_b32 v4, 0")
        for i in range(9): A(f"v_writelane_b32 v4, s{sST+2*i}, {i}")
        A(f"v_writelane_b32 v4, s42, 9\nv_writelane_b32 v4, s48, 10\nv_writelane_b32 v4, s50, 11\nv_writelane_b32 v4, s47, 12")
        A(f"v_writelane_b32 v4, {sT1}, 15")
        A(f"v_lshlrev_b32 v5, 2, {vLANE}\ns_mov_b64 exec, 0xffff")
        A(f"buffer_store_dword v4, v5, {WS_}, {sT0} offen {'sc1' if diag2 else ''}")
    if diag2:
        role, st, op, role0, st0, op0, mult = diag2
        A(f"s_mov_b64 exec, -1\ns_cmp_lg_u32 s2, 0\ns_cbranch_scc1 L_end\ns_cmp_lg_u32 {sW}, 4\ns_cbranch_scc1 L_end")
        A(f"L_dh:\ns_memrealtime s[72:73]\ns_waitcnt lgkmcnt(0)\ns_sub_u32 {sT1}, s72, s{sST}\ns_cmp_lt_u32 {sT1}, 20000\ns_cbranch_scc1 L_dh")
        A(f"v_mul_u32_u24 v5, 320, {vLANE}")
        for k in range(4):
            A(f"s_mov_b32 {sT0}, {WS_ST + 64*320*k}\nbuffer_load_dword v{8+k}, v5, {WS_}, {sT0} offen offset:{64*role0+4*st0} sc1\nbuffer_load_dword v{12+k}, v5, {WS_}, {sT0} offen offset:{64*role+4*st} sc1")
        A("s_waitcnt vmcnt(0)")
        for k in range(8): A(f"v_subrev_u32 v{8+k}, s{sST}, v{8+k}")
        vop = {"max": "v_max_i32", "min": "v_min_i32", "mean": "v_add_u32"}[op]; vop0 = {"max": "v_max_i32", "min": "v_min_i32", "mean": "v_add_u32"}[op0]
        for k in range(1, 4): A(f"{vop0} v8, v8, v{8+k}\n{vop} v12, v12, v{12+k}")
        allred_lo(vop0, ["v8"]); allred_top(vop0, ["v8"], ["v9"])
        allred_lo(vop, ["v12"]); allred_top(vop, ["v12"], ["v13"])
        A(f"v_readfirstlane_b32 {sT0}, v12\nv_readfirstlane_b32 {sT1}, v8\ns_mul_i32 {sT0}, {sT0}, {mult}\ns_mul_i32 {sT1}, {sT1}, {mult}")
        if op == "mean": A(f"s_ashr_i32 {sT0}, {sT0}, 8")
        if op0 == "mean": A(f"s_ashr_i32 {sT1}, {sT1}, 8")
        A(f"s_sub_u32 {sT0}, {sT0}, {sT1}\ns_add_u32 {sT0}, {sT0}, 30000\ns_min_u32 {sT0}, {sT0}, 200000")
        A(f"L_dg2:\ns_memrealtime s[72:73]\ns_waitcnt lgkmcnt(0)\ns_sub_u32 {sT1}, s72, s{sST}\ns_cmp_lt_u32 {sT1}, {sT0}\ns_cbranch_scc1 L_dg2")
    A("L_end:\ns_endpgm")
    A('.section .rodata,"a"\n.p2align 6')
    A(f".amdhsa_kernel {KN}")
    nv4 = (NV+3)//4*4
    A(f".amdhsa_next_free_vgpr {nv4}\n.amdhsa_next_free_sgpr 102\n.amdhsa_accum_offset {nv4}")
    A(".amdhsa_group_segment_fixed_size 0\n.amdhsa_kernarg_size 96\n.amdhsa_user_sgpr_count 2")
    A(".amdhsa_user_sgpr_kernarg_segment_ptr 1\n.amdhsa_system_sgpr_workgroup_id_x 1")
    A(".amdhsa_float_denorm_mode_32 3\n.end_amdhsa_kernel")
    return A.finish()

if __name__ == "__main__":
    kw = eval("dict(" + (sys.argv[2] if len(sys.argv) > 2 else "") + ")")
    open(sys.argv[1], "w").write(gen(**kw))
```

```python
import sys, os
sys.path.insert(0, os.path.dirname(os.path.abspath(__file__)))
from asmlib import Asm
KN = "parallel_sum__mha_block_cached__glu_gated_reglu__decode_kernel"
HEADER = open("parallel_sum__mha_block_cached__glu_gated_reglu__decode.s.ref").read().split("; Override launch")[0]

HB = 32768*384
TB = 32*HB
WS_EP, WS_LS, WS_H3, WS_XX, WS_PR, WS_QS, WS_H1, WS_ST, WS_H2, WS_SIZE = 0, 0x8000, 0x10000, 0x20000, 0x40000, 0x80000, 0x100000, 0x200000, 0x280000, 0x400000
OOB = 0x40000000
SPIN = 1 << 20

def gen(NSEG=8, G=6, F=5, FH=6, RB=8, pace=6, deep=0, per=8, bs=2, fb=22, fbo=26, pre0=2, pre1=6, trig=13, skip='', xmap=1, xd=(6,5,3,1,-1,-3,-5,-6), xp=4, PI=(6,7,5,4,3,2,1,0), xs=0, np3=1, s3=6, dfirst=1, ab=0, psleep=4,
        spin=SPIN, local=1, lp="nt", pf=None, pfw="yh", pt='sc1', p3s='sc1', p3l='sc1', sched=(4,3,3,3,0,0), ptpos=6, own=1, lsb=17, stamps=False, diag=None, diag2=None, stA=3, stB=29):
    A = Asm()
    NG = 32//NSEG; GS = 8*NSEG; BPS = 16//NSEG; LGS = GS.bit_length()-1
    PAIR = NSEG == 8
    TSTR = GS*4*3072
    assert G < RB and 24 % RB == 0 and NSEG == 8 and G == 6
    if diag2: stamps = True
    timed = stamps or diag is not None
    L_OP = 0; L_W = 8192; L_YP = L_W + 15360; L_U = L_YP + 12800 + 64; L_QP = L_U + 128; L_QB = L_QP + 6400; L_ML = L_QB + 384*NSEG
    L_CT = L_ML + 64; L_SC = L_CT + 64; L_SIZE = L_SC + 16384 + 256
    assert L_SC < 65536
    sW, sHQ, sS, sG, sMEM = "s3", "s4", "s5", "s6", "s7"
    KV_, WS_, TA_, TB_, TC_, X_ = "s[8:11]", "s[16:19]", "s[20:23]", "s[24:27]", "s[28:31]", "s[32:35]"
    mB1, mB0 = "s[12:13]", "s[14:15]"
    pX, pK, pV, pWQ, pWO, pWG, pWU, pWD, pOUT, pDBG, pWS = 36, 38, 40, 42, 44, 48, 50, 52, 54, 56, 58
    sOFF, sOFF0, sIB, sBLK, sLIN, sX, sC, sT0, sT1, sT2, sT3, sOWN = [f"s{r}" for r in range(60, 72)]
    sTAG = "s46"
    sST = 84
    vLANE, vKV, vA, vB = "v0", "v1", "v2", "v3"
    ACC, Q = 8, 32
    T = 44
    RING = 56
    PB = RING + 48
    NV = PB + 96
    t0, t1, t2, t3 = f"v{T}", f"v{T+1}", f"v{T+2}", f"v{T+3}"
    def stamp(i):
        if timed: A(f"s_memrealtime s[{sST+2*i}:{sST+2*i+1}]")
    def srd_hi(name, size):
        b = int(name[2:name.index(":")]); A(f"s_mov_b32 s{b+2}, {size}\ns_mov_b32 s{b+3}, 0x20000")
    def srd_lo(name, ptr):
        b = int(name[2:name.index(":")]); A(f"s_mov_b64 s[{b}:{b+1}], s[{ptr}:{ptr+1}]")
    def srd(name, ptr, size): srd_lo(name, ptr); srd_hi(name, size)
    DPP = "row_mask:0xf bank_mask:0xf"
    PATS = ("quad_perm:[1,0,3,2]", "quad_perm:[2,3,0,1]", "row_half_mirror", "row_mirror")
    def allred_lo(op, vs, n=4):
        for pat in PATS[:n]:
            for v in vs: A(f"{op}_dpp {v}, {v}, {v} {pat} {DPP}")
    def allred_top(op, vs, ts):
        for sw in ("v_permlane16_swap_b32", "v_permlane32_swap_b32"):
            for v, t in zip(vs, ts): A(f"v_mov_b32 {t}, {v}")
            for v, t in zip(vs, ts): A(f"{sw} {t}, {v}")
            for v, t in zip(vs, ts): A(f"{op} {v}, {v}, {t}")
    def redscat(base, n):
        for g in range(n):
            for e in range(4): A(f"v_permlane32_swap_b32 v{base+8*g+e}, v{base+8*g+e+4}")
        for g in range(n):
            for e in range(4): A(f"v_add_f32 v{base+8*g+e}, v{base+8*g+e}, v{base+8*g+e+4}")
        for g in range(n):
            for e in range(2): A(f"v_permlane16_swap_b32 v{base+8*g+e}, v{base+8*g+e+2}")
        for g in range(n):
            for e in range(2): A(f"v_add_f32 v{base+8*g+e}, v{base+8*g+e}, v{base+8*g+e+2}")
        for g in range(n):
            A(f"v_add_f32_dpp v{base+8*g}, v{base+8*g}, v{base+8*g} row_ror:8 row_mask:0xf bank_mask:0x3")
        for g in range(n):
            A(f"v_add_f32_dpp v{base+8*g}, v{base+8*g+1}, v{base+8*g+1} row_ror:8 row_mask:0xf bank_mask:0xc")
    def redscat_lo(bases):
        for S in bases:
            for e in range(4): A(f"v_add_f32_dpp v{S+e}, v{S+e}, v{S+e} row_half_mirror row_mask:0xf bank_mask:0x5")
        for S in bases:
            for e in range(4): A(f"v_add_f32_dpp v{S+e}, v{S+e+4}, v{S+e+4} row_half_mirror row_mask:0xf bank_mask:0xa")
        for S in bases:
            for e in range(4): A(f"v_add_f32_dpp v{S+e}, v{S+e}, v{S+e} quad_perm:[2,3,0,1] {DPP}")
        for S in bases:
            for e in range(2): A(f"v_cndmask_b32 v{S+e}, v{S+e}, v{S+e+2}, {mB1}")
        for S in bases:
            for e in range(2): A(f"v_add_f32_dpp v{S+e}, v{S+e}, v{S+e} quad_perm:[1,0,3,2] {DPP}")
        for S in bases: A(f"v_cndmask_b32 v{S}, v{S}, v{S+1}, {mB0}")
    def axpy(acc, data, n, pl, ph):
        for i in range(n):
            A(f"v_dot2c_f32_bf16 v{acc+2*i}, v{data+i}, {pl}\nv_dot2c_f32_bf16 v{acc+2*i+1}, v{data+i}, {ph}")
    def ld(reg, j): A(f"buffer_load_dwordx4 v[{reg}:{reg+3}], {vKV}, {KV_}, {sOFF} offen offset:{128*j} nt")
    uid = [0]
    PILUT = sum(p << (4*i) for i, p in enumerate(PI))
    assert PI[0] != 7 and sorted(PI) == list(range(8))
    def next_block(last):
        uid[0] += 1; u = uid[0]
        A(f"s_add_u32 {sIB}, {sIB}, 1\ns_and_b32 {sT0}, {sIB}, {BPS-1}\ns_cbranch_scc1 L_nb{u}")
        if not last:
            A(f"s_add_u32 {sOFF}, {sOFF}, {(NG-1)*HB}")
            A(f"s_cmp_lg_u32 {sIB}, 16\ns_cbranch_scc1 L_nb{u}")
            A(f"s_mov_b64 s[8:9], s[{pV}:{pV+1}]\ns_add_u32 {sOFF}, {sOFF0}, {PI[0]*NG*HB}")
        else:
            A(f"s_lshl_b32 {sT0}, {sIB}, 1\ns_lshr_b32 {sT0}, {hex(PILUT)}, {sT0}\ns_and_b32 {sT0}, {sT0}, 7")
            A(f"s_mul_i32 {sOFF}, {sT0}, {NG*HB}\ns_add_u32 {sOFF}, {sOFF}, {sOFF0}")
        A(f"L_nb{u}:")
    def lev(n, f):
        fr = f - int(f)
        return int(f) + (1 if int((n+1)*fr + 1e-9) != int(n*fr + 1e-9) else 0)
    cps = list(range(0, 24, per)) if fb else []
    assert all(c + G + 1 <= 23 for c in cps) and per > G
    PR_, sTHR, vPC, vPO, vPL, vPS = TC_, "s72", "v52", "v53", "v54", "v55"
    def slot(n, last=False):
        uid[0] += 1; u = uid[0]
        fi, fh = lev(n, F), lev(n, FH)
        assert fi <= fh <= G
        def cnt(x): return x - 1 + 2*sum(1 for c in cps if 0 < n - c <= x)
        m = n + G
        if m % 3 == 0:
            A(f"s_add_u32 {sOFF}, {sOFF}, {TSTR}")
            if m == 24: next_block(last)
        if fi < fh: A(f"s_cbranch_vccnz L_dp{u}\ns_waitcnt vmcnt({cnt(fi)})\nL_dp{u}:")
        A(f"s_waitcnt vmcnt({cnt(fh)})")
        ld(RING + 4*(m % RB), m % 3)
        if n - G - 1 in cps:
            if xd:
                A(f"v_readlane_b32 {sT1}, {vPO}, 32\ns_sub_u32 {sT1}, {sT1}, {sTAG}\ns_cmp_lt_u32 {sT1}, 33\ns_cselect_b32 {sTHR}, {sT1}, {sTHR}")
            A(f"v_sub_u32 {vPO}, {vPO}, {vPC}\nv_cmp_gt_u32 vcc, 64, {vPO}\ns_bcnt1_i32_b32 {sT0}, vcc_lo")
            A(f"s_cmp_gt_u32 {sT0}, {sTHR}\ns_cselect_b64 vcc, -1, 0")
            if stamps: A(f"s_and_b32 {sT0}, vcc_lo, 1\ns_add_u32 s47, s47, {sT0}")
            if last and deep: A(f"s_cmp_ge_u32 {sBLK}, {32-deep}\ns_cselect_b64 vcc, -1, vcc")
        if n in cps:
            A(f"v_add_u32 {vPC}, 1, {vPC}\nbuffer_store_dword {vPC}, {vPS}, {PR_}, 0 offen\nbuffer_load_dword {vPO}, {vPL}, {PR_}, 0 offen nt")
    def qk4(acc, data, j):
        for e in range(4):
            if j == 0 and e == 0: A(f"v_dot2_f32_bf16 v{acc}, v{data}, v{Q}, 0")
            else: A(f"v_dot2_f32_bf16 v{acc}, v{data+e}, v{Q+4*j+e}, v{acc}")

    A(HEADER.rstrip())
    A(f"; @launch grid=(256,1,1) block=(320,1,1) lds={L_SIZE}")
    A('.amdgcn_target "amdgcn-amd-amdhsa--gfx950"\n.text')
    A(f".globl {KN}\n.p2align 8\n.type {KN},@function\n{KN}:")
    A("s_cmp_ge_u32 s2, 256\ns_cbranch_scc1 L_end")
    A("s_load_dwordx16 s[36:51], s[0:1], 0\ns_load_dwordx8 s[52:59], s[0:1], 64")
    stamp(0)
    A(f"v_lshrrev_b32 v1, 6, v0\nv_and_b32 {vLANE}, 63, v0\nv_readfirstlane_b32 {sW}, v1\ns_setprio 3")
    A(f"v_mov_b32 v8, 0\nds_write_b32 v8, v8 offset:{L_CT}")
    order = []
    for v in range(8):
        if v not in order: order += [v, v ^ xmap] if (v & 1) == 0 or (xmap & 1) == 0 else [v ^ xmap, v]
    lut = sum(order.index(v) << (4*v) for v in range(8))
    A(f"s_and_b32 {sX}, s2, 7\ns_lshl_b32 {sX}, {sX}, 2\ns_lshr_b32 {sX}, {hex(lut)}, {sX}\ns_and_b32 {sX}, {sX}, 7")
    A(f"s_lshr_b32 {sC}, s2, 3\ns_lshl_b32 {sT0}, {sX}, 5\ns_add_u32 {sLIN}, {sT0}, {sC}")
    A(f"s_lshr_b32 {sG}, {sLIN}, {LGS}\ns_and_b32 {sMEM}, {sLIN}, {GS-1}\ns_and_b32 {sS}, {sMEM}, 7")
    A(f"s_lshr_b32 {sT0}, {sMEM}, 3\ns_mul_i32 {sHQ}, {sT0}, {NG}\ns_add_u32 {sHQ}, {sHQ}, {sG}")
    A(f"s_sub_u32 {sW}, {sW}, 1\ns_cselect_b32 {sW}, 4, {sW}")
    A(f"v_lshrrev_b32 {vA}, 3, {vLANE}\nv_and_b32 {vB}, 7, {vLANE}")
    A(f"v_lshlrev_b32 v7, 4, {vB}")
    A(f"v_mov_b32 v4, 384\nv_mad_u32_u24 {vKV}, {vA}, v4, v7")
    A(f"v_mov_b32 v4, 12288\nv_mad_u32_u24 v4, {vA}, v4, v7")
    A(f"v_mov_b32 v5, 3072\nv_mad_u32_u24 v5, {vA}, v5, v7")
    A(f"v_mov_b32 v6, {OOB}\nv_cmp_gt_u32 vcc, 6, {vB}\nv_cndmask_b32 v5, v6, v5, vcc")
    A(f"v_lshlrev_b32 v6, 1, {vA}\nv_lshlrev_b32 v7, 4, {vLANE}")
    A(f"s_mul_i32 {sT0}, {sS}, 80\ns_lshl_b32 {sT1}, {sW}, 4\ns_add_u32 {sT0}, {sT0}, {sT1}")
    A(f"s_mul_i32 {sT1}, {sT0}, 12288\ns_mul_i32 {sT2}, {sHQ}, 384\ns_add_u32 {sT1}, {sT1}, {sT2}")
    A(f"s_mul_i32 {sT2}, {sT0}, 3072\ns_lshr_b32 {sT3}, {sLIN}, 3\ns_mul_i32 {sT3}, {sT3}, 96\ns_add_u32 {sT2}, {sT2}, {sT3}")
    A(f"s_lshl_b32 {sT0}, {sT0}, 1")
    srd_hi(X_, 1280); srd_hi(TA_, 640*12288); srd_hi(TB_, 640*3072); srd_hi(TC_, 640*3072); srd_hi(WS_, WS_SIZE); srd_hi(KV_, TB)
    A("s_waitcnt lgkmcnt(0)")
    srd_lo(X_, pX)
    XR, WD, WA = RING + 40, RING, ACC
    A(f"buffer_load_dwordx4 v[{XR}:{XR+3}], v7, {X_}, 0 offen")
    A(f"buffer_load_dwordx4 v[{XR+4}:{XR+7}], v7, {X_}, 0 offen offset:1024")
    A(f"buffer_load_ushort v{T+10}, v6, {X_}, {sT0} offen")
    A(f"buffer_load_ushort v{T+11}, v6, {X_}, {sT0} offen offset:16")
    srd_lo(TA_, pWQ); srd_lo(TB_, pWG); srd_lo(TC_, pWU)
    A(f"s_load_dword {sTAG}, s[{pWS}:{pWS+1}], {WS_EP}")
    A("s_barrier")
    for t in range(2):
        for j in range(3):
            A(f"buffer_load_dwordx4 v[{WD+20*t+4*j}:{WD+20*t+4*j+3}], v4, {TA_}, {sT1} offen offset:{128*j} nt")
        A(f"buffer_load_dwordx4 v[{WD+20*t+12}:{WD+20*t+15}], v5, {TB_}, {sT2} offen nt")
        A(f"buffer_load_dwordx4 v[{WD+20*t+16}:{WD+20*t+19}], v5, {TC_}, {sT2} offen nt")
        if t == 0: A(f"s_add_u32 {sT1}, {sT1}, {8*12288}\ns_add_u32 {sT2}, {sT2}, {8*3072}")
    srd_lo(KV_, pK); srd_lo(WS_, pWS)
    A(f"s_lshl_b32 {sT0}, {sMEM}, 2\ns_add_u32 {sT0}, {sT0}, {sW}\ns_mul_i32 {sT0}, {sT0}, 3072")
    A(f"s_mul_i32 {sOFF0}, {sG}, {HB}\ns_add_u32 {sOFF0}, {sOFF0}, {sT0}\ns_mov_b32 {sOFF}, {sOFF0}")
    A(f"s_mov_b32 s12, 0xcccccccc\ns_mov_b32 s13, 0xcccccccc\ns_mov_b32 s14, 0xaaaaaaaa\ns_mov_b32 s15, 0xaaaaaaaa")
    A(f"s_and_b32 {sOWN}, {sX}, 1\ns_xor_b32 {sOWN}, {sOWN}, {own}")
    A(f"s_cmp_eq_u32 {sW}, 4\ns_cbranch_scc1 L_ln\ns_setprio 1\nL_ln:\ns_waitcnt vmcnt(10) lgkmcnt(0)")
    A(f"s_mul_i32 {sTAG}, {sTAG}, 1664525\ns_add_u32 {sTAG}, {sTAG}, 1013904223")
    XF = WA
    for i in range(8):
        A(f"v_lshlrev_b32 v{XF+2*i}, 16, v{XR+i}\nv_and_b32 v{XF+2*i+1}, 0xffff0000, v{XR+i}")
    l0, l1, l2, l3 = "v24", "v25", "v26", "v27"
    A(f"v_add_f32 {l0}, v{XF}, v{XF+1}\nv_add_f32 {l1}, v{XF+2}, v{XF+3}")
    for i in range(4, 16, 2): A(f"v_add_f32 {l0}, {l0}, v{XF+i}\nv_add_f32 {l1}, {l1}, v{XF+i+1}")
    A(f"v_add_f32 {l0}, {l0}, {l1}")
    allred_lo("v_add_f32", [l0]); allred_top("v_add_f32", [l0], [l1])
    A(f"v_mul_f32 {l0}, 0x3acccccd, {l0}")
    for i in range(16): A(f"v_sub_f32 v{XF+i}, v{XF+i}, {l0}")
    A(f"v_mul_f32 {l1}, v{XF}, v{XF}\nv_mul_f32 {l2}, v{XF+8}, v{XF+8}")
    for i in range(1, 8): A(f"v_fmac_f32 {l1}, v{XF+i}, v{XF+i}\nv_fmac_f32 {l2}, v{XF+8+i}, v{XF+8+i}")
    A(f"v_cmp_gt_u32 vcc, 16, {vLANE}\nv_cndmask_b32 {l2}, 0, {l2}, vcc\nv_add_f32 {l1}, {l1}, {l2}")
    allred_lo("v_add_f32", [l1]); allred_top("v_add_f32", [l1], [l2])
    A(f"v_mul_f32 {l1}, 0x3acccccd, {l1}")
    A(f"v_readfirstlane_b32 {sT0}, {l0}\nv_readfirstlane_b32 {sT1}, {l1}\ns_mul_i32 {sT0}, {sT0}, 0x9E3779B1\ns_add_u32 {sT0}, {sT0}, {sT1}")
    A(f"s_lshl_b32 {sT0}, {sT0}, 2\ns_add_u32 {sTAG}, {sTAG}, {sT0}")
    A(f"v_cvt_pk_bf16_f32 {l0}, 0, {l0}\nv_cvt_pk_bf16_f32 {l1}, 0, {l1}")
    A(f"v_add_f32 {l1}, 0x3727c5ac, {l1}\nv_cvt_pk_bf16_f32 {l1}, 0, {l1}\nv_sqrt_f32 {l1}, {l1}")
    A(f"v_cvt_pk_bf16_f32 {l1}, 0, {l1}\nv_rcp_f32 {l2}, {l1}")
    for t in range(2):
        xr = f"v{T+10+t}"
        A(f"v_lshlrev_b32 {xr}, 16, {xr}\nv_sub_f32 {xr}, {xr}, {l0}\nv_cvt_pk_bf16_f32 {xr}, 0, {xr}")
        A(f"v_mul_f32 {l3}, {xr}, {l2}\nv_fma_f32 {xr}, -{l3}, {l1}, {xr}\nv_fma_f32 {xr}, {xr}, {l2}, {l3}")
        A(f"v_cvt_pk_bf16_f32 v{T+6+2*t}, {xr}, 0\nv_cvt_pk_bf16_f32 v{T+7+2*t}, 0, {xr}")
    for i in range(40): A(f"v_mov_b32 v{WA+i}, 0")
    stamp(1)
    sD = [f"s{r}" for r in range(74, 80)]; sL = ["s80", "s81", "s82"]
    def dma_setup():
        srd(TA_, pWO, 6144*1280); srd(TB_, pWD, 1536*1280)
        A(f"s_lshl_b32 {sT2}, {sS}, 3\ns_lshr_b32 {sT1}, {sC}, 3\ns_lshl_b32 {sT1}, {sT1}, 1\ns_add_u32 {sT2}, {sT2}, {sT1}")
        A(f"s_mul_i32 {sT1}, {sG}, 192\ns_add_u32 {sT2}, {sT2}, {sT1}")
        A(f"s_lshl_b32 {sT0}, {sW}, 1\ns_add_u32 {sT0}, {sT0}, {sOWN}\ns_lshl_b32 {sT0}, {sT0}, 2\ns_lshr_b32 {sT0}, {hex(PILUT)}, {sT0}\ns_and_b32 {sT0}, {sT0}, 7\ns_mul_i32 {sT0}, {sT0}, {NG*192}\ns_add_u32 {sT0}, {sT0}, {sT2}")
        A(f"s_mul_i32 {sL[0]}, {sT0}, 1280\ns_add_u32 {sL[1]}, {sL[0]}, {64*1280}\ns_add_u32 {sL[2]}, {sL[0]}, {128*1280}")
        A(f"s_lshl_b32 {sT0}, {sW}, 6\ns_add_u32 {sT0}, {sT0}, {sT2}\ns_add_u32 {sT0}, {sT0}, {PI[7]*NG*192}\ns_mul_i32 {sD[2]}, {sT0}, 1280\ns_mul_i32 {sD[3]}, {sW}, 2560")
        A(f"s_mul_i32 {sT0}, {sLIN}, 7680\ns_lshl_b32 {sD[5]}, {sW}, 11\ns_add_u32 {sD[4]}, {sT0}, {sD[5]}")
    def w(paced):
        if paced: A(f"s_waitcnt vmcnt({pace-1})")
    def op_pb(n):
        def f(paced):
            if n and n % 3 == 0: A(f"s_add_u32 {sOFF}, {sOFF}, {TSTR}")
            w(paced); ld(PB + 4*n, n % 3)
        return f
    def op_wo(jj, i, off=0, base=7680):
        def f(paced):
            if i == 0: A(f"s_add_u32 m0, {sD[off+1]}, {L_W+base+2560*jj}")
            if i == 2: A("s_mov_b32 exec_hi, 0")
            w(paced); A(f"buffer_load_dwordx4 v7, {TA_}, {sD[off]} offen offset:{1024*i} nt lds")
            if i == 2: A(f"s_mov_b32 exec_hi, -1\ns_add_u32 {sD[off]}, {sD[off]}, {64*1280}")
        return f
    def op_wd(i):
        def f(paced):
            if i == 0: A(f"s_add_u32 m0, {sD[5]}, {L_W}")
            else: A(f"s_cmp_eq_u32 {sW}, 3\ns_cselect_b32 exec_hi, 0, -1")
            w(paced); A(f"buffer_load_dwordx4 v7, {TB_}, {sD[4]} offen offset:{1024*i} nt lds")
            if i: A("s_mov_b32 exec_hi, -1")
        return f
    def op_s4(paced):
        A(f"s_cmp_eq_u32 {sW}, 3\ns_cbranch_scc1 L_nos4")
        for i in range(3): op_wo(0, i, 2, 7680)(paced)
        A("L_nos4:")
    dma = [op_wd(0), op_wd(1), op_s4]
    pbs = [op_pb(n) for n in range(24)]
    ops = dma + pbs if dfirst else pbs + dma
    assert pre0 <= 2 or not dfirst
    dma_setup()
    A(f"s_waitcnt vmcnt(5)\ns_cmp_eq_u32 {sW}, 4\ns_cbranch_scc1 L_nopre0")
    for n in range(pre0): ops[n](False)
    A("L_nopre0:")
    axpy(WA, WD, 20, f"v{T+6}", f"v{T+7}")
    A(f"s_cmp_eq_u32 {sW}, 4\ns_cbranch_scc1 L_nopre1\ns_waitcnt vmcnt({pre0})")
    for n in range(pre0, pre1): ops[n](False)
    A("s_branch L_pre2\nL_nopre1:\ns_waitcnt vmcnt(0)\nL_pre2:")
    axpy(WA, WD+20, 20, f"v{T+8}", f"v{T+9}")
    redscat(WA, 5)
    A(f"s_mul_i32 {sT0}, {sW}, 1280\nv_lshl_add_u32 v4, {vLANE}, 2, {sT0}")
    for k in range(5): A(f"ds_write_b32 v4, v{WA+8*k} offset:{L_QP+256*k}")
    A(f"v_mov_b32 v5, 0\nv_mov_b32 v6, 1\ns_mov_b64 exec, 1\nds_add_u32 v5, v6 offset:{L_CT}\ns_mov_b64 exec, -1")
    stamp(2)
    if ab: A("s_barrier")
    A(f"s_cmp_eq_u32 {sW}, 4\ns_cbranch_scc1 L_svc")
    for n in range(pre1, len(ops)):
        ops[n](True)
        if n == trig: A(f"v_mov_b32 v6, 64\ns_mov_b64 exec, 1\nds_add_u32 v5, v6 offset:{L_CT}\ns_mov_b64 exec, -1")
    A(f"s_mov_b32 {sIB}, 1")
    for m in range(G):
        if m % 3 == 0: A(f"s_add_u32 {sOFF}, {sOFF}, {TSTR}")
        A(f"s_waitcnt vmcnt({pace-1})"); ld(RING + 4*m, m % 3)
    vQA, vSA = "v4", "v5"
    A(f"v_lshlrev_b32 {vQA}, 4, {vB}\nv_add_u32 {vQA}, {L_QB}, {vQA}")
    A(f"s_lshl_b32 {sT0}, {sW}, 12\ns_add_u32 {sT0}, {sT0}, {L_SC}\nv_lshl_add_u32 {vSA}, {vLANE}, 2, {sT0}")
    A(f"s_lshl_b32 {sT0}, {sX}, 2\ns_add_u32 {sT0}, {sT0}, {sW}\ns_mul_i32 {sT0}, {sT0}, 4224\ns_add_u32 {sT0}, {sT0}, {WS_PR}")
    A(f"s_add_u32 s28, s{pWS}, {sT0}\ns_addc_u32 s29, s{pWS+1}, 0\ns_mov_b32 s30, {132 if xd else 128}")
    A(f"v_lshlrev_b32 {vPL}, 2, {vLANE}\nv_mov_b32 {vPS}, 0x1000\nv_cmp_eq_u32 vcc, {sC}, {vLANE}\nv_cndmask_b32 {vPS}, {vPS}, {vPL}, vcc\nv_mov_b32 {vPC}, {sTAG}")
    A(f"s_getreg_b32 {sTHR}, hwreg(HW_REG_XCC_ID)\ns_bitcmp1_b32 {sTHR}, 0\ns_cselect_b32 {sTHR}, {fbo}, {fb}")
    A(f"s_add_u32 {sT0}, {sW}, {sOWN}\ns_cmp_eq_u32 {sT0}, 4\ns_cselect_b32 s22, 0, s22\ns_cselect_b32 {sL[0]}, 0, {sL[0]}\ns_cselect_b32 {sL[1]}, 0, {sL[1]}\ns_cselect_b32 {sL[2]}, 0, {sL[2]}")
    A(f"s_mov_b64 vcc, 0\ns_mov_b32 s47, 0")
    stamp(3)
    A("s_barrier")
    for j in range(3): A(f"ds_read_b128 v[{Q+4*j}:{Q+4*j+3}], {vQA} offset:{128*j}")
    A("s_waitcnt lgkmcnt(0)")
    stamp(4)
    SA, R, RT, S2 = ACC, ACC + 2, ACC + 6, ACC + 8
    def k_after_tile(t):
        A(f"v_add_f32_dpp v{R+(t&3)}, v{SA+(t&1)}, v{SA+(t&1)} row_half_mirror row_mask:0xf bank_mask:{'0xa' if t >= 4 else '0x5'}")
    def k_stage2(e): A(f"v_add_f32_dpp v{R+e}, v{R+e}, v{R+e} quad_perm:[2,3,0,1] {DPP}")
    def k_fin(which):
        if which == 0:
            k_after_tile(7); k_stage2(3)
            A(f"v_cndmask_b32 v{RT+1}, v{R+1}, v{R+3}, {mB1}")
        else:
            A(f"v_add_f32_dpp v{RT+1}, v{RT+1}, v{RT+1} quad_perm:[1,0,3,2] {DPP}\nv_cndmask_b32 v{RT}, v{RT}, v{RT+1}, {mB0}")
            A(f"ds_write_b32 {vSA}, v{RT}\nv_add_u32 {vSA}, 256, {vSA}")
    def k_body(first):
        for n in range(24):
            t, j = n//3, n % 3
            slot(n)
            if not first:
                if n < 2: k_fin(n)
                if n == 0: A("s_waitcnt lgkmcnt(0)")
                if n == bs: A("s_waitcnt lgkmcnt(0)\ns_barrier")
            else: qk4(S2 + t, PB + 4*n, j)
            if j == 0 and t >= 1: k_after_tile(t-1)
            if j == 1 and t >= 5: k_stage2(t-5)
            if n == 23: A(f"v_cndmask_b32 v{RT}, v{R}, v{R+2}, {mB1}")
            if n == 20: A(f"s_add_u32 {sBLK}, {sBLK}, 1\ns_and_b32 {sT0}, {sBLK}, {BPS-1}\ns_cselect_b32 {sT0}, 0, 384\nv_add_u32 {vQA}, {sT0}, {vQA}")
            if "c" not in skip: qk4(SA + (t & 1), RING + 4*(n % RB), j)
            if n == 23: A(f"v_add_f32_dpp v{RT}, v{RT}, v{RT} quad_perm:[1,0,3,2] {DPP}")
            if t == 7: A(f"ds_read_b128 v[{Q+4*j}:{Q+4*j+3}], {vQA} offset:{128*j}")
    A(f"s_mov_b32 {sBLK}, 1")
    k_body(True)
    redscat_lo([S2])
    A(f"ds_write_b32 {vSA}, v{S2}\nv_add_u32 {vSA}, 256, {vSA}")
    A("L_k:")
    k_body(False)
    def stab(t): A(f"s_cmp_lg_u32 {sBLK}, {stA}\ns_cbranch_scc1 L_st1{t}\ns_memrealtime s[42:43]\nL_st1{t}:\ns_cmp_lg_u32 {sBLK}, {stB}\ns_cbranch_scc1 L_st2{t}\ns_memrealtime s[48:49]\nL_st2{t}:")
    if stamps: stab("k")
    A(f"s_cmp_lt_u32 {sBLK}, 16\ns_cbranch_scc1 L_k")
    if stamps: A("s_memrealtime s[50:51]")
    vP, vPN, pl, ph, vOA, RV = "v44", "v45", "v46", "v47", "v4", Q
    k_fin(0); k_fin(1)
    A(f"v_subrev_u32 {vSA}, 4096, {vSA}\nds_read_b32 {vPN}, {vSA} offset:{512*PI[0]}")
    A(f"s_lshl_b32 {sT0}, {sW}, 10\ns_add_u32 {sT0}, {sT0}, {L_OP}\nv_add_u32 {vOA}, {sT0}, v7\ns_mov_b32 s73, 0\ns_waitcnt lgkmcnt(0)")
    for i in range(24): A(f"v_mov_b32 v{ACC+i}, 0")
    def v_a(g, zero=True):
        b = ACC + 8*g
        for e in range(4): A(f"v_permlane32_swap_b32 v{b+e}, v{b+e+4}")
        for e in range(4): A(f"v_add_f32 v{RV+4*g+e}, v{b+e}, v{b+e+4}")
        if zero:
            for e in range(8): A(f"v_mov_b32 v{b+e}, 0")
    def v_b(gs):
        for g in gs:
            for e in range(2): A(f"v_permlane16_swap_b32 v{RV+4*g+e}, v{RV+4*g+e+2}")
        for g in gs:
            for e in range(2): A(f"v_add_f32 v{RV+4*g+e}, v{RV+4*g+e}, v{RV+4*g+e+2}")
        for g in gs: A(f"v_add_f32_dpp v{48+g}, v{RV+4*g}, v{RV+4*g} row_ror:8 row_mask:0xf bank_mask:0x3")
        for g in gs: A(f"v_add_f32_dpp v{48+g}, v{RV+4*g+1}, v{RV+4*g+1} row_ror:8 row_mask:0xf bank_mask:0xc")
    def v_out(): A(f"ds_write_b96 {vOA}, v[48:50]\nv_xor_b32 {vOA}, 4096, {vOA}")
    def cond(lab, code): A(f"s_cmp_eq_u32 s73, 0\ns_cbranch_scc1 {lab}"); code(); A(f"{lab}:")
    def v_comp(n):
        if n % 3 == 0:
            t = n//3
            A(f"v_mov_b32_dpp {pl}, {vP} row_newbcast:{t} row_mask:0xf bank_mask:0x3")
            A(f"v_mov_b32_dpp {pl}, {vP} row_newbcast:{8+t} row_mask:0xf bank_mask:0xc")
            A(f"v_lshlrev_b32 {ph}, 16, {pl}")
        if "c" not in skip: axpy(ACC + 8*(n % 3), RING + 4*(n % RB), 4, pl, ph)
    A("L_v:")
    for n in range(24):
        if n == 24 - G: A(f"s_cmp_eq_u32 {sBLK}, 31\ns_cbranch_scc1 L_vend")
        slot(n, True)
        if n == 0: A(f"s_waitcnt lgkmcnt(0)\nv_mov_b32 {vP}, {vPN}"); cond("L_c0", lambda: v_a(2))
        if n == 1: cond("L_c1", lambda: (v_b([2]), v_out()))
        if n == bs: A("s_waitcnt lgkmcnt(0)\ns_barrier")
        if n == 20:
            A(f"s_add_u32 {sT1}, {sBLK}, 1\ns_and_b32 {sT0}, {sT1}, {BPS-1}\ns_cselect_b32 s73, 0, 1")
            A(f"s_and_b32 {sT1}, {sT1}, 14\ns_lshl_b32 {sT1}, {sT1}, 1\ns_lshr_b32 {sT1}, {hex(PILUT)}, {sT1}\ns_and_b32 {sT1}, {sT1}, 7")
            A(f"s_lshl_b32 {sT1}, {sT1}, 1\ns_add_u32 {sT1}, {sT1}, {sT0}\ns_lshl_b32 {sT1}, {sT1}, 8\nv_add_u32 v51, {sT1}, {vSA}\nds_read_b32 {vPN}, v51")
        v_comp(n)
        if n == 21: cond("L_c21", lambda: (v_a(0), v_b([0])))
        if n == 22: cond("L_c22", lambda: (v_a(1), v_b([1])))
    A(f"s_add_u32 {sBLK}, {sBLK}, 1")
    if stamps: stab("v"); A(f"; SSBYTES={(stB-stA)*8*3072}")
    A("s_branch L_v")
    A("L_vend:")
    W4, W1, YA, UF = PB, PB + 24, PB + 32, PB + 44
    late = []
    for r in range(6):
        late.append(f"buffer_load_dwordx4 v[{W4+4*r}:{W4+4*r+3}], v7, {TA_}, {sL[r//2]} offen offset:{1280*(r%2)} nt")
        late.append(f"buffer_load_dword v{W1+r}, {vPL}, {TA_}, {sL[r//2]} offen offset:{1024+1280*(r%2)} nt")
    late.insert(ptpos, f"buffer_load_dword v{W1+6}, v7, {WS_}, {sT1} offen {pt}")
    assert sum(sched) == 13 and len(sched) == G
    A(f"s_lshl_b32 {sT1}, {sLIN}, 12\ns_lshl_b32 {sT0}, {sW}, 10\ns_add_u32 {sT1}, {sT1}, {sT0}\ns_add_u32 {sT1}, {sT1}, {WS_H2}")
    done = 0
    for n in range(24 - G, 24):
        A(f"s_waitcnt vmcnt({23 - n + 2*sum(1 for c in cps if n - G <= c < 24 - G) + done})")
        for i in range(sched[n - 24 + G]): A(late[done]); done += 1
        v_comp(n)
        if n == 23: stamp(5)
        if n >= 21: v_a(n - 21, False); v_b([n - 21])
    v_out()
    A(f"s_lshl_b32 {sT0}, {sW}, 4\nv_mov_b32 v8, {sT0}\ns_waitcnt lgkmcnt(0)\ns_barrier")
    stamp(6)
    LW = PB + 56
    A(f"ds_read_b128 v[12:15], v8 offset:{L_U}")
    A(f"s_mul_i32 {sT0}, {sW}, 640\nv_mul_u32_u24 v11, 80, {vA}\nv_mad_u32_u24 v11, {vB}, 12, v11\nv_add_u32 v11, {sT0}, v11\nv_lshrrev_b32 v40, 1, v11")
    for r in range(6):
        for e in range(3): A(f"ds_read_u16 v{LW+10+3*r+e}, v40 offset:{L_W+7680+1280*r+2*e}")
        if r == 3: A("s_waitcnt lgkmcnt(0)")
    A(f"s_mul_i32 {sT0}, {sW}, 2560\nv_lshl_add_u32 v9, {vLANE}, 5, {sT0}\nv_lshl_add_u32 v10, {vLANE}, 3, {sT0}\nv_add_u32 v11, {L_YP}, v11")
    A(f"v_mov_b32 v19, {sTAG}")
    A("v_mov_b32 v8, 0\nv_mov_b32 v41, 0x10000")
    for i in range(10): A(f"v_mov_b32 v{YA+i}, 0")
    for p in range(3):
        A(f"v_and_b32 v{UF+4*p}, 0xffff, v{12+p}\nv_lshlrev_b32 v{UF+4*p+1}, 16, v{12+p}\nv_lshrrev_b32 v{UF+4*p+2}, 16, v{12+p}\nv_and_b32 v{UF+4*p+3}, 0xffff0000, v{12+p}")
    A(f"v_readfirstlane_b32 {sT3}, v15\ns_waitcnt lgkmcnt(0)")
    for p in range(3):
        for e in range(3): A(f"v_lshl_or_b32 v{LW+3*p+e}, v{LW+10+6*p+3+e}, 16, v{LW+10+6*p+e}")
    for r in range(6):
        pos = [i for i, l in enumerate(late) if l.startswith(f"buffer_load_dword v{W1+r},")][0]
        A(f"s_waitcnt vmcnt({12-pos})")
        axpy(YA, W4 + 4*r, 4, f"v{UF+2*r}", f"v{UF+2*r+1}"); axpy(YA + 8, W1 + r, 1, f"v{UF+2*r}", f"v{UF+2*r+1}")
    A(f"ds_write_b128 v9, v[{YA}:{YA+3}] offset:{L_YP}\nds_write_b128 v9, v[{YA+4}:{YA+7}] offset:{L_YP+16}")
    A(f"ds_write_b64 v10, v[{YA+8}:{YA+9}] offset:{L_YP+2048}\ns_mov_b64 exec, 1\nds_add_u32 v8, v41 offset:{L_CT}\ns_mov_b64 exec, -1")
    A(f"L_wy:\nds_read_b32 v41, v8 offset:{L_CT}\ns_waitcnt lgkmcnt(0)\nv_cmp_gt_u32 vcc, 0x40000, v41\ns_cbranch_vccnz L_wy")
    for k in range(5):
        A(f"ds_read2_b32 v[{20+4*k}:{21+4*k}], v11 offset0:0 offset1:1\nds_read_b32 v{22+4*k}, v11 offset:8")
        if k < 4: A("v_add_u32 v11, 2560, v11")
    A("s_waitcnt lgkmcnt(0)")
    for e in range(3): A(f"v_add_f32 v{20+e}, v{20+e}, v{24+e}\nv_add_f32 v{28+e}, v{28+e}, v{32+e}")
    for e in range(3): A(f"v_add_f32 v{20+e}, v{20+e}, v{36+e}")
    for e in range(3): A(f"v_add_f32 v{16+e}, v{20+e}, v{28+e}")
    stamp(7)
    A(f"s_barrier\nds_read_b96 v[12:14], v8 offset:{L_U+64}\ns_waitcnt lgkmcnt(0)")
    for p in range(3):
        for e in range(3): A(f"v_dot2c_f32_bf16 v{16+e}, v{12+p}, v{LW+3*p+e}")
    A(f"s_cmp_eq_u32 {sT3}, 0\ns_cbranch_scc1 L_yr\nbuffer_store_dwordx4 v[16:19], v7, {WS_}, {sT1} offen\ns_branch L_done")
    A(f"L_yr:\nbuffer_store_dwordx4 v[16:19], v7, {WS_}, {sT1} offen sc1\ns_branch L_done")
    A("L_svc:")
    G0 = RING; G1 = G0 + 8
    vQW, vSC, vML, vOP, vLS, vM, vZ, vZK, vXA = [f"v{32+i}" for i in range(7)] + ["v40", "v42"]
    ZS, ZM = 52, 8
    vWA, vH1S, vH1G, vYG, vH3, vYW, vYR, vOUT, XV = "v16", "v17", "v18", "v19", "v20", "v21", "v29", 22, 26
    P0, P1, YY = PB, PB + 32, PB + 64
    YT = YY + 12
    LP = 64//NSEG; LLP = LP.bit_length()-1; NLS = GS//LP; NR = 4*BPS
    sF = [f"s{r}" for r in (20, 21, 22, 24, 25, 26, 28, 29)]
    sLOC, sHD, sTG2, sH1S, sH1G, sYS, sYG, sH3S, sH3G, sXS, sXG, sFL = [f"s{r}" for r in range(72, 84)]
    sUU = ["s60", "s61", "s62"]
    sSCALE, sLOG2E = "s12", "s13"
    def store2(lab, stores):
        A(f"s_cmp_eq_u32 {sLOC}, 0\ns_cbranch_scc1 {lab}_r"); stores(""); A(f"s_branch {lab}_d\n{lab}_r:"); stores("sc1"); A(f"{lab}_d:")
    def poll(lab, loads, tags, sleep=0, first=None, tag=sTAG, loc=False):
        A(f"s_mov_b32 {sT2}, {spin}")
        if first is not None: loads(first); A(f"s_branch {lab}_chk")
        elif sleep: A(f"s_branch {lab}_go")
        A(f"{lab}:")
        if sleep: A(f"s_sleep {sleep}\n{lab}_go:")
        if loc and lp != "sc1":
            A(f"s_cmp_eq_u32 {sLOC}, 0\ns_cbranch_scc1 {lab}_rm"); loads(lp); A(f"s_branch {lab}_chk\n{lab}_rm:")
        loads("sc1")
        A(f"{lab}_chk:\ns_waitcnt vmcnt(0)")
        if len(tags) == 1: A(f"v_cmp_ne_u32 vcc, {tag}, {tags[0]}")
        else:
            A(f"v_xor_b32 {t0}, {tag}, {tags[0]}")
            for t in tags[1:]: A(f"v_bitop3_b32 {t0}, {t}, {tag}, {t0} bitop3:0xbe")
            A(f"v_cmp_ne_u32 vcc, 0, {t0}")
        A(f"s_cbranch_vccz {lab}_done\ns_sub_u32 {sT2}, {sT2}, 1\ns_cbranch_scc0 {lab}\n{lab}_done:")
    A(f"v_lshlrev_b32 v4, 2, {vLANE}")
    A(f"L_wq:\nds_read_b32 v6, v5 offset:{L_CT}\ns_waitcnt lgkmcnt(0)\nv_and_b32 v6, 7, v6\nv_cmp_gt_u32 vcc, 5, v6\ns_cbranch_vccnz L_wq")
    for w in range(5):
        for k in range(5): A(f"ds_read_b32 v{G0+5*w+k}, v4 offset:{L_QP+1280*w+256*k}")
        if w == 2: A("s_waitcnt lgkmcnt(0)")
    A("s_waitcnt lgkmcnt(0)")
    for w in range(1, 5):
        for k in range(5): A(f"v_add_f32 v{G0+k}, v{G0+k}, v{G0+5*w+k}")
    A(f"v_lshl_add_u32 v5, {vB}, 3, {vA}\nv_lshlrev_b32 {vQW}, 1, v5\nv_lshlrev_b32 v5, 4, v5")
    A(f"v_mov_b32 v48, v{G0+3}\nv_mov_b32 v49, v{G0+4}\nv_mov_b32 v{G0+3}, {sTAG}\nv_mov_b32 v50, {sTAG}\nv_mov_b32 v51, {sTAG}")
    A(f"s_lshl_b32 {sT0}, {sLIN}, 11\ns_add_u32 {sT0}, {sT0}, {WS_QS}")
    A(f"buffer_store_dwordx4 v[{G0}:{G0+3}], v7, {WS_}, {sT0} offen sc1")
    stamp(3)
    A(f"v_add_u32 {vSC}, {L_SC}, v4\nv_mov_b32 {vML}, {L_ML}\nv_add_u32 {vOP}, {L_OP}, v7\nv_mov_b32 {vZ}, 0")
    A(f"s_mov_b32 {sSCALE}, 0x3d93cd3a\ns_mov_b32 {sLOG2E}, 0x3fb8aa3b\ns_mov_b32 {sBLK}, -1")
    A(f"s_lshl_b32 {sHD}, {sG}, {11+LGS}\ns_add_u32 {sHD}, {sHD}, {WS_QS}")
    A(f"L_wt:\ns_sleep 2\nds_read_b32 v10, {vZ} offset:{L_CT}\ns_waitcnt lgkmcnt(0)\nv_cmp_gt_u32 vcc, 256, v10\ns_cbranch_vccnz L_wt")
    A("s_branch L_gq0")
    A("L_blk:")
    if xd:
        A(f"s_cmp_lg_u32 {sC}, 0\ns_cbranch_scc1 L_noxf\ns_and_b32 {sT0}, {sBLK}, {xp-1}\ns_cmp_lg_u32 {sT0}, {xp-1}\ns_cbranch_scc1 L_noxf\ns_cmp_gt_u32 {sBLK}, 28\ns_cbranch_scc1 L_noxf")
        A(f"s_add_u32 {sT0}, {sTAG}, {sBLK}\nv_mov_b32 v12, {sT0}\nv_mul_u32_u24 v13, 4224, {vLANE}\ns_mul_i32 {sT1}, {sX}, 4224\ns_add_u32 {sT1}, {sT1}, {WS_PR+0x30000}")
        A(f"s_mov_b64 exec, 1\nbuffer_store_dword v12, v13, {WS_}, {sT1} offen sc1\ns_mov_b32 {sT1}, {WS_PR+0x30000}")
        if xs < 0: A("s_waitcnt vmcnt(0)")
        if xs > 0: A(f"s_sleep {xs}")
        A(f"s_mov_b64 exec, 0xff\nbuffer_load_dword v14, v13, {WS_}, {sT1} offen sc1\ns_waitcnt vmcnt(0)")
        lutv = sum((d + 8) << (4*i) for i, d in enumerate(xd))
        A(f"v_sub_u32 v14, v14, v12\nv_cmp_gt_u32 vcc, 64, v14\ns_bitset0_b32 vcc_lo, {sX}\ns_bcnt1_i32_b64 {sT0}, vcc\ns_lshl_b32 {sT0}, {sT0}, 2")
        A(f"s_lshr_b32 {sT0}, {hex(lutv)}, {sT0}\ns_and_b32 {sT0}, {sT0}, 15\ns_getreg_b32 {sT1}, hwreg(HW_REG_XCC_ID)\ns_bitcmp1_b32 {sT1}, 0\ns_cselect_b32 {sT1}, {fbo-8}, {fb-8}")
        A(f"s_add_u32 {sT0}, {sT0}, {sT1}\ns_min_u32 {sT0}, {sT0}, 32\ns_add_u32 {sT0}, {sT0}, {sTAG}\nv_mov_b32 v12, {sT0}")
        A(f"s_mul_i32 {sT1}, {sX}, {4*4224}\ns_add_u32 {sT1}, {sT1}, {WS_PR+128}\ns_mov_b64 exec, 0xf")
        A(f"buffer_store_dword v12, v13, {WS_}, {sT1} offen\ns_mov_b64 exec, -1\nL_noxf:")
    A(f"s_cmp_le_u32 {sBLK}, 16\ns_cbranch_scc1 L_kpart\ns_and_b32 {sT0}, {sBLK}, {BPS-1}\ns_cbranch_scc1 L_vmid")
    stamp(5)
    for w in range(4): A(f"ds_read_b96 v[{G0+4*w}:{G0+4*w+2}], {vOP} offset:{1024*w}")
    A(f"v_xor_b32 {vOP}, 4096, {vOP}\nv_mov_b32 v{G0+19}, {sTG2}\ns_waitcnt lgkmcnt(0)")
    for k in range(3): A(f"v_add_f32 v{G0+k}, v{G0+k}, v{G0+4+k}\nv_add_f32 v{G0+8+k}, v{G0+8+k}, v{G0+12+k}")
    for k in range(3): A(f"v_add_f32 v{G0+k}, v{G0+k}, v{G0+8+k}")
    for k in range(3): A(f"v_mul_f32 v{G0+16+k}, {sF[0]}, v{G0+k}")
    if "h" in skip: A(f"s_cmp_lg_u32 {sBLK}, 32\ns_cbranch_scc1 L_p1_done")
    store2("L_s1", lambda p: A(f"buffer_store_dwordx4 v[{G0+16}:{G0+19}], {vH1S}, {WS_}, {sH1S} offen {p}"))
    poll("L_p1", lambda p: A(f"buffer_load_dwordx4 v[{G0}:{G0+3}], {vH1G}, {WS_}, {sH1G} offen {p}"), [f"v{G0+3}"], tag=sTG2, loc=True)
    stamp(6)
    A(f"v_mov_b32 v{G0+3}, 0\nv_permlane32_swap_b32 v{G0}, v{G0+1}\nv_permlane32_swap_b32 v{G0+2}, v{G0+3}")
    A(f"v_add_f32 v{G0}, v{G0}, v{G0+1}\nv_add_f32 v{G0+2}, v{G0+2}, v{G0+3}\nv_permlane16_swap_b32 v{G0}, v{G0+2}\nv_add_f32 {vZK}, v{G0}, v{G0+2}")
    allred_lo("v_add_f32", [vZK], 3)
    A(f"s_cmp_eq_u32 {sBLK}, 32\ns_cbranch_scc1 L_tail")
    for i in range(NSEG-1): A(f"s_mov_b32 {sF[i]}, {sF[i+1]}")
    A(f"s_add_u32 {sTG2}, {sTG2}, 1\ns_xor_b32 {sH1S}, {sH1S}, 1024\ns_xor_b32 {sH1G}, {sH1G}, 1024")
    A(f"s_lshr_b32 {sT0}, {sBLK}, 1\ns_xor_b32 {sT0}, {sT0}, {sOWN}\ns_bitcmp1_b32 {sT0}, 0\ns_cbranch_scc0 L_notmine")
    A(f"v_mov_b32 v{ZM}, v{ZM+1}\nv_mov_b32 v{ZM+1}, v{ZM+2}\nv_mov_b32 v{ZM+2}, {vZK}\ns_cmp_eq_u32 {sBLK}, 28\ns_cbranch_scc0 L_next\ns_branch L_send")
    A(f"L_notmine:\nv_mov_b32 v{ZS}, v{ZS+1}\nv_mov_b32 v{ZS+1}, v{ZS+2}\nv_mov_b32 v{ZS+2}, {vZK}\ns_cmp_ge_u32 {sBLK}, 28\ns_cbranch_scc0 L_next")
    A("L_send:")
    if "x" in skip: A("s_branch L_next")
    A(f"s_mov_b32 exec_lo, 0x01010101\ns_mov_b32 exec_hi, 0x01010101")
    A(f"buffer_store_dwordx4 v[{ZS}:{ZS+3}], {vXA}, {WS_}, {sXS} offen sc1\ns_mov_b64 exec, -1\ns_add_u32 {sXS}, {sXS}, 128")
    A("s_branch L_next")
    A("L_vmid:")
    A(f"s_cmp_lg_u32 {sBLK}, {lsb}\ns_cbranch_scc1 L_nols")
    A(f"s_mul_i32 {sT1}, {sG}, {GS*128}\ns_add_u32 {sT1}, {sT1}, {WS_LS}\ns_add_u32 {sT3}, {sT1}, 4096")
    def gl(p):
        for r in range(NLS): A(f"buffer_load_dwordx4 v[{G0+4*r}:{G0+4*r+3}], {vLS}, {WS_}, {sT1 if LP*128*r < 4096 else sT3} offen offset:{LP*128*r % 4096} {p}")
    poll("L_ls", gl, [f"v{G0+4*r+e}" for r in range(NLS) for e in (1, 3)], sleep=16, first="")
    hn = NLS//2 if PAIR else NLS
    for h, t in ((0, t0), (1, t1))[:2 if PAIR else 1]:
        A(f"v_xor_b32 {t}, {sLOC}, v{G0+4*hn*h+2}")
        for r in range(1, hn): A(f"v_bitop3_b32 {t}, v{G0+4*(hn*h+r)+2}, {sLOC}, {t} bitop3:0xbe")
    if PAIR: A(f"s_bitcmp1_b32 {sX}, 0\ns_cselect_b64 vcc, -1, 0\nv_cndmask_b32 {t0}, {t0}, {t1}, vcc")
    A(f"v_cmp_ne_u32 vcc, 0, {t0}\ns_cmp_eq_u64 vcc, 0\ns_cselect_b32 {sLOC}, {local}, 0")
    A(f"v_max_f32 {t0}, v{G0}, v{G0+4}")
    for r in range(2, NLS, 2): A(f"v_max3_f32 {t0}, {t0}, v{G0+4*r}, v{G0+4*r+4}")
    allred_lo("v_max_f32", [t0], LLP)
    for r in range(NLS): A(f"v_sub_f32 v{G0+4*r}, v{G0+4*r}, {t0}")
    for r in range(NLS): A(f"v_exp_f32 v{G0+4*r}, v{G0+4*r}")
    for r in range(1, NLS): A(f"v_add_f32 v{G0}, v{G0}, v{G0+4*r}")
    allred_lo("v_add_f32", [f"v{G0}"], LLP)
    A(f"v_sub_f32 {t0}, {vM}, {t0}\nv_exp_f32 {t0}, {t0}\nv_rcp_f32 {t1}, v{G0}\nv_mul_f32 {t0}, {t0}, {t1}")
    for k in range(NSEG): A(f"v_readlane_b32 {sF[k]}, {t0}, {LP*PI[k]}")
    A(f"v_mov_b32 {t0}, 0\nv_mov_b32 {t1}, 0\nv_mov_b32 {t2}, 0\nv_mov_b32 {t3}, {sLOC}\ns_mov_b64 exec, 0xf\nds_write_b128 v7, v[{T}:{T+3}] offset:{L_U}")
    A(f"s_lshl_b32 {sT0}, {sLIN}, 11\ns_add_u32 {sT0}, {sT0}, {WS_QS}\ns_mov_b32 exec_lo, 0x3f3f3f3f\ns_mov_b32 exec_hi, 0x3f3f3f3f")
    store2("L_s0", lambda p: A(f"buffer_store_dwordx4 v[48:51], v5, {WS_}, {sT0} offen offset:1024 {p}"))
    A("s_mov_b64 exec, -1\ns_branch L_next")
    A("L_nols:")
    A(f"s_cmp_lg_u32 {sBLK}, {lsb+2}\ns_cbranch_scc1 L_nogu2")
    A(f"v_lshlrev_b32 v6, 11, {vA}\nv_lshl_add_u32 v6, {vB}, 4, v6\nv_mov_b32 v{G1}, 0\nv_mov_b32 v{G1+1}, 0")
    A(f"s_lshr_b32 {sT1}, {sLIN}, 3\ns_lshl_b32 {sT1}, {sT1}, 14\ns_mul_i32 {sT0}, {sS}, 96\ns_add_u32 {sT1}, {sT1}, {sT0}\ns_add_u32 {sT1}, {sT1}, {WS_QS}")
    A(f"s_mov_b32 exec_lo, 0x3f3f3f3f\ns_mov_b32 exec_hi, 0x3f3f3f3f")
    poll("L_gu", lambda p: A(f"buffer_load_dwordx4 v[{G1}:{G1+3}], v6, {WS_}, {sT1} offen offset:1024 {p}"), [f"v{G1+2}", f"v{G1+3}"], sleep=psleep, loc=True)
    A("s_mov_b64 exec, -1")
    for k in range(2): A(f"v_add_f32_dpp v{G1+k}, v{G1+k}, v{G1+k} row_ror:8 {DPP}")
    allred_top("v_add_f32", [f"v{G1}", f"v{G1+1}"], [t0, t1])
    A(f"v_cvt_pk_bf16_f32 v{G1}, 0, v{G1}\nv_cvt_pk_bf16_f32 v{G1+1}, 0, v{G1+1}")
    A(f"v_cmp_lt_f32 vcc, 0, v{G1}\nv_cndmask_b32 {t0}, 0, 1.0, vcc\nv_mul_f32 {t3}, v{G1}, {t0}\nv_mul_f32 {t3}, {t3}, v{G1+1}\nv_cvt_pk_bf16_f32 {t3}, {t3}, 0")
    A(f"v_mov_b32_dpp {t0}, {t3} quad_perm:[1,1,3,3] {DPP}\nv_lshl_or_b32 {t3}, {t0}, 16, {t3}")
    for i in range(3): A(f"v_readlane_b32 {sUU[i]}, {t3}, {2*i}")
    for r in range(6):
        for d in range(5): A(f"ds_read_b32 v{P0+5*r+d}, {vWA} offset:{1280*r+4*d}")
        if r % 2: A("s_waitcnt lgkmcnt(0)")
    A(f"s_mov_b32 {sT1}, 0x05040100\ns_mov_b32 {sT3}, 0x07060302")
    for p in range(3):
        for d in range(5):
            A(f"v_perm_b32 v{P1+10*p+2*d}, v{P0+10*p+5+d}, v{P0+10*p+d}, {sT1}\nv_perm_b32 v{P1+10*p+2*d+1}, v{P0+10*p+5+d}, v{P0+10*p+d}, {sT3}")
    for p in range(3):
        for c in range(10): A(f"v_dot2c_f32_bf16 v{YY+c}, {sUU[p]}, v{P1+10*p+c}")
    for d in range(5): A(f"ds_write_b64 {vYW}, v[{YY+2*d}:{YY+2*d+1}] offset:{L_YP+10240+8*d}")
    A("s_branch L_next")
    A("L_nogu2:")
    A(f"s_cmp_lg_u32 {sBLK}, 31\ns_cbranch_scc1 L_nopf")
    if pf is not None:
        for r in range(4 if "y" in pfw else 0):
            A(f"s_add_u32 {sT0}, {sYG}, {8*4096*r}\nbuffer_load_dwordx4 v[{G0+8+4*r}:{G0+8+4*r+3}], {vYG}, {WS_}, {sT0} offen {pf}")
        if "h" in pfw: A(f"buffer_load_dwordx4 v[{G0+24}:{G0+27}], v7, {WS_}, {sH1S} offen {pf}")
    A("L_nopf:")
    A(f"s_cmp_lt_u32 {sBLK}, 29\ns_cbranch_scc1 L_next\ns_add_u32 {sT0}, {sBLK}, {sOWN}\ns_cmp_gt_u32 {sT0}, 31\ns_cbranch_scc1 L_last")
    if "x" not in skip:
        poll("L_px", lambda p: A(f"buffer_load_dwordx4 v[{G0}:{G0+3}], {vXA}, {WS_}, {sXG} offen {p}"), [f"v{G0+3}"], sleep=psleep)
    for k in range(3): A(f"v_add_f32 v{ZM+k}, v{ZM+k}, v{G0+k}")
    A(f"s_add_u32 {sXG}, {sXG}, 128\ns_mov_b32 {sFL}, 3\ns_cmp_eq_u32 {sBLK}, 29\ns_cbranch_scc1 L_take\ns_mov_b32 {sFL}, 1\nv_mov_b32 v{ZM}, v{ZM+2}")
    A(f"L_take:\nv_mov_b32_dpp v{G0+1}, v{ZM} row_ror:8 {DPP}\nv_cvt_pk_bf16_f32 v{G0}, v{ZM}, v{G0+1}\nv_mov_b32 v{ZM}, v{ZM+1}\nv_mov_b32 v{ZM+1}, v{ZM+2}")
    A(f"s_mov_b32 exec_lo, 0x00010001\ns_mov_b32 exec_hi, 1\nds_write_b32 {vYR}, v{G0}\ns_mov_b64 exec, -1\nv_add_u32 {vYR}, 16, {vYR}")
    A(f"s_sub_u32 {sFL}, {sFL}, 1\ns_cmp_gt_u32 {sFL}, 0\ns_cbranch_scc1 L_take")
    A("L_last:")
    A(f"s_cmp_lg_u32 {sBLK}, 31\ns_cbranch_scc1 L_next\ns_setprio 3\ns_waitcnt vmcnt(0)")
    A("L_next:")
    A(f"s_add_u32 {sBLK}, {sBLK}, 1\ns_waitcnt lgkmcnt(0)\ns_barrier\ns_branch L_blk")
    A("L_kpart:\ns_setprio 0")
    A(f"s_and_b32 {sT0}, {sBLK}, {BPS-1}\ns_cbranch_scc1 L_nosm")
    for w in range(4):
        for k in range(BPS): A(f"ds_read_b32 v{G0+BPS*w+k}, {vSC} offset:{4096*w+256*k}")
        if w == 1: A("s_waitcnt lgkmcnt(0)")
    A("s_waitcnt lgkmcnt(0)")
    for i in range(NR): A(f"v_cvt_pk_bf16_f32 v{G0+i}, 0, v{G0+i}")
    for i in range(NR): A(f"v_mul_f32 v{G0+i}, {sSCALE}, v{G0+i}")
    for i in range(NR): A(f"v_cvt_pk_bf16_f32 v{G0+i}, 0, v{G0+i}")
    for i in range(NR): A(f"v_mul_f32 v{G0+i}, {sLOG2E}, v{G0+i}")
    A(f"v_max_f32 {t0}, v{G0}, v{G0+1}")
    for i in range(2, NR, 2): A(f"v_max3_f32 {t0}, {t0}, v{G0+i}, v{G0+i+1}")
    allred_lo("v_max_f32", [t0]); allred_top("v_max_f32", [t0], [t1])
    for i in range(NR): A(f"v_sub_f32 v{G0+i}, v{G0+i}, {t0}")
    for i in range(NR): A(f"v_exp_f32 v{G0+i}, v{G0+i}")
    A(f"v_add_f32 {t1}, v{G0}, v{G0+1}")
    for i in range(2, NR): A(f"v_add_f32 {t1}, {t1}, v{G0+i}")
    for i in range(NR): A(f"v_cvt_pk_bf16_f32 v{G0+i}, v{G0+i}, 0")
    for w in range(4):
        for k in range(BPS): A(f"ds_write_b32 {vSC}, v{G0+BPS*w+k} offset:{4096*w+256*k}")
        if w == 1: A("s_waitcnt lgkmcnt(0)")
    allred_lo("v_add_f32", [t1]); allred_top("v_add_f32", [t1], [t2])
    A(f"v_log_f32 {t3}, {t1}\nv_mov_b32 {t2}, {t0}\nv_add_f32 {t3}, {t3}, {t0}")
    A(f"ds_write_b64 {vML}, v[{T+2}:{T+3}]")
    A(f"v_add_u32 {vSC}, {256*BPS}, {vSC}\nv_add_u32 {vML}, 8, {vML}")
    A("L_nosm:")
    A(f"s_cmp_ge_u32 {sBLK}, {0 if 'q' in skip else NSEG-1}\ns_cbranch_scc1 L_noq")
    A("L_gq0:")
    def gq(p):
        for s in range(8):
            if s % 2 == 0: A(f"s_add_u32 {sT0}, {sHD}, {2048*s}")
            A(f"buffer_load_dwordx4 v[{G1+4*s}:{G1+4*s+3}], v7, {WS_}, {sT0} offen offset:{2048*(s%2)} {p}")
    poll("L_gq", gq, [f"v{G1+4*s+3}" for s in range(8)], first="", sleep=psleep)
    for s in range(1, 8):
        for k in range(3): A(f"v_add_f32 v{G1+k}, v{G1+k}, v{G1+4*s+k}")
    for k in range(3): A(f"v_cvt_pk_bf16_f32 v{G1+k}, v{G1+k}, 0")
    for k in range(3): A(f"ds_write_b16 {vQW}, v{G1+k} offset:{L_QB+128*k}")
    A(f"v_add_u32 {vQW}, 384, {vQW}\ns_add_u32 {sHD}, {sHD}, 16384")
    A(f"s_cmp_lt_i32 {sBLK}, 0\ns_cselect_b32 {sBLK}, 0, {sBLK}\ns_cbranch_scc1 L_gq0")
    if timed:
        A(f"s_cmp_lg_u32 {sBLK}, 0\ns_cbranch_scc1 L_next"); stamp(4)
    A("s_branch L_next")
    A("L_noq:")
    A(f"s_cmp_lg_u32 {sBLK}, {NSEG+1}\ns_cbranch_scc1 L_nogu")
    A(f"v_mul_u32_u24 {vWA}, 20, {vLANE}\nv_add_u32 {vWA}, {L_W}, {vWA}")
    A(f"v_lshrrev_b32 {t0}, 4, {vLANE}\nv_lshl_add_u32 {t0}, {t0}, 3, {vB}\nv_and_b32 {t1}, 8, {vLANE}\nv_lshlrev_b32 {t1}, 1, {t1}")
    A(f"v_lshl_add_u32 {vH1S}, {t0}, 5, {t1}\nv_lshl_add_u32 {vH1G}, {t0}, 11, {t1}")
    A(f"s_lshl_b32 {sH1S}, {sLIN}, 11\ns_add_u32 {sH1S}, {sH1S}, {WS_H1}")
    A(f"s_lshl_b32 {sH1G}, {sX}, 16\ns_lshl_b32 {sT0}, {sC}, 5\ns_add_u32 {sH1G}, {sH1G}, {sT0}\ns_add_u32 {sH1G}, {sH1G}, {WS_H1}")
    A(f"v_mul_u32_u24 {vYW}, 40, {vLANE}\nv_lshrrev_b32 {vYR}, 1, {vLANE}\nv_and_b32 {vYR}, 8, {vYR}\nv_lshrrev_b32 {t0}, 3, {vLANE}\nv_and_or_b32 {vYR}, {t0}, 4, {vYR}\nv_add_u32 {vYR}, {L_U}, {vYR}\nv_mov_b32 v43, {vYR}")
    A(f"v_lshlrev_b32 {t0}, 4, {vB}\nv_lshl_add_u32 {vYG}, {vA}, 12, {t0}\nv_lshlrev_b32 {vXA}, 4, {vA}\nv_mov_b32 v41, {sTAG}\nv_mov_b32 v{ZS+3}, {sTAG}")
    A(f"s_lshl_b32 {sYS}, {sLIN}, 12\ns_add_u32 {sYS}, {sYS}, {WS_H2}")
    A(f"s_lshl_b32 {sYG}, {sX}, 17\ns_lshl_b32 {sT0}, {sC}, 7\ns_add_u32 {sYG}, {sYG}, {sT0}\ns_add_u32 {sYG}, {sYG}, {WS_H2}")
    A(f"s_lshl_b32 {sH3G}, {sC}, 10\ns_add_u32 {sH3G}, {sH3G}, {WS_H3}\ns_lshl_b32 {sT0}, {sX}, 7\ns_add_u32 {sH3S}, {sH3G}, {sT0}")
    A(f"s_lshl_b32 {sXS}, {sLIN}, 8\ns_add_u32 {sXS}, {sXS}, {WS_XX}\ns_xor_b32 {sXG}, {sXS}, {32*256}")
    A(f"s_add_u32 {sTG2}, {sTAG}, 1\ns_mov_b32 {sFL}, 0")
    A(f"v_mul_u32_u24 {t0}, 3, {vB}\ns_mul_i32 {sT0}, {sC}, 20\nv_add_lshl_u32 {t0}, {t0}, {sT0}, 1\nv_mov_b32 {t2}, {OOB}")
    A(f"v_cmp_gt_u32 vcc, 7, {vB}\nv_cndmask_b32 v{vOUT}, {t2}, {t0}, vcc\nv_cmp_gt_u32 vcc, 6, {vB}\nv_cndmask_b32 v{vOUT+1}, {t2}, {t0}, vcc")
    A(f"v_mov_b32 {t0}, {WS_EP}\nv_or_b32 {t1}, s2, {vLANE}\nv_cmp_eq_u32 vcc, 0, {t1}\nv_cndmask_b32 v{vOUT+2}, {t2}, {t0}, vcc")
    A(f"buffer_load_ushort v{XV}, v{vOUT}, {X_}, 0 offen\nbuffer_load_ushort v{XV+1}, v{vOUT}, {X_}, 0 offen offset:2\nbuffer_load_ushort v{XV+2}, v{vOUT+1}, {X_}, 0 offen offset:4")
    for i in range(10): A(f"v_mov_b32 v{YY+i}, 0")
    A("s_waitcnt vmcnt(0)")
    for e in range(3): A(f"v_lshlrev_b32 v{XV+e}, 16, v{XV+e}")
    srd_lo(X_, pOUT)
    A("s_branch L_next")
    A("L_nogu:")
    A(f"s_cmp_lg_u32 {sBLK}, 16\ns_cbranch_scc1 L_next")
    A(f"v_lshrrev_b32 v10, {LLP}, {vLANE}\nv_lshlrev_b32 v10, 3, v10\ns_waitcnt lgkmcnt(0)\nds_read_b64 v[{T+2}:{T+3}], v10 offset:{L_ML}")
    A(f"s_lshl_b32 {sT1}, {sLIN}, 7\ns_add_u32 {sT1}, {sT1}, {WS_LS}\nv_and_b32 v11, {LP-1}, {vLANE}\nv_cmp_eq_u32 vcc, 0, v11")
    A(f"s_waitcnt lgkmcnt(0)\nv_mov_b32 {vM}, {t2}\nv_mov_b32 {t0}, {t3}\nv_mov_b32 {t1}, {sTAG}\nv_mov_b32 {t3}, {sTAG}")
    A(f"s_getreg_b32 {sLOC}, hwreg(HW_REG_XCC_ID)\nv_mov_b32 {t2}, {sLOC}\nv_lshlrev_b32 v10, 1, v10\ns_mov_b64 exec, vcc")
    A(f"buffer_store_dwordx4 v[{T}:{T+3}], v10, {WS_}, {sT1} offen sc1\ns_mov_b64 exec, -1")
    A(f"v_lshl_add_u32 {vLS}, v11, 7, v10\ns_branch L_next")
    A("L_tail:")
    A(f"v_mov_b32_dpp v{G0+1}, {vZK} row_ror:8 {DPP}\nv_cvt_pk_bf16_f32 v{G0}, {vZK}, v{G0+1}")
    A(f"s_mov_b32 exec_lo, 0x00010001\ns_mov_b32 exec_hi, 1\nds_write_b32 v43, v{G0} offset:64\ns_mov_b64 exec, -1\ns_waitcnt lgkmcnt(0)")
    stamp(7)
    A("s_barrier")
    def g2(p):
        for r in range(4):
            A(f"s_add_u32 {sT0}, {sYG}, {8*4096*r}\nbuffer_load_dwordx4 v[{G0+4*r}:{G0+4*r+3}], {vYG}, {WS_}, {sT0} offen {p}")
    poll("L_p2", g2, [f"v{G0+4*r+3}" for r in range(4)], loc=True)
    if stamps: A("s_memrealtime s[42:43]")
    for k in range(3): A(f"v_add_f32 v{G0+k}, v{G0+k}, v{G0+4+k}\nv_add_f32 v{G0+8+k}, v{G0+8+k}, v{G0+12+k}")
    for k in range(3): A(f"v_add_f32 v{G0+k}, v{G0+k}, v{G0+8+k}")
    def red_hi(b):
        for k in range(3): A(f"v_add_f32_dpp v{b+k}, v{b+k}, v{b+k} row_ror:8 {DPP}")
        allred_top("v_add_f32", [f"v{b+k}" for k in range(3)], [f"v{b+4+k}" for k in range(3)])
    red_hi(G0)
    A(f"s_cmp_eq_u32 {sS}, {sX}\ns_cbranch_scc1 L_red")
    A(f"s_mov_b64 exec, 0xff\nbuffer_store_dwordx4 v[{G0}:{G0+3}], v7, {WS_}, {sH3S} offen {p3s}\ns_mov_b64 exec, -1\ns_branch L_done")
    A("L_red:")
    BUF = [G0 + 16 + 4*k for k in range(np3)]
    for b in BUF:
        for k in range(3): A(f"v_mov_b32 v{b+k}, v{G0+k}")
    A(f"v_cmp_ne_u32 vcc, {sX}, {vA}\ns_mov_b32 {sT2}, {spin}\ns_mov_b64 exec, vcc")
    def l3(k): A(f"buffer_load_dwordx4 v[{BUF[k]}:{BUF[k]+3}], v7, {WS_}, {sH3G} offen {p3l}")
    for k in range(np3-1):
        l3(k); A(f"s_sleep {s3}")
    A("L_p3:")
    for k in range(np3):
        l3((k + np3 - 1) % np3)
        A(f"s_waitcnt vmcnt({np3-1})\nv_cmp_ne_u32 vcc, {sTAG}, v{BUF[k]+3}\ns_cbranch_vccz L_p3d{k}")
    A(f"s_sub_u32 {sT2}, {sT2}, 1\ns_cbranch_scc0 L_p3")
    for k in reversed(range(np3)):
        A(f"L_p3d{k}:\ns_mov_b64 exec, -1")
        for e in range(3): A(f"v_add_f32_dpp v{G1+e}, v{BUF[k]+e}, v{BUF[k]+e} row_ror:8 {DPP}")
        if k: A("s_branch L_p3e")
    A("L_p3e:")
    if stamps: A("s_memrealtime s[48:49]")
    allred_top("v_add_f32", [f"v{G1+k}" for k in range(3)], [f"v{G1+4+k}" for k in range(3)])
    for e in range(3): A(f"v_add_f32 v{G1+e}, v{G1+e}, v{XV+e}")
    for e in range(3): A(f"v_cvt_pk_bf16_f32 v{G1+e}, v{G1+e}, 0")
    A("s_mov_b64 exec, 0xff")
    A(f"buffer_store_short v{G1}, v{vOUT}, {X_}, 0 offen\nbuffer_store_short v{G1+1}, v{vOUT}, {X_}, 0 offen offset:2\nbuffer_store_short v{G1+2}, v{vOUT+1}, {X_}, 0 offen offset:4")
    A(f"buffer_store_dword v41, v{vOUT+2}, {WS_}, 0 offen")
    A("s_mov_b64 exec, -1")
    A("L_done:")
    if diag is not None:
        wave, st, mult = diag
        stamp(8)
        A(f"s_cmp_lg_u32 s2, 0\ns_cbranch_scc1 L_end\ns_cmp_lg_u32 {sW}, {wave}\ns_cbranch_scc1 L_end")
        A(f"s_waitcnt lgkmcnt(0)\ns_sub_u32 {sT0}, s{sST+2*st}, s{sST}\ns_mul_i32 {sT0}, {sT0}, {mult}\ns_add_u32 {sT0}, {sT0}, 30000")
        A(f"s_min_u32 {sT0}, {sT0}, 200000")
        A(f"L_dg:\ns_memrealtime s[72:73]\ns_waitcnt lgkmcnt(0)\ns_sub_u32 {sT1}, s72, s{sST}\ns_cmp_lt_u32 {sT1}, {sT0}\ns_cbranch_scc1 L_dg")
    if stamps:
        stamp(8)
        A(f"s_mul_i32 {sT0}, s2, 5\ns_add_u32 {sT0}, {sT0}, {sW}\ns_lshl_b32 {sT0}, {sT0}, 6\ns_add_u32 {sT0}, {sT0}, {WS_ST}")
        A(f"s_getreg_b32 {sT1}, hwreg(HW_REG_XCC_ID)")
        A("s_waitcnt lgkmcnt(0)\nv_mov_b32 v4, 0")
        for i in range(9): A(f"v_writelane_b32 v4, s{sST+2*i}, {i}")
        A(f"v_writelane_b32 v4, s42, 9\nv_writelane_b32 v4, s48, 10\nv_writelane_b32 v4, s50, 11\nv_writelane_b32 v4, s47, 12")
        A(f"v_writelane_b32 v4, {sT1}, 15")
        A(f"v_lshlrev_b32 v5, 2, {vLANE}\ns_mov_b64 exec, 0xffff")
        A(f"buffer_store_dword v4, v5, {WS_}, {sT0} offen {'sc1' if diag2 else ''}")
    if diag2:
        role, st, op, role0, st0, op0, mult = diag2
        A(f"s_mov_b64 exec, -1\ns_cmp_lg_u32 s2, 0\ns_cbranch_scc1 L_end\ns_cmp_lg_u32 {sW}, 4\ns_cbranch_scc1 L_end")
        A(f"L_dh:\ns_memrealtime s[72:73]\ns_waitcnt lgkmcnt(0)\ns_sub_u32 {sT1}, s72, s{sST}\ns_cmp_lt_u32 {sT1}, 20000\ns_cbranch_scc1 L_dh")
        A(f"v_mul_u32_u24 v5, 320, {vLANE}")
        for k in range(4):
            A(f"s_mov_b32 {sT0}, {WS_ST + 64*320*k}\nbuffer_load_dword v{8+k}, v5, {WS_}, {sT0} offen offset:{64*role0+4*st0} sc1\nbuffer_load_dword v{12+k}, v5, {WS_}, {sT0} offen offset:{64*role+4*st} sc1")
        A("s_waitcnt vmcnt(0)")
        for k in range(8): A(f"v_subrev_u32 v{8+k}, s{sST}, v{8+k}")
        vop = {"max": "v_max_i32", "min": "v_min_i32", "mean": "v_add_u32"}[op]; vop0 = {"max": "v_max_i32", "min": "v_min_i32", "mean": "v_add_u32"}[op0]
        for k in range(1, 4): A(f"{vop0} v8, v8, v{8+k}\n{vop} v12, v12, v{12+k}")
        allred_lo(vop0, ["v8"]); allred_top(vop0, ["v8"], ["v9"])
        allred_lo(vop, ["v12"]); allred_top(vop, ["v12"], ["v13"])
        A(f"v_readfirstlane_b32 {sT0}, v12\nv_readfirstlane_b32 {sT1}, v8\ns_mul_i32 {sT0}, {sT0}, {mult}\ns_mul_i32 {sT1}, {sT1}, {mult}")
        if op == "mean": A(f"s_ashr_i32 {sT0}, {sT0}, 8")
        if op0 == "mean": A(f"s_ashr_i32 {sT1}, {sT1}, 8")
        A(f"s_sub_u32 {sT0}, {sT0}, {sT1}\ns_add_u32 {sT0}, {sT0}, 30000\ns_min_u32 {sT0}, {sT0}, 200000")
        A(f"L_dg2:\ns_memrealtime s[72:73]\ns_waitcnt lgkmcnt(0)\ns_sub_u32 {sT1}, s72, s{sST}\ns_cmp_lt_u32 {sT1}, {sT0}\ns_cbranch_scc1 L_dg2")
    A("L_end:\ns_endpgm")
    A('.section .rodata,"a"\n.p2align 6')
    A(f".amdhsa_kernel {KN}")
    nv4 = (NV+3)//4*4
    A(f".amdhsa_next_free_vgpr {nv4}\n.amdhsa_next_free_sgpr 102\n.amdhsa_accum_offset {nv4}")
    A(".amdhsa_group_segment_fixed_size 0\n.amdhsa_kernarg_size 96\n.amdhsa_user_sgpr_count 2")
    A(".amdhsa_user_sgpr_kernarg_segment_ptr 1\n.amdhsa_system_sgpr_workgroup_id_x 1")
    A(".amdhsa_float_denorm_mode_32 3\n.end_amdhsa_kernel")
    return A.finish()

if __name__ == "__main__":
    kw = eval("dict(" + (sys.argv[2] if len(sys.argv) > 2 else "") + ")")
    open(sys.argv[1], "w").write(gen(**kw))
```

```python
import sys, os
sys.path.insert(0, os.path.dirname(os.path.abspath(__file__)))
from asmlib import Asm
KN = "parallel_sum__mha_block_cached__glu_gated_reglu__decode_kernel"
HEADER = open("parallel_sum__mha_block_cached__glu_gated_reglu__decode.s.ref").read().split("; Override launch")[0]

HB = 32768*384
TB = 32*HB
WS_EP, WS_LS, WS_H3, WS_XX, WS_PR, WS_QS, WS_H1, WS_ST, WS_H2, WS_SIZE = 0, 0x8000, 0x10000, 0x20000, 0x40000, 0x80000, 0x100000, 0x200000, 0x280000, 0x400000
OOB = 0x40000000
SPIN = 1 << 20

def gen(NSEG=8, G=6, F=5, FH=6, RB=8, pace=6, deep=0, per=8, bs=2, fb=22, fbo=26, pre0=2, pre1=6, trig=13, skip='', xmap=1, xd=(6,5,3,1,-1,-3,-5,-6), xp=4, PI=(6,7,5,4,3,2,1,0), xs=0, np3=1, s3=6, dfirst=1, ab=0, psleep=4,
        spin=SPIN, local=1, lp="nt", pf=None, pfw="yh", pt='sc1', p3s='sc1', p3l='sc1', sched=(4,3,3,3,0,0), ptpos=6, own=1, lsb=17, stamps=False, diag=None, diag2=None, stA=3, stB=29, diag3=0):
    A = Asm()
    NG = 32//NSEG; GS = 8*NSEG; BPS = 16//NSEG; LGS = GS.bit_length()-1
    PAIR = NSEG == 8
    TSTR = GS*4*3072
    assert G < RB and 24 % RB == 0 and NSEG == 8 and G == 6
    if diag2 or diag3: stamps = True
    timed = stamps or diag is not None
    L_OP = 0; L_W = 8192; L_YP = L_W + 15360; L_U = L_YP + 12800 + 64; L_QP = L_U + 128; L_QB = L_QP + 6400; L_ML = L_QB + 384*NSEG
    L_CT = L_ML + 64; L_SC = L_CT + 64; L_SIZE = L_SC + 16384 + 256
    assert L_SC < 65536
    sW, sHQ, sS, sG, sMEM = "s3", "s4", "s5", "s6", "s7"
    KV_, WS_, TA_, TB_, TC_, X_ = "s[8:11]", "s[16:19]", "s[20:23]", "s[24:27]", "s[28:31]", "s[32:35]"
    mB1, mB0 = "s[12:13]", "s[14:15]"
    pX, pK, pV, pWQ, pWO, pWG, pWU, pWD, pOUT, pDBG, pWS = 36, 38, 40, 42, 44, 48, 50, 52, 54, 56, 58
    sOFF, sOFF0, sIB, sBLK, sLIN, sX, sC, sT0, sT1, sT2, sT3, sOWN = [f"s{r}" for r in range(60, 72)]
    sTAG = "s46"
    sST = 84
    vLANE, vKV, vA, vB = "v0", "v1", "v2", "v3"
    ACC, Q = 8, 32
    T = 44
    RING = 56
    PB = RING + 48
    NV = PB + 96
    t0, t1, t2, t3 = f"v{T}", f"v{T+1}", f"v{T+2}", f"v{T+3}"
    def stamp(i):
        if timed: A(f"s_memrealtime s[{sST+2*i}:{sST+2*i+1}]")
    def srd_hi(name, size):
        b = int(name[2:name.index(":")]); A(f"s_mov_b32 s{b+2}, {size}\ns_mov_b32 s{b+3}, 0x20000")
    def srd_lo(name, ptr):
        b = int(name[2:name.index(":")]); A(f"s_mov_b64 s[{b}:{b+1}], s[{ptr}:{ptr+1}]")
    def srd(name, ptr, size): srd_lo(name, ptr); srd_hi(name, size)
    DPP = "row_mask:0xf bank_mask:0xf"
    PATS = ("quad_perm:[1,0,3,2]", "quad_perm:[2,3,0,1]", "row_half_mirror", "row_mirror")
    def allred_lo(op, vs, n=4):
        for pat in PATS[:n]:
            for v in vs: A(f"{op}_dpp {v}, {v}, {v} {pat} {DPP}")
    def allred_top(op, vs, ts):
        for sw in ("v_permlane16_swap_b32", "v_permlane32_swap_b32"):
            for v, t in zip(vs, ts): A(f"v_mov_b32 {t}, {v}")
            for v, t in zip(vs, ts): A(f"{sw} {t}, {v}")
            for v, t in zip(vs, ts): A(f"{op} {v}, {v}, {t}")
    def redscat(base, n):
        for g in range(n):
            for e in range(4): A(f"v_permlane32_swap_b32 v{base+8*g+e}, v{base+8*g+e+4}")
        for g in range(n):
            for e in range(4): A(f"v_add_f32 v{base+8*g+e}, v{base+8*g+e}, v{base+8*g+e+4}")
        for g in range(n):
            for e in range(2): A(f"v_permlane16_swap_b32 v{base+8*g+e}, v{base+8*g+e+2}")
        for g in range(n):
            for e in range(2): A(f"v_add_f32 v{base+8*g+e}, v{base+8*g+e}, v{base+8*g+e+2}")
        for g in range(n):
            A(f"v_add_f32_dpp v{base+8*g}, v{base+8*g}, v{base+8*g} row_ror:8 row_mask:0xf bank_mask:0x3")
        for g in range(n):
            A(f"v_add_f32_dpp v{base+8*g}, v{base+8*g+1}, v{base+8*g+1} row_ror:8 row_mask:0xf bank_mask:0xc")
    def redscat_lo(bases):
        for S in bases:
            for e in range(4): A(f"v_add_f32_dpp v{S+e}, v{S+e}, v{S+e} row_half_mirror row_mask:0xf bank_mask:0x5")
        for S in bases:
            for e in range(4): A(f"v_add_f32_dpp v{S+e}, v{S+e+4}, v{S+e+4} row_half_mirror row_mask:0xf bank_mask:0xa")
        for S in bases:
            for e in range(4): A(f"v_add_f32_dpp v{S+e}, v{S+e}, v{S+e} quad_perm:[2,3,0,1] {DPP}")
        for S in bases:
            for e in range(2): A(f"v_cndmask_b32 v{S+e}, v{S+e}, v{S+e+2}, {mB1}")
        for S in bases:
            for e in range(2): A(f"v_add_f32_dpp v{S+e}, v{S+e}, v{S+e} quad_perm:[1,0,3,2] {DPP}")
        for S in bases: A(f"v_cndmask_b32 v{S}, v{S}, v{S+1}, {mB0}")
    def axpy(acc, data, n, pl, ph):
        for i in range(n):
            A(f"v_dot2c_f32_bf16 v{acc+2*i}, v{data+i}, {pl}\nv_dot2c_f32_bf16 v{acc+2*i+1}, v{data+i}, {ph}")
    def ld(reg, j): A(f"buffer_load_dwordx4 v[{reg}:{reg+3}], {vKV}, {KV_}, {sOFF} offen offset:{128*j} nt")
    uid = [0]
    PILUT = sum(p << (4*i) for i, p in enumerate(PI))
    assert PI[0] != 7 and sorted(PI) == list(range(8))
    def next_block(last):
        uid[0] += 1; u = uid[0]
        A(f"s_add_u32 {sIB}, {sIB}, 1\ns_and_b32 {sT0}, {sIB}, {BPS-1}\ns_cbranch_scc1 L_nb{u}")
        if not last:
            A(f"s_add_u32 {sOFF}, {sOFF}, {(NG-1)*HB}")
            A(f"s_cmp_lg_u32 {sIB}, 16\ns_cbranch_scc1 L_nb{u}")
            A(f"s_mov_b64 s[8:9], s[{pV}:{pV+1}]\ns_add_u32 {sOFF}, {sOFF0}, {PI[0]*NG*HB}")
        else:
            A(f"s_lshl_b32 {sT0}, {sIB}, 1\ns_lshr_b32 {sT0}, {hex(PILUT)}, {sT0}\ns_and_b32 {sT0}, {sT0}, 7")
            A(f"s_mul_i32 {sOFF}, {sT0}, {NG*HB}\ns_add_u32 {sOFF}, {sOFF}, {sOFF0}")
        A(f"L_nb{u}:")
    def lev(n, f):
        fr = f - int(f)
        return int(f) + (1 if int((n+1)*fr + 1e-9) != int(n*fr + 1e-9) else 0)
    cps = list(range(0, 24, per)) if fb else []
    assert all(c + G + 1 <= 23 for c in cps) and per > G
    PR_, sTHR, vPC, vPO, vPL, vPS = TC_, "s72", "v52", "v53", "v54", "v55"
    def slot(n, last=False):
        uid[0] += 1; u = uid[0]
        fi, fh = lev(n, F), lev(n, FH)
        assert fi <= fh <= G
        def cnt(x): return x - 1 + 2*sum(1 for c in cps if 0 < n - c <= x)
        m = n + G
        if m % 3 == 0:
            A(f"s_add_u32 {sOFF}, {sOFF}, {TSTR}")
            if m == 24: next_block(last)
        if fi < fh: A(f"s_cbranch_vccnz L_dp{u}\ns_waitcnt vmcnt({cnt(fi)})\nL_dp{u}:")
        A(f"s_waitcnt vmcnt({cnt(fh)})")
        ld(RING + 4*(m % RB), m % 3)
        if n - G - 1 in cps:
            if xd:
                A(f"v_readlane_b32 {sT1}, {vPO}, 32\ns_sub_u32 {sT1}, {sT1}, {sTAG}\ns_cmp_lt_u32 {sT1}, 33\ns_cselect_b32 {sTHR}, {sT1}, {sTHR}")
            A(f"v_sub_u32 {vPO}, {vPO}, {vPC}\nv_cmp_gt_u32 vcc, 64, {vPO}\ns_bcnt1_i32_b32 {sT0}, vcc_lo")
            A(f"s_cmp_gt_u32 {sT0}, {sTHR}\ns_cselect_b64 vcc, -1, 0")
            if stamps: A(f"s_and_b32 {sT0}, vcc_lo, 1\ns_add_u32 s47, s47, {sT0}")
            if last and deep: A(f"s_cmp_ge_u32 {sBLK}, {32-deep}\ns_cselect_b64 vcc, -1, vcc")
        if n in cps:
            A(f"v_add_u32 {vPC}, 1, {vPC}\nbuffer_store_dword {vPC}, {vPS}, {PR_}, 0 offen\nbuffer_load_dword {vPO}, {vPL}, {PR_}, 0 offen nt")
    def qk4(acc, data, j):
        for e in range(4):
            if j == 0 and e == 0: A(f"v_dot2_f32_bf16 v{acc}, v{data}, v{Q}, 0")
            else: A(f"v_dot2_f32_bf16 v{acc}, v{data+e}, v{Q+4*j+e}, v{acc}")

    A(HEADER.rstrip())
    A(f"; @launch grid=(256,1,1) block=(320,1,1) lds={L_SIZE}")
    A('.amdgcn_target "amdgcn-amd-amdhsa--gfx950"\n.text')
    A(f".globl {KN}\n.p2align 8\n.type {KN},@function\n{KN}:")
    A("s_cmp_ge_u32 s2, 256\ns_cbranch_scc1 L_end")
    A("s_load_dwordx16 s[36:51], s[0:1], 0\ns_load_dwordx8 s[52:59], s[0:1], 64")
    stamp(0)
    A(f"v_lshrrev_b32 v1, 6, v0\nv_and_b32 {vLANE}, 63, v0\nv_readfirstlane_b32 {sW}, v1\ns_setprio 3")
    A(f"v_mov_b32 v8, 0\nds_write_b32 v8, v8 offset:{L_CT}")
    order = []
    for v in range(8):
        if v not in order: order += [v, v ^ xmap] if (v & 1) == 0 or (xmap & 1) == 0 else [v ^ xmap, v]
    lut = sum(order.index(v) << (4*v) for v in range(8))
    A(f"s_and_b32 {sX}, s2, 7\ns_lshl_b32 {sX}, {sX}, 2\ns_lshr_b32 {sX}, {hex(lut)}, {sX}\ns_and_b32 {sX}, {sX}, 7")
    A(f"s_lshr_b32 {sC}, s2, 3\ns_lshl_b32 {sT0}, {sX}, 5\ns_add_u32 {sLIN}, {sT0}, {sC}")
    A(f"s_lshr_b32 {sG}, {sLIN}, {LGS}\ns_and_b32 {sMEM}, {sLIN}, {GS-1}\ns_and_b32 {sS}, {sMEM}, 7")
    A(f"s_lshr_b32 {sT0}, {sMEM}, 3\ns_mul_i32 {sHQ}, {sT0}, {NG}\ns_add_u32 {sHQ}, {sHQ}, {sG}")
    A(f"s_sub_u32 {sW}, {sW}, 1\ns_cselect_b32 {sW}, 4, {sW}")
    A(f"v_lshrrev_b32 {vA}, 3, {vLANE}\nv_and_b32 {vB}, 7, {vLANE}")
    A(f"v_lshlrev_b32 v7, 4, {vB}")
    A(f"v_mov_b32 v4, 384\nv_mad_u32_u24 {vKV}, {vA}, v4, v7")
    A(f"v_mov_b32 v4, 12288\nv_mad_u32_u24 v4, {vA}, v4, v7")
    A(f"v_mov_b32 v5, 3072\nv_mad_u32_u24 v5, {vA}, v5, v7")
    A(f"v_mov_b32 v6, {OOB}\nv_cmp_gt_u32 vcc, 6, {vB}\nv_cndmask_b32 v5, v6, v5, vcc")
    A(f"v_lshlrev_b32 v6, 1, {vA}\nv_lshlrev_b32 v7, 4, {vLANE}")
    A(f"s_mul_i32 {sT0}, {sS}, 80\ns_lshl_b32 {sT1}, {sW}, 4\ns_add_u32 {sT0}, {sT0}, {sT1}")
    A(f"s_mul_i32 {sT1}, {sT0}, 12288\ns_mul_i32 {sT2}, {sHQ}, 384\ns_add_u32 {sT1}, {sT1}, {sT2}")
    A(f"s_mul_i32 {sT2}, {sT0}, 3072\ns_lshr_b32 {sT3}, {sLIN}, 3\ns_mul_i32 {sT3}, {sT3}, 96\ns_add_u32 {sT2}, {sT2}, {sT3}")
    A(f"s_lshl_b32 {sT0}, {sT0}, 1")
    srd_hi(X_, 1280); srd_hi(TA_, 640*12288); srd_hi(TB_, 640*3072); srd_hi(TC_, 640*3072); srd_hi(WS_, WS_SIZE); srd_hi(KV_, TB)
    A("s_waitcnt lgkmcnt(0)")
    srd_lo(X_, pX)
    XR, WD, WA = RING + 40, RING, ACC
    A(f"buffer_load_dwordx4 v[{XR}:{XR+3}], v7, {X_}, 0 offen")
    A(f"buffer_load_dwordx4 v[{XR+4}:{XR+7}], v7, {X_}, 0 offen offset:1024")
    A(f"buffer_load_ushort v{T+10}, v6, {X_}, {sT0} offen")
    A(f"buffer_load_ushort v{T+11}, v6, {X_}, {sT0} offen offset:16")
    srd_lo(TA_, pWQ); srd_lo(TB_, pWG); srd_lo(TC_, pWU)
    A(f"s_load_dword {sTAG}, s[{pWS}:{pWS+1}], {WS_EP}")
    A("s_barrier")
    for t in range(2):
        for j in range(3):
            A(f"buffer_load_dwordx4 v[{WD+20*t+4*j}:{WD+20*t+4*j+3}], v4, {TA_}, {sT1} offen offset:{128*j} nt")
        A(f"buffer_load_dwordx4 v[{WD+20*t+12}:{WD+20*t+15}], v5, {TB_}, {sT2} offen nt")
        A(f"buffer_load_dwordx4 v[{WD+20*t+16}:{WD+20*t+19}], v5, {TC_}, {sT2} offen nt")
        if t == 0: A(f"s_add_u32 {sT1}, {sT1}, {8*12288}\ns_add_u32 {sT2}, {sT2}, {8*3072}")
    srd_lo(KV_, pK); srd_lo(WS_, pWS)
    A(f"s_lshl_b32 {sT0}, {sMEM}, 2\ns_add_u32 {sT0}, {sT0}, {sW}\ns_mul_i32 {sT0}, {sT0}, 3072")
    A(f"s_mul_i32 {sOFF0}, {sG}, {HB}\ns_add_u32 {sOFF0}, {sOFF0}, {sT0}\ns_mov_b32 {sOFF}, {sOFF0}")
    A(f"s_mov_b32 s12, 0xcccccccc\ns_mov_b32 s13, 0xcccccccc\ns_mov_b32 s14, 0xaaaaaaaa\ns_mov_b32 s15, 0xaaaaaaaa")
    A(f"s_and_b32 {sOWN}, {sX}, 1\ns_xor_b32 {sOWN}, {sOWN}, {own}")
    A(f"s_cmp_eq_u32 {sW}, 4\ns_cbranch_scc1 L_ln\ns_setprio 1\nL_ln:\ns_waitcnt vmcnt(10) lgkmcnt(0)")
    A(f"s_mul_i32 {sTAG}, {sTAG}, 1664525\ns_add_u32 {sTAG}, {sTAG}, 1013904223")
    XF = WA
    for i in range(8):
        A(f"v_lshlrev_b32 v{XF+2*i}, 16, v{XR+i}\nv_and_b32 v{XF+2*i+1}, 0xffff0000, v{XR+i}")
    l0, l1, l2, l3 = "v24", "v25", "v26", "v27"
    A(f"v_add_f32 {l0}, v{XF}, v{XF+1}\nv_add_f32 {l1}, v{XF+2}, v{XF+3}")
    for i in range(4, 16, 2): A(f"v_add_f32 {l0}, {l0}, v{XF+i}\nv_add_f32 {l1}, {l1}, v{XF+i+1}")
    A(f"v_add_f32 {l0}, {l0}, {l1}")
    allred_lo("v_add_f32", [l0]); allred_top("v_add_f32", [l0], [l1])
    A(f"v_mul_f32 {l0}, 0x3acccccd, {l0}")
    for i in range(16): A(f"v_sub_f32 v{XF+i}, v{XF+i}, {l0}")
    A(f"v_mul_f32 {l1}, v{XF}, v{XF}\nv_mul_f32 {l2}, v{XF+8}, v{XF+8}")
    for i in range(1, 8): A(f"v_fmac_f32 {l1}, v{XF+i}, v{XF+i}\nv_fmac_f32 {l2}, v{XF+8+i}, v{XF+8+i}")
    A(f"v_cmp_gt_u32 vcc, 16, {vLANE}\nv_cndmask_b32 {l2}, 0, {l2}, vcc\nv_add_f32 {l1}, {l1}, {l2}")
    allred_lo("v_add_f32", [l1]); allred_top("v_add_f32", [l1], [l2])
    A(f"v_mul_f32 {l1}, 0x3acccccd, {l1}")
    A(f"v_readfirstlane_b32 {sT0}, {l0}\nv_readfirstlane_b32 {sT1}, {l1}\ns_mul_i32 {sT0}, {sT0}, 0x9E3779B1\ns_add_u32 {sT0}, {sT0}, {sT1}")
    A(f"s_lshl_b32 {sT0}, {sT0}, 2\ns_add_u32 {sTAG}, {sTAG}, {sT0}")
    A(f"v_cvt_pk_bf16_f32 {l0}, 0, {l0}\nv_cvt_pk_bf16_f32 {l1}, 0, {l1}")
    A(f"v_add_f32 {l1}, 0x3727c5ac, {l1}\nv_cvt_pk_bf16_f32 {l1}, 0, {l1}\nv_sqrt_f32 {l1}, {l1}")
    A(f"v_cvt_pk_bf16_f32 {l1}, 0, {l1}\nv_rcp_f32 {l2}, {l1}")
    for t in range(2):
        xr = f"v{T+10+t}"
        A(f"v_lshlrev_b32 {xr}, 16, {xr}\nv_sub_f32 {xr}, {xr}, {l0}\nv_cvt_pk_bf16_f32 {xr}, 0, {xr}")
        A(f"v_mul_f32 {l3}, {xr}, {l2}\nv_fma_f32 {xr}, -{l3}, {l1}, {xr}\nv_fma_f32 {xr}, {xr}, {l2}, {l3}")
        A(f"v_cvt_pk_bf16_f32 v{T+6+2*t}, {xr}, 0\nv_cvt_pk_bf16_f32 v{T+7+2*t}, 0, {xr}")
    for i in range(40): A(f"v_mov_b32 v{WA+i}, 0")
    stamp(1)
    sD = [f"s{r}" for r in range(74, 80)]; sL = ["s80", "s81", "s82"]
    def dma_setup():
        srd(TA_, pWO, 6144*1280); srd(TB_, pWD, 1536*1280)
        A(f"s_lshl_b32 {sT2}, {sS}, 3\ns_lshr_b32 {sT1}, {sC}, 3\ns_lshl_b32 {sT1}, {sT1}, 1\ns_add_u32 {sT2}, {sT2}, {sT1}")
        A(f"s_mul_i32 {sT1}, {sG}, 192\ns_add_u32 {sT2}, {sT2}, {sT1}")
        A(f"s_lshl_b32 {sT0}, {sW}, 1\ns_add_u32 {sT0}, {sT0}, {sOWN}\ns_lshl_b32 {sT0}, {sT0}, 2\ns_lshr_b32 {sT0}, {hex(PILUT)}, {sT0}\ns_and_b32 {sT0}, {sT0}, 7\ns_mul_i32 {sT0}, {sT0}, {NG*192}\ns_add_u32 {sT0}, {sT0}, {sT2}")
        A(f"s_mul_i32 {sL[0]}, {sT0}, 1280\ns_add_u32 {sL[1]}, {sL[0]}, {64*1280}\ns_add_u32 {sL[2]}, {sL[0]}, {128*1280}")
        A(f"s_lshl_b32 {sT0}, {sW}, 6\ns_add_u32 {sT0}, {sT0}, {sT2}\ns_add_u32 {sT0}, {sT0}, {PI[7]*NG*192}\ns_mul_i32 {sD[2]}, {sT0}, 1280\ns_mul_i32 {sD[3]}, {sW}, 2560")
        A(f"s_mul_i32 {sT0}, {sLIN}, 7680\ns_lshl_b32 {sD[5]}, {sW}, 11\ns_add_u32 {sD[4]}, {sT0}, {sD[5]}")
    def w(paced):
        if paced: A(f"s_waitcnt vmcnt({pace-1})")
    def op_pb(n):
        def f(paced):
            if n and n % 3 == 0: A(f"s_add_u32 {sOFF}, {sOFF}, {TSTR}")
            w(paced); ld(PB + 4*n, n % 3)
        return f
    def op_wo(jj, i, off=0, base=7680):
        def f(paced):
            if i == 0: A(f"s_add_u32 m0, {sD[off+1]}, {L_W+base+2560*jj}")
            if i == 2: A("s_mov_b32 exec_hi, 0")
            w(paced); A(f"buffer_load_dwordx4 v7, {TA_}, {sD[off]} offen offset:{1024*i} nt lds")
            if i == 2: A(f"s_mov_b32 exec_hi, -1\ns_add_u32 {sD[off]}, {sD[off]}, {64*1280}")
        return f
    def op_wd(i):
        def f(paced):
            if i == 0: A(f"s_add_u32 m0, {sD[5]}, {L_W}")
            else: A(f"s_cmp_eq_u32 {sW}, 3\ns_cselect_b32 exec_hi, 0, -1")
            w(paced); A(f"buffer_load_dwordx4 v7, {TB_}, {sD[4]} offen offset:{1024*i} nt lds")
            if i: A("s_mov_b32 exec_hi, -1")
        return f
    def op_s4(paced):
        A(f"s_cmp_eq_u32 {sW}, 3\ns_cbranch_scc1 L_nos4")
        for i in range(3): op_wo(0, i, 2, 7680)(paced)
        A("L_nos4:")
    dma = [op_wd(0), op_wd(1), op_s4]
    pbs = [op_pb(n) for n in range(24)]
    ops = dma + pbs if dfirst else pbs + dma
    assert pre0 <= 2 or not dfirst
    dma_setup()
    A(f"s_waitcnt vmcnt(5)\ns_cmp_eq_u32 {sW}, 4\ns_cbranch_scc1 L_nopre0")
    for n in range(pre0): ops[n](False)
    A("L_nopre0:")
    axpy(WA, WD, 20, f"v{T+6}", f"v{T+7}")
    A(f"s_cmp_eq_u32 {sW}, 4\ns_cbranch_scc1 L_nopre1\ns_waitcnt vmcnt({pre0})")
    for n in range(pre0, pre1): ops[n](False)
    A("s_branch L_pre2\nL_nopre1:\ns_waitcnt vmcnt(0)\nL_pre2:")
    axpy(WA, WD+20, 20, f"v{T+8}", f"v{T+9}")
    redscat(WA, 5)
    A(f"s_mul_i32 {sT0}, {sW}, 1280\nv_lshl_add_u32 v4, {vLANE}, 2, {sT0}")
    for k in range(5): A(f"ds_write_b32 v4, v{WA+8*k} offset:{L_QP+256*k}")
    A(f"v_mov_b32 v5, 0\nv_mov_b32 v6, 1\ns_mov_b64 exec, 1\nds_add_u32 v5, v6 offset:{L_CT}\ns_mov_b64 exec, -1")
    stamp(2)
    if ab: A("s_barrier")
    A(f"s_cmp_eq_u32 {sW}, 4\ns_cbranch_scc1 L_svc")
    for n in range(pre1, len(ops)):
        ops[n](True)
        if n == trig: A(f"v_mov_b32 v6, 64\ns_mov_b64 exec, 1\nds_add_u32 v5, v6 offset:{L_CT}\ns_mov_b64 exec, -1")
    A(f"s_mov_b32 {sIB}, 1")
    for m in range(G):
        if m % 3 == 0: A(f"s_add_u32 {sOFF}, {sOFF}, {TSTR}")
        A(f"s_waitcnt vmcnt({pace-1})"); ld(RING + 4*m, m % 3)
    vQA, vSA = "v4", "v5"
    A(f"v_lshlrev_b32 {vQA}, 4, {vB}\nv_add_u32 {vQA}, {L_QB}, {vQA}")
    A(f"s_lshl_b32 {sT0}, {sW}, 12\ns_add_u32 {sT0}, {sT0}, {L_SC}\nv_lshl_add_u32 {vSA}, {vLANE}, 2, {sT0}")
    A(f"s_lshl_b32 {sT0}, {sX}, 2\ns_add_u32 {sT0}, {sT0}, {sW}\ns_mul_i32 {sT0}, {sT0}, 4224\ns_add_u32 {sT0}, {sT0}, {WS_PR}")
    A(f"s_add_u32 s28, s{pWS}, {sT0}\ns_addc_u32 s29, s{pWS+1}, 0\ns_mov_b32 s30, {132 if xd else 128}")
    A(f"v_lshlrev_b32 {vPL}, 2, {vLANE}\nv_mov_b32 {vPS}, 0x1000\nv_cmp_eq_u32 vcc, {sC}, {vLANE}\nv_cndmask_b32 {vPS}, {vPS}, {vPL}, vcc\nv_mov_b32 {vPC}, {sTAG}")
    A(f"s_getreg_b32 {sTHR}, hwreg(HW_REG_XCC_ID)\ns_bitcmp1_b32 {sTHR}, 0\ns_cselect_b32 {sTHR}, {fbo}, {fb}")
    A(f"s_add_u32 {sT0}, {sW}, {sOWN}\ns_cmp_eq_u32 {sT0}, 4\ns_cselect_b32 s22, 0, s22\ns_cselect_b32 {sL[0]}, 0, {sL[0]}\ns_cselect_b32 {sL[1]}, 0, {sL[1]}\ns_cselect_b32 {sL[2]}, 0, {sL[2]}")
    A(f"s_mov_b64 vcc, 0\ns_mov_b32 s47, 0")
    stamp(3)
    A("s_barrier")
    for j in range(3): A(f"ds_read_b128 v[{Q+4*j}:{Q+4*j+3}], {vQA} offset:{128*j}")
    A("s_waitcnt lgkmcnt(0)")
    stamp(4)
    SA, R, RT, S2 = ACC, ACC + 2, ACC + 6, ACC + 8
    def k_after_tile(t):
        A(f"v_add_f32_dpp v{R+(t&3)}, v{SA+(t&1)}, v{SA+(t&1)} row_half_mirror row_mask:0xf bank_mask:{'0xa' if t >= 4 else '0x5'}")
    def k_stage2(e): A(f"v_add_f32_dpp v{R+e}, v{R+e}, v{R+e} quad_perm:[2,3,0,1] {DPP}")
    def k_fin(which):
        if which == 0:
            k_after_tile(7); k_stage2(3)
            A(f"v_cndmask_b32 v{RT+1}, v{R+1}, v{R+3}, {mB1}")
        else:
            A(f"v_add_f32_dpp v{RT+1}, v{RT+1}, v{RT+1} quad_perm:[1,0,3,2] {DPP}\nv_cndmask_b32 v{RT}, v{RT}, v{RT+1}, {mB0}")
            A(f"ds_write_b32 {vSA}, v{RT}\nv_add_u32 {vSA}, 256, {vSA}")
    def k_body(first):
        for n in range(24):
            t, j = n//3, n % 3
            slot(n)
            if not first:
                if n < 2: k_fin(n)
                if n == 0: A("s_waitcnt lgkmcnt(0)")
                if n == bs: A("s_waitcnt lgkmcnt(0)\ns_barrier")
            else: qk4(S2 + t, PB + 4*n, j)
            if j == 0 and t >= 1: k_after_tile(t-1)
            if j == 1 and t >= 5: k_stage2(t-5)
            if n == 23: A(f"v_cndmask_b32 v{RT}, v{R}, v{R+2}, {mB1}")
            if n == 20: A(f"s_add_u32 {sBLK}, {sBLK}, 1\ns_and_b32 {sT0}, {sBLK}, {BPS-1}\ns_cselect_b32 {sT0}, 0, 384\nv_add_u32 {vQA}, {sT0}, {vQA}")
            if "c" not in skip: qk4(SA + (t & 1), RING + 4*(n % RB), j)
            if n == 23: A(f"v_add_f32_dpp v{RT}, v{RT}, v{RT} quad_perm:[1,0,3,2] {DPP}")
            if t == 7: A(f"ds_read_b128 v[{Q+4*j}:{Q+4*j+3}], {vQA} offset:{128*j}")
    A(f"s_mov_b32 {sBLK}, 1")
    k_body(True)
    redscat_lo([S2])
    A(f"ds_write_b32 {vSA}, v{S2}\nv_add_u32 {vSA}, 256, {vSA}")
    A("L_k:")
    k_body(False)
    def stab(t): A(f"s_cmp_lg_u32 {sBLK}, {stA}\ns_cbranch_scc1 L_st1{t}\ns_memrealtime s[42:43]\nL_st1{t}:\ns_cmp_lg_u32 {sBLK}, {stB}\ns_cbranch_scc1 L_st2{t}\ns_memrealtime s[48:49]\nL_st2{t}:")
    def trc():
        if diag3: A(f"s_memrealtime s[100:101]\ns_waitcnt lgkmcnt(0)\ns_mov_b32 m0, {sBLK}\nv_writelane_b32 v199, s100, m0")
    trc()
    if stamps: stab("k")
    A(f"s_cmp_lt_u32 {sBLK}, 16\ns_cbranch_scc1 L_k")
    if stamps: A("s_memrealtime s[50:51]")
    vP, vPN, pl, ph, vOA, RV = "v44", "v45", "v46", "v47", "v4", Q
    k_fin(0); k_fin(1)
    A(f"v_subrev_u32 {vSA}, 4096, {vSA}\nds_read_b32 {vPN}, {vSA} offset:{512*PI[0]}")
    A(f"s_lshl_b32 {sT0}, {sW}, 10\ns_add_u32 {sT0}, {sT0}, {L_OP}\nv_add_u32 {vOA}, {sT0}, v7\ns_mov_b32 s73, 0\ns_waitcnt lgkmcnt(0)")
    for i in range(24): A(f"v_mov_b32 v{ACC+i}, 0")
    def v_a(g, zero=True):
        b = ACC + 8*g
        for e in range(4): A(f"v_permlane32_swap_b32 v{b+e}, v{b+e+4}")
        for e in range(4): A(f"v_add_f32 v{RV+4*g+e}, v{b+e}, v{b+e+4}")
        if zero:
            for e in range(8): A(f"v_mov_b32 v{b+e}, 0")
    def v_b(gs):
        for g in gs:
            for e in range(2): A(f"v_permlane16_swap_b32 v{RV+4*g+e}, v{RV+4*g+e+2}")
        for g in gs:
            for e in range(2): A(f"v_add_f32 v{RV+4*g+e}, v{RV+4*g+e}, v{RV+4*g+e+2}")
        for g in gs: A(f"v_add_f32_dpp v{48+g}, v{RV+4*g}, v{RV+4*g} row_ror:8 row_mask:0xf bank_mask:0x3")
        for g in gs: A(f"v_add_f32_dpp v{48+g}, v{RV+4*g+1}, v{RV+4*g+1} row_ror:8 row_mask:0xf bank_mask:0xc")
    def v_out(): A(f"ds_write_b96 {vOA}, v[48:50]\nv_xor_b32 {vOA}, 4096, {vOA}")
    def cond(lab, code): A(f"s_cmp_eq_u32 s73, 0\ns_cbranch_scc1 {lab}"); code(); A(f"{lab}:")
    def v_comp(n):
        if n % 3 == 0:
            t = n//3
            A(f"v_mov_b32_dpp {pl}, {vP} row_newbcast:{t} row_mask:0xf bank_mask:0x3")
            A(f"v_mov_b32_dpp {pl}, {vP} row_newbcast:{8+t} row_mask:0xf bank_mask:0xc")
            A(f"v_lshlrev_b32 {ph}, 16, {pl}")
        if "c" not in skip: axpy(ACC + 8*(n % 3), RING + 4*(n % RB), 4, pl, ph)
    A("L_v:")
    for n in range(24):
        if n == 24 - G: A(f"s_cmp_eq_u32 {sBLK}, 31\ns_cbranch_scc1 L_vend")
        slot(n, True)
        if n == 0: A(f"s_waitcnt lgkmcnt(0)\nv_mov_b32 {vP}, {vPN}"); cond("L_c0", lambda: v_a(2))
        if n == 1: cond("L_c1", lambda: (v_b([2]), v_out()))
        if n == bs: A("s_waitcnt lgkmcnt(0)\ns_barrier")
        if n == 20:
            A(f"s_add_u32 {sT1}, {sBLK}, 1\ns_and_b32 {sT0}, {sT1}, {BPS-1}\ns_cselect_b32 s73, 0, 1")
            A(f"s_and_b32 {sT1}, {sT1}, 14\ns_lshl_b32 {sT1}, {sT1}, 1\ns_lshr_b32 {sT1}, {hex(PILUT)}, {sT1}\ns_and_b32 {sT1}, {sT1}, 7")
            A(f"s_lshl_b32 {sT1}, {sT1}, 1\ns_add_u32 {sT1}, {sT1}, {sT0}\ns_lshl_b32 {sT1}, {sT1}, 8\nv_add_u32 v51, {sT1}, {vSA}\nds_read_b32 {vPN}, v51")
        v_comp(n)
        if n == 21: cond("L_c21", lambda: (v_a(0), v_b([0])))
        if n == 22: cond("L_c22", lambda: (v_a(1), v_b([1])))
    A(f"s_add_u32 {sBLK}, {sBLK}, 1")
    trc()
    if stamps: stab("v"); A(f"; SSBYTES={(stB-stA)*8*3072}")
    A("s_branch L_v")
    A("L_vend:")
    W4, W1, YA, UF = PB, PB + 24, PB + 32, PB + 44
    late = []
    for r in range(6):
        late.append(f"buffer_load_dwordx4 v[{W4+4*r}:{W4+4*r+3}], v7, {TA_}, {sL[r//2]} offen offset:{1280*(r%2)} nt")
        late.append(f"buffer_load_dword v{W1+r}, {vPL}, {TA_}, {sL[r//2]} offen offset:{1024+1280*(r%2)} nt")
    late.insert(ptpos, f"buffer_load_dword v{W1+6}, v7, {WS_}, {sT1} offen {pt}")
    assert sum(sched) == 13 and len(sched) == G
    A(f"s_lshl_b32 {sT1}, {sLIN}, 12\ns_lshl_b32 {sT0}, {sW}, 10\ns_add_u32 {sT1}, {sT1}, {sT0}\ns_add_u32 {sT1}, {sT1}, {WS_H2}")
    done = 0
    for n in range(24 - G, 24):
        A(f"s_waitcnt vmcnt({23 - n + 2*sum(1 for c in cps if n - G <= c < 24 - G) + done})")
        for i in range(sched[n - 24 + G]): A(late[done]); done += 1
        v_comp(n)
        if n == 23: stamp(5)
        if n >= 21: v_a(n - 21, False); v_b([n - 21])
    v_out()
    A(f"s_lshl_b32 {sT0}, {sW}, 4\nv_mov_b32 v8, {sT0}\ns_waitcnt lgkmcnt(0)\ns_barrier")
    stamp(6)
    LW = PB + 56
    A(f"ds_read_b128 v[12:15], v8 offset:{L_U}")
    A(f"s_mul_i32 {sT0}, {sW}, 640\nv_mul_u32_u24 v11, 80, {vA}\nv_mad_u32_u24 v11, {vB}, 12, v11\nv_add_u32 v11, {sT0}, v11\nv_lshrrev_b32 v40, 1, v11")
    for r in range(6):
        for e in range(3): A(f"ds_read_u16 v{LW+10+3*r+e}, v40 offset:{L_W+7680+1280*r+2*e}")
        if r == 3: A("s_waitcnt lgkmcnt(0)")
    A(f"s_mul_i32 {sT0}, {sW}, 2560\nv_lshl_add_u32 v9, {vLANE}, 5, {sT0}\nv_lshl_add_u32 v10, {vLANE}, 3, {sT0}\nv_add_u32 v11, {L_YP}, v11")
    A(f"v_mov_b32 v19, {sTAG}")
    A("v_mov_b32 v8, 0\nv_mov_b32 v41, 0x10000")
    for i in range(10): A(f"v_mov_b32 v{YA+i}, 0")
    for p in range(3):
        A(f"v_and_b32 v{UF+4*p}, 0xffff, v{12+p}\nv_lshlrev_b32 v{UF+4*p+1}, 16, v{12+p}\nv_lshrrev_b32 v{UF+4*p+2}, 16, v{12+p}\nv_and_b32 v{UF+4*p+3}, 0xffff0000, v{12+p}")
    A(f"v_readfirstlane_b32 {sT3}, v15\ns_waitcnt lgkmcnt(0)")
    for p in range(3):
        for e in range(3): A(f"v_lshl_or_b32 v{LW+3*p+e}, v{LW+10+6*p+3+e}, 16, v{LW+10+6*p+e}")
    for r in range(6):
        pos = [i for i, l in enumerate(late) if l.startswith(f"buffer_load_dword v{W1+r},")][0]
        A(f"s_waitcnt vmcnt({12-pos})")
        axpy(YA, W4 + 4*r, 4, f"v{UF+2*r}", f"v{UF+2*r+1}"); axpy(YA + 8, W1 + r, 1, f"v{UF+2*r}", f"v{UF+2*r+1}")
    A(f"ds_write_b128 v9, v[{YA}:{YA+3}] offset:{L_YP}\nds_write_b128 v9, v[{YA+4}:{YA+7}] offset:{L_YP+16}")
    A(f"ds_write_b64 v10, v[{YA+8}:{YA+9}] offset:{L_YP+2048}\ns_mov_b64 exec, 1\nds_add_u32 v8, v41 offset:{L_CT}\ns_mov_b64 exec, -1")
    A(f"L_wy:\nds_read_b32 v41, v8 offset:{L_CT}\ns_waitcnt lgkmcnt(0)\nv_cmp_gt_u32 vcc, 0x40000, v41\ns_cbranch_vccnz L_wy")
    for k in range(5):
        A(f"ds_read2_b32 v[{20+4*k}:{21+4*k}], v11 offset0:0 offset1:1\nds_read_b32 v{22+4*k}, v11 offset:8")
        if k < 4: A("v_add_u32 v11, 2560, v11")
    A("s_waitcnt lgkmcnt(0)")
    for e in range(3): A(f"v_add_f32 v{20+e}, v{20+e}, v{24+e}\nv_add_f32 v{28+e}, v{28+e}, v{32+e}")
    for e in range(3): A(f"v_add_f32 v{20+e}, v{20+e}, v{36+e}")
    for e in range(3): A(f"v_add_f32 v{16+e}, v{20+e}, v{28+e}")
    stamp(7)
    A(f"s_barrier\nds_read_b96 v[12:14], v8 offset:{L_U+64}\ns_waitcnt lgkmcnt(0)")
    for p in range(3):
        for e in range(3): A(f"v_dot2c_f32_bf16 v{16+e}, v{12+p}, v{LW+3*p+e}")
    A(f"s_cmp_eq_u32 {sT3}, 0\ns_cbranch_scc1 L_yr\nbuffer_store_dwordx4 v[16:19], v7, {WS_}, {sT1} offen\ns_branch L_done")
    A(f"L_yr:\nbuffer_store_dwordx4 v[16:19], v7, {WS_}, {sT1} offen sc1\ns_branch L_done")
    A("L_svc:")
    G0 = RING; G1 = G0 + 8
    vQW, vSC, vML, vOP, vLS, vM, vZ, vZK, vXA = [f"v{32+i}" for i in range(7)] + ["v40", "v42"]
    ZS, ZM = 52, 8
    vWA, vH1S, vH1G, vYG, vH3, vYW, vYR, vOUT, XV = "v16", "v17", "v18", "v19", "v20", "v21", "v29", 22, 26
    P0, P1, YY = PB, PB + 32, PB + 64
    YT = YY + 12
    LP = 64//NSEG; LLP = LP.bit_length()-1; NLS = GS//LP; NR = 4*BPS
    sF = [f"s{r}" for r in (20, 21, 22, 24, 25, 26, 28, 29)]
    sLOC, sHD, sTG2, sH1S, sH1G, sYS, sYG, sH3S, sH3G, sXS, sXG, sFL = [f"s{r}" for r in range(72, 84)]
    sUU = ["s60", "s61", "s62"]
    sSCALE, sLOG2E = "s12", "s13"
    def store2(lab, stores):
        A(f"s_cmp_eq_u32 {sLOC}, 0\ns_cbranch_scc1 {lab}_r"); stores(""); A(f"s_branch {lab}_d\n{lab}_r:"); stores("sc1"); A(f"{lab}_d:")
    def poll(lab, loads, tags, sleep=0, first=None, tag=sTAG, loc=False):
        A(f"s_mov_b32 {sT2}, {spin}")
        if first is not None: loads(first); A(f"s_branch {lab}_chk")
        elif sleep: A(f"s_branch {lab}_go")
        A(f"{lab}:")
        if sleep: A(f"s_sleep {sleep}\n{lab}_go:")
        if loc and lp != "sc1":
            A(f"s_cmp_eq_u32 {sLOC}, 0\ns_cbranch_scc1 {lab}_rm"); loads(lp); A(f"s_branch {lab}_chk\n{lab}_rm:")
        loads("sc1")
        A(f"{lab}_chk:\ns_waitcnt vmcnt(0)")
        if len(tags) == 1: A(f"v_cmp_ne_u32 vcc, {tag}, {tags[0]}")
        else:
            A(f"v_xor_b32 {t0}, {tag}, {tags[0]}")
            for t in tags[1:]: A(f"v_bitop3_b32 {t0}, {t}, {tag}, {t0} bitop3:0xbe")
            A(f"v_cmp_ne_u32 vcc, 0, {t0}")
        A(f"s_cbranch_vccz {lab}_done\ns_sub_u32 {sT2}, {sT2}, 1\ns_cbranch_scc0 {lab}\n{lab}_done:")
    A(f"v_lshlrev_b32 v4, 2, {vLANE}")
    A(f"L_wq:\nds_read_b32 v6, v5 offset:{L_CT}\ns_waitcnt lgkmcnt(0)\nv_and_b32 v6, 7, v6\nv_cmp_gt_u32 vcc, 5, v6\ns_cbranch_vccnz L_wq")
    for w in range(5):
        for k in range(5): A(f"ds_read_b32 v{G0+5*w+k}, v4 offset:{L_QP+1280*w+256*k}")
        if w == 2: A("s_waitcnt lgkmcnt(0)")
    A("s_waitcnt lgkmcnt(0)")
    for w in range(1, 5):
        for k in range(5): A(f"v_add_f32 v{G0+k}, v{G0+k}, v{G0+5*w+k}")
    A(f"v_lshl_add_u32 v5, {vB}, 3, {vA}\nv_lshlrev_b32 {vQW}, 1, v5\nv_lshlrev_b32 v5, 4, v5")
    A(f"v_mov_b32 v48, v{G0+3}\nv_mov_b32 v49, v{G0+4}\nv_mov_b32 v{G0+3}, {sTAG}\nv_mov_b32 v50, {sTAG}\nv_mov_b32 v51, {sTAG}")
    A(f"s_lshl_b32 {sT0}, {sLIN}, 11\ns_add_u32 {sT0}, {sT0}, {WS_QS}")
    A(f"buffer_store_dwordx4 v[{G0}:{G0+3}], v7, {WS_}, {sT0} offen sc1")
    stamp(3)
    A(f"v_add_u32 {vSC}, {L_SC}, v4\nv_mov_b32 {vML}, {L_ML}\nv_add_u32 {vOP}, {L_OP}, v7\nv_mov_b32 {vZ}, 0")
    A(f"s_mov_b32 {sSCALE}, 0x3d93cd3a\ns_mov_b32 {sLOG2E}, 0x3fb8aa3b\ns_mov_b32 {sBLK}, -1")
    A(f"s_lshl_b32 {sHD}, {sG}, {11+LGS}\ns_add_u32 {sHD}, {sHD}, {WS_QS}")
    A(f"L_wt:\ns_sleep 2\nds_read_b32 v10, {vZ} offset:{L_CT}\ns_waitcnt lgkmcnt(0)\nv_cmp_gt_u32 vcc, 256, v10\ns_cbranch_vccnz L_wt")
    A("s_branch L_gq0")
    A("L_blk:")
    if xd:
        A(f"s_cmp_lg_u32 {sC}, 0\ns_cbranch_scc1 L_noxf\ns_and_b32 {sT0}, {sBLK}, {xp-1}\ns_cmp_lg_u32 {sT0}, {xp-1}\ns_cbranch_scc1 L_noxf\ns_cmp_gt_u32 {sBLK}, 28\ns_cbranch_scc1 L_noxf")
        A(f"s_add_u32 {sT0}, {sTAG}, {sBLK}\nv_mov_b32 v12, {sT0}\nv_mul_u32_u24 v13, 4224, {vLANE}\ns_mul_i32 {sT1}, {sX}, 4224\ns_add_u32 {sT1}, {sT1}, {WS_PR+0x30000}")
        A(f"s_mov_b64 exec, 1\nbuffer_store_dword v12, v13, {WS_}, {sT1} offen sc1\ns_mov_b32 {sT1}, {WS_PR+0x30000}")
        if xs < 0: A("s_waitcnt vmcnt(0)")
        if xs > 0: A(f"s_sleep {xs}")
        A(f"s_mov_b64 exec, 0xff\nbuffer_load_dword v14, v13, {WS_}, {sT1} offen sc1\ns_waitcnt vmcnt(0)")
        lutv = sum((d + 8) << (4*i) for i, d in enumerate(xd))
        A(f"v_sub_u32 v14, v14, v12\nv_cmp_gt_u32 vcc, 64, v14\ns_bitset0_b32 vcc_lo, {sX}\ns_bcnt1_i32_b64 {sT0}, vcc\ns_lshl_b32 {sT0}, {sT0}, 2")
        A(f"s_lshr_b32 {sT0}, {hex(lutv)}, {sT0}\ns_and_b32 {sT0}, {sT0}, 15\ns_getreg_b32 {sT1}, hwreg(HW_REG_XCC_ID)\ns_bitcmp1_b32 {sT1}, 0\ns_cselect_b32 {sT1}, {fbo-8}, {fb-8}")
        A(f"s_add_u32 {sT0}, {sT0}, {sT1}\ns_min_u32 {sT0}, {sT0}, 32\ns_add_u32 {sT0}, {sT0}, {sTAG}\nv_mov_b32 v12, {sT0}")
        A(f"s_mul_i32 {sT1}, {sX}, {4*4224}\ns_add_u32 {sT1}, {sT1}, {WS_PR+128}\ns_mov_b64 exec, 0xf")
        A(f"buffer_store_dword v12, v13, {WS_}, {sT1} offen\ns_mov_b64 exec, -1\nL_noxf:")
    A(f"s_cmp_le_u32 {sBLK}, 16\ns_cbranch_scc1 L_kpart\ns_and_b32 {sT0}, {sBLK}, {BPS-1}\ns_cbranch_scc1 L_vmid")
    stamp(5)
    for w in range(4): A(f"ds_read_b96 v[{G0+4*w}:{G0+4*w+2}], {vOP} offset:{1024*w}")
    A(f"v_xor_b32 {vOP}, 4096, {vOP}\nv_mov_b32 v{G0+19}, {sTG2}\ns_waitcnt lgkmcnt(0)")
    for k in range(3): A(f"v_add_f32 v{G0+k}, v{G0+k}, v{G0+4+k}\nv_add_f32 v{G0+8+k}, v{G0+8+k}, v{G0+12+k}")
    for k in range(3): A(f"v_add_f32 v{G0+k}, v{G0+k}, v{G0+8+k}")
    for k in range(3): A(f"v_mul_f32 v{G0+16+k}, {sF[0]}, v{G0+k}")
    if "h" in skip: A(f"s_cmp_lg_u32 {sBLK}, 32\ns_cbranch_scc1 L_p1_done")
    store2("L_s1", lambda p: A(f"buffer_store_dwordx4 v[{G0+16}:{G0+19}], {vH1S}, {WS_}, {sH1S} offen {p}"))
    poll("L_p1", lambda p: A(f"buffer_load_dwordx4 v[{G0}:{G0+3}], {vH1G}, {WS_}, {sH1G} offen {p}"), [f"v{G0+3}"], tag=sTG2, loc=True)
    stamp(6)
    A(f"v_mov_b32 v{G0+3}, 0\nv_permlane32_swap_b32 v{G0}, v{G0+1}\nv_permlane32_swap_b32 v{G0+2}, v{G0+3}")
    A(f"v_add_f32 v{G0}, v{G0}, v{G0+1}\nv_add_f32 v{G0+2}, v{G0+2}, v{G0+3}\nv_permlane16_swap_b32 v{G0}, v{G0+2}\nv_add_f32 {vZK}, v{G0}, v{G0+2}")
    allred_lo("v_add_f32", [vZK], 3)
    A(f"s_cmp_eq_u32 {sBLK}, 32\ns_cbranch_scc1 L_tail")
    for i in range(NSEG-1): A(f"s_mov_b32 {sF[i]}, {sF[i+1]}")
    A(f"s_add_u32 {sTG2}, {sTG2}, 1\ns_xor_b32 {sH1S}, {sH1S}, 1024\ns_xor_b32 {sH1G}, {sH1G}, 1024")
    A(f"s_lshr_b32 {sT0}, {sBLK}, 1\ns_xor_b32 {sT0}, {sT0}, {sOWN}\ns_bitcmp1_b32 {sT0}, 0\ns_cbranch_scc0 L_notmine")
    A(f"v_mov_b32 v{ZM}, v{ZM+1}\nv_mov_b32 v{ZM+1}, v{ZM+2}\nv_mov_b32 v{ZM+2}, {vZK}\ns_cmp_eq_u32 {sBLK}, 28\ns_cbranch_scc0 L_next\ns_branch L_send")
    A(f"L_notmine:\nv_mov_b32 v{ZS}, v{ZS+1}\nv_mov_b32 v{ZS+1}, v{ZS+2}\nv_mov_b32 v{ZS+2}, {vZK}\ns_cmp_ge_u32 {sBLK}, 28\ns_cbranch_scc0 L_next")
    A("L_send:")
    if "x" in skip: A("s_branch L_next")
    A(f"s_mov_b32 exec_lo, 0x01010101\ns_mov_b32 exec_hi, 0x01010101")
    A(f"buffer_store_dwordx4 v[{ZS}:{ZS+3}], {vXA}, {WS_}, {sXS} offen sc1\ns_mov_b64 exec, -1\ns_add_u32 {sXS}, {sXS}, 128")
    A("s_branch L_next")
    A("L_vmid:")
    A(f"s_cmp_lg_u32 {sBLK}, {lsb}\ns_cbranch_scc1 L_nols")
    A(f"s_mul_i32 {sT1}, {sG}, {GS*128}\ns_add_u32 {sT1}, {sT1}, {WS_LS}\ns_add_u32 {sT3}, {sT1}, 4096")
    def gl(p):
        for r in range(NLS): A(f"buffer_load_dwordx4 v[{G0+4*r}:{G0+4*r+3}], {vLS}, {WS_}, {sT1 if LP*128*r < 4096 else sT3} offen offset:{LP*128*r % 4096} {p}")
    poll("L_ls", gl, [f"v{G0+4*r+e}" for r in range(NLS) for e in (1, 3)], sleep=16, first="")
    hn = NLS//2 if PAIR else NLS
    for h, t in ((0, t0), (1, t1))[:2 if PAIR else 1]:
        A(f"v_xor_b32 {t}, {sLOC}, v{G0+4*hn*h+2}")
        for r in range(1, hn): A(f"v_bitop3_b32 {t}, v{G0+4*(hn*h+r)+2}, {sLOC}, {t} bitop3:0xbe")
    if PAIR: A(f"s_bitcmp1_b32 {sX}, 0\ns_cselect_b64 vcc, -1, 0\nv_cndmask_b32 {t0}, {t0}, {t1}, vcc")
    A(f"v_cmp_ne_u32 vcc, 0, {t0}\ns_cmp_eq_u64 vcc, 0\ns_cselect_b32 {sLOC}, {local}, 0")
    A(f"v_max_f32 {t0}, v{G0}, v{G0+4}")
    for r in range(2, NLS, 2): A(f"v_max3_f32 {t0}, {t0}, v{G0+4*r}, v{G0+4*r+4}")
    allred_lo("v_max_f32", [t0], LLP)
    for r in range(NLS): A(f"v_sub_f32 v{G0+4*r}, v{G0+4*r}, {t0}")
    for r in range(NLS): A(f"v_exp_f32 v{G0+4*r}, v{G0+4*r}")
    for r in range(1, NLS): A(f"v_add_f32 v{G0}, v{G0}, v{G0+4*r}")
    allred_lo("v_add_f32", [f"v{G0}"], LLP)
    A(f"v_sub_f32 {t0}, {vM}, {t0}\nv_exp_f32 {t0}, {t0}\nv_rcp_f32 {t1}, v{G0}\nv_mul_f32 {t0}, {t0}, {t1}")
    for k in range(NSEG): A(f"v_readlane_b32 {sF[k]}, {t0}, {LP*PI[k]}")
    A(f"v_mov_b32 {t0}, 0\nv_mov_b32 {t1}, 0\nv_mov_b32 {t2}, 0\nv_mov_b32 {t3}, {sLOC}\ns_mov_b64 exec, 0xf\nds_write_b128 v7, v[{T}:{T+3}] offset:{L_U}")
    A(f"s_lshl_b32 {sT0}, {sLIN}, 11\ns_add_u32 {sT0}, {sT0}, {WS_QS}\ns_mov_b32 exec_lo, 0x3f3f3f3f\ns_mov_b32 exec_hi, 0x3f3f3f3f")
    store2("L_s0", lambda p: A(f"buffer_store_dwordx4 v[48:51], v5, {WS_}, {sT0} offen offset:1024 {p}"))
    A("s_mov_b64 exec, -1\ns_branch L_next")
    A("L_nols:")
    A(f"s_cmp_lg_u32 {sBLK}, {lsb+2}\ns_cbranch_scc1 L_nogu2")
    A(f"v_lshlrev_b32 v6, 11, {vA}\nv_lshl_add_u32 v6, {vB}, 4, v6\nv_mov_b32 v{G1}, 0\nv_mov_b32 v{G1+1}, 0")
    A(f"s_lshr_b32 {sT1}, {sLIN}, 3\ns_lshl_b32 {sT1}, {sT1}, 14\ns_mul_i32 {sT0}, {sS}, 96\ns_add_u32 {sT1}, {sT1}, {sT0}\ns_add_u32 {sT1}, {sT1}, {WS_QS}")
    A(f"s_mov_b32 exec_lo, 0x3f3f3f3f\ns_mov_b32 exec_hi, 0x3f3f3f3f")
    poll("L_gu", lambda p: A(f"buffer_load_dwordx4 v[{G1}:{G1+3}], v6, {WS_}, {sT1} offen offset:1024 {p}"), [f"v{G1+2}", f"v{G1+3}"], sleep=psleep, loc=True)
    A("s_mov_b64 exec, -1")
    for k in range(2): A(f"v_add_f32_dpp v{G1+k}, v{G1+k}, v{G1+k} row_ror:8 {DPP}")
    allred_top("v_add_f32", [f"v{G1}", f"v{G1+1}"], [t0, t1])
    A(f"v_cvt_pk_bf16_f32 v{G1}, 0, v{G1}\nv_cvt_pk_bf16_f32 v{G1+1}, 0, v{G1+1}")
    A(f"v_cmp_lt_f32 vcc, 0, v{G1}\nv_cndmask_b32 {t0}, 0, 1.0, vcc\nv_mul_f32 {t3}, v{G1}, {t0}\nv_mul_f32 {t3}, {t3}, v{G1+1}\nv_cvt_pk_bf16_f32 {t3}, {t3}, 0")
    A(f"v_mov_b32_dpp {t0}, {t3} quad_perm:[1,1,3,3] {DPP}\nv_lshl_or_b32 {t3}, {t0}, 16, {t3}")
    for i in range(3): A(f"v_readlane_b32 {sUU[i]}, {t3}, {2*i}")
    for r in range(6):
        for d in range(5): A(f"ds_read_b32 v{P0+5*r+d}, {vWA} offset:{1280*r+4*d}")
        if r % 2: A("s_waitcnt lgkmcnt(0)")
    A(f"s_mov_b32 {sT1}, 0x05040100\ns_mov_b32 {sT3}, 0x07060302")
    for p in range(3):
        for d in range(5):
            A(f"v_perm_b32 v{P1+10*p+2*d}, v{P0+10*p+5+d}, v{P0+10*p+d}, {sT1}\nv_perm_b32 v{P1+10*p+2*d+1}, v{P0+10*p+5+d}, v{P0+10*p+d}, {sT3}")
    for p in range(3):
        for c in range(10): A(f"v_dot2c_f32_bf16 v{YY+c}, {sUU[p]}, v{P1+10*p+c}")
    for d in range(5): A(f"ds_write_b64 {vYW}, v[{YY+2*d}:{YY+2*d+1}] offset:{L_YP+10240+8*d}")
    A("s_branch L_next")
    A("L_nogu2:")
    A(f"s_cmp_lg_u32 {sBLK}, 31\ns_cbranch_scc1 L_nopf")
    if pf is not None:
        for r in range(4 if "y" in pfw else 0):
            A(f"s_add_u32 {sT0}, {sYG}, {8*4096*r}\nbuffer_load_dwordx4 v[{G0+8+4*r}:{G0+8+4*r+3}], {vYG}, {WS_}, {sT0} offen {pf}")
        if "h" in pfw: A(f"buffer_load_dwordx4 v[{G0+24}:{G0+27}], v7, {WS_}, {sH1S} offen {pf}")
    A("L_nopf:")
    A(f"s_cmp_lt_u32 {sBLK}, 29\ns_cbranch_scc1 L_next\ns_add_u32 {sT0}, {sBLK}, {sOWN}\ns_cmp_gt_u32 {sT0}, 31\ns_cbranch_scc1 L_last")
    if "x" not in skip:
        poll("L_px", lambda p: A(f"buffer_load_dwordx4 v[{G0}:{G0+3}], {vXA}, {WS_}, {sXG} offen {p}"), [f"v{G0+3}"], sleep=psleep)
    for k in range(3): A(f"v_add_f32 v{ZM+k}, v{ZM+k}, v{G0+k}")
    A(f"s_add_u32 {sXG}, {sXG}, 128\ns_mov_b32 {sFL}, 3\ns_cmp_eq_u32 {sBLK}, 29\ns_cbranch_scc1 L_take\ns_mov_b32 {sFL}, 1\nv_mov_b32 v{ZM}, v{ZM+2}")
    A(f"L_take:\nv_mov_b32_dpp v{G0+1}, v{ZM} row_ror:8 {DPP}\nv_cvt_pk_bf16_f32 v{G0}, v{ZM}, v{G0+1}\nv_mov_b32 v{ZM}, v{ZM+1}\nv_mov_b32 v{ZM+1}, v{ZM+2}")
    A(f"s_mov_b32 exec_lo, 0x00010001\ns_mov_b32 exec_hi, 1\nds_write_b32 {vYR}, v{G0}\ns_mov_b64 exec, -1\nv_add_u32 {vYR}, 16, {vYR}")
    A(f"s_sub_u32 {sFL}, {sFL}, 1\ns_cmp_gt_u32 {sFL}, 0\ns_cbranch_scc1 L_take")
    A("L_last:")
    A(f"s_cmp_lg_u32 {sBLK}, 31\ns_cbranch_scc1 L_next\ns_setprio 3\ns_waitcnt vmcnt(0)")
    A("L_next:")
    A(f"s_add_u32 {sBLK}, {sBLK}, 1\ns_waitcnt lgkmcnt(0)\ns_barrier\ns_branch L_blk")
    A("L_kpart:\ns_setprio 0")
    A(f"s_and_b32 {sT0}, {sBLK}, {BPS-1}\ns_cbranch_scc1 L_nosm")
    for w in range(4):
        for k in range(BPS): A(f"ds_read_b32 v{G0+BPS*w+k}, {vSC} offset:{4096*w+256*k}")
        if w == 1: A("s_waitcnt lgkmcnt(0)")
    A("s_waitcnt lgkmcnt(0)")
    for i in range(NR): A(f"v_cvt_pk_bf16_f32 v{G0+i}, 0, v{G0+i}")
    for i in range(NR): A(f"v_mul_f32 v{G0+i}, {sSCALE}, v{G0+i}")
    for i in range(NR): A(f"v_cvt_pk_bf16_f32 v{G0+i}, 0, v{G0+i}")
    for i in range(NR): A(f"v_mul_f32 v{G0+i}, {sLOG2E}, v{G0+i}")
    A(f"v_max_f32 {t0}, v{G0}, v{G0+1}")
    for i in range(2, NR, 2): A(f"v_max3_f32 {t0}, {t0}, v{G0+i}, v{G0+i+1}")
    allred_lo("v_max_f32", [t0]); allred_top("v_max_f32", [t0], [t1])
    for i in range(NR): A(f"v_sub_f32 v{G0+i}, v{G0+i}, {t0}")
    for i in range(NR): A(f"v_exp_f32 v{G0+i}, v{G0+i}")
    A(f"v_add_f32 {t1}, v{G0}, v{G0+1}")
    for i in range(2, NR): A(f"v_add_f32 {t1}, {t1}, v{G0+i}")
    for i in range(NR): A(f"v_cvt_pk_bf16_f32 v{G0+i}, v{G0+i}, 0")
    for w in range(4):
        for k in range(BPS): A(f"ds_write_b32 {vSC}, v{G0+BPS*w+k} offset:{4096*w+256*k}")
        if w == 1: A("s_waitcnt lgkmcnt(0)")
    allred_lo("v_add_f32", [t1]); allred_top("v_add_f32", [t1], [t2])
    A(f"v_log_f32 {t3}, {t1}\nv_mov_b32 {t2}, {t0}\nv_add_f32 {t3}, {t3}, {t0}")
    A(f"ds_write_b64 {vML}, v[{T+2}:{T+3}]")
    A(f"v_add_u32 {vSC}, {256*BPS}, {vSC}\nv_add_u32 {vML}, 8, {vML}")
    A("L_nosm:")
    A(f"s_cmp_ge_u32 {sBLK}, {0 if 'q' in skip else NSEG-1}\ns_cbranch_scc1 L_noq")
    A("L_gq0:")
    def gq(p):
        for s in range(8):
            if s % 2 == 0: A(f"s_add_u32 {sT0}, {sHD}, {2048*s}")
            A(f"buffer_load_dwordx4 v[{G1+4*s}:{G1+4*s+3}], v7, {WS_}, {sT0} offen offset:{2048*(s%2)} {p}")
    poll("L_gq", gq, [f"v{G1+4*s+3}" for s in range(8)], first="", sleep=psleep)
    for s in range(1, 8):
        for k in range(3): A(f"v_add_f32 v{G1+k}, v{G1+k}, v{G1+4*s+k}")
    for k in range(3): A(f"v_cvt_pk_bf16_f32 v{G1+k}, v{G1+k}, 0")
    for k in range(3): A(f"ds_write_b16 {vQW}, v{G1+k} offset:{L_QB+128*k}")
    A(f"v_add_u32 {vQW}, 384, {vQW}\ns_add_u32 {sHD}, {sHD}, 16384")
    A(f"s_cmp_lt_i32 {sBLK}, 0\ns_cselect_b32 {sBLK}, 0, {sBLK}\ns_cbranch_scc1 L_gq0")
    if timed:
        A(f"s_cmp_lg_u32 {sBLK}, 0\ns_cbranch_scc1 L_next"); stamp(4)
    A("s_branch L_next")
    A("L_noq:")
    A(f"s_cmp_lg_u32 {sBLK}, {NSEG+1}\ns_cbranch_scc1 L_nogu")
    A(f"v_mul_u32_u24 {vWA}, 20, {vLANE}\nv_add_u32 {vWA}, {L_W}, {vWA}")
    A(f"v_lshrrev_b32 {t0}, 4, {vLANE}\nv_lshl_add_u32 {t0}, {t0}, 3, {vB}\nv_and_b32 {t1}, 8, {vLANE}\nv_lshlrev_b32 {t1}, 1, {t1}")
    A(f"v_lshl_add_u32 {vH1S}, {t0}, 5, {t1}\nv_lshl_add_u32 {vH1G}, {t0}, 11, {t1}")
    A(f"s_lshl_b32 {sH1S}, {sLIN}, 11\ns_add_u32 {sH1S}, {sH1S}, {WS_H1}")
    A(f"s_lshl_b32 {sH1G}, {sX}, 16\ns_lshl_b32 {sT0}, {sC}, 5\ns_add_u32 {sH1G}, {sH1G}, {sT0}\ns_add_u32 {sH1G}, {sH1G}, {WS_H1}")
    A(f"v_mul_u32_u24 {vYW}, 40, {vLANE}\nv_lshrrev_b32 {vYR}, 1, {vLANE}\nv_and_b32 {vYR}, 8, {vYR}\nv_lshrrev_b32 {t0}, 3, {vLANE}\nv_and_or_b32 {vYR}, {t0}, 4, {vYR}\nv_add_u32 {vYR}, {L_U}, {vYR}\nv_mov_b32 v43, {vYR}")
    A(f"v_lshlrev_b32 {t0}, 4, {vB}\nv_lshl_add_u32 {vYG}, {vA}, 12, {t0}\nv_lshlrev_b32 {vXA}, 4, {vA}\nv_mov_b32 v41, {sTAG}\nv_mov_b32 v{ZS+3}, {sTAG}")
    A(f"s_lshl_b32 {sYS}, {sLIN}, 12\ns_add_u32 {sYS}, {sYS}, {WS_H2}")
    A(f"s_lshl_b32 {sYG}, {sX}, 17\ns_lshl_b32 {sT0}, {sC}, 7\ns_add_u32 {sYG}, {sYG}, {sT0}\ns_add_u32 {sYG}, {sYG}, {WS_H2}")
    A(f"s_lshl_b32 {sH3G}, {sC}, 10\ns_add_u32 {sH3G}, {sH3G}, {WS_H3}\ns_lshl_b32 {sT0}, {sX}, 7\ns_add_u32 {sH3S}, {sH3G}, {sT0}")
    A(f"s_lshl_b32 {sXS}, {sLIN}, 8\ns_add_u32 {sXS}, {sXS}, {WS_XX}\ns_xor_b32 {sXG}, {sXS}, {32*256}")
    A(f"s_add_u32 {sTG2}, {sTAG}, 1\ns_mov_b32 {sFL}, 0")
    A(f"v_mul_u32_u24 {t0}, 3, {vB}\ns_mul_i32 {sT0}, {sC}, 20\nv_add_lshl_u32 {t0}, {t0}, {sT0}, 1\nv_mov_b32 {t2}, {OOB}")
    A(f"v_cmp_gt_u32 vcc, 7, {vB}\nv_cndmask_b32 v{vOUT}, {t2}, {t0}, vcc\nv_cmp_gt_u32 vcc, 6, {vB}\nv_cndmask_b32 v{vOUT+1}, {t2}, {t0}, vcc")
    A(f"v_mov_b32 {t0}, {WS_EP}\nv_or_b32 {t1}, s2, {vLANE}\nv_cmp_eq_u32 vcc, 0, {t1}\nv_cndmask_b32 v{vOUT+2}, {t2}, {t0}, vcc")
    A(f"buffer_load_ushort v{XV}, v{vOUT}, {X_}, 0 offen\nbuffer_load_ushort v{XV+1}, v{vOUT}, {X_}, 0 offen offset:2\nbuffer_load_ushort v{XV+2}, v{vOUT+1}, {X_}, 0 offen offset:4")
    for i in range(10): A(f"v_mov_b32 v{YY+i}, 0")
    A("s_waitcnt vmcnt(0)")
    for e in range(3): A(f"v_lshlrev_b32 v{XV+e}, 16, v{XV+e}")
    srd_lo(X_, pOUT)
    A("s_branch L_next")
    A("L_nogu:")
    A(f"s_cmp_lg_u32 {sBLK}, 16\ns_cbranch_scc1 L_next")
    A(f"v_lshrrev_b32 v10, {LLP}, {vLANE}\nv_lshlrev_b32 v10, 3, v10\ns_waitcnt lgkmcnt(0)\nds_read_b64 v[{T+2}:{T+3}], v10 offset:{L_ML}")
    A(f"s_lshl_b32 {sT1}, {sLIN}, 7\ns_add_u32 {sT1}, {sT1}, {WS_LS}\nv_and_b32 v11, {LP-1}, {vLANE}\nv_cmp_eq_u32 vcc, 0, v11")
    A(f"s_waitcnt lgkmcnt(0)\nv_mov_b32 {vM}, {t2}\nv_mov_b32 {t0}, {t3}\nv_mov_b32 {t1}, {sTAG}\nv_mov_b32 {t3}, {sTAG}")
    A(f"s_getreg_b32 {sLOC}, hwreg(HW_REG_XCC_ID)\nv_mov_b32 {t2}, {sLOC}\nv_lshlrev_b32 v10, 1, v10\ns_mov_b64 exec, vcc")
    A(f"buffer_store_dwordx4 v[{T}:{T+3}], v10, {WS_}, {sT1} offen sc1\ns_mov_b64 exec, -1")
    A(f"v_lshl_add_u32 {vLS}, v11, 7, v10\ns_branch L_next")
    A("L_tail:")
    A(f"v_mov_b32_dpp v{G0+1}, {vZK} row_ror:8 {DPP}\nv_cvt_pk_bf16_f32 v{G0}, {vZK}, v{G0+1}")
    A(f"s_mov_b32 exec_lo, 0x00010001\ns_mov_b32 exec_hi, 1\nds_write_b32 v43, v{G0} offset:64\ns_mov_b64 exec, -1\ns_waitcnt lgkmcnt(0)")
    stamp(7)
    A("s_barrier")
    def g2(p):
        for r in range(4):
            A(f"s_add_u32 {sT0}, {sYG}, {8*4096*r}\nbuffer_load_dwordx4 v[{G0+4*r}:{G0+4*r+3}], {vYG}, {WS_}, {sT0} offen {p}")
    poll("L_p2", g2, [f"v{G0+4*r+3}" for r in range(4)], loc=True)
    if stamps: A("s_memrealtime s[42:43]")
    for k in range(3): A(f"v_add_f32 v{G0+k}, v{G0+k}, v{G0+4+k}\nv_add_f32 v{G0+8+k}, v{G0+8+k}, v{G0+12+k}")
    for k in range(3): A(f"v_add_f32 v{G0+k}, v{G0+k}, v{G0+8+k}")
    def red_hi(b):
        for k in range(3): A(f"v_add_f32_dpp v{b+k}, v{b+k}, v{b+k} row_ror:8 {DPP}")
        allred_top("v_add_f32", [f"v{b+k}" for k in range(3)], [f"v{b+4+k}" for k in range(3)])
    red_hi(G0)
    A(f"s_cmp_eq_u32 {sS}, {sX}\ns_cbranch_scc1 L_red")
    A(f"s_mov_b64 exec, 0xff\nbuffer_store_dwordx4 v[{G0}:{G0+3}], v7, {WS_}, {sH3S} offen {p3s}\ns_mov_b64 exec, -1\ns_branch L_done")
    A("L_red:")
    BUF = [G0 + 16 + 4*k for k in range(np3)]
    for b in BUF:
        for k in range(3): A(f"v_mov_b32 v{b+k}, v{G0+k}")
    A(f"v_cmp_ne_u32 vcc, {sX}, {vA}\ns_mov_b32 {sT2}, {spin}\ns_mov_b64 exec, vcc")
    def l3(k): A(f"buffer_load_dwordx4 v[{BUF[k]}:{BUF[k]+3}], v7, {WS_}, {sH3G} offen {p3l}")
    for k in range(np3-1):
        l3(k); A(f"s_sleep {s3}")
    A("L_p3:")
    for k in range(np3):
        l3((k + np3 - 1) % np3)
        A(f"s_waitcnt vmcnt({np3-1})\nv_cmp_ne_u32 vcc, {sTAG}, v{BUF[k]+3}\ns_cbranch_vccz L_p3d{k}")
    A(f"s_sub_u32 {sT2}, {sT2}, 1\ns_cbranch_scc0 L_p3")
    for k in reversed(range(np3)):
        A(f"L_p3d{k}:\ns_mov_b64 exec, -1")
        for e in range(3): A(f"v_add_f32_dpp v{G1+e}, v{BUF[k]+e}, v{BUF[k]+e} row_ror:8 {DPP}")
        if k: A("s_branch L_p3e")
    A("L_p3e:")
    if stamps: A("s_memrealtime s[48:49]")
    allred_top("v_add_f32", [f"v{G1+k}" for k in range(3)], [f"v{G1+4+k}" for k in range(3)])
    for e in range(3): A(f"v_add_f32 v{G1+e}, v{G1+e}, v{XV+e}")
    for e in range(3): A(f"v_cvt_pk_bf16_f32 v{G1+e}, v{G1+e}, 0")
    A("s_mov_b64 exec, 0xff")
    A(f"buffer_store_short v{G1}, v{vOUT}, {X_}, 0 offen\nbuffer_store_short v{G1+1}, v{vOUT}, {X_}, 0 offen offset:2\nbuffer_store_short v{G1+2}, v{vOUT+1}, {X_}, 0 offen offset:4")
    A(f"buffer_store_dword v41, v{vOUT+2}, {WS_}, 0 offen")
    A("s_mov_b64 exec, -1")
    A("L_done:")
    if diag is not None:
        wave, st, mult = diag
        stamp(8)
        A(f"s_cmp_lg_u32 s2, 0\ns_cbranch_scc1 L_end\ns_cmp_lg_u32 {sW}, {wave}\ns_cbranch_scc1 L_end")
        A(f"s_waitcnt lgkmcnt(0)\ns_sub_u32 {sT0}, s{sST+2*st}, s{sST}\ns_mul_i32 {sT0}, {sT0}, {mult}\ns_add_u32 {sT0}, {sT0}, 30000")
        A(f"s_min_u32 {sT0}, {sT0}, 200000")
        A(f"L_dg:\ns_memrealtime s[72:73]\ns_waitcnt lgkmcnt(0)\ns_sub_u32 {sT1}, s72, s{sST}\ns_cmp_lt_u32 {sT1}, {sT0}\ns_cbranch_scc1 L_dg")
    if stamps:
        stamp(8)
        A(f"s_mul_i32 {sT0}, s2, 5\ns_add_u32 {sT0}, {sT0}, {sW}\ns_lshl_b32 {sT0}, {sT0}, 6\ns_add_u32 {sT0}, {sT0}, {WS_ST}")
        A(f"s_getreg_b32 {sT1}, hwreg(HW_REG_XCC_ID)")
        A("s_waitcnt lgkmcnt(0)\nv_mov_b32 v4, 0")
        for i in range(9): A(f"v_writelane_b32 v4, s{sST+2*i}, {i}")
        A(f"v_writelane_b32 v4, s42, 9\nv_writelane_b32 v4, s48, 10\nv_writelane_b32 v4, s50, 11\nv_writelane_b32 v4, s47, 12")
        A(f"v_writelane_b32 v4, {sT1}, 15")
        A(f"v_lshlrev_b32 v5, 2, {vLANE}\ns_mov_b64 exec, 0xffff")
        A(f"buffer_store_dword v4, v5, {WS_}, {sT0} offen {'sc1' if diag2 else ''}")
    if diag3:
        A(f"s_mov_b64 exec, -1\ns_cmp_lg_u32 {sW}, 0\ns_cbranch_scc1 L_end\ns_lshl_b32 {sT0}, s2, 8\ns_add_u32 {sT0}, {sT0}, {WS_ST+0x40000}")
        A(f"buffer_store_dword v199, v5, {WS_}, {sT0} offen sc1\ns_cmp_lg_u32 s2, 0\ns_cbranch_scc1 L_end")
        A(f"L_dh3:\ns_memrealtime s[72:73]\ns_waitcnt lgkmcnt(0)\ns_sub_u32 {sT1}, s72, s{sST}\ns_cmp_lt_u32 {sT1}, 20000\ns_cbranch_scc1 L_dh3")
        A(f"v_mov_b32 v8, 0\ns_mov_b32 {sT0}, {WS_ST+0x40000}\ns_mov_b32 {sT1}, 256\nL_dl3:\nbuffer_load_dword v9, v5, {WS_}, {sT0} offen sc1\ns_waitcnt vmcnt(0)")
        A(f"v_subrev_u32 v9, s{sST}, v9\nv_add_u32 v8, v8, v9\ns_add_u32 {sT0}, {sT0}, 256\ns_sub_u32 {sT1}, {sT1}, 1\ns_cmp_lg_u32 {sT1}, 0\ns_cbranch_scc1 L_dl3")
        A(f"v_add_u32 v10, 4, v5\nds_bpermute_b32 v9, v10, v8\ns_waitcnt lgkmcnt(0)\nv_sub_u32 v9, v9, v8\nv_mul_u32_u24 v9, 10, v9\nv_lshrrev_b32 v9, 8, v9")
        A(f"v_lshlrev_b32 v10, 1, v5\nds_bpermute_b32 v11, v10, v9\nv_add_u32 v10, 4, v10\nds_bpermute_b32 v12, v10, v9\ns_waitcnt lgkmcnt(0)")
        A(f"v_min_u32 v11, 9999, v11\nv_min_u32 v12, 9999, v12\nv_mul_u32_u24 v11, 10000, v11\nv_add_u32 v11, v11, v12")
        srd(TA_, pDBG, 64)
        A(f"buffer_store_dword v11, v5, {TA_}, 0 offen")
    if diag2:
        role, st, op, role0, st0, op0, mult = diag2
        A(f"s_mov_b64 exec, -1\ns_cmp_lg_u32 s2, 0\ns_cbranch_scc1 L_end\ns_cmp_lg_u32 {sW}, 4\ns_cbranch_scc1 L_end")
        A(f"L_dh:\ns_memrealtime s[72:73]\ns_waitcnt lgkmcnt(0)\ns_sub_u32 {sT1}, s72, s{sST}\ns_cmp_lt_u32 {sT1}, 20000\ns_cbranch_scc1 L_dh")
        A(f"v_mul_u32_u24 v5, 320, {vLANE}")
        for k in range(4):
            A(f"s_mov_b32 {sT0}, {WS_ST + 64*320*k}\nbuffer_load_dword v{8+k}, v5, {WS_}, {sT0} offen offset:{64*role0+4*st0} sc1\nbuffer_load_dword v{12+k}, v5, {WS_}, {sT0} offen offset:{64*role+4*st} sc1")
        A("s_waitcnt vmcnt(0)")
        for k in range(8): A(f"v_subrev_u32 v{8+k}, s{sST}, v{8+k}")
        vop = {"max": "v_max_i32", "min": "v_min_i32", "mean": "v_add_u32"}[op]; vop0 = {"max": "v_max_i32", "min": "v_min_i32", "mean": "v_add_u32"}[op0]
        for k in range(1, 4): A(f"{vop0} v8, v8, v{8+k}\n{vop} v12, v12, v{12+k}")
        allred_lo(vop0, ["v8"]); allred_top(vop0, ["v8"], ["v9"])
        allred_lo(vop, ["v12"]); allred_top(vop, ["v12"], ["v13"])
        A(f"v_readfirstlane_b32 {sT0}, v12\nv_readfirstlane_b32 {sT1}, v8\ns_mul_i32 {sT0}, {sT0}, {mult}\ns_mul_i32 {sT1}, {sT1}, {mult}")
        if op == "mean": A(f"s_ashr_i32 {sT0}, {sT0}, 8")
        if op0 == "mean": A(f"s_ashr_i32 {sT1}, {sT1}, 8")
        A(f"s_sub_u32 {sT0}, {sT0}, {sT1}\ns_add_u32 {sT0}, {sT0}, 30000\ns_min_u32 {sT0}, {sT0}, 200000")
        A(f"L_dg2:\ns_memrealtime s[72:73]\ns_waitcnt lgkmcnt(0)\ns_sub_u32 {sT1}, s72, s{sST}\ns_cmp_lt_u32 {sT1}, {sT0}\ns_cbranch_scc1 L_dg2")
    A("L_end:\ns_endpgm")
    A('.section .rodata,"a"\n.p2align 6')
    A(f".amdhsa_kernel {KN}")
    nv4 = (NV+3)//4*4
    A(f".amdhsa_next_free_vgpr {nv4}\n.amdhsa_next_free_sgpr 102\n.amdhsa_accum_offset {nv4}")
    A(".amdhsa_group_segment_fixed_size 0\n.amdhsa_kernarg_size 96\n.amdhsa_user_sgpr_count 2")
    A(".amdhsa_user_sgpr_kernarg_segment_ptr 1\n.amdhsa_system_sgpr_workgroup_id_x 1")
    A(".amdhsa_float_denorm_mode_32 3\n.end_amdhsa_kernel")
    return A.finish()

if __name__ == "__main__":
    kw = eval("dict(" + (sys.argv[2] if len(sys.argv) > 2 else "") + ")")
    open(sys.argv[1], "w").write(gen(**kw))
```

```python
import sys, os
sys.path.insert(0, os.path.dirname(os.path.abspath(__file__)))
from asmlib import Asm
KN = "parallel_sum__mha_block_cached__glu_gated_reglu__decode_kernel"
HEADER = open("parallel_sum__mha_block_cached__glu_gated_reglu__decode.s.ref").read().split("; Override launch")[0]

HB = 32768*384
TB = 32*HB
WS_QF = 0x4000
WS_EP, WS_LS, WS_H3, WS_XX, WS_PR, WS_QS, WS_H1, WS_ST, WS_H2, WS_SIZE = 0, 0x8000, 0x10000, 0x20000, 0x40000, 0x80000, 0x100000, 0x200000, 0x280000, 0x400000
OOB = 0x40000000
SPIN = 1 << 20

def gen(NSEG=8, G=6, F=5, FH=6, RB=8, pace=6, deep=0, per=8, bs=2, fb=22, fbo=26, pre0=2, pre1=6, trig=16, op='sc1', nre=8, cpf=1, wpf='hg', wpp='sc1', early=1, skip='', xmap=1, xd=(6,5,3,1,-1,-3,-5,-6), xp=4, PI=(6,7,5,4,3,2,1,0), xs=0, np3=1, s3=6, dfirst=1, ab=0, psleep=4,
        spin=SPIN, local=1, lp="nt", pf=None, pfw="yh", pt='sc1', qp='', xl=None, p3s='sc1', p3l='sc1', sched=(4,3,3,3,0,0), ptpos=6, own=1, lsb=17, stamps=False, diag=None, diag2=None, stA=3, stB=29, diag3=0):
    A = Asm()
    NG = 32//NSEG; GS = 8*NSEG; BPS = 16//NSEG; LGS = GS.bit_length()-1
    PAIR = NSEG == 8
    TSTR = GS*4*3072
    assert G < RB and 24 % RB == 0 and NSEG == 8 and G == 6
    if diag2 or diag3: stamps = True
    timed = stamps or diag is not None
    L_OP = 0; L_W = 8192; L_YP = L_W + 15360; L_U = L_YP + 12800 + 64; L_QP = L_U + 128; L_QB = L_QP + 6400; L_ML = L_QB + 384*NSEG
    L_CT = L_ML + 64; L_SC = L_CT + 64; L_SIZE = L_SC + 16384 + 256
    assert L_SC < 65536
    sW, sHQ, sS, sG, sMEM = "s3", "s4", "s5", "s6", "s7"
    KV_, WS_, TA_, TB_, TC_, X_ = "s[8:11]", "s[16:19]", "s[20:23]", "s[24:27]", "s[28:31]", "s[32:35]"
    mB1, mB0 = "s[12:13]", "s[14:15]"
    pX, pK, pV, pWQ, pWO, pWG, pWU, pWD, pOUT, pDBG, pWS = 36, 38, 40, 42, 44, 48, 50, 52, 54, 56, 58
    sOFF, sOFF0, sIB, sBLK, sLIN, sX, sC, sT0, sT1, sT2, sT3, sOWN = [f"s{r}" for r in range(60, 72)]
    sTAG = "s46"
    sST = 84
    vLANE, vKV, vA, vB = "v0", "v1", "v2", "v3"
    ACC, Q = 8, 32
    T = 44
    RING = 56
    PB = RING + 48
    NV = PB + 96
    t0, t1, t2, t3 = f"v{T}", f"v{T+1}", f"v{T+2}", f"v{T+3}"
    def stamp(i):
        if timed: A(f"s_memrealtime s[{sST+2*i}:{sST+2*i+1}]")
    def srd_hi(name, size):
        b = int(name[2:name.index(":")]); A(f"s_mov_b32 s{b+2}, {size}\ns_mov_b32 s{b+3}, 0x20000")
    def srd_lo(name, ptr):
        b = int(name[2:name.index(":")]); A(f"s_mov_b64 s[{b}:{b+1}], s[{ptr}:{ptr+1}]")
    def srd(name, ptr, size): srd_lo(name, ptr); srd_hi(name, size)
    DPP = "row_mask:0xf bank_mask:0xf"
    PATS = ("quad_perm:[1,0,3,2]", "quad_perm:[2,3,0,1]", "row_half_mirror", "row_mirror")
    def allred_lo(op, vs, n=4):
        for pat in PATS[:n]:
            for v in vs: A(f"{op}_dpp {v}, {v}, {v} {pat} {DPP}")
    def allred_top(op, vs, ts):
        for sw in ("v_permlane16_swap_b32", "v_permlane32_swap_b32"):
            for v, t in zip(vs, ts): A(f"v_mov_b32 {t}, {v}")
            for v, t in zip(vs, ts): A(f"{sw} {t}, {v}")
            for v, t in zip(vs, ts): A(f"{op} {v}, {v}, {t}")
    def redscat(base, n):
        for g in range(n):
            for e in range(4): A(f"v_permlane32_swap_b32 v{base+8*g+e}, v{base+8*g+e+4}")
        for g in range(n):
            for e in range(4): A(f"v_add_f32 v{base+8*g+e}, v{base+8*g+e}, v{base+8*g+e+4}")
        for g in range(n):
            for e in range(2): A(f"v_permlane16_swap_b32 v{base+8*g+e}, v{base+8*g+e+2}")
        for g in range(n):
            for e in range(2): A(f"v_add_f32 v{base+8*g+e}, v{base+8*g+e}, v{base+8*g+e+2}")
        for g in range(n):
            A(f"v_add_f32_dpp v{base+8*g}, v{base+8*g}, v{base+8*g} row_ror:8 row_mask:0xf bank_mask:0x3")
        for g in range(n):
            A(f"v_add_f32_dpp v{base+8*g}, v{base+8*g+1}, v{base+8*g+1} row_ror:8 row_mask:0xf bank_mask:0xc")
    def redscat_lo(bases):
        for S in bases:
            for e in range(4): A(f"v_add_f32_dpp v{S+e}, v{S+e}, v{S+e} row_half_mirror row_mask:0xf bank_mask:0x5")
        for S in bases:
            for e in range(4): A(f"v_add_f32_dpp v{S+e}, v{S+e+4}, v{S+e+4} row_half_mirror row_mask:0xf bank_mask:0xa")
        for S in bases:
            for e in range(4): A(f"v_add_f32_dpp v{S+e}, v{S+e}, v{S+e} quad_perm:[2,3,0,1] {DPP}")
        for S in bases:
            for e in range(2): A(f"v_cndmask_b32 v{S+e}, v{S+e}, v{S+e+2}, {mB1}")
        for S in bases:
            for e in range(2): A(f"v_add_f32_dpp v{S+e}, v{S+e}, v{S+e} quad_perm:[1,0,3,2] {DPP}")
        for S in bases: A(f"v_cndmask_b32 v{S}, v{S}, v{S+1}, {mB0}")
    def axpy(acc, data, n, pl, ph):
        for i in range(n):
            A(f"v_dot2c_f32_bf16 v{acc+2*i}, v{data+i}, {pl}\nv_dot2c_f32_bf16 v{acc+2*i+1}, v{data+i}, {ph}")
    def ld(reg, j): A(f"buffer_load_dwordx4 v[{reg}:{reg+3}], {vKV}, {KV_}, {sOFF} offen offset:{128*j} nt")
    uid = [0]
    PILUT = sum(p << (4*i) for i, p in enumerate(PI))
    assert PI[0] != 7 and sorted(PI) == list(range(8))
    def next_block(last):
        uid[0] += 1; u = uid[0]
        A(f"s_add_u32 {sIB}, {sIB}, 1\ns_and_b32 {sT0}, {sIB}, {BPS-1}\ns_cbranch_scc1 L_nb{u}")
        if not last:
            A(f"s_add_u32 {sOFF}, {sOFF}, {(NG-1)*HB}")
            A(f"s_cmp_lg_u32 {sIB}, 16\ns_cbranch_scc1 L_nb{u}")
            A(f"s_mov_b64 s[8:9], s[{pV}:{pV+1}]\ns_add_u32 {sOFF}, {sOFF0}, {PI[0]*NG*HB}")
        else:
            A(f"s_lshl_b32 {sT0}, {sIB}, 1\ns_lshr_b32 {sT0}, {hex(PILUT)}, {sT0}\ns_and_b32 {sT0}, {sT0}, 7")
            A(f"s_mul_i32 {sOFF}, {sT0}, {NG*HB}\ns_add_u32 {sOFF}, {sOFF}, {sOFF0}")
        A(f"L_nb{u}:")
    def lev(n, f):
        fr = f - int(f)
        return int(f) + (1 if int((n+1)*fr + 1e-9) != int(n*fr + 1e-9) else 0)
    cps = list(range(0, 24, per)) if fb else []
    assert all(c + G + 1 <= 23 for c in cps) and per > G
    PR_, sTHR, vPC, vPO, vPL, vPS = TC_, "s72", "v52", "v53", "v54", "v55"
    def slot(n, last=False):
        uid[0] += 1; u = uid[0]
        fi, fh = lev(n, F), lev(n, FH)
        assert fi <= fh <= G
        def cnt(x): return x - 1 + 2*sum(1 for c in cps if 0 < n - c <= x)
        m = n + G
        if m % 3 == 0:
            A(f"s_add_u32 {sOFF}, {sOFF}, {TSTR}")
            if m == 24: next_block(last)
        if fi < fh: A(f"s_cbranch_vccnz L_dp{u}\ns_waitcnt vmcnt({cnt(fi)})\nL_dp{u}:")
        A(f"s_waitcnt vmcnt({cnt(fh)})")
        ld(RING + 4*(m % RB), m % 3)
        if n - G - 1 in cps:
            if xd:
                A(f"v_readlane_b32 {sT1}, {vPO}, 32\ns_sub_u32 {sT1}, {sT1}, {sTAG}\ns_cmp_lt_u32 {sT1}, 33\ns_cselect_b32 {sTHR}, {sT1}, {sTHR}")
            A(f"v_sub_u32 {vPO}, {vPO}, {vPC}\nv_cmp_gt_u32 vcc, 64, {vPO}\ns_bcnt1_i32_b32 {sT0}, vcc_lo")
            A(f"s_cmp_gt_u32 {sT0}, {sTHR}\ns_cselect_b64 vcc, -1, 0")
            if stamps: A(f"s_and_b32 {sT0}, vcc_lo, 1\ns_add_u32 s47, s47, {sT0}")
            if last and deep: A(f"s_cmp_ge_u32 {sBLK}, {32-deep}\ns_cselect_b64 vcc, -1, vcc")
        if n in cps:
            A(f"v_add_u32 {vPC}, 1, {vPC}\nbuffer_store_dword {vPC}, {vPS}, {PR_}, 0 offen\nbuffer_load_dword {vPO}, {vPL}, {PR_}, 0 offen nt")
    def qk4(acc, data, j):
        for e in range(4):
            if j == 0 and e == 0: A(f"v_dot2_f32_bf16 v{acc}, v{data}, v{Q}, 0")
            else: A(f"v_dot2_f32_bf16 v{acc}, v{data+e}, v{Q+4*j+e}, v{acc}")

    A(HEADER.rstrip())
    A(f"; @launch grid=(256,1,1) block=(320,1,1) lds={L_SIZE}")
    A('.amdgcn_target "amdgcn-amd-amdhsa--gfx950"\n.text')
    A(f".globl {KN}\n.p2align 8\n.type {KN},@function\n{KN}:")
    A("s_cmp_ge_u32 s2, 256\ns_cbranch_scc1 L_end")
    A("s_load_dwordx16 s[36:51], s[0:1], 0\ns_load_dwordx8 s[52:59], s[0:1], 64")
    stamp(0)
    A(f"v_lshrrev_b32 v1, 6, v0\nv_and_b32 {vLANE}, 63, v0\nv_readfirstlane_b32 {sW}, v1\ns_setprio 3")
    A(f"v_mov_b32 v8, 0\nds_write_b32 v8, v8 offset:{L_CT}")
    order = []
    for v in range(8):
        if v not in order: order += [v, v ^ xmap] if (v & 1) == 0 or (xmap & 1) == 0 else [v ^ xmap, v]
    lut = sum(order.index(v) << (4*v) for v in range(8))
    A(f"s_and_b32 {sX}, s2, 7\ns_lshl_b32 {sX}, {sX}, 2\ns_lshr_b32 {sX}, {hex(lut)}, {sX}\ns_and_b32 {sX}, {sX}, 7")
    A(f"s_lshr_b32 {sC}, s2, 3\ns_lshl_b32 {sT0}, {sX}, 5\ns_add_u32 {sLIN}, {sT0}, {sC}")
    A(f"s_lshr_b32 {sG}, {sLIN}, {LGS}\ns_and_b32 {sMEM}, {sLIN}, {GS-1}\ns_and_b32 {sS}, {sMEM}, 7")
    A(f"s_lshr_b32 {sT0}, {sMEM}, 3\ns_mul_i32 {sHQ}, {sT0}, {NG}\ns_add_u32 {sHQ}, {sHQ}, {sG}")
    A(f"s_sub_u32 {sW}, {sW}, 1\ns_cselect_b32 {sW}, 4, {sW}")
    A(f"v_lshrrev_b32 {vA}, 3, {vLANE}\nv_and_b32 {vB}, 7, {vLANE}")
    A(f"v_lshlrev_b32 v7, 4, {vB}")
    A(f"v_mov_b32 v4, 384\nv_mad_u32_u24 {vKV}, {vA}, v4, v7")
    A(f"v_mov_b32 v4, 12288\nv_mad_u32_u24 v4, {vA}, v4, v7")
    A(f"v_mov_b32 v5, 3072\nv_mad_u32_u24 v5, {vA}, v5, v7")
    A(f"v_mov_b32 v6, {OOB}\nv_cmp_gt_u32 vcc, 6, {vB}\nv_cndmask_b32 v5, v6, v5, vcc")
    A(f"v_lshlrev_b32 v6, 1, {vA}\nv_lshlrev_b32 v7, 4, {vLANE}")
    A(f"s_mul_i32 {sT0}, {sS}, 80\ns_lshl_b32 {sT1}, {sW}, 4\ns_add_u32 {sT0}, {sT0}, {sT1}")
    A(f"s_mul_i32 {sT1}, {sT0}, 12288\ns_mul_i32 {sT2}, {sHQ}, 384\ns_add_u32 {sT1}, {sT1}, {sT2}")
    A(f"s_mul_i32 {sT2}, {sT0}, 3072\ns_lshr_b32 {sT3}, {sLIN}, 3\ns_mul_i32 {sT3}, {sT3}, 96\ns_add_u32 {sT2}, {sT2}, {sT3}")
    A(f"s_lshl_b32 {sT0}, {sT0}, 1")
    if cpf == 2:
        KNs = KN
        A(f"s_cmp_lg_u32 {sW}, 4\ns_cbranch_scc1 L_nocp\ns_getpc_b64 s[74:75]\nL_pc2:\ns_lshl_b32 s76, {sC}, 10\nv_add_u32 v{PB}, s76, v7\nv_min_u32 v{PB}, L_end-{KN}-16, v{PB}")
        A(f"s_sub_u32 s74, s74, L_pc2-{KN}\ns_subb_u32 s75, s75, 0\nv_mov_b32 v{PB+1}, s75\nv_add_co_u32 v{PB}, vcc, s74, v{PB}\nv_addc_co_u32 v{PB+1}, vcc, 0, v{PB+1}, vcc")
        A(f"global_load_dword v{PB+2}, v[{PB}:{PB+1}], off\nL_nocp:")
    srd_hi(X_, 1280); srd_hi(TA_, 640*12288); srd_hi(TB_, 640*3072); srd_hi(TC_, 640*3072); srd_hi(WS_, WS_SIZE); srd_hi(KV_, TB)
    A("s_waitcnt lgkmcnt(0)")
    srd_lo(X_, pX)
    def code_touch(lab, reg):
        A(f"s_getpc_b64 s[74:75]\n{lab}:\ns_lshl_b32 s76, {sC}, 10\nv_add_u32 v{reg}, s76, v7\nv_min_u32 v{reg}, L_end-{KN}-16, v{reg}")
        A(f"s_sub_u32 s74, s74, {lab}-{KN}\ns_subb_u32 s75, s75, 0\nv_mov_b32 v{reg+1}, s75\nv_add_co_u32 v{reg}, vcc, s74, v{reg}\nv_addc_co_u32 v{reg+1}, vcc, 0, v{reg+1}, vcc")
        A(f"global_load_dword v{reg+2}, v[{reg}:{reg+1}], off")
    def touches():
        if cpf == 1: code_touch("L_pc1", PB+88)
        if wpf:
            for ch, base, sh, n in (("h", WS_H1, 11, 2), ("y", WS_H2, 12, 4), ("g", WS_QS + 1024, 11, 1), ("q", WS_QS, 11, 1)):
                if ch in wpf:
                    A(f"s_lshl_b32 {sT0}, {sLIN}, {sh}\ns_add_u32 {sT0}, {sT0}, {base}")
                    for i in range(n): A(f"buffer_load_dword v{PB+92}, v7, {WS_}, {sT0} offen offset:{1024*i}")
            small = [(WS_LS, 7, 0), (WS_XX, 8, 0), (WS_XX, 8, 128), (WS_H3, 7, 0), (WS_QF, 6, 0)]
            sel = [e for e, ch in zip(small, "lxx3f") if ch in wpf]
            if sel or "p" in wpf:
                A(f"v_mov_b32 v{PB+93}, {OOB}")
                for i, (base, sh, off) in enumerate(sel):
                    A(f"s_lshl_b32 {sT0}, {sLIN}, {sh}\ns_add_u32 {sT0}, {sT0}, {base+off}\nv_writelane_b32 v{PB+93}, {sT0}, {i}")
                if "p" in wpf:
                    A(f"s_lshr_b32 {sT0}, {sLIN}, 3\ns_mul_i32 {sT0}, {sT0}, 4224\ns_add_u32 {sT0}, {sT0}, {WS_PR}\nv_writelane_b32 v{PB+93}, {sT0}, 8")
                    A(f"s_add_u32 {sT0}, {sT0}, 128\nv_writelane_b32 v{PB+93}, {sT0}, 9\ns_mul_i32 {sT0}, {sX}, 4224\ns_add_u32 {sT0}, {sT0}, {WS_PR+0x30000}\nv_writelane_b32 v{PB+93}, {sT0}, 10")
                A(f"buffer_load_dword v{PB+92}, v{PB+93}, {WS_}, 0 offen {wpp}")
    XR, WD, WA = RING + 40, RING, ACC
    A(f"buffer_load_dwordx4 v[{XR}:{XR+3}], v7, {X_}, 0 offen")
    A(f"buffer_load_dwordx4 v[{XR+4}:{XR+7}], v7, {X_}, 0 offen offset:1024")
    A(f"buffer_load_ushort v{T+10}, v6, {X_}, {sT0} offen")
    A(f"buffer_load_ushort v{T+11}, v6, {X_}, {sT0} offen offset:16")
    srd_lo(TA_, pWQ); srd_lo(TB_, pWG); srd_lo(TC_, pWU)
    A(f"s_load_dword {sTAG}, s[{pWS}:{pWS+1}], {WS_EP}")
    A("s_barrier")
    for t in range(2):
        for j in range(3):
            A(f"buffer_load_dwordx4 v[{WD+20*t+4*j}:{WD+20*t+4*j+3}], v4, {TA_}, {sT1} offen offset:{128*j} nt")
        A(f"buffer_load_dwordx4 v[{WD+20*t+12}:{WD+20*t+15}], v5, {TB_}, {sT2} offen nt")
        A(f"buffer_load_dwordx4 v[{WD+20*t+16}:{WD+20*t+19}], v5, {TC_}, {sT2} offen nt")
        if t == 0: A(f"s_add_u32 {sT1}, {sT1}, {8*12288}\ns_add_u32 {sT2}, {sT2}, {8*3072}")
    srd_lo(KV_, pK); srd_lo(WS_, pWS)
    A(f"s_lshl_b32 {sT0}, {sMEM}, 2\ns_add_u32 {sT0}, {sT0}, {sW}\ns_mul_i32 {sT0}, {sT0}, 3072")
    A(f"s_mul_i32 {sOFF0}, {sG}, {HB}\ns_add_u32 {sOFF0}, {sOFF0}, {sT0}\ns_mov_b32 {sOFF}, {sOFF0}")
    A(f"s_mov_b32 s12, 0xcccccccc\ns_mov_b32 s13, 0xcccccccc\ns_mov_b32 s14, 0xaaaaaaaa\ns_mov_b32 s15, 0xaaaaaaaa")
    A(f"s_and_b32 {sOWN}, {sX}, 1\ns_xor_b32 {sOWN}, {sOWN}, {own}")
    if early:
        A(f"s_cmp_lg_u32 {sW}, {4 if early == 1 else 3}\ns_cbranch_scc1 L_not"); touches(); A("L_not:")
    A(f"s_cmp_eq_u32 {sW}, 4\ns_cbranch_scc1 L_ln\ns_setprio 1\nL_ln:\ns_waitcnt vmcnt(10) lgkmcnt(0)")
    A(f"s_mul_i32 {sTAG}, {sTAG}, 1664525\ns_add_u32 {sTAG}, {sTAG}, 1013904223")
    XF = WA
    for i in range(8):
        A(f"v_lshlrev_b32 v{XF+2*i}, 16, v{XR+i}\nv_and_b32 v{XF+2*i+1}, 0xffff0000, v{XR+i}")
    l0, l1, l2, l3 = "v24", "v25", "v26", "v27"
    A(f"v_add_f32 {l0}, v{XF}, v{XF+1}\nv_add_f32 {l1}, v{XF+2}, v{XF+3}")
    for i in range(4, 16, 2): A(f"v_add_f32 {l0}, {l0}, v{XF+i}\nv_add_f32 {l1}, {l1}, v{XF+i+1}")
    A(f"v_add_f32 {l0}, {l0}, {l1}")
    allred_lo("v_add_f32", [l0]); allred_top("v_add_f32", [l0], [l1])
    A(f"v_mul_f32 {l0}, 0x3acccccd, {l0}")
    for i in range(16): A(f"v_sub_f32 v{XF+i}, v{XF+i}, {l0}")
    A(f"v_mul_f32 {l1}, v{XF}, v{XF}\nv_mul_f32 {l2}, v{XF+8}, v{XF+8}")
    for i in range(1, 8): A(f"v_fmac_f32 {l1}, v{XF+i}, v{XF+i}\nv_fmac_f32 {l2}, v{XF+8+i}, v{XF+8+i}")
    A(f"v_cmp_gt_u32 vcc, 16, {vLANE}\nv_cndmask_b32 {l2}, 0, {l2}, vcc\nv_add_f32 {l1}, {l1}, {l2}")
    allred_lo("v_add_f32", [l1]); allred_top("v_add_f32", [l1], [l2])
    A(f"v_mul_f32 {l1}, 0x3acccccd, {l1}")
    A(f"v_readfirstlane_b32 {sT0}, {l0}\nv_readfirstlane_b32 {sT1}, {l1}\ns_mul_i32 {sT0}, {sT0}, 0x9E3779B1\ns_add_u32 {sT0}, {sT0}, {sT1}")
    A(f"s_lshl_b32 {sT0}, {sT0}, 2\ns_add_u32 {sTAG}, {sTAG}, {sT0}")
    A(f"v_cvt_pk_bf16_f32 {l0}, 0, {l0}\nv_cvt_pk_bf16_f32 {l1}, 0, {l1}")
    A(f"v_add_f32 {l1}, 0x3727c5ac, {l1}\nv_cvt_pk_bf16_f32 {l1}, 0, {l1}\nv_sqrt_f32 {l1}, {l1}")
    A(f"v_cvt_pk_bf16_f32 {l1}, 0, {l1}\nv_rcp_f32 {l2}, {l1}")
    for t in range(2):
        xr = f"v{T+10+t}"
        A(f"v_lshlrev_b32 {xr}, 16, {xr}\nv_sub_f32 {xr}, {xr}, {l0}\nv_cvt_pk_bf16_f32 {xr}, 0, {xr}")
        A(f"v_mul_f32 {l3}, {xr}, {l2}\nv_fma_f32 {xr}, -{l3}, {l1}, {xr}\nv_fma_f32 {xr}, {xr}, {l2}, {l3}")
        A(f"v_cvt_pk_bf16_f32 v{T+6+2*t}, {xr}, 0\nv_cvt_pk_bf16_f32 v{T+7+2*t}, 0, {xr}")
    for i in range(40): A(f"v_mov_b32 v{WA+i}, 0")
    stamp(1)
    sD = [f"s{r}" for r in range(74, 80)]; sL = ["s80", "s81", "s82"]
    def dma_setup():
        srd(TA_, pWO, 6144*1280); srd(TB_, pWD, 1536*1280)
        A(f"s_lshl_b32 {sT2}, {sS}, 3\ns_lshr_b32 {sT1}, {sC}, 3\ns_lshl_b32 {sT1}, {sT1}, 1\ns_add_u32 {sT2}, {sT2}, {sT1}")
        A(f"s_mul_i32 {sT1}, {sG}, 192\ns_add_u32 {sT2}, {sT2}, {sT1}")
        A(f"s_lshl_b32 {sT0}, {sW}, 1\ns_add_u32 {sT0}, {sT0}, {sOWN}\ns_lshl_b32 {sT0}, {sT0}, 2\ns_lshr_b32 {sT0}, {hex(PILUT)}, {sT0}\ns_and_b32 {sT0}, {sT0}, 7\ns_mul_i32 {sT0}, {sT0}, {NG*192}\ns_add_u32 {sT0}, {sT0}, {sT2}")
        A(f"s_mul_i32 {sL[0]}, {sT0}, 1280\ns_add_u32 {sL[1]}, {sL[0]}, {64*1280}\ns_add_u32 {sL[2]}, {sL[0]}, {128*1280}")
        A(f"s_lshl_b32 {sT0}, {sW}, 6\ns_add_u32 {sT0}, {sT0}, {sT2}\ns_add_u32 {sT0}, {sT0}, {PI[7]*NG*192}\ns_mul_i32 {sD[2]}, {sT0}, 1280\ns_mul_i32 {sD[3]}, {sW}, 2560")
        A(f"s_mul_i32 {sT0}, {sLIN}, 7680\ns_lshl_b32 {sD[5]}, {sW}, 11\ns_add_u32 {sD[4]}, {sT0}, {sD[5]}")
    def w(paced):
        if paced: A(f"s_waitcnt vmcnt({pace-1})")
    def op_pb(n):
        def f(paced):
            if n and n % 3 == 0: A(f"s_add_u32 {sOFF}, {sOFF}, {TSTR}")
            w(paced); ld(PB + 4*n, n % 3)
        return f
    def op_wo(jj, i, off=0, base=7680):
        def f(paced):
            if i == 0: A(f"s_add_u32 m0, {sD[off+1]}, {L_W+base+2560*jj}")
            if i == 2: A("s_mov_b32 exec_hi, 0")
            w(paced); A(f"buffer_load_dwordx4 v7, {TA_}, {sD[off]} offen offset:{1024*i} nt lds")
            if i == 2: A(f"s_mov_b32 exec_hi, -1\ns_add_u32 {sD[off]}, {sD[off]}, {64*1280}")
        return f
    def op_wd(i):
        def f(paced):
            if i == 0: A(f"s_add_u32 m0, {sD[5]}, {L_W}")
            else: A(f"s_cmp_eq_u32 {sW}, 3\ns_cselect_b32 exec_hi, 0, -1")
            w(paced); A(f"buffer_load_dwordx4 v7, {TB_}, {sD[4]} offen offset:{1024*i} nt lds")
            if i: A("s_mov_b32 exec_hi, -1")
        return f
    def op_s4(paced):
        A(f"s_cmp_eq_u32 {sW}, 3\ns_cbranch_scc1 L_nos4")
        for i in range(3): op_wo(0, i, 2, 7680)(paced)
        A("L_nos4:")
    dma = [op_wd(0), op_wd(1), op_s4]
    pbs = [op_pb(n) for n in range(24)]
    ops = dma + pbs if dfirst else pbs + dma
    assert pre0 <= 2 or not dfirst
    dma_setup()
    A(f"s_waitcnt vmcnt(5)\ns_cmp_eq_u32 {sW}, 4\ns_cbranch_scc1 L_nopre0")
    for n in range(pre0): ops[n](False)
    A("L_nopre0:")
    axpy(WA, WD, 20, f"v{T+6}", f"v{T+7}")
    A(f"s_cmp_eq_u32 {sW}, 4\ns_cbranch_scc1 L_nopre1\ns_waitcnt vmcnt({pre0})")
    for n in range(pre0, pre1): ops[n](False)
    A("s_branch L_pre2\nL_nopre1:\ns_waitcnt vmcnt(0)\nL_pre2:")
    axpy(WA, WD+20, 20, f"v{T+8}", f"v{T+9}")
    redscat(WA, 5)
    A(f"s_mul_i32 {sT0}, {sW}, 1280\nv_lshl_add_u32 v4, {vLANE}, 2, {sT0}")
    for k in range(5): A(f"ds_write_b32 v4, v{WA+8*k} offset:{L_QP+256*k}")
    A(f"v_mov_b32 v5, 0\nv_mov_b32 v6, 1\ns_mov_b64 exec, 1\nds_add_u32 v5, v6 offset:{L_CT}\ns_mov_b64 exec, -1")
    stamp(2)
    if ab: A("s_barrier")
    A(f"s_cmp_eq_u32 {sW}, 4\ns_cbranch_scc1 L_svc")
    for n in range(pre1, len(ops)):
        ops[n](True)
        if n == trig: A(f"v_mov_b32 v6, 64\ns_mov_b64 exec, 1\nds_add_u32 v5, v6 offset:{L_CT}\ns_mov_b64 exec, -1")
    A(f"s_mov_b32 {sIB}, 1")
    for m in range(G):
        if m % 3 == 0: A(f"s_add_u32 {sOFF}, {sOFF}, {TSTR}")
        A(f"s_waitcnt vmcnt({pace-1})"); ld(RING + 4*m, m % 3)
    vQA, vSA = "v4", "v5"
    A(f"v_lshlrev_b32 {vQA}, 4, {vB}\nv_add_u32 {vQA}, {L_QB}, {vQA}")
    A(f"s_lshl_b32 {sT0}, {sW}, 12\ns_add_u32 {sT0}, {sT0}, {L_SC}\nv_lshl_add_u32 {vSA}, {vLANE}, 2, {sT0}")
    A(f"s_lshl_b32 {sT0}, {sX}, 2\ns_add_u32 {sT0}, {sT0}, {sW}\ns_mul_i32 {sT0}, {sT0}, 4224\ns_add_u32 {sT0}, {sT0}, {WS_PR}")
    A(f"s_add_u32 s28, s{pWS}, {sT0}\ns_addc_u32 s29, s{pWS+1}, 0\ns_mov_b32 s30, {132 if xd else 128}")
    A(f"v_lshlrev_b32 {vPL}, 2, {vLANE}\nv_mov_b32 {vPS}, 0x1000\nv_cmp_eq_u32 vcc, {sC}, {vLANE}\nv_cndmask_b32 {vPS}, {vPS}, {vPL}, vcc\nv_mov_b32 {vPC}, {sTAG}")
    A(f"s_getreg_b32 {sTHR}, hwreg(HW_REG_XCC_ID)\ns_bitcmp1_b32 {sTHR}, 0\ns_cselect_b32 {sTHR}, {fbo}, {fb}")
    A(f"s_add_u32 {sT0}, {sW}, {sOWN}\ns_cmp_eq_u32 {sT0}, 4\ns_cselect_b32 s22, 0, s22\ns_cselect_b32 {sL[0]}, 0, {sL[0]}\ns_cselect_b32 {sL[1]}, 0, {sL[1]}\ns_cselect_b32 {sL[2]}, 0, {sL[2]}")
    A(f"s_mov_b64 vcc, 0\ns_mov_b32 s47, 0")
    stamp(3)
    A("s_barrier")
    for j in range(3): A(f"ds_read_b128 v[{Q+4*j}:{Q+4*j+3}], {vQA} offset:{128*j}")
    A("s_waitcnt lgkmcnt(0)")
    stamp(4)
    SA, R, RT, S2 = ACC, ACC + 2, ACC + 6, ACC + 8
    def k_after_tile(t):
        A(f"v_add_f32_dpp v{R+(t&3)}, v{SA+(t&1)}, v{SA+(t&1)} row_half_mirror row_mask:0xf bank_mask:{'0xa' if t >= 4 else '0x5'}")
    def k_stage2(e): A(f"v_add_f32_dpp v{R+e}, v{R+e}, v{R+e} quad_perm:[2,3,0,1] {DPP}")
    def k_fin(which):
        if which == 0:
            k_after_tile(7); k_stage2(3)
            A(f"v_cndmask_b32 v{RT+1}, v{R+1}, v{R+3}, {mB1}")
        else:
            A(f"v_add_f32_dpp v{RT+1}, v{RT+1}, v{RT+1} quad_perm:[1,0,3,2] {DPP}\nv_cndmask_b32 v{RT}, v{RT}, v{RT+1}, {mB0}")
            A(f"ds_write_b32 {vSA}, v{RT}\nv_add_u32 {vSA}, 256, {vSA}")
    def k_body(first):
        for n in range(24):
            t, j = n//3, n % 3
            slot(n)
            if not first:
                if n < 2: k_fin(n)
                if n == 0: A("s_waitcnt lgkmcnt(0)")
                if n == bs: A("s_waitcnt lgkmcnt(0)\ns_barrier")
            else: qk4(S2 + t, PB + 4*n, j)
            if j == 0 and t >= 1: k_after_tile(t-1)
            if j == 1 and t >= 5: k_stage2(t-5)
            if n == 23: A(f"v_cndmask_b32 v{RT}, v{R}, v{R+2}, {mB1}")
            if n == 20: A(f"s_add_u32 {sBLK}, {sBLK}, 1\ns_and_b32 {sT0}, {sBLK}, {BPS-1}\ns_cselect_b32 {sT0}, 0, 384\nv_add_u32 {vQA}, {sT0}, {vQA}")
            if "c" not in skip: qk4(SA + (t & 1), RING + 4*(n % RB), j)
            if n == 23: A(f"v_add_f32_dpp v{RT}, v{RT}, v{RT} quad_perm:[1,0,3,2] {DPP}")
            if t == 7: A(f"ds_read_b128 v[{Q+4*j}:{Q+4*j+3}], {vQA} offset:{128*j}")
    A(f"s_mov_b32 {sBLK}, 1")
    k_body(True)
    redscat_lo([S2])
    A(f"ds_write_b32 {vSA}, v{S2}\nv_add_u32 {vSA}, 256, {vSA}")
    A("L_k:")
    k_body(False)
    def stab(t): A(f"s_cmp_lg_u32 {sBLK}, {stA}\ns_cbranch_scc1 L_st1{t}\ns_memrealtime s[42:43]\nL_st1{t}:\ns_cmp_lg_u32 {sBLK}, {stB}\ns_cbranch_scc1 L_st2{t}\ns_memrealtime s[48:49]\nL_st2{t}:")
    def trc():
        if diag3: A(f"s_memrealtime s[100:101]\ns_waitcnt lgkmcnt(0)\ns_mov_b32 m0, {sBLK}\nv_writelane_b32 v199, s100, m0")
    trc()
    if stamps: stab("k")
    A(f"s_cmp_lt_u32 {sBLK}, 16\ns_cbranch_scc1 L_k")
    if stamps: A("s_memrealtime s[50:51]")
    vP, vPN, pl, ph, vOA, RV = "v44", "v45", "v46", "v47", "v4", Q
    k_fin(0); k_fin(1)
    A(f"v_subrev_u32 {vSA}, 4096, {vSA}\nds_read_b32 {vPN}, {vSA} offset:{512*PI[0]}")
    A(f"s_lshl_b32 {sT0}, {sW}, 10\ns_add_u32 {sT0}, {sT0}, {L_OP}\nv_add_u32 {vOA}, {sT0}, v7\ns_mov_b32 s73, 0\ns_waitcnt lgkmcnt(0)")
    for i in range(24): A(f"v_mov_b32 v{ACC+i}, 0")
    def v_a(g, zero=True):
        b = ACC + 8*g
        for e in range(4): A(f"v_permlane32_swap_b32 v{b+e}, v{b+e+4}")
        for e in range(4): A(f"v_add_f32 v{RV+4*g+e}, v{b+e}, v{b+e+4}")
        if zero:
            for e in range(8): A(f"v_mov_b32 v{b+e}, 0")
    def v_b(gs):
        for g in gs:
            for e in range(2): A(f"v_permlane16_swap_b32 v{RV+4*g+e}, v{RV+4*g+e+2}")
        for g in gs:
            for e in range(2): A(f"v_add_f32 v{RV+4*g+e}, v{RV+4*g+e}, v{RV+4*g+e+2}")
        for g in gs: A(f"v_add_f32_dpp v{48+g}, v{RV+4*g}, v{RV+4*g} row_ror:8 row_mask:0xf bank_mask:0x3")
        for g in gs: A(f"v_add_f32_dpp v{48+g}, v{RV+4*g+1}, v{RV+4*g+1} row_ror:8 row_mask:0xf bank_mask:0xc")
    def v_out(): A(f"ds_write_b96 {vOA}, v[48:50]\nv_xor_b32 {vOA}, 4096, {vOA}")
    def cond(lab, code): A(f"s_cmp_eq_u32 s73, 0\ns_cbranch_scc1 {lab}"); code(); A(f"{lab}:")
    def v_comp(n):
        if n % 3 == 0:
            t = n//3
            A(f"v_mov_b32_dpp {pl}, {vP} row_newbcast:{t} row_mask:0xf bank_mask:0x3")
            A(f"v_mov_b32_dpp {pl}, {vP} row_newbcast:{8+t} row_mask:0xf bank_mask:0xc")
            A(f"v_lshlrev_b32 {ph}, 16, {pl}")
        if "c" not in skip: axpy(ACC + 8*(n % 3), RING + 4*(n % RB), 4, pl, ph)
    A("L_v:")
    for n in range(24):
        if n == 24 - G: A(f"s_cmp_eq_u32 {sBLK}, 31\ns_cbranch_scc1 L_vend")
        slot(n, True)
        if n == 0: A(f"s_waitcnt lgkmcnt(0)\nv_mov_b32 {vP}, {vPN}"); cond("L_c0", lambda: v_a(2))
        if n == 1: cond("L_c1", lambda: (v_b([2]), v_out()))
        if n == bs: A("s_waitcnt lgkmcnt(0)\ns_barrier")
        if n == 20:
            A(f"s_add_u32 {sT1}, {sBLK}, 1\ns_and_b32 {sT0}, {sT1}, {BPS-1}\ns_cselect_b32 s73, 0, 1")
            A(f"s_and_b32 {sT1}, {sT1}, 14\ns_lshl_b32 {sT1}, {sT1}, 1\ns_lshr_b32 {sT1}, {hex(PILUT)}, {sT1}\ns_and_b32 {sT1}, {sT1}, 7")
            A(f"s_lshl_b32 {sT1}, {sT1}, 1\ns_add_u32 {sT1}, {sT1}, {sT0}\ns_lshl_b32 {sT1}, {sT1}, 8\nv_add_u32 v51, {sT1}, {vSA}\nds_read_b32 {vPN}, v51")
        v_comp(n)
        if n == 21: cond("L_c21", lambda: (v_a(0), v_b([0])))
        if n == 22: cond("L_c22", lambda: (v_a(1), v_b([1])))
    A(f"s_add_u32 {sBLK}, {sBLK}, 1")
    trc()
    if stamps: stab("v"); A(f"; SSBYTES={(stB-stA)*8*3072}")
    A("s_branch L_v")
    A("L_vend:")
    W4, W1, YA, UF = PB, PB + 24, PB + 32, PB + 44
    late = []
    for r in range(6):
        late.append(f"buffer_load_dwordx4 v[{W4+4*r}:{W4+4*r+3}], v7, {TA_}, {sL[r//2]} offen offset:{1280*(r%2)} nt")
        late.append(f"buffer_load_dword v{W1+r}, {vPL}, {TA_}, {sL[r//2]} offen offset:{1024+1280*(r%2)} nt")
    late.insert(ptpos, f"buffer_load_dword v{W1+6}, v7, {WS_}, {sT1} offen {pt}")
    assert sum(sched) == 13 and len(sched) == G
    A(f"s_lshl_b32 {sT1}, {sLIN}, 12\ns_lshl_b32 {sT0}, {sW}, 10\ns_add_u32 {sT1}, {sT1}, {sT0}\ns_add_u32 {sT1}, {sT1}, {WS_H2}")
    done = 0
    for n in range(24 - G, 24):
        A(f"s_waitcnt vmcnt({23 - n + 2*sum(1 for c in cps if n - G <= c < 24 - G) + done})")
        for i in range(sched[n - 24 + G]): A(late[done]); done += 1
        v_comp(n)
        if n == 23: stamp(5)
        if n >= 21: v_a(n - 21, False); v_b([n - 21])
    v_out()
    A(f"s_lshl_b32 {sT0}, {sW}, 4\nv_mov_b32 v8, {sT0}\ns_waitcnt lgkmcnt(0)\ns_barrier")
    stamp(6)
    LW = PB + 56
    A(f"ds_read_b128 v[12:15], v8 offset:{L_U}")
    A(f"s_mul_i32 {sT0}, {sW}, 640\nv_mul_u32_u24 v11, 80, {vA}\nv_mad_u32_u24 v11, {vB}, 12, v11\nv_add_u32 v11, {sT0}, v11\nv_lshrrev_b32 v40, 1, v11")
    for r in range(6):
        for e in range(3): A(f"ds_read_u16 v{LW+10+3*r+e}, v40 offset:{L_W+7680+1280*r+2*e}")
        if r == 3: A("s_waitcnt lgkmcnt(0)")
    A(f"s_mul_i32 {sT0}, {sW}, 2560\nv_lshl_add_u32 v9, {vLANE}, 5, {sT0}\nv_lshl_add_u32 v10, {vLANE}, 3, {sT0}\nv_add_u32 v11, {L_YP}, v11")
    A(f"v_mov_b32 v19, {sTAG}")
    A("v_mov_b32 v8, 0\nv_mov_b32 v41, 0x10000")
    for i in range(10): A(f"v_mov_b32 v{YA+i}, 0")
    for p in range(3):
        A(f"v_and_b32 v{UF+4*p}, 0xffff, v{12+p}\nv_lshlrev_b32 v{UF+4*p+1}, 16, v{12+p}\nv_lshrrev_b32 v{UF+4*p+2}, 16, v{12+p}\nv_and_b32 v{UF+4*p+3}, 0xffff0000, v{12+p}")
    A(f"v_readfirstlane_b32 {sT3}, v15\ns_waitcnt lgkmcnt(0)")
    for p in range(3):
        for e in range(3): A(f"v_lshl_or_b32 v{LW+3*p+e}, v{LW+10+6*p+3+e}, 16, v{LW+10+6*p+e}")
    for r in range(6):
        pos = [i for i, l in enumerate(late) if l.startswith(f"buffer_load_dword v{W1+r},")][0]
        A(f"s_waitcnt vmcnt({12-pos})")
        axpy(YA, W4 + 4*r, 4, f"v{UF+2*r}", f"v{UF+2*r+1}"); axpy(YA + 8, W1 + r, 1, f"v{UF+2*r}", f"v{UF+2*r+1}")
    A(f"ds_write_b128 v9, v[{YA}:{YA+3}] offset:{L_YP}\nds_write_b128 v9, v[{YA+4}:{YA+7}] offset:{L_YP+16}")
    A(f"ds_write_b64 v10, v[{YA+8}:{YA+9}] offset:{L_YP+2048}\ns_mov_b64 exec, 1\nds_add_u32 v8, v41 offset:{L_CT}\ns_mov_b64 exec, -1")
    A(f"L_wy:\nds_read_b32 v41, v8 offset:{L_CT}\ns_waitcnt lgkmcnt(0)\nv_cmp_gt_u32 vcc, 0x40000, v41\ns_cbranch_vccnz L_wy")
    for k in range(5):
        A(f"ds_read2_b32 v[{20+4*k}:{21+4*k}], v11 offset0:0 offset1:1\nds_read_b32 v{22+4*k}, v11 offset:8")
        if k < 4: A("v_add_u32 v11, 2560, v11")
    A("s_waitcnt lgkmcnt(0)")
    for e in range(3): A(f"v_add_f32 v{20+e}, v{20+e}, v{24+e}\nv_add_f32 v{28+e}, v{28+e}, v{32+e}")
    for e in range(3): A(f"v_add_f32 v{20+e}, v{20+e}, v{36+e}")
    for e in range(3): A(f"v_add_f32 v{16+e}, v{20+e}, v{28+e}")
    stamp(7)
    A(f"s_barrier\nds_read_b96 v[12:14], v8 offset:{L_U+64}\ns_waitcnt lgkmcnt(0)")
    for p in range(3):
        for e in range(3): A(f"v_dot2c_f32_bf16 v{16+e}, v{12+p}, v{LW+3*p+e}")
    A(f"s_cmp_eq_u32 {sT3}, 0\ns_cbranch_scc1 L_yr\nbuffer_store_dwordx4 v[16:19], v7, {WS_}, {sT1} offen\ns_branch L_done")
    A(f"L_yr:\nbuffer_store_dwordx4 v[16:19], v7, {WS_}, {sT1} offen sc1\ns_branch L_done")
    A("L_svc:")
    G0 = RING; G1 = G0 + 8
    vQW, vSC, vML, vOP, vLS, vM, vZ, vZK, vXA = [f"v{32+i}" for i in range(7)] + ["v40", "v42"]
    ZS, ZM = 52, 8
    vWA, vH1S, vH1G, vYG, vH3, vYW, vYR, vOUT, XV = "v16", "v17", "v18", "v19", "v20", "v21", "v29", 22, 26
    P0, P1, YY = PB, PB + 32, PB + 64
    YT = YY + 12
    LP = 64//NSEG; LLP = LP.bit_length()-1; NLS = GS//LP; NR = 4*BPS
    sF = [f"s{r}" for r in (20, 21, 22, 24, 25, 26, 28, 29)]
    sLOC, sHD, sTG2, sH1S, sH1G, sYS, sYG, sH3S, sH3G, sXS, sXG, sFL = [f"s{r}" for r in range(72, 84)]
    sUU = ["s60", "s61", "s62"]
    sSCALE, sLOG2E = "s12", "s13"
    def store2(lab, stores):
        A(f"s_cmp_eq_u32 {sLOC}, 0\ns_cbranch_scc1 {lab}_r"); stores(""); A(f"s_branch {lab}_d\n{lab}_r:"); stores("sc1"); A(f"{lab}_d:")
    def poll(lab, loads, tags, sleep=0, first=None, tag=sTAG, loc=False, hook=None):
        A(f"s_mov_b32 {sT2}, {spin}")
        if first is not None: loads(first); A(f"s_branch {lab}_chk")
        elif sleep: A(f"s_branch {lab}_go")
        A(f"{lab}:")
        if hook: hook()
        if sleep: A(f"s_sleep {sleep}\n{lab}_go:")
        if loc and lp != "sc1":
            A(f"s_cmp_eq_u32 {sLOC}, 0\ns_cbranch_scc1 {lab}_rm"); loads(lp); A(f"s_branch {lab}_chk\n{lab}_rm:")
        loads("sc1")
        A(f"{lab}_chk:\ns_waitcnt vmcnt(0)")
        if len(tags) == 1: A(f"v_cmp_ne_u32 vcc, {tag}, {tags[0]}")
        else:
            A(f"v_xor_b32 {t0}, {tag}, {tags[0]}")
            for t in tags[1:]: A(f"v_bitop3_b32 {t0}, {t}, {tag}, {t0} bitop3:0xbe")
            A(f"v_cmp_ne_u32 vcc, 0, {t0}")
        A(f"s_cbranch_vccz {lab}_done\ns_sub_u32 {sT2}, {sT2}, 1\ns_cbranch_scc0 {lab}\n{lab}_done:")
    if not early: touches()
    A(f"v_lshlrev_b32 v4, 2, {vLANE}")
    A(f"L_wq:\nds_read_b32 v6, v5 offset:{L_CT}\ns_waitcnt lgkmcnt(0)\nv_and_b32 v6, 7, v6\nv_cmp_gt_u32 vcc, 5, v6\ns_cbranch_vccnz L_wq")
    for w in range(5):
        for k in range(5): A(f"ds_read_b32 v{G0+5*w+k}, v4 offset:{L_QP+1280*w+256*k}")
        if w == 2: A("s_waitcnt lgkmcnt(0)")
    A("s_waitcnt lgkmcnt(0)")
    for w in range(1, 5):
        for k in range(5): A(f"v_add_f32 v{G0+k}, v{G0+k}, v{G0+5*w+k}")
    QO = 52
    A(f"v_lshl_add_u32 v5, {vB}, 3, {vA}\nv_lshlrev_b32 {vQW}, 1, v5\nv_lshlrev_b32 v5, 4, v5")
    A(f"v_mov_b32 v48, v{G0+3}\nv_mov_b32 v49, v{G0+4}\nv_mov_b32 v{QO+3}, {sTAG}\nv_mov_b32 v50, {sTAG}\nv_mov_b32 v51, {sTAG}")
    for k in range(3): A(f"v_mov_b32 v{QO+k}, v{G0+k}")
    A(f"s_lshl_b32 {sHD}, {sLIN}, 11\ns_add_u32 {sHD}, {sHD}, {WS_QS}\ns_cmp_lt_u32 {sMEM}, 16\ns_cbranch_scc1 L_qw")
    A(f"buffer_store_dwordx4 v[{QO}:{QO+3}], v7, {WS_}, {sHD} offen\ns_branch L_qd")
    A(f"L_qw:\nbuffer_store_dwordx4 v[{QO}:{QO+3}], v7, {WS_}, {sHD} offen sc1\nL_qd:")
    stamp(3)
    A(f"v_add_u32 {vSC}, {L_SC}, v4\nv_mov_b32 {vML}, {L_ML}\nv_add_u32 {vOP}, {L_OP}, v7\nv_mov_b32 {vZ}, 0")
    A(f"s_mov_b32 {sSCALE}, 0x3d93cd3a\ns_mov_b32 {sLOG2E}, 0x3fb8aa3b\ns_mov_b32 {sBLK}, 0")
    A(f"s_lshl_b32 {sT1}, {sG}, {11+LGS}\ns_add_u32 {sT1}, {sT1}, {WS_QS}")
    A(f"L_wt:\ns_sleep 2\nds_read_b32 v10, {vZ} offset:{L_CT}\ns_waitcnt lgkmcnt(0)\nv_cmp_gt_u32 vcc, 256, v10\ns_cbranch_vccnz L_wt")
    def gq(n, base):
        def f(p):
            for s in range(n):
                if s % 2 == 0: A(f"s_add_u32 {sT0}, {base}, {2048*s}")
                A(f"buffer_load_dwordx4 v[{G0+4*s}:{G0+4*s+3}], v7, {WS_}, {sT0} offen offset:{2048*(s%2)} {p}")
        return f
    poll("L_gq", gq(16, sT1), [f"v{G0+4*s+3}" for s in range(16)], first=qp, sleep=psleep)
    for s in range(1, 8):
        for h in range(2):
            for k in range(3): A(f"v_add_f32 v{G0+32*h+k}, v{G0+32*h+k}, v{G0+32*h+4*s+k}")
    for h in range(2):
        for k in range(3): A(f"v_cvt_pk_bf16_f32 v{G0+32*h+k}, v{G0+32*h+k}, 0")
    for h in range(2):
        for k in range(3): A(f"ds_write_b16 {vQW}, v{G0+32*h+k} offset:{L_QB+384*h+128*k}")
    stamp(4)
    A("s_branch L_next")
    A("L_blk:")
    if xd:
        A(f"s_cmp_lg_u32 {sC}, 0\ns_cbranch_scc1 L_noxf\ns_and_b32 {sT0}, {sBLK}, {xp-1}\ns_cmp_lg_u32 {sT0}, {xp-1}\ns_cbranch_scc1 L_noxf\ns_cmp_gt_u32 {sBLK}, 28\ns_cbranch_scc1 L_noxf")
        A(f"s_add_u32 {sT0}, {sTAG}, {sBLK}\nv_mov_b32 v12, {sT0}\nv_mul_u32_u24 v13, 4224, {vLANE}\ns_mul_i32 {sT1}, {sX}, 4224\ns_add_u32 {sT1}, {sT1}, {WS_PR+0x30000}")
        A(f"s_mov_b64 exec, 1\nbuffer_store_dword v12, v13, {WS_}, {sT1} offen sc1\ns_mov_b32 {sT1}, {WS_PR+0x30000}")
        if xs < 0: A("s_waitcnt vmcnt(0)")
        if xs > 0: A(f"s_sleep {xs}")
        A(f"s_mov_b64 exec, 0xff\nbuffer_load_dword v14, v13, {WS_}, {sT1} offen sc1\ns_waitcnt vmcnt(0)")
        lutv = sum((d + 8) << (4*i) for i, d in enumerate(xd))
        A(f"v_sub_u32 v14, v14, v12\nv_cmp_gt_u32 vcc, 64, v14\ns_bitset0_b32 vcc_lo, {sX}\ns_bcnt1_i32_b64 {sT0}, vcc\ns_lshl_b32 {sT0}, {sT0}, 2")
        A(f"s_lshr_b32 {sT0}, {hex(lutv)}, {sT0}\ns_and_b32 {sT0}, {sT0}, 15\ns_getreg_b32 {sT1}, hwreg(HW_REG_XCC_ID)\ns_bitcmp1_b32 {sT1}, 0\ns_cselect_b32 {sT1}, {fbo-8}, {fb-8}")
        A(f"s_add_u32 {sT0}, {sT0}, {sT1}\ns_min_u32 {sT0}, {sT0}, 32\ns_add_u32 {sT0}, {sT0}, {sTAG}\nv_mov_b32 v12, {sT0}")
        A(f"s_mul_i32 {sT1}, {sX}, {4*4224}\ns_add_u32 {sT1}, {sT1}, {WS_PR+128}\ns_mov_b64 exec, 0xf")
        A(f"buffer_store_dword v12, v13, {WS_}, {sT1} offen\ns_mov_b64 exec, -1\nL_noxf:")
    A(f"s_cmp_le_u32 {sBLK}, 16\ns_cbranch_scc1 L_kpart\ns_and_b32 {sT0}, {sBLK}, {BPS-1}\ns_cbranch_scc1 L_vmid")
    stamp(5)
    for w in range(4): A(f"ds_read_b96 v[{G0+4*w}:{G0+4*w+2}], {vOP} offset:{1024*w}")
    A(f"v_xor_b32 {vOP}, 4096, {vOP}\nv_mov_b32 v{G0+19}, {sTG2}\ns_waitcnt lgkmcnt(0)")
    for k in range(3): A(f"v_add_f32 v{G0+k}, v{G0+k}, v{G0+4+k}\nv_add_f32 v{G0+8+k}, v{G0+8+k}, v{G0+12+k}")
    for k in range(3): A(f"v_add_f32 v{G0+k}, v{G0+k}, v{G0+8+k}")
    for k in range(3): A(f"v_mul_f32 v{G0+16+k}, {sF[0]}, v{G0+k}")
    if "h" in skip: A(f"s_cmp_lg_u32 {sBLK}, 32\ns_cbranch_scc1 L_p1_done")
    store2("L_s1", lambda p: A(f"buffer_store_dwordx4 v[{G0+16}:{G0+19}], {vH1S}, {WS_}, {sH1S} offen {p}"))
    poll("L_p1", lambda p: A(f"buffer_load_dwordx4 v[{G0}:{G0+3}], {vH1G}, {WS_}, {sH1G} offen {p}"), [f"v{G0+3}"], tag=sTG2, loc=True)
    stamp(6)
    A(f"v_mov_b32 v{G0+3}, 0\nv_permlane32_swap_b32 v{G0}, v{G0+1}\nv_permlane32_swap_b32 v{G0+2}, v{G0+3}")
    A(f"v_add_f32 v{G0}, v{G0}, v{G0+1}\nv_add_f32 v{G0+2}, v{G0+2}, v{G0+3}\nv_permlane16_swap_b32 v{G0}, v{G0+2}\nv_add_f32 {vZK}, v{G0}, v{G0+2}")
    allred_lo("v_add_f32", [vZK], 3)
    A(f"s_cmp_eq_u32 {sBLK}, 32\ns_cbranch_scc1 L_tail")
    for i in range(NSEG-1): A(f"s_mov_b32 {sF[i]}, {sF[i+1]}")
    A(f"s_add_u32 {sTG2}, {sTG2}, 1\ns_xor_b32 {sH1S}, {sH1S}, 1024\ns_xor_b32 {sH1G}, {sH1G}, 1024")
    A(f"s_lshr_b32 {sT0}, {sBLK}, 1\ns_xor_b32 {sT0}, {sT0}, {sOWN}\ns_bitcmp1_b32 {sT0}, 0\ns_cbranch_scc0 L_notmine")
    A(f"v_mov_b32 v{ZM}, v{ZM+1}\nv_mov_b32 v{ZM+1}, v{ZM+2}\nv_mov_b32 v{ZM+2}, {vZK}\ns_cmp_eq_u32 {sBLK}, 28\ns_cbranch_scc0 L_next\ns_branch L_send")
    A(f"L_notmine:\nv_mov_b32 v{ZS}, v{ZS+1}\nv_mov_b32 v{ZS+1}, v{ZS+2}\nv_mov_b32 v{ZS+2}, {vZK}\ns_cmp_ge_u32 {sBLK}, 28\ns_cbranch_scc0 L_next")
    A("L_send:")
    if "x" in skip: A("s_branch L_next")
    A(f"s_mov_b32 exec_lo, 0x01010101\ns_mov_b32 exec_hi, 0x01010101")
    A(f"buffer_store_dwordx4 v[{ZS}:{ZS+3}], {vXA}, {WS_}, {sXS} offen sc1\ns_mov_b64 exec, -1\ns_add_u32 {sXS}, {sXS}, 128")
    A("s_branch L_next")
    A("L_vmid:")
    A(f"s_cmp_lg_u32 {sBLK}, {lsb}\ns_cbranch_scc1 L_nols")
    A(f"s_mul_i32 {sT1}, {sG}, {GS*128}\ns_add_u32 {sT1}, {sT1}, {WS_LS}\ns_add_u32 {sT3}, {sT1}, 4096")
    def gl(p):
        for r in range(NLS): A(f"buffer_load_dwordx4 v[{G0+4*r}:{G0+4*r+3}], {vLS}, {WS_}, {sT1 if LP*128*r < 4096 else sT3} offen offset:{LP*128*r % 4096} {p}")
    poll("L_ls", gl, [f"v{G0+4*r+e}" for r in range(NLS) for e in (1, 3)], sleep=16, first=qp)
    hn = NLS//2 if PAIR else NLS
    for h, t in ((0, t0), (1, t1))[:2 if PAIR else 1]:
        A(f"v_xor_b32 {t}, {sLOC}, v{G0+4*hn*h+2}")
        for r in range(1, hn): A(f"v_bitop3_b32 {t}, v{G0+4*(hn*h+r)+2}, {sLOC}, {t} bitop3:0xbe")
    if PAIR: A(f"s_bitcmp1_b32 {sX}, 0\ns_cselect_b64 vcc, -1, 0\nv_cndmask_b32 {t0}, {t0}, {t1}, vcc")
    A(f"v_cmp_ne_u32 vcc, 0, {t0}\ns_cmp_eq_u64 vcc, 0\ns_cselect_b32 {sLOC}, {local}, 0")
    A(f"v_max_f32 {t0}, v{G0}, v{G0+4}")
    for r in range(2, NLS, 2): A(f"v_max3_f32 {t0}, {t0}, v{G0+4*r}, v{G0+4*r+4}")
    allred_lo("v_max_f32", [t0], LLP)
    for r in range(NLS): A(f"v_sub_f32 v{G0+4*r}, v{G0+4*r}, {t0}")
    for r in range(NLS): A(f"v_exp_f32 v{G0+4*r}, v{G0+4*r}")
    for r in range(1, NLS): A(f"v_add_f32 v{G0}, v{G0}, v{G0+4*r}")
    allred_lo("v_add_f32", [f"v{G0}"], LLP)
    A(f"v_sub_f32 {t0}, {vM}, {t0}\nv_exp_f32 {t0}, {t0}\nv_rcp_f32 {t1}, v{G0}\nv_mul_f32 {t0}, {t0}, {t1}")
    for k in range(NSEG): A(f"v_readlane_b32 {sF[k]}, {t0}, {LP*PI[k]}")
    A(f"v_mov_b32 {t0}, 0\nv_mov_b32 {t1}, 0\nv_mov_b32 {t2}, 0\nv_mov_b32 {t3}, {sLOC}\ns_mov_b64 exec, 0xf\nds_write_b128 v7, v[{T}:{T+3}] offset:{L_U}")
    A(f"s_lshl_b32 {sT0}, {sLIN}, 11\ns_add_u32 {sT0}, {sT0}, {WS_QS}\ns_mov_b32 exec_lo, 0x3f3f3f3f\ns_mov_b32 exec_hi, 0x3f3f3f3f")
    store2("L_s0", lambda p: A(f"buffer_store_dwordx4 v[48:51], v5, {WS_}, {sT0} offen offset:1024 {p}"))
    A("s_mov_b64 exec, -1\ns_branch L_next")
    A("L_nols:")
    A(f"s_cmp_lg_u32 {sBLK}, {lsb+2}\ns_cbranch_scc1 L_nogu2")
    A(f"v_lshlrev_b32 v6, 11, {vA}\nv_lshl_add_u32 v6, {vB}, 4, v6\nv_mov_b32 v{G1}, 0\nv_mov_b32 v{G1+1}, 0")
    A(f"s_lshr_b32 {sT1}, {sLIN}, 3\ns_lshl_b32 {sT1}, {sT1}, 14\ns_mul_i32 {sT0}, {sS}, 96\ns_add_u32 {sT1}, {sT1}, {sT0}\ns_add_u32 {sT1}, {sT1}, {WS_QS}")
    A(f"s_mov_b32 exec_lo, 0x3f3f3f3f\ns_mov_b32 exec_hi, 0x3f3f3f3f")
    poll("L_gu", lambda p: A(f"buffer_load_dwordx4 v[{G1}:{G1+3}], v6, {WS_}, {sT1} offen offset:1024 {p}"), [f"v{G1+2}", f"v{G1+3}"], sleep=psleep, loc=True)
    A("s_mov_b64 exec, -1")
    for k in range(2): A(f"v_add_f32_dpp v{G1+k}, v{G1+k}, v{G1+k} row_ror:8 {DPP}")
    allred_top("v_add_f32", [f"v{G1}", f"v{G1+1}"], [t0, t1])
    A(f"v_cvt_pk_bf16_f32 v{G1}, 0, v{G1}\nv_cvt_pk_bf16_f32 v{G1+1}, 0, v{G1+1}")
    A(f"v_cmp_lt_f32 vcc, 0, v{G1}\nv_cndmask_b32 {t0}, 0, 1.0, vcc\nv_mul_f32 {t3}, v{G1}, {t0}\nv_mul_f32 {t3}, {t3}, v{G1+1}\nv_cvt_pk_bf16_f32 {t3}, {t3}, 0")
    A(f"v_mov_b32_dpp {t0}, {t3} quad_perm:[1,1,3,3] {DPP}\nv_lshl_or_b32 {t3}, {t0}, 16, {t3}")
    for i in range(3): A(f"v_readlane_b32 {sUU[i]}, {t3}, {2*i}")
    for r in range(6):
        for d in range(5): A(f"ds_read_b32 v{P0+5*r+d}, {vWA} offset:{1280*r+4*d}")
        if r % 2: A("s_waitcnt lgkmcnt(0)")
    A(f"s_mov_b32 {sT1}, 0x05040100\ns_mov_b32 {sT3}, 0x07060302")
    for p in range(3):
        for d in range(5):
            A(f"v_perm_b32 v{P1+10*p+2*d}, v{P0+10*p+5+d}, v{P0+10*p+d}, {sT1}\nv_perm_b32 v{P1+10*p+2*d+1}, v{P0+10*p+5+d}, v{P0+10*p+d}, {sT3}")
    for p in range(3):
        for c in range(10): A(f"v_dot2c_f32_bf16 v{YY+c}, {sUU[p]}, v{P1+10*p+c}")
    for d in range(5): A(f"ds_write_b64 {vYW}, v[{YY+2*d}:{YY+2*d+1}] offset:{L_YP+10240+8*d}")
    A("s_branch L_next")
    A("L_nogu2:")
    A(f"s_cmp_lg_u32 {sBLK}, 31\ns_cbranch_scc1 L_nopf")
    if pf is not None:
        for r in range(4 if "y" in pfw else 0):
            A(f"s_add_u32 {sT0}, {sYG}, {8*4096*r}\nbuffer_load_dwordx4 v[{G0+8+4*r}:{G0+8+4*r+3}], {vYG}, {WS_}, {sT0} offen {pf}")
        if "h" in pfw: A(f"buffer_load_dwordx4 v[{G0+24}:{G0+27}], v7, {WS_}, {sH1S} offen {pf}")
    A("L_nopf:")
    A(f"s_cmp_lt_u32 {sBLK}, 29\ns_cbranch_scc1 L_next\ns_add_u32 {sT0}, {sBLK}, {sOWN}\ns_cmp_gt_u32 {sT0}, 31\ns_cbranch_scc1 L_last")
    if "x" not in skip:
        poll("L_px", lambda p: A(f"buffer_load_dwordx4 v[{G0}:{G0+3}], {vXA}, {WS_}, {sXG} offen {p}"), [f"v{G0+3}"], sleep=psleep, first=xl)
    for k in range(3): A(f"v_add_f32 v{ZM+k}, v{ZM+k}, v{G0+k}")
    A(f"s_add_u32 {sXG}, {sXG}, 128\ns_mov_b32 {sFL}, 3\ns_cmp_eq_u32 {sBLK}, 29\ns_cbranch_scc1 L_take\ns_mov_b32 {sFL}, 1\nv_mov_b32 v{ZM}, v{ZM+2}")
    A(f"L_take:\nv_mov_b32_dpp v{G0+1}, v{ZM} row_ror:8 {DPP}\nv_cvt_pk_bf16_f32 v{G0}, v{ZM}, v{G0+1}\nv_mov_b32 v{ZM}, v{ZM+1}\nv_mov_b32 v{ZM+1}, v{ZM+2}")
    A(f"s_mov_b32 exec_lo, 0x00010001\ns_mov_b32 exec_hi, 1\nds_write_b32 {vYR}, v{G0}\ns_mov_b64 exec, -1\nv_add_u32 {vYR}, 16, {vYR}")
    A(f"s_sub_u32 {sFL}, {sFL}, 1\ns_cmp_gt_u32 {sFL}, 0\ns_cbranch_scc1 L_take")
    A("L_last:")
    A(f"s_cmp_lg_u32 {sBLK}, 31\ns_cbranch_scc1 L_next\ns_setprio 3\ns_waitcnt vmcnt(0)")
    A("L_next:")
    A(f"s_add_u32 {sBLK}, {sBLK}, 1\ns_waitcnt lgkmcnt(0)\ns_barrier\ns_branch L_blk")
    A("L_kpart:\ns_setprio 0")
    A(f"s_and_b32 {sT0}, {sBLK}, {BPS-1}\ns_cbranch_scc1 L_nosm")
    for w in range(4):
        for k in range(BPS): A(f"ds_read_b32 v{G0+BPS*w+k}, {vSC} offset:{4096*w+256*k}")
        if w == 1: A("s_waitcnt lgkmcnt(0)")
    A("s_waitcnt lgkmcnt(0)")
    for i in range(NR): A(f"v_cvt_pk_bf16_f32 v{G0+i}, 0, v{G0+i}")
    for i in range(NR): A(f"v_mul_f32 v{G0+i}, {sSCALE}, v{G0+i}")
    for i in range(NR): A(f"v_cvt_pk_bf16_f32 v{G0+i}, 0, v{G0+i}")
    for i in range(NR): A(f"v_mul_f32 v{G0+i}, {sLOG2E}, v{G0+i}")
    A(f"v_max_f32 {t0}, v{G0}, v{G0+1}")
    for i in range(2, NR, 2): A(f"v_max3_f32 {t0}, {t0}, v{G0+i}, v{G0+i+1}")
    allred_lo("v_max_f32", [t0]); allred_top("v_max_f32", [t0], [t1])
    for i in range(NR): A(f"v_sub_f32 v{G0+i}, v{G0+i}, {t0}")
    for i in range(NR): A(f"v_exp_f32 v{G0+i}, v{G0+i}")
    A(f"v_add_f32 {t1}, v{G0}, v{G0+1}")
    for i in range(2, NR): A(f"v_add_f32 {t1}, {t1}, v{G0+i}")
    for i in range(NR): A(f"v_cvt_pk_bf16_f32 v{G0+i}, v{G0+i}, 0")
    for w in range(4):
        for k in range(BPS): A(f"ds_write_b32 {vSC}, v{G0+BPS*w+k} offset:{4096*w+256*k}")
        if w == 1: A("s_waitcnt lgkmcnt(0)")
    allred_lo("v_add_f32", [t1]); allred_top("v_add_f32", [t1], [t2])
    A(f"v_log_f32 {t3}, {t1}\nv_mov_b32 {t2}, {t0}\nv_add_f32 {t3}, {t3}, {t0}")
    A(f"ds_write_b64 {vML}, v[{T+2}:{T+3}]")
    A(f"v_add_u32 {vSC}, {256*BPS}, {vSC}\nv_add_u32 {vML}, 8, {vML}")
    A("L_nosm:")
    A(f"s_cmp_lg_u32 {sBLK}, 1\ns_cbranch_scc1 L_noq1\ns_cmp_lg_u32 {sS}, 0\ns_cbranch_scc1 L_next\ns_cmp_lt_u32 {sMEM}, 16\ns_cbranch_scc1 L_next")
    poll("L_go", gq(8, sHD), [f"v{G0+4*s+3}" for s in range(8)], sleep=psleep, first=op)
    for s in range(1, 8):
        for k in range(3): A(f"v_add_f32 v{G0+k}, v{G0+k}, v{G0+4*s+k}")
    for k in range(3): A(f"v_mov_b32_dpp v{G0+4+k}, v{G0+k} row_ror:8 {DPP}")
    for k in range(3): A(f"v_cvt_pk_bf16_f32 v{G0+k}, v{G0+k}, v{G0+4+k}")
    A(f"v_lshrrev_b32 v6, 4, {vLANE}\nv_lshl_add_u32 v6, v6, 3, {vB}\nv_lshlrev_b32 v6, 4, v6\ns_lshl_b32 {sT0}, {sLIN}, 6\ns_add_u32 {sT0}, {sT0}, {WS_QF}")
    A(f"s_mov_b32 exec_lo, 0x00ff00ff\ns_mov_b32 exec_hi, 0x00ff00ff\nbuffer_store_dwordx4 v[{G0}:{G0+3}], v6, {WS_}, {sT0} offen sc1\ns_mov_b64 exec, -1")
    A(f"s_waitcnt vmcnt(0)\ns_branch L_next\nL_noq1:\ns_cmp_lg_u32 {sBLK}, 2\ns_cbranch_scc1 L_noq2")
    A(f"s_lshl_b32 {sT1}, {sG}, 12\ns_add_u32 {sT1}, {sT1}, {WS_QF}")
    def gf(p):
        for r in range(1, 4): A(f"buffer_load_dwordx4 v[{G0+4*r}:{G0+4*r+3}], v7, {WS_}, {sT1} offen offset:{1024*r} {p}")
    def again():
        A(f"s_cmp_lg_u32 {sT2}, {spin-nre}\ns_cbranch_scc1 L_nore\nbuffer_store_dwordx4 v[{QO}:{QO+3}], v7, {WS_}, {sHD} offen sc1\nL_nore:")
    A(f"v_lshrrev_b32 {vQW}, 5, {vLANE}\nv_mul_u32_u24 {vQW}, 384, {vQW}\nv_lshl_add_u32 {vQW}, {vB}, 4, {vQW}\nv_and_b32 v6, 3, {vA}\nv_lshl_add_u32 {vQW}, v6, 2, {vQW}")
    A("s_waitcnt lgkmcnt(0)")
    poll("L_gf", gf, [f"v{G0+4*r+3}" for r in range(1, 4)], first=qp, sleep=psleep, hook=again)
    for r in range(1, 4):
        for k in range(3): A(f"ds_write_b32 {vQW}, v{G0+4*r+k} offset:{L_QB+768*r+128*k}")
    A("s_branch L_next\nL_noq2:")
    A(f"s_cmp_lg_u32 {sBLK}, {NSEG+1}\ns_cbranch_scc1 L_nogu")
    A(f"v_mul_u32_u24 {vWA}, 20, {vLANE}\nv_add_u32 {vWA}, {L_W}, {vWA}")
    A(f"v_lshrrev_b32 {t0}, 4, {vLANE}\nv_lshl_add_u32 {t0}, {t0}, 3, {vB}\nv_and_b32 {t1}, 8, {vLANE}\nv_lshlrev_b32 {t1}, 1, {t1}")
    A(f"v_lshl_add_u32 {vH1S}, {t0}, 5, {t1}\nv_lshl_add_u32 {vH1G}, {t0}, 11, {t1}")
    A(f"s_lshl_b32 {sH1S}, {sLIN}, 11\ns_add_u32 {sH1S}, {sH1S}, {WS_H1}")
    A(f"s_lshl_b32 {sH1G}, {sX}, 16\ns_lshl_b32 {sT0}, {sC}, 5\ns_add_u32 {sH1G}, {sH1G}, {sT0}\ns_add_u32 {sH1G}, {sH1G}, {WS_H1}")
    A(f"v_mul_u32_u24 {vYW}, 40, {vLANE}\nv_lshrrev_b32 {vYR}, 1, {vLANE}\nv_and_b32 {vYR}, 8, {vYR}\nv_lshrrev_b32 {t0}, 3, {vLANE}\nv_and_or_b32 {vYR}, {t0}, 4, {vYR}\nv_add_u32 {vYR}, {L_U}, {vYR}\nv_mov_b32 v43, {vYR}")
    A(f"v_lshlrev_b32 {t0}, 4, {vB}\nv_lshl_add_u32 {vYG}, {vA}, 12, {t0}\nv_lshlrev_b32 {vXA}, 4, {vA}\nv_mov_b32 v41, {sTAG}\nv_mov_b32 v{ZS+3}, {sTAG}")
    A(f"s_lshl_b32 {sYS}, {sLIN}, 12\ns_add_u32 {sYS}, {sYS}, {WS_H2}")
    A(f"s_lshl_b32 {sYG}, {sX}, 17\ns_lshl_b32 {sT0}, {sC}, 7\ns_add_u32 {sYG}, {sYG}, {sT0}\ns_add_u32 {sYG}, {sYG}, {WS_H2}")
    A(f"s_lshl_b32 {sH3G}, {sC}, 10\ns_add_u32 {sH3G}, {sH3G}, {WS_H3}\ns_lshl_b32 {sT0}, {sX}, 7\ns_add_u32 {sH3S}, {sH3G}, {sT0}")
    A(f"s_lshl_b32 {sXS}, {sLIN}, 8\ns_add_u32 {sXS}, {sXS}, {WS_XX}\ns_xor_b32 {sXG}, {sXS}, {32*256}")
    A(f"s_add_u32 {sTG2}, {sTAG}, 1\ns_mov_b32 {sFL}, 0")
    A(f"v_mul_u32_u24 {t0}, 3, {vB}\ns_mul_i32 {sT0}, {sC}, 20\nv_add_lshl_u32 {t0}, {t0}, {sT0}, 1\nv_mov_b32 {t2}, {OOB}")
    A(f"v_cmp_gt_u32 vcc, 7, {vB}\nv_cndmask_b32 v{vOUT}, {t2}, {t0}, vcc\nv_cmp_gt_u32 vcc, 6, {vB}\nv_cndmask_b32 v{vOUT+1}, {t2}, {t0}, vcc")
    A(f"v_mov_b32 {t0}, {WS_EP}\nv_or_b32 {t1}, s2, {vLANE}\nv_cmp_eq_u32 vcc, 0, {t1}\nv_cndmask_b32 v{vOUT+2}, {t2}, {t0}, vcc")
    A(f"buffer_load_ushort v{XV}, v{vOUT}, {X_}, 0 offen\nbuffer_load_ushort v{XV+1}, v{vOUT}, {X_}, 0 offen offset:2\nbuffer_load_ushort v{XV+2}, v{vOUT+1}, {X_}, 0 offen offset:4")
    for i in range(10): A(f"v_mov_b32 v{YY+i}, 0")
    A("s_waitcnt vmcnt(0)")
    for e in range(3): A(f"v_lshlrev_b32 v{XV+e}, 16, v{XV+e}")
    srd_lo(X_, pOUT)
    A("s_branch L_next")
    A("L_nogu:")
    A(f"s_cmp_lg_u32 {sBLK}, 16\ns_cbranch_scc1 L_next")
    A(f"v_lshrrev_b32 v10, {LLP}, {vLANE}\nv_lshlrev_b32 v10, 3, v10\ns_waitcnt lgkmcnt(0)\nds_read_b64 v[{T+2}:{T+3}], v10 offset:{L_ML}")
    A(f"s_lshl_b32 {sT1}, {sLIN}, 7\ns_add_u32 {sT1}, {sT1}, {WS_LS}\nv_and_b32 v11, {LP-1}, {vLANE}\nv_cmp_eq_u32 vcc, 0, v11")
    A(f"s_waitcnt lgkmcnt(0)\nv_mov_b32 {vM}, {t2}\nv_mov_b32 {t0}, {t3}\nv_mov_b32 {t1}, {sTAG}\nv_mov_b32 {t3}, {sTAG}")
    A(f"s_getreg_b32 {sLOC}, hwreg(HW_REG_XCC_ID)\nv_mov_b32 {t2}, {sLOC}\nv_lshlrev_b32 v10, 1, v10\ns_mov_b64 exec, vcc")
    A(f"buffer_store_dwordx4 v[{T}:{T+3}], v10, {WS_}, {sT1} offen sc1\ns_mov_b64 exec, -1")
    A(f"v_lshl_add_u32 {vLS}, v11, 7, v10\ns_branch L_next")
    A("L_tail:")
    A(f"v_mov_b32_dpp v{G0+1}, {vZK} row_ror:8 {DPP}\nv_cvt_pk_bf16_f32 v{G0}, {vZK}, v{G0+1}")
    A(f"s_mov_b32 exec_lo, 0x00010001\ns_mov_b32 exec_hi, 1\nds_write_b32 v43, v{G0} offset:64\ns_mov_b64 exec, -1\ns_waitcnt lgkmcnt(0)")
    stamp(7)
    A("s_barrier")
    def g2(p):
        for r in range(4):
            A(f"s_add_u32 {sT0}, {sYG}, {8*4096*r}\nbuffer_load_dwordx4 v[{G0+4*r}:{G0+4*r+3}], {vYG}, {WS_}, {sT0} offen {p}")
    poll("L_p2", g2, [f"v{G0+4*r+3}" for r in range(4)], loc=True)
    if stamps: A("s_memrealtime s[42:43]")
    for k in range(3): A(f"v_add_f32 v{G0+k}, v{G0+k}, v{G0+4+k}\nv_add_f32 v{G0+8+k}, v{G0+8+k}, v{G0+12+k}")
    for k in range(3): A(f"v_add_f32 v{G0+k}, v{G0+k}, v{G0+8+k}")
    def red_hi(b):
        for k in range(3): A(f"v_add_f32_dpp v{b+k}, v{b+k}, v{b+k} row_ror:8 {DPP}")
        allred_top("v_add_f32", [f"v{b+k}" for k in range(3)], [f"v{b+4+k}" for k in range(3)])
    red_hi(G0)
    A(f"s_cmp_eq_u32 {sS}, {sX}\ns_cbranch_scc1 L_red")
    A(f"s_mov_b64 exec, 0xff\nbuffer_store_dwordx4 v[{G0}:{G0+3}], v7, {WS_}, {sH3S} offen {p3s}\ns_mov_b64 exec, -1\ns_branch L_done")
    A("L_red:")
    BUF = [G0 + 16 + 4*k for k in range(np3)]
    for b in BUF:
        for k in range(3): A(f"v_mov_b32 v{b+k}, v{G0+k}")
    A(f"v_cmp_ne_u32 vcc, {sX}, {vA}\ns_mov_b32 {sT2}, {spin}\ns_mov_b64 exec, vcc")
    def l3(k): A(f"buffer_load_dwordx4 v[{BUF[k]}:{BUF[k]+3}], v7, {WS_}, {sH3G} offen {p3l}")
    for k in range(np3-1):
        l3(k); A(f"s_sleep {s3}")
    A("L_p3:")
    for k in range(np3):
        l3((k + np3 - 1) % np3)
        A(f"s_waitcnt vmcnt({np3-1})\nv_cmp_ne_u32 vcc, {sTAG}, v{BUF[k]+3}\ns_cbranch_vccz L_p3d{k}")
    A(f"s_sub_u32 {sT2}, {sT2}, 1\ns_cbranch_scc0 L_p3")
    for k in reversed(range(np3)):
        A(f"L_p3d{k}:\ns_mov_b64 exec, -1")
        for e in range(3): A(f"v_add_f32_dpp v{G1+e}, v{BUF[k]+e}, v{BUF[k]+e} row_ror:8 {DPP}")
        if k: A("s_branch L_p3e")
    A("L_p3e:")
    if stamps: A("s_memrealtime s[48:49]")
    allred_top("v_add_f32", [f"v{G1+k}" for k in range(3)], [f"v{G1+4+k}" for k in range(3)])
    for e in range(3): A(f"v_add_f32 v{G1+e}, v{G1+e}, v{XV+e}")
    for e in range(3): A(f"v_cvt_pk_bf16_f32 v{G1+e}, v{G1+e}, 0")
    A("s_mov_b64 exec, 0xff")
    A(f"buffer_store_short v{G1}, v{vOUT}, {X_}, 0 offen\nbuffer_store_short v{G1+1}, v{vOUT}, {X_}, 0 offen offset:2\nbuffer_store_short v{G1+2}, v{vOUT+1}, {X_}, 0 offen offset:4")
    A(f"buffer_store_dword v41, v{vOUT+2}, {WS_}, 0 offen")
    A("s_mov_b64 exec, -1")
    A("L_done:")
    if diag is not None:
        wave, st, mult = diag
        stamp(8)
        A(f"s_cmp_lg_u32 s2, 0\ns_cbranch_scc1 L_end\ns_cmp_lg_u32 {sW}, {wave}\ns_cbranch_scc1 L_end")
        A(f"s_waitcnt lgkmcnt(0)\ns_sub_u32 {sT0}, s{sST+2*st}, s{sST}\ns_mul_i32 {sT0}, {sT0}, {mult}\ns_add_u32 {sT0}, {sT0}, 30000")
        A(f"s_min_u32 {sT0}, {sT0}, 200000")
        A(f"L_dg:\ns_memrealtime s[72:73]\ns_waitcnt lgkmcnt(0)\ns_sub_u32 {sT1}, s72, s{sST}\ns_cmp_lt_u32 {sT1}, {sT0}\ns_cbranch_scc1 L_dg")
    if stamps:
        stamp(8)
        A(f"s_mul_i32 {sT0}, s2, 5\ns_add_u32 {sT0}, {sT0}, {sW}\ns_lshl_b32 {sT0}, {sT0}, 6\ns_add_u32 {sT0}, {sT0}, {WS_ST}")
        A(f"s_getreg_b32 {sT1}, hwreg(HW_REG_XCC_ID)")
        A("s_waitcnt lgkmcnt(0)\nv_mov_b32 v4, 0")
        for i in range(9): A(f"v_writelane_b32 v4, s{sST+2*i}, {i}")
        A(f"v_writelane_b32 v4, s42, 9\nv_writelane_b32 v4, s48, 10\nv_writelane_b32 v4, s50, 11\nv_writelane_b32 v4, s47, 12")
        A(f"v_writelane_b32 v4, {sT1}, 15")
        A(f"v_lshlrev_b32 v5, 2, {vLANE}\ns_mov_b64 exec, 0xffff")
        A(f"buffer_store_dword v4, v5, {WS_}, {sT0} offen {'sc1' if diag2 else ''}")
    if diag3:
        A(f"s_mov_b64 exec, -1\ns_cmp_lg_u32 {sW}, 0\ns_cbranch_scc1 L_end\ns_lshl_b32 {sT0}, s2, 8\ns_add_u32 {sT0}, {sT0}, {WS_ST+0x40000}")
        A(f"buffer_store_dword v199, v5, {WS_}, {sT0} offen sc1\ns_cmp_lg_u32 s2, 0\ns_cbranch_scc1 L_end")
        A(f"L_dh3:\ns_memrealtime s[72:73]\ns_waitcnt lgkmcnt(0)\ns_sub_u32 {sT1}, s72, s{sST}\ns_cmp_lt_u32 {sT1}, 20000\ns_cbranch_scc1 L_dh3")
        A(f"v_mov_b32 v8, 0\ns_mov_b32 {sT0}, {WS_ST+0x40000}\ns_mov_b32 {sT1}, 256\nL_dl3:\nbuffer_load_dword v9, v5, {WS_}, {sT0} offen sc1\ns_waitcnt vmcnt(0)")
        A(f"v_subrev_u32 v9, s{sST}, v9\nv_add_u32 v8, v8, v9\ns_add_u32 {sT0}, {sT0}, 256\ns_sub_u32 {sT1}, {sT1}, 1\ns_cmp_lg_u32 {sT1}, 0\ns_cbranch_scc1 L_dl3")
        A(f"v_add_u32 v10, 4, v5\nds_bpermute_b32 v9, v10, v8\ns_waitcnt lgkmcnt(0)\nv_sub_u32 v9, v9, v8\nv_mul_u32_u24 v9, 10, v9\nv_lshrrev_b32 v9, 8, v9")
        A(f"v_lshlrev_b32 v10, 1, v5\nds_bpermute_b32 v11, v10, v9\nv_add_u32 v10, 4, v10\nds_bpermute_b32 v12, v10, v9\ns_waitcnt lgkmcnt(0)")
        A(f"v_min_u32 v11, 9999, v11\nv_min_u32 v12, 9999, v12\nv_mul_u32_u24 v11, 10000, v11\nv_add_u32 v11, v11, v12")
        srd(TA_, pDBG, 64)
        A(f"buffer_store_dword v11, v5, {TA_}, 0 offen")
    if diag2:
        role, st, op, role0, st0, op0, mult = diag2
        A(f"s_mov_b64 exec, -1\ns_cmp_lg_u32 s2, 0\ns_cbranch_scc1 L_end\ns_cmp_lg_u32 {sW}, 4\ns_cbranch_scc1 L_end")
        A(f"L_dh:\ns_memrealtime s[72:73]\ns_waitcnt lgkmcnt(0)\ns_sub_u32 {sT1}, s72, s{sST}\ns_cmp_lt_u32 {sT1}, 20000\ns_cbranch_scc1 L_dh")
        A(f"v_mul_u32_u24 v5, 320, {vLANE}")
        for k in range(4):
            A(f"s_mov_b32 {sT0}, {WS_ST + 64*320*k}\nbuffer_load_dword v{8+k}, v5, {WS_}, {sT0} offen offset:{64*role0+4*st0} sc1\nbuffer_load_dword v{12+k}, v5, {WS_}, {sT0} offen offset:{64*role+4*st} sc1")
        A("s_waitcnt vmcnt(0)")
        for k in range(8): A(f"v_subrev_u32 v{8+k}, s{sST}, v{8+k}")
        vop = {"max": "v_max_i32", "min": "v_min_i32", "mean": "v_add_u32"}[op]; vop0 = {"max": "v_max_i32", "min": "v_min_i32", "mean": "v_add_u32"}[op0]
        for k in range(1, 4): A(f"{vop0} v8, v8, v{8+k}\n{vop} v12, v12, v{12+k}")
        allred_lo(vop0, ["v8"]); allred_top(vop0, ["v8"], ["v9"])
        allred_lo(vop, ["v12"]); allred_top(vop, ["v12"], ["v13"])
        A(f"v_readfirstlane_b32 {sT0}, v12\nv_readfirstlane_b32 {sT1}, v8\ns_mul_i32 {sT0}, {sT0}, {mult}\ns_mul_i32 {sT1}, {sT1}, {mult}")
        if op == "mean": A(f"s_ashr_i32 {sT0}, {sT0}, 8")
        if op0 == "mean": A(f"s_ashr_i32 {sT1}, {sT1}, 8")
        A(f"s_sub_u32 {sT0}, {sT0}, {sT1}\ns_add_u32 {sT0}, {sT0}, 30000\ns_min_u32 {sT0}, {sT0}, 200000")
        A(f"L_dg2:\ns_memrealtime s[72:73]\ns_waitcnt lgkmcnt(0)\ns_sub_u32 {sT1}, s72, s{sST}\ns_cmp_lt_u32 {sT1}, {sT0}\ns_cbranch_scc1 L_dg2")
    A("L_end:\ns_endpgm")
    A('.section .rodata,"a"\n.p2align 6')
    A(f".amdhsa_kernel {KN}")
    nv4 = (NV+3)//4*4
    A(f".amdhsa_next_free_vgpr {nv4}\n.amdhsa_next_free_sgpr 102\n.amdhsa_accum_offset {nv4}")
    A(".amdhsa_group_segment_fixed_size 0\n.amdhsa_kernarg_size 96\n.amdhsa_user_sgpr_count 2")
    A(".amdhsa_user_sgpr_kernarg_segment_ptr 1\n.amdhsa_system_sgpr_workgroup_id_x 1")
    A(".amdhsa_float_denorm_mode_32 3\n.end_amdhsa_kernel")
    return A.finish()

if __name__ == "__main__":
    kw = eval("dict(" + (sys.argv[2] if len(sys.argv) > 2 else "") + ")")
    open(sys.argv[1], "w").write(gen(**kw))
```

```python
import sys, os
sys.path.insert(0, os.path.dirname(os.path.abspath(__file__)))
from asmlib import Asm
KN = "parallel_sum__mha_block_cached__glu_gated_reglu__decode_kernel"
HEADER = open("parallel_sum__mha_block_cached__glu_gated_reglu__decode.s.ref").read().split("; Override launch")[0]

HB = 32768*384
TB = 32*HB
WS_QF = 0x4000
WS_EP, WS_LS, WS_H3, WS_XX, WS_PR, WS_QS, WS_H1, WS_ST, WS_H2, WS_SIZE = 0, 0x8000, 0x10000, 0x20000, 0x40000, 0x80000, 0x100000, 0x200000, 0x280000, 0x400000
OOB = 0x40000000
SPIN = 1 << 20

def gen(NSEG=8, G=6, F=5, FH=6, RB=8, pace=6, deep=0, per=8, bs=2, fb=22, fbo=26, pre0=2, pre1=6, trig=16, op='sc1', nre=8, cpf=1, wpf='hg', wpp='sc1', early=1, tlb=2, skip='', xmap=1, xd=(6,5,3,1,-1,-3,-5,-6), xp=4, PI=(6,7,5,4,3,2,1,0), xs=0, np3=1, s3=6, dfirst=1, ab=0, psleep=4,
        spin=SPIN, local=1, lp="nt", pf=None, pfw="yh", pt='sc1', qp='', xl=None, p3s='sc1', p3l='sc1', sched=(4,3,3,3,0,0), ptpos=6, own=1, lsb=17, stamps=False, diag=None, diag2=None, stA=3, stB=29, diag3=0):
    A = Asm()
    NG = 32//NSEG; GS = 8*NSEG; BPS = 16//NSEG; LGS = GS.bit_length()-1
    PAIR = NSEG == 8
    TSTR = GS*4*3072
    assert G < RB and 24 % RB == 0 and NSEG == 8 and G == 6
    if diag2 or diag3: stamps = True
    timed = stamps or diag is not None
    L_OP = 0; L_W = 8192; L_YP = L_W + 15360; L_U = L_YP + 12800 + 64; L_QP = L_U + 128; L_QB = L_QP + 6400; L_ML = L_QB + 384*NSEG
    L_CT = L_ML + 64; L_SC = L_CT + 64; L_SIZE = L_SC + 16384 + 256
    assert L_SC < 65536
    sW, sHQ, sS, sG, sMEM = "s3", "s4", "s5", "s6", "s7"
    KV_, WS_, TA_, TB_, TC_, X_ = "s[8:11]", "s[16:19]", "s[20:23]", "s[24:27]", "s[28:31]", "s[32:35]"
    mB1, mB0 = "s[12:13]", "s[14:15]"
    pX, pK, pV, pWQ, pWO, pWG, pWU, pWD, pOUT, pDBG, pWS = 36, 38, 40, 42, 44, 48, 50, 52, 54, 56, 58
    sOFF, sOFF0, sIB, sBLK, sLIN, sX, sC, sT0, sT1, sT2, sT3, sOWN = [f"s{r}" for r in range(60, 72)]
    sTAG = "s46"
    sST = 84
    vLANE, vKV, vA, vB = "v0", "v1", "v2", "v3"
    ACC, Q = 8, 32
    T = 44
    RING = 56
    PB = RING + 48
    NV = PB + 96
    t0, t1, t2, t3 = f"v{T}", f"v{T+1}", f"v{T+2}", f"v{T+3}"
    def stamp(i):
        if timed: A(f"s_memrealtime s[{sST+2*i}:{sST+2*i+1}]")
    def srd_hi(name, size):
        b = int(name[2:name.index(":")]); A(f"s_mov_b32 s{b+2}, {size}\ns_mov_b32 s{b+3}, 0x20000")
    def srd_lo(name, ptr):
        b = int(name[2:name.index(":")]); A(f"s_mov_b64 s[{b}:{b+1}], s[{ptr}:{ptr+1}]")
    def srd(name, ptr, size): srd_lo(name, ptr); srd_hi(name, size)
    DPP = "row_mask:0xf bank_mask:0xf"
    PATS = ("quad_perm:[1,0,3,2]", "quad_perm:[2,3,0,1]", "row_half_mirror", "row_mirror")
    def allred_lo(op, vs, n=4):
        for pat in PATS[:n]:
            for v in vs: A(f"{op}_dpp {v}, {v}, {v} {pat} {DPP}")
    def allred_top(op, vs, ts):
        for sw in ("v_permlane16_swap_b32", "v_permlane32_swap_b32"):
            for v, t in zip(vs, ts): A(f"v_mov_b32 {t}, {v}")
            for v, t in zip(vs, ts): A(f"{sw} {t}, {v}")
            for v, t in zip(vs, ts): A(f"{op} {v}, {v}, {t}")
    def redscat(base, n):
        for g in range(n):
            for e in range(4): A(f"v_permlane32_swap_b32 v{base+8*g+e}, v{base+8*g+e+4}")
        for g in range(n):
            for e in range(4): A(f"v_add_f32 v{base+8*g+e}, v{base+8*g+e}, v{base+8*g+e+4}")
        for g in range(n):
            for e in range(2): A(f"v_permlane16_swap_b32 v{base+8*g+e}, v{base+8*g+e+2}")
        for g in range(n):
            for e in range(2): A(f"v_add_f32 v{base+8*g+e}, v{base+8*g+e}, v{base+8*g+e+2}")
        for g in range(n):
            A(f"v_add_f32_dpp v{base+8*g}, v{base+8*g}, v{base+8*g} row_ror:8 row_mask:0xf bank_mask:0x3")
        for g in range(n):
            A(f"v_add_f32_dpp v{base+8*g}, v{base+8*g+1}, v{base+8*g+1} row_ror:8 row_mask:0xf bank_mask:0xc")
    def redscat_lo(bases):
        for S in bases:
            for e in range(4): A(f"v_add_f32_dpp v{S+e}, v{S+e}, v{S+e} row_half_mirror row_mask:0xf bank_mask:0x5")
        for S in bases:
            for e in range(4): A(f"v_add_f32_dpp v{S+e}, v{S+e+4}, v{S+e+4} row_half_mirror row_mask:0xf bank_mask:0xa")
        for S in bases:
            for e in range(4): A(f"v_add_f32_dpp v{S+e}, v{S+e}, v{S+e} quad_perm:[2,3,0,1] {DPP}")
        for S in bases:
            for e in range(2): A(f"v_cndmask_b32 v{S+e}, v{S+e}, v{S+e+2}, {mB1}")
        for S in bases:
            for e in range(2): A(f"v_add_f32_dpp v{S+e}, v{S+e}, v{S+e} quad_perm:[1,0,3,2] {DPP}")
        for S in bases: A(f"v_cndmask_b32 v{S}, v{S}, v{S+1}, {mB0}")
    def axpy(acc, data, n, pl, ph):
        for i in range(n):
            A(f"v_dot2c_f32_bf16 v{acc+2*i}, v{data+i}, {pl}\nv_dot2c_f32_bf16 v{acc+2*i+1}, v{data+i}, {ph}")
    def ld(reg, j): A(f"buffer_load_dwordx4 v[{reg}:{reg+3}], {vKV}, {KV_}, {sOFF} offen offset:{128*j} nt")
    uid = [0]
    PILUT = sum(p << (4*i) for i, p in enumerate(PI))
    assert PI[0] != 7 and sorted(PI) == list(range(8))
    def next_block(last):
        uid[0] += 1; u = uid[0]
        A(f"s_add_u32 {sIB}, {sIB}, 1\ns_and_b32 {sT0}, {sIB}, {BPS-1}\ns_cbranch_scc1 L_nb{u}")
        if not last:
            A(f"s_add_u32 {sOFF}, {sOFF}, {(NG-1)*HB}")
            A(f"s_cmp_lg_u32 {sIB}, 16\ns_cbranch_scc1 L_nb{u}")
            A(f"s_mov_b64 s[8:9], s[{pV}:{pV+1}]\ns_add_u32 {sOFF}, {sOFF0}, {PI[0]*NG*HB}")
        else:
            A(f"s_lshl_b32 {sT0}, {sIB}, 1\ns_lshr_b32 {sT0}, {hex(PILUT)}, {sT0}\ns_and_b32 {sT0}, {sT0}, 7")
            A(f"s_mul_i32 {sOFF}, {sT0}, {NG*HB}\ns_add_u32 {sOFF}, {sOFF}, {sOFF0}")
        A(f"L_nb{u}:")
    def lev(n, f):
        fr = f - int(f)
        return int(f) + (1 if int((n+1)*fr + 1e-9) != int(n*fr + 1e-9) else 0)
    cps = list(range(0, 24, per)) if fb else []
    assert all(c + G + 1 <= 23 for c in cps) and per > G
    PR_, sTHR, vPC, vPO, vPL, vPS = TC_, "s72", "v52", "v53", "v54", "v55"
    def slot(n, last=False):
        uid[0] += 1; u = uid[0]
        fi, fh = lev(n, F), lev(n, FH)
        assert fi <= fh <= G
        def cnt(x): return x - 1 + 2*sum(1 for c in cps if 0 < n - c <= x)
        m = n + G
        if m % 3 == 0:
            A(f"s_add_u32 {sOFF}, {sOFF}, {TSTR}")
            if m == 24: next_block(last)
        if fi < fh: A(f"s_cbranch_vccnz L_dp{u}\ns_waitcnt vmcnt({cnt(fi)})\nL_dp{u}:")
        A(f"s_waitcnt vmcnt({cnt(fh)})")
        ld(RING + 4*(m % RB), m % 3)
        if n - G - 1 in cps:
            if xd:
                A(f"v_readlane_b32 {sT1}, {vPO}, 32\ns_sub_u32 {sT1}, {sT1}, {sTAG}\ns_cmp_lt_u32 {sT1}, 33\ns_cselect_b32 {sTHR}, {sT1}, {sTHR}")
            A(f"v_sub_u32 {vPO}, {vPO}, {vPC}\nv_cmp_gt_u32 vcc, 64, {vPO}\ns_bcnt1_i32_b32 {sT0}, vcc_lo")
            A(f"s_cmp_gt_u32 {sT0}, {sTHR}\ns_cselect_b64 vcc, -1, 0")
            if stamps: A(f"s_and_b32 {sT0}, vcc_lo, 1\ns_add_u32 s47, s47, {sT0}")
            if last and deep: A(f"s_cmp_ge_u32 {sBLK}, {32-deep}\ns_cselect_b64 vcc, -1, vcc")
        if n in cps:
            A(f"v_add_u32 {vPC}, 1, {vPC}\nbuffer_store_dword {vPC}, {vPS}, {PR_}, 0 offen\nbuffer_load_dword {vPO}, {vPL}, {PR_}, 0 offen nt")
    def qk4(acc, data, j):
        for e in range(4):
            if j == 0 and e == 0: A(f"v_dot2_f32_bf16 v{acc}, v{data}, v{Q}, 0")
            else: A(f"v_dot2_f32_bf16 v{acc}, v{data+e}, v{Q+4*j+e}, v{acc}")

    A(HEADER.rstrip())
    A(f"; @launch grid=(256,1,1) block=(320,1,1) lds={L_SIZE}")
    A('.amdgcn_target "amdgcn-amd-amdhsa--gfx950"\n.text')
    A(f".globl {KN}\n.p2align 8\n.type {KN},@function\n{KN}:")
    A("s_cmp_ge_u32 s2, 256\ns_cbranch_scc1 L_end")
    A("s_load_dwordx16 s[36:51], s[0:1], 0\ns_load_dwordx8 s[52:59], s[0:1], 64")
    stamp(0)
    A(f"v_lshrrev_b32 v1, 6, v0\nv_and_b32 {vLANE}, 63, v0\nv_readfirstlane_b32 {sW}, v1\ns_setprio 3")
    A(f"v_mov_b32 v8, 0\nds_write_b32 v8, v8 offset:{L_CT}")
    order = []
    for v in range(8):
        if v not in order: order += [v, v ^ xmap] if (v & 1) == 0 or (xmap & 1) == 0 else [v ^ xmap, v]
    lut = sum(order.index(v) << (4*v) for v in range(8))
    A(f"s_and_b32 {sX}, s2, 7\ns_lshl_b32 {sX}, {sX}, 2\ns_lshr_b32 {sX}, {hex(lut)}, {sX}\ns_and_b32 {sX}, {sX}, 7")
    A(f"s_lshr_b32 {sC}, s2, 3\ns_lshl_b32 {sT0}, {sX}, 5\ns_add_u32 {sLIN}, {sT0}, {sC}")
    A(f"s_lshr_b32 {sG}, {sLIN}, {LGS}\ns_and_b32 {sMEM}, {sLIN}, {GS-1}\ns_and_b32 {sS}, {sMEM}, 7")
    A(f"s_lshr_b32 {sT0}, {sMEM}, 3\ns_mul_i32 {sHQ}, {sT0}, {NG}\ns_add_u32 {sHQ}, {sHQ}, {sG}")
    A(f"s_sub_u32 {sW}, {sW}, 1\ns_cselect_b32 {sW}, 4, {sW}")
    A(f"v_lshrrev_b32 {vA}, 3, {vLANE}\nv_and_b32 {vB}, 7, {vLANE}")
    A(f"v_lshlrev_b32 v7, 4, {vB}")
    A(f"v_mov_b32 v4, 384\nv_mad_u32_u24 {vKV}, {vA}, v4, v7")
    A(f"v_mov_b32 v4, 12288\nv_mad_u32_u24 v4, {vA}, v4, v7")
    A(f"v_mov_b32 v5, 3072\nv_mad_u32_u24 v5, {vA}, v5, v7")
    A(f"v_mov_b32 v6, {OOB}\nv_cmp_gt_u32 vcc, 6, {vB}\nv_cndmask_b32 v5, v6, v5, vcc")
    A(f"v_lshlrev_b32 v6, 1, {vA}\nv_lshlrev_b32 v7, 4, {vLANE}")
    A(f"s_mul_i32 {sT0}, {sS}, 80\ns_lshl_b32 {sT1}, {sW}, 4\ns_add_u32 {sT0}, {sT0}, {sT1}")
    A(f"s_mul_i32 {sT1}, {sT0}, 12288\ns_mul_i32 {sT2}, {sHQ}, 384\ns_add_u32 {sT1}, {sT1}, {sT2}")
    A(f"s_mul_i32 {sT2}, {sT0}, 3072\ns_lshr_b32 {sT3}, {sLIN}, 3\ns_mul_i32 {sT3}, {sT3}, 96\ns_add_u32 {sT2}, {sT2}, {sT3}")
    A(f"s_lshl_b32 {sT0}, {sT0}, 1")
    if cpf == 2:
        KNs = KN
        A(f"s_cmp_lg_u32 {sW}, 4\ns_cbranch_scc1 L_nocp\ns_getpc_b64 s[74:75]\nL_pc2:\ns_lshl_b32 s76, {sC}, 10\nv_add_u32 v{PB}, s76, v7\nv_min_u32 v{PB}, L_end-{KN}-16, v{PB}")
        A(f"s_sub_u32 s74, s74, L_pc2-{KN}\ns_subb_u32 s75, s75, 0\nv_mov_b32 v{PB+1}, s75\nv_add_co_u32 v{PB}, vcc, s74, v{PB}\nv_addc_co_u32 v{PB+1}, vcc, 0, v{PB+1}, vcc")
        A(f"global_load_dword v{PB+2}, v[{PB}:{PB+1}], off\nL_nocp:")
    srd_hi(X_, 1280); srd_hi(TA_, 640*12288); srd_hi(TB_, 640*3072); srd_hi(TC_, 640*3072); srd_hi(WS_, WS_SIZE); srd_hi(KV_, TB)
    A("s_waitcnt lgkmcnt(0)")
    srd_lo(X_, pX)
    def code_touch(lab, reg):
        A(f"s_getpc_b64 s[74:75]\n{lab}:\ns_lshl_b32 s76, {sC}, 10\nv_add_u32 v{reg}, s76, v7\nv_min_u32 v{reg}, L_end-{KN}-16, v{reg}")
        A(f"s_sub_u32 s74, s74, {lab}-{KN}\ns_subb_u32 s75, s75, 0\nv_mov_b32 v{reg+1}, s75\nv_add_co_u32 v{reg}, vcc, s74, v{reg}\nv_addc_co_u32 v{reg+1}, vcc, 0, v{reg+1}, vcc")
        A(f"global_load_dword v{reg+2}, v[{reg}:{reg+1}], off")
    def page_touch():
        A(f"s_bfe_u32 s76, {sC}, {(3<<16)|1}\ns_lshl_b32 s77, s76, 2\ns_add_u32 s77, s77, {sG}\ns_mul_i32 s77, s77, {HB}")
        A(f"s_bitcmp1_b32 {sC}, 4\ns_cselect_b64 s[74:75], s[{pV}:{pV+1}], s[{pK}:{pK+1}]\ns_cselect_b64 s[80:81], s[{pOUT}:{pOUT+1}], s[{pWO}:{pWO+1}]")
        A(f"s_cselect_b32 s76, 0, s76\ns_and_b32 s76, s76, 3\ns_lshl_b32 s76, s76, 21\ns_add_u32 s80, s80, s76\ns_addc_u32 s81, s81, 0")
        A(f"s_add_u32 s74, s74, s77\ns_addc_u32 s75, s75, 0\ns_bitcmp1_b32 {sC}, 0\ns_cbranch_scc1 L_pt1")
        for k in range(4):
            A(f"s_load_dword s{76+k}, s[74:75], 0x0")
            if k < 3: A(f"s_add_u32 s74, s74, {1<<21}\ns_addc_u32 s75, s75, 0")
        A("s_branch L_pt2\nL_pt1:")
        for k, d in enumerate((4 << 21, 1 << 21, (1 << 21) - 4)):
            A(f"s_add_u32 s74, s74, {d}\ns_addc_u32 s75, s75, 0\ns_load_dword s{76+k}, s[74:75], 0x0")
        A("s_load_dword s79, s[80:81], 0x0\nL_pt2:")
    def touches():
        if cpf == 1: code_touch("L_pc1", PB+88)
        if wpf:
            for ch, base, sh, n in (("h", WS_H1, 11, 2), ("y", WS_H2, 12, 4), ("g", WS_QS + 1024, 11, 1), ("q", WS_QS, 11, 1)):
                if ch in wpf:
                    A(f"s_lshl_b32 {sT0}, {sLIN}, {sh}\ns_add_u32 {sT0}, {sT0}, {base}")
                    for i in range(n): A(f"buffer_load_dword v{PB+92}, v7, {WS_}, {sT0} offen offset:{1024*i}")
            small = [(WS_LS, 7, 0), (WS_XX, 8, 0), (WS_XX, 8, 128), (WS_H3, 7, 0), (WS_QF, 6, 0)]
            sel = [e for e, ch in zip(small, "lxx3f") if ch in wpf]
            if sel or "p" in wpf:
                A(f"v_mov_b32 v{PB+93}, {OOB}")
                for i, (base, sh, off) in enumerate(sel):
                    A(f"s_lshl_b32 {sT0}, {sLIN}, {sh}\ns_add_u32 {sT0}, {sT0}, {base+off}\nv_writelane_b32 v{PB+93}, {sT0}, {i}")
                if "p" in wpf:
                    A(f"s_lshr_b32 {sT0}, {sLIN}, 3\ns_mul_i32 {sT0}, {sT0}, 4224\ns_add_u32 {sT0}, {sT0}, {WS_PR}\nv_writelane_b32 v{PB+93}, {sT0}, 8")
                    A(f"s_add_u32 {sT0}, {sT0}, 128\nv_writelane_b32 v{PB+93}, {sT0}, 9\ns_mul_i32 {sT0}, {sX}, 4224\ns_add_u32 {sT0}, {sT0}, {WS_PR+0x30000}\nv_writelane_b32 v{PB+93}, {sT0}, 10")
                A(f"buffer_load_dword v{PB+92}, v{PB+93}, {WS_}, 0 offen {wpp}")
    XR, WD, WA = RING + 40, RING, ACC
    A(f"buffer_load_dwordx4 v[{XR}:{XR+3}], v7, {X_}, 0 offen")
    A(f"buffer_load_dwordx4 v[{XR+4}:{XR+7}], v7, {X_}, 0 offen offset:1024")
    A(f"buffer_load_ushort v{T+10}, v6, {X_}, {sT0} offen")
    A(f"buffer_load_ushort v{T+11}, v6, {X_}, {sT0} offen offset:16")
    srd_lo(TA_, pWQ); srd_lo(TB_, pWG); srd_lo(TC_, pWU)
    A(f"s_load_dword {sTAG}, s[{pWS}:{pWS+1}], {WS_EP}")
    A("s_barrier")
    for t in range(2):
        for j in range(3):
            A(f"buffer_load_dwordx4 v[{WD+20*t+4*j}:{WD+20*t+4*j+3}], v4, {TA_}, {sT1} offen offset:{128*j} nt")
        A(f"buffer_load_dwordx4 v[{WD+20*t+12}:{WD+20*t+15}], v5, {TB_}, {sT2} offen nt")
        A(f"buffer_load_dwordx4 v[{WD+20*t+16}:{WD+20*t+19}], v5, {TC_}, {sT2} offen nt")
        if t == 0: A(f"s_add_u32 {sT1}, {sT1}, {8*12288}\ns_add_u32 {sT2}, {sT2}, {8*3072}")
    srd_lo(KV_, pK); srd_lo(WS_, pWS)
    A(f"s_lshl_b32 {sT0}, {sMEM}, 2\ns_add_u32 {sT0}, {sT0}, {sW}\ns_mul_i32 {sT0}, {sT0}, 3072")
    A(f"s_mul_i32 {sOFF0}, {sG}, {HB}\ns_add_u32 {sOFF0}, {sOFF0}, {sT0}\ns_mov_b32 {sOFF}, {sOFF0}")
    A(f"s_mov_b32 s12, 0xcccccccc\ns_mov_b32 s13, 0xcccccccc\ns_mov_b32 s14, 0xaaaaaaaa\ns_mov_b32 s15, 0xaaaaaaaa")
    A(f"s_and_b32 {sOWN}, {sX}, 1\ns_xor_b32 {sOWN}, {sOWN}, {own}")
    if early:
        A(f"s_cmp_lg_u32 {sW}, {4 if early == 1 else 3}\ns_cbranch_scc1 L_not"); touches()
        if tlb == 1: page_touch()
        A("L_not:")
    A(f"s_cmp_eq_u32 {sW}, 4\ns_cbranch_scc1 L_ln\ns_setprio 1\nL_ln:\ns_waitcnt vmcnt(10) lgkmcnt(0)")
    A(f"s_mul_i32 {sTAG}, {sTAG}, 1664525\ns_add_u32 {sTAG}, {sTAG}, 1013904223")
    XF = WA
    for i in range(8):
        A(f"v_lshlrev_b32 v{XF+2*i}, 16, v{XR+i}\nv_and_b32 v{XF+2*i+1}, 0xffff0000, v{XR+i}")
    l0, l1, l2, l3 = "v24", "v25", "v26", "v27"
    A(f"v_add_f32 {l0}, v{XF}, v{XF+1}\nv_add_f32 {l1}, v{XF+2}, v{XF+3}")
    for i in range(4, 16, 2): A(f"v_add_f32 {l0}, {l0}, v{XF+i}\nv_add_f32 {l1}, {l1}, v{XF+i+1}")
    A(f"v_add_f32 {l0}, {l0}, {l1}")
    allred_lo("v_add_f32", [l0]); allred_top("v_add_f32", [l0], [l1])
    A(f"v_mul_f32 {l0}, 0x3acccccd, {l0}")
    for i in range(16): A(f"v_sub_f32 v{XF+i}, v{XF+i}, {l0}")
    A(f"v_mul_f32 {l1}, v{XF}, v{XF}\nv_mul_f32 {l2}, v{XF+8}, v{XF+8}")
    for i in range(1, 8): A(f"v_fmac_f32 {l1}, v{XF+i}, v{XF+i}\nv_fmac_f32 {l2}, v{XF+8+i}, v{XF+8+i}")
    A(f"v_cmp_gt_u32 vcc, 16, {vLANE}\nv_cndmask_b32 {l2}, 0, {l2}, vcc\nv_add_f32 {l1}, {l1}, {l2}")
    allred_lo("v_add_f32", [l1]); allred_top("v_add_f32", [l1], [l2])
    A(f"v_mul_f32 {l1}, 0x3acccccd, {l1}")
    A(f"v_readfirstlane_b32 {sT0}, {l0}\nv_readfirstlane_b32 {sT1}, {l1}\ns_mul_i32 {sT0}, {sT0}, 0x9E3779B1\ns_add_u32 {sT0}, {sT0}, {sT1}")
    A(f"s_lshl_b32 {sT0}, {sT0}, 2\ns_add_u32 {sTAG}, {sTAG}, {sT0}")
    A(f"v_cvt_pk_bf16_f32 {l0}, 0, {l0}\nv_cvt_pk_bf16_f32 {l1}, 0, {l1}")
    A(f"v_add_f32 {l1}, 0x3727c5ac, {l1}\nv_cvt_pk_bf16_f32 {l1}, 0, {l1}\nv_sqrt_f32 {l1}, {l1}")
    A(f"v_cvt_pk_bf16_f32 {l1}, 0, {l1}\nv_rcp_f32 {l2}, {l1}")
    for t in range(2):
        xr = f"v{T+10+t}"
        A(f"v_lshlrev_b32 {xr}, 16, {xr}\nv_sub_f32 {xr}, {xr}, {l0}\nv_cvt_pk_bf16_f32 {xr}, 0, {xr}")
        A(f"v_mul_f32 {l3}, {xr}, {l2}\nv_fma_f32 {xr}, -{l3}, {l1}, {xr}\nv_fma_f32 {xr}, {xr}, {l2}, {l3}")
        A(f"v_cvt_pk_bf16_f32 v{T+6+2*t}, {xr}, 0\nv_cvt_pk_bf16_f32 v{T+7+2*t}, 0, {xr}")
    for i in range(40): A(f"v_mov_b32 v{WA+i}, 0")
    stamp(1)
    sD = [f"s{r}" for r in range(74, 80)]; sL = ["s80", "s81", "s82"]
    def dma_setup():
        srd(TA_, pWO, 6144*1280); srd(TB_, pWD, 1536*1280)
        A(f"s_lshl_b32 {sT2}, {sS}, 3\ns_lshr_b32 {sT1}, {sC}, 3\ns_lshl_b32 {sT1}, {sT1}, 1\ns_add_u32 {sT2}, {sT2}, {sT1}")
        A(f"s_mul_i32 {sT1}, {sG}, 192\ns_add_u32 {sT2}, {sT2}, {sT1}")
        A(f"s_lshl_b32 {sT0}, {sW}, 1\ns_add_u32 {sT0}, {sT0}, {sOWN}\ns_lshl_b32 {sT0}, {sT0}, 2\ns_lshr_b32 {sT0}, {hex(PILUT)}, {sT0}\ns_and_b32 {sT0}, {sT0}, 7\ns_mul_i32 {sT0}, {sT0}, {NG*192}\ns_add_u32 {sT0}, {sT0}, {sT2}")
        A(f"s_mul_i32 {sL[0]}, {sT0}, 1280\ns_add_u32 {sL[1]}, {sL[0]}, {64*1280}\ns_add_u32 {sL[2]}, {sL[0]}, {128*1280}")
        A(f"s_lshl_b32 {sT0}, {sW}, 6\ns_add_u32 {sT0}, {sT0}, {sT2}\ns_add_u32 {sT0}, {sT0}, {PI[7]*NG*192}\ns_mul_i32 {sD[2]}, {sT0}, 1280\ns_mul_i32 {sD[3]}, {sW}, 2560")
        A(f"s_mul_i32 {sT0}, {sLIN}, 7680\ns_lshl_b32 {sD[5]}, {sW}, 11\ns_add_u32 {sD[4]}, {sT0}, {sD[5]}")
    def w(paced):
        if paced: A(f"s_waitcnt vmcnt({pace-1})")
    def op_pb(n):
        def f(paced):
            if n and n % 3 == 0: A(f"s_add_u32 {sOFF}, {sOFF}, {TSTR}")
            w(paced); ld(PB + 4*n, n % 3)
        return f
    def op_wo(jj, i, off=0, base=7680):
        def f(paced):
            if i == 0: A(f"s_add_u32 m0, {sD[off+1]}, {L_W+base+2560*jj}")
            if i == 2: A("s_mov_b32 exec_hi, 0")
            w(paced); A(f"buffer_load_dwordx4 v7, {TA_}, {sD[off]} offen offset:{1024*i} nt lds")
            if i == 2: A(f"s_mov_b32 exec_hi, -1\ns_add_u32 {sD[off]}, {sD[off]}, {64*1280}")
        return f
    def op_wd(i):
        def f(paced):
            if i == 0: A(f"s_add_u32 m0, {sD[5]}, {L_W}")
            else: A(f"s_cmp_eq_u32 {sW}, 3\ns_cselect_b32 exec_hi, 0, -1")
            w(paced); A(f"buffer_load_dwordx4 v7, {TB_}, {sD[4]} offen offset:{1024*i} nt lds")
            if i: A("s_mov_b32 exec_hi, -1")
        return f
    def op_s4(paced):
        A(f"s_cmp_eq_u32 {sW}, 3\ns_cbranch_scc1 L_nos4")
        for i in range(3): op_wo(0, i, 2, 7680)(paced)
        A("L_nos4:")
    dma = [op_wd(0), op_wd(1), op_s4]
    pbs = [op_pb(n) for n in range(24)]
    ops = dma + pbs if dfirst else pbs + dma
    assert pre0 <= 2 or not dfirst
    dma_setup()
    A(f"s_waitcnt vmcnt(5)\ns_cmp_eq_u32 {sW}, 4\ns_cbranch_scc1 L_nopre0")
    for n in range(pre0): ops[n](False)
    A("L_nopre0:")
    axpy(WA, WD, 20, f"v{T+6}", f"v{T+7}")
    A(f"s_cmp_eq_u32 {sW}, 4\ns_cbranch_scc1 L_nopre1\ns_waitcnt vmcnt({pre0})")
    for n in range(pre0, pre1): ops[n](False)
    A("s_branch L_pre2\nL_nopre1:\ns_waitcnt vmcnt(0)\nL_pre2:")
    axpy(WA, WD+20, 20, f"v{T+8}", f"v{T+9}")
    redscat(WA, 5)
    A(f"s_mul_i32 {sT0}, {sW}, 1280\nv_lshl_add_u32 v4, {vLANE}, 2, {sT0}")
    for k in range(5): A(f"ds_write_b32 v4, v{WA+8*k} offset:{L_QP+256*k}")
    A(f"v_mov_b32 v5, 0\nv_mov_b32 v6, 1\ns_mov_b64 exec, 1\nds_add_u32 v5, v6 offset:{L_CT}\ns_mov_b64 exec, -1")
    stamp(2)
    if ab: A("s_barrier")
    A(f"s_cmp_eq_u32 {sW}, 4\ns_cbranch_scc1 L_svc")
    for n in range(pre1, len(ops)):
        ops[n](True)
        if n == trig: A(f"v_mov_b32 v6, 64\ns_mov_b64 exec, 1\nds_add_u32 v5, v6 offset:{L_CT}\ns_mov_b64 exec, -1")
    A(f"s_mov_b32 {sIB}, 1")
    for m in range(G):
        if m % 3 == 0: A(f"s_add_u32 {sOFF}, {sOFF}, {TSTR}")
        A(f"s_waitcnt vmcnt({pace-1})"); ld(RING + 4*m, m % 3)
    vQA, vSA = "v4", "v5"
    A(f"v_lshlrev_b32 {vQA}, 4, {vB}\nv_add_u32 {vQA}, {L_QB}, {vQA}")
    A(f"s_lshl_b32 {sT0}, {sW}, 12\ns_add_u32 {sT0}, {sT0}, {L_SC}\nv_lshl_add_u32 {vSA}, {vLANE}, 2, {sT0}")
    A(f"s_lshl_b32 {sT0}, {sX}, 2\ns_add_u32 {sT0}, {sT0}, {sW}\ns_mul_i32 {sT0}, {sT0}, 4224\ns_add_u32 {sT0}, {sT0}, {WS_PR}")
    A(f"s_add_u32 s28, s{pWS}, {sT0}\ns_addc_u32 s29, s{pWS+1}, 0\ns_mov_b32 s30, {132 if xd else 128}")
    A(f"v_lshlrev_b32 {vPL}, 2, {vLANE}\nv_mov_b32 {vPS}, 0x1000\nv_cmp_eq_u32 vcc, {sC}, {vLANE}\nv_cndmask_b32 {vPS}, {vPS}, {vPL}, vcc\nv_mov_b32 {vPC}, {sTAG}")
    A(f"s_getreg_b32 {sTHR}, hwreg(HW_REG_XCC_ID)\ns_bitcmp1_b32 {sTHR}, 0\ns_cselect_b32 {sTHR}, {fbo}, {fb}")
    A(f"s_add_u32 {sT0}, {sW}, {sOWN}\ns_cmp_eq_u32 {sT0}, 4\ns_cselect_b32 s22, 0, s22\ns_cselect_b32 {sL[0]}, 0, {sL[0]}\ns_cselect_b32 {sL[1]}, 0, {sL[1]}\ns_cselect_b32 {sL[2]}, 0, {sL[2]}")
    A(f"s_mov_b64 vcc, 0\ns_mov_b32 s47, 0")
    stamp(3)
    A("s_barrier")
    for j in range(3): A(f"ds_read_b128 v[{Q+4*j}:{Q+4*j+3}], {vQA} offset:{128*j}")
    A("s_waitcnt lgkmcnt(0)")
    stamp(4)
    SA, R, RT, S2 = ACC, ACC + 2, ACC + 6, ACC + 8
    def k_after_tile(t):
        A(f"v_add_f32_dpp v{R+(t&3)}, v{SA+(t&1)}, v{SA+(t&1)} row_half_mirror row_mask:0xf bank_mask:{'0xa' if t >= 4 else '0x5'}")
    def k_stage2(e): A(f"v_add_f32_dpp v{R+e}, v{R+e}, v{R+e} quad_perm:[2,3,0,1] {DPP}")
    def k_fin(which):
        if which == 0:
            k_after_tile(7); k_stage2(3)
            A(f"v_cndmask_b32 v{RT+1}, v{R+1}, v{R+3}, {mB1}")
        else:
            A(f"v_add_f32_dpp v{RT+1}, v{RT+1}, v{RT+1} quad_perm:[1,0,3,2] {DPP}\nv_cndmask_b32 v{RT}, v{RT}, v{RT+1}, {mB0}")
            A(f"ds_write_b32 {vSA}, v{RT}\nv_add_u32 {vSA}, 256, {vSA}")
    def k_body(first):
        for n in range(24):
            t, j = n//3, n % 3
            slot(n)
            if not first:
                if n < 2: k_fin(n)
                if n == 0: A("s_waitcnt lgkmcnt(0)")
                if n == bs: A("s_waitcnt lgkmcnt(0)\ns_barrier")
            else: qk4(S2 + t, PB + 4*n, j)
            if j == 0 and t >= 1: k_after_tile(t-1)
            if j == 1 and t >= 5: k_stage2(t-5)
            if n == 23: A(f"v_cndmask_b32 v{RT}, v{R}, v{R+2}, {mB1}")
            if n == 20: A(f"s_add_u32 {sBLK}, {sBLK}, 1\ns_and_b32 {sT0}, {sBLK}, {BPS-1}\ns_cselect_b32 {sT0}, 0, 384\nv_add_u32 {vQA}, {sT0}, {vQA}")
            if "c" not in skip: qk4(SA + (t & 1), RING + 4*(n % RB), j)
            if n == 23: A(f"v_add_f32_dpp v{RT}, v{RT}, v{RT} quad_perm:[1,0,3,2] {DPP}")
            if t == 7: A(f"ds_read_b128 v[{Q+4*j}:{Q+4*j+3}], {vQA} offset:{128*j}")
    A(f"s_mov_b32 {sBLK}, 1")
    k_body(True)
    redscat_lo([S2])
    A(f"ds_write_b32 {vSA}, v{S2}\nv_add_u32 {vSA}, 256, {vSA}")
    A("L_k:")
    k_body(False)
    def stab(t): A(f"s_cmp_lg_u32 {sBLK}, {stA}\ns_cbranch_scc1 L_st1{t}\ns_memrealtime s[42:43]\nL_st1{t}:\ns_cmp_lg_u32 {sBLK}, {stB}\ns_cbranch_scc1 L_st2{t}\ns_memrealtime s[48:49]\nL_st2{t}:")
    def trc():
        if diag3: A(f"s_memrealtime s[100:101]\ns_waitcnt lgkmcnt(0)\ns_mov_b32 m0, {sBLK}\nv_writelane_b32 v199, s100, m0")
    trc()
    if stamps: stab("k")
    A(f"s_cmp_lt_u32 {sBLK}, 16\ns_cbranch_scc1 L_k")
    if stamps: A("s_memrealtime s[50:51]")
    vP, vPN, pl, ph, vOA, RV = "v44", "v45", "v46", "v47", "v4", Q
    k_fin(0); k_fin(1)
    A(f"v_subrev_u32 {vSA}, 4096, {vSA}\nds_read_b32 {vPN}, {vSA} offset:{512*PI[0]}")
    A(f"s_lshl_b32 {sT0}, {sW}, 10\ns_add_u32 {sT0}, {sT0}, {L_OP}\nv_add_u32 {vOA}, {sT0}, v7\ns_mov_b32 s73, 0\ns_waitcnt lgkmcnt(0)")
    for i in range(24): A(f"v_mov_b32 v{ACC+i}, 0")
    def v_a(g, zero=True):
        b = ACC + 8*g
        for e in range(4): A(f"v_permlane32_swap_b32 v{b+e}, v{b+e+4}")
        for e in range(4): A(f"v_add_f32 v{RV+4*g+e}, v{b+e}, v{b+e+4}")
        if zero:
            for e in range(8): A(f"v_mov_b32 v{b+e}, 0")
    def v_b(gs):
        for g in gs:
            for e in range(2): A(f"v_permlane16_swap_b32 v{RV+4*g+e}, v{RV+4*g+e+2}")
        for g in gs:
            for e in range(2): A(f"v_add_f32 v{RV+4*g+e}, v{RV+4*g+e}, v{RV+4*g+e+2}")
        for g in gs: A(f"v_add_f32_dpp v{48+g}, v{RV+4*g}, v{RV+4*g} row_ror:8 row_mask:0xf bank_mask:0x3")
        for g in gs: A(f"v_add_f32_dpp v{48+g}, v{RV+4*g+1}, v{RV+4*g+1} row_ror:8 row_mask:0xf bank_mask:0xc")
    def v_out(): A(f"ds_write_b96 {vOA}, v[48:50]\nv_xor_b32 {vOA}, 4096, {vOA}")
    def cond(lab, code): A(f"s_cmp_eq_u32 s73, 0\ns_cbranch_scc1 {lab}"); code(); A(f"{lab}:")
    def v_comp(n):
        if n % 3 == 0:
            t = n//3
            A(f"v_mov_b32_dpp {pl}, {vP} row_newbcast:{t} row_mask:0xf bank_mask:0x3")
            A(f"v_mov_b32_dpp {pl}, {vP} row_newbcast:{8+t} row_mask:0xf bank_mask:0xc")
            A(f"v_lshlrev_b32 {ph}, 16, {pl}")
        if "c" not in skip: axpy(ACC + 8*(n % 3), RING + 4*(n % RB), 4, pl, ph)
    A("L_v:")
    for n in range(24):
        if n == 24 - G: A(f"s_cmp_eq_u32 {sBLK}, 31\ns_cbranch_scc1 L_vend")
        slot(n, True)
        if n == 0: A(f"s_waitcnt lgkmcnt(0)\nv_mov_b32 {vP}, {vPN}"); cond("L_c0", lambda: v_a(2))
        if n == 1: cond("L_c1", lambda: (v_b([2]), v_out()))
        if n == bs: A("s_waitcnt lgkmcnt(0)\ns_barrier")
        if n == 20:
            A(f"s_add_u32 {sT1}, {sBLK}, 1\ns_and_b32 {sT0}, {sT1}, {BPS-1}\ns_cselect_b32 s73, 0, 1")
            A(f"s_and_b32 {sT1}, {sT1}, 14\ns_lshl_b32 {sT1}, {sT1}, 1\ns_lshr_b32 {sT1}, {hex(PILUT)}, {sT1}\ns_and_b32 {sT1}, {sT1}, 7")
            A(f"s_lshl_b32 {sT1}, {sT1}, 1\ns_add_u32 {sT1}, {sT1}, {sT0}\ns_lshl_b32 {sT1}, {sT1}, 8\nv_add_u32 v51, {sT1}, {vSA}\nds_read_b32 {vPN}, v51")
        v_comp(n)
        if n == 21: cond("L_c21", lambda: (v_a(0), v_b([0])))
        if n == 22: cond("L_c22", lambda: (v_a(1), v_b([1])))
    A(f"s_add_u32 {sBLK}, {sBLK}, 1")
    trc()
    if stamps: stab("v"); A(f"; SSBYTES={(stB-stA)*8*3072}")
    A("s_branch L_v")
    A("L_vend:")
    W4, W1, YA, UF = PB, PB + 24, PB + 32, PB + 44
    late = []
    for r in range(6):
        late.append(f"buffer_load_dwordx4 v[{W4+4*r}:{W4+4*r+3}], v7, {TA_}, {sL[r//2]} offen offset:{1280*(r%2)} nt")
        late.append(f"buffer_load_dword v{W1+r}, {vPL}, {TA_}, {sL[r//2]} offen offset:{1024+1280*(r%2)} nt")
    late.insert(ptpos, f"buffer_load_dword v{W1+6}, v7, {WS_}, {sT1} offen {pt}")
    assert sum(sched) == 13 and len(sched) == G
    A(f"s_lshl_b32 {sT1}, {sLIN}, 12\ns_lshl_b32 {sT0}, {sW}, 10\ns_add_u32 {sT1}, {sT1}, {sT0}\ns_add_u32 {sT1}, {sT1}, {WS_H2}")
    done = 0
    for n in range(24 - G, 24):
        A(f"s_waitcnt vmcnt({23 - n + 2*sum(1 for c in cps if n - G <= c < 24 - G) + done})")
        for i in range(sched[n - 24 + G]): A(late[done]); done += 1
        v_comp(n)
        if n == 23: stamp(5)
        if n >= 21: v_a(n - 21, False); v_b([n - 21])
    v_out()
    A(f"s_lshl_b32 {sT0}, {sW}, 4\nv_mov_b32 v8, {sT0}\ns_waitcnt lgkmcnt(0)\ns_barrier")
    stamp(6)
    LW = PB + 56
    A(f"ds_read_b128 v[12:15], v8 offset:{L_U}")
    A(f"s_mul_i32 {sT0}, {sW}, 640\nv_mul_u32_u24 v11, 80, {vA}\nv_mad_u32_u24 v11, {vB}, 12, v11\nv_add_u32 v11, {sT0}, v11\nv_lshrrev_b32 v40, 1, v11")
    for r in range(6):
        for e in range(3): A(f"ds_read_u16 v{LW+10+3*r+e}, v40 offset:{L_W+7680+1280*r+2*e}")
        if r == 3: A("s_waitcnt lgkmcnt(0)")
    A(f"s_mul_i32 {sT0}, {sW}, 2560\nv_lshl_add_u32 v9, {vLANE}, 5, {sT0}\nv_lshl_add_u32 v10, {vLANE}, 3, {sT0}\nv_add_u32 v11, {L_YP}, v11")
    A(f"v_mov_b32 v19, {sTAG}")
    A("v_mov_b32 v8, 0\nv_mov_b32 v41, 0x10000")
    for i in range(10): A(f"v_mov_b32 v{YA+i}, 0")
    for p in range(3):
        A(f"v_and_b32 v{UF+4*p}, 0xffff, v{12+p}\nv_lshlrev_b32 v{UF+4*p+1}, 16, v{12+p}\nv_lshrrev_b32 v{UF+4*p+2}, 16, v{12+p}\nv_and_b32 v{UF+4*p+3}, 0xffff0000, v{12+p}")
    A(f"v_readfirstlane_b32 {sT3}, v15\ns_waitcnt lgkmcnt(0)")
    for p in range(3):
        for e in range(3): A(f"v_lshl_or_b32 v{LW+3*p+e}, v{LW+10+6*p+3+e}, 16, v{LW+10+6*p+e}")
    for r in range(6):
        pos = [i for i, l in enumerate(late) if l.startswith(f"buffer_load_dword v{W1+r},")][0]
        A(f"s_waitcnt vmcnt({12-pos})")
        axpy(YA, W4 + 4*r, 4, f"v{UF+2*r}", f"v{UF+2*r+1}"); axpy(YA + 8, W1 + r, 1, f"v{UF+2*r}", f"v{UF+2*r+1}")
    A(f"ds_write_b128 v9, v[{YA}:{YA+3}] offset:{L_YP}\nds_write_b128 v9, v[{YA+4}:{YA+7}] offset:{L_YP+16}")
    A(f"ds_write_b64 v10, v[{YA+8}:{YA+9}] offset:{L_YP+2048}\ns_mov_b64 exec, 1\nds_add_u32 v8, v41 offset:{L_CT}\ns_mov_b64 exec, -1")
    A(f"L_wy:\nds_read_b32 v41, v8 offset:{L_CT}\ns_waitcnt lgkmcnt(0)\nv_cmp_gt_u32 vcc, 0x40000, v41\ns_cbranch_vccnz L_wy")
    for k in range(5):
        A(f"ds_read2_b32 v[{20+4*k}:{21+4*k}], v11 offset0:0 offset1:1\nds_read_b32 v{22+4*k}, v11 offset:8")
        if k < 4: A("v_add_u32 v11, 2560, v11")
    A("s_waitcnt lgkmcnt(0)")
    for e in range(3): A(f"v_add_f32 v{20+e}, v{20+e}, v{24+e}\nv_add_f32 v{28+e}, v{28+e}, v{32+e}")
    for e in range(3): A(f"v_add_f32 v{20+e}, v{20+e}, v{36+e}")
    for e in range(3): A(f"v_add_f32 v{16+e}, v{20+e}, v{28+e}")
    stamp(7)
    A(f"s_barrier\nds_read_b96 v[12:14], v8 offset:{L_U+64}\ns_waitcnt lgkmcnt(0)")
    for p in range(3):
        for e in range(3): A(f"v_dot2c_f32_bf16 v{16+e}, v{12+p}, v{LW+3*p+e}")
    A(f"s_cmp_eq_u32 {sT3}, 0\ns_cbranch_scc1 L_yr\nbuffer_store_dwordx4 v[16:19], v7, {WS_}, {sT1} offen\ns_branch L_done")
    A(f"L_yr:\nbuffer_store_dwordx4 v[16:19], v7, {WS_}, {sT1} offen sc1\ns_branch L_done")
    A("L_svc:")
    G0 = RING; G1 = G0 + 8
    vQW, vSC, vML, vOP, vLS, vM, vZ, vZK, vXA = [f"v{32+i}" for i in range(7)] + ["v40", "v42"]
    ZS, ZM = 52, 8
    vWA, vH1S, vH1G, vYG, vH3, vYW, vYR, vOUT, XV = "v16", "v17", "v18", "v19", "v20", "v21", "v29", 22, 26
    P0, P1, YY = PB, PB + 32, PB + 64
    YT = YY + 12
    LP = 64//NSEG; LLP = LP.bit_length()-1; NLS = GS//LP; NR = 4*BPS
    sF = [f"s{r}" for r in (20, 21, 22, 24, 25, 26, 28, 29)]
    sLOC, sHD, sTG2, sH1S, sH1G, sYS, sYG, sH3S, sH3G, sXS, sXG, sFL = [f"s{r}" for r in range(72, 84)]
    sUU = ["s60", "s61", "s62"]
    sSCALE, sLOG2E = "s12", "s13"
    def store2(lab, stores):
        A(f"s_cmp_eq_u32 {sLOC}, 0\ns_cbranch_scc1 {lab}_r"); stores(""); A(f"s_branch {lab}_d\n{lab}_r:"); stores("sc1"); A(f"{lab}_d:")
    def poll(lab, loads, tags, sleep=0, first=None, tag=sTAG, loc=False, hook=None):
        A(f"s_mov_b32 {sT2}, {spin}")
        if first is not None: loads(first); A(f"s_branch {lab}_chk")
        elif sleep: A(f"s_branch {lab}_go")
        A(f"{lab}:")
        if hook: hook()
        if sleep: A(f"s_sleep {sleep}\n{lab}_go:")
        if loc and lp != "sc1":
            A(f"s_cmp_eq_u32 {sLOC}, 0\ns_cbranch_scc1 {lab}_rm"); loads(lp); A(f"s_branch {lab}_chk\n{lab}_rm:")
        loads("sc1")
        A(f"{lab}_chk:\ns_waitcnt vmcnt(0)")
        if len(tags) == 1: A(f"v_cmp_ne_u32 vcc, {tag}, {tags[0]}")
        else:
            A(f"v_xor_b32 {t0}, {tag}, {tags[0]}")
            for t in tags[1:]: A(f"v_bitop3_b32 {t0}, {t}, {tag}, {t0} bitop3:0xbe")
            A(f"v_cmp_ne_u32 vcc, 0, {t0}")
        A(f"s_cbranch_vccz {lab}_done\ns_sub_u32 {sT2}, {sT2}, 1\ns_cbranch_scc0 {lab}\n{lab}_done:")
    if not early: touches()
    A(f"v_lshlrev_b32 v4, 2, {vLANE}")
    A(f"L_wq:\nds_read_b32 v6, v5 offset:{L_CT}\ns_waitcnt lgkmcnt(0)\nv_and_b32 v6, 7, v6\nv_cmp_gt_u32 vcc, 5, v6\ns_cbranch_vccnz L_wq")
    for w in range(5):
        for k in range(5): A(f"ds_read_b32 v{G0+5*w+k}, v4 offset:{L_QP+1280*w+256*k}")
        if w == 2: A("s_waitcnt lgkmcnt(0)")
    A("s_waitcnt lgkmcnt(0)")
    for w in range(1, 5):
        for k in range(5): A(f"v_add_f32 v{G0+k}, v{G0+k}, v{G0+5*w+k}")
    QO = 52
    A(f"v_lshl_add_u32 v5, {vB}, 3, {vA}\nv_lshlrev_b32 {vQW}, 1, v5\nv_lshlrev_b32 v5, 4, v5")
    A(f"v_mov_b32 v48, v{G0+3}\nv_mov_b32 v49, v{G0+4}\nv_mov_b32 v{QO+3}, {sTAG}\nv_mov_b32 v50, {sTAG}\nv_mov_b32 v51, {sTAG}")
    for k in range(3): A(f"v_mov_b32 v{QO+k}, v{G0+k}")
    A(f"s_lshl_b32 {sHD}, {sLIN}, 11\ns_add_u32 {sHD}, {sHD}, {WS_QS}\ns_cmp_lt_u32 {sMEM}, 16\ns_cbranch_scc1 L_qw")
    A(f"buffer_store_dwordx4 v[{QO}:{QO+3}], v7, {WS_}, {sHD} offen\ns_branch L_qd")
    A(f"L_qw:\nbuffer_store_dwordx4 v[{QO}:{QO+3}], v7, {WS_}, {sHD} offen sc1\nL_qd:")
    stamp(3)
    if tlb == 2: page_touch()
    A(f"v_add_u32 {vSC}, {L_SC}, v4\nv_mov_b32 {vML}, {L_ML}\nv_add_u32 {vOP}, {L_OP}, v7\nv_mov_b32 {vZ}, 0")
    A(f"s_mov_b32 {sSCALE}, 0x3d93cd3a\ns_mov_b32 {sLOG2E}, 0x3fb8aa3b\ns_mov_b32 {sBLK}, 0")
    A(f"s_lshl_b32 {sT1}, {sG}, {11+LGS}\ns_add_u32 {sT1}, {sT1}, {WS_QS}")
    A(f"L_wt:\ns_sleep 2\nds_read_b32 v10, {vZ} offset:{L_CT}\ns_waitcnt lgkmcnt(0)\nv_cmp_gt_u32 vcc, 256, v10\ns_cbranch_vccnz L_wt")
    def gq(n, base):
        def f(p):
            for s in range(n):
                if s % 2 == 0: A(f"s_add_u32 {sT0}, {base}, {2048*s}")
                A(f"buffer_load_dwordx4 v[{G0+4*s}:{G0+4*s+3}], v7, {WS_}, {sT0} offen offset:{2048*(s%2)} {p}")
        return f
    poll("L_gq", gq(16, sT1), [f"v{G0+4*s+3}" for s in range(16)], first=qp, sleep=psleep)
    for s in range(1, 8):
        for h in range(2):
            for k in range(3): A(f"v_add_f32 v{G0+32*h+k}, v{G0+32*h+k}, v{G0+32*h+4*s+k}")
    for h in range(2):
        for k in range(3): A(f"v_cvt_pk_bf16_f32 v{G0+32*h+k}, v{G0+32*h+k}, 0")
    for h in range(2):
        for k in range(3): A(f"ds_write_b16 {vQW}, v{G0+32*h+k} offset:{L_QB+384*h+128*k}")
    stamp(4)
    A("s_branch L_next")
    A("L_blk:")
    if xd:
        A(f"s_cmp_lg_u32 {sC}, 0\ns_cbranch_scc1 L_noxf\ns_and_b32 {sT0}, {sBLK}, {xp-1}\ns_cmp_lg_u32 {sT0}, {xp-1}\ns_cbranch_scc1 L_noxf\ns_cmp_gt_u32 {sBLK}, 28\ns_cbranch_scc1 L_noxf")
        A(f"s_add_u32 {sT0}, {sTAG}, {sBLK}\nv_mov_b32 v12, {sT0}\nv_mul_u32_u24 v13, 4224, {vLANE}\ns_mul_i32 {sT1}, {sX}, 4224\ns_add_u32 {sT1}, {sT1}, {WS_PR+0x30000}")
        A(f"s_mov_b64 exec, 1\nbuffer_store_dword v12, v13, {WS_}, {sT1} offen sc1\ns_mov_b32 {sT1}, {WS_PR+0x30000}")
        if xs < 0: A("s_waitcnt vmcnt(0)")
        if xs > 0: A(f"s_sleep {xs}")
        A(f"s_mov_b64 exec, 0xff\nbuffer_load_dword v14, v13, {WS_}, {sT1} offen sc1\ns_waitcnt vmcnt(0)")
        lutv = sum((d + 8) << (4*i) for i, d in enumerate(xd))
        A(f"v_sub_u32 v14, v14, v12\nv_cmp_gt_u32 vcc, 64, v14\ns_bitset0_b32 vcc_lo, {sX}\ns_bcnt1_i32_b64 {sT0}, vcc\ns_lshl_b32 {sT0}, {sT0}, 2")
        A(f"s_lshr_b32 {sT0}, {hex(lutv)}, {sT0}\ns_and_b32 {sT0}, {sT0}, 15\ns_getreg_b32 {sT1}, hwreg(HW_REG_XCC_ID)\ns_bitcmp1_b32 {sT1}, 0\ns_cselect_b32 {sT1}, {fbo-8}, {fb-8}")
        A(f"s_add_u32 {sT0}, {sT0}, {sT1}\ns_min_u32 {sT0}, {sT0}, 32\ns_add_u32 {sT0}, {sT0}, {sTAG}\nv_mov_b32 v12, {sT0}")
        A(f"s_mul_i32 {sT1}, {sX}, {4*4224}\ns_add_u32 {sT1}, {sT1}, {WS_PR+128}\ns_mov_b64 exec, 0xf")
        A(f"buffer_store_dword v12, v13, {WS_}, {sT1} offen\ns_mov_b64 exec, -1\nL_noxf:")
    A(f"s_cmp_le_u32 {sBLK}, 16\ns_cbranch_scc1 L_kpart\ns_and_b32 {sT0}, {sBLK}, {BPS-1}\ns_cbranch_scc1 L_vmid")
    stamp(5)
    for w in range(4): A(f"ds_read_b96 v[{G0+4*w}:{G0+4*w+2}], {vOP} offset:{1024*w}")
    A(f"v_xor_b32 {vOP}, 4096, {vOP}\nv_mov_b32 v{G0+19}, {sTG2}\ns_waitcnt lgkmcnt(0)")
    for k in range(3): A(f"v_add_f32 v{G0+k}, v{G0+k}, v{G0+4+k}\nv_add_f32 v{G0+8+k}, v{G0+8+k}, v{G0+12+k}")
    for k in range(3): A(f"v_add_f32 v{G0+k}, v{G0+k}, v{G0+8+k}")
    for k in range(3): A(f"v_mul_f32 v{G0+16+k}, {sF[0]}, v{G0+k}")
    if "h" in skip: A(f"s_cmp_lg_u32 {sBLK}, 32\ns_cbranch_scc1 L_p1_done")
    store2("L_s1", lambda p: A(f"buffer_store_dwordx4 v[{G0+16}:{G0+19}], {vH1S}, {WS_}, {sH1S} offen {p}"))
    poll("L_p1", lambda p: A(f"buffer_load_dwordx4 v[{G0}:{G0+3}], {vH1G}, {WS_}, {sH1G} offen {p}"), [f"v{G0+3}"], tag=sTG2, loc=True)
    stamp(6)
    A(f"v_mov_b32 v{G0+3}, 0\nv_permlane32_swap_b32 v{G0}, v{G0+1}\nv_permlane32_swap_b32 v{G0+2}, v{G0+3}")
    A(f"v_add_f32 v{G0}, v{G0}, v{G0+1}\nv_add_f32 v{G0+2}, v{G0+2}, v{G0+3}\nv_permlane16_swap_b32 v{G0}, v{G0+2}\nv_add_f32 {vZK}, v{G0}, v{G0+2}")
    allred_lo("v_add_f32", [vZK], 3)
    A(f"s_cmp_eq_u32 {sBLK}, 32\ns_cbranch_scc1 L_tail")
    for i in range(NSEG-1): A(f"s_mov_b32 {sF[i]}, {sF[i+1]}")
    A(f"s_add_u32 {sTG2}, {sTG2}, 1\ns_xor_b32 {sH1S}, {sH1S}, 1024\ns_xor_b32 {sH1G}, {sH1G}, 1024")
    A(f"s_lshr_b32 {sT0}, {sBLK}, 1\ns_xor_b32 {sT0}, {sT0}, {sOWN}\ns_bitcmp1_b32 {sT0}, 0\ns_cbranch_scc0 L_notmine")
    A(f"v_mov_b32 v{ZM}, v{ZM+1}\nv_mov_b32 v{ZM+1}, v{ZM+2}\nv_mov_b32 v{ZM+2}, {vZK}\ns_cmp_eq_u32 {sBLK}, 28\ns_cbranch_scc0 L_next\ns_branch L_send")
    A(f"L_notmine:\nv_mov_b32 v{ZS}, v{ZS+1}\nv_mov_b32 v{ZS+1}, v{ZS+2}\nv_mov_b32 v{ZS+2}, {vZK}\ns_cmp_ge_u32 {sBLK}, 28\ns_cbranch_scc0 L_next")
    A("L_send:")
    if "x" in skip: A("s_branch L_next")
    A(f"s_mov_b32 exec_lo, 0x01010101\ns_mov_b32 exec_hi, 0x01010101")
    A(f"buffer_store_dwordx4 v[{ZS}:{ZS+3}], {vXA}, {WS_}, {sXS} offen sc1\ns_mov_b64 exec, -1\ns_add_u32 {sXS}, {sXS}, 128")
    A("s_branch L_next")
    A("L_vmid:")
    A(f"s_cmp_lg_u32 {sBLK}, {lsb}\ns_cbranch_scc1 L_nols")
    A(f"s_mul_i32 {sT1}, {sG}, {GS*128}\ns_add_u32 {sT1}, {sT1}, {WS_LS}\ns_add_u32 {sT3}, {sT1}, 4096")
    def gl(p):
        for r in range(NLS): A(f"buffer_load_dwordx4 v[{G0+4*r}:{G0+4*r+3}], {vLS}, {WS_}, {sT1 if LP*128*r < 4096 else sT3} offen offset:{LP*128*r % 4096} {p}")
    poll("L_ls", gl, [f"v{G0+4*r+e}" for r in range(NLS) for e in (1, 3)], sleep=16, first=qp)
    hn = NLS//2 if PAIR else NLS
    for h, t in ((0, t0), (1, t1))[:2 if PAIR else 1]:
        A(f"v_xor_b32 {t}, {sLOC}, v{G0+4*hn*h+2}")
        for r in range(1, hn): A(f"v_bitop3_b32 {t}, v{G0+4*(hn*h+r)+2}, {sLOC}, {t} bitop3:0xbe")
    if PAIR: A(f"s_bitcmp1_b32 {sX}, 0\ns_cselect_b64 vcc, -1, 0\nv_cndmask_b32 {t0}, {t0}, {t1}, vcc")
    A(f"v_cmp_ne_u32 vcc, 0, {t0}\ns_cmp_eq_u64 vcc, 0\ns_cselect_b32 {sLOC}, {local}, 0")
    A(f"v_max_f32 {t0}, v{G0}, v{G0+4}")
    for r in range(2, NLS, 2): A(f"v_max3_f32 {t0}, {t0}, v{G0+4*r}, v{G0+4*r+4}")
    allred_lo("v_max_f32", [t0], LLP)
    for r in range(NLS): A(f"v_sub_f32 v{G0+4*r}, v{G0+4*r}, {t0}")
    for r in range(NLS): A(f"v_exp_f32 v{G0+4*r}, v{G0+4*r}")
    for r in range(1, NLS): A(f"v_add_f32 v{G0}, v{G0}, v{G0+4*r}")
    allred_lo("v_add_f32", [f"v{G0}"], LLP)
    A(f"v_sub_f32 {t0}, {vM}, {t0}\nv_exp_f32 {t0}, {t0}\nv_rcp_f32 {t1}, v{G0}\nv_mul_f32 {t0}, {t0}, {t1}")
    for k in range(NSEG): A(f"v_readlane_b32 {sF[k]}, {t0}, {LP*PI[k]}")
    A(f"v_mov_b32 {t0}, 0\nv_mov_b32 {t1}, 0\nv_mov_b32 {t2}, 0\nv_mov_b32 {t3}, {sLOC}\ns_mov_b64 exec, 0xf\nds_write_b128 v7, v[{T}:{T+3}] offset:{L_U}")
    A(f"s_lshl_b32 {sT0}, {sLIN}, 11\ns_add_u32 {sT0}, {sT0}, {WS_QS}\ns_mov_b32 exec_lo, 0x3f3f3f3f\ns_mov_b32 exec_hi, 0x3f3f3f3f")
    store2("L_s0", lambda p: A(f"buffer_store_dwordx4 v[48:51], v5, {WS_}, {sT0} offen offset:1024 {p}"))
    A("s_mov_b64 exec, -1\ns_branch L_next")
    A("L_nols:")
    A(f"s_cmp_lg_u32 {sBLK}, {lsb+2}\ns_cbranch_scc1 L_nogu2")
    A(f"v_lshlrev_b32 v6, 11, {vA}\nv_lshl_add_u32 v6, {vB}, 4, v6\nv_mov_b32 v{G1}, 0\nv_mov_b32 v{G1+1}, 0")
    A(f"s_lshr_b32 {sT1}, {sLIN}, 3\ns_lshl_b32 {sT1}, {sT1}, 14\ns_mul_i32 {sT0}, {sS}, 96\ns_add_u32 {sT1}, {sT1}, {sT0}\ns_add_u32 {sT1}, {sT1}, {WS_QS}")
    A(f"s_mov_b32 exec_lo, 0x3f3f3f3f\ns_mov_b32 exec_hi, 0x3f3f3f3f")
    poll("L_gu", lambda p: A(f"buffer_load_dwordx4 v[{G1}:{G1+3}], v6, {WS_}, {sT1} offen offset:1024 {p}"), [f"v{G1+2}", f"v{G1+3}"], sleep=psleep, loc=True)
    A("s_mov_b64 exec, -1")
    for k in range(2): A(f"v_add_f32_dpp v{G1+k}, v{G1+k}, v{G1+k} row_ror:8 {DPP}")
    allred_top("v_add_f32", [f"v{G1}", f"v{G1+1}"], [t0, t1])
    A(f"v_cvt_pk_bf16_f32 v{G1}, 0, v{G1}\nv_cvt_pk_bf16_f32 v{G1+1}, 0, v{G1+1}")
    A(f"v_cmp_lt_f32 vcc, 0, v{G1}\nv_cndmask_b32 {t0}, 0, 1.0, vcc\nv_mul_f32 {t3}, v{G1}, {t0}\nv_mul_f32 {t3}, {t3}, v{G1+1}\nv_cvt_pk_bf16_f32 {t3}, {t3}, 0")
    A(f"v_mov_b32_dpp {t0}, {t3} quad_perm:[1,1,3,3] {DPP}\nv_lshl_or_b32 {t3}, {t0}, 16, {t3}")
    for i in range(3): A(f"v_readlane_b32 {sUU[i]}, {t3}, {2*i}")
    for r in range(6):
        for d in range(5): A(f"ds_read_b32 v{P0+5*r+d}, {vWA} offset:{1280*r+4*d}")
        if r % 2: A("s_waitcnt lgkmcnt(0)")
    A(f"s_mov_b32 {sT1}, 0x05040100\ns_mov_b32 {sT3}, 0x07060302")
    for p in range(3):
        for d in range(5):
            A(f"v_perm_b32 v{P1+10*p+2*d}, v{P0+10*p+5+d}, v{P0+10*p+d}, {sT1}\nv_perm_b32 v{P1+10*p+2*d+1}, v{P0+10*p+5+d}, v{P0+10*p+d}, {sT3}")
    for p in range(3):
        for c in range(10): A(f"v_dot2c_f32_bf16 v{YY+c}, {sUU[p]}, v{P1+10*p+c}")
    for d in range(5): A(f"ds_write_b64 {vYW}, v[{YY+2*d}:{YY+2*d+1}] offset:{L_YP+10240+8*d}")
    A("s_branch L_next")
    A("L_nogu2:")
    A(f"s_cmp_lg_u32 {sBLK}, 31\ns_cbranch_scc1 L_nopf")
    if pf is not None:
        for r in range(4 if "y" in pfw else 0):
            A(f"s_add_u32 {sT0}, {sYG}, {8*4096*r}\nbuffer_load_dwordx4 v[{G0+8+4*r}:{G0+8+4*r+3}], {vYG}, {WS_}, {sT0} offen {pf}")
        if "h" in pfw: A(f"buffer_load_dwordx4 v[{G0+24}:{G0+27}], v7, {WS_}, {sH1S} offen {pf}")
    A("L_nopf:")
    A(f"s_cmp_lt_u32 {sBLK}, 29\ns_cbranch_scc1 L_next\ns_add_u32 {sT0}, {sBLK}, {sOWN}\ns_cmp_gt_u32 {sT0}, 31\ns_cbranch_scc1 L_last")
    if "x" not in skip:
        poll("L_px", lambda p: A(f"buffer_load_dwordx4 v[{G0}:{G0+3}], {vXA}, {WS_}, {sXG} offen {p}"), [f"v{G0+3}"], sleep=psleep, first=xl)
    for k in range(3): A(f"v_add_f32 v{ZM+k}, v{ZM+k}, v{G0+k}")
    A(f"s_add_u32 {sXG}, {sXG}, 128\ns_mov_b32 {sFL}, 3\ns_cmp_eq_u32 {sBLK}, 29\ns_cbranch_scc1 L_take\ns_mov_b32 {sFL}, 1\nv_mov_b32 v{ZM}, v{ZM+2}")
    A(f"L_take:\nv_mov_b32_dpp v{G0+1}, v{ZM} row_ror:8 {DPP}\nv_cvt_pk_bf16_f32 v{G0}, v{ZM}, v{G0+1}\nv_mov_b32 v{ZM}, v{ZM+1}\nv_mov_b32 v{ZM+1}, v{ZM+2}")
    A(f"s_mov_b32 exec_lo, 0x00010001\ns_mov_b32 exec_hi, 1\nds_write_b32 {vYR}, v{G0}\ns_mov_b64 exec, -1\nv_add_u32 {vYR}, 16, {vYR}")
    A(f"s_sub_u32 {sFL}, {sFL}, 1\ns_cmp_gt_u32 {sFL}, 0\ns_cbranch_scc1 L_take")
    A("L_last:")
    A(f"s_cmp_lg_u32 {sBLK}, 31\ns_cbranch_scc1 L_next\ns_setprio 3\ns_waitcnt vmcnt(0)")
    A("L_next:")
    A(f"s_add_u32 {sBLK}, {sBLK}, 1\ns_waitcnt lgkmcnt(0)\ns_barrier\ns_branch L_blk")
    A("L_kpart:\ns_setprio 0")
    A(f"s_and_b32 {sT0}, {sBLK}, {BPS-1}\ns_cbranch_scc1 L_nosm")
    for w in range(4):
        for k in range(BPS): A(f"ds_read_b32 v{G0+BPS*w+k}, {vSC} offset:{4096*w+256*k}")
        if w == 1: A("s_waitcnt lgkmcnt(0)")
    A("s_waitcnt lgkmcnt(0)")
    for i in range(NR): A(f"v_cvt_pk_bf16_f32 v{G0+i}, 0, v{G0+i}")
    for i in range(NR): A(f"v_mul_f32 v{G0+i}, {sSCALE}, v{G0+i}")
    for i in range(NR): A(f"v_cvt_pk_bf16_f32 v{G0+i}, 0, v{G0+i}")
    for i in range(NR): A(f"v_mul_f32 v{G0+i}, {sLOG2E}, v{G0+i}")
    A(f"v_max_f32 {t0}, v{G0}, v{G0+1}")
    for i in range(2, NR, 2): A(f"v_max3_f32 {t0}, {t0}, v{G0+i}, v{G0+i+1}")
    allred_lo("v_max_f32", [t0]); allred_top("v_max_f32", [t0], [t1])
    for i in range(NR): A(f"v_sub_f32 v{G0+i}, v{G0+i}, {t0}")
    for i in range(NR): A(f"v_exp_f32 v{G0+i}, v{G0+i}")
    A(f"v_add_f32 {t1}, v{G0}, v{G0+1}")
    for i in range(2, NR): A(f"v_add_f32 {t1}, {t1}, v{G0+i}")
    for i in range(NR): A(f"v_cvt_pk_bf16_f32 v{G0+i}, v{G0+i}, 0")
    for w in range(4):
        for k in range(BPS): A(f"ds_write_b32 {vSC}, v{G0+BPS*w+k} offset:{4096*w+256*k}")
        if w == 1: A("s_waitcnt lgkmcnt(0)")
    allred_lo("v_add_f32", [t1]); allred_top("v_add_f32", [t1], [t2])
    A(f"v_log_f32 {t3}, {t1}\nv_mov_b32 {t2}, {t0}\nv_add_f32 {t3}, {t3}, {t0}")
    A(f"ds_write_b64 {vML}, v[{T+2}:{T+3}]")
    A(f"v_add_u32 {vSC}, {256*BPS}, {vSC}\nv_add_u32 {vML}, 8, {vML}")
    A("L_nosm:")
    if tlb == 3:
        A(f"s_cmp_lg_u32 {sBLK}, 1\ns_cbranch_scc1 L_nopt"); page_touch(); A("L_nopt:")
    A(f"s_cmp_lg_u32 {sBLK}, 1\ns_cbranch_scc1 L_noq1\ns_cmp_lg_u32 {sS}, 0\ns_cbranch_scc1 L_next\ns_cmp_lt_u32 {sMEM}, 16\ns_cbranch_scc1 L_next")
    poll("L_go", gq(8, sHD), [f"v{G0+4*s+3}" for s in range(8)], sleep=psleep, first=op)
    for s in range(1, 8):
        for k in range(3): A(f"v_add_f32 v{G0+k}, v{G0+k}, v{G0+4*s+k}")
    for k in range(3): A(f"v_mov_b32_dpp v{G0+4+k}, v{G0+k} row_ror:8 {DPP}")
    for k in range(3): A(f"v_cvt_pk_bf16_f32 v{G0+k}, v{G0+k}, v{G0+4+k}")
    A(f"v_lshrrev_b32 v6, 4, {vLANE}\nv_lshl_add_u32 v6, v6, 3, {vB}\nv_lshlrev_b32 v6, 4, v6\ns_lshl_b32 {sT0}, {sLIN}, 6\ns_add_u32 {sT0}, {sT0}, {WS_QF}")
    A(f"s_mov_b32 exec_lo, 0x00ff00ff\ns_mov_b32 exec_hi, 0x00ff00ff\nbuffer_store_dwordx4 v[{G0}:{G0+3}], v6, {WS_}, {sT0} offen sc1\ns_mov_b64 exec, -1")
    A(f"s_waitcnt vmcnt(0)\ns_branch L_next\nL_noq1:\ns_cmp_lg_u32 {sBLK}, 2\ns_cbranch_scc1 L_noq2")
    A(f"s_lshl_b32 {sT1}, {sG}, 12\ns_add_u32 {sT1}, {sT1}, {WS_QF}")
    def gf(p):
        for r in range(1, 4): A(f"buffer_load_dwordx4 v[{G0+4*r}:{G0+4*r+3}], v7, {WS_}, {sT1} offen offset:{1024*r} {p}")
    def again():
        A(f"s_cmp_lg_u32 {sT2}, {spin-nre}\ns_cbranch_scc1 L_nore\nbuffer_store_dwordx4 v[{QO}:{QO+3}], v7, {WS_}, {sHD} offen sc1\nL_nore:")
    A(f"v_lshrrev_b32 {vQW}, 5, {vLANE}\nv_mul_u32_u24 {vQW}, 384, {vQW}\nv_lshl_add_u32 {vQW}, {vB}, 4, {vQW}\nv_and_b32 v6, 3, {vA}\nv_lshl_add_u32 {vQW}, v6, 2, {vQW}")
    A("s_waitcnt lgkmcnt(0)")
    poll("L_gf", gf, [f"v{G0+4*r+3}" for r in range(1, 4)], first=qp, sleep=psleep, hook=again)
    for r in range(1, 4):
        for k in range(3): A(f"ds_write_b32 {vQW}, v{G0+4*r+k} offset:{L_QB+768*r+128*k}")
    A("s_branch L_next\nL_noq2:")
    A(f"s_cmp_lg_u32 {sBLK}, {NSEG+1}\ns_cbranch_scc1 L_nogu")
    A(f"v_mul_u32_u24 {vWA}, 20, {vLANE}\nv_add_u32 {vWA}, {L_W}, {vWA}")
    A(f"v_lshrrev_b32 {t0}, 4, {vLANE}\nv_lshl_add_u32 {t0}, {t0}, 3, {vB}\nv_and_b32 {t1}, 8, {vLANE}\nv_lshlrev_b32 {t1}, 1, {t1}")
    A(f"v_lshl_add_u32 {vH1S}, {t0}, 5, {t1}\nv_lshl_add_u32 {vH1G}, {t0}, 11, {t1}")
    A(f"s_lshl_b32 {sH1S}, {sLIN}, 11\ns_add_u32 {sH1S}, {sH1S}, {WS_H1}")
    A(f"s_lshl_b32 {sH1G}, {sX}, 16\ns_lshl_b32 {sT0}, {sC}, 5\ns_add_u32 {sH1G}, {sH1G}, {sT0}\ns_add_u32 {sH1G}, {sH1G}, {WS_H1}")
    A(f"v_mul_u32_u24 {vYW}, 40, {vLANE}\nv_lshrrev_b32 {vYR}, 1, {vLANE}\nv_and_b32 {vYR}, 8, {vYR}\nv_lshrrev_b32 {t0}, 3, {vLANE}\nv_and_or_b32 {vYR}, {t0}, 4, {vYR}\nv_add_u32 {vYR}, {L_U}, {vYR}\nv_mov_b32 v43, {vYR}")
    A(f"v_lshlrev_b32 {t0}, 4, {vB}\nv_lshl_add_u32 {vYG}, {vA}, 12, {t0}\nv_lshlrev_b32 {vXA}, 4, {vA}\nv_mov_b32 v41, {sTAG}\nv_mov_b32 v{ZS+3}, {sTAG}")
    A(f"s_lshl_b32 {sYS}, {sLIN}, 12\ns_add_u32 {sYS}, {sYS}, {WS_H2}")
    A(f"s_lshl_b32 {sYG}, {sX}, 17\ns_lshl_b32 {sT0}, {sC}, 7\ns_add_u32 {sYG}, {sYG}, {sT0}\ns_add_u32 {sYG}, {sYG}, {WS_H2}")
    A(f"s_lshl_b32 {sH3G}, {sC}, 10\ns_add_u32 {sH3G}, {sH3G}, {WS_H3}\ns_lshl_b32 {sT0}, {sX}, 7\ns_add_u32 {sH3S}, {sH3G}, {sT0}")
    A(f"s_lshl_b32 {sXS}, {sLIN}, 8\ns_add_u32 {sXS}, {sXS}, {WS_XX}\ns_xor_b32 {sXG}, {sXS}, {32*256}")
    A(f"s_add_u32 {sTG2}, {sTAG}, 1\ns_mov_b32 {sFL}, 0")
    A(f"v_mul_u32_u24 {t0}, 3, {vB}\ns_mul_i32 {sT0}, {sC}, 20\nv_add_lshl_u32 {t0}, {t0}, {sT0}, 1\nv_mov_b32 {t2}, {OOB}")
    A(f"v_cmp_gt_u32 vcc, 7, {vB}\nv_cndmask_b32 v{vOUT}, {t2}, {t0}, vcc\nv_cmp_gt_u32 vcc, 6, {vB}\nv_cndmask_b32 v{vOUT+1}, {t2}, {t0}, vcc")
    A(f"v_mov_b32 {t0}, {WS_EP}\nv_or_b32 {t1}, s2, {vLANE}\nv_cmp_eq_u32 vcc, 0, {t1}\nv_cndmask_b32 v{vOUT+2}, {t2}, {t0}, vcc")
    A(f"buffer_load_ushort v{XV}, v{vOUT}, {X_}, 0 offen\nbuffer_load_ushort v{XV+1}, v{vOUT}, {X_}, 0 offen offset:2\nbuffer_load_ushort v{XV+2}, v{vOUT+1}, {X_}, 0 offen offset:4")
    for i in range(10): A(f"v_mov_b32 v{YY+i}, 0")
    A("s_waitcnt vmcnt(0)")
    for e in range(3): A(f"v_lshlrev_b32 v{XV+e}, 16, v{XV+e}")
    srd_lo(X_, pOUT)
    A("s_branch L_next")
    A("L_nogu:")
    A(f"s_cmp_lg_u32 {sBLK}, 16\ns_cbranch_scc1 L_next")
    A(f"v_lshrrev_b32 v10, {LLP}, {vLANE}\nv_lshlrev_b32 v10, 3, v10\ns_waitcnt lgkmcnt(0)\nds_read_b64 v[{T+2}:{T+3}], v10 offset:{L_ML}")
    A(f"s_lshl_b32 {sT1}, {sLIN}, 7\ns_add_u32 {sT1}, {sT1}, {WS_LS}\nv_and_b32 v11, {LP-1}, {vLANE}\nv_cmp_eq_u32 vcc, 0, v11")
    A(f"s_waitcnt lgkmcnt(0)\nv_mov_b32 {vM}, {t2}\nv_mov_b32 {t0}, {t3}\nv_mov_b32 {t1}, {sTAG}\nv_mov_b32 {t3}, {sTAG}")
    A(f"s_getreg_b32 {sLOC}, hwreg(HW_REG_XCC_ID)\nv_mov_b32 {t2}, {sLOC}\nv_lshlrev_b32 v10, 1, v10\ns_mov_b64 exec, vcc")
    A(f"buffer_store_dwordx4 v[{T}:{T+3}], v10, {WS_}, {sT1} offen sc1\ns_mov_b64 exec, -1")
    A(f"v_lshl_add_u32 {vLS}, v11, 7, v10\ns_branch L_next")
    A("L_tail:")
    A(f"v_mov_b32_dpp v{G0+1}, {vZK} row_ror:8 {DPP}\nv_cvt_pk_bf16_f32 v{G0}, {vZK}, v{G0+1}")
    A(f"s_mov_b32 exec_lo, 0x00010001\ns_mov_b32 exec_hi, 1\nds_write_b32 v43, v{G0} offset:64\ns_mov_b64 exec, -1\ns_waitcnt lgkmcnt(0)")
    stamp(7)
    A("s_barrier")
    def g2(p):
        for r in range(4):
            A(f"s_add_u32 {sT0}, {sYG}, {8*4096*r}\nbuffer_load_dwordx4 v[{G0+4*r}:{G0+4*r+3}], {vYG}, {WS_}, {sT0} offen {p}")
    poll("L_p2", g2, [f"v{G0+4*r+3}" for r in range(4)], loc=True)
    if stamps: A("s_memrealtime s[42:43]")
    for k in range(3): A(f"v_add_f32 v{G0+k}, v{G0+k}, v{G0+4+k}\nv_add_f32 v{G0+8+k}, v{G0+8+k}, v{G0+12+k}")
    for k in range(3): A(f"v_add_f32 v{G0+k}, v{G0+k}, v{G0+8+k}")
    def red_hi(b):
        for k in range(3): A(f"v_add_f32_dpp v{b+k}, v{b+k}, v{b+k} row_ror:8 {DPP}")
        allred_top("v_add_f32", [f"v{b+k}" for k in range(3)], [f"v{b+4+k}" for k in range(3)])
    red_hi(G0)
    A(f"s_cmp_eq_u32 {sS}, {sX}\ns_cbranch_scc1 L_red")
    A(f"s_mov_b64 exec, 0xff\nbuffer_store_dwordx4 v[{G0}:{G0+3}], v7, {WS_}, {sH3S} offen {p3s}\ns_mov_b64 exec, -1\ns_branch L_done")
    A("L_red:")
    BUF = [G0 + 16 + 4*k for k in range(np3)]
    for b in BUF:
        for k in range(3): A(f"v_mov_b32 v{b+k}, v{G0+k}")
    A(f"v_cmp_ne_u32 vcc, {sX}, {vA}\ns_mov_b32 {sT2}, {spin}\ns_mov_b64 exec, vcc")
    def l3(k): A(f"buffer_load_dwordx4 v[{BUF[k]}:{BUF[k]+3}], v7, {WS_}, {sH3G} offen {p3l}")
    for k in range(np3-1):
        l3(k); A(f"s_sleep {s3}")
    A("L_p3:")
    for k in range(np3):
        l3((k + np3 - 1) % np3)
        A(f"s_waitcnt vmcnt({np3-1})\nv_cmp_ne_u32 vcc, {sTAG}, v{BUF[k]+3}\ns_cbranch_vccz L_p3d{k}")
    A(f"s_sub_u32 {sT2}, {sT2}, 1\ns_cbranch_scc0 L_p3")
    for k in reversed(range(np3)):
        A(f"L_p3d{k}:\ns_mov_b64 exec, -1")
        for e in range(3): A(f"v_add_f32_dpp v{G1+e}, v{BUF[k]+e}, v{BUF[k]+e} row_ror:8 {DPP}")
        if k: A("s_branch L_p3e")
    A("L_p3e:")
    if stamps: A("s_memrealtime s[48:49]")
    allred_top("v_add_f32", [f"v{G1+k}" for k in range(3)], [f"v{G1+4+k}" for k in range(3)])
    for e in range(3): A(f"v_add_f32 v{G1+e}, v{G1+e}, v{XV+e}")
    for e in range(3): A(f"v_cvt_pk_bf16_f32 v{G1+e}, v{G1+e}, 0")
    A("s_mov_b64 exec, 0xff")
    A(f"buffer_store_short v{G1}, v{vOUT}, {X_}, 0 offen\nbuffer_store_short v{G1+1}, v{vOUT}, {X_}, 0 offen offset:2\nbuffer_store_short v{G1+2}, v{vOUT+1}, {X_}, 0 offen offset:4")
    A(f"buffer_store_dword v41, v{vOUT+2}, {WS_}, 0 offen")
    A("s_mov_b64 exec, -1")
    A("L_done:")
    if diag is not None:
        wave, st, mult = diag
        stamp(8)
        A(f"s_cmp_lg_u32 s2, 0\ns_cbranch_scc1 L_end\ns_cmp_lg_u32 {sW}, {wave}\ns_cbranch_scc1 L_end")
        A(f"s_waitcnt lgkmcnt(0)\ns_sub_u32 {sT0}, s{sST+2*st}, s{sST}\ns_mul_i32 {sT0}, {sT0}, {mult}\ns_add_u32 {sT0}, {sT0}, 30000")
        A(f"s_min_u32 {sT0}, {sT0}, 200000")
        A(f"L_dg:\ns_memrealtime s[72:73]\ns_waitcnt lgkmcnt(0)\ns_sub_u32 {sT1}, s72, s{sST}\ns_cmp_lt_u32 {sT1}, {sT0}\ns_cbranch_scc1 L_dg")
    if stamps:
        stamp(8)
        A(f"s_mul_i32 {sT0}, s2, 5\ns_add_u32 {sT0}, {sT0}, {sW}\ns_lshl_b32 {sT0}, {sT0}, 6\ns_add_u32 {sT0}, {sT0}, {WS_ST}")
        A(f"s_getreg_b32 {sT1}, hwreg(HW_REG_XCC_ID)")
        A("s_waitcnt lgkmcnt(0)\nv_mov_b32 v4, 0")
        for i in range(9): A(f"v_writelane_b32 v4, s{sST+2*i}, {i}")
        A(f"v_writelane_b32 v4, s42, 9\nv_writelane_b32 v4, s48, 10\nv_writelane_b32 v4, s50, 11\nv_writelane_b32 v4, s47, 12")
        A(f"v_writelane_b32 v4, {sT1}, 15")
        A(f"v_lshlrev_b32 v5, 2, {vLANE}\ns_mov_b64 exec, 0xffff")
        A(f"buffer_store_dword v4, v5, {WS_}, {sT0} offen {'sc1' if diag2 else ''}")
    if diag3:
        A(f"s_mov_b64 exec, -1\ns_cmp_lg_u32 {sW}, 0\ns_cbranch_scc1 L_end\ns_lshl_b32 {sT0}, s2, 8\ns_add_u32 {sT0}, {sT0}, {WS_ST+0x40000}")
        A(f"buffer_store_dword v199, v5, {WS_}, {sT0} offen sc1\ns_cmp_lg_u32 s2, 0\ns_cbranch_scc1 L_end")
        A(f"L_dh3:\ns_memrealtime s[72:73]\ns_waitcnt lgkmcnt(0)\ns_sub_u32 {sT1}, s72, s{sST}\ns_cmp_lt_u32 {sT1}, 20000\ns_cbranch_scc1 L_dh3")
        A(f"v_mov_b32 v8, 0\ns_mov_b32 {sT0}, {WS_ST+0x40000}\ns_mov_b32 {sT1}, 256\nL_dl3:\nbuffer_load_dword v9, v5, {WS_}, {sT0} offen sc1\ns_waitcnt vmcnt(0)")
        A(f"v_subrev_u32 v9, s{sST}, v9\nv_add_u32 v8, v8, v9\ns_add_u32 {sT0}, {sT0}, 256\ns_sub_u32 {sT1}, {sT1}, 1\ns_cmp_lg_u32 {sT1}, 0\ns_cbranch_scc1 L_dl3")
        A(f"v_add_u32 v10, 4, v5\nds_bpermute_b32 v9, v10, v8\ns_waitcnt lgkmcnt(0)\nv_sub_u32 v9, v9, v8\nv_mul_u32_u24 v9, 10, v9\nv_lshrrev_b32 v9, 8, v9")
        A(f"v_lshlrev_b32 v10, 1, v5\nds_bpermute_b32 v11, v10, v9\nv_add_u32 v10, 4, v10\nds_bpermute_b32 v12, v10, v9\ns_waitcnt lgkmcnt(0)")
        A(f"v_min_u32 v11, 9999, v11\nv_min_u32 v12, 9999, v12\nv_mul_u32_u24 v11, 10000, v11\nv_add_u32 v11, v11, v12")
        srd(TA_, pDBG, 64)
        A(f"buffer_store_dword v11, v5, {TA_}, 0 offen")
    if diag2:
        role, st, op, role0, st0, op0, mult = diag2
        A(f"s_mov_b64 exec, -1\ns_cmp_lg_u32 s2, 0\ns_cbranch_scc1 L_end\ns_cmp_lg_u32 {sW}, 4\ns_cbranch_scc1 L_end")
        A(f"L_dh:\ns_memrealtime s[72:73]\ns_waitcnt lgkmcnt(0)\ns_sub_u32 {sT1}, s72, s{sST}\ns_cmp_lt_u32 {sT1}, 20000\ns_cbranch_scc1 L_dh")
        A(f"v_mul_u32_u24 v5, 320, {vLANE}")
        for k in range(4):
            A(f"s_mov_b32 {sT0}, {WS_ST + 64*320*k}\nbuffer_load_dword v{8+k}, v5, {WS_}, {sT0} offen offset:{64*role0+4*st0} sc1\nbuffer_load_dword v{12+k}, v5, {WS_}, {sT0} offen offset:{64*role+4*st} sc1")
        A("s_waitcnt vmcnt(0)")
        for k in range(8): A(f"v_subrev_u32 v{8+k}, s{sST}, v{8+k}")
        vop = {"max": "v_max_i32", "min": "v_min_i32", "mean": "v_add_u32"}[op]; vop0 = {"max": "v_max_i32", "min": "v_min_i32", "mean": "v_add_u32"}[op0]
        for k in range(1, 4): A(f"{vop0} v8, v8, v{8+k}\n{vop} v12, v12, v{12+k}")
        allred_lo(vop0, ["v8"]); allred_top(vop0, ["v8"], ["v9"])
        allred_lo(vop, ["v12"]); allred_top(vop, ["v12"], ["v13"])
        A(f"v_readfirstlane_b32 {sT0}, v12\nv_readfirstlane_b32 {sT1}, v8\ns_mul_i32 {sT0}, {sT0}, {mult}\ns_mul_i32 {sT1}, {sT1}, {mult}")
        if op == "mean": A(f"s_ashr_i32 {sT0}, {sT0}, 8")
        if op0 == "mean": A(f"s_ashr_i32 {sT1}, {sT1}, 8")
        A(f"s_sub_u32 {sT0}, {sT0}, {sT1}\ns_add_u32 {sT0}, {sT0}, 30000\ns_min_u32 {sT0}, {sT0}, 200000")
        A(f"L_dg2:\ns_memrealtime s[72:73]\ns_waitcnt lgkmcnt(0)\ns_sub_u32 {sT1}, s72, s{sST}\ns_cmp_lt_u32 {sT1}, {sT0}\ns_cbranch_scc1 L_dg2")
    A("L_end:\ns_endpgm")
    A('.section .rodata,"a"\n.p2align 6')
    A(f".amdhsa_kernel {KN}")
    nv4 = (NV+3)//4*4
    A(f".amdhsa_next_free_vgpr {nv4}\n.amdhsa_next_free_sgpr 102\n.amdhsa_accum_offset {nv4}")
    A(".amdhsa_group_segment_fixed_size 0\n.amdhsa_kernarg_size 96\n.amdhsa_user_sgpr_count 2")
    A(".amdhsa_user_sgpr_kernarg_segment_ptr 1\n.amdhsa_system_sgpr_workgroup_id_x 1")
    A(".amdhsa_float_denorm_mode_32 3\n.end_amdhsa_kernel")
    return A.finish()

if __name__ == "__main__":
    kw = eval("dict(" + (sys.argv[2] if len(sys.argv) > 2 else "") + ")")
    open(sys.argv[1], "w").write(gen(**kw))
```

```python
import sys, os
sys.path.insert(0, os.path.dirname(os.path.abspath(__file__)))
from asmlib import Asm
KN = "parallel_sum__mha_block_cached__glu_gated_reglu__decode_kernel"
HEADER = open("parallel_sum__mha_block_cached__glu_gated_reglu__decode.s.ref").read().split("; Override launch")[0]

DOC = '''; ---------------------------------------------------------------------------------------------------------------
; Hand-offs go through d_ws in 16-byte granules {data, tag}.  tag is derived from the epoch word found in d_ws and is left
; ---------------------------------------------------------------------------------------------------------------'''
HB = 32768*384
TB = 32*HB
WS_QF = 0x4000
WS_EP, WS_LS, WS_H3, WS_XX, WS_PR, WS_QS, WS_H1, WS_ST, WS_H2, WS_SIZE = 0, 0x8000, 0x10000, 0x20000, 0x40000, 0x80000, 0x100000, 0x200000, 0x280000, 0x400000
OOB = 0x40000000
SPIN = 1 << 20

def gen(NSEG=8, G=6, F=5, FH=6, RB=8, pace=6, deep=0, per=8, bs=2, fb=22, fbo=26, pre0=2, pre1=6, trig=16, op='sc1', nre=8, rev=1, cpf=1, wpf='hg', wpp='sc1', early=1, tlb=2, skip='', xmap=1, xd=(6,5,3,1,-1,-3,-5,-6), xp=(3,7,11,15,19,23,27), xd2=None, xb=22, xc=0, PI=(6,7,5,4,3,2,1,0), xs=0, np3=1, s3=6, dfirst=1, ab=0, psleep=4,
        spin=SPIN, local=1, lp="nt", pf=None, pfw="yh", pt='sc1', qp='', xl=None, p3s='sc1', p3l='sc1', sched=(4,3,3,3,0,0), ptpos=6, own=1, lsb=17, stamps=False, diag=None, diag2=None, stA=3, stB=29, diag3=0):
    A = Asm()
    NG = 32//NSEG; GS = 8*NSEG; BPS = 16//NSEG; LGS = GS.bit_length()-1
    PAIR = NSEG == 8
    TSTR = GS*4*3072
    assert G < RB and 24 % RB == 0 and NSEG == 8 and G == 6
    if diag2 or diag3: stamps = True
    timed = stamps or diag is not None
    L_OP = 0; L_W = 8192; L_YP = L_W + 15360; L_U = L_YP + 12800 + 64; L_QP = L_U + 128; L_QB = L_QP + 6400; L_ML = L_QB + 384*9
    L_CT = L_ML + 128; L_SC = L_CT + 64; L_SIZE = L_SC + 16384 + 256
    assert L_SC < 65536
    sW, sHQ, sS, sG, sMEM = "s3", "s4", "s5", "s6", "s7"
    KV_, WS_, TA_, TB_, TC_, X_ = "s[8:11]", "s[16:19]", "s[20:23]", "s[24:27]", "s[28:31]", "s[32:35]"
    mB1, mB0 = "s[12:13]", "s[14:15]"
    pX, pK, pV, pWQ, pWO, pWG, pWU, pWD, pOUT, pDBG, pWS = 36, 38, 40, 42, 44, 48, 50, 52, 54, 56, 58
    sOFF, sOFF0, sIB, sBLK, sLIN, sX, sC, sT0, sT1, sT2, sT3, sOWN = [f"s{r}" for r in range(60, 72)]
    sTAG = "s46"
    sST = 84
    vLANE, vKV, vA, vB = "v0", "v1", "v2", "v3"
    ACC, Q = 8, 32
    T = 44
    RING = 56
    PB = RING + 48
    NV = PB + 96
    t0, t1, t2, t3 = f"v{T}", f"v{T+1}", f"v{T+2}", f"v{T+3}"
    def stamp(i):
        if timed: A(f"s_memrealtime s[{sST+2*i}:{sST+2*i+1}]")
    def srd_hi(name, size):
        b = int(name[2:name.index(":")]); A(f"s_mov_b32 s{b+2}, {size}\ns_mov_b32 s{b+3}, 0x20000")
    def srd_lo(name, ptr):
        b = int(name[2:name.index(":")]); A(f"s_mov_b64 s[{b}:{b+1}], s[{ptr}:{ptr+1}]")
    def srd(name, ptr, size): srd_lo(name, ptr); srd_hi(name, size)
    DPP = "row_mask:0xf bank_mask:0xf"
    PATS = ("quad_perm:[1,0,3,2]", "quad_perm:[2,3,0,1]", "row_half_mirror", "row_mirror")
    def allred_lo(op, vs, n=4):
        for pat in PATS[:n]:
            for v in vs: A(f"{op}_dpp {v}, {v}, {v} {pat} {DPP}")
    def allred_top(op, vs, ts):
        for sw in ("v_permlane16_swap_b32", "v_permlane32_swap_b32"):
            for v, t in zip(vs, ts): A(f"v_mov_b32 {t}, {v}")
            for v, t in zip(vs, ts): A(f"{sw} {t}, {v}")
            for v, t in zip(vs, ts): A(f"{op} {v}, {v}, {t}")
    def redscat(base, n):
        for g in range(n):
            for e in range(4): A(f"v_permlane32_swap_b32 v{base+8*g+e}, v{base+8*g+e+4}")
        for g in range(n):
            for e in range(4): A(f"v_add_f32 v{base+8*g+e}, v{base+8*g+e}, v{base+8*g+e+4}")
        for g in range(n):
            for e in range(2): A(f"v_permlane16_swap_b32 v{base+8*g+e}, v{base+8*g+e+2}")
        for g in range(n):
            for e in range(2): A(f"v_add_f32 v{base+8*g+e}, v{base+8*g+e}, v{base+8*g+e+2}")
        for g in range(n):
            A(f"v_add_f32_dpp v{base+8*g}, v{base+8*g}, v{base+8*g} row_ror:8 row_mask:0xf bank_mask:0x3")
        for g in range(n):
            A(f"v_add_f32_dpp v{base+8*g}, v{base+8*g+1}, v{base+8*g+1} row_ror:8 row_mask:0xf bank_mask:0xc")
    def redscat_lo(bases):
        for S in bases:
            for e in range(4): A(f"v_add_f32_dpp v{S+e}, v{S+e}, v{S+e} row_half_mirror row_mask:0xf bank_mask:0x5")
        for S in bases:
            for e in range(4): A(f"v_add_f32_dpp v{S+e}, v{S+e+4}, v{S+e+4} row_half_mirror row_mask:0xf bank_mask:0xa")
        for S in bases:
            for e in range(4): A(f"v_add_f32_dpp v{S+e}, v{S+e}, v{S+e} quad_perm:[2,3,0,1] {DPP}")
        for S in bases:
            for e in range(2): A(f"v_cndmask_b32 v{S+e}, v{S+e}, v{S+e+2}, {mB1}")
        for S in bases:
            for e in range(2): A(f"v_add_f32_dpp v{S+e}, v{S+e}, v{S+e} quad_perm:[1,0,3,2] {DPP}")
        for S in bases: A(f"v_cndmask_b32 v{S}, v{S}, v{S+1}, {mB0}")
    def axpy(acc, data, n, pl, ph):
        for i in range(n):
            A(f"v_dot2c_f32_bf16 v{acc+2*i}, v{data+i}, {pl}\nv_dot2c_f32_bf16 v{acc+2*i+1}, v{data+i}, {ph}")
    def ld(reg, j): A(f"buffer_load_dwordx4 v[{reg}:{reg+3}], {vKV}, {KV_}, {sOFF} offen offset:{128*j} nt")
    uid = [0]
    PILUT = sum(p << (4*i) for i, p in enumerate(PI))
    assert PI[0] != 7 and sorted(PI) == list(range(8))
    sSTR, sOF5, sQF = "s74", "s75", "s83"
    J5 = PI.index(5); B5 = 16 + 2*J5
    assert J5 == 2
    FMASK = hex(sum(1 << (b % 32) for b in list(range(18, 33, 2)) + [B5+1]))
    def next_block(last):
        uid[0] += 1; u = uid[0]
        A(f"s_add_u32 {sIB}, {sIB}, 1\ns_sub_u32 {sT0}, {sIB}, {B5 if last else 10}\ns_cmp_gt_u32 {sT0}, 1\ns_cbranch_scc1 L_n5{u}")
        if last and rev:
            A(f"s_add_u32 {sOFF}, {sOF5}, {2*HB}\ns_mov_b32 {sSTR}, {2*TSTR}\ns_cmp_eq_u32 {sT0}, 0\ns_cbranch_scc1 L_nb{u}")
            A(f"s_add_u32 {sOFF}, {sOF5}, {14*TSTR}\ns_mov_b32 {sSTR}, {-2*TSTR}\ns_branch L_nb{u}\nL_n5{u}:")
        else:
            if last: A(f"s_xor_b32 {sT0}, {sT0}, 1")
            A(f"s_mul_i32 {sT0}, {sT0}, {2*HB}\ns_add_u32 {sOFF}, {sOF5}, {sT0}\ns_mov_b32 {sSTR}, {2*TSTR}\ns_branch L_nb{u}\nL_n5{u}:")
        A(f"s_and_b32 {sT0}, {sIB}, 1\ns_cbranch_scc1 L_nb{u}\ns_mov_b32 {sSTR}, {TSTR}")
        if not last:
            A(f"s_mul_i32 {sOFF}, {sIB}, {NG*HB//2}\ns_add_u32 {sOFF}, {sOFF}, {sOFF0}")
            A(f"s_cmp_lg_u32 {sIB}, 16\ns_cbranch_scc1 L_nb{u}")
            A(f"s_mov_b64 s[8:9], s[{pV}:{pV+1}]\ns_add_u32 {sOFF}, {sOFF0}, {PI[0]*NG*HB}")
        else:
            A(f"s_lshl_b32 {sT0}, {sIB}, 1\ns_lshr_b32 {sT0}, {hex(PILUT)}, {sT0}\ns_and_b32 {sT0}, {sT0}, 7")
            A(f"s_mul_i32 {sOFF}, {sT0}, {NG*HB}\ns_add_u32 {sOFF}, {sOFF}, {sOFF0}")
        A(f"L_nb{u}:")
    def lev(n, f):
        fr = f - int(f)
        return int(f) + (1 if int((n+1)*fr + 1e-9) != int(n*fr + 1e-9) else 0)
    cps = list(range(0, 24, per)) if fb else []
    assert all(c + G + 1 <= 23 for c in cps) and per > G
    PR_, sTHR, vPC, vPO, vPL, vPS = TC_, "s72", "v52", "v53", "v54", "v55"
    def slot(n, last=False):
        uid[0] += 1; u = uid[0]
        fi, fh = lev(n, F), lev(n, FH)
        assert fi <= fh <= G
        def cnt(x): return x - 1 + 2*sum(1 for c in cps if 0 < n - c <= x)
        m = n + G
        if m % 3 == 0:
            A(f"s_add_u32 {sOFF}, {sOFF}, {sSTR}")
            if m == 24: next_block(last)
        if fi < fh: A(f"s_cbranch_vccnz L_dp{u}\ns_waitcnt vmcnt({cnt(fi)})\nL_dp{u}:")
        A(f"s_waitcnt vmcnt({cnt(fh)})")
        ld(RING + 4*(m % RB), m % 3)
        if n - G - 1 in cps:
            if xd:
                A(f"v_readlane_b32 {sT1}, {vPO}, 32\ns_sub_u32 {sT1}, {sT1}, {sTAG}\ns_cmp_lt_u32 {sT1}, 33\ns_cselect_b32 {sTHR}, {sT1}, {sTHR}")
            A(f"v_sub_u32 {vPO}, {vPO}, {vPC}\nv_cmp_gt_u32 vcc, 64, {vPO}\ns_bcnt1_i32_b32 {sT0}, vcc_lo")
            A(f"s_cmp_gt_u32 {sT0}, {sTHR}\ns_cselect_b64 vcc, -1, 0")
            if stamps: A(f"s_and_b32 {sT0}, vcc_lo, 1\ns_add_u32 s47, s47, {sT0}")
            if last and deep: A(f"s_cmp_ge_u32 {sBLK}, {32-deep}\ns_cselect_b64 vcc, -1, vcc")
        if n in cps:
            A(f"v_add_u32 {vPC}, 1, {vPC}\nbuffer_store_dword {vPC}, {vPS}, {PR_}, 0 offen\nbuffer_load_dword {vPO}, {vPL}, {PR_}, 0 offen nt")
    def qk4(acc, data, j):
        for e in range(4):
            if j == 0 and e == 0: A(f"v_dot2_f32_bf16 v{acc}, v{data}, v{Q}, 0")
            else: A(f"v_dot2_f32_bf16 v{acc}, v{data+e}, v{Q+4*j+e}, v{acc}")

    A(HEADER.rstrip())
    A(f"; @launch grid=(256,1,1) block=(320,1,1) lds={L_SIZE}")
    A(DOC)
    A('.amdgcn_target "amdgcn-amd-amdhsa--gfx950"\n.text')
    A(f".globl {KN}\n.p2align 8\n.type {KN},@function\n{KN}:")
    A("s_cmp_ge_u32 s2, 256\ns_cbranch_scc1 L_end")
    A("s_load_dwordx16 s[36:51], s[0:1], 0\ns_load_dwordx8 s[52:59], s[0:1], 64")
    stamp(0)
    A(f"v_lshrrev_b32 v1, 6, v0\nv_and_b32 {vLANE}, 63, v0\nv_readfirstlane_b32 {sW}, v1\ns_setprio 3")
    A(f"v_mov_b32 v8, 0\nds_write_b32 v8, v8 offset:{L_CT}")
    order = []
    for v in range(8):
        if v not in order: order += [v, v ^ xmap] if (v & 1) == 0 or (xmap & 1) == 0 else [v ^ xmap, v]
    lut = sum(order.index(v) << (4*v) for v in range(8))
    A(f"s_and_b32 {sX}, s2, 7\ns_lshl_b32 {sX}, {sX}, 2\ns_lshr_b32 {sX}, {hex(lut)}, {sX}\ns_and_b32 {sX}, {sX}, 7")
    A(f"s_lshr_b32 {sC}, s2, 3\ns_lshl_b32 {sT0}, {sX}, 5\ns_add_u32 {sLIN}, {sT0}, {sC}")
    A(f"s_lshr_b32 {sG}, {sLIN}, {LGS}\ns_and_b32 {sMEM}, {sLIN}, {GS-1}\ns_and_b32 {sS}, {sMEM}, 7")
    A(f"s_lshr_b32 {sT0}, {sMEM}, 3\ns_mul_i32 {sHQ}, {sT0}, {NG}\ns_add_u32 {sHQ}, {sHQ}, {sG}")
    A(f"s_sub_u32 {sW}, {sW}, 1\ns_cselect_b32 {sW}, 4, {sW}")
    A(f"v_lshrrev_b32 {vA}, 3, {vLANE}\nv_and_b32 {vB}, 7, {vLANE}")
    A(f"v_lshlrev_b32 v7, 4, {vB}")
    A(f"v_mov_b32 v4, 384\nv_mad_u32_u24 {vKV}, {vA}, v4, v7")
    A(f"v_mov_b32 v4, 12288\nv_mad_u32_u24 v4, {vA}, v4, v7")
    A(f"v_mov_b32 v5, 3072\nv_mad_u32_u24 v5, {vA}, v5, v7")
    A(f"v_mov_b32 v6, {OOB}\nv_cmp_gt_u32 vcc, 6, {vB}\nv_cndmask_b32 v5, v6, v5, vcc")
    A(f"v_lshlrev_b32 v6, 1, {vA}\nv_lshlrev_b32 v7, 4, {vLANE}")
    A(f"s_mul_i32 {sT0}, {sS}, 80\ns_lshl_b32 {sT1}, {sW}, 4\ns_add_u32 {sT0}, {sT0}, {sT1}")
    A(f"s_mul_i32 {sT1}, {sT0}, 12288\ns_mul_i32 {sT2}, {sHQ}, 384\ns_add_u32 {sT1}, {sT1}, {sT2}")
    A(f"s_mul_i32 {sT2}, {sT0}, 3072\ns_lshr_b32 {sT3}, {sLIN}, 3\ns_mul_i32 {sT3}, {sT3}, 96\ns_add_u32 {sT2}, {sT2}, {sT3}")
    A(f"s_lshl_b32 {sT0}, {sT0}, 1")
    if cpf == 2:
        KNs = KN
        A(f"s_cmp_lg_u32 {sW}, 4\ns_cbranch_scc1 L_nocp\ns_getpc_b64 s[74:75]\nL_pc2:\ns_lshl_b32 s76, {sC}, 10\nv_add_u32 v{PB}, s76, v7\nv_min_u32 v{PB}, L_end-{KN}-16, v{PB}")
        A(f"s_sub_u32 s74, s74, L_pc2-{KN}\ns_subb_u32 s75, s75, 0\nv_mov_b32 v{PB+1}, s75\nv_add_co_u32 v{PB}, vcc, s74, v{PB}\nv_addc_co_u32 v{PB+1}, vcc, 0, v{PB+1}, vcc")
        A(f"global_load_dword v{PB+2}, v[{PB}:{PB+1}], off\nL_nocp:")
    srd_hi(X_, 1280); srd_hi(TA_, 0 if "W" in skip else 640*12288); srd_hi(TB_, 0 if "G" in skip else 640*3072); srd_hi(TC_, 0 if "G" in skip else 640*3072); srd_hi(WS_, WS_SIZE); srd_hi(KV_, TB)
    A("s_waitcnt lgkmcnt(0)")
    srd_lo(X_, pX)
    def code_touch(lab, reg):
        A("; read one KiB of this kernel's code so that later instruction fetches find it in the caches")
        A(f"s_getpc_b64 s[74:75]\n{lab}:\ns_lshl_b32 s76, {sC}, 10\nv_add_u32 v{reg}, s76, v7\nv_min_u32 v{reg}, L_end-{KN}-16, v{reg}")
        A(f"s_sub_u32 s74, s74, {lab}-{KN}\ns_subb_u32 s75, s75, 0\nv_mov_b32 v{reg+1}, s75\nv_add_co_u32 v{reg}, vcc, s74, v{reg}\nv_addc_co_u32 v{reg+1}, vcc, 0, v{reg+1}, vcc")
        A(f"global_load_dword v{reg+2}, v[{reg}:{reg+1}], off")
    def page_touch():
        A("; scalar reads of one word per 2 MiB page my peers will stream (and of wo, out): address translations are ready in time")
        A(f"s_bfe_u32 s76, {sC}, {(3<<16)|1}\ns_lshl_b32 s77, s76, 2\ns_add_u32 s77, s77, {sG}\ns_mul_i32 s77, s77, {HB}")
        A(f"s_bitcmp1_b32 {sC}, 4\ns_cselect_b64 s[74:75], s[{pV}:{pV+1}], s[{pK}:{pK+1}]\ns_cselect_b64 s[80:81], s[{pOUT}:{pOUT+1}], s[{pWO}:{pWO+1}]")
        A(f"s_cselect_b32 s76, 0, s76\ns_and_b32 s76, s76, 3\ns_lshl_b32 s76, s76, 21\ns_add_u32 s80, s80, s76\ns_addc_u32 s81, s81, 0")
        A(f"s_add_u32 s74, s74, s77\ns_addc_u32 s75, s75, 0\ns_bitcmp1_b32 {sC}, 0\ns_cbranch_scc1 L_pt1")
        for k in range(4):
            A(f"s_load_dword s{76+k}, s[74:75], 0x0")
            if k < 3: A(f"s_add_u32 s74, s74, {1<<21}\ns_addc_u32 s75, s75, 0")
        A("s_branch L_pt2\nL_pt1:")
        for k, d in enumerate((4 << 21, 1 << 21, (1 << 21) - 4)):
            A(f"s_add_u32 s74, s74, {d}\ns_addc_u32 s75, s75, 0\ns_load_dword s{76+k}, s[74:75], 0x0")
        A("s_load_dword s79, s[80:81], 0x0\nL_pt2:")
        A(f"s_bitcmp1_b32 {sC}, 4\ns_cselect_b64 s[74:75], s[{pV}:{pV+1}], s[{pK}:{pK+1}]\ns_and_b32 s82, {sC}, 7\ns_lshl_b32 s82, s82, 21\ns_min_u32 s82, s82, {HB-4}")
        A(f"s_xor_b32 s83, {sG}, 2\ns_add_u32 s83, s83, 20\ns_mul_i32 s83, s83, {HB}\ns_add_u32 s82, s82, s83\ns_add_u32 s74, s74, s82\ns_addc_u32 s75, s75, 0\ns_load_dword s82, s[74:75], 0x0")
    def touches():
        if cpf == 1: code_touch("L_pc1", PB+88)
        if wpf:
            A("; first touch of the hand-off lines this workgroup writes later")
            for ch, base, sh, n in (("h", WS_H1, 11, 2), ("y", WS_H2, 12, 4), ("g", WS_QS + 1024, 11, 1), ("q", WS_QS, 11, 1)):
                if ch in wpf:
                    A(f"s_lshl_b32 {sT0}, {sLIN}, {sh}\ns_add_u32 {sT0}, {sT0}, {base}")
                    for i in range(n): A(f"buffer_load_dword v{PB+92}, v7, {WS_}, {sT0} offen offset:{1024*i}")
            small = [(WS_LS, 7, 0), (WS_XX, 8, 0), (WS_XX, 8, 128), (WS_H3, 7, 0), (WS_QF, 6, 0)]
            sel = [e for e, ch in zip(small, "lxx3f") if ch in wpf]
            if sel or "p" in wpf:
                A(f"v_mov_b32 v{PB+93}, {OOB}")
                for i, (base, sh, off) in enumerate(sel):
                    A(f"s_lshl_b32 {sT0}, {sLIN}, {sh}\ns_add_u32 {sT0}, {sT0}, {base+off}\nv_writelane_b32 v{PB+93}, {sT0}, {i}")
                if "p" in wpf:
                    A(f"s_lshr_b32 {sT0}, {sLIN}, 3\ns_mul_i32 {sT0}, {sT0}, 4224\ns_add_u32 {sT0}, {sT0}, {WS_PR}\nv_writelane_b32 v{PB+93}, {sT0}, 8")
                    A(f"s_add_u32 {sT0}, {sT0}, 128\nv_writelane_b32 v{PB+93}, {sT0}, 9\ns_mul_i32 {sT0}, {sX}, 4224\ns_add_u32 {sT0}, {sT0}, {WS_PR+0x30000}\nv_writelane_b32 v{PB+93}, {sT0}, 10")
                A(f"buffer_load_dword v{PB+92}, v{PB+93}, {WS_}, 0 offen {wpp}")
    XR, WD, WA = RING + 40, RING, ACC
    A(f"buffer_load_dwordx4 v[{XR}:{XR+3}], v7, {X_}, 0 offen")
    A(f"buffer_load_dwordx4 v[{XR+4}:{XR+7}], v7, {X_}, 0 offen offset:1024")
    A(f"buffer_load_ushort v{T+10}, v6, {X_}, {sT0} offen")
    A(f"buffer_load_ushort v{T+11}, v6, {X_}, {sT0} offen offset:16")
    srd_lo(TA_, pWQ); srd_lo(TB_, pWG); srd_lo(TC_, pWU)
    A(f"s_load_dword {sTAG}, s[{pWS}:{pWS+1}], {WS_EP}")
    if "B" not in skip: A("s_barrier")
    for t in range(2):
        for j in range(3):
            A(f"buffer_load_dwordx4 v[{WD+20*t+4*j}:{WD+20*t+4*j+3}], v4, {TA_}, {sT1} offen offset:{128*j} nt")
        A(f"buffer_load_dwordx4 v[{WD+20*t+12}:{WD+20*t+15}], v5, {TB_}, {sT2} offen nt")
        A(f"buffer_load_dwordx4 v[{WD+20*t+16}:{WD+20*t+19}], v5, {TC_}, {sT2} offen nt")
        if t == 0: A(f"s_add_u32 {sT1}, {sT1}, {8*12288}\ns_add_u32 {sT2}, {sT2}, {8*3072}")
    srd_lo(KV_, pK); srd_lo(WS_, pWS)
    A(f"s_lshl_b32 {sT0}, {sMEM}, 2\ns_add_u32 {sT0}, {sT0}, {sW}\ns_mul_i32 {sT0}, {sT0}, 3072")
    A(f"s_mul_i32 {sOFF0}, {sG}, {HB}\ns_add_u32 {sOFF0}, {sOFF0}, {sT0}\ns_mov_b32 {sOFF}, {sOFF0}")
    A(f"s_mov_b32 s12, 0xcccccccc\ns_mov_b32 s13, 0xcccccccc\ns_mov_b32 s14, 0xaaaaaaaa\ns_mov_b32 s15, 0xaaaaaaaa")
    A(f"s_and_b32 {sOWN}, {sX}, 1\ns_xor_b32 {sOWN}, {sOWN}, {own}")
    if early:
        A(f"s_cmp_lg_u32 {sW}, {4 if early == 1 else 3}\ns_cbranch_scc1 L_not"); touches()
        if tlb == 1: page_touch()
        A("L_not:")
    A(f"s_cmp_eq_u32 {sW}, 4\ns_cbranch_scc1 L_ln\ns_setprio 1\nL_ln:\ns_waitcnt vmcnt(10) lgkmcnt(0)")
    A(f"s_mul_i32 {sTAG}, {sTAG}, 1664525\ns_add_u32 {sTAG}, {sTAG}, 1013904223")
    XF = WA
    for i in range(8):
        A(f"v_lshlrev_b32 v{XF+2*i}, 16, v{XR+i}\nv_and_b32 v{XF+2*i+1}, 0xffff0000, v{XR+i}")
    l0, l1, l2, l3 = "v24", "v25", "v26", "v27"
    A(f"v_add_f32 {l0}, v{XF}, v{XF+1}\nv_add_f32 {l1}, v{XF+2}, v{XF+3}")
    for i in range(4, 16, 2): A(f"v_add_f32 {l0}, {l0}, v{XF+i}\nv_add_f32 {l1}, {l1}, v{XF+i+1}")
    A(f"v_add_f32 {l0}, {l0}, {l1}")
    allred_lo("v_add_f32", [l0]); allred_top("v_add_f32", [l0], [l1])
    A(f"v_mul_f32 {l0}, 0x3acccccd, {l0}")
    for i in range(16): A(f"v_sub_f32 v{XF+i}, v{XF+i}, {l0}")
    A(f"v_mul_f32 {l1}, v{XF}, v{XF}\nv_mul_f32 {l2}, v{XF+8}, v{XF+8}")
    for i in range(1, 8): A(f"v_fmac_f32 {l1}, v{XF+i}, v{XF+i}\nv_fmac_f32 {l2}, v{XF+8+i}, v{XF+8+i}")
    A(f"v_cmp_gt_u32 vcc, 16, {vLANE}\nv_cndmask_b32 {l2}, 0, {l2}, vcc\nv_add_f32 {l1}, {l1}, {l2}")
    allred_lo("v_add_f32", [l1]); allred_top("v_add_f32", [l1], [l2])
    A(f"v_mul_f32 {l1}, 0x3acccccd, {l1}")
    A(f"v_readfirstlane_b32 {sT0}, {l0}\nv_readfirstlane_b32 {sT1}, {l1}\ns_mul_i32 {sT0}, {sT0}, 0x9E3779B1\ns_add_u32 {sT0}, {sT0}, {sT1}")
    A(f"s_lshl_b32 {sT0}, {sT0}, 2\ns_add_u32 {sTAG}, {sTAG}, {sT0}")
    A(f"v_cvt_pk_bf16_f32 {l0}, 0, {l0}\nv_cvt_pk_bf16_f32 {l1}, 0, {l1}")
    A(f"v_add_f32 {l1}, 0x3727c5ac, {l1}\nv_cvt_pk_bf16_f32 {l1}, 0, {l1}\nv_sqrt_f32 {l1}, {l1}")
    A(f"v_cvt_pk_bf16_f32 {l1}, 0, {l1}\nv_rcp_f32 {l2}, {l1}")
    for t in range(2):
        xr = f"v{T+10+t}"
        A(f"v_lshlrev_b32 {xr}, 16, {xr}\nv_sub_f32 {xr}, {xr}, {l0}\nv_cvt_pk_bf16_f32 {xr}, 0, {xr}")
        A(f"v_mul_f32 {l3}, {xr}, {l2}\nv_fma_f32 {xr}, -{l3}, {l1}, {xr}\nv_fma_f32 {xr}, {xr}, {l2}, {l3}")
        A(f"v_cvt_pk_bf16_f32 v{T+6+2*t}, {xr}, 0\nv_cvt_pk_bf16_f32 v{T+7+2*t}, 0, {xr}")
    for i in range(40): A(f"v_mov_b32 v{WA+i}, 0")
    stamp(1)
    sD = [f"s{r}" for r in range(74, 80)]; sL = ["s80", "s81", "s82"]
    def dma_setup():
        srd(TA_, pWO, 6144*1280); srd(TB_, pWD, 1536*1280)
        A(f"s_lshl_b32 {sT2}, {sS}, 3\ns_lshr_b32 {sT1}, {sC}, 3\ns_lshl_b32 {sT1}, {sT1}, 1\ns_add_u32 {sT2}, {sT2}, {sT1}")
        A(f"s_mul_i32 {sT1}, {sG}, 192\ns_add_u32 {sT2}, {sT2}, {sT1}")
        A(f"s_lshl_b32 {sT0}, {sW}, 1\ns_add_u32 {sT0}, {sT0}, {sOWN}\ns_lshl_b32 {sT0}, {sT0}, 2\ns_lshr_b32 {sT0}, {hex(PILUT)}, {sT0}\ns_and_b32 {sT0}, {sT0}, 7\ns_mul_i32 {sT0}, {sT0}, {NG*192}\ns_add_u32 {sT0}, {sT0}, {sT2}")
        A(f"s_mul_i32 {sL[0]}, {sT0}, 1280\ns_add_u32 {sL[1]}, {sL[0]}, {64*1280}\ns_add_u32 {sL[2]}, {sL[0]}, {128*1280}")
        A(f"s_lshl_b32 {sT0}, {sW}, 6\ns_add_u32 {sT0}, {sT0}, {sT2}\ns_add_u32 {sT0}, {sT0}, {PI[7]*NG*192}\ns_mul_i32 {sD[2]}, {sT0}, 1280\ns_mul_i32 {sD[3]}, {sW}, 2560")
        A(f"s_mul_i32 {sT0}, {sLIN}, 7680\ns_lshl_b32 {sD[5]}, {sW}, 11\ns_add_u32 {sD[4]}, {sT0}, {sD[5]}")
    def w(paced):
        if paced: A(f"s_waitcnt vmcnt({pace-1})")
    def op_pb(n):
        def f(paced):
            if n and n % 3 == 0: A(f"s_add_u32 {sOFF}, {sOFF}, {TSTR}")
            w(paced); ld(PB + 4*n, n % 3)
        return f
    def op_wo(jj, i, off=0, base=7680):
        def f(paced):
            if i == 0: A(f"s_add_u32 m0, {sD[off+1]}, {L_W+base+2560*jj}")
            if i == 2: A("s_mov_b32 exec_hi, 0")
            w(paced); A(f"buffer_load_dwordx4 v7, {TA_}, {sD[off]} offen offset:{1024*i} nt lds")
            if i == 2: A(f"s_mov_b32 exec_hi, -1\ns_add_u32 {sD[off]}, {sD[off]}, {64*1280}")
        return f
    def op_wd(i):
        def f(paced):
            if i == 0: A(f"s_add_u32 m0, {sD[5]}, {L_W}")
            else: A(f"s_cmp_eq_u32 {sW}, 3\ns_cselect_b32 exec_hi, 0, -1")
            w(paced); A(f"buffer_load_dwordx4 v7, {TB_}, {sD[4]} offen offset:{1024*i} nt lds")
            if i: A("s_mov_b32 exec_hi, -1")
        return f
    def op_s4(paced):
        A("; rows of the last segment")
        A(f"s_cmp_eq_u32 {sW}, 3\ns_cbranch_scc1 L_nos4")
        for i in range(3): op_wo(0, i, 2, 7680)(paced)
        A("L_nos4:")
    dma = [op_wd(0), op_wd(1), op_s4]
    pbs = [op_pb(n) for n in range(24)]
    ops = dma + pbs if dfirst else pbs + dma
    assert pre0 <= 2 or not dfirst
    dma_setup()
    A(f"s_waitcnt vmcnt(5)\ns_cmp_eq_u32 {sW}, 4\ns_cbranch_scc1 L_nopre0")
    for n in range(pre0): ops[n](False)
    A("L_nopre0:")
    axpy(WA, WD, 20, f"v{T+6}", f"v{T+7}")
    A(f"s_cmp_eq_u32 {sW}, 4\ns_cbranch_scc1 L_nopre1\ns_waitcnt vmcnt({pre0})")
    for n in range(pre0, pre1): ops[n](False)
    A("s_branch L_pre2\nL_nopre1:\ns_waitcnt vmcnt(0)\nL_pre2:")
    axpy(WA, WD+20, 20, f"v{T+8}", f"v{T+9}")
    redscat(WA, 5)
    A(f"s_mul_i32 {sT0}, {sW}, 1280\nv_lshl_add_u32 v4, {vLANE}, 2, {sT0}")
    for k in range(5): A(f"ds_write_b32 v4, v{WA+8*k} offset:{L_QP+256*k}")
    A(f"v_mov_b32 v5, 0\nv_mov_b32 v6, 1\ns_mov_b64 exec, 1\nds_add_u32 v5, v6 offset:{L_CT}\ns_mov_b64 exec, -1")
    stamp(2)
    if ab: A("s_barrier")
    A(f"s_cmp_eq_u32 {sW}, 4\ns_cbranch_scc1 L_svc")
    for n in range(pre1, len(ops)):
        ops[n](True)
        if n == trig: A(f"v_mov_b32 v6, 64\ns_mov_b64 exec, 1\nds_add_u32 v5, v6 offset:{L_CT}\ns_mov_b64 exec, -1")
    A(f"s_mov_b32 {sIB}, 1")
    for m in range(G):
        if m % 3 == 0: A(f"s_add_u32 {sOFF}, {sOFF}, {TSTR}")
        A(f"s_waitcnt vmcnt({pace-1})"); ld(RING + 4*m, m % 3)
    vQA, vSA = "v4", "v5"
    A(f"v_lshlrev_b32 {vQA}, 4, {vB}\nv_add_u32 {vQA}, {L_QB}, {vQA}")
    A(f"s_lshl_b32 {sT0}, {sW}, 12\ns_add_u32 {sT0}, {sT0}, {L_SC}\nv_lshl_add_u32 {vSA}, {vLANE}, 2, {sT0}")
    A(f"s_lshl_b32 {sT0}, {sX}, 2\ns_add_u32 {sT0}, {sT0}, {sW}\ns_mul_i32 {sT0}, {sT0}, 4224\ns_add_u32 {sT0}, {sT0}, {WS_PR}")
    A(f"s_add_u32 s28, s{pWS}, {sT0}\ns_addc_u32 s29, s{pWS+1}, 0\ns_mov_b32 s30, {132 if xd else 128}")
    A(f"v_lshlrev_b32 {vPL}, 2, {vLANE}\nv_mov_b32 {vPS}, 0x1000\nv_cmp_eq_u32 vcc, {sC}, {vLANE}\nv_cndmask_b32 {vPS}, {vPS}, {vPL}, vcc\nv_mov_b32 {vPC}, {sTAG}")
    A(f"s_getreg_b32 {sTHR}, hwreg(HW_REG_XCC_ID)\ns_bitcmp1_b32 {sTHR}, 0\ns_cselect_b32 {sTHR}, {fbo}, {fb}")
    A(f"s_add_u32 {sT0}, {sW}, {sOWN}\ns_cmp_eq_u32 {sT0}, 4\ns_cselect_b32 s22, 0, s22\ns_cselect_b32 {sL[0]}, 0, {sL[0]}\ns_cselect_b32 {sL[1]}, 0, {sL[1]}\ns_cselect_b32 {sL[2]}, 0, {sL[2]}")
    A(f"s_lshr_b32 {sT0}, {sG}, 1\ns_sub_u32 {sQF}, 11, {sT0}\ns_mul_i32 {sT0}, {sT0}, {TSTR - 2*HB}\ns_add_u32 {sOF5}, {sOFF0}, {sT0}\ns_add_u32 {sOF5}, {sOF5}, {20*HB}")
    A(f"s_mov_b32 {sSTR}, {TSTR}\ns_mov_b64 vcc, 0\ns_mov_b32 s47, 0")
    stamp(3)
    A("s_barrier")
    for j in range(3): A(f"ds_read_b128 v[{Q+4*j}:{Q+4*j+3}], {vQA} offset:{128*j}")
    A("s_waitcnt lgkmcnt(0)")
    stamp(4)
    SA, R, RT, S2 = ACC, ACC + 2, ACC + 6, ACC + 8
    def k_after_tile(t):
        A(f"v_add_f32_dpp v{R+(t&3)}, v{SA+(t&1)}, v{SA+(t&1)} row_half_mirror row_mask:0xf bank_mask:{'0xa' if t >= 4 else '0x5'}")
    def k_stage2(e): A(f"v_add_f32_dpp v{R+e}, v{R+e}, v{R+e} quad_perm:[2,3,0,1] {DPP}")
    def k_fin(which):
        if which == 0:
            k_after_tile(7); k_stage2(3)
            A(f"v_cndmask_b32 v{RT+1}, v{R+1}, v{R+3}, {mB1}")
        else:
            A(f"v_add_f32_dpp v{RT+1}, v{RT+1}, v{RT+1} quad_perm:[1,0,3,2] {DPP}\nv_cndmask_b32 v{RT}, v{RT}, v{RT+1}, {mB0}")
            A(f"ds_write_b32 {vSA}, v{RT}\nv_add_u32 {vSA}, 256, {vSA}")
    def k_body(first):
        for n in range(24):
            t, j = n//3, n % 3
            slot(n)
            if not first:
                if n < 2: k_fin(n)
                if n == 0: A("s_waitcnt lgkmcnt(0)")
                if n == bs: A("s_waitcnt lgkmcnt(0)\ns_barrier")
            else: qk4(S2 + t, PB + 4*n, j)
            if j == 0 and t >= 1: k_after_tile(t-1)
            if j == 1 and t >= 5: k_stage2(t-5)
            if n == 23: A(f"v_cndmask_b32 v{RT}, v{R}, v{R+2}, {mB1}")
            if n == 20: A(f"s_add_u32 {sBLK}, {sBLK}, 1\ns_lshr_b32 {sT0}, {sBLK}, 1\ns_cmp_eq_u32 {sBLK}, {sQF}\ns_cselect_b32 {sT0}, 8, {sT0}\ns_mul_i32 {sT0}, {sT0}, 384\nv_add_u32 v51, {sT0}, {vQA}")
            if "c" not in skip: qk4(SA + (t & 1), RING + 4*(n % RB), j)
            if n == 23: A(f"v_add_f32_dpp v{RT}, v{RT}, v{RT} quad_perm:[1,0,3,2] {DPP}")
            if t == 7: A(f"ds_read_b128 v[{Q+4*j}:{Q+4*j+3}], v51 offset:{128*j}")
    A(f"s_mov_b32 {sBLK}, 1")
    k_body(True)
    redscat_lo([S2])
    A(f"ds_write_b32 {vSA}, v{S2}\nv_add_u32 {vSA}, 256, {vSA}")
    A("L_k:")
    k_body(False)
    def stab(t): A(f"s_cmp_lg_u32 {sBLK}, {stA}\ns_cbranch_scc1 L_st1{t}\ns_memrealtime s[42:43]\nL_st1{t}:\ns_cmp_lg_u32 {sBLK}, {stB}\ns_cbranch_scc1 L_st2{t}\ns_memrealtime s[48:49]\nL_st2{t}:")
    def trc():
        if diag3: A(f"s_memrealtime s[100:101]\ns_waitcnt lgkmcnt(0)\ns_mov_b32 m0, {sBLK}\nv_writelane_b32 v199, s100, m0")
    trc()
    if stamps: stab("k")
    A(f"s_cmp_lt_u32 {sBLK}, 16\ns_cbranch_scc1 L_k")
    A("; V phase")
    if stamps: A("s_memrealtime s[50:51]")
    vP, vPN, pl, ph, vOA, RV = "v44", "v45", "v46", "v47", "v4", Q
    k_fin(0); k_fin(1)
    A(f"v_subrev_u32 {vSA}, 4096, {vSA}\nds_read_b32 {vPN}, {vSA} offset:{512*PI[0]}")
    A(f"s_lshl_b32 {sT0}, {sW}, 10\ns_add_u32 {sT0}, {sT0}, {L_OP}\nv_add_u32 {vOA}, {sT0}, v7\ns_mov_b32 s73, 0\ns_waitcnt lgkmcnt(0)")
    for i in range(24): A(f"v_mov_b32 v{ACC+i}, 0")
    def v_a(g, zero=True):
        b = ACC + 8*g
        for e in range(4): A(f"v_permlane32_swap_b32 v{b+e}, v{b+e+4}")
        for e in range(4): A(f"v_add_f32 v{RV+4*g+e}, v{b+e}, v{b+e+4}")
        if zero:
            for e in range(8): A(f"v_mov_b32 v{b+e}, 0")
    def v_b(gs):
        for g in gs:
            for e in range(2): A(f"v_permlane16_swap_b32 v{RV+4*g+e}, v{RV+4*g+e+2}")
        for g in gs:
            for e in range(2): A(f"v_add_f32 v{RV+4*g+e}, v{RV+4*g+e}, v{RV+4*g+e+2}")
        for g in gs: A(f"v_add_f32_dpp v{48+g}, v{RV+4*g}, v{RV+4*g} row_ror:8 row_mask:0xf bank_mask:0x3")
        for g in gs: A(f"v_add_f32_dpp v{48+g}, v{RV+4*g+1}, v{RV+4*g+1} row_ror:8 row_mask:0xf bank_mask:0xc")
    def v_out(): A(f"ds_write_b96 {vOA}, v[48:50]\nv_xor_b32 {vOA}, 4096, {vOA}")
    def cond(lab, code): A(f"s_cmp_eq_u32 s73, 0\ns_cbranch_scc1 {lab}"); code(); A(f"{lab}:")
    def v_comp(n):
        if n % 3 == 0:
            t = n//3
            A(f"v_mov_b32_dpp {pl}, {vP} row_newbcast:{t} row_mask:0xf bank_mask:0x3")
            A(f"v_mov_b32_dpp {pl}, {vP} row_newbcast:{8+t} row_mask:0xf bank_mask:0xc")
            A(f"v_lshlrev_b32 {ph}, 16, {pl}")
        if "c" not in skip: axpy(ACC + 8*(n % 3), RING + 4*(n % RB), 4, pl, ph)
    A("L_v:")
    for n in range(24):
        if n == 24 - G: A(f"s_cmp_eq_u32 {sBLK}, 31\ns_cbranch_scc1 L_vend")
        slot(n, True)
        if n == 0: A(f"s_waitcnt lgkmcnt(0)\nv_mov_b32 {vP}, {vPN}"); cond("L_c0", lambda: v_a(2))
        if n == 1: cond("L_c1", lambda: (v_b([2]), v_out()))
        if n == bs: A("s_waitcnt lgkmcnt(0)\ns_barrier")
        if n == 20:
            A(f"s_add_u32 {sT1}, {sBLK}, 1\ns_bitcmp1_b32 {FMASK}, {sT1}\ns_cselect_b32 s73, 1, 0\ns_and_b32 {sT0}, {sT1}, 1")
            A(f"s_and_b32 {sT1}, {sT1}, 14\ns_lshl_b32 {sT1}, {sT1}, 1\ns_lshr_b32 {sT1}, {hex(PILUT)}, {sT1}\ns_and_b32 {sT1}, {sT1}, 7")
            A(f"s_cmp_eq_u32 {sT1}, 5\ns_cselect_b32 {sT2}, 1, 0\ns_xor_b32 {sT0}, {sT0}, {sT2}")
            A(f"s_lshl_b32 {sT1}, {sT1}, 1\ns_add_u32 {sT1}, {sT1}, {sT0}\ns_lshl_b32 {sT1}, {sT1}, 8\nv_add_u32 v51, {sT1}, {vSA}\nds_read_b32 {vPN}, v51")
        v_comp(n)
        if n == 21: cond("L_c21", lambda: (v_a(0), v_b([0])))
        if n == 22: cond("L_c22", lambda: (v_a(1), v_b([1])))
    A(f"s_add_u32 {sBLK}, {sBLK}, 1")
    trc()
    if stamps: stab("v"); A(f"; SSBYTES={(stB-stA)*8*3072}")
    A("s_branch L_v")
    A("L_vend:")
    W4, W1, YA, UF = PB, PB + 24, PB + 32, PB + 44
    late = []
    for r in range(6):
        late.append(f"buffer_load_dwordx4 v[{W4+4*r}:{W4+4*r+3}], v7, {TA_}, {sL[r//2]} offen offset:{1280*(r%2)} nt")
        late.append(f"buffer_load_dword v{W1+r}, {vPL}, {TA_}, {sL[r//2]} offen offset:{1024+1280*(r%2)} nt")
    late.insert(ptpos, f"buffer_load_dword v{W1+6}, v7, {WS_}, {sT1} offen {pt}")
    assert sum(sched) == 13 and len(sched) == G
    A(f"s_lshl_b32 {sT1}, {sLIN}, 12\ns_lshl_b32 {sT0}, {sW}, 10\ns_add_u32 {sT1}, {sT1}, {sT0}\ns_add_u32 {sT1}, {sT1}, {WS_H2}")
    done = 0
    for n in range(24 - G, 24):
        A("; younger than ring load n: ring loads n+1..23, progress accesses issued behind slots >= n-G, late loads so far")
        A(f"s_waitcnt vmcnt({23 - n + 2*sum(1 for c in cps if n - G <= c < 24 - G) + done})")
        for i in range(sched[n - 24 + G]): A(late[done]); done += 1
        v_comp(n)
        if n == 23: stamp(5)
        if n >= 21: v_a(n - 21, False); v_b([n - 21])
    v_out()
    A(f"s_lshl_b32 {sT0}, {sW}, 4\nv_mov_b32 v8, {sT0}\ns_waitcnt lgkmcnt(0)\ns_barrier")
    stamp(6)
    LW = PB + 56
    A(f"ds_read_b128 v[12:15], v8 offset:{L_U}")
    A(f"s_mul_i32 {sT0}, {sW}, 640\nv_mul_u32_u24 v11, 80, {vA}\nv_mad_u32_u24 v11, {vB}, 12, v11\nv_add_u32 v11, {sT0}, v11\nv_lshrrev_b32 v40, 1, v11")
    for r in range(6):
        for e in range(3): A(f"ds_read_u16 v{LW+10+3*r+e}, v40 offset:{L_W+7680+1280*r+2*e}")
        if r == 3: A("s_waitcnt lgkmcnt(0)")
    A(f"s_mul_i32 {sT0}, {sW}, 2560\nv_lshl_add_u32 v9, {vLANE}, 5, {sT0}\nv_lshl_add_u32 v10, {vLANE}, 3, {sT0}\nv_add_u32 v11, {L_YP}, v11")
    A(f"v_mov_b32 v19, {sTAG}")
    A("v_mov_b32 v8, 0\nv_mov_b32 v41, 0x10000")
    for i in range(10): A(f"v_mov_b32 v{YA+i}, 0")
    for p in range(3):
        A(f"v_and_b32 v{UF+4*p}, 0xffff, v{12+p}\nv_lshlrev_b32 v{UF+4*p+1}, 16, v{12+p}\nv_lshrrev_b32 v{UF+4*p+2}, 16, v{12+p}\nv_and_b32 v{UF+4*p+3}, 0xffff0000, v{12+p}")
    A(f"v_readfirstlane_b32 {sT3}, v15\ns_waitcnt lgkmcnt(0)")
    for p in range(3):
        for e in range(3): A(f"v_lshl_or_b32 v{LW+3*p+e}, v{LW+10+6*p+3+e}, 16, v{LW+10+6*p+e}")
    for r in range(6):
        pos = [i for i, l in enumerate(late) if l.startswith(f"buffer_load_dword v{W1+r},")][0]
        A(f"s_waitcnt vmcnt({12-pos})")
        axpy(YA, W4 + 4*r, 4, f"v{UF+2*r}", f"v{UF+2*r+1}"); axpy(YA + 8, W1 + r, 1, f"v{UF+2*r}", f"v{UF+2*r+1}")
    A(f"ds_write_b128 v9, v[{YA}:{YA+3}] offset:{L_YP}\nds_write_b128 v9, v[{YA+4}:{YA+7}] offset:{L_YP+16}")
    A(f"ds_write_b64 v10, v[{YA+8}:{YA+9}] offset:{L_YP+2048}\ns_mov_b64 exec, 1\nds_add_u32 v8, v41 offset:{L_CT}\ns_mov_b64 exec, -1")
    A(f"L_wy:\nds_read_b32 v41, v8 offset:{L_CT}\ns_waitcnt lgkmcnt(0)\nv_cmp_gt_u32 vcc, 0x40000, v41\ns_cbranch_vccnz L_wy")
    for k in range(5):
        A(f"ds_read2_b32 v[{20+4*k}:{21+4*k}], v11 offset0:0 offset1:1\nds_read_b32 v{22+4*k}, v11 offset:8")
        if k < 4: A("v_add_u32 v11, 2560, v11")
    A("s_waitcnt lgkmcnt(0)")
    for e in range(3): A(f"v_add_f32 v{20+e}, v{20+e}, v{24+e}\nv_add_f32 v{28+e}, v{28+e}, v{32+e}")
    for e in range(3): A(f"v_add_f32 v{20+e}, v{20+e}, v{36+e}")
    for e in range(3): A(f"v_add_f32 v{16+e}, v{20+e}, v{28+e}")
    stamp(7)
    A(f"s_barrier\nds_read_b96 v[12:14], v8 offset:{L_U+64}\ns_waitcnt lgkmcnt(0)")
    for p in range(3):
        for e in range(3): A(f"v_dot2c_f32_bf16 v{16+e}, v{12+p}, v{LW+3*p+e}")
    A(f"s_cmp_eq_u32 {sT3}, 0\ns_cbranch_scc1 L_yr\nbuffer_store_dwordx4 v[16:19], v7, {WS_}, {sT1} offen\ns_branch L_done")
    A(f"L_yr:\nbuffer_store_dwordx4 v[16:19], v7, {WS_}, {sT1} offen sc1\ns_branch L_done")
    A("L_svc:")
    G0 = RING; G1 = G0 + 8
    vQW, vSC, vML, vOP, vLS, vM, vZ, vZK, vXA = [f"v{32+i}" for i in range(7)] + ["v40", "v42"]
    vZF, vM8, vFA = "v15", "v30", "v31"
    ZS, ZM = 52, 8
    vWA, vH1S, vH1G, vYG, vH3, vYW, vYR, vOUT, XV = "v16", "v17", "v18", "v19", "v20", "v21", "v29", 22, 26
    P0, P1, YY = PB, PB + 32, PB + 64
    YT = YY + 12
    LP = 64//NSEG; LLP = LP.bit_length()-1; NLS = GS//LP; NR = 4*BPS
    sF = [f"s{r}" for r in (20, 21, 22, 24, 25, 26, 28, 29, 30)]
    sLOC, sHD, sTG2, sH1S, sH1G, sYS, sYG, sH3S, sH3G, sXS, sXG, sFL = [f"s{r}" for r in range(72, 84)]
    sUU = ["s60", "s61", "s62"]
    sSCALE, sLOG2E = "s12", "s13"
    def store2(lab, stores):
        A("; plain stores when all 32 peers share this cache, write-through otherwise")
        A(f"s_cmp_eq_u32 {sLOC}, 0\ns_cbranch_scc1 {lab}_r"); stores(""); A(f"s_branch {lab}_d\n{lab}_r:"); stores("sc1"); A(f"{lab}_d:")
    def poll(lab, loads, tags, sleep=0, first=None, tag=sTAG, loc=False, hook=None):
        A("; repeat the loads until every tag register holds the expected tag")
        A(f"s_mov_b32 {sT2}, {spin}")
        if first is not None: loads(first); A(f"s_branch {lab}_chk")
        elif sleep: A(f"s_branch {lab}_go")
        A(f"{lab}:")
        if hook: hook()
        if sleep: A(f"s_sleep {sleep}\n{lab}_go:")
        if loc and lp != "sc1":
            A(f"s_cmp_eq_u32 {sLOC}, 0\ns_cbranch_scc1 {lab}_rm"); loads(lp); A(f"s_branch {lab}_chk\n{lab}_rm:")
        loads("sc1")
        A(f"{lab}_chk:\ns_waitcnt vmcnt(0)")
        if len(tags) == 1: A(f"v_cmp_ne_u32 vcc, {tag}, {tags[0]}")
        else:
            A(f"v_xor_b32 {t0}, {tag}, {tags[0]}")
            for t in tags[1:]: A(f"v_bitop3_b32 {t0}, {t}, {tag}, {t0} bitop3:0xbe")
            A(f"v_cmp_ne_u32 vcc, 0, {t0}")
        A(f"s_cbranch_vccz {lab}_done\ns_sub_u32 {sT2}, {sT2}, 1\ns_cbranch_scc0 {lab}\n{lab}_done:")
    if not early: touches()
    A(f"v_lshlrev_b32 v4, 2, {vLANE}")
    A(f"L_wq:\nds_read_b32 v6, v5 offset:{L_CT}\ns_waitcnt lgkmcnt(0)\nv_and_b32 v6, 7, v6\nv_cmp_gt_u32 vcc, 5, v6\ns_cbranch_vccnz L_wq")
    for w in range(5):
        for k in range(5): A(f"ds_read_b32 v{G0+5*w+k}, v4 offset:{L_QP+1280*w+256*k}")
        if w == 2: A("s_waitcnt lgkmcnt(0)")
    A("s_waitcnt lgkmcnt(0)")
    for w in range(1, 5):
        for k in range(5): A(f"v_add_f32 v{G0+k}, v{G0+k}, v{G0+5*w+k}")
    QO = 52
    A(f"v_lshl_add_u32 v5, {vB}, 3, {vA}\nv_lshlrev_b32 {vQW}, 1, v5\nv_lshlrev_b32 v5, 4, v5")
    A(f"v_mov_b32 v48, v{G0+3}\nv_mov_b32 v49, v{G0+4}\nv_mov_b32 v{QO+3}, {sTAG}\nv_mov_b32 v50, {sTAG}\nv_mov_b32 v51, {sTAG}")
    for k in range(3): A(f"v_mov_b32 v{QO+k}, v{G0+k}")
    if "Q" in skip: A("s_branch L_qd")
    A(f"s_lshl_b32 {sHD}, {sLIN}, 11\ns_add_u32 {sHD}, {sHD}, {WS_QS}\ns_cmp_lt_u32 {sMEM}, 16\ns_cbranch_scc1 L_qw")
    A(f"buffer_store_dwordx4 v[{QO}:{QO+3}], v7, {WS_}, {sHD} offen\ns_branch L_qd")
    A(f"L_qw:\nbuffer_store_dwordx4 v[{QO}:{QO+3}], v7, {WS_}, {sHD} offen sc1\nL_qd:")
    stamp(3)
    if tlb == 2: page_touch()
    A(f"v_add_u32 {vSC}, {L_SC}, v4\nv_mov_b32 {vML}, {L_ML}\nv_add_u32 {vOP}, {L_OP}, v7\nv_mov_b32 {vZ}, 0")
    A(f"s_mov_b32 {sSCALE}, 0x3d93cd3a\ns_mov_b32 {sLOG2E}, 0x3fb8aa3b\ns_mov_b32 {sBLK}, 0")
    A(f"s_lshl_b32 {sT1}, {sG}, {11+LGS}\ns_add_u32 {sT1}, {sT1}, {WS_QS}")
    A(f"L_wt:\ns_sleep 2\nds_read_b32 v10, {vZ} offset:{L_CT}\ns_waitcnt lgkmcnt(0)\nv_cmp_gt_u32 vcc, 256, v10\ns_cbranch_vccnz L_wt")
    def gq(n, base):
        def f(p):
            for s in range(n):
                if s % 2 == 0: A(f"s_add_u32 {sT0}, {base}, {2048*s}")
                A(f"buffer_load_dwordx4 v[{G0+4*s}:{G0+4*s+3}], v7, {WS_}, {sT0} offen offset:{2048*(s%2)} {p}")
        return f
    if "Q" in skip: A("s_branch L_gq_done")
    poll("L_gq", gq(16, sT1), [f"v{G0+4*s+3}" for s in range(16)], first=qp, sleep=psleep)
    for s in range(1, 8):
        for h in range(2):
            for k in range(3): A(f"v_add_f32 v{G0+32*h+k}, v{G0+32*h+k}, v{G0+32*h+4*s+k}")
    for h in range(2):
        for k in range(3): A(f"v_cvt_pk_bf16_f32 v{G0+32*h+k}, v{G0+32*h+k}, 0")
    for h in range(2):
        for k in range(3): A(f"ds_write_b16 {vQW}, v{G0+32*h+k} offset:{L_QB+384*h+128*k}")
    stamp(4)
    A("s_branch L_next")
    A("L_blk:")
    if xd:
        A("; pacing hint only: how many of the eight sets of peers are ahead of mine -> threshold used by my peers")
        A(f"s_cmp_lg_u32 {sC}, {xc}\ns_cbranch_scc1 L_noxf\ns_bitcmp1_b32 {hex(sum(1 << b for b in xp))}, {sBLK}\ns_cbranch_scc0 L_noxf")
        A(f"s_add_u32 {sT0}, {sTAG}, {sBLK}\nv_mov_b32 v12, {sT0}\nv_mul_u32_u24 v13, 4224, {vLANE}\ns_mul_i32 {sT1}, {sX}, 4224\ns_add_u32 {sT1}, {sT1}, {WS_PR+0x30000}")
        A(f"s_mov_b64 exec, 1\nbuffer_store_dword v12, v13, {WS_}, {sT1} offen sc1\ns_mov_b32 {sT1}, {WS_PR+0x30000}")
        if xs < 0: A("s_waitcnt vmcnt(0)")
        if xs > 0: A(f"s_sleep {xs}")
        A(f"s_mov_b64 exec, 0xff\nbuffer_load_dword v14, v13, {WS_}, {sT1} offen sc1\ns_waitcnt vmcnt(0)")
        lutv = sum((d + 8) << (4*i) for i, d in enumerate(xd))
        A(f"v_sub_u32 v14, v14, v12\nv_cmp_gt_u32 vcc, 64, v14\ns_bitset0_b32 vcc_lo, {sX}\ns_bcnt1_i32_b64 {sT0}, vcc\ns_lshl_b32 {sT0}, {sT0}, 2")
        if xd2:
            lut2 = sum((d//2 + 8) << (4*i) for i, d in enumerate(xd2))
            A(f"s_lshr_b32 {sT1}, {hex(lut2)}, {sT0}\ns_and_b32 {sT1}, {sT1}, 15\ns_lshl_b32 {sT1}, {sT1}, 1\ns_sub_u32 {sT1}, {sT1}, 8")
        A(f"s_lshr_b32 {sT0}, {hex(lutv)}, {sT0}\ns_and_b32 {sT0}, {sT0}, 15")
        if xd2: A(f"s_cmp_ge_u32 {sBLK}, {xb}\ns_cselect_b32 {sT0}, {sT1}, {sT0}")
        A(f"s_getreg_b32 {sT1}, hwreg(HW_REG_XCC_ID)\ns_bitcmp1_b32 {sT1}, 0\ns_cselect_b32 {sT1}, {fbo-8}, {fb-8}")
        A(f"s_add_u32 {sT0}, {sT0}, {sT1}\ns_min_u32 {sT0}, {sT0}, 32\ns_add_u32 {sT0}, {sT0}, {sTAG}\nv_mov_b32 v12, {sT0}")
        A(f"s_mul_i32 {sT1}, {sX}, {4*4224}\ns_add_u32 {sT1}, {sT1}, {WS_PR+128}\ns_mov_b64 exec, 0xf")
        A(f"buffer_store_dword v12, v13, {WS_}, {sT1} offen\ns_mov_b64 exec, -1\nL_noxf:")
    A(f"s_cmp_le_u32 {sBLK}, 16\ns_cbranch_scc1 L_kpart\ns_bitcmp1_b32 {FMASK}, {sBLK}\ns_cbranch_scc0 L_vmid")
    stamp(5)
    for w in range(4): A(f"ds_read_b96 v[{G0+4*w}:{G0+4*w+2}], {vOP} offset:{1024*w}")
    A(f"v_xor_b32 {vOP}, 4096, {vOP}\nv_mov_b32 v{G0+19}, {sTG2}\ns_waitcnt lgkmcnt(0)")
    for k in range(3): A(f"v_add_f32 v{G0+k}, v{G0+k}, v{G0+4+k}\nv_add_f32 v{G0+8+k}, v{G0+8+k}, v{G0+12+k}")
    for k in range(3): A(f"v_add_f32 v{G0+k}, v{G0+k}, v{G0+8+k}")
    for k in range(3): A(f"v_mul_f32 v{G0+16+k}, {sF[0]}, v{G0+k}")
    if "h" in skip: A(f"s_cmp_lg_u32 {sBLK}, 32\ns_cbranch_scc1 L_p1_done")
    store2("L_s1", lambda p: A(f"buffer_store_dwordx4 v[{G0+16}:{G0+19}], {vH1S}, {WS_}, {sH1S} offen {p}"))
    poll("L_p1", lambda p: A(f"buffer_load_dwordx4 v[{G0}:{G0+3}], {vH1G}, {WS_}, {sH1G} offen {p}"), [f"v{G0+3}"], tag=sTG2, loc=True)
    stamp(6)
    A(f"v_mov_b32 v{G0+3}, 0\nv_permlane32_swap_b32 v{G0}, v{G0+1}\nv_permlane32_swap_b32 v{G0+2}, v{G0+3}")
    A(f"v_add_f32 v{G0}, v{G0}, v{G0+1}\nv_add_f32 v{G0+2}, v{G0+2}, v{G0+3}\nv_permlane16_swap_b32 v{G0}, v{G0+2}\nv_add_f32 {vZK}, v{G0}, v{G0+2}")
    allred_lo("v_add_f32", [vZK], 3)
    A(f"s_cmp_eq_u32 {sBLK}, 32\ns_cbranch_scc1 L_tail")
    for i in range(8): A(f"s_mov_b32 {sF[i]}, {sF[i+1]}")
    A(f"s_add_u32 {sTG2}, {sTG2}, 1\ns_xor_b32 {sH1S}, {sH1S}, 1024\ns_xor_b32 {sH1G}, {sH1G}, 1024")
    A(f"s_lshr_b32 {sT0}, {sG}, 1\ns_add_u32 {sT0}, {sT0}, {B5+1}\ns_cmp_lg_u32 {sT0}, {sBLK}\ns_cbranch_scc1 L_native\nv_mov_b32 {vZF}, {vZK}\ns_branch L_next\nL_native:")
    A(f"s_add_u32 {sT0}, {sBLK}, 1\ns_lshr_b32 {sT0}, {sT0}, 1\ns_xor_b32 {sT0}, {sT0}, {sOWN}\ns_bitcmp1_b32 {sT0}, 0\ns_cbranch_scc0 L_notmine")
    A(f"v_mov_b32 v{ZM}, v{ZM+1}\nv_mov_b32 v{ZM+1}, v{ZM+2}\nv_mov_b32 v{ZM+2}, {vZK}\ns_cmp_eq_u32 {sBLK}, 28\ns_cbranch_scc0 L_next\ns_branch L_send")
    A(f"L_notmine:\nv_mov_b32 v{ZS}, v{ZS+1}\nv_mov_b32 v{ZS+1}, v{ZS+2}\nv_mov_b32 v{ZS+2}, {vZK}\ns_cmp_ge_u32 {sBLK}, 28\ns_cbranch_scc0 L_next")
    A("L_send:")
    for e in range(6): A(f"v_readlane_b32 {sT0}, {vZF}, {8*e}\nv_writelane_b32 v{ZS+e%3}, {sT0}, {48+8*(e//3)}")
    if "x" in skip: A("s_branch L_next")
    A(f"s_mov_b32 exec_lo, 0x01010101\ns_mov_b32 exec_hi, 0x01010101")
    A(f"buffer_store_dwordx4 v[{ZS}:{ZS+3}], {vXA}, {WS_}, {sXS} offen sc1\ns_mov_b64 exec, -1\ns_add_u32 {sXS}, {sXS}, 128")
    A("s_branch L_next")
    A("L_vmid:")
    A(f"s_cmp_lg_u32 {sBLK}, {lsb}\ns_cbranch_scc1 L_nols")
    A(f"s_mul_i32 {sT1}, {sG}, {GS*128}\ns_add_u32 {sT1}, {sT1}, {WS_LS}\ns_add_u32 {sT3}, {sT1}, 4096")
    GA = G0 + 32
    A(f"s_xor_b32 {sT0}, {sT1}, {2*GS*128}\nv_lshlrev_b32 v6, 7, {vLANE}")
    def gl(p):
        A(f"buffer_load_dwordx4 v[{GA}:{GA+3}], v6, {WS_}, {sT1} offen offset:80 {p}\nbuffer_load_dwordx4 v[{GA+4}:{GA+7}], v6, {WS_}, {sT0} offen offset:80 {p}")
        for r in range(NLS): A(f"buffer_load_dwordx4 v[{G0+4*r}:{G0+4*r+3}], {vLS}, {WS_}, {sT1 if LP*128*r < 4096 else sT3} offen offset:{LP*128*r % 4096} {p}")
    poll("L_ls", gl, [f"v{G0+4*r+e}" for r in range(NLS+2) for e in (1, 3)], sleep=16, first=qp)
    hn = NLS//2 if PAIR else NLS
    for h, t in ((0, t0), (1, t1))[:2 if PAIR else 1]:
        A(f"v_xor_b32 {t}, {sLOC}, v{G0+4*hn*h+2}")
        for r in range(1, hn): A(f"v_bitop3_b32 {t}, v{G0+4*(hn*h+r)+2}, {sLOC}, {t} bitop3:0xbe")
    if PAIR: A(f"s_bitcmp1_b32 {sX}, 0\ns_cselect_b64 vcc, -1, 0\nv_cndmask_b32 {t0}, {t0}, {t1}, vcc")
    A(f"v_cmp_ne_u32 vcc, 0, {t0}\ns_and_b32 vcc_hi, vcc_hi, 0xffff00ff\ns_cmp_eq_u64 vcc, 0\ns_cselect_b32 {sLOC}, {local}, 0")
    A(f"v_max_f32 {t0}, v{G0}, v{G0+4}")
    for r in range(2, NLS, 2): A(f"v_max3_f32 {t0}, {t0}, v{G0+4*r}, v{G0+4*r+4}")
    allred_lo("v_max_f32", [t0], LLP)
    for r in range(NLS): A(f"v_sub_f32 v{G0+4*r}, v{G0+4*r}, {t0}")
    for r in range(NLS): A(f"v_exp_f32 v{G0+4*r}, v{G0+4*r}")
    for r in range(1, NLS): A(f"v_add_f32 v{G0}, v{G0}, v{G0+4*r}")
    allred_lo("v_add_f32", [f"v{G0}"], LLP)
    A(f"v_sub_f32 {t0}, {vM}, {t0}\nv_exp_f32 {t0}, {t0}\nv_rcp_f32 {t1}, v{G0}\nv_mul_f32 {t0}, {t0}, {t1}")
    for k in range(NSEG):
        if k != J5: A(f"v_readlane_b32 {sF[k + (k > J5)]}, {t0}, {LP*PI[k]}")
    A(f"v_max_f32 {t0}, v{GA}, v{GA+4}\nv_max_f32 {t1}, v{GA+2}, v{GA+6}")
    allred_lo("v_max_f32", [t0, t1]); allred_top("v_max_f32", [t0, t1], [t2, t3])
    for r, t in ((0, t0), (4, t0), (2, t1), (6, t1)): A(f"v_sub_f32 v{GA+r}, v{GA+r}, {t}")
    for r in (0, 4, 2, 6): A(f"v_exp_f32 v{GA+r}, v{GA+r}")
    A(f"v_add_f32 v{GA}, v{GA}, v{GA+4}\nv_add_f32 v{GA+2}, v{GA+2}, v{GA+6}")
    allred_lo("v_add_f32", [f"v{GA}", f"v{GA+2}"]); allred_top("v_add_f32", [f"v{GA}", f"v{GA+2}"], [t2, t3])
    A(f"v_sub_f32 {t0}, {vM}, {t0}\nv_sub_f32 {t1}, {vM8}, {t1}\nv_exp_f32 {t0}, {t0}\nv_exp_f32 {t1}, {t1}\nv_rcp_f32 {t2}, v{GA}\nv_rcp_f32 {t3}, v{GA+2}")
    A(f"v_mul_f32 {t0}, {t0}, {t2}\nv_mul_f32 {t1}, {t1}, {t3}\nv_readlane_b32 {sF[J5+1]}, {t0}, 40\nv_readlane_b32 {sF[J5]}, {t1}, 40")
    A(f"v_mov_b32 {t0}, 0\nv_mov_b32 {t1}, 0\nv_mov_b32 {t2}, 0\nv_mov_b32 {t3}, {sLOC}\ns_mov_b64 exec, 0xf\nds_write_b128 v7, v[{T}:{T+3}] offset:{L_U}")
    A(f"s_lshl_b32 {sT0}, {sLIN}, 11\ns_add_u32 {sT0}, {sT0}, {WS_QS}\ns_mov_b32 exec_lo, 0x3f3f3f3f\ns_mov_b32 exec_hi, 0x3f3f3f3f")
    store2("L_s0", lambda p: A(f"buffer_store_dwordx4 v[48:51], v5, {WS_}, {sT0} offen offset:1024 {p}"))
    A("s_mov_b64 exec, -1\ns_branch L_next")
    A("L_nols:")
    A(f"s_cmp_lg_u32 {sBLK}, {lsb+2}\ns_cbranch_scc1 L_nogu2")
    A(f"v_lshlrev_b32 v6, 11, {vA}\nv_lshl_add_u32 v6, {vB}, 4, v6\nv_mov_b32 v{G1}, 0\nv_mov_b32 v{G1+1}, 0")
    A(f"s_lshr_b32 {sT1}, {sLIN}, 3\ns_lshl_b32 {sT1}, {sT1}, 14\ns_mul_i32 {sT0}, {sS}, 96\ns_add_u32 {sT1}, {sT1}, {sT0}\ns_add_u32 {sT1}, {sT1}, {WS_QS}")
    A(f"s_mov_b32 exec_lo, 0x3f3f3f3f\ns_mov_b32 exec_hi, 0x3f3f3f3f")
    poll("L_gu", lambda p: A(f"buffer_load_dwordx4 v[{G1}:{G1+3}], v6, {WS_}, {sT1} offen offset:1024 {p}"), [f"v{G1+2}", f"v{G1+3}"], sleep=psleep, loc=True)
    A("s_mov_b64 exec, -1")
    for k in range(2): A(f"v_add_f32_dpp v{G1+k}, v{G1+k}, v{G1+k} row_ror:8 {DPP}")
    allred_top("v_add_f32", [f"v{G1}", f"v{G1+1}"], [t0, t1])
    A(f"v_cvt_pk_bf16_f32 v{G1}, 0, v{G1}\nv_cvt_pk_bf16_f32 v{G1+1}, 0, v{G1+1}")
    A(f"v_cmp_lt_f32 vcc, 0, v{G1}\nv_cndmask_b32 {t0}, 0, 1.0, vcc\nv_mul_f32 {t3}, v{G1}, {t0}\nv_mul_f32 {t3}, {t3}, v{G1+1}\nv_cvt_pk_bf16_f32 {t3}, {t3}, 0")
    A(f"v_mov_b32_dpp {t0}, {t3} quad_perm:[1,1,3,3] {DPP}\nv_lshl_or_b32 {t3}, {t0}, 16, {t3}")
    for i in range(3): A(f"v_readlane_b32 {sUU[i]}, {t3}, {2*i}")
    for r in range(6):
        for d in range(5): A(f"ds_read_b32 v{P0+5*r+d}, {vWA} offset:{1280*r+4*d}")
        if r % 2: A("s_waitcnt lgkmcnt(0)")
    A(f"s_mov_b32 {sT1}, 0x05040100\ns_mov_b32 {sT3}, 0x07060302")
    for p in range(3):
        for d in range(5):
            A(f"v_perm_b32 v{P1+10*p+2*d}, v{P0+10*p+5+d}, v{P0+10*p+d}, {sT1}\nv_perm_b32 v{P1+10*p+2*d+1}, v{P0+10*p+5+d}, v{P0+10*p+d}, {sT3}")
    for p in range(3):
        for c in range(10): A(f"v_dot2c_f32_bf16 v{YY+c}, {sUU[p]}, v{P1+10*p+c}")
    for d in range(5): A(f"ds_write_b64 {vYW}, v[{YY+2*d}:{YY+2*d+1}] offset:{L_YP+10240+8*d}")
    A("s_branch L_next")
    A("L_nogu2:")
    A(f"s_cmp_lg_u32 {sBLK}, 31\ns_cbranch_scc1 L_nopf")
    if pf is not None:
        A("; touch the lines of the last two hand-offs among the peers so that they are resident when they get written")
        for r in range(4 if "y" in pfw else 0):
            A(f"s_add_u32 {sT0}, {sYG}, {8*4096*r}\nbuffer_load_dwordx4 v[{G0+8+4*r}:{G0+8+4*r+3}], {vYG}, {WS_}, {sT0} offen {pf}")
        if "h" in pfw: A(f"buffer_load_dwordx4 v[{G0+24}:{G0+27}], v7, {WS_}, {sH1S} offen {pf}")
    A("L_nopf:")
    A(f"s_cmp_lt_u32 {sBLK}, 29\ns_cbranch_scc1 L_next\ns_add_u32 {sT0}, {sBLK}, {sOWN}\ns_cmp_gt_u32 {sT0}, 31\ns_cbranch_scc1 L_last")
    if "x" not in skip:
        poll("L_px", lambda p: A(f"buffer_load_dwordx4 v[{G0}:{G0+3}], {vXA}, {WS_}, {sXG} offen {p}"), [f"v{G0+3}"], sleep=psleep, first=xl)
    for k in range(3): A(f"v_add_f32 v{ZM+k}, v{ZM+k}, v{G0+k}")
    A(f"s_add_u32 {sT0}, {sBLK}, {sOWN}\ns_cmp_lg_u32 {sT0}, 29\ns_cbranch_scc1 L_nofo\ns_xor_b32 {sT1}, {sXG}, {128*256}\ns_xor_b32 {sT3}, {sXG}, {160*256}")
    poll("L_pf", lambda p: A(f"buffer_load_dwordx4 v[{G0}:{G0+3}], {vFA}, {WS_}, {sT1} offen {p}\nbuffer_load_dwordx4 v[{G0+4}:{G0+7}], {vFA}, {WS_}, {sT3} offen {p}"),
         [f"v{G0+3}", f"v{G0+7}"], sleep=psleep)
    for k in range(3): A(f"v_add_f32 v{G0+k}, v{G0+k}, v{G0+4+k}")
    A(f"s_mov_b32 vcc_lo, 0x0000ff00\ns_mov_b32 vcc_hi, 0x000000ff\nv_cndmask_b32 v{G0}, v{G0}, v{G0+1}, vcc")
    A(f"s_mov_b32 vcc_lo, 0x00ff0000\ns_mov_b32 vcc_hi, 0x0000ff00\nv_cndmask_b32 v{G0}, v{G0}, v{G0+2}, vcc\nv_add_f32 v{ZM+1}, v{ZM+1}, v{G0}\nL_nofo:")
    A(f"s_add_u32 {sXG}, {sXG}, 128\ns_mov_b32 {sFL}, 3\ns_cmp_eq_u32 {sBLK}, 29\ns_cbranch_scc1 L_take\ns_mov_b32 {sFL}, 1\nv_mov_b32 v{ZM}, v{ZM+2}")
    A(f"L_take:\nv_mov_b32_dpp v{G0+1}, v{ZM} row_ror:8 {DPP}\nv_cvt_pk_bf16_f32 v{G0}, v{ZM}, v{G0+1}\nv_mov_b32 v{ZM}, v{ZM+1}\nv_mov_b32 v{ZM+1}, v{ZM+2}")
    A(f"s_mov_b32 exec_lo, 0x00010001\ns_mov_b32 exec_hi, 1\nds_write_b32 {vYR}, v{G0}\ns_mov_b64 exec, -1\nv_add_u32 {vYR}, 16, {vYR}")
    A(f"s_sub_u32 {sFL}, {sFL}, 1\ns_cmp_gt_u32 {sFL}, 0\ns_cbranch_scc1 L_take")
    A("L_last:")
    A(f"s_cmp_lg_u32 {sBLK}, 31\ns_cbranch_scc1 L_next\ns_setprio 3\ns_waitcnt vmcnt(0)")
    A("L_next:")
    A(f"s_add_u32 {sBLK}, {sBLK}, 1\ns_waitcnt lgkmcnt(0)\ns_barrier\ns_branch L_blk")
    A("L_kpart:\ns_setprio 0")
    A(f"s_and_b32 {sT0}, {sBLK}, {BPS-1}\ns_cbranch_scc1 L_nosm")
    for w in range(4):
        for k in range(BPS): A(f"ds_read_b32 v{G0+BPS*w+k}, {vSC} offset:{4096*w+256*k}")
        if w == 1: A("s_waitcnt lgkmcnt(0)")
    A("s_waitcnt lgkmcnt(0)")
    for i in range(NR): A(f"v_cvt_pk_bf16_f32 v{G0+i}, 0, v{G0+i}")
    for i in range(NR): A(f"v_mul_f32 v{G0+i}, {sSCALE}, v{G0+i}")
    for i in range(NR): A(f"v_cvt_pk_bf16_f32 v{G0+i}, 0, v{G0+i}")
    for i in range(NR): A(f"v_mul_f32 v{G0+i}, {sLOG2E}, v{G0+i}")
    m0, m1, l0_, l1_ = f"v{G0+8}", f"v{G0+10}", f"v{G0+9}", f"v{G0+11}"
    for k, m in enumerate((m0, m1)): A(f"v_max_f32 {m}, v{G0+k}, v{G0+2+k}\nv_max3_f32 {m}, {m}, v{G0+4+k}, v{G0+6+k}")
    allred_lo("v_max_f32", [m0, m1]); allred_top("v_max_f32", [m0, m1], [t0, t1])
    A(f"s_cmp_eq_u32 {sBLK}, 12\ns_cbranch_scc1 L_sm1\nv_max_f32 {m0}, {m0}, {m1}\nv_mov_b32 {m1}, {m0}\ns_branch L_sm0\nL_sm1:")
    if rev:
        for w in range(4): A(f"v_mov_b32_dpp v{G0+2*w}, v{G0+2*w} row_half_mirror {DPP}")
    A("L_sm0:")
    for i in range(NR): A(f"v_sub_f32 v{G0+i}, v{G0+i}, {(m0, m1)[i%2]}")
    for i in range(NR): A(f"v_exp_f32 v{G0+i}, v{G0+i}")
    for k, l in enumerate((l0_, l1_)): A(f"v_add_f32 {l}, v{G0+k}, v{G0+2+k}\nv_add_f32 {l}, {l}, v{G0+4+k}\nv_add_f32 {l}, {l}, v{G0+6+k}")
    for i in range(NR): A(f"v_cvt_pk_bf16_f32 v{G0+i}, v{G0+i}, 0")
    for w in range(4):
        for k in range(BPS): A(f"ds_write_b32 {vSC}, v{G0+BPS*w+k} offset:{4096*w+256*k}")
    allred_lo("v_add_f32", [l0_, l1_]); allred_top("v_add_f32", [l0_, l1_], [t0, t1])
    A(f"s_cmp_eq_u32 {sBLK}, 12\ns_cbranch_scc1 L_sm2\nv_add_f32 {l0_}, {l0_}, {l1_}\ns_branch L_sm3")
    A(f"L_sm2:\nv_log_f32 {l1_}, {l1_}\nv_add_f32 {l1_}, {l1_}, {m1}\nds_write_b64 {vZ}, v[{G0+10}:{G0+11}] offset:{L_ML+64}\nL_sm3:")
    A(f"v_log_f32 {l0_}, {l0_}\nv_add_f32 {l0_}, {l0_}, {m0}\nds_write_b64 {vML}, v[{G0+8}:{G0+9}]")
    A(f"v_add_u32 {vSC}, {256*BPS}, {vSC}\nv_add_u32 {vML}, 8, {vML}")
    A("L_nosm:")
    if "Q" in skip: A("s_branch L_noq2")
    if tlb == 3:
        A(f"s_cmp_lg_u32 {sBLK}, 1\ns_cbranch_scc1 L_nopt"); page_touch(); A("L_nopt:")
    A(f"s_cmp_lg_u32 {sBLK}, 1\ns_cbranch_scc1 L_noq1\ns_cmp_lg_u32 {sS}, 0\ns_cbranch_scc1 L_next\ns_cmp_lt_u32 {sMEM}, 16\ns_cbranch_scc1 L_next")
    poll("L_go", gq(8, sHD), [f"v{G0+4*s+3}" for s in range(8)], sleep=psleep, first=op)
    for s in range(1, 8):
        for k in range(3): A(f"v_add_f32 v{G0+k}, v{G0+k}, v{G0+4*s+k}")
    for k in range(3): A(f"v_mov_b32_dpp v{G0+4+k}, v{G0+k} row_ror:8 {DPP}")
    for k in range(3): A(f"v_cvt_pk_bf16_f32 v{G0+k}, v{G0+k}, v{G0+4+k}")
    A(f"v_lshrrev_b32 v6, 4, {vLANE}\nv_lshl_add_u32 v6, v6, 3, {vB}\nv_lshlrev_b32 v6, 4, v6\ns_lshl_b32 {sT0}, {sLIN}, 6\ns_add_u32 {sT0}, {sT0}, {WS_QF}")
    A(f"s_mov_b32 exec_lo, 0x00ff00ff\ns_mov_b32 exec_hi, 0x00ff00ff\nbuffer_store_dwordx4 v[{G0}:{G0+3}], v6, {WS_}, {sT0} offen sc1\ns_mov_b64 exec, -1")
    A(f"s_waitcnt vmcnt(0)\ns_branch L_next\nL_noq1:\ns_cmp_lg_u32 {sBLK}, 2\ns_cbranch_scc1 L_noq2")
    A(f"s_lshl_b32 {sT1}, {sG}, 12\ns_add_u32 {sT1}, {sT1}, {WS_QF}")
    A(f"s_xor_b32 {sT3}, {sT1}, 8192")
    def gf(p):
        A(f"s_mov_b32 exec_hi, 0\nbuffer_load_dwordx4 v[{G0}:{G0+3}], v7, {WS_}, {sT3} offen offset:2560 {p}\ns_mov_b32 exec_hi, -1")
        for r in range(1, 4): A(f"buffer_load_dwordx4 v[{G0+4*r}:{G0+4*r+3}], v7, {WS_}, {sT1} offen offset:{1024*r} {p}")
    def again():
        A(f"s_cmp_lg_u32 {sT2}, {spin-nre}\ns_cbranch_scc1 L_nore\nbuffer_store_dwordx4 v[{QO}:{QO+3}], v7, {WS_}, {sHD} offen sc1\nL_nore:")
    A(f"v_lshrrev_b32 {vQW}, 5, {vLANE}\nv_mul_u32_u24 {vQW}, 384, {vQW}\nv_lshl_add_u32 {vQW}, {vB}, 4, {vQW}\nv_and_b32 v6, 3, {vA}\nv_lshl_add_u32 {vQW}, v6, 2, {vQW}")
    A(f"s_waitcnt lgkmcnt(0)\nv_mov_b32 v{G0+3}, {sTAG}")
    poll("L_gf", gf, [f"v{G0+4*r+3}" for r in range(4)], first=qp, sleep=psleep, hook=again)
    for r in range(1, 4):
        for k in range(3): A(f"ds_write_b32 {vQW}, v{G0+4*r+k} offset:{L_QB+768*r+128*k}")
    A("s_mov_b32 exec_hi, 0")
    for k in range(3): A(f"ds_write_b32 {vQW}, v{G0+k} offset:{L_QB+384*8+128*k}")
    A("s_mov_b32 exec_hi, -1\ns_branch L_next\nL_noq2:")
    A(f"s_cmp_lg_u32 {sBLK}, {NSEG+1}\ns_cbranch_scc1 L_nogu")
    A(f"v_mul_u32_u24 {vWA}, 20, {vLANE}\nv_add_u32 {vWA}, {L_W}, {vWA}")
    A(f"v_lshrrev_b32 {t0}, 4, {vLANE}\nv_lshl_add_u32 {t0}, {t0}, 3, {vB}\nv_and_b32 {t1}, 8, {vLANE}\nv_lshlrev_b32 {t1}, 1, {t1}")
    A(f"v_lshl_add_u32 {vH1S}, {t0}, 5, {t1}\nv_lshl_add_u32 {vH1G}, {t0}, 11, {t1}")
    A(f"s_lshl_b32 {sH1S}, {sLIN}, 11\ns_add_u32 {sH1S}, {sH1S}, {WS_H1}")
    A(f"s_lshl_b32 {sH1G}, {sX}, 16\ns_lshl_b32 {sT0}, {sC}, 5\ns_add_u32 {sH1G}, {sH1G}, {sT0}\ns_add_u32 {sH1G}, {sH1G}, {WS_H1}")
    A(f"v_mul_u32_u24 {vYW}, 40, {vLANE}\nv_lshrrev_b32 {vYR}, 1, {vLANE}\nv_and_b32 {vYR}, 8, {vYR}\nv_lshrrev_b32 {t0}, 3, {vLANE}\nv_and_or_b32 {vYR}, {t0}, 4, {vYR}\nv_add_u32 {vYR}, {L_U}, {vYR}\nv_mov_b32 v43, {vYR}")
    A(f"v_lshlrev_b32 {t0}, 4, {vB}\nv_lshl_add_u32 {vYG}, {vA}, 12, {t0}\nv_lshlrev_b32 {vXA}, 4, {vA}\nv_mov_b32 v41, {sTAG}\nv_mov_b32 v{ZS+3}, {sTAG}\nv_mov_b32 {vFA}, 96\nv_mov_b32 {t1}, 112\nv_cmp_lt_u32 vcc, 2, {vA}\nv_cndmask_b32 {vFA}, {vFA}, {t1}, vcc")
    A(f"s_lshl_b32 {sYS}, {sLIN}, 12\ns_add_u32 {sYS}, {sYS}, {WS_H2}")
    A(f"s_lshl_b32 {sYG}, {sX}, 17\ns_lshl_b32 {sT0}, {sC}, 7\ns_add_u32 {sYG}, {sYG}, {sT0}\ns_add_u32 {sYG}, {sYG}, {WS_H2}")
    A(f"s_lshl_b32 {sH3G}, {sC}, 10\ns_add_u32 {sH3G}, {sH3G}, {WS_H3}\ns_lshl_b32 {sT0}, {sX}, 7\ns_add_u32 {sH3S}, {sH3G}, {sT0}")
    A(f"s_lshl_b32 {sXS}, {sLIN}, 8\ns_add_u32 {sXS}, {sXS}, {WS_XX}\ns_xor_b32 {sXG}, {sXS}, {32*256}")
    A(f"s_add_u32 {sTG2}, {sTAG}, 1\ns_mov_b32 {sFL}, 0")
    A(f"v_mul_u32_u24 {t0}, 3, {vB}\ns_mul_i32 {sT0}, {sC}, 20\nv_add_lshl_u32 {t0}, {t0}, {sT0}, 1\nv_mov_b32 {t2}, {OOB}")
    A(f"v_cmp_gt_u32 vcc, 7, {vB}\nv_cndmask_b32 v{vOUT}, {t2}, {t0}, vcc\nv_cmp_gt_u32 vcc, 6, {vB}\nv_cndmask_b32 v{vOUT+1}, {t2}, {t0}, vcc")
    A(f"v_mov_b32 {t0}, {WS_EP}\nv_or_b32 {t1}, s2, {vLANE}\nv_cmp_eq_u32 vcc, 0, {t1}\nv_cndmask_b32 v{vOUT+2}, {t2}, {t0}, vcc")
    A(f"buffer_load_ushort v{XV}, v{vOUT}, {X_}, 0 offen\nbuffer_load_ushort v{XV+1}, v{vOUT}, {X_}, 0 offen offset:2\nbuffer_load_ushort v{XV+2}, v{vOUT+1}, {X_}, 0 offen offset:4")
    for i in range(10): A(f"v_mov_b32 v{YY+i}, 0")
    A("s_waitcnt vmcnt(0)")
    for e in range(3): A(f"v_lshlrev_b32 v{XV+e}, 16, v{XV+e}")
    srd_lo(X_, pOUT)
    A("s_branch L_next")
    A("L_nogu:")
    A(f"s_cmp_lg_u32 {sBLK}, 16\ns_cbranch_scc1 L_next")
    A(f"v_lshrrev_b32 v10, {LLP}, {vLANE}\nv_lshlrev_b32 v10, 3, v10\ns_waitcnt lgkmcnt(0)\nds_read_b64 v[{T+2}:{T+3}], v10 offset:{L_ML}\nds_read_b64 v[{G0}:{G0+1}], {vZ} offset:{L_ML+64}")
    A(f"s_lshl_b32 {sT1}, {sLIN}, 7\ns_add_u32 {sT1}, {sT1}, {WS_LS}\nv_and_b32 v11, {LP-1}, {vLANE}\nv_cmp_eq_u32 vcc, 0, v11")
    A(f"s_waitcnt lgkmcnt(0)\nv_mov_b32 {vM}, {t2}\nv_mov_b32 {t0}, {t3}\nv_mov_b32 {t1}, {sTAG}\nv_mov_b32 {t3}, {sTAG}")
    A(f"s_getreg_b32 {sLOC}, hwreg(HW_REG_XCC_ID)\nv_mov_b32 {t2}, {sLOC}\nv_lshlrev_b32 v10, 1, v10\nv_mov_b32 {vM8}, v{G0}")
    A(f"v_readlane_b32 {sT0}, v{G0+1}, 0\nv_writelane_b32 {t2}, {sT0}, 40\ns_mov_b64 exec, vcc")
    A(f"buffer_store_dwordx4 v[{T}:{T+3}], v10, {WS_}, {sT1} offen sc1\ns_mov_b64 exec, -1")
    A(f"v_lshl_add_u32 {vLS}, v11, 7, v10\ns_branch L_next")
    A("L_tail:")
    A(f"v_mov_b32_dpp v{G0+1}, {vZK} row_ror:8 {DPP}\nv_cvt_pk_bf16_f32 v{G0}, {vZK}, v{G0+1}")
    A(f"s_mov_b32 exec_lo, 0x00010001\ns_mov_b32 exec_hi, 1\nds_write_b32 v43, v{G0} offset:64\ns_mov_b64 exec, -1\ns_waitcnt lgkmcnt(0)")
    stamp(7)
    A("s_barrier")
    def g2(p):
        for r in range(4):
            A(f"s_add_u32 {sT0}, {sYG}, {8*4096*r}\nbuffer_load_dwordx4 v[{G0+4*r}:{G0+4*r+3}], {vYG}, {WS_}, {sT0} offen {p}")
    poll("L_p2", g2, [f"v{G0+4*r+3}" for r in range(4)], loc=True)
    if stamps: A("s_memrealtime s[42:43]")
    for k in range(3): A(f"v_add_f32 v{G0+k}, v{G0+k}, v{G0+4+k}\nv_add_f32 v{G0+8+k}, v{G0+8+k}, v{G0+12+k}")
    for k in range(3): A(f"v_add_f32 v{G0+k}, v{G0+k}, v{G0+8+k}")
    def red_hi(b):
        for k in range(3): A(f"v_add_f32_dpp v{b+k}, v{b+k}, v{b+k} row_ror:8 {DPP}")
        allred_top("v_add_f32", [f"v{b+k}" for k in range(3)], [f"v{b+4+k}" for k in range(3)])
    red_hi(G0)
    A(f"s_cmp_eq_u32 {sS}, {sX}\ns_cbranch_scc1 L_red")
    A(f"s_mov_b64 exec, 0xff\nbuffer_store_dwordx4 v[{G0}:{G0+3}], v7, {WS_}, {sH3S} offen {p3s}\ns_mov_b64 exec, -1\ns_branch L_done")
    A("L_red:")
    BUF = [G0 + 16 + 4*k for k in range(np3)]
    for b in BUF:
        for k in range(3): A(f"v_mov_b32 v{b+k}, v{G0+k}")
    A(f"v_cmp_ne_u32 vcc, {sX}, {vA}\ns_mov_b32 {sT2}, {spin}\ns_mov_b64 exec, vcc")
    def l3(k): A(f"buffer_load_dwordx4 v[{BUF[k]}:{BUF[k]+3}], v7, {WS_}, {sH3G} offen {p3l}")
    for k in range(np3-1):
        l3(k); A(f"s_sleep {s3}")
    A("L_p3:")
    for k in range(np3):
        l3((k + np3 - 1) % np3)
        A(f"s_waitcnt vmcnt({np3-1})\nv_cmp_ne_u32 vcc, {sTAG}, v{BUF[k]+3}\ns_cbranch_vccz L_p3d{k}")
    A(f"s_sub_u32 {sT2}, {sT2}, 1\ns_cbranch_scc0 L_p3")
    for k in reversed(range(np3)):
        A(f"L_p3d{k}:\ns_mov_b64 exec, -1")
        for e in range(3): A(f"v_add_f32_dpp v{G1+e}, v{BUF[k]+e}, v{BUF[k]+e} row_ror:8 {DPP}")
        if k: A("s_branch L_p3e")
    A("L_p3e:")
    if stamps: A("s_memrealtime s[48:49]")
    allred_top("v_add_f32", [f"v{G1+k}" for k in range(3)], [f"v{G1+4+k}" for k in range(3)])
    for e in range(3): A(f"v_add_f32 v{G1+e}, v{G1+e}, v{XV+e}")
    for e in range(3): A(f"v_cvt_pk_bf16_f32 v{G1+e}, v{G1+e}, 0")
    A("s_mov_b64 exec, 0xff")
    A(f"buffer_store_short v{G1}, v{vOUT}, {X_}, 0 offen\nbuffer_store_short v{G1+1}, v{vOUT}, {X_}, 0 offen offset:2\nbuffer_store_short v{G1+2}, v{vOUT+1}, {X_}, 0 offen offset:4")
    A(f"buffer_store_dword v41, v{vOUT+2}, {WS_}, 0 offen")
    A("s_mov_b64 exec, -1")
    A("L_done:")
    if diag is not None:
        wave, st, mult = diag
        stamp(8)
        A(f"s_cmp_lg_u32 s2, 0\ns_cbranch_scc1 L_end\ns_cmp_lg_u32 {sW}, {wave}\ns_cbranch_scc1 L_end")
        A(f"s_waitcnt lgkmcnt(0)\ns_sub_u32 {sT0}, s{sST+2*st}, s{sST}\ns_mul_i32 {sT0}, {sT0}, {mult}\ns_add_u32 {sT0}, {sT0}, 30000")
        A(f"s_min_u32 {sT0}, {sT0}, 200000")
        A(f"L_dg:\ns_memrealtime s[72:73]\ns_waitcnt lgkmcnt(0)\ns_sub_u32 {sT1}, s72, s{sST}\ns_cmp_lt_u32 {sT1}, {sT0}\ns_cbranch_scc1 L_dg")
    if stamps:
        stamp(8)
        A(f"s_mul_i32 {sT0}, s2, 5\ns_add_u32 {sT0}, {sT0}, {sW}\ns_lshl_b32 {sT0}, {sT0}, 6\ns_add_u32 {sT0}, {sT0}, {WS_ST}")
        A(f"s_getreg_b32 {sT1}, hwreg(HW_REG_XCC_ID)")
        A("s_waitcnt lgkmcnt(0)\nv_mov_b32 v4, 0")
        for i in range(9): A(f"v_writelane_b32 v4, s{sST+2*i}, {i}")
        A(f"v_writelane_b32 v4, s42, 9\nv_writelane_b32 v4, s48, 10\nv_writelane_b32 v4, s50, 11\nv_writelane_b32 v4, s47, 12")
        A(f"v_writelane_b32 v4, {sT1}, 15")
        A(f"v_lshlrev_b32 v5, 2, {vLANE}\ns_mov_b64 exec, 0xffff")
        A(f"buffer_store_dword v4, v5, {WS_}, {sT0} offen {'sc1' if diag2 else ''}")
    if diag3:
        A(f"s_mov_b64 exec, -1\ns_cmp_lg_u32 {sW}, 0\ns_cbranch_scc1 L_end\ns_lshl_b32 {sT0}, s2, 8\ns_add_u32 {sT0}, {sT0}, {WS_ST+0x40000}")
        A(f"buffer_store_dword v199, v5, {WS_}, {sT0} offen sc1\ns_cmp_lg_u32 s2, 0\ns_cbranch_scc1 L_end")
        A(f"L_dh3:\ns_memrealtime s[72:73]\ns_waitcnt lgkmcnt(0)\ns_sub_u32 {sT1}, s72, s{sST}\ns_cmp_lt_u32 {sT1}, 20000\ns_cbranch_scc1 L_dh3")
        A(f"v_mov_b32 v8, 0\ns_mov_b32 {sT0}, {WS_ST+0x40000}\ns_mov_b32 {sT1}, 256\nL_dl3:\nbuffer_load_dword v9, v5, {WS_}, {sT0} offen sc1\ns_waitcnt vmcnt(0)")
        A(f"v_subrev_u32 v9, s{sST}, v9\nv_add_u32 v8, v8, v9\ns_add_u32 {sT0}, {sT0}, 256\ns_sub_u32 {sT1}, {sT1}, 1\ns_cmp_lg_u32 {sT1}, 0\ns_cbranch_scc1 L_dl3")
        A(f"v_add_u32 v10, 4, v5\nds_bpermute_b32 v9, v10, v8\ns_waitcnt lgkmcnt(0)\nv_sub_u32 v9, v9, v8\nv_mul_u32_u24 v9, 10, v9\nv_lshrrev_b32 v9, 8, v9")
        A(f"v_lshlrev_b32 v10, 1, v5\nds_bpermute_b32 v11, v10, v9\nv_add_u32 v10, 4, v10\nds_bpermute_b32 v12, v10, v9\ns_waitcnt lgkmcnt(0)")
        A(f"v_min_u32 v11, 9999, v11\nv_min_u32 v12, 9999, v12\nv_mul_u32_u24 v11, 10000, v11\nv_add_u32 v11, v11, v12")
        srd(TA_, pDBG, 64)
        A(f"buffer_store_dword v11, v5, {TA_}, 0 offen")
    if diag2:
        role, st, op, role0, st0, op0, mult = diag2
        A(f"s_mov_b64 exec, -1\ns_cmp_lg_u32 s2, 0\ns_cbranch_scc1 L_end\ns_cmp_lg_u32 {sW}, 4\ns_cbranch_scc1 L_end")
        A(f"L_dh:\ns_memrealtime s[72:73]\ns_waitcnt lgkmcnt(0)\ns_sub_u32 {sT1}, s72, s{sST}\ns_cmp_lt_u32 {sT1}, 20000\ns_cbranch_scc1 L_dh")
        A(f"v_mul_u32_u24 v5, 320, {vLANE}")
        for k in range(4):
            A(f"s_mov_b32 {sT0}, {WS_ST + 64*320*k}\nbuffer_load_dword v{8+k}, v5, {WS_}, {sT0} offen offset:{64*role0+4*st0} sc1\nbuffer_load_dword v{12+k}, v5, {WS_}, {sT0} offen offset:{64*role+4*st} sc1")
        A("s_waitcnt vmcnt(0)")
        for k in range(8): A(f"v_subrev_u32 v{8+k}, s{sST}, v{8+k}")
        vop = {"max": "v_max_i32", "min": "v_min_i32", "mean": "v_add_u32"}[op]; vop0 = {"max": "v_max_i32", "min": "v_min_i32", "mean": "v_add_u32"}[op0]
        for k in range(1, 4): A(f"{vop0} v8, v8, v{8+k}\n{vop} v12, v12, v{12+k}")
        allred_lo(vop0, ["v8"]); allred_top(vop0, ["v8"], ["v9"])
        allred_lo(vop, ["v12"]); allred_top(vop, ["v12"], ["v13"])
        A(f"v_readfirstlane_b32 {sT0}, v12\nv_readfirstlane_b32 {sT1}, v8\ns_mul_i32 {sT0}, {sT0}, {mult}\ns_mul_i32 {sT1}, {sT1}, {mult}")
        if op == "mean": A(f"s_ashr_i32 {sT0}, {sT0}, 8")
        if op0 == "mean": A(f"s_ashr_i32 {sT1}, {sT1}, 8")
        A(f"s_sub_u32 {sT0}, {sT0}, {sT1}\ns_add_u32 {sT0}, {sT0}, 30000\ns_min_u32 {sT0}, {sT0}, 200000")
        A(f"L_dg2:\ns_memrealtime s[72:73]\ns_waitcnt lgkmcnt(0)\ns_sub_u32 {sT1}, s72, s{sST}\ns_cmp_lt_u32 {sT1}, {sT0}\ns_cbranch_scc1 L_dg2")
    A("L_end:\ns_endpgm")
    A('.section .rodata,"a"\n.p2align 6')
    A(f".amdhsa_kernel {KN}")
    nv4 = (NV+3)//4*4
    A(f".amdhsa_next_free_vgpr {nv4}\n.amdhsa_next_free_sgpr 102\n.amdhsa_accum_offset {nv4}")
    A(".amdhsa_group_segment_fixed_size 0\n.amdhsa_kernarg_size 96\n.amdhsa_user_sgpr_count 2")
    A(".amdhsa_user_sgpr_kernarg_segment_ptr 1\n.amdhsa_system_sgpr_workgroup_id_x 1")
    A(".amdhsa_float_denorm_mode_32 3\n.end_amdhsa_kernel")
    return A.finish()

if __name__ == "__main__":
    kw = eval("dict(" + (sys.argv[2] if len(sys.argv) > 2 else "") + ")")
    open(sys.argv[1], "w").write(gen(**kw))
```

```python
import sys, os
sys.path.insert(0, os.path.dirname(os.path.abspath(__file__)))
from asmlib import Asm
KN = "parallel_sum__mha_block_cached__glu_gated_reglu__decode_kernel"
HEADER = open("parallel_sum__mha_block_cached__glu_gated_reglu__decode.s.ref").read().split("; Override launch")[0]

DOC = '''; ---------------------------------------------------------------------------------------------------------------
; Hand-offs go through d_ws in 16-byte granules {data, tag}.  tag is derived from the epoch word found in d_ws and is left
; ---------------------------------------------------------------------------------------------------------------'''
HB = 32768*384
TB = 32*HB
WS_QF = 0x4000
WS_EP, WS_LS, WS_H3, WS_XX, WS_PR, WS_QS, WS_H1, WS_ST, WS_H2, WS_SIZE = 0, 0x8000, 0x10000, 0x20000, 0x40000, 0x80000, 0x100000, 0x200000, 0x280000, 0x400000
OOB = 0x40000000
SPIN = 1 << 20

def gen(NSEG=8, G=6, F=5, FH=6, RB=8, pace=6, deep=0, per=8, bs=2, fb=22, fbo=26, pre0=2, pre1=4, trig=16, op='sc1', nre=8, rev=1, blate=0, hoist=1, wf=3, e2=0, preA=0, b0=0, tp='sc1', cpf=1, wpf='hg', wpp='sc1', early=1, tlb=2, skip='', xmap=1, xd=(6,5,3,1,-1,-3,-5,-6), xp=(3,7,11,15,19,23,27), xd2=None, xb=22, xc=0, PI=(6,7,5,4,3,2,1,0), xs=0, np3=1, s3=6, dfirst=1, ab=0, psleep=4,
        spin=SPIN, local=1, lp="nt", pf=None, pfw="yh", pt='sc1', qp='', xl=None, p3s='sc1', p3l='sc1', sched=(4,3,3,3,0,0), ptpos=6, own=1, lsb=17, stamps=False, diag=None, diag2=None, stA=3, stB=29, diag3=0):
    A = Asm()
    NG = 32//NSEG; GS = 8*NSEG; BPS = 16//NSEG; LGS = GS.bit_length()-1
    PAIR = NSEG == 8
    TSTR = GS*4*3072
    assert G < RB and 24 % RB == 0 and NSEG == 8 and G == 6
    if diag2 or diag3: stamps = True
    timed = stamps or diag is not None
    L_OP = 0; L_W = 8192; L_YP = L_W + 15360; L_U = L_YP + 12800 + 64; L_QP = L_U + 128; L_QB = L_QP + 6400; L_ML = L_QB + 384*9
    L_CT = L_ML + 128; L_SC = L_CT + 64; L_SIZE = L_SC + 16384 + 256
    assert L_SC < 65536
    sW, sHQ, sS, sG, sMEM = "s3", "s4", "s5", "s6", "s7"
    KV_, WS_, TA_, TB_, TC_, X_ = "s[8:11]", "s[16:19]", "s[20:23]", "s[24:27]", "s[28:31]", "s[32:35]"
    mB1, mB0 = "s[12:13]", "s[14:15]"
    pX, pK, pV, pWQ, pWO, pWG, pWU, pWD, pOUT, pDBG, pWS = 36, 38, 40, 42, 44, 48, 50, 52, 54, 56, 58
    sOFF, sOFF0, sIB, sBLK, sLIN, sX, sC, sT0, sT1, sT2, sT3, sOWN = [f"s{r}" for r in range(60, 72)]
    sTAG = "s46"
    sST = 84
    vLANE, vKV, vA, vB = "v0", "v1", "v2", "v3"
    ACC, Q = 8, 32
    T = 44
    RING = 56
    PB = RING + 48
    NV = PB + 96
    t0, t1, t2, t3 = f"v{T}", f"v{T+1}", f"v{T+2}", f"v{T+3}"
    def stamp(i):
        if timed: A(f"s_memrealtime s[{sST+2*i}:{sST+2*i+1}]")
    def srd_hi(name, size):
        b = int(name[2:name.index(":")]); A(f"s_mov_b32 s{b+2}, {size}\ns_mov_b32 s{b+3}, 0x20000")
    def srd_lo(name, ptr):
        b = int(name[2:name.index(":")]); A(f"s_mov_b64 s[{b}:{b+1}], s[{ptr}:{ptr+1}]")
    def srd(name, ptr, size): srd_lo(name, ptr); srd_hi(name, size)
    DPP = "row_mask:0xf bank_mask:0xf"
    PATS = ("quad_perm:[1,0,3,2]", "quad_perm:[2,3,0,1]", "row_half_mirror", "row_mirror")
    def allred_lo(op, vs, n=4):
        for pat in PATS[:n]:
            for v in vs: A(f"{op}_dpp {v}, {v}, {v} {pat} {DPP}")
    def allred_top(op, vs, ts):
        for sw in ("v_permlane16_swap_b32", "v_permlane32_swap_b32"):
            for v, t in zip(vs, ts): A(f"v_mov_b32 {t}, {v}")
            for v, t in zip(vs, ts): A(f"{sw} {t}, {v}")
            for v, t in zip(vs, ts): A(f"{op} {v}, {v}, {t}")
    def redscat(base, n):
        for g in range(n):
            for e in range(4): A(f"v_permlane32_swap_b32 v{base+8*g+e}, v{base+8*g+e+4}")
        for g in range(n):
            for e in range(4): A(f"v_add_f32 v{base+8*g+e}, v{base+8*g+e}, v{base+8*g+e+4}")
        for g in range(n):
            for e in range(2): A(f"v_permlane16_swap_b32 v{base+8*g+e}, v{base+8*g+e+2}")
        for g in range(n):
            for e in range(2): A(f"v_add_f32 v{base+8*g+e}, v{base+8*g+e}, v{base+8*g+e+2}")
        for g in range(n):
            A(f"v_add_f32_dpp v{base+8*g}, v{base+8*g}, v{base+8*g} row_ror:8 row_mask:0xf bank_mask:0x3")
        for g in range(n):
            A(f"v_add_f32_dpp v{base+8*g}, v{base+8*g+1}, v{base+8*g+1} row_ror:8 row_mask:0xf bank_mask:0xc")
    def redscat_lo(bases):
        for S in bases:
            for e in range(4): A(f"v_add_f32_dpp v{S+e}, v{S+e}, v{S+e} row_half_mirror row_mask:0xf bank_mask:0x5")
        for S in bases:
            for e in range(4): A(f"v_add_f32_dpp v{S+e}, v{S+e+4}, v{S+e+4} row_half_mirror row_mask:0xf bank_mask:0xa")
        for S in bases:
            for e in range(4): A(f"v_add_f32_dpp v{S+e}, v{S+e}, v{S+e} quad_perm:[2,3,0,1] {DPP}")
        for S in bases:
            for e in range(2): A(f"v_cndmask_b32 v{S+e}, v{S+e}, v{S+e+2}, {mB1}")
        for S in bases:
            for e in range(2): A(f"v_add_f32_dpp v{S+e}, v{S+e}, v{S+e} quad_perm:[1,0,3,2] {DPP}")
        for S in bases: A(f"v_cndmask_b32 v{S}, v{S}, v{S+1}, {mB0}")
    def axpy(acc, data, n, pl, ph):
        for i in range(n):
            A(f"v_dot2c_f32_bf16 v{acc+2*i}, v{data+i}, {pl}\nv_dot2c_f32_bf16 v{acc+2*i+1}, v{data+i}, {ph}")
    def ld(reg, j): A(f"buffer_load_dwordx4 v[{reg}:{reg+3}], {vKV}, {KV_}, {sOFF} offen offset:{128*j} nt")
    uid = [0]
    PILUT = sum(p << (4*i) for i, p in enumerate(PI))
    assert PI[0] != 7 and sorted(PI) == list(range(8))
    sSTR, sOF5, sQF = "s74", "s75", "s83"
    J5 = PI.index(5); B5 = 16 + 2*J5
    assert J5 == 2
    FMASK = hex(sum(1 << (b % 32) for b in list(range(18, 33, 2)) + [B5+1]))
    def next_block(last):
        uid[0] += 1; u = uid[0]
        A(f"s_add_u32 {sIB}, {sIB}, 1\ns_sub_u32 {sT0}, {sIB}, {B5 if last else 10}\ns_cmp_gt_u32 {sT0}, 1\ns_cbranch_scc1 L_n5{u}")
        if last and rev:
            A(f"s_add_u32 {sOFF}, {sOF5}, {2*HB}\ns_mov_b32 {sSTR}, {2*TSTR}\ns_cmp_eq_u32 {sT0}, 0\ns_cbranch_scc1 L_nb{u}")
            A(f"s_add_u32 {sOFF}, {sOF5}, {14*TSTR}\ns_mov_b32 {sSTR}, {-2*TSTR}\ns_branch L_nb{u}\nL_n5{u}:")
        else:
            if last: A(f"s_xor_b32 {sT0}, {sT0}, 1")
            A(f"s_mul_i32 {sT0}, {sT0}, {2*HB}\ns_add_u32 {sOFF}, {sOF5}, {sT0}\ns_mov_b32 {sSTR}, {2*TSTR}\ns_branch L_nb{u}\nL_n5{u}:")
        A(f"s_and_b32 {sT0}, {sIB}, 1\ns_cbranch_scc1 L_nb{u}\ns_mov_b32 {sSTR}, {TSTR}")
        if not last:
            A(f"s_mul_i32 {sOFF}, {sIB}, {NG*HB//2}\ns_add_u32 {sOFF}, {sOFF}, {sOFF0}")
            A(f"s_cmp_lg_u32 {sIB}, 16\ns_cbranch_scc1 L_nb{u}")
            A(f"s_mov_b64 s[8:9], s[{pV}:{pV+1}]\ns_add_u32 {sOFF}, {sOFF0}, {PI[0]*NG*HB}")
        else:
            A(f"s_lshl_b32 {sT0}, {sIB}, 1\ns_lshr_b32 {sT0}, {hex(PILUT)}, {sT0}\ns_and_b32 {sT0}, {sT0}, 7")
            A(f"s_mul_i32 {sOFF}, {sT0}, {NG*HB}\ns_add_u32 {sOFF}, {sOFF}, {sOFF0}")
        A(f"L_nb{u}:")
    def lev(n, f):
        fr = f - int(f)
        return int(f) + (1 if int((n+1)*fr + 1e-9) != int(n*fr + 1e-9) else 0)
    cps = list(range(0, 24, per)) if fb else []
    assert all(c + G + 1 <= 23 for c in cps) and per > G
    PR_, sTHR, vPC, vPO, vPL, vPS = TC_, "s72", "v52", "v53", "v54", "v55"
    def slot(n, last=False):
        uid[0] += 1; u = uid[0]
        fi, fh = lev(n, F), lev(n, FH)
        assert fi <= fh <= G
        def cnt(x): return x - 1 + 2*sum(1 for c in cps if 0 < n - c <= x)
        m = n + G
        if m % 3 == 0:
            A(f"s_add_u32 {sOFF}, {sOFF}, {sSTR}")
            if m == 24: next_block(last)
        if fi < fh: A(f"s_cbranch_vccnz L_dp{u}\ns_waitcnt vmcnt({cnt(fi)})\nL_dp{u}:")
        A(f"s_waitcnt vmcnt({cnt(fh)})")
        ld(RING + 4*(m % RB), m % 3)
        if n - G - 1 in cps:
            if xd:
                A(f"v_readlane_b32 {sT1}, {vPO}, 32\ns_sub_u32 {sT1}, {sT1}, {sTAG}\ns_cmp_lt_u32 {sT1}, 33\ns_cselect_b32 {sTHR}, {sT1}, {sTHR}")
            A(f"v_sub_u32 {vPO}, {vPO}, {vPC}\nv_cmp_gt_u32 vcc, 64, {vPO}\ns_bcnt1_i32_b32 {sT0}, vcc_lo")
            A(f"s_cmp_gt_u32 {sT0}, {sTHR}\ns_cselect_b64 vcc, -1, 0")
            if stamps: A(f"s_and_b32 {sT0}, vcc_lo, 1\ns_add_u32 s47, s47, {sT0}")
            if last and deep: A(f"s_cmp_ge_u32 {sBLK}, {32-deep}\ns_cselect_b64 vcc, -1, vcc")
        if n in cps:
            A(f"v_add_u32 {vPC}, 1, {vPC}\nbuffer_store_dword {vPC}, {vPS}, {PR_}, 0 offen\nbuffer_load_dword {vPO}, {vPL}, {PR_}, 0 offen nt")
    def qk4(acc, data, j):
        for e in range(4):
            if j == 0 and e == 0: A(f"v_dot2_f32_bf16 v{acc}, v{data}, v{Q}, 0")
            else: A(f"v_dot2_f32_bf16 v{acc}, v{data+e}, v{Q+4*j+e}, v{acc}")

    A(HEADER.rstrip())
    A(f"; @launch grid=(256,1,1) block=(320,1,1) lds={L_SIZE}")
    A(DOC)
    A('.amdgcn_target "amdgcn-amd-amdhsa--gfx950"\n.text')
    A(f".globl {KN}\n.p2align 8\n.type {KN},@function\n{KN}:")
    A("s_load_dwordx16 s[36:51], s[0:1], 0\ns_load_dwordx8 s[52:59], s[0:1], 64")
    A("s_cmp_ge_u32 s2, 256\ns_cbranch_scc1 L_end")
    stamp(0)
    A(f"s_setprio 3\nv_bfe_u32 {vA}, v0, 3, 3\nv_lshrrev_b32 v1, 6, v0\nv_and_b32 {vB}, 7, v0\nv_lshl_add_u32 v6, v1, 4, {vA}\nv_lshlrev_b32 v9, 4, {vB}")
    A(f"v_mul_u32_u24 v4, 12288, v6\nv_mov_b32 v8, 0\nv_add_u32 v4, v4, v9\nds_write_b32 v8, v8 offset:{L_CT}")
    A(f"s_and_b32 {sX}, s2, 7\ns_lshr_b32 {sC}, s2, 3\ns_lshl_b32 {sT0}, {sX}, 5\ns_add_u32 {sLIN}, {sT0}, {sC}\ns_lshr_b32 {sG}, {sX}, 1\ns_and_b32 {sS}, {sC}, 7")
    A(f"s_lshr_b32 {sT0}, {sLIN}, 1\ns_and_b32 {sT0}, {sT0}, 28\ns_add_u32 {sHQ}, {sT0}, {sG}")
    A(f"s_mul_i32 {sT1}, {sS}, {80*12288}\ns_mul_i32 {sT2}, {sHQ}, 384\ns_add_u32 {sT1}, {sT1}, {sT2}")
    srd_hi(TA_, 640*12288)
    def entry2a():
        A(f"v_and_b32 {vLANE}, 63, v0\nv_mul_u32_u24 v5, 3072, v6\nv_lshlrev_b32 v6, 1, v6\nv_lshlrev_b32 v7, 4, {vLANE}\ns_mul_i32 {sT0}, {sS}, 160")
        srd_hi(X_, 1280)
    def entry2b():
        A(f"v_readfirstlane_b32 {sW}, v1\nv_add_u32 v5, v5, v9\nv_mov_b32 v10, {OOB}\nv_cmp_gt_u32 vcc, 6, {vB}\nv_mul_u32_u24 {vKV}, 384, {vA}\nv_add_u32 {vKV}, {vKV}, v9\nv_cndmask_b32 v5, v10, v5, vcc")
        A(f"s_mul_i32 {sT2}, {sS}, {80*3072}\ns_lshr_b32 {sT3}, {sLIN}, 3\ns_mul_i32 {sT3}, {sT3}, 96\ns_add_u32 {sT2}, {sT2}, {sT3}")
        srd_hi(TB_, 640*3072); srd_hi(TC_, 640*3072)
    if e2 >= 1: entry2a()
    if e2 >= 2: entry2b()
    A("s_waitcnt lgkmcnt(0)")
    def code_touch(lab, reg):
        A("; read one KiB of this kernel's code so that later instruction fetches find it in the caches")
        A(f"s_getpc_b64 s[74:75]\n{lab}:\ns_lshl_b32 s76, {sC}, 10\nv_add_u32 v{reg}, s76, v7\nv_min_u32 v{reg}, L_end-{KN}-16, v{reg}")
        A(f"s_sub_u32 s74, s74, {lab}-{KN}\ns_subb_u32 s75, s75, 0\nv_mov_b32 v{reg+1}, s75\nv_add_co_u32 v{reg}, vcc, s74, v{reg}\nv_addc_co_u32 v{reg+1}, vcc, 0, v{reg+1}, vcc")
        A(f"global_load_dword v{reg+2}, v[{reg}:{reg+1}], off")
    def page_touch():
        A("; scalar reads of one word per 2 MiB page my peers will stream (and of wo, out): address translations are ready in time")
        A(f"s_bfe_u32 s76, {sC}, {(3<<16)|1}\ns_lshl_b32 s77, s76, 2\ns_add_u32 s77, s77, {sG}\ns_mul_i32 s77, s77, {HB}")
        A(f"s_bitcmp1_b32 {sC}, 4\ns_cselect_b64 s[74:75], s[{pV}:{pV+1}], s[{pK}:{pK+1}]\ns_cselect_b64 s[80:81], s[{pOUT}:{pOUT+1}], s[{pWO}:{pWO+1}]")
        A(f"s_cmp_eq_u32 {sC}, 31\ns_cselect_b64 s[80:81], s[{pWD}:{pWD+1}], s[80:81]\ns_bitcmp1_b32 {sC}, 4")
        A(f"s_cselect_b32 s76, 0, s76\ns_and_b32 s76, s76, 3\ns_lshl_b32 s76, s76, 21\ns_add_u32 s80, s80, s76\ns_addc_u32 s81, s81, 0")
        A(f"s_add_u32 s74, s74, s77\ns_addc_u32 s75, s75, 0\ns_bitcmp1_b32 {sC}, 0\ns_cbranch_scc1 L_pt1")
        for k in range(4):
            A(f"s_load_dword s{76+k}, s[74:75], 0x0")
            if k < 3: A(f"s_add_u32 s74, s74, {1<<21}\ns_addc_u32 s75, s75, 0")
        A("s_branch L_pt2\nL_pt1:")
        for k, d in enumerate((4 << 21, 1 << 21, (1 << 21) - 4)):
            A(f"s_add_u32 s74, s74, {d}\ns_addc_u32 s75, s75, 0\ns_load_dword s{76+k}, s[74:75], 0x0")
        A("s_load_dword s79, s[80:81], 0x0\nL_pt2:")
        A(f"s_bitcmp1_b32 {sC}, 4\ns_cselect_b64 s[74:75], s[{pV}:{pV+1}], s[{pK}:{pK+1}]\ns_and_b32 s82, {sC}, 7\ns_lshl_b32 s82, s82, 21\ns_min_u32 s82, s82, {HB-4}")
        A(f"s_xor_b32 s83, {sG}, 2\ns_add_u32 s83, s83, 20\ns_mul_i32 s83, s83, {HB}\ns_add_u32 s82, s82, s83\ns_add_u32 s74, s74, s82\ns_addc_u32 s75, s75, 0\ns_load_dword s82, s[74:75], 0x0")
    def touches():
        if cpf == 1: code_touch("L_pc1", PB+88)
        if wpf:
            A("; first touch of the hand-off lines this workgroup writes later")
            for ch, base, sh, n in (("h", WS_H1, 11, 2), ("y", WS_H2, 12, 4), ("g", WS_QS + 1024, 11, 1), ("q", WS_QS, 11, 1)):
                if ch in wpf:
                    A(f"s_lshl_b32 {sT0}, {sLIN}, {sh}\ns_add_u32 {sT0}, {sT0}, {base}")
                    for i in range(n): A(f"buffer_load_dword v{PB+92}, v7, {WS_}, {sT0} offen offset:{1024*i} {tp}")
            small = [(WS_LS, 7, 0), (WS_XX, 8, 0), (WS_XX, 8, 128), (WS_H3, 7, 0), (WS_QF, 6, 0)]
            sel = [e for e, ch in zip(small, "lxx3f") if ch in wpf]
            if sel or "p" in wpf:
                A(f"v_mov_b32 v{PB+93}, {OOB}")
                for i, (base, sh, off) in enumerate(sel):
                    A(f"s_lshl_b32 {sT0}, {sLIN}, {sh}\ns_add_u32 {sT0}, {sT0}, {base+off}\nv_writelane_b32 v{PB+93}, {sT0}, {i}")
                if "p" in wpf:
                    A(f"s_lshr_b32 {sT0}, {sLIN}, 3\ns_mul_i32 {sT0}, {sT0}, 4224\ns_add_u32 {sT0}, {sT0}, {WS_PR}\nv_writelane_b32 v{PB+93}, {sT0}, 8")
                    A(f"s_add_u32 {sT0}, {sT0}, 128\nv_writelane_b32 v{PB+93}, {sT0}, 9\ns_mul_i32 {sT0}, {sX}, 4224\ns_add_u32 {sT0}, {sT0}, {WS_PR+0x30000}\nv_writelane_b32 v{PB+93}, {sT0}, 10")
                A(f"buffer_load_dword v{PB+92}, v{PB+93}, {WS_}, 0 offen {wpp}")
    XR, WD, WA = RING + 40, RING, ACC
    wl = []
    for t in range(2):
        for j in range(3):
            wl.append(f"buffer_load_dwordx4 v[{WD+20*t+4*j}:{WD+20*t+4*j+3}], v4, {TA_}, {sT1} offen offset:{128*j} nt")
        if t == 0: wl[-1] += f"\ns_add_u32 {sT1}, {sT1}, {8*12288}"
    for t in range(2):
        wl.append(f"buffer_load_dwordx4 v[{WD+20*t+12}:{WD+20*t+15}], v5, {TB_}, {sT2} offen nt")
        wl.append(f"buffer_load_dwordx4 v[{WD+20*t+16}:{WD+20*t+19}], v5, {TC_}, {sT2} offen nt")
        if t == 0: wl[-1] += f"\ns_add_u32 {sT2}, {sT2}, {8*3072}"
    assert 1 <= wf <= 6
    srd_lo(TA_, pWQ)
    for l in wl[:wf]: A(l)
    if e2 < 1: entry2a()
    srd_lo(X_, pX)
    A(f"buffer_load_dwordx4 v[{XR}:{XR+3}], v7, {X_}, 0 offen")
    A(f"buffer_load_dwordx4 v[{XR+4}:{XR+7}], v7, {X_}, 0 offen offset:1024")
    A(f"buffer_load_ushort v{T+10}, v6, {X_}, {sT0} offen")
    A(f"buffer_load_ushort v{T+11}, v6, {X_}, {sT0} offen offset:16")
    if e2 < 2: entry2b()
    srd_lo(TB_, pWG); srd_lo(TC_, pWU)
    A(f"s_load_dword {sTAG}, s[{pWS}:{pWS+1}], {WS_EP}")
    for i, l in enumerate(wl[wf:] + [""]):
        if i == b0: A("s_barrier")
        A(l)
    srd(KV_, pK, TB); srd(WS_, pWS, WS_SIZE)
    A(f"s_and_b32 {sMEM}, {sLIN}, {GS-1}\ns_sub_u32 {sW}, {sW}, 1\ns_cselect_b32 {sW}, 4, {sW}")
    A(f"s_lshl_b32 {sT0}, {sMEM}, 2\ns_add_u32 {sT0}, {sT0}, {sW}\ns_mul_i32 {sT0}, {sT0}, 3072")
    A(f"s_mul_i32 {sOFF0}, {sG}, {HB}\ns_add_u32 {sOFF0}, {sOFF0}, {sT0}\ns_mov_b32 {sOFF}, {sOFF0}")
    A(f"s_mov_b32 s12, 0xcccccccc\ns_mov_b32 s13, 0xcccccccc\ns_mov_b32 s14, 0xaaaaaaaa\ns_mov_b32 s15, 0xaaaaaaaa")
    A(f"s_and_b32 {sOWN}, {sX}, 1\ns_xor_b32 {sOWN}, {sOWN}, {own}")
    assert early == 1 and cpf == 1 and wpf == "hg"
    NT = 4
    if early:
        A(f"s_cmp_lg_u32 {sW}, {4 if early == 1 else 3}\ns_cbranch_scc1 L_not"); touches()
        if tlb == 1: page_touch()
        A("L_not:")
    sD = [f"s{r}" for r in range(74, 80)]; sL = ["s80", "s81", "s82"]
    def dma_setup():
        srd(TA_, pWO, 6144*1280); srd(TB_, pWD, 1536*1280)
        A(f"s_lshl_b32 {sT2}, {sS}, 3\ns_lshr_b32 {sT1}, {sC}, 3\ns_lshl_b32 {sT1}, {sT1}, 1\ns_add_u32 {sT2}, {sT2}, {sT1}")
        A(f"s_mul_i32 {sT1}, {sG}, 192\ns_add_u32 {sT2}, {sT2}, {sT1}")
        A(f"s_lshl_b32 {sT0}, {sW}, 1\ns_add_u32 {sT0}, {sT0}, {sOWN}\ns_lshl_b32 {sT0}, {sT0}, 2\ns_lshr_b32 {sT0}, {hex(PILUT)}, {sT0}\ns_and_b32 {sT0}, {sT0}, 7\ns_mul_i32 {sT0}, {sT0}, {NG*192}\ns_add_u32 {sT0}, {sT0}, {sT2}")
        A(f"s_mul_i32 {sL[0]}, {sT0}, 1280\ns_add_u32 {sL[1]}, {sL[0]}, {64*1280}\ns_add_u32 {sL[2]}, {sL[0]}, {128*1280}")
        A(f"s_lshl_b32 {sT0}, {sW}, 6\ns_add_u32 {sT0}, {sT0}, {sT2}\ns_add_u32 {sT0}, {sT0}, {PI[7]*NG*192}\ns_mul_i32 {sD[2]}, {sT0}, 1280\ns_mul_i32 {sD[3]}, {sW}, 2560")
        A(f"s_mul_i32 {sT0}, {sLIN}, 7680\ns_lshl_b32 {sD[5]}, {sW}, 11\ns_add_u32 {sD[4]}, {sT0}, {sD[5]}")
        if blate: A(f"s_cmp_eq_u32 {sOWN}, 1\ns_cselect_b32 s26, 0, s26\ns_cselect_b32 {sD[4]}, 0, {sD[4]}")
    def w(paced):
        if paced: A(f"s_waitcnt vmcnt({pace-1})")
    def op_pb(n):
        def f(paced):
            if n and n % 3 == 0: A(f"s_add_u32 {sOFF}, {sOFF}, {TSTR}")
            w(paced); ld(PB + 4*n, n % 3)
        return f
    def op_wo(jj, i, off=0, base=7680):
        def f(paced):
            if i == 0: A(f"s_add_u32 m0, {sD[off+1]}, {L_W+base+2560*jj}")
            if i == 2: A("s_mov_b32 exec_hi, 0")
            w(paced); A(f"buffer_load_dwordx4 v7, {TA_}, {sD[off]} offen offset:{1024*i} nt lds")
            if i == 2: A(f"s_mov_b32 exec_hi, -1\ns_add_u32 {sD[off]}, {sD[off]}, {64*1280}")
        return f
    def op_wd(i):
        def f(paced):
            if i == 0: A(f"s_add_u32 m0, {sD[5]}, {L_W}")
            else: A(f"s_cmp_eq_u32 {sW}, 3\ns_cselect_b32 exec_hi, 0, -1")
            w(paced); A(f"buffer_load_dwordx4 v7, {TB_}, {sD[4]} offen offset:{1024*i} nt lds")
            if i: A("s_mov_b32 exec_hi, -1")
        return f
    def op_s4(paced):
        A("; rows of the last segment")
        A(f"s_cmp_eq_u32 {sW}, 3\ns_cbranch_scc1 L_nos4")
        for i in range(3): op_wo(0, i, 2, 7680)(paced)
        A("L_nos4:")
    dma = [op_wd(0), op_wd(1), op_s4]
    pbs = [op_pb(n) for n in range(24)]
    ops = dma[:2] + pbs
    ops.insert(max(2, pre0), op_s4)
    assert preA <= pre0 <= pre1
    dma_setup()
    A(f"s_cmp_eq_u32 {sW}, 4\ns_cbranch_scc1 L_ln\ns_setprio 1\ns_waitcnt vmcnt({10-wf})")
    for n in range(preA): ops[n](False)
    A(f"s_branch L_ln2\nL_ln:\ns_waitcnt vmcnt({10-wf+NT})\nL_ln2:\ns_waitcnt lgkmcnt(0)")
    A(f"s_mul_i32 {sTAG}, {sTAG}, 1664525\ns_add_u32 {sTAG}, {sTAG}, 1013904223")
    XF = WA
    for i in range(8):
        A(f"v_lshlrev_b32 v{XF+2*i}, 16, v{XR+i}\nv_and_b32 v{XF+2*i+1}, 0xffff0000, v{XR+i}")
    l0, l1, l2, l3 = "v24", "v25", "v26", "v27"
    A(f"v_add_f32 {l0}, v{XF}, v{XF+1}\nv_add_f32 {l1}, v{XF+2}, v{XF+3}")
    for i in range(4, 16, 2): A(f"v_add_f32 {l0}, {l0}, v{XF+i}\nv_add_f32 {l1}, {l1}, v{XF+i+1}")
    A(f"v_add_f32 {l0}, {l0}, {l1}")
    allred_lo("v_add_f32", [l0]); allred_top("v_add_f32", [l0], [l1])
    A(f"v_mul_f32 {l0}, 0x3acccccd, {l0}")
    for i in range(16): A(f"v_sub_f32 v{XF+i}, v{XF+i}, {l0}")
    A(f"v_mul_f32 {l1}, v{XF}, v{XF}\nv_mul_f32 {l2}, v{XF+8}, v{XF+8}")
    for i in range(1, 8): A(f"v_fmac_f32 {l1}, v{XF+i}, v{XF+i}\nv_fmac_f32 {l2}, v{XF+8+i}, v{XF+8+i}")
    A(f"v_cmp_gt_u32 vcc, 16, {vLANE}\nv_cndmask_b32 {l2}, 0, {l2}, vcc\nv_add_f32 {l1}, {l1}, {l2}")
    allred_lo("v_add_f32", [l1]); allred_top("v_add_f32", [l1], [l2])
    A(f"v_mul_f32 {l1}, 0x3acccccd, {l1}")
    A(f"v_readfirstlane_b32 {sT0}, {l0}\nv_readfirstlane_b32 {sT1}, {l1}\ns_mul_i32 {sT0}, {sT0}, 0x9E3779B1\ns_add_u32 {sT0}, {sT0}, {sT1}")
    A(f"s_lshl_b32 {sT0}, {sT0}, 2\ns_add_u32 {sTAG}, {sTAG}, {sT0}")
    A(f"v_cvt_pk_bf16_f32 {l0}, 0, {l0}\nv_cvt_pk_bf16_f32 {l1}, 0, {l1}")
    A(f"v_add_f32 {l1}, 0x3727c5ac, {l1}\nv_cvt_pk_bf16_f32 {l1}, 0, {l1}\nv_sqrt_f32 {l1}, {l1}")
    A(f"v_cvt_pk_bf16_f32 {l1}, 0, {l1}\nv_rcp_f32 {l2}, {l1}")
    for t in range(2):
        xr = f"v{T+10+t}"
        A(f"v_lshlrev_b32 {xr}, 16, {xr}\nv_sub_f32 {xr}, {xr}, {l0}\nv_cvt_pk_bf16_f32 {xr}, 0, {xr}")
        A(f"v_mul_f32 {l3}, {xr}, {l2}\nv_fma_f32 {xr}, -{l3}, {l1}, {xr}\nv_fma_f32 {xr}, {xr}, {l2}, {l3}")
        A(f"v_cvt_pk_bf16_f32 v{T+6+2*t}, {xr}, 0\nv_cvt_pk_bf16_f32 v{T+7+2*t}, 0, {xr}")
    for i in range(40): A(f"v_mov_b32 v{WA+i}, 0")
    stamp(1)
    A(f"s_cmp_eq_u32 {sW}, 4\ns_cbranch_scc1 L_nopre0\ns_waitcnt vmcnt({4+preA})")
    for n in range(preA, pre0): ops[n](False)
    A(f"s_branch L_pre1\nL_nopre0:\ns_waitcnt vmcnt({4+NT})\nL_pre1:")
    for t in range(2): axpy(WA, WD+20*t, 12, f"v{T+6+2*t}", f"v{T+7+2*t}")
    A(f"s_cmp_eq_u32 {sW}, 4\ns_cbranch_scc1 L_nopre1\ns_waitcnt vmcnt({pre0})")
    for n in range(pre0, pre1): ops[n](False)
    A(f"s_branch L_pre2\nL_nopre1:\ns_waitcnt vmcnt({NT})\nL_pre2:")
    for t in range(2): axpy(WA+24, WD+20*t+12, 8, f"v{T+6+2*t}", f"v{T+7+2*t}")
    redscat(WA, 5)
    A(f"s_mul_i32 {sT0}, {sW}, 1280\nv_lshl_add_u32 v4, {vLANE}, 2, {sT0}")
    for k in range(5): A(f"ds_write_b32 v4, v{WA+8*k} offset:{L_QP+256*k}")
    A(f"v_mov_b32 v5, 0\nv_mov_b32 v6, 1\ns_mov_b64 exec, 1\nds_add_u32 v5, v6 offset:{L_CT}\ns_mov_b64 exec, -1")
    stamp(2)
    if ab: A("s_barrier")
    A(f"s_cmp_eq_u32 {sW}, 4\ns_cbranch_scc1 L_svc")
    for n in range(pre1, len(ops)):
        ops[n](True)
        if n == trig: A(f"v_mov_b32 v6, 64\ns_mov_b64 exec, 1\nds_add_u32 v5, v6 offset:{L_CT}\ns_mov_b64 exec, -1")
    A(f"s_mov_b32 {sIB}, 1")
    for m in range(G):
        if m % 3 == 0: A(f"s_add_u32 {sOFF}, {sOFF}, {TSTR}")
        A(f"s_waitcnt vmcnt({pace-1})"); ld(RING + 4*m, m % 3)
    vQA, vSA = "v4", "v5"
    A(f"v_lshlrev_b32 {vQA}, 4, {vB}\nv_add_u32 {vQA}, {L_QB}, {vQA}")
    A(f"s_lshl_b32 {sT0}, {sW}, 12\ns_add_u32 {sT0}, {sT0}, {L_SC}\nv_lshl_add_u32 {vSA}, {vLANE}, 2, {sT0}")
    A(f"s_lshl_b32 {sT0}, {sX}, 2\ns_add_u32 {sT0}, {sT0}, {sW}\ns_mul_i32 {sT0}, {sT0}, 4224\ns_add_u32 {sT0}, {sT0}, {WS_PR}")
    A(f"s_add_u32 s28, s{pWS}, {sT0}\ns_addc_u32 s29, s{pWS+1}, 0\ns_mov_b32 s30, {132 if xd else 128}")
    A(f"v_lshlrev_b32 {vPL}, 2, {vLANE}\nv_mov_b32 {vPS}, 0x1000\nv_cmp_eq_u32 vcc, {sC}, {vLANE}\nv_cndmask_b32 {vPS}, {vPS}, {vPL}, vcc\nv_mov_b32 {vPC}, {sTAG}")
    A(f"s_getreg_b32 {sTHR}, hwreg(HW_REG_XCC_ID)\ns_bitcmp1_b32 {sTHR}, 0\ns_cselect_b32 {sTHR}, {fbo}, {fb}")
    if blate:
        A("; a wave without a segment of its own takes the six Wd rows at the end (the copy in LDS is zero then)")
        A(f"s_add_u32 {sT0}, {sW}, {sOWN}\ns_cmp_lg_u32 {sT0}, 4\ns_cbranch_scc1 L_nowd")
        srd(TA_, pWD, 1536*1280)
        A(f"s_mul_i32 {sL[0]}, {sLIN}, 7680\ns_add_u32 {sL[1]}, {sL[0]}, 2560\ns_add_u32 {sL[2]}, {sL[0]}, 5120\nL_nowd:")
    else:
        A(f"s_add_u32 {sT0}, {sW}, {sOWN}\ns_cmp_eq_u32 {sT0}, 4\ns_cselect_b32 s22, 0, s22\ns_cselect_b32 {sL[0]}, 0, {sL[0]}\ns_cselect_b32 {sL[1]}, 0, {sL[1]}\ns_cselect_b32 {sL[2]}, 0, {sL[2]}")
    A(f"s_lshr_b32 {sT0}, {sG}, 1\ns_sub_u32 {sQF}, 11, {sT0}\ns_mul_i32 {sT0}, {sT0}, {TSTR - 2*HB}\ns_add_u32 {sOF5}, {sOFF0}, {sT0}\ns_add_u32 {sOF5}, {sOF5}, {20*HB}")
    A(f"s_mov_b32 {sSTR}, {TSTR}\ns_mov_b64 vcc, 0\ns_mov_b32 s47, 0")
    stamp(3)
    A("s_barrier")
    for j in range(3): A(f"ds_read_b128 v[{Q+4*j}:{Q+4*j+3}], {vQA} offset:{128*j}")
    A("s_waitcnt lgkmcnt(0)")
    stamp(4)
    SA, R, RT, S2 = ACC, ACC + 2, ACC + 6, ACC + 8
    def k_after_tile(t):
        A(f"v_add_f32_dpp v{R+(t&3)}, v{SA+(t&1)}, v{SA+(t&1)} row_half_mirror row_mask:0xf bank_mask:{'0xa' if t >= 4 else '0x5'}")
    def k_stage2(e): A(f"v_add_f32_dpp v{R+e}, v{R+e}, v{R+e} quad_perm:[2,3,0,1] {DPP}")
    def k_fin(which):
        if which == 0:
            k_after_tile(7); k_stage2(3)
            A(f"v_cndmask_b32 v{RT+1}, v{R+1}, v{R+3}, {mB1}")
        else:
            A(f"v_add_f32_dpp v{RT+1}, v{RT+1}, v{RT+1} quad_perm:[1,0,3,2] {DPP}\nv_cndmask_b32 v{RT}, v{RT}, v{RT+1}, {mB0}")
            A(f"ds_write_b32 {vSA}, v{RT}\nv_add_u32 {vSA}, 256, {vSA}")
    def k_body(first):
        for n in range(24):
            t, j = n//3, n % 3
            slot(n)
            if not first:
                if n < 2: k_fin(n)
                if n == 0: A("s_waitcnt lgkmcnt(0)")
                if n == bs: A("s_waitcnt lgkmcnt(0)\ns_barrier")
            else: qk4(S2 + t, PB + 4*n, j)
            if j == 0 and t >= 1: k_after_tile(t-1)
            if j == 1 and t >= 5: k_stage2(t-5)
            if n == 23: A(f"v_cndmask_b32 v{RT}, v{R}, v{R+2}, {mB1}")
            if n == 20: A(f"s_add_u32 {sBLK}, {sBLK}, 1\ns_lshr_b32 {sT0}, {sBLK}, 1\ns_cmp_eq_u32 {sBLK}, {sQF}\ns_cselect_b32 {sT0}, 8, {sT0}\ns_mul_i32 {sT0}, {sT0}, 384\nv_add_u32 v51, {sT0}, {vQA}")
            if "c" not in skip: qk4(SA + (t & 1), RING + 4*(n % RB), j)
            if n == 23: A(f"v_add_f32_dpp v{RT}, v{RT}, v{RT} quad_perm:[1,0,3,2] {DPP}")
            if t == 7: A(f"ds_read_b128 v[{Q+4*j}:{Q+4*j+3}], v51 offset:{128*j}")
    A(f"s_mov_b32 {sBLK}, 1")
    k_body(True)
    redscat_lo([S2])
    A(f"ds_write_b32 {vSA}, v{S2}\nv_add_u32 {vSA}, 256, {vSA}")
    A("L_k:")
    k_body(False)
    def stab(t): A(f"s_cmp_lg_u32 {sBLK}, {stA}\ns_cbranch_scc1 L_st1{t}\ns_memrealtime s[42:43]\nL_st1{t}:\ns_cmp_lg_u32 {sBLK}, {stB}\ns_cbranch_scc1 L_st2{t}\ns_memrealtime s[48:49]\nL_st2{t}:")
    def trc():
        if diag3: A(f"s_memrealtime s[100:101]\ns_waitcnt lgkmcnt(0)\ns_mov_b32 m0, {sBLK}\nv_writelane_b32 v199, s100, m0")
    trc()
    if stamps: stab("k")
    A(f"s_cmp_lt_u32 {sBLK}, 16\ns_cbranch_scc1 L_k")
    A("; V phase")
    if stamps: A("s_memrealtime s[50:51]")
    vP, vPN, pl, ph, vOA, RV = "v44", "v45", "v46", "v47", "v4", Q
    k_fin(0); k_fin(1)
    A(f"v_subrev_u32 {vSA}, 4096, {vSA}\nds_read_b32 {vPN}, {vSA} offset:{512*PI[0]}")
    A(f"s_lshl_b32 {sT0}, {sW}, 10\ns_add_u32 {sT0}, {sT0}, {L_OP}\nv_add_u32 {vOA}, {sT0}, v7\ns_mov_b32 s73, 0\ns_waitcnt lgkmcnt(0)")
    for i in range(24): A(f"v_mov_b32 v{ACC+i}, 0")
    def v_a(g, zero=True):
        b = ACC + 8*g
        for e in range(4): A(f"v_permlane32_swap_b32 v{b+e}, v{b+e+4}")
        for e in range(4): A(f"v_add_f32 v{RV+4*g+e}, v{b+e}, v{b+e+4}")
        if zero:
            for e in range(8): A(f"v_mov_b32 v{b+e}, 0")
    def v_b(gs):
        for g in gs:
            for e in range(2): A(f"v_permlane16_swap_b32 v{RV+4*g+e}, v{RV+4*g+e+2}")
        for g in gs:
            for e in range(2): A(f"v_add_f32 v{RV+4*g+e}, v{RV+4*g+e}, v{RV+4*g+e+2}")
        for g in gs: A(f"v_add_f32_dpp v{48+g}, v{RV+4*g}, v{RV+4*g} row_ror:8 row_mask:0xf bank_mask:0x3")
        for g in gs: A(f"v_add_f32_dpp v{48+g}, v{RV+4*g+1}, v{RV+4*g+1} row_ror:8 row_mask:0xf bank_mask:0xc")
    def v_out(): A(f"ds_write_b96 {vOA}, v[48:50]\nv_xor_b32 {vOA}, 4096, {vOA}")
    def cond(lab, code): A(f"s_cmp_eq_u32 s73, 0\ns_cbranch_scc1 {lab}"); code(); A(f"{lab}:")
    def v_comp(n):
        if n % 3 == 0:
            t = n//3
            A(f"v_mov_b32_dpp {pl}, {vP} row_newbcast:{t} row_mask:0xf bank_mask:0x3")
            A(f"v_mov_b32_dpp {pl}, {vP} row_newbcast:{8+t} row_mask:0xf bank_mask:0xc")
            A(f"v_lshlrev_b32 {ph}, 16, {pl}")
        if "c" not in skip: axpy(ACC + 8*(n % 3), RING + 4*(n % RB), 4, pl, ph)
    A("L_v:")
    for n in range(24):
        if n == 24 - G: A(f"s_cmp_eq_u32 {sBLK}, 31\ns_cbranch_scc1 L_vend")
        slot(n, True)
        if n == 0: A(f"s_waitcnt lgkmcnt(0)\nv_mov_b32 {vP}, {vPN}"); cond("L_c0", lambda: v_a(2))
        if n == 1: cond("L_c1", lambda: (v_b([2]), v_out()))
        if n == bs: A("s_waitcnt lgkmcnt(0)\ns_barrier")
        if n == 20:
            A(f"s_add_u32 {sT1}, {sBLK}, 1\ns_bitcmp1_b32 {FMASK}, {sT1}\ns_cselect_b32 s73, 1, 0\ns_and_b32 {sT0}, {sT1}, 1")
            A(f"s_and_b32 {sT1}, {sT1}, 14\ns_lshl_b32 {sT1}, {sT1}, 1\ns_lshr_b32 {sT1}, {hex(PILUT)}, {sT1}\ns_and_b32 {sT1}, {sT1}, 7")
            A(f"s_cmp_eq_u32 {sT1}, 5\ns_cselect_b32 {sT2}, 1, 0\ns_xor_b32 {sT0}, {sT0}, {sT2}")
            A(f"s_lshl_b32 {sT1}, {sT1}, 1\ns_add_u32 {sT1}, {sT1}, {sT0}\ns_lshl_b32 {sT1}, {sT1}, 8\nv_add_u32 v51, {sT1}, {vSA}\nds_read_b32 {vPN}, v51")
        v_comp(n)
        if n == 21: cond("L_c21", lambda: (v_a(0), v_b([0])))
        if n == 22: cond("L_c22", lambda: (v_a(1), v_b([1])))
    A(f"s_add_u32 {sBLK}, {sBLK}, 1")
    trc()
    if stamps: stab("v"); A(f"; SSBYTES={(stB-stA)*8*3072}")
    A("s_branch L_v")
    A("L_vend:")
    W4, W1, YA, UF = PB, PB + 24, PB + 32, PB + 44
    late = []
    for r in range(6):
        late.append(f"buffer_load_dwordx4 v[{W4+4*r}:{W4+4*r+3}], v7, {TA_}, {sL[r//2]} offen offset:{1280*(r%2)} nt")
        late.append(f"buffer_load_dword v{W1+r}, {vPL}, {TA_}, {sL[r//2]} offen offset:{1024+1280*(r%2)} nt")
    late.insert(ptpos, f"buffer_load_dword v{W1+6}, v7, {WS_}, {sT1} offen {pt}")
    assert sum(sched) == 13 and len(sched) == G
    A(f"s_lshl_b32 {sT1}, {sLIN}, 12\ns_lshl_b32 {sT0}, {sW}, 10\ns_add_u32 {sT1}, {sT1}, {sT0}\ns_add_u32 {sT1}, {sT1}, {WS_H2}")
    LW = PB + 56
    vY8, vY2, vYT, vLA, vZ0, vONE, vUA = [f"v{PB+84+i}" for i in range(7)]
    def prep1():
        A(f"s_mul_i32 {sT0}, {sW}, 640\nv_mul_u32_u24 {vYT}, 80, {vA}\nv_mad_u32_u24 {vYT}, {vB}, 12, {vYT}\nv_add_u32 {vYT}, {sT0}, {vYT}\nv_lshrrev_b32 {vLA}, 1, {vYT}")
        for r in range(4):
            for e in range(3): A(f"ds_read_u16 v{LW+10+3*r+e}, {vLA} offset:{L_W+7680+1280*r+2*e}")
    def prep2():
        A("s_waitcnt lgkmcnt(0)")
        for r in range(4, 6):
            for e in range(3): A(f"ds_read_u16 v{LW+10+3*r+e}, {vLA} offset:{L_W+7680+1280*r+2*e}")
        A(f"s_mul_i32 {sT0}, {sW}, 2560\nv_lshl_add_u32 {vY8}, {vLANE}, 5, {sT0}\nv_lshl_add_u32 {vY2}, {vLANE}, 3, {sT0}\nv_add_u32 {vYT}, {L_YP}, {vYT}")
        A(f"v_mov_b32 {vZ0}, 0\nv_mov_b32 {vONE}, 0x10000")
        for i in range(10): A(f"v_mov_b32 v{YA+i}, 0")
    def prep3():
        A("s_waitcnt lgkmcnt(0)")
        for p in range(3):
            for e in range(3): A(f"v_lshl_or_b32 v{LW+3*p+e}, v{LW+10+6*p+3+e}, 16, v{LW+10+6*p+e}")
    A(f"s_lshl_b32 {sT0}, {sW}, 4\nv_mov_b32 {vUA}, {sT0}")
    done = 0
    for n in range(24 - G, 24):
        A("; younger than ring load n: ring loads n+1..23, progress accesses issued behind slots >= n-G, late loads so far")
        A(f"s_waitcnt vmcnt({23 - n + 2*sum(1 for c in cps if n - G <= c < 24 - G) + done})")
        for i in range(sched[n - 24 + G]): A(late[done]); done += 1
        v_comp(n)
        if hoist and n <= 20: (prep1, prep2, prep3)[n - 18]()
        if n == 23: stamp(5)
        if n >= 21: v_a(n - 21, False); v_b([n - 21])
    v_out()
    A("s_waitcnt lgkmcnt(0)\ns_barrier")
    stamp(6)
    A(f"ds_read_b128 v[12:15], {vUA} offset:{L_U}")
    if not hoist: prep1(); prep2(); prep3()
    A(f"v_mov_b32 v19, {sTAG}\ns_waitcnt lgkmcnt(0)")
    for p in range(3):
        A(f"v_and_b32 v{UF+4*p}, 0xffff, v{12+p}\nv_lshlrev_b32 v{UF+4*p+1}, 16, v{12+p}\nv_lshrrev_b32 v{UF+4*p+2}, 16, v{12+p}\nv_and_b32 v{UF+4*p+3}, 0xffff0000, v{12+p}")
    A(f"v_readfirstlane_b32 {sT3}, v15")
    for r in range(6):
        pos = [i for i, l in enumerate(late) if l.startswith(f"buffer_load_dword v{W1+r},")][0]
        A(f"s_waitcnt vmcnt({12-pos})")
        axpy(YA, W4 + 4*r, 4, f"v{UF+2*r}", f"v{UF+2*r+1}"); axpy(YA + 8, W1 + r, 1, f"v{UF+2*r}", f"v{UF+2*r+1}")
    A(f"ds_write_b128 {vY8}, v[{YA}:{YA+3}] offset:{L_YP}\nds_write_b128 {vY8}, v[{YA+4}:{YA+7}] offset:{L_YP+16}")
    A(f"ds_write_b64 {vY2}, v[{YA+8}:{YA+9}] offset:{L_YP+2048}\ns_mov_b64 exec, 1\nds_add_u32 {vZ0}, {vONE} offset:{L_CT}\ns_mov_b64 exec, -1")
    A(f"L_wy:\nds_read_b32 v41, {vZ0} offset:{L_CT}\ns_waitcnt lgkmcnt(0)\nv_cmp_gt_u32 vcc, 0x40000, v41\ns_cbranch_vccnz L_wy")
    for k in range(5):
        A(f"ds_read2_b32 v[{20+4*k}:{21+4*k}], {vYT} offset0:0 offset1:1\nds_read_b32 v{22+4*k}, {vYT} offset:8")
        if k < 4: A(f"v_add_u32 {vYT}, 2560, {vYT}")
    A("s_waitcnt lgkmcnt(0)")
    for e in range(3): A(f"v_add_f32 v{20+e}, v{20+e}, v{24+e}\nv_add_f32 v{28+e}, v{28+e}, v{32+e}")
    for e in range(3): A(f"v_add_f32 v{20+e}, v{20+e}, v{36+e}")
    for e in range(3): A(f"v_add_f32 v{16+e}, v{20+e}, v{28+e}")
    stamp(7)
    A(f"s_barrier\nds_read_b96 v[12:14], {vZ0} offset:{L_U+64}\ns_waitcnt lgkmcnt(0)")
    for p in range(3):
        for e in range(3): A(f"v_dot2c_f32_bf16 v{16+e}, v{12+p}, v{LW+3*p+e}")
    A(f"s_cmp_eq_u32 {sT3}, 0\ns_cbranch_scc1 L_yr\nbuffer_store_dwordx4 v[16:19], v7, {WS_}, {sT1} offen\ns_branch L_done")
    A(f"L_yr:\nbuffer_store_dwordx4 v[16:19], v7, {WS_}, {sT1} offen sc1\ns_branch L_done")
    A("L_svc:")
    G0 = RING; G1 = G0 + 8
    vQW, vSC, vML, vOP, vLS, vM, vZ, vZK, vXA = [f"v{32+i}" for i in range(7)] + ["v40", "v42"]
    vZF, vM8, vFA = "v15", "v30", "v31"
    ZS, ZM = 52, 8
    vWA, vH1S, vH1G, vYG, vH3, vYW, vYR, vOUT, XV = "v16", "v17", "v18", "v19", "v20", "v21", "v29", 22, 26
    P0, P1, YY = PB, PB + 32, PB + 64
    YT = YY + 12
    LP = 64//NSEG; LLP = LP.bit_length()-1; NLS = GS//LP; NR = 4*BPS
    sF = [f"s{r}" for r in (20, 21, 22, 24, 25, 26, 28, 29, 30)]
    sLOC, sHD, sTG2, sH1S, sH1G, sYS, sYG, sH3S, sH3G, sXS, sXG, sFL = [f"s{r}" for r in range(72, 84)]
    sUU = ["s60", "s61", "s62"]
    sSCALE, sLOG2E = "s12", "s13"
    def store2(lab, stores):
        A("; plain stores when all 32 peers share this cache, write-through otherwise")
        A(f"s_cmp_eq_u32 {sLOC}, 0\ns_cbranch_scc1 {lab}_r"); stores(""); A(f"s_branch {lab}_d\n{lab}_r:"); stores("sc1"); A(f"{lab}_d:")
    def poll(lab, loads, tags, sleep=0, first=None, tag=sTAG, loc=False, hook=None):
        A("; repeat the loads until every tag register holds the expected tag")
        A(f"s_mov_b32 {sT2}, {spin}")
        if first is not None: loads(first); A(f"s_branch {lab}_chk")
        elif sleep: A(f"s_branch {lab}_go")
        A(f"{lab}:")
        if hook: hook()
        if sleep: A(f"s_sleep {sleep}\n{lab}_go:")
        if loc and lp != "sc1":
            A(f"s_cmp_eq_u32 {sLOC}, 0\ns_cbranch_scc1 {lab}_rm"); loads(lp); A(f"s_branch {lab}_chk\n{lab}_rm:")
        loads("sc1")
        A(f"{lab}_chk:\ns_waitcnt vmcnt(0)")
        if len(tags) == 1: A(f"v_cmp_ne_u32 vcc, {tag}, {tags[0]}")
        else:
            A(f"v_xor_b32 {t0}, {tag}, {tags[0]}")
            for t in tags[1:]: A(f"v_bitop3_b32 {t0}, {t}, {tag}, {t0} bitop3:0xbe")
            A(f"v_cmp_ne_u32 vcc, 0, {t0}")
        A(f"s_cbranch_vccz {lab}_done\ns_sub_u32 {sT2}, {sT2}, 1\ns_cbranch_scc0 {lab}\n{lab}_done:")
    if not early: touches()
    A(f"v_lshlrev_b32 v4, 2, {vLANE}")
    A(f"L_wq:\nds_read_b32 v6, v5 offset:{L_CT}\ns_waitcnt lgkmcnt(0)\nv_and_b32 v6, 7, v6\nv_cmp_gt_u32 vcc, 5, v6\ns_cbranch_vccnz L_wq")
    for w in range(5):
        for k in range(5): A(f"ds_read_b32 v{G0+5*w+k}, v4 offset:{L_QP+1280*w+256*k}")
        if w == 2: A("s_waitcnt lgkmcnt(0)")
    A("s_waitcnt lgkmcnt(0)")
    for w in range(1, 5):
        for k in range(5): A(f"v_add_f32 v{G0+k}, v{G0+k}, v{G0+5*w+k}")
    QO = 52
    A(f"v_lshl_add_u32 v5, {vB}, 3, {vA}\nv_lshlrev_b32 {vQW}, 1, v5\nv_lshlrev_b32 v5, 4, v5")
    A(f"v_mov_b32 v48, v{G0+3}\nv_mov_b32 v49, v{G0+4}\nv_mov_b32 v{QO+3}, {sTAG}\nv_mov_b32 v50, {sTAG}\nv_mov_b32 v51, {sTAG}")
    for k in range(3): A(f"v_mov_b32 v{QO+k}, v{G0+k}")
    if "Q" in skip: A("s_branch L_qd")
    A(f"s_lshl_b32 {sHD}, {sLIN}, 11\ns_add_u32 {sHD}, {sHD}, {WS_QS}\ns_cmp_lt_u32 {sMEM}, 16\ns_cbranch_scc1 L_qw")
    A(f"buffer_store_dwordx4 v[{QO}:{QO+3}], v7, {WS_}, {sHD} offen\ns_branch L_qd")
    A(f"L_qw:\nbuffer_store_dwordx4 v[{QO}:{QO+3}], v7, {WS_}, {sHD} offen sc1\nL_qd:")
    stamp(3)
    if tlb == 2: page_touch()
    A(f"v_add_u32 {vSC}, {L_SC}, v4\nv_mov_b32 {vML}, {L_ML}\nv_add_u32 {vOP}, {L_OP}, v7\nv_mov_b32 {vZ}, 0")
    A(f"s_mov_b32 {sSCALE}, 0x3d93cd3a\ns_mov_b32 {sLOG2E}, 0x3fb8aa3b\ns_mov_b32 {sBLK}, 0")
    A(f"s_lshl_b32 {sT1}, {sG}, {11+LGS}\ns_add_u32 {sT1}, {sT1}, {WS_QS}")
    A(f"L_wt:\ns_sleep 2\nds_read_b32 v10, {vZ} offset:{L_CT}\ns_waitcnt lgkmcnt(0)\nv_cmp_gt_u32 vcc, 256, v10\ns_cbranch_vccnz L_wt")
    def gq(n, base):
        def f(p):
            for s in range(n):
                if s % 2 == 0: A(f"s_add_u32 {sT0}, {base}, {2048*s}")
                A(f"buffer_load_dwordx4 v[{G0+4*s}:{G0+4*s+3}], v7, {WS_}, {sT0} offen offset:{2048*(s%2)} {p}")
        return f
    if "Q" in skip: A("s_branch L_gq_done")
    poll("L_gq", gq(16, sT1), [f"v{G0+4*s+3}" for s in range(16)], first=qp, sleep=psleep)
    for s in range(1, 8):
        for h in range(2):
            for k in range(3): A(f"v_add_f32 v{G0+32*h+k}, v{G0+32*h+k}, v{G0+32*h+4*s+k}")
    for h in range(2):
        for k in range(3): A(f"v_cvt_pk_bf16_f32 v{G0+32*h+k}, v{G0+32*h+k}, 0")
    for h in range(2):
        for k in range(3): A(f"ds_write_b16 {vQW}, v{G0+32*h+k} offset:{L_QB+384*h+128*k}")
    stamp(4)
    A("s_branch L_next")
    A("L_blk:")
    if xd:
        A("; pacing hint only: how many of the eight sets of peers are ahead of mine -> threshold used by my peers")
        A(f"s_cmp_lg_u32 {sC}, {xc}\ns_cbranch_scc1 L_noxf\ns_bitcmp1_b32 {hex(sum(1 << b for b in xp))}, {sBLK}\ns_cbranch_scc0 L_noxf")
        A(f"s_add_u32 {sT0}, {sTAG}, {sBLK}\nv_mov_b32 v12, {sT0}\nv_mul_u32_u24 v13, 4224, {vLANE}\ns_mul_i32 {sT1}, {sX}, 4224\ns_add_u32 {sT1}, {sT1}, {WS_PR+0x30000}")
        A(f"s_mov_b64 exec, 1\nbuffer_store_dword v12, v13, {WS_}, {sT1} offen sc1\ns_mov_b32 {sT1}, {WS_PR+0x30000}")
        if xs < 0: A("s_waitcnt vmcnt(0)")
        if xs > 0: A(f"s_sleep {xs}")
        A(f"s_mov_b64 exec, 0xff\nbuffer_load_dword v14, v13, {WS_}, {sT1} offen sc1\ns_waitcnt vmcnt(0)")
        lutv = sum((d + 8) << (4*i) for i, d in enumerate(xd))
        A(f"v_sub_u32 v14, v14, v12\nv_cmp_gt_u32 vcc, 64, v14\ns_bitset0_b32 vcc_lo, {sX}\ns_bcnt1_i32_b64 {sT0}, vcc\ns_lshl_b32 {sT0}, {sT0}, 2")
        if xd2:
            lut2 = sum((d//2 + 8) << (4*i) for i, d in enumerate(xd2))
            A(f"s_lshr_b32 {sT1}, {hex(lut2)}, {sT0}\ns_and_b32 {sT1}, {sT1}, 15\ns_lshl_b32 {sT1}, {sT1}, 1\ns_sub_u32 {sT1}, {sT1}, 8")
        A(f"s_lshr_b32 {sT0}, {hex(lutv)}, {sT0}\ns_and_b32 {sT0}, {sT0}, 15")
        if xd2: A(f"s_cmp_ge_u32 {sBLK}, {xb}\ns_cselect_b32 {sT0}, {sT1}, {sT0}")
        A(f"s_getreg_b32 {sT1}, hwreg(HW_REG_XCC_ID)\ns_bitcmp1_b32 {sT1}, 0\ns_cselect_b32 {sT1}, {fbo-8}, {fb-8}")
        A(f"s_add_u32 {sT0}, {sT0}, {sT1}\ns_min_u32 {sT0}, {sT0}, 32\ns_add_u32 {sT0}, {sT0}, {sTAG}\nv_mov_b32 v12, {sT0}")
        A(f"s_mul_i32 {sT1}, {sX}, {4*4224}\ns_add_u32 {sT1}, {sT1}, {WS_PR+128}\ns_mov_b64 exec, 0xf")
        A(f"buffer_store_dword v12, v13, {WS_}, {sT1} offen\ns_mov_b64 exec, -1\nL_noxf:")
    A(f"s_cmp_le_u32 {sBLK}, 16\ns_cbranch_scc1 L_kpart\ns_bitcmp1_b32 {FMASK}, {sBLK}\ns_cbranch_scc0 L_vmid")
    stamp(5)
    for w in range(4): A(f"ds_read_b96 v[{G0+4*w}:{G0+4*w+2}], {vOP} offset:{1024*w}")
    A(f"v_xor_b32 {vOP}, 4096, {vOP}\nv_mov_b32 v{G0+19}, {sTG2}\ns_waitcnt lgkmcnt(0)")
    for k in range(3): A(f"v_add_f32 v{G0+k}, v{G0+k}, v{G0+4+k}\nv_add_f32 v{G0+8+k}, v{G0+8+k}, v{G0+12+k}")
    for k in range(3): A(f"v_add_f32 v{G0+k}, v{G0+k}, v{G0+8+k}")
    for k in range(3): A(f"v_mul_f32 v{G0+16+k}, {sF[0]}, v{G0+k}")
    if "h" in skip: A(f"s_cmp_lg_u32 {sBLK}, 32\ns_cbranch_scc1 L_p1_done")
    store2("L_s1", lambda p: A(f"buffer_store_dwordx4 v[{G0+16}:{G0+19}], {vH1S}, {WS_}, {sH1S} offen {p}"))
    poll("L_p1", lambda p: A(f"buffer_load_dwordx4 v[{G0}:{G0+3}], {vH1G}, {WS_}, {sH1G} offen {p}"), [f"v{G0+3}"], tag=sTG2, loc=True)
    stamp(6)
    A(f"v_mov_b32 v{G0+3}, 0\nv_permlane32_swap_b32 v{G0}, v{G0+1}\nv_permlane32_swap_b32 v{G0+2}, v{G0+3}")
    A(f"v_add_f32 v{G0}, v{G0}, v{G0+1}\nv_add_f32 v{G0+2}, v{G0+2}, v{G0+3}\nv_permlane16_swap_b32 v{G0}, v{G0+2}\nv_add_f32 {vZK}, v{G0}, v{G0+2}")
    allred_lo("v_add_f32", [vZK], 3)
    A(f"s_cmp_eq_u32 {sBLK}, 32\ns_cbranch_scc1 L_tail")
    for i in range(8): A(f"s_mov_b32 {sF[i]}, {sF[i+1]}")
    A(f"s_add_u32 {sTG2}, {sTG2}, 1\ns_xor_b32 {sH1S}, {sH1S}, 1024\ns_xor_b32 {sH1G}, {sH1G}, 1024")
    A(f"s_lshr_b32 {sT0}, {sG}, 1\ns_add_u32 {sT0}, {sT0}, {B5+1}\ns_cmp_lg_u32 {sT0}, {sBLK}\ns_cbranch_scc1 L_native\nv_mov_b32 {vZF}, {vZK}\ns_branch L_next\nL_native:")
    A(f"s_add_u32 {sT0}, {sBLK}, 1\ns_lshr_b32 {sT0}, {sT0}, 1\ns_xor_b32 {sT0}, {sT0}, {sOWN}\ns_bitcmp1_b32 {sT0}, 0\ns_cbranch_scc0 L_notmine")
    A(f"v_mov_b32 v{ZM}, v{ZM+1}\nv_mov_b32 v{ZM+1}, v{ZM+2}\nv_mov_b32 v{ZM+2}, {vZK}\ns_cmp_eq_u32 {sBLK}, 28\ns_cbranch_scc0 L_next\ns_branch L_send")
    A(f"L_notmine:\nv_mov_b32 v{ZS}, v{ZS+1}\nv_mov_b32 v{ZS+1}, v{ZS+2}\nv_mov_b32 v{ZS+2}, {vZK}\ns_cmp_ge_u32 {sBLK}, 28\ns_cbranch_scc0 L_next")
    A("L_send:")
    for e in range(6): A(f"v_readlane_b32 {sT0}, {vZF}, {8*e}\nv_writelane_b32 v{ZS+e%3}, {sT0}, {48+8*(e//3)}")
    if "x" in skip: A("s_branch L_next")
    A(f"s_mov_b32 exec_lo, 0x01010101\ns_mov_b32 exec_hi, 0x01010101")
    A(f"buffer_store_dwordx4 v[{ZS}:{ZS+3}], {vXA}, {WS_}, {sXS} offen sc1\ns_mov_b64 exec, -1\ns_add_u32 {sXS}, {sXS}, 128")
    A("s_branch L_next")
    A("L_vmid:")
    A(f"s_cmp_lg_u32 {sBLK}, {lsb}\ns_cbranch_scc1 L_nols")
    A(f"s_mul_i32 {sT1}, {sG}, {GS*128}\ns_add_u32 {sT1}, {sT1}, {WS_LS}\ns_add_u32 {sT3}, {sT1}, 4096")
    GA = G0 + 32
    A(f"s_xor_b32 {sT0}, {sT1}, {2*GS*128}\nv_lshlrev_b32 v6, 7, {vLANE}")
    def gl(p):
        A(f"buffer_load_dwordx4 v[{GA}:{GA+3}], v6, {WS_}, {sT1} offen offset:80 {p}\nbuffer_load_dwordx4 v[{GA+4}:{GA+7}], v6, {WS_}, {sT0} offen offset:80 {p}")
        for r in range(NLS): A(f"buffer_load_dwordx4 v[{G0+4*r}:{G0+4*r+3}], {vLS}, {WS_}, {sT1 if LP*128*r < 4096 else sT3} offen offset:{LP*128*r % 4096} {p}")
    poll("L_ls", gl, [f"v{G0+4*r+e}" for r in range(NLS+2) for e in (1, 3)], sleep=16, first=qp)
    hn = NLS//2 if PAIR else NLS
    for h, t in ((0, t0), (1, t1))[:2 if PAIR else 1]:
        A(f"v_xor_b32 {t}, {sLOC}, v{G0+4*hn*h+2}")
        for r in range(1, hn): A(f"v_bitop3_b32 {t}, v{G0+4*(hn*h+r)+2}, {sLOC}, {t} bitop3:0xbe")
    if PAIR: A(f"s_bitcmp1_b32 {sX}, 0\ns_cselect_b64 vcc, -1, 0\nv_cndmask_b32 {t0}, {t0}, {t1}, vcc")
    A(f"v_cmp_ne_u32 vcc, 0, {t0}\ns_and_b32 vcc_hi, vcc_hi, 0xffff00ff\ns_cmp_eq_u64 vcc, 0\ns_cselect_b32 {sLOC}, {local}, 0")
    A(f"v_max_f32 {t0}, v{G0}, v{G0+4}")
    for r in range(2, NLS, 2): A(f"v_max3_f32 {t0}, {t0}, v{G0+4*r}, v{G0+4*r+4}")
    allred_lo("v_max_f32", [t0], LLP)
    for r in range(NLS): A(f"v_sub_f32 v{G0+4*r}, v{G0+4*r}, {t0}")
    for r in range(NLS): A(f"v_exp_f32 v{G0+4*r}, v{G0+4*r}")
    for r in range(1, NLS): A(f"v_add_f32 v{G0}, v{G0}, v{G0+4*r}")
    allred_lo("v_add_f32", [f"v{G0}"], LLP)
    A(f"v_sub_f32 {t0}, {vM}, {t0}\nv_exp_f32 {t0}, {t0}\nv_rcp_f32 {t1}, v{G0}\nv_mul_f32 {t0}, {t0}, {t1}")
    for k in range(NSEG):
        if k != J5: A(f"v_readlane_b32 {sF[k + (k > J5)]}, {t0}, {LP*PI[k]}")
    A(f"v_max_f32 {t0}, v{GA}, v{GA+4}\nv_max_f32 {t1}, v{GA+2}, v{GA+6}")
    allred_lo("v_max_f32", [t0, t1]); allred_top("v_max_f32", [t0, t1], [t2, t3])
    for r, t in ((0, t0), (4, t0), (2, t1), (6, t1)): A(f"v_sub_f32 v{GA+r}, v{GA+r}, {t}")
    for r in (0, 4, 2, 6): A(f"v_exp_f32 v{GA+r}, v{GA+r}")
    A(f"v_add_f32 v{GA}, v{GA}, v{GA+4}\nv_add_f32 v{GA+2}, v{GA+2}, v{GA+6}")
    allred_lo("v_add_f32", [f"v{GA}", f"v{GA+2}"]); allred_top("v_add_f32", [f"v{GA}", f"v{GA+2}"], [t2, t3])
    A(f"v_sub_f32 {t0}, {vM}, {t0}\nv_sub_f32 {t1}, {vM8}, {t1}\nv_exp_f32 {t0}, {t0}\nv_exp_f32 {t1}, {t1}\nv_rcp_f32 {t2}, v{GA}\nv_rcp_f32 {t3}, v{GA+2}")
    A(f"v_mul_f32 {t0}, {t0}, {t2}\nv_mul_f32 {t1}, {t1}, {t3}\nv_readlane_b32 {sF[J5+1]}, {t0}, 40\nv_readlane_b32 {sF[J5]}, {t1}, 40")
    A(f"v_mov_b32 {t0}, 0\nv_mov_b32 {t1}, 0\nv_mov_b32 {t2}, 0\nv_mov_b32 {t3}, {sLOC}\ns_mov_b64 exec, 0xf\nds_write_b128 v7, v[{T}:{T+3}] offset:{L_U}")
    A(f"s_lshl_b32 {sT0}, {sLIN}, 11\ns_add_u32 {sT0}, {sT0}, {WS_QS}\ns_mov_b32 exec_lo, 0x3f3f3f3f\ns_mov_b32 exec_hi, 0x3f3f3f3f")
    store2("L_s0", lambda p: A(f"buffer_store_dwordx4 v[48:51], v5, {WS_}, {sT0} offen offset:1024 {p}"))
    A("s_mov_b64 exec, -1\ns_branch L_next")
    A("L_nols:")
    A(f"s_cmp_lg_u32 {sBLK}, {lsb+2}\ns_cbranch_scc1 L_nogu2")
    A(f"v_lshlrev_b32 v6, 11, {vA}\nv_lshl_add_u32 v6, {vB}, 4, v6\nv_mov_b32 v{G1}, 0\nv_mov_b32 v{G1+1}, 0")
    A(f"s_lshr_b32 {sT1}, {sLIN}, 3\ns_lshl_b32 {sT1}, {sT1}, 14\ns_mul_i32 {sT0}, {sS}, 96\ns_add_u32 {sT1}, {sT1}, {sT0}\ns_add_u32 {sT1}, {sT1}, {WS_QS}")
    A(f"s_mov_b32 exec_lo, 0x3f3f3f3f\ns_mov_b32 exec_hi, 0x3f3f3f3f")
    poll("L_gu", lambda p: A(f"buffer_load_dwordx4 v[{G1}:{G1+3}], v6, {WS_}, {sT1} offen offset:1024 {p}"), [f"v{G1+2}", f"v{G1+3}"], sleep=psleep, loc=True)
    A("s_mov_b64 exec, -1")
    for k in range(2): A(f"v_add_f32_dpp v{G1+k}, v{G1+k}, v{G1+k} row_ror:8 {DPP}")
    allred_top("v_add_f32", [f"v{G1}", f"v{G1+1}"], [t0, t1])
    A(f"v_cvt_pk_bf16_f32 v{G1}, 0, v{G1}\nv_cvt_pk_bf16_f32 v{G1+1}, 0, v{G1+1}")
    A(f"v_cmp_lt_f32 vcc, 0, v{G1}\nv_cndmask_b32 {t0}, 0, 1.0, vcc\nv_mul_f32 {t3}, v{G1}, {t0}\nv_mul_f32 {t3}, {t3}, v{G1+1}\nv_cvt_pk_bf16_f32 {t3}, {t3}, 0")
    A(f"v_mov_b32_dpp {t0}, {t3} quad_perm:[1,1,3,3] {DPP}\nv_lshl_or_b32 {t3}, {t0}, 16, {t3}")
    for i in range(3): A(f"v_readlane_b32 {sUU[i]}, {t3}, {2*i}")
    if blate: A(f"v_lshlrev_b32 {t0}, 1, {vLANE}\ns_mov_b64 exec, 0x15\nds_write_b32 {t0}, {t3} offset:{L_U+48}\ns_mov_b64 exec, -1")
    for r in range(6):
        for d in range(5): A(f"ds_read_b32 v{P0+5*r+d}, {vWA} offset:{1280*r+4*d}")
        if r % 2: A("s_waitcnt lgkmcnt(0)")
    A(f"s_mov_b32 {sT1}, 0x05040100\ns_mov_b32 {sT3}, 0x07060302")
    for p in range(3):
        for d in range(5):
            A(f"v_perm_b32 v{P1+10*p+2*d}, v{P0+10*p+5+d}, v{P0+10*p+d}, {sT1}\nv_perm_b32 v{P1+10*p+2*d+1}, v{P0+10*p+5+d}, v{P0+10*p+d}, {sT3}")
    for p in range(3):
        for c in range(10): A(f"v_dot2c_f32_bf16 v{YY+c}, {sUU[p]}, v{P1+10*p+c}")
    for d in range(5): A(f"ds_write_b64 {vYW}, v[{YY+2*d}:{YY+2*d+1}] offset:{L_YP+10240+8*d}")
    A("s_branch L_next")
    A("L_nogu2:")
    A(f"s_cmp_lg_u32 {sBLK}, 31\ns_cbranch_scc1 L_nopf")
    if pf is not None:
        A("; touch the lines of the last two hand-offs among the peers so that they are resident when they get written")
        for r in range(4 if "y" in pfw else 0):
            A(f"s_add_u32 {sT0}, {sYG}, {8*4096*r}\nbuffer_load_dwordx4 v[{G0+8+4*r}:{G0+8+4*r+3}], {vYG}, {WS_}, {sT0} offen {pf}")
        if "h" in pfw: A(f"buffer_load_dwordx4 v[{G0+24}:{G0+27}], v7, {WS_}, {sH1S} offen {pf}")
    A("L_nopf:")
    A(f"s_cmp_lt_u32 {sBLK}, 29\ns_cbranch_scc1 L_next\ns_add_u32 {sT0}, {sBLK}, {sOWN}\ns_cmp_gt_u32 {sT0}, 31\ns_cbranch_scc1 L_last")
    if "x" not in skip:
        poll("L_px", lambda p: A(f"buffer_load_dwordx4 v[{G0}:{G0+3}], {vXA}, {WS_}, {sXG} offen {p}"), [f"v{G0+3}"], sleep=psleep, first=xl)
    for k in range(3): A(f"v_add_f32 v{ZM+k}, v{ZM+k}, v{G0+k}")
    A(f"s_add_u32 {sT0}, {sBLK}, {sOWN}\ns_cmp_lg_u32 {sT0}, 29\ns_cbranch_scc1 L_nofo\ns_xor_b32 {sT1}, {sXG}, {128*256}\ns_xor_b32 {sT3}, {sXG}, {160*256}")
    poll("L_pf", lambda p: A(f"buffer_load_dwordx4 v[{G0}:{G0+3}], {vFA}, {WS_}, {sT1} offen {p}\nbuffer_load_dwordx4 v[{G0+4}:{G0+7}], {vFA}, {WS_}, {sT3} offen {p}"),
         [f"v{G0+3}", f"v{G0+7}"], sleep=psleep)
    for k in range(3): A(f"v_add_f32 v{G0+k}, v{G0+k}, v{G0+4+k}")
    A(f"s_mov_b32 vcc_lo, 0x0000ff00\ns_mov_b32 vcc_hi, 0x000000ff\nv_cndmask_b32 v{G0}, v{G0}, v{G0+1}, vcc")
    A(f"s_mov_b32 vcc_lo, 0x00ff0000\ns_mov_b32 vcc_hi, 0x0000ff00\nv_cndmask_b32 v{G0}, v{G0}, v{G0+2}, vcc\nv_add_f32 v{ZM+1}, v{ZM+1}, v{G0}\nL_nofo:")
    A(f"s_add_u32 {sXG}, {sXG}, 128\ns_mov_b32 {sFL}, 3\ns_cmp_eq_u32 {sBLK}, 29\ns_cbranch_scc1 L_take\ns_mov_b32 {sFL}, 1\nv_mov_b32 v{ZM}, v{ZM+2}")
    A(f"L_take:\nv_mov_b32_dpp v{G0+1}, v{ZM} row_ror:8 {DPP}\nv_cvt_pk_bf16_f32 v{G0}, v{ZM}, v{G0+1}\nv_mov_b32 v{ZM}, v{ZM+1}\nv_mov_b32 v{ZM+1}, v{ZM+2}")
    A(f"s_mov_b32 exec_lo, 0x00010001\ns_mov_b32 exec_hi, 1\nds_write_b32 {vYR}, v{G0}\ns_mov_b64 exec, -1\nv_add_u32 {vYR}, 16, {vYR}")
    A(f"s_sub_u32 {sFL}, {sFL}, 1\ns_cmp_gt_u32 {sFL}, 0\ns_cbranch_scc1 L_take")
    A("L_last:")
    A(f"s_cmp_lg_u32 {sBLK}, 31\ns_cbranch_scc1 L_next\ns_setprio 3\ns_waitcnt vmcnt(0)")
    A("L_next:")
    A(f"s_add_u32 {sBLK}, {sBLK}, 1\ns_waitcnt lgkmcnt(0)\ns_barrier\ns_branch L_blk")
    A("L_kpart:\ns_setprio 0")
    A(f"s_and_b32 {sT0}, {sBLK}, {BPS-1}\ns_cbranch_scc1 L_nosm")
    for w in range(4):
        for k in range(BPS): A(f"ds_read_b32 v{G0+BPS*w+k}, {vSC} offset:{4096*w+256*k}")
        if w == 1: A("s_waitcnt lgkmcnt(0)")
    A("s_waitcnt lgkmcnt(0)")
    for i in range(NR): A(f"v_cvt_pk_bf16_f32 v{G0+i}, 0, v{G0+i}")
    for i in range(NR): A(f"v_mul_f32 v{G0+i}, {sSCALE}, v{G0+i}")
    for i in range(NR): A(f"v_cvt_pk_bf16_f32 v{G0+i}, 0, v{G0+i}")
    for i in range(NR): A(f"v_mul_f32 v{G0+i}, {sLOG2E}, v{G0+i}")
    m0, m1, l0_, l1_ = f"v{G0+8}", f"v{G0+10}", f"v{G0+9}", f"v{G0+11}"
    for k, m in enumerate((m0, m1)): A(f"v_max_f32 {m}, v{G0+k}, v{G0+2+k}\nv_max3_f32 {m}, {m}, v{G0+4+k}, v{G0+6+k}")
    allred_lo("v_max_f32", [m0, m1]); allred_top("v_max_f32", [m0, m1], [t0, t1])
    A(f"s_cmp_eq_u32 {sBLK}, 12\ns_cbranch_scc1 L_sm1\nv_max_f32 {m0}, {m0}, {m1}\nv_mov_b32 {m1}, {m0}\ns_branch L_sm0\nL_sm1:")
    if rev:
        for w in range(4): A(f"v_mov_b32_dpp v{G0+2*w}, v{G0+2*w} row_half_mirror {DPP}")
    A("L_sm0:")
    for i in range(NR): A(f"v_sub_f32 v{G0+i}, v{G0+i}, {(m0, m1)[i%2]}")
    for i in range(NR): A(f"v_exp_f32 v{G0+i}, v{G0+i}")
    for k, l in enumerate((l0_, l1_)): A(f"v_add_f32 {l}, v{G0+k}, v{G0+2+k}\nv_add_f32 {l}, {l}, v{G0+4+k}\nv_add_f32 {l}, {l}, v{G0+6+k}")
    for i in range(NR): A(f"v_cvt_pk_bf16_f32 v{G0+i}, v{G0+i}, 0")
    for w in range(4):
        for k in range(BPS): A(f"ds_write_b32 {vSC}, v{G0+BPS*w+k} offset:{4096*w+256*k}")
    allred_lo("v_add_f32", [l0_, l1_]); allred_top("v_add_f32", [l0_, l1_], [t0, t1])
    A(f"s_cmp_eq_u32 {sBLK}, 12\ns_cbranch_scc1 L_sm2\nv_add_f32 {l0_}, {l0_}, {l1_}\ns_branch L_sm3")
    A(f"L_sm2:\nv_log_f32 {l1_}, {l1_}\nv_add_f32 {l1_}, {l1_}, {m1}\nds_write_b64 {vZ}, v[{G0+10}:{G0+11}] offset:{L_ML+64}\nL_sm3:")
    A(f"v_log_f32 {l0_}, {l0_}\nv_add_f32 {l0_}, {l0_}, {m0}\nds_write_b64 {vML}, v[{G0+8}:{G0+9}]")
    A(f"v_add_u32 {vSC}, {256*BPS}, {vSC}\nv_add_u32 {vML}, 8, {vML}")
    A("L_nosm:")
    if "Q" in skip: A("s_branch L_noq2")
    if tlb == 3:
        A(f"s_cmp_lg_u32 {sBLK}, 1\ns_cbranch_scc1 L_nopt"); page_touch(); A("L_nopt:")
    A(f"s_cmp_lg_u32 {sBLK}, 1\ns_cbranch_scc1 L_noq1\ns_cmp_lg_u32 {sS}, 0\ns_cbranch_scc1 L_next\ns_cmp_lt_u32 {sMEM}, 16\ns_cbranch_scc1 L_next")
    poll("L_go", gq(8, sHD), [f"v{G0+4*s+3}" for s in range(8)], sleep=psleep, first=op)
    for s in range(1, 8):
        for k in range(3): A(f"v_add_f32 v{G0+k}, v{G0+k}, v{G0+4*s+k}")
    for k in range(3): A(f"v_mov_b32_dpp v{G0+4+k}, v{G0+k} row_ror:8 {DPP}")
    for k in range(3): A(f"v_cvt_pk_bf16_f32 v{G0+k}, v{G0+k}, v{G0+4+k}")
    A(f"v_lshrrev_b32 v6, 4, {vLANE}\nv_lshl_add_u32 v6, v6, 3, {vB}\nv_lshlrev_b32 v6, 4, v6\ns_lshl_b32 {sT0}, {sLIN}, 6\ns_add_u32 {sT0}, {sT0}, {WS_QF}")
    A(f"s_mov_b32 exec_lo, 0x00ff00ff\ns_mov_b32 exec_hi, 0x00ff00ff\nbuffer_store_dwordx4 v[{G0}:{G0+3}], v6, {WS_}, {sT0} offen sc1\ns_mov_b64 exec, -1")
    A(f"s_waitcnt vmcnt(0)\ns_branch L_next\nL_noq1:\ns_cmp_lg_u32 {sBLK}, 2\ns_cbranch_scc1 L_noq2")
    A(f"s_lshl_b32 {sT1}, {sG}, 12\ns_add_u32 {sT1}, {sT1}, {WS_QF}")
    A(f"s_xor_b32 {sT3}, {sT1}, 8192")
    def gf(p):
        A(f"s_mov_b32 exec_hi, 0\nbuffer_load_dwordx4 v[{G0}:{G0+3}], v7, {WS_}, {sT3} offen offset:2560 {p}\ns_mov_b32 exec_hi, -1")
        for r in range(1, 4): A(f"buffer_load_dwordx4 v[{G0+4*r}:{G0+4*r+3}], v7, {WS_}, {sT1} offen offset:{1024*r} {p}")
    def again():
        A(f"s_cmp_lg_u32 {sT2}, {spin-nre}\ns_cbranch_scc1 L_nore\nbuffer_store_dwordx4 v[{QO}:{QO+3}], v7, {WS_}, {sHD} offen sc1\nL_nore:")
    A(f"v_lshrrev_b32 {vQW}, 5, {vLANE}\nv_mul_u32_u24 {vQW}, 384, {vQW}\nv_lshl_add_u32 {vQW}, {vB}, 4, {vQW}\nv_and_b32 v6, 3, {vA}\nv_lshl_add_u32 {vQW}, v6, 2, {vQW}")
    A(f"s_waitcnt lgkmcnt(0)\nv_mov_b32 v{G0+3}, {sTAG}")
    poll("L_gf", gf, [f"v{G0+4*r+3}" for r in range(4)], first=qp, sleep=psleep, hook=again)
    for r in range(1, 4):
        for k in range(3): A(f"ds_write_b32 {vQW}, v{G0+4*r+k} offset:{L_QB+768*r+128*k}")
    A("s_mov_b32 exec_hi, 0")
    for k in range(3): A(f"ds_write_b32 {vQW}, v{G0+k} offset:{L_QB+384*8+128*k}")
    A("s_mov_b32 exec_hi, -1\ns_branch L_next\nL_noq2:")
    A(f"s_cmp_lg_u32 {sBLK}, {NSEG+1}\ns_cbranch_scc1 L_nogu")
    A(f"v_mul_u32_u24 {vWA}, 20, {vLANE}\nv_add_u32 {vWA}, {L_W}, {vWA}")
    A(f"v_lshrrev_b32 {t0}, 4, {vLANE}\nv_lshl_add_u32 {t0}, {t0}, 3, {vB}\nv_and_b32 {t1}, 8, {vLANE}\nv_lshlrev_b32 {t1}, 1, {t1}")
    A(f"v_lshl_add_u32 {vH1S}, {t0}, 5, {t1}\nv_lshl_add_u32 {vH1G}, {t0}, 11, {t1}")
    A(f"s_lshl_b32 {sH1S}, {sLIN}, 11\ns_add_u32 {sH1S}, {sH1S}, {WS_H1}")
    A(f"s_lshl_b32 {sH1G}, {sX}, 16\ns_lshl_b32 {sT0}, {sC}, 5\ns_add_u32 {sH1G}, {sH1G}, {sT0}\ns_add_u32 {sH1G}, {sH1G}, {WS_H1}")
    A(f"v_mul_u32_u24 {vYW}, 40, {vLANE}\nv_lshrrev_b32 {vYR}, 1, {vLANE}\nv_and_b32 {vYR}, 8, {vYR}\nv_lshrrev_b32 {t0}, 3, {vLANE}\nv_and_or_b32 {vYR}, {t0}, 4, {vYR}\nv_add_u32 {vYR}, {L_U}, {vYR}\nv_mov_b32 v43, {vYR}")
    A(f"v_lshlrev_b32 {t0}, 4, {vB}\nv_lshl_add_u32 {vYG}, {vA}, 12, {t0}\nv_lshlrev_b32 {vXA}, 4, {vA}\nv_mov_b32 v41, {sTAG}\nv_mov_b32 v{ZS+3}, {sTAG}\nv_mov_b32 {vFA}, 96\nv_mov_b32 {t1}, 112\nv_cmp_lt_u32 vcc, 2, {vA}\nv_cndmask_b32 {vFA}, {vFA}, {t1}, vcc")
    A(f"s_lshl_b32 {sYS}, {sLIN}, 12\ns_add_u32 {sYS}, {sYS}, {WS_H2}")
    A(f"s_lshl_b32 {sYG}, {sX}, 17\ns_lshl_b32 {sT0}, {sC}, 7\ns_add_u32 {sYG}, {sYG}, {sT0}\ns_add_u32 {sYG}, {sYG}, {WS_H2}")
    A(f"s_lshl_b32 {sH3G}, {sC}, 10\ns_add_u32 {sH3G}, {sH3G}, {WS_H3}\ns_lshl_b32 {sT0}, {sX}, 7\ns_add_u32 {sH3S}, {sH3G}, {sT0}")
    A(f"s_lshl_b32 {sXS}, {sLIN}, 8\ns_add_u32 {sXS}, {sXS}, {WS_XX}\ns_xor_b32 {sXG}, {sXS}, {32*256}")
    A(f"s_add_u32 {sTG2}, {sTAG}, 1\ns_mov_b32 {sFL}, 0")
    A(f"v_mul_u32_u24 {t0}, 3, {vB}\ns_mul_i32 {sT0}, {sC}, 20\nv_add_lshl_u32 {t0}, {t0}, {sT0}, 1\nv_mov_b32 {t2}, {OOB}")
    A(f"v_cmp_gt_u32 vcc, 7, {vB}\nv_cndmask_b32 v{vOUT}, {t2}, {t0}, vcc\nv_cmp_gt_u32 vcc, 6, {vB}\nv_cndmask_b32 v{vOUT+1}, {t2}, {t0}, vcc")
    A(f"v_mov_b32 {t0}, {WS_EP}\nv_or_b32 {t1}, s2, {vLANE}\nv_cmp_eq_u32 vcc, 0, {t1}\nv_cndmask_b32 v{vOUT+2}, {t2}, {t0}, vcc")
    A(f"buffer_load_ushort v{XV}, v{vOUT}, {X_}, 0 offen\nbuffer_load_ushort v{XV+1}, v{vOUT}, {X_}, 0 offen offset:2\nbuffer_load_ushort v{XV+2}, v{vOUT+1}, {X_}, 0 offen offset:4")
    for i in range(10): A(f"v_mov_b32 v{YY+i}, 0")
    A("s_waitcnt vmcnt(0)")
    for e in range(3): A(f"v_lshlrev_b32 v{XV+e}, 16, v{XV+e}")
    srd_lo(X_, pOUT)
    A("s_branch L_next")
    A("L_nogu:")
    A(f"s_cmp_lg_u32 {sBLK}, 16\ns_cbranch_scc1 L_next")
    A(f"v_lshrrev_b32 v10, {LLP}, {vLANE}\nv_lshlrev_b32 v10, 3, v10\ns_waitcnt lgkmcnt(0)\nds_read_b64 v[{T+2}:{T+3}], v10 offset:{L_ML}\nds_read_b64 v[{G0}:{G0+1}], {vZ} offset:{L_ML+64}")
    A(f"s_lshl_b32 {sT1}, {sLIN}, 7\ns_add_u32 {sT1}, {sT1}, {WS_LS}\nv_and_b32 v11, {LP-1}, {vLANE}\nv_cmp_eq_u32 vcc, 0, v11")
    A(f"s_waitcnt lgkmcnt(0)\nv_mov_b32 {vM}, {t2}\nv_mov_b32 {t0}, {t3}\nv_mov_b32 {t1}, {sTAG}\nv_mov_b32 {t3}, {sTAG}")
    A(f"s_getreg_b32 {sLOC}, hwreg(HW_REG_XCC_ID)\nv_mov_b32 {t2}, {sLOC}\nv_lshlrev_b32 v10, 1, v10\nv_mov_b32 {vM8}, v{G0}")
    A(f"v_readlane_b32 {sT0}, v{G0+1}, 0\nv_writelane_b32 {t2}, {sT0}, 40\ns_mov_b64 exec, vcc")
    A(f"buffer_store_dwordx4 v[{T}:{T+3}], v10, {WS_}, {sT1} offen sc1\ns_mov_b64 exec, -1")
    A(f"v_lshl_add_u32 {vLS}, v11, 7, v10\ns_branch L_next")
    A("L_tail:")
    A(f"v_mov_b32_dpp v{G0+1}, {vZK} row_ror:8 {DPP}\nv_cvt_pk_bf16_f32 v{G0}, {vZK}, v{G0+1}")
    A(f"s_mov_b32 exec_lo, 0x00010001\ns_mov_b32 exec_hi, 1\nds_write_b32 v43, v{G0} offset:64\ns_mov_b64 exec, -1\ns_waitcnt lgkmcnt(0)")
    stamp(7)
    A("s_barrier")
    def g2(p):
        for r in range(4):
            A(f"s_add_u32 {sT0}, {sYG}, {8*4096*r}\nbuffer_load_dwordx4 v[{G0+4*r}:{G0+4*r+3}], {vYG}, {WS_}, {sT0} offen {p}")
    poll("L_p2", g2, [f"v{G0+4*r+3}" for r in range(4)], loc=True)
    if stamps: A("s_memrealtime s[42:43]")
    for k in range(3): A(f"v_add_f32 v{G0+k}, v{G0+k}, v{G0+4+k}\nv_add_f32 v{G0+8+k}, v{G0+8+k}, v{G0+12+k}")
    for k in range(3): A(f"v_add_f32 v{G0+k}, v{G0+k}, v{G0+8+k}")
    def red_hi(b):
        for k in range(3): A(f"v_add_f32_dpp v{b+k}, v{b+k}, v{b+k} row_ror:8 {DPP}")
        allred_top("v_add_f32", [f"v{b+k}" for k in range(3)], [f"v{b+4+k}" for k in range(3)])
    red_hi(G0)
    A(f"s_cmp_eq_u32 {sS}, {sX}\ns_cbranch_scc1 L_red")
    A(f"s_mov_b64 exec, 0xff\nbuffer_store_dwordx4 v[{G0}:{G0+3}], v7, {WS_}, {sH3S} offen {p3s}\ns_mov_b64 exec, -1\ns_branch L_done")
    A("L_red:")
    BUF = [G0 + 16 + 4*k for k in range(np3)]
    for b in BUF:
        for k in range(3): A(f"v_mov_b32 v{b+k}, v{G0+k}")
    A(f"v_cmp_ne_u32 vcc, {sX}, {vA}\ns_mov_b32 {sT2}, {spin}\ns_mov_b64 exec, vcc")
    def l3(k): A(f"buffer_load_dwordx4 v[{BUF[k]}:{BUF[k]+3}], v7, {WS_}, {sH3G} offen {p3l}")
    for k in range(np3-1):
        l3(k); A(f"s_sleep {s3}")
    A("L_p3:")
    for k in range(np3):
        l3((k + np3 - 1) % np3)
        A(f"s_waitcnt vmcnt({np3-1})\nv_cmp_ne_u32 vcc, {sTAG}, v{BUF[k]+3}\ns_cbranch_vccz L_p3d{k}")
    A(f"s_sub_u32 {sT2}, {sT2}, 1\ns_cbranch_scc0 L_p3")
    for k in reversed(range(np3)):
        A(f"L_p3d{k}:\ns_mov_b64 exec, -1")
        for e in range(3): A(f"v_add_f32_dpp v{G1+e}, v{BUF[k]+e}, v{BUF[k]+e} row_ror:8 {DPP}")
        if k: A("s_branch L_p3e")
    A("L_p3e:")
    if stamps: A("s_memrealtime s[48:49]")
    allred_top("v_add_f32", [f"v{G1+k}" for k in range(3)], [f"v{G1+4+k}" for k in range(3)])
    for e in range(3): A(f"v_add_f32 v{G1+e}, v{G1+e}, v{XV+e}")
    for e in range(3): A(f"v_cvt_pk_bf16_f32 v{G1+e}, v{G1+e}, 0")
    A("s_mov_b64 exec, 0xff")
    A(f"buffer_store_short v{G1}, v{vOUT}, {X_}, 0 offen\nbuffer_store_short v{G1+1}, v{vOUT}, {X_}, 0 offen offset:2\nbuffer_store_short v{G1+2}, v{vOUT+1}, {X_}, 0 offen offset:4")
    A(f"buffer_store_dword v41, v{vOUT+2}, {WS_}, 0 offen")
    A("s_mov_b64 exec, -1")
    A("L_done:")
    if diag is not None:
        wave, st, mult = diag
        stamp(8)
        A(f"s_cmp_lg_u32 s2, 0\ns_cbranch_scc1 L_end\ns_cmp_lg_u32 {sW}, {wave}\ns_cbranch_scc1 L_end")
        A(f"s_waitcnt lgkmcnt(0)\ns_sub_u32 {sT0}, s{sST+2*st}, s{sST}\ns_mul_i32 {sT0}, {sT0}, {mult}\ns_add_u32 {sT0}, {sT0}, 30000")
        A(f"s_min_u32 {sT0}, {sT0}, 200000")
        A(f"L_dg:\ns_memrealtime s[72:73]\ns_waitcnt lgkmcnt(0)\ns_sub_u32 {sT1}, s72, s{sST}\ns_cmp_lt_u32 {sT1}, {sT0}\ns_cbranch_scc1 L_dg")
    if stamps:
        stamp(8)
        A(f"s_mul_i32 {sT0}, s2, 5\ns_add_u32 {sT0}, {sT0}, {sW}\ns_lshl_b32 {sT0}, {sT0}, 6\ns_add_u32 {sT0}, {sT0}, {WS_ST}")
        A(f"s_getreg_b32 {sT1}, hwreg(HW_REG_XCC_ID)")
        A("s_waitcnt lgkmcnt(0)\nv_mov_b32 v4, 0")
        for i in range(9): A(f"v_writelane_b32 v4, s{sST+2*i}, {i}")
        A(f"v_writelane_b32 v4, s42, 9\nv_writelane_b32 v4, s48, 10\nv_writelane_b32 v4, s50, 11\nv_writelane_b32 v4, s47, 12")
        A(f"v_writelane_b32 v4, {sT1}, 15")
        A(f"v_lshlrev_b32 v5, 2, {vLANE}\ns_mov_b64 exec, 0xffff")
        A(f"buffer_store_dword v4, v5, {WS_}, {sT0} offen {'sc1' if diag2 else ''}")
    if diag3:
        A(f"s_mov_b64 exec, -1\ns_cmp_lg_u32 {sW}, 0\ns_cbranch_scc1 L_end\ns_lshl_b32 {sT0}, s2, 8\ns_add_u32 {sT0}, {sT0}, {WS_ST+0x40000}")
        A(f"buffer_store_dword v199, v5, {WS_}, {sT0} offen sc1\ns_cmp_lg_u32 s2, 0\ns_cbranch_scc1 L_end")
        A(f"L_dh3:\ns_memrealtime s[72:73]\ns_waitcnt lgkmcnt(0)\ns_sub_u32 {sT1}, s72, s{sST}\ns_cmp_lt_u32 {sT1}, 20000\ns_cbranch_scc1 L_dh3")
        A(f"v_mov_b32 v8, 0\ns_mov_b32 {sT0}, {WS_ST+0x40000}\ns_mov_b32 {sT1}, 256\nL_dl3:\nbuffer_load_dword v9, v5, {WS_}, {sT0} offen sc1\ns_waitcnt vmcnt(0)")
        A(f"v_subrev_u32 v9, s{sST}, v9\nv_add_u32 v8, v8, v9\ns_add_u32 {sT0}, {sT0}, 256\ns_sub_u32 {sT1}, {sT1}, 1\ns_cmp_lg_u32 {sT1}, 0\ns_cbranch_scc1 L_dl3")
        A(f"v_add_u32 v10, 4, v5\nds_bpermute_b32 v9, v10, v8\ns_waitcnt lgkmcnt(0)\nv_sub_u32 v9, v9, v8\nv_mul_u32_u24 v9, 10, v9\nv_lshrrev_b32 v9, 8, v9")
        A(f"v_lshlrev_b32 v10, 1, v5\nds_bpermute_b32 v11, v10, v9\nv_add_u32 v10, 4, v10\nds_bpermute_b32 v12, v10, v9\ns_waitcnt lgkmcnt(0)")
        A(f"v_min_u32 v11, 9999, v11\nv_min_u32 v12, 9999, v12\nv_mul_u32_u24 v11, 10000, v11\nv_add_u32 v11, v11, v12")
        srd(TA_, pDBG, 64)
        A(f"buffer_store_dword v11, v5, {TA_}, 0 offen")
    if diag2:
        role, st, op, role0, st0, op0, mult = diag2
        A(f"s_mov_b64 exec, -1\ns_cmp_lg_u32 s2, 0\ns_cbranch_scc1 L_end\ns_cmp_lg_u32 {sW}, 4\ns_cbranch_scc1 L_end")
        A(f"L_dh:\ns_memrealtime s[72:73]\ns_waitcnt lgkmcnt(0)\ns_sub_u32 {sT1}, s72, s{sST}\ns_cmp_lt_u32 {sT1}, 20000\ns_cbranch_scc1 L_dh")
        A(f"v_mul_u32_u24 v5, 320, {vLANE}")
        for k in range(4):
            A(f"s_mov_b32 {sT0}, {WS_ST + 64*320*k}\nbuffer_load_dword v{8+k}, v5, {WS_}, {sT0} offen offset:{64*role0+4*st0} sc1\nbuffer_load_dword v{12+k}, v5, {WS_}, {sT0} offen offset:{64*role+4*st} sc1")
        A("s_waitcnt vmcnt(0)")
        for k in range(8): A(f"v_subrev_u32 v{8+k}, s{sST}, v{8+k}")
        vop = {"max": "v_max_i32", "min": "v_min_i32", "mean": "v_add_u32"}[op]; vop0 = {"max": "v_max_i32", "min": "v_min_i32", "mean": "v_add_u32"}[op0]
        for k in range(1, 4): A(f"{vop0} v8, v8, v{8+k}\n{vop} v12, v12, v{12+k}")
        allred_lo(vop0, ["v8"]); allred_top(vop0, ["v8"], ["v9"])
        allred_lo(vop, ["v12"]); allred_top(vop, ["v12"], ["v13"])
        A(f"v_readfirstlane_b32 {sT0}, v12\nv_readfirstlane_b32 {sT1}, v8\ns_mul_i32 {sT0}, {sT0}, {mult}\ns_mul_i32 {sT1}, {sT1}, {mult}")
        if op == "mean": A(f"s_ashr_i32 {sT0}, {sT0}, 8")
        if op0 == "mean": A(f"s_ashr_i32 {sT1}, {sT1}, 8")
        A(f"s_sub_u32 {sT0}, {sT0}, {sT1}\ns_add_u32 {sT0}, {sT0}, 30000\ns_min_u32 {sT0}, {sT0}, 200000")
        A(f"L_dg2:\ns_memrealtime s[72:73]\ns_waitcnt lgkmcnt(0)\ns_sub_u32 {sT1}, s72, s{sST}\ns_cmp_lt_u32 {sT1}, {sT0}\ns_cbranch_scc1 L_dg2")
    A("L_end:\ns_endpgm")
    A('.section .rodata,"a"\n.p2align 6')
    A(f".amdhsa_kernel {KN}")
    nv4 = (NV+3)//4*4
    A(f".amdhsa_next_free_vgpr {nv4}\n.amdhsa_next_free_sgpr 102\n.amdhsa_accum_offset {nv4}")
    A(".amdhsa_group_segment_fixed_size 0\n.amdhsa_kernarg_size 96\n.amdhsa_user_sgpr_count 2")
    A(".amdhsa_user_sgpr_kernarg_segment_ptr 1\n.amdhsa_system_sgpr_workgroup_id_x 1")
    A(".amdhsa_float_denorm_mode_32 3\n.end_amdhsa_kernel")
    return A.finish()

if __name__ == "__main__":
    kw = eval("dict(" + (sys.argv[2] if len(sys.argv) > 2 else "") + ")")
    open(sys.argv[1], "w").write(gen(**kw))
```

```python
import sys, os
sys.path.insert(0, os.path.dirname(os.path.abspath(__file__)))
from asmlib import Asm
KN = "parallel_sum__mha_block_cached__glu_gated_reglu__decode_kernel"
HEADER = open("parallel_sum__mha_block_cached__glu_gated_reglu__decode.s.ref").read().split("; Override launch")[0]

DOC = '''; ---------------------------------------------------------------------------------------------------------------
; Hand-offs go through d_ws in 16-byte granules {data, tag}.  tag is derived from the epoch word found in d_ws and is left
; ---------------------------------------------------------------------------------------------------------------'''
HB = 32768*384
TB = 32*HB
WS_QF = 0x4000
WS_EP, WS_LS, WS_H3, WS_XX, WS_PR, WS_QS, WS_H1, WS_ST, WS_H2, WS_SIZE = 0, 0x8000, 0x10000, 0x20000, 0x40000, 0x80000, 0x100000, 0x200000, 0x280000, 0x400000
OOB = 0x40000000
SPIN = 1 << 20

def gen(NSEG=8, G=6, F=5, FH=6, RB=8, pace=6, deep=0, per=8, bs=2, fb=22, fbo=26, pre0=2, pre1=4, trig=16, op='sc1', nre=8, rev=1, blate=0, hoist=1, wf=3, e2=0, preA=0, b0=0, tp='sc1', al=1, y4=0, cpf=1, wpf='hg', wpp='sc1', early=1, tlb=2, skip='', xmap=1, xd=(6,5,3,1,-1,-3,-5,-6), xp=(3,7,11,15,19,23,27), xd2=None, xb=22, xc=0, PI=(6,7,5,4,3,2,1,0), xs=0, np3=1, s3=6, dfirst=1, ab=0, psleep=4,
        spin=SPIN, local=1, lp="nt", pf=None, pfw="yh", pt='sc1', qp='', xl=None, p3s='sc1', p3l='sc1', sched=(4,3,3,3,0,0), ptpos=6, own=1, lsb=17, stamps=False, diag=None, diag2=None, stA=3, stB=29, diag3=0):
    A = Asm()
    NG = 32//NSEG; GS = 8*NSEG; BPS = 16//NSEG; LGS = GS.bit_length()-1
    PAIR = NSEG == 8
    TSTR = GS*4*3072
    assert G < RB and 24 % RB == 0 and NSEG == 8 and G == 6
    if diag2 or diag3: stamps = True
    timed = stamps or diag is not None
    L_OP = 0; L_W = 8192; L_YP = L_W + 15360; L_U = L_YP + 12800 + 64; L_QP = L_U + 128; L_QB = L_QP + 6400; L_ML = L_QB + 384*9
    L_CT = L_ML + 128; L_SC = L_CT + 64; L_SIZE = L_SC + 16384 + 256
    assert L_SC < 65536
    sW, sHQ, sS, sG, sMEM = "s3", "s4", "s5", "s6", "s7"
    KV_, WS_, TA_, TB_, TC_, X_ = "s[8:11]", "s[16:19]", "s[20:23]", "s[24:27]", "s[28:31]", "s[32:35]"
    mB1, mB0 = "s[12:13]", "s[14:15]"
    pX, pK, pV, pWQ, pWO, pWG, pWU, pWD, pOUT, pDBG, pWS = 36, 38, 40, 42, 44, 48, 50, 52, 54, 56, 58
    sOFF, sOFF0, sIB, sBLK, sLIN, sX, sC, sT0, sT1, sT2, sT3, sOWN = [f"s{r}" for r in range(60, 72)]
    sTAG = "s46"
    sST = 84
    vLANE, vKV, vA, vB = "v0", "v1", "v2", "v3"
    ACC, Q = 8, 32
    T = 44
    RING = 56
    PB = RING + 48
    NV = PB + 96
    t0, t1, t2, t3 = f"v{T}", f"v{T+1}", f"v{T+2}", f"v{T+3}"
    def stamp(i):
        if timed: A(f"s_memrealtime s[{sST+2*i}:{sST+2*i+1}]")
    def srd_hi(name, size):
        b = int(name[2:name.index(":")]); A(f"s_mov_b32 s{b+2}, {size}\ns_mov_b32 s{b+3}, 0x20000")
    def srd_lo(name, ptr):
        b = int(name[2:name.index(":")]); A(f"s_mov_b64 s[{b}:{b+1}], s[{ptr}:{ptr+1}]")
    def srd(name, ptr, size): srd_lo(name, ptr); srd_hi(name, size)
    DPP = "row_mask:0xf bank_mask:0xf"
    PATS = ("quad_perm:[1,0,3,2]", "quad_perm:[2,3,0,1]", "row_half_mirror", "row_mirror")
    def allred_lo(op, vs, n=4):
        for pat in PATS[:n]:
            for v in vs: A(f"{op}_dpp {v}, {v}, {v} {pat} {DPP}")
    def allred_top(op, vs, ts):
        for sw in ("v_permlane16_swap_b32", "v_permlane32_swap_b32"):
            for v, t in zip(vs, ts): A(f"v_mov_b32 {t}, {v}")
            for v, t in zip(vs, ts): A(f"{sw} {t}, {v}")
            for v, t in zip(vs, ts): A(f"{op} {v}, {v}, {t}")
    def redscat(base, n):
        for g in range(n):
            for e in range(4): A(f"v_permlane32_swap_b32 v{base+8*g+e}, v{base+8*g+e+4}")
        for g in range(n):
            for e in range(4): A(f"v_add_f32 v{base+8*g+e}, v{base+8*g+e}, v{base+8*g+e+4}")
        for g in range(n):
            for e in range(2): A(f"v_permlane16_swap_b32 v{base+8*g+e}, v{base+8*g+e+2}")
        for g in range(n):
            for e in range(2): A(f"v_add_f32 v{base+8*g+e}, v{base+8*g+e}, v{base+8*g+e+2}")
        for g in range(n):
            A(f"v_add_f32_dpp v{base+8*g}, v{base+8*g}, v{base+8*g} row_ror:8 row_mask:0xf bank_mask:0x3")
        for g in range(n):
            A(f"v_add_f32_dpp v{base+8*g}, v{base+8*g+1}, v{base+8*g+1} row_ror:8 row_mask:0xf bank_mask:0xc")
    def redscat_lo(bases):
        for S in bases:
            for e in range(4): A(f"v_add_f32_dpp v{S+e}, v{S+e}, v{S+e} row_half_mirror row_mask:0xf bank_mask:0x5")
        for S in bases:
            for e in range(4): A(f"v_add_f32_dpp v{S+e}, v{S+e+4}, v{S+e+4} row_half_mirror row_mask:0xf bank_mask:0xa")
        for S in bases:
            for e in range(4): A(f"v_add_f32_dpp v{S+e}, v{S+e}, v{S+e} quad_perm:[2,3,0,1] {DPP}")
        for S in bases:
            for e in range(2): A(f"v_cndmask_b32 v{S+e}, v{S+e}, v{S+e+2}, {mB1}")
        for S in bases:
            for e in range(2): A(f"v_add_f32_dpp v{S+e}, v{S+e}, v{S+e} quad_perm:[1,0,3,2] {DPP}")
        for S in bases: A(f"v_cndmask_b32 v{S}, v{S}, v{S+1}, {mB0}")
    def axpy(acc, data, n, pl, ph):
        for i in range(n):
            A(f"v_dot2c_f32_bf16 v{acc+2*i}, v{data+i}, {pl}\nv_dot2c_f32_bf16 v{acc+2*i+1}, v{data+i}, {ph}")
    def ld(reg, j): A(f"buffer_load_dwordx4 v[{reg}:{reg+3}], {vKV}, {KV_}, {sOFF} offen offset:{128*j} nt")
    uid = [0]
    YB = (WS_H1 + 1024, WS_QS + 1024, WS_QS, WS_H2) if al else (WS_H2, WS_H2 + 1024, WS_H2 + 0x80000, WS_H2 + 0x80400)
    def ybase(dst, q):
        A(f"s_mov_b32 {dst}, {YB[3]}")
        for i in range(3): A(f"s_cmp_eq_u32 {q}, {i}\ns_cselect_b32 {dst}, {YB[i]}, {dst}")
    PILUT = sum(p << (4*i) for i, p in enumerate(PI))
    assert PI[0] != 7 and sorted(PI) == list(range(8))
    sSTR, sOF5, sQF = "s74", "s75", "s83"
    J5 = PI.index(5); B5 = 16 + 2*J5
    assert J5 == 2
    FMASK = hex(sum(1 << (b % 32) for b in list(range(18, 33, 2)) + [B5+1]))
    def next_block(last):
        uid[0] += 1; u = uid[0]
        A(f"s_add_u32 {sIB}, {sIB}, 1\ns_sub_u32 {sT0}, {sIB}, {B5 if last else 10}\ns_cmp_gt_u32 {sT0}, 1\ns_cbranch_scc1 L_n5{u}")
        if last and rev:
            A(f"s_add_u32 {sOFF}, {sOF5}, {2*HB}\ns_mov_b32 {sSTR}, {2*TSTR}\ns_cmp_eq_u32 {sT0}, 0\ns_cbranch_scc1 L_nb{u}")
            A(f"s_add_u32 {sOFF}, {sOF5}, {14*TSTR}\ns_mov_b32 {sSTR}, {-2*TSTR}\ns_branch L_nb{u}\nL_n5{u}:")
        else:
            if last: A(f"s_xor_b32 {sT0}, {sT0}, 1")
            A(f"s_mul_i32 {sT0}, {sT0}, {2*HB}\ns_add_u32 {sOFF}, {sOF5}, {sT0}\ns_mov_b32 {sSTR}, {2*TSTR}\ns_branch L_nb{u}\nL_n5{u}:")
        A(f"s_and_b32 {sT0}, {sIB}, 1\ns_cbranch_scc1 L_nb{u}\ns_mov_b32 {sSTR}, {TSTR}")
        if not last:
            A(f"s_mul_i32 {sOFF}, {sIB}, {NG*HB//2}\ns_add_u32 {sOFF}, {sOFF}, {sOFF0}")
            A(f"s_cmp_lg_u32 {sIB}, 16\ns_cbranch_scc1 L_nb{u}")
            A(f"s_mov_b64 s[8:9], s[{pV}:{pV+1}]\ns_add_u32 {sOFF}, {sOFF0}, {PI[0]*NG*HB}")
        else:
            A(f"s_lshl_b32 {sT0}, {sIB}, 1\ns_lshr_b32 {sT0}, {hex(PILUT)}, {sT0}\ns_and_b32 {sT0}, {sT0}, 7")
            A(f"s_mul_i32 {sOFF}, {sT0}, {NG*HB}\ns_add_u32 {sOFF}, {sOFF}, {sOFF0}")
        A(f"L_nb{u}:")
    def lev(n, f):
        fr = f - int(f)
        return int(f) + (1 if int((n+1)*fr + 1e-9) != int(n*fr + 1e-9) else 0)
    cps = list(range(0, 24, per)) if fb else []
    assert all(c + G + 1 <= 23 for c in cps) and per > G
    PR_, sTHR, vPC, vPO, vPL, vPS = TC_, "s72", "v52", "v53", "v54", "v55"
    def slot(n, last=False):
        uid[0] += 1; u = uid[0]
        fi, fh = lev(n, F), lev(n, FH)
        assert fi <= fh <= G
        def cnt(x): return x - 1 + 2*sum(1 for c in cps if 0 < n - c <= x)
        m = n + G
        if m % 3 == 0:
            A(f"s_add_u32 {sOFF}, {sOFF}, {sSTR}")
            if m == 24: next_block(last)
        if fi < fh: A(f"s_cbranch_vccnz L_dp{u}\ns_waitcnt vmcnt({cnt(fi)})\nL_dp{u}:")
        A(f"s_waitcnt vmcnt({cnt(fh)})")
        ld(RING + 4*(m % RB), m % 3)
        if n - G - 1 in cps:
            if xd:
                A(f"v_readlane_b32 {sT1}, {vPO}, 32\ns_sub_u32 {sT1}, {sT1}, {sTAG}\ns_cmp_lt_u32 {sT1}, 33\ns_cselect_b32 {sTHR}, {sT1}, {sTHR}")
            A(f"v_sub_u32 {vPO}, {vPO}, {vPC}\nv_cmp_gt_u32 vcc, 64, {vPO}\ns_bcnt1_i32_b32 {sT0}, vcc_lo")
            A(f"s_cmp_gt_u32 {sT0}, {sTHR}\ns_cselect_b64 vcc, -1, 0")
            if stamps: A(f"s_and_b32 {sT0}, vcc_lo, 1\ns_add_u32 s47, s47, {sT0}")
            if last and deep: A(f"s_cmp_ge_u32 {sBLK}, {32-deep}\ns_cselect_b64 vcc, -1, vcc")
        if n in cps:
            A(f"v_add_u32 {vPC}, 1, {vPC}\nbuffer_store_dword {vPC}, {vPS}, {PR_}, 0 offen\nbuffer_load_dword {vPO}, {vPL}, {PR_}, 0 offen nt")
    def qk4(acc, data, j):
        for e in range(4):
            if j == 0 and e == 0: A(f"v_dot2_f32_bf16 v{acc}, v{data}, v{Q}, 0")
            else: A(f"v_dot2_f32_bf16 v{acc}, v{data+e}, v{Q+4*j+e}, v{acc}")

    A(HEADER.rstrip())
    A(f"; @launch grid=(256,1,1) block=(320,1,1) lds={L_SIZE}")
    A(DOC)
    A('.amdgcn_target "amdgcn-amd-amdhsa--gfx950"\n.text')
    A(f".globl {KN}\n.p2align 8\n.type {KN},@function\n{KN}:")
    A("s_load_dwordx16 s[36:51], s[0:1], 0\ns_load_dwordx8 s[52:59], s[0:1], 64")
    A("s_cmp_ge_u32 s2, 256\ns_cbranch_scc1 L_end")
    stamp(0)
    A(f"s_setprio 3\nv_bfe_u32 {vA}, v0, 3, 3\nv_lshrrev_b32 v1, 6, v0\nv_and_b32 {vB}, 7, v0\nv_lshl_add_u32 v6, v1, 4, {vA}\nv_lshlrev_b32 v9, 4, {vB}")
    A(f"v_mul_u32_u24 v4, 12288, v6\nv_mov_b32 v8, 0\nv_add_u32 v4, v4, v9\nds_write_b32 v8, v8 offset:{L_CT}")
    A(f"s_and_b32 {sX}, s2, 7\ns_lshr_b32 {sC}, s2, 3\ns_lshl_b32 {sT0}, {sX}, 5\ns_add_u32 {sLIN}, {sT0}, {sC}\ns_lshr_b32 {sG}, {sX}, 1\ns_and_b32 {sS}, {sC}, 7")
    A(f"s_lshr_b32 {sT0}, {sLIN}, 1\ns_and_b32 {sT0}, {sT0}, 28\ns_add_u32 {sHQ}, {sT0}, {sG}")
    A(f"s_mul_i32 {sT1}, {sS}, {80*12288}\ns_mul_i32 {sT2}, {sHQ}, 384\ns_add_u32 {sT1}, {sT1}, {sT2}")
    srd_hi(TA_, 640*12288)
    def entry2a():
        A(f"v_and_b32 {vLANE}, 63, v0\nv_mul_u32_u24 v5, 3072, v6\nv_lshlrev_b32 v6, 1, v6\nv_lshlrev_b32 v7, 4, {vLANE}\ns_mul_i32 {sT0}, {sS}, 160")
        srd_hi(X_, 1280)
    def entry2b():
        A(f"v_readfirstlane_b32 {sW}, v1\nv_add_u32 v5, v5, v9\nv_mov_b32 v10, {OOB}\nv_cmp_gt_u32 vcc, 6, {vB}\nv_mul_u32_u24 {vKV}, 384, {vA}\nv_add_u32 {vKV}, {vKV}, v9\nv_cndmask_b32 v5, v10, v5, vcc")
        A(f"s_mul_i32 {sT2}, {sS}, {80*3072}\ns_lshr_b32 {sT3}, {sLIN}, 3\ns_mul_i32 {sT3}, {sT3}, 96\ns_add_u32 {sT2}, {sT2}, {sT3}")
        srd_hi(TB_, 640*3072); srd_hi(TC_, 640*3072)
    if e2 >= 1: entry2a()
    if e2 >= 2: entry2b()
    A("s_waitcnt lgkmcnt(0)")
    def code_touch(lab, reg):
        A("; read one KiB of this kernel's code so that later instruction fetches find it in the caches")
        A(f"s_getpc_b64 s[74:75]\n{lab}:\ns_lshl_b32 s76, {sC}, 10\nv_add_u32 v{reg}, s76, v7\nv_min_u32 v{reg}, L_end-{KN}-16, v{reg}")
        A(f"s_sub_u32 s74, s74, {lab}-{KN}\ns_subb_u32 s75, s75, 0\nv_mov_b32 v{reg+1}, s75\nv_add_co_u32 v{reg}, vcc, s74, v{reg}\nv_addc_co_u32 v{reg+1}, vcc, 0, v{reg+1}, vcc")
        A(f"global_load_dword v{reg+2}, v[{reg}:{reg+1}], off")
    def page_touch():
        A("; scalar reads of one word per 2 MiB page my peers will stream (and of wo, out): address translations are ready in time")
        A(f"s_bfe_u32 s76, {sC}, {(3<<16)|1}\ns_lshl_b32 s77, s76, 2\ns_add_u32 s77, s77, {sG}\ns_mul_i32 s77, s77, {HB}")
        A(f"s_bitcmp1_b32 {sC}, 4\ns_cselect_b64 s[74:75], s[{pV}:{pV+1}], s[{pK}:{pK+1}]\ns_cselect_b64 s[80:81], s[{pOUT}:{pOUT+1}], s[{pWO}:{pWO+1}]")
        A(f"s_cmp_eq_u32 {sC}, 31\ns_cselect_b64 s[80:81], s[{pWD}:{pWD+1}], s[80:81]\ns_bitcmp1_b32 {sC}, 4")
        A(f"s_cselect_b32 s76, 0, s76\ns_and_b32 s76, s76, 3\ns_lshl_b32 s76, s76, 21\ns_add_u32 s80, s80, s76\ns_addc_u32 s81, s81, 0")
        A(f"s_add_u32 s74, s74, s77\ns_addc_u32 s75, s75, 0\ns_bitcmp1_b32 {sC}, 0\ns_cbranch_scc1 L_pt1")
        for k in range(4):
            A(f"s_load_dword s{76+k}, s[74:75], 0x0")
            if k < 3: A(f"s_add_u32 s74, s74, {1<<21}\ns_addc_u32 s75, s75, 0")
        A("s_branch L_pt2\nL_pt1:")
        for k, d in enumerate((4 << 21, 1 << 21, (1 << 21) - 4)):
            A(f"s_add_u32 s74, s74, {d}\ns_addc_u32 s75, s75, 0\ns_load_dword s{76+k}, s[74:75], 0x0")
        A("s_load_dword s79, s[80:81], 0x0\nL_pt2:")
        A(f"s_bitcmp1_b32 {sC}, 4\ns_cselect_b64 s[74:75], s[{pV}:{pV+1}], s[{pK}:{pK+1}]\ns_and_b32 s82, {sC}, 7\ns_lshl_b32 s82, s82, 21\ns_min_u32 s82, s82, {HB-4}")
        A(f"s_xor_b32 s83, {sG}, 2\ns_add_u32 s83, s83, 20\ns_mul_i32 s83, s83, {HB}\ns_add_u32 s82, s82, s83\ns_add_u32 s74, s74, s82\ns_addc_u32 s75, s75, 0\ns_load_dword s82, s[74:75], 0x0")
    def touches():
        if cpf == 1: code_touch("L_pc1", PB+88)
        if wpf:
            A("; first touch of the hand-off lines this workgroup writes later")
            for ch, base, sh, n in (("h", WS_H1, 11, 2), ("y", WS_H2, 11, 1), ("g", WS_QS + 1024, 11, 1), ("q", WS_QS, 11, 1)):
                if ch in wpf:
                    A(f"s_lshl_b32 {sT0}, {sLIN}, {sh}\ns_add_u32 {sT0}, {sT0}, {base}")
                    for i in range(n): A(f"buffer_load_dword v{PB+92}, v7, {WS_}, {sT0} offen offset:{1024*i} {tp}")
            small = [(WS_LS, 7, 0), (WS_XX, 8, 0), (WS_XX, 8, 128), (WS_H3, 7, 0), (WS_QF, 6, 0)]
            sel = [e for e, ch in zip(small, "lxx3f") if ch in wpf]
            if sel or "p" in wpf:
                A(f"v_mov_b32 v{PB+93}, {OOB}")
                for i, (base, sh, off) in enumerate(sel):
                    A(f"s_lshl_b32 {sT0}, {sLIN}, {sh}\ns_add_u32 {sT0}, {sT0}, {base+off}\nv_writelane_b32 v{PB+93}, {sT0}, {i}")
                if "p" in wpf:
                    A(f"s_lshr_b32 {sT0}, {sLIN}, 3\ns_mul_i32 {sT0}, {sT0}, 4224\ns_add_u32 {sT0}, {sT0}, {WS_PR}\nv_writelane_b32 v{PB+93}, {sT0}, 8")
                    A(f"s_add_u32 {sT0}, {sT0}, 128\nv_writelane_b32 v{PB+93}, {sT0}, 9\ns_mul_i32 {sT0}, {sX}, 4224\ns_add_u32 {sT0}, {sT0}, {WS_PR+0x30000}\nv_writelane_b32 v{PB+93}, {sT0}, 10")
                A(f"buffer_load_dword v{PB+92}, v{PB+93}, {WS_}, 0 offen {wpp}")
    XR, WD, WA = RING + 40, RING, ACC
    wl = []
    for t in range(2):
        for j in range(3):
            wl.append(f"buffer_load_dwordx4 v[{WD+20*t+4*j}:{WD+20*t+4*j+3}], v4, {TA_}, {sT1} offen offset:{128*j} nt")
        if t == 0: wl[-1] += f"\ns_add_u32 {sT1}, {sT1}, {8*12288}"
    for t in range(2):
        wl.append(f"buffer_load_dwordx4 v[{WD+20*t+12}:{WD+20*t+15}], v5, {TB_}, {sT2} offen nt")
        wl.append(f"buffer_load_dwordx4 v[{WD+20*t+16}:{WD+20*t+19}], v5, {TC_}, {sT2} offen nt")
        if t == 0: wl[-1] += f"\ns_add_u32 {sT2}, {sT2}, {8*3072}"
    assert 1 <= wf <= 6
    srd_lo(TA_, pWQ)
    for l in wl[:wf]: A(l)
    if e2 < 1: entry2a()
    srd_lo(X_, pX)
    A(f"buffer_load_dwordx4 v[{XR}:{XR+3}], v7, {X_}, 0 offen")
    A(f"buffer_load_dwordx4 v[{XR+4}:{XR+7}], v7, {X_}, 0 offen offset:1024")
    A(f"buffer_load_ushort v{T+10}, v6, {X_}, {sT0} offen")
    A(f"buffer_load_ushort v{T+11}, v6, {X_}, {sT0} offen offset:16")
    if e2 < 2: entry2b()
    srd_lo(TB_, pWG); srd_lo(TC_, pWU)
    A(f"s_load_dword {sTAG}, s[{pWS}:{pWS+1}], {WS_EP}")
    for i, l in enumerate(wl[wf:] + [""]):
        if i == b0: A("s_barrier")
        A(l)
    srd(KV_, pK, TB); srd(WS_, pWS, WS_SIZE)
    A(f"s_and_b32 {sMEM}, {sLIN}, {GS-1}\ns_sub_u32 {sW}, {sW}, 1\ns_cselect_b32 {sW}, 4, {sW}")
    A(f"s_lshl_b32 {sT0}, {sMEM}, 2\ns_add_u32 {sT0}, {sT0}, {sW}\ns_mul_i32 {sT0}, {sT0}, 3072")
    A(f"s_mul_i32 {sOFF0}, {sG}, {HB}\ns_add_u32 {sOFF0}, {sOFF0}, {sT0}\ns_mov_b32 {sOFF}, {sOFF0}")
    A(f"s_mov_b32 s12, 0xcccccccc\ns_mov_b32 s13, 0xcccccccc\ns_mov_b32 s14, 0xaaaaaaaa\ns_mov_b32 s15, 0xaaaaaaaa")
    A(f"s_and_b32 {sOWN}, {sX}, 1\ns_xor_b32 {sOWN}, {sOWN}, {own}")
    assert early == 1 and cpf == 1 and wpf in ("hg", "hgy")
    NT = 2 + len(wpf)
    if early:
        A(f"s_cmp_lg_u32 {sW}, {4 if early == 1 else 3}\ns_cbranch_scc1 L_not"); touches()
        if tlb == 1: page_touch()
        A("L_not:")
    sD = [f"s{r}" for r in range(74, 80)]; sL = ["s80", "s81", "s82"]
    def dma_setup():
        srd(TA_, pWO, 6144*1280); srd(TB_, pWD, 1536*1280)
        A(f"s_lshl_b32 {sT2}, {sS}, 3\ns_lshr_b32 {sT1}, {sC}, 3\ns_lshl_b32 {sT1}, {sT1}, 1\ns_add_u32 {sT2}, {sT2}, {sT1}")
        A(f"s_mul_i32 {sT1}, {sG}, 192\ns_add_u32 {sT2}, {sT2}, {sT1}")
        A(f"s_lshl_b32 {sT0}, {sW}, 1\ns_add_u32 {sT0}, {sT0}, {sOWN}\ns_lshl_b32 {sT0}, {sT0}, 2\ns_lshr_b32 {sT0}, {hex(PILUT)}, {sT0}\ns_and_b32 {sT0}, {sT0}, 7\ns_mul_i32 {sT0}, {sT0}, {NG*192}\ns_add_u32 {sT0}, {sT0}, {sT2}")
        A(f"s_mul_i32 {sL[0]}, {sT0}, 1280\ns_add_u32 {sL[1]}, {sL[0]}, {64*1280}\ns_add_u32 {sL[2]}, {sL[0]}, {128*1280}")
        A(f"s_lshl_b32 {sT0}, {sW}, 6\ns_add_u32 {sT0}, {sT0}, {sT2}\ns_add_u32 {sT0}, {sT0}, {PI[7]*NG*192}\ns_mul_i32 {sD[2]}, {sT0}, 1280\ns_mul_i32 {sD[3]}, {sW}, 2560")
        A(f"s_mul_i32 {sT0}, {sLIN}, 7680\ns_lshl_b32 {sD[5]}, {sW}, 11\ns_add_u32 {sD[4]}, {sT0}, {sD[5]}")
        if blate: A(f"s_cmp_eq_u32 {sOWN}, 1\ns_cselect_b32 s26, 0, s26\ns_cselect_b32 {sD[4]}, 0, {sD[4]}")
    def w(paced):
        if paced: A(f"s_waitcnt vmcnt({pace-1})")
    def op_pb(n):
        def f(paced):
            if n and n % 3 == 0: A(f"s_add_u32 {sOFF}, {sOFF}, {TSTR}")
            w(paced); ld(PB + 4*n, n % 3)
        return f
    def op_wo(jj, i, off=0, base=7680):
        def f(paced):
            if i == 0: A(f"s_add_u32 m0, {sD[off+1]}, {L_W+base+2560*jj}")
            if i == 2: A("s_mov_b32 exec_hi, 0")
            w(paced); A(f"buffer_load_dwordx4 v7, {TA_}, {sD[off]} offen offset:{1024*i} nt lds")
            if i == 2: A(f"s_mov_b32 exec_hi, -1\ns_add_u32 {sD[off]}, {sD[off]}, {64*1280}")
        return f
    def op_wd(i):
        def f(paced):
            if i == 0: A(f"s_add_u32 m0, {sD[5]}, {L_W}")
            else: A(f"s_cmp_eq_u32 {sW}, 3\ns_cselect_b32 exec_hi, 0, -1")
            w(paced); A(f"buffer_load_dwordx4 v7, {TB_}, {sD[4]} offen offset:{1024*i} nt lds")
            if i: A("s_mov_b32 exec_hi, -1")
        return f
    def op_s4(paced):
        A("; rows of the last segment")
        A(f"s_cmp_eq_u32 {sW}, 3\ns_cbranch_scc1 L_nos4")
        for i in range(3): op_wo(0, i, 2, 7680)(paced)
        A("L_nos4:")
    dma = [op_wd(0), op_wd(1), op_s4]
    pbs = [op_pb(n) for n in range(24)]
    ops = dma[:2] + pbs
    ops.insert(max(2, pre0), op_s4)
    assert preA <= pre0 <= pre1
    dma_setup()
    A(f"s_cmp_eq_u32 {sW}, 4\ns_cbranch_scc1 L_ln\ns_setprio 1\ns_waitcnt vmcnt({10-wf})")
    for n in range(preA): ops[n](False)
    A(f"s_branch L_ln2\nL_ln:\ns_waitcnt vmcnt({10-wf+NT})\nL_ln2:\ns_waitcnt lgkmcnt(0)")
    A(f"s_mul_i32 {sTAG}, {sTAG}, 1664525\ns_add_u32 {sTAG}, {sTAG}, 1013904223")
    XF = WA
    for i in range(8):
        A(f"v_lshlrev_b32 v{XF+2*i}, 16, v{XR+i}\nv_and_b32 v{XF+2*i+1}, 0xffff0000, v{XR+i}")
    l0, l1, l2, l3 = "v24", "v25", "v26", "v27"
    A(f"v_add_f32 {l0}, v{XF}, v{XF+1}\nv_add_f32 {l1}, v{XF+2}, v{XF+3}")
    for i in range(4, 16, 2): A(f"v_add_f32 {l0}, {l0}, v{XF+i}\nv_add_f32 {l1}, {l1}, v{XF+i+1}")
    A(f"v_add_f32 {l0}, {l0}, {l1}")
    allred_lo("v_add_f32", [l0]); allred_top("v_add_f32", [l0], [l1])
    A(f"v_mul_f32 {l0}, 0x3acccccd, {l0}")
    for i in range(16): A(f"v_sub_f32 v{XF+i}, v{XF+i}, {l0}")
    A(f"v_mul_f32 {l1}, v{XF}, v{XF}\nv_mul_f32 {l2}, v{XF+8}, v{XF+8}")
    for i in range(1, 8): A(f"v_fmac_f32 {l1}, v{XF+i}, v{XF+i}\nv_fmac_f32 {l2}, v{XF+8+i}, v{XF+8+i}")
    A(f"v_cmp_gt_u32 vcc, 16, {vLANE}\nv_cndmask_b32 {l2}, 0, {l2}, vcc\nv_add_f32 {l1}, {l1}, {l2}")
    allred_lo("v_add_f32", [l1]); allred_top("v_add_f32", [l1], [l2])
    A(f"v_mul_f32 {l1}, 0x3acccccd, {l1}")
    A(f"v_readfirstlane_b32 {sT0}, {l0}\nv_readfirstlane_b32 {sT1}, {l1}\ns_mul_i32 {sT0}, {sT0}, 0x9E3779B1\ns_add_u32 {sT0}, {sT0}, {sT1}")
    A(f"s_lshl_b32 {sT0}, {sT0}, 2\ns_add_u32 {sTAG}, {sTAG}, {sT0}")
    A(f"v_cvt_pk_bf16_f32 {l0}, 0, {l0}\nv_cvt_pk_bf16_f32 {l1}, 0, {l1}")
    A(f"v_add_f32 {l1}, 0x3727c5ac, {l1}\nv_cvt_pk_bf16_f32 {l1}, 0, {l1}\nv_sqrt_f32 {l1}, {l1}")
    A(f"v_cvt_pk_bf16_f32 {l1}, 0, {l1}\nv_rcp_f32 {l2}, {l1}")
    for t in range(2):
        xr = f"v{T+10+t}"
        A(f"v_lshlrev_b32 {xr}, 16, {xr}\nv_sub_f32 {xr}, {xr}, {l0}\nv_cvt_pk_bf16_f32 {xr}, 0, {xr}")
        A(f"v_mul_f32 {l3}, {xr}, {l2}\nv_fma_f32 {xr}, -{l3}, {l1}, {xr}\nv_fma_f32 {xr}, {xr}, {l2}, {l3}")
        A(f"v_cvt_pk_bf16_f32 v{T+6+2*t}, {xr}, 0\nv_cvt_pk_bf16_f32 v{T+7+2*t}, 0, {xr}")
    for i in range(40): A(f"v_mov_b32 v{WA+i}, 0")
    stamp(1)
    A(f"s_cmp_eq_u32 {sW}, 4\ns_cbranch_scc1 L_nopre0\ns_waitcnt vmcnt({4+preA})")
    for n in range(preA, pre0): ops[n](False)
    A(f"s_branch L_pre1\nL_nopre0:\ns_waitcnt vmcnt({4+NT})\nL_pre1:")
    for t in range(2): axpy(WA, WD+20*t, 12, f"v{T+6+2*t}", f"v{T+7+2*t}")
    A(f"s_cmp_eq_u32 {sW}, 4\ns_cbranch_scc1 L_nopre1\ns_waitcnt vmcnt({pre0})")
    for n in range(pre0, pre1): ops[n](False)
    A(f"s_branch L_pre2\nL_nopre1:\ns_waitcnt vmcnt({NT})\nL_pre2:")
    for t in range(2): axpy(WA+24, WD+20*t+12, 8, f"v{T+6+2*t}", f"v{T+7+2*t}")
    redscat(WA, 5)
    A(f"s_mul_i32 {sT0}, {sW}, 1280\nv_lshl_add_u32 v4, {vLANE}, 2, {sT0}")
    for k in range(5): A(f"ds_write_b32 v4, v{WA+8*k} offset:{L_QP+256*k}")
    A(f"v_mov_b32 v5, 0\nv_mov_b32 v6, 1\ns_mov_b64 exec, 1\nds_add_u32 v5, v6 offset:{L_CT}\ns_mov_b64 exec, -1")
    stamp(2)
    if ab: A("s_barrier")
    A(f"s_cmp_eq_u32 {sW}, 4\ns_cbranch_scc1 L_svc")
    for n in range(pre1, len(ops)):
        ops[n](True)
        if n == trig: A(f"v_mov_b32 v6, 64\ns_mov_b64 exec, 1\nds_add_u32 v5, v6 offset:{L_CT}\ns_mov_b64 exec, -1")
    A(f"s_mov_b32 {sIB}, 1")
    for m in range(G):
        if m % 3 == 0: A(f"s_add_u32 {sOFF}, {sOFF}, {TSTR}")
        A(f"s_waitcnt vmcnt({pace-1})"); ld(RING + 4*m, m % 3)
    vQA, vSA = "v4", "v5"
    A(f"v_lshlrev_b32 {vQA}, 4, {vB}\nv_add_u32 {vQA}, {L_QB}, {vQA}")
    A(f"s_lshl_b32 {sT0}, {sW}, 12\ns_add_u32 {sT0}, {sT0}, {L_SC}\nv_lshl_add_u32 {vSA}, {vLANE}, 2, {sT0}")
    A(f"s_lshl_b32 {sT0}, {sX}, 2\ns_add_u32 {sT0}, {sT0}, {sW}\ns_mul_i32 {sT0}, {sT0}, 4224\ns_add_u32 {sT0}, {sT0}, {WS_PR}")
    A(f"s_add_u32 s28, s{pWS}, {sT0}\ns_addc_u32 s29, s{pWS+1}, 0\ns_mov_b32 s30, {132 if xd else 128}")
    A(f"v_lshlrev_b32 {vPL}, 2, {vLANE}\nv_mov_b32 {vPS}, 0x1000\nv_cmp_eq_u32 vcc, {sC}, {vLANE}\nv_cndmask_b32 {vPS}, {vPS}, {vPL}, vcc\nv_mov_b32 {vPC}, {sTAG}")
    A(f"s_getreg_b32 {sTHR}, hwreg(HW_REG_XCC_ID)\ns_bitcmp1_b32 {sTHR}, 0\ns_cselect_b32 {sTHR}, {fbo}, {fb}")
    if blate:
        A("; a wave without a segment of its own takes the six Wd rows at the end (the copy in LDS is zero then)")
        A(f"s_add_u32 {sT0}, {sW}, {sOWN}\ns_cmp_lg_u32 {sT0}, 4\ns_cbranch_scc1 L_nowd")
        srd(TA_, pWD, 1536*1280)
        A(f"s_mul_i32 {sL[0]}, {sLIN}, 7680\ns_add_u32 {sL[1]}, {sL[0]}, 2560\ns_add_u32 {sL[2]}, {sL[0]}, 5120\nL_nowd:")
    else:
        A(f"s_add_u32 {sT0}, {sW}, {sOWN}\ns_cmp_eq_u32 {sT0}, 4\ns_cselect_b32 s22, 0, s22\ns_cselect_b32 {sL[0]}, 0, {sL[0]}\ns_cselect_b32 {sL[1]}, 0, {sL[1]}\ns_cselect_b32 {sL[2]}, 0, {sL[2]}")
    A(f"s_lshr_b32 {sT0}, {sG}, 1\ns_sub_u32 {sQF}, 11, {sT0}\ns_mul_i32 {sT0}, {sT0}, {TSTR - 2*HB}\ns_add_u32 {sOF5}, {sOFF0}, {sT0}\ns_add_u32 {sOF5}, {sOF5}, {20*HB}")
    A(f"s_mov_b32 {sSTR}, {TSTR}\ns_mov_b64 vcc, 0\ns_mov_b32 s47, 0")
    stamp(3)
    A("s_barrier")
    for j in range(3): A(f"ds_read_b128 v[{Q+4*j}:{Q+4*j+3}], {vQA} offset:{128*j}")
    A("s_waitcnt lgkmcnt(0)")
    stamp(4)
    SA, R, RT, S2 = ACC, ACC + 2, ACC + 6, ACC + 8
    def k_after_tile(t):
        A(f"v_add_f32_dpp v{R+(t&3)}, v{SA+(t&1)}, v{SA+(t&1)} row_half_mirror row_mask:0xf bank_mask:{'0xa' if t >= 4 else '0x5'}")
    def k_stage2(e): A(f"v_add_f32_dpp v{R+e}, v{R+e}, v{R+e} quad_perm:[2,3,0,1] {DPP}")
    def k_fin(which):
        if which == 0:
            k_after_tile(7); k_stage2(3)
            A(f"v_cndmask_b32 v{RT+1}, v{R+1}, v{R+3}, {mB1}")
        else:
            A(f"v_add_f32_dpp v{RT+1}, v{RT+1}, v{RT+1} quad_perm:[1,0,3,2] {DPP}\nv_cndmask_b32 v{RT}, v{RT}, v{RT+1}, {mB0}")
            A(f"ds_write_b32 {vSA}, v{RT}\nv_add_u32 {vSA}, 256, {vSA}")
    def k_body(first):
        for n in range(24):
            t, j = n//3, n % 3
            slot(n)
            if not first:
                if n < 2: k_fin(n)
                if n == 0: A("s_waitcnt lgkmcnt(0)")
                if n == bs: A("s_waitcnt lgkmcnt(0)\ns_barrier")
            else: qk4(S2 + t, PB + 4*n, j)
            if j == 0 and t >= 1: k_after_tile(t-1)
            if j == 1 and t >= 5: k_stage2(t-5)
            if n == 23: A(f"v_cndmask_b32 v{RT}, v{R}, v{R+2}, {mB1}")
            if n == 20: A(f"s_add_u32 {sBLK}, {sBLK}, 1\ns_lshr_b32 {sT0}, {sBLK}, 1\ns_cmp_eq_u32 {sBLK}, {sQF}\ns_cselect_b32 {sT0}, 8, {sT0}\ns_mul_i32 {sT0}, {sT0}, 384\nv_add_u32 v51, {sT0}, {vQA}")
            if "c" not in skip: qk4(SA + (t & 1), RING + 4*(n % RB), j)
            if n == 23: A(f"v_add_f32_dpp v{RT}, v{RT}, v{RT} quad_perm:[1,0,3,2] {DPP}")
            if t == 7: A(f"ds_read_b128 v[{Q+4*j}:{Q+4*j+3}], v51 offset:{128*j}")
    A(f"s_mov_b32 {sBLK}, 1")
    k_body(True)
    redscat_lo([S2])
    A(f"ds_write_b32 {vSA}, v{S2}\nv_add_u32 {vSA}, 256, {vSA}")
    A("L_k:")
    k_body(False)
    def stab(t): A(f"s_cmp_lg_u32 {sBLK}, {stA}\ns_cbranch_scc1 L_st1{t}\ns_memrealtime s[42:43]\nL_st1{t}:\ns_cmp_lg_u32 {sBLK}, {stB}\ns_cbranch_scc1 L_st2{t}\ns_memrealtime s[48:49]\nL_st2{t}:")
    def trc():
        if diag3: A(f"s_memrealtime s[100:101]\ns_waitcnt lgkmcnt(0)\ns_mov_b32 m0, {sBLK}\nv_writelane_b32 v199, s100, m0")
    trc()
    if stamps: stab("k")
    A(f"s_cmp_lt_u32 {sBLK}, 16\ns_cbranch_scc1 L_k")
    A("; V phase")
    if stamps: A("s_memrealtime s[50:51]")
    vP, vPN, pl, ph, vOA, RV = "v44", "v45", "v46", "v47", "v4", Q
    k_fin(0); k_fin(1)
    A(f"v_subrev_u32 {vSA}, 4096, {vSA}\nds_read_b32 {vPN}, {vSA} offset:{512*PI[0]}")
    A(f"s_lshl_b32 {sT0}, {sW}, 10\ns_add_u32 {sT0}, {sT0}, {L_OP}\nv_add_u32 {vOA}, {sT0}, v7\ns_mov_b32 s73, 0\ns_waitcnt lgkmcnt(0)")
    for i in range(24): A(f"v_mov_b32 v{ACC+i}, 0")
    def v_a(g, zero=True):
        b = ACC + 8*g
        for e in range(4): A(f"v_permlane32_swap_b32 v{b+e}, v{b+e+4}")
        for e in range(4): A(f"v_add_f32 v{RV+4*g+e}, v{b+e}, v{b+e+4}")
        if zero:
            for e in range(8): A(f"v_mov_b32 v{b+e}, 0")
    def v_b(gs):
        for g in gs:
            for e in range(2): A(f"v_permlane16_swap_b32 v{RV+4*g+e}, v{RV+4*g+e+2}")
        for g in gs:
            for e in range(2): A(f"v_add_f32 v{RV+4*g+e}, v{RV+4*g+e}, v{RV+4*g+e+2}")
        for g in gs: A(f"v_add_f32_dpp v{48+g}, v{RV+4*g}, v{RV+4*g} row_ror:8 row_mask:0xf bank_mask:0x3")
        for g in gs: A(f"v_add_f32_dpp v{48+g}, v{RV+4*g+1}, v{RV+4*g+1} row_ror:8 row_mask:0xf bank_mask:0xc")
    def v_out(): A(f"ds_write_b96 {vOA}, v[48:50]\nv_xor_b32 {vOA}, 4096, {vOA}")
    def cond(lab, code): A(f"s_cmp_eq_u32 s73, 0\ns_cbranch_scc1 {lab}"); code(); A(f"{lab}:")
    def v_comp(n):
        if n % 3 == 0:
            t = n//3
            A(f"v_mov_b32_dpp {pl}, {vP} row_newbcast:{t} row_mask:0xf bank_mask:0x3")
            A(f"v_mov_b32_dpp {pl}, {vP} row_newbcast:{8+t} row_mask:0xf bank_mask:0xc")
            A(f"v_lshlrev_b32 {ph}, 16, {pl}")
        if "c" not in skip: axpy(ACC + 8*(n % 3), RING + 4*(n % RB), 4, pl, ph)
    A("L_v:")
    for n in range(24):
        if n == 24 - G: A(f"s_cmp_eq_u32 {sBLK}, 31\ns_cbranch_scc1 L_vend")
        slot(n, True)
        if n == 0: A(f"s_waitcnt lgkmcnt(0)\nv_mov_b32 {vP}, {vPN}"); cond("L_c0", lambda: v_a(2))
        if n == 1: cond("L_c1", lambda: (v_b([2]), v_out()))
        if n == bs: A("s_waitcnt lgkmcnt(0)\ns_barrier")
        if n == 20:
            A(f"s_add_u32 {sT1}, {sBLK}, 1\ns_bitcmp1_b32 {FMASK}, {sT1}\ns_cselect_b32 s73, 1, 0\ns_and_b32 {sT0}, {sT1}, 1")
            A(f"s_and_b32 {sT1}, {sT1}, 14\ns_lshl_b32 {sT1}, {sT1}, 1\ns_lshr_b32 {sT1}, {hex(PILUT)}, {sT1}\ns_and_b32 {sT1}, {sT1}, 7")
            A(f"s_cmp_eq_u32 {sT1}, 5\ns_cselect_b32 {sT2}, 1, 0\ns_xor_b32 {sT0}, {sT0}, {sT2}")
            A(f"s_lshl_b32 {sT1}, {sT1}, 1\ns_add_u32 {sT1}, {sT1}, {sT0}\ns_lshl_b32 {sT1}, {sT1}, 8\nv_add_u32 v51, {sT1}, {vSA}\nds_read_b32 {vPN}, v51")
        v_comp(n)
        if n == 21: cond("L_c21", lambda: (v_a(0), v_b([0])))
        if n == 22: cond("L_c22", lambda: (v_a(1), v_b([1])))
    A(f"s_add_u32 {sBLK}, {sBLK}, 1")
    trc()
    if stamps: stab("v"); A(f"; SSBYTES={(stB-stA)*8*3072}")
    A("s_branch L_v")
    A("L_vend:")
    W4, W1, YA, UF = PB, PB + 24, PB + 32, PB + 44
    late = []
    for r in range(6):
        late.append(f"buffer_load_dwordx4 v[{W4+4*r}:{W4+4*r+3}], v7, {TA_}, {sL[r//2]} offen offset:{1280*(r%2)} nt")
        late.append(f"buffer_load_dword v{W1+r}, {vPL}, {TA_}, {sL[r//2]} offen offset:{1024+1280*(r%2)} nt")
    late.insert(ptpos, f"buffer_load_dword v{W1+6}, v7, {WS_}, {sT1} offen {pt}")
    assert sum(sched) == 13 and len(sched) == G
    ybase(sT1, sW)
    A(f"s_lshl_b32 {sT0}, {sLIN}, 11\ns_add_u32 {sT1}, {sT1}, {sT0}")
    LW = PB + 56
    vY8, vY2, vYT, vLA, vZ0, vONE, vUA = [f"v{PB+84+i}" for i in range(7)]
    def prep1():
        A(f"s_mul_i32 {sT0}, {sW}, 640\nv_mul_u32_u24 {vYT}, 80, {vA}\nv_mad_u32_u24 {vYT}, {vB}, 12, {vYT}\nv_add_u32 {vYT}, {sT0}, {vYT}\nv_lshrrev_b32 {vLA}, 1, {vYT}")
        for r in range(4):
            for e in range(3): A(f"ds_read_u16 v{LW+10+3*r+e}, {vLA} offset:{L_W+7680+1280*r+2*e}")
    def prep2():
        A("s_waitcnt lgkmcnt(0)")
        for r in range(4, 6):
            for e in range(3): A(f"ds_read_u16 v{LW+10+3*r+e}, {vLA} offset:{L_W+7680+1280*r+2*e}")
        A(f"s_mul_i32 {sT0}, {sW}, 2560\nv_lshl_add_u32 {vY8}, {vLANE}, 5, {sT0}\nv_lshl_add_u32 {vY2}, {vLANE}, 3, {sT0}\nv_add_u32 {vYT}, {L_YP}, {vYT}")
        A(f"v_mov_b32 {vZ0}, 0\nv_mov_b32 {vONE}, 0x10000")
        for i in range(10): A(f"v_mov_b32 v{YA+i}, 0")
    def prep3():
        A("s_waitcnt lgkmcnt(0)")
        for p in range(3):
            for e in range(3): A(f"v_lshl_or_b32 v{LW+3*p+e}, v{LW+10+6*p+3+e}, 16, v{LW+10+6*p+e}")
    A(f"s_lshl_b32 {sT0}, {sW}, 4\nv_mov_b32 {vUA}, {sT0}")
    done = 0
    for n in range(24 - G, 24):
        A("; younger than ring load n: ring loads n+1..23, progress accesses issued behind slots >= n-G, late loads so far")
        A(f"s_waitcnt vmcnt({23 - n + 2*sum(1 for c in cps if n - G <= c < 24 - G) + done})")
        for i in range(sched[n - 24 + G]): A(late[done]); done += 1
        v_comp(n)
        if hoist and n <= 20: (prep1, prep2, prep3)[n - 18]()
        if n == 23: stamp(5)
        if n >= 21: v_a(n - 21, False); v_b([n - 21])
    v_out()
    A("s_waitcnt lgkmcnt(0)\ns_barrier")
    stamp(6)
    A(f"ds_read_b128 v[12:15], {vUA} offset:{L_U}")
    if not hoist: prep1(); prep2(); prep3()
    A(f"v_mov_b32 v19, {sTAG}\nv_add_u32 v19, 32, v19\ns_waitcnt lgkmcnt(0)")
    for p in range(3):
        A(f"v_and_b32 v{UF+4*p}, 0xffff, v{12+p}\nv_lshlrev_b32 v{UF+4*p+1}, 16, v{12+p}\nv_lshrrev_b32 v{UF+4*p+2}, 16, v{12+p}\nv_and_b32 v{UF+4*p+3}, 0xffff0000, v{12+p}")
    A(f"v_readfirstlane_b32 {sT3}, v15")
    for r in range(6):
        pos = [i for i, l in enumerate(late) if l.startswith(f"buffer_load_dword v{W1+r},")][0]
        A(f"s_waitcnt vmcnt({12-pos})")
        axpy(YA, W4 + 4*r, 4, f"v{UF+2*r}", f"v{UF+2*r+1}"); axpy(YA + 8, W1 + r, 1, f"v{UF+2*r}", f"v{UF+2*r+1}")
    A(f"ds_write_b128 {vY8}, v[{YA}:{YA+3}] offset:{L_YP}\nds_write_b128 {vY8}, v[{YA+4}:{YA+7}] offset:{L_YP+16}")
    A(f"ds_write_b64 {vY2}, v[{YA+8}:{YA+9}] offset:{L_YP+2048}\ns_mov_b64 exec, 1\nds_add_u32 {vZ0}, {vONE} offset:{L_CT}\ns_mov_b64 exec, -1")
    A(f"L_wy:\nds_read_b32 v41, {vZ0} offset:{L_CT}\ns_waitcnt lgkmcnt(0)\nv_cmp_gt_u32 vcc, 0x40000, v41\ns_cbranch_vccnz L_wy")
    for k in range(5):
        A(f"ds_read2_b32 v[{20+4*k}:{21+4*k}], {vYT} offset0:0 offset1:1\nds_read_b32 v{22+4*k}, {vYT} offset:8")
        if k < 4: A(f"v_add_u32 {vYT}, 2560, {vYT}")
    A("s_waitcnt lgkmcnt(0)")
    for e in range(3): A(f"v_add_f32 v{20+e}, v{20+e}, v{24+e}\nv_add_f32 v{28+e}, v{28+e}, v{32+e}")
    for e in range(3): A(f"v_add_f32 v{20+e}, v{20+e}, v{36+e}")
    for e in range(3): A(f"v_add_f32 v{16+e}, v{20+e}, v{28+e}")
    stamp(7)
    A(f"s_barrier\nds_read_b96 v[12:14], {vZ0} offset:{L_U+64}\ns_waitcnt lgkmcnt(0)")
    for p in range(3):
        for e in range(3): A(f"v_dot2c_f32_bf16 v{16+e}, v{12+p}, v{LW+3*p+e}")
    A(f"s_cmp_eq_u32 {sT3}, 0\ns_cbranch_scc1 L_yr\nbuffer_store_dwordx4 v[16:19], v7, {WS_}, {sT1} offen\ns_branch L_done")
    A(f"L_yr:\nbuffer_store_dwordx4 v[16:19], v7, {WS_}, {sT1} offen sc1\ns_branch L_done")
    A("L_svc:")
    G0 = RING; G1 = G0 + 8
    vQW, vSC, vML, vOP, vLS, vM, vZ, vZK, vXA = [f"v{32+i}" for i in range(7)] + ["v40", "v42"]
    vZF, vM8, vFA = "v15", "v30", "v31"
    ZS, ZM = 52, 8
    vWA, vH1S, vH1G, vYG, vH3, vYW, vYR, vOUT, XV = "v16", "v17", "v18", "v19", "v20", "v21", "v29", 22, 26
    P0, P1, YY = PB, PB + 32, PB + 64
    YT = YY + 12
    LP = 64//NSEG; LLP = LP.bit_length()-1; NLS = GS//LP; NR = 4*BPS
    sF = [f"s{r}" for r in (20, 21, 22, 24, 25, 26, 28, 29, 30)]
    sLOC, sHD, sTG2, sH1S, sH1G, sYS, sYG, sH3S, sH3G, sXS, sXG, sFL = [f"s{r}" for r in range(72, 84)]
    sUU = ["s60", "s61", "s62"]
    sSCALE, sLOG2E = "s12", "s13"
    def store2(lab, stores):
        A("; plain stores when all 32 peers share this cache, write-through otherwise")
        A(f"s_cmp_eq_u32 {sLOC}, 0\ns_cbranch_scc1 {lab}_r"); stores(""); A(f"s_branch {lab}_d\n{lab}_r:"); stores("sc1"); A(f"{lab}_d:")
    def poll(lab, loads, tags, sleep=0, first=None, tag=sTAG, loc=False, hook=None):
        A("; repeat the loads until every tag register holds the expected tag")
        A(f"s_mov_b32 {sT2}, {spin}")
        if first is not None: loads(first); A(f"s_branch {lab}_chk")
        elif sleep: A(f"s_branch {lab}_go")
        A(f"{lab}:")
        if hook: hook()
        if sleep: A(f"s_sleep {sleep}\n{lab}_go:")
        if loc and lp != "sc1":
            A(f"s_cmp_eq_u32 {sLOC}, 0\ns_cbranch_scc1 {lab}_rm"); loads(lp); A(f"s_branch {lab}_chk\n{lab}_rm:")
        loads("sc1")
        A(f"{lab}_chk:\ns_waitcnt vmcnt(0)")
        if len(tags) == 1: A(f"v_cmp_ne_u32 vcc, {tag}, {tags[0]}")
        else:
            A(f"v_xor_b32 {t0}, {tag}, {tags[0]}")
            for t in tags[1:]: A(f"v_bitop3_b32 {t0}, {t}, {tag}, {t0} bitop3:0xbe")
            A(f"v_cmp_ne_u32 vcc, 0, {t0}")
        A(f"s_cbranch_vccz {lab}_done\ns_sub_u32 {sT2}, {sT2}, 1\ns_cbranch_scc0 {lab}\n{lab}_done:")
    if not early: touches()
    A(f"v_lshlrev_b32 v4, 2, {vLANE}")
    A(f"L_wq:\nds_read_b32 v6, v5 offset:{L_CT}\ns_waitcnt lgkmcnt(0)\nv_and_b32 v6, 7, v6\nv_cmp_gt_u32 vcc, 5, v6\ns_cbranch_vccnz L_wq")
    for w in range(5):
        for k in range(5): A(f"ds_read_b32 v{G0+5*w+k}, v4 offset:{L_QP+1280*w+256*k}")
        if w == 2: A("s_waitcnt lgkmcnt(0)")
    A("s_waitcnt lgkmcnt(0)")
    for w in range(1, 5):
        for k in range(5): A(f"v_add_f32 v{G0+k}, v{G0+k}, v{G0+5*w+k}")
    QO = 52
    A(f"v_lshl_add_u32 v5, {vB}, 3, {vA}\nv_lshlrev_b32 {vQW}, 1, v5\nv_lshlrev_b32 v5, 4, v5")
    A(f"v_mov_b32 v48, v{G0+3}\nv_mov_b32 v49, v{G0+4}\nv_mov_b32 v{QO+3}, {sTAG}\nv_mov_b32 v50, {sTAG}\nv_mov_b32 v51, {sTAG}")
    for k in range(3): A(f"v_mov_b32 v{QO+k}, v{G0+k}")
    if "Q" in skip: A("s_branch L_qd")
    A(f"s_lshl_b32 {sHD}, {sLIN}, 11\ns_add_u32 {sHD}, {sHD}, {WS_QS}\ns_cmp_lt_u32 {sMEM}, 16\ns_cbranch_scc1 L_qw")
    A(f"buffer_store_dwordx4 v[{QO}:{QO+3}], v7, {WS_}, {sHD} offen\ns_branch L_qd")
    A(f"L_qw:\nbuffer_store_dwordx4 v[{QO}:{QO+3}], v7, {WS_}, {sHD} offen sc1\nL_qd:")
    stamp(3)
    if tlb == 2: page_touch()
    A(f"v_add_u32 {vSC}, {L_SC}, v4\nv_mov_b32 {vML}, {L_ML}\nv_add_u32 {vOP}, {L_OP}, v7\nv_mov_b32 {vZ}, 0")
    A(f"s_mov_b32 {sSCALE}, 0x3d93cd3a\ns_mov_b32 {sLOG2E}, 0x3fb8aa3b\ns_mov_b32 {sBLK}, 0")
    A(f"s_lshl_b32 {sT1}, {sG}, {11+LGS}\ns_add_u32 {sT1}, {sT1}, {WS_QS}")
    A(f"L_wt:\ns_sleep 2\nds_read_b32 v10, {vZ} offset:{L_CT}\ns_waitcnt lgkmcnt(0)\nv_cmp_gt_u32 vcc, 256, v10\ns_cbranch_vccnz L_wt")
    def gq(n, base):
        def f(p):
            for s in range(n):
                if s % 2 == 0: A(f"s_add_u32 {sT0}, {base}, {2048*s}")
                A(f"buffer_load_dwordx4 v[{G0+4*s}:{G0+4*s+3}], v7, {WS_}, {sT0} offen offset:{2048*(s%2)} {p}")
        return f
    if "Q" in skip: A("s_branch L_gq_done")
    poll("L_gq", gq(16, sT1), [f"v{G0+4*s+3}" for s in range(16)], first=qp, sleep=psleep)
    for s in range(1, 8):
        for h in range(2):
            for k in range(3): A(f"v_add_f32 v{G0+32*h+k}, v{G0+32*h+k}, v{G0+32*h+4*s+k}")
    for h in range(2):
        for k in range(3): A(f"v_cvt_pk_bf16_f32 v{G0+32*h+k}, v{G0+32*h+k}, 0")
    for h in range(2):
        for k in range(3): A(f"ds_write_b16 {vQW}, v{G0+32*h+k} offset:{L_QB+384*h+128*k}")
    stamp(4)
    A("s_branch L_next")
    A("L_blk:")
    if xd:
        A("; pacing hint only: how many of the eight sets of peers are ahead of mine -> threshold used by my peers")
        A(f"s_cmp_lg_u32 {sC}, {xc}\ns_cbranch_scc1 L_noxf\ns_bitcmp1_b32 {hex(sum(1 << b for b in xp))}, {sBLK}\ns_cbranch_scc0 L_noxf")
        A(f"s_add_u32 {sT0}, {sTAG}, {sBLK}\nv_mov_b32 v12, {sT0}\nv_mul_u32_u24 v13, 4224, {vLANE}\ns_mul_i32 {sT1}, {sX}, 4224\ns_add_u32 {sT1}, {sT1}, {WS_PR+0x30000}")
        A(f"s_mov_b64 exec, 1\nbuffer_store_dword v12, v13, {WS_}, {sT1} offen sc1\ns_mov_b32 {sT1}, {WS_PR+0x30000}")
        if xs < 0: A("s_waitcnt vmcnt(0)")
        if xs > 0: A(f"s_sleep {xs}")
        A(f"s_mov_b64 exec, 0xff\nbuffer_load_dword v14, v13, {WS_}, {sT1} offen sc1\ns_waitcnt vmcnt(0)")
        lutv = sum((d + 8) << (4*i) for i, d in enumerate(xd))
        A(f"v_sub_u32 v14, v14, v12\nv_cmp_gt_u32 vcc, 64, v14\ns_bitset0_b32 vcc_lo, {sX}\ns_bcnt1_i32_b64 {sT0}, vcc\ns_lshl_b32 {sT0}, {sT0}, 2")
        if xd2:
            lut2 = sum((d//2 + 8) << (4*i) for i, d in enumerate(xd2))
            A(f"s_lshr_b32 {sT1}, {hex(lut2)}, {sT0}\ns_and_b32 {sT1}, {sT1}, 15\ns_lshl_b32 {sT1}, {sT1}, 1\ns_sub_u32 {sT1}, {sT1}, 8")
        A(f"s_lshr_b32 {sT0}, {hex(lutv)}, {sT0}\ns_and_b32 {sT0}, {sT0}, 15")
        if xd2: A(f"s_cmp_ge_u32 {sBLK}, {xb}\ns_cselect_b32 {sT0}, {sT1}, {sT0}")
        A(f"s_getreg_b32 {sT1}, hwreg(HW_REG_XCC_ID)\ns_bitcmp1_b32 {sT1}, 0\ns_cselect_b32 {sT1}, {fbo-8}, {fb-8}")
        A(f"s_add_u32 {sT0}, {sT0}, {sT1}\ns_min_u32 {sT0}, {sT0}, 32\ns_add_u32 {sT0}, {sT0}, {sTAG}\nv_mov_b32 v12, {sT0}")
        A(f"s_mul_i32 {sT1}, {sX}, {4*4224}\ns_add_u32 {sT1}, {sT1}, {WS_PR+128}\ns_mov_b64 exec, 0xf")
        A(f"buffer_store_dword v12, v13, {WS_}, {sT1} offen\ns_mov_b64 exec, -1\nL_noxf:")
    A(f"s_cmp_le_u32 {sBLK}, 16\ns_cbranch_scc1 L_kpart\ns_bitcmp1_b32 {FMASK}, {sBLK}\ns_cbranch_scc0 L_vmid")
    stamp(5)
    for w in range(4): A(f"ds_read_b96 v[{G0+4*w}:{G0+4*w+2}], {vOP} offset:{1024*w}")
    A(f"v_xor_b32 {vOP}, 4096, {vOP}\nv_mov_b32 v{G0+19}, {sTG2}\ns_waitcnt lgkmcnt(0)")
    for k in range(3): A(f"v_add_f32 v{G0+k}, v{G0+k}, v{G0+4+k}\nv_add_f32 v{G0+8+k}, v{G0+8+k}, v{G0+12+k}")
    for k in range(3): A(f"v_add_f32 v{G0+k}, v{G0+k}, v{G0+8+k}")
    for k in range(3): A(f"v_mul_f32 v{G0+16+k}, {sF[0]}, v{G0+k}")
    if "h" in skip: A(f"s_cmp_lg_u32 {sBLK}, 32\ns_cbranch_scc1 L_p1_done")
    store2("L_s1", lambda p: A(f"buffer_store_dwordx4 v[{G0+16}:{G0+19}], {vH1S}, {WS_}, {sH1S} offen {p}"))
    poll("L_p1", lambda p: A(f"buffer_load_dwordx4 v[{G0}:{G0+3}], {vH1G}, {WS_}, {sH1G} offen {p}"), [f"v{G0+3}"], tag=sTG2, loc=True)
    stamp(6)
    A(f"v_mov_b32 v{G0+3}, 0\nv_permlane32_swap_b32 v{G0}, v{G0+1}\nv_permlane32_swap_b32 v{G0+2}, v{G0+3}")
    A(f"v_add_f32 v{G0}, v{G0}, v{G0+1}\nv_add_f32 v{G0+2}, v{G0+2}, v{G0+3}\nv_permlane16_swap_b32 v{G0}, v{G0+2}\nv_add_f32 {vZK}, v{G0}, v{G0+2}")
    allred_lo("v_add_f32", [vZK], 3)
    A(f"s_cmp_eq_u32 {sBLK}, 32\ns_cbranch_scc1 L_tail")
    for i in range(8): A(f"s_mov_b32 {sF[i]}, {sF[i+1]}")
    A(f"s_add_u32 {sTG2}, {sTG2}, 1\ns_xor_b32 {sH1S}, {sH1S}, 1024\ns_xor_b32 {sH1G}, {sH1G}, 1024")
    A(f"s_lshr_b32 {sT0}, {sG}, 1\ns_add_u32 {sT0}, {sT0}, {B5+1}\ns_cmp_lg_u32 {sT0}, {sBLK}\ns_cbranch_scc1 L_native\nv_mov_b32 {vZF}, {vZK}\ns_branch L_next\nL_native:")
    A(f"s_add_u32 {sT0}, {sBLK}, 1\ns_lshr_b32 {sT0}, {sT0}, 1\ns_xor_b32 {sT0}, {sT0}, {sOWN}\ns_bitcmp1_b32 {sT0}, 0\ns_cbranch_scc0 L_notmine")
    A(f"v_mov_b32 v{ZM}, v{ZM+1}\nv_mov_b32 v{ZM+1}, v{ZM+2}\nv_mov_b32 v{ZM+2}, {vZK}\ns_cmp_eq_u32 {sBLK}, 28\ns_cbranch_scc0 L_next\ns_branch L_send")
    A(f"L_notmine:\nv_mov_b32 v{ZS}, v{ZS+1}\nv_mov_b32 v{ZS+1}, v{ZS+2}\nv_mov_b32 v{ZS+2}, {vZK}\ns_cmp_ge_u32 {sBLK}, 28\ns_cbranch_scc0 L_next")
    A("L_send:")
    for e in range(6): A(f"v_readlane_b32 {sT0}, {vZF}, {8*e}\nv_writelane_b32 v{ZS+e%3}, {sT0}, {48+8*(e//3)}")
    if "x" in skip: A("s_branch L_next")
    A(f"s_mov_b32 exec_lo, 0x01010101\ns_mov_b32 exec_hi, 0x01010101")
    A(f"buffer_store_dwordx4 v[{ZS}:{ZS+3}], {vXA}, {WS_}, {sXS} offen sc1\ns_mov_b64 exec, -1\ns_add_u32 {sXS}, {sXS}, 128")
    A("s_branch L_next")
    A("L_vmid:")
    A(f"s_cmp_lg_u32 {sBLK}, {lsb}\ns_cbranch_scc1 L_nols")
    A(f"s_mul_i32 {sT1}, {sG}, {GS*128}\ns_add_u32 {sT1}, {sT1}, {WS_LS}\ns_add_u32 {sT3}, {sT1}, 4096")
    GA = G0 + 32
    A(f"s_xor_b32 {sT0}, {sT1}, {2*GS*128}\nv_lshlrev_b32 v6, 7, {vLANE}")
    def gl(p):
        A(f"buffer_load_dwordx4 v[{GA}:{GA+3}], v6, {WS_}, {sT1} offen offset:80 {p}\nbuffer_load_dwordx4 v[{GA+4}:{GA+7}], v6, {WS_}, {sT0} offen offset:80 {p}")
        for r in range(NLS): A(f"buffer_load_dwordx4 v[{G0+4*r}:{G0+4*r+3}], {vLS}, {WS_}, {sT1 if LP*128*r < 4096 else sT3} offen offset:{LP*128*r % 4096} {p}")
    poll("L_ls", gl, [f"v{G0+4*r+e}" for r in range(NLS+2) for e in (1, 3)], sleep=16, first=qp)
    hn = NLS//2 if PAIR else NLS
    for h, t in ((0, t0), (1, t1))[:2 if PAIR else 1]:
        A(f"v_xor_b32 {t}, {sLOC}, v{G0+4*hn*h+2}")
        for r in range(1, hn): A(f"v_bitop3_b32 {t}, v{G0+4*(hn*h+r)+2}, {sLOC}, {t} bitop3:0xbe")
    if PAIR: A(f"s_bitcmp1_b32 {sX}, 0\ns_cselect_b64 vcc, -1, 0\nv_cndmask_b32 {t0}, {t0}, {t1}, vcc")
    A(f"v_cmp_ne_u32 vcc, 0, {t0}\ns_and_b32 vcc_hi, vcc_hi, 0xffff00ff\ns_cmp_eq_u64 vcc, 0\ns_cselect_b32 {sLOC}, {local}, 0")
    A(f"v_max_f32 {t0}, v{G0}, v{G0+4}")
    for r in range(2, NLS, 2): A(f"v_max3_f32 {t0}, {t0}, v{G0+4*r}, v{G0+4*r+4}")
    allred_lo("v_max_f32", [t0], LLP)
    for r in range(NLS): A(f"v_sub_f32 v{G0+4*r}, v{G0+4*r}, {t0}")
    for r in range(NLS): A(f"v_exp_f32 v{G0+4*r}, v{G0+4*r}")
    for r in range(1, NLS): A(f"v_add_f32 v{G0}, v{G0}, v{G0+4*r}")
    allred_lo("v_add_f32", [f"v{G0}"], LLP)
    A(f"v_sub_f32 {t0}, {vM}, {t0}\nv_exp_f32 {t0}, {t0}\nv_rcp_f32 {t1}, v{G0}\nv_mul_f32 {t0}, {t0}, {t1}")
    for k in range(NSEG):
        if k != J5: A(f"v_readlane_b32 {sF[k + (k > J5)]}, {t0}, {LP*PI[k]}")
    A(f"v_max_f32 {t0}, v{GA}, v{GA+4}\nv_max_f32 {t1}, v{GA+2}, v{GA+6}")
    allred_lo("v_max_f32", [t0, t1]); allred_top("v_max_f32", [t0, t1], [t2, t3])
    for r, t in ((0, t0), (4, t0), (2, t1), (6, t1)): A(f"v_sub_f32 v{GA+r}, v{GA+r}, {t}")
    for r in (0, 4, 2, 6): A(f"v_exp_f32 v{GA+r}, v{GA+r}")
    A(f"v_add_f32 v{GA}, v{GA}, v{GA+4}\nv_add_f32 v{GA+2}, v{GA+2}, v{GA+6}")
    allred_lo("v_add_f32", [f"v{GA}", f"v{GA+2}"]); allred_top("v_add_f32", [f"v{GA}", f"v{GA+2}"], [t2, t3])
    A(f"v_sub_f32 {t0}, {vM}, {t0}\nv_sub_f32 {t1}, {vM8}, {t1}\nv_exp_f32 {t0}, {t0}\nv_exp_f32 {t1}, {t1}\nv_rcp_f32 {t2}, v{GA}\nv_rcp_f32 {t3}, v{GA+2}")
    A(f"v_mul_f32 {t0}, {t0}, {t2}\nv_mul_f32 {t1}, {t1}, {t3}\nv_readlane_b32 {sF[J5+1]}, {t0}, 40\nv_readlane_b32 {sF[J5]}, {t1}, 40")
    A(f"v_mov_b32 {t0}, 0\nv_mov_b32 {t1}, 0\nv_mov_b32 {t2}, 0\nv_mov_b32 {t3}, {sLOC}\ns_mov_b64 exec, 0xf\nds_write_b128 v7, v[{T}:{T+3}] offset:{L_U}")
    A(f"s_lshl_b32 {sT0}, {sLIN}, 11\ns_add_u32 {sT0}, {sT0}, {WS_QS}\ns_mov_b32 exec_lo, 0x3f3f3f3f\ns_mov_b32 exec_hi, 0x3f3f3f3f")
    store2("L_s0", lambda p: A(f"buffer_store_dwordx4 v[48:51], v5, {WS_}, {sT0} offen offset:1024 {p}"))
    A("s_mov_b64 exec, -1\ns_branch L_next")
    A("L_nols:")
    A(f"s_cmp_lg_u32 {sBLK}, {lsb+2}\ns_cbranch_scc1 L_nogu2")
    A(f"v_lshlrev_b32 v6, 11, {vA}\nv_lshl_add_u32 v6, {vB}, 4, v6\nv_mov_b32 v{G1}, 0\nv_mov_b32 v{G1+1}, 0")
    A(f"s_lshr_b32 {sT1}, {sLIN}, 3\ns_lshl_b32 {sT1}, {sT1}, 14\ns_mul_i32 {sT0}, {sS}, 96\ns_add_u32 {sT1}, {sT1}, {sT0}\ns_add_u32 {sT1}, {sT1}, {WS_QS}")
    A(f"s_mov_b32 exec_lo, 0x3f3f3f3f\ns_mov_b32 exec_hi, 0x3f3f3f3f")
    poll("L_gu", lambda p: A(f"buffer_load_dwordx4 v[{G1}:{G1+3}], v6, {WS_}, {sT1} offen offset:1024 {p}"), [f"v{G1+2}", f"v{G1+3}"], sleep=psleep, loc=True)
    A("s_mov_b64 exec, -1")
    for k in range(2): A(f"v_add_f32_dpp v{G1+k}, v{G1+k}, v{G1+k} row_ror:8 {DPP}")
    allred_top("v_add_f32", [f"v{G1}", f"v{G1+1}"], [t0, t1])
    A(f"v_cvt_pk_bf16_f32 v{G1}, 0, v{G1}\nv_cvt_pk_bf16_f32 v{G1+1}, 0, v{G1+1}")
    A(f"v_cmp_lt_f32 vcc, 0, v{G1}\nv_cndmask_b32 {t0}, 0, 1.0, vcc\nv_mul_f32 {t3}, v{G1}, {t0}\nv_mul_f32 {t3}, {t3}, v{G1+1}\nv_cvt_pk_bf16_f32 {t3}, {t3}, 0")
    A(f"v_mov_b32_dpp {t0}, {t3} quad_perm:[1,1,3,3] {DPP}\nv_lshl_or_b32 {t3}, {t0}, 16, {t3}")
    for i in range(3): A(f"v_readlane_b32 {sUU[i]}, {t3}, {2*i}")
    if blate: A(f"v_lshlrev_b32 {t0}, 1, {vLANE}\ns_mov_b64 exec, 0x15\nds_write_b32 {t0}, {t3} offset:{L_U+48}\ns_mov_b64 exec, -1")
    for r in range(6):
        for d in range(5): A(f"ds_read_b32 v{P0+5*r+d}, {vWA} offset:{1280*r+4*d}")
        if r % 2: A("s_waitcnt lgkmcnt(0)")
    A(f"s_mov_b32 {sT1}, 0x05040100\ns_mov_b32 {sT3}, 0x07060302")
    for p in range(3):
        for d in range(5):
            A(f"v_perm_b32 v{P1+10*p+2*d}, v{P0+10*p+5+d}, v{P0+10*p+d}, {sT1}\nv_perm_b32 v{P1+10*p+2*d+1}, v{P0+10*p+5+d}, v{P0+10*p+d}, {sT3}")
    for p in range(3):
        for c in range(10): A(f"v_dot2c_f32_bf16 v{YY+c}, {sUU[p]}, v{P1+10*p+c}")
    for d in range(5): A(f"ds_write_b64 {vYW}, v[{YY+2*d}:{YY+2*d+1}] offset:{L_YP+10240+8*d}")
    A("s_branch L_next")
    A("L_nogu2:")
    A(f"s_cmp_lg_u32 {sBLK}, 31\ns_cbranch_scc1 L_nopf")
    if pf is not None:
        A("; touch the lines of the last two hand-offs among the peers so that they are resident when they get written")
        for r in range(4 if "y" in pfw else 0):
            A(f"s_add_u32 {sT0}, {sYG}, {8*2048*r}\nbuffer_load_dwordx4 v[{G0+8+4*r}:{G0+8+4*r+3}], {vYG}, {WS_}, {sT0} offen {pf}")
        if "h" in pfw: A(f"buffer_load_dwordx4 v[{G0+24}:{G0+27}], v7, {WS_}, {sH1S} offen {pf}")
    A("L_nopf:")
    A(f"s_cmp_lt_u32 {sBLK}, 29\ns_cbranch_scc1 L_next\ns_add_u32 {sT0}, {sBLK}, {sOWN}\ns_cmp_gt_u32 {sT0}, 31\ns_cbranch_scc1 L_last")
    if "x" not in skip:
        poll("L_px", lambda p: A(f"buffer_load_dwordx4 v[{G0}:{G0+3}], {vXA}, {WS_}, {sXG} offen {p}"), [f"v{G0+3}"], sleep=psleep, first=xl)
    for k in range(3): A(f"v_add_f32 v{ZM+k}, v{ZM+k}, v{G0+k}")
    A(f"s_add_u32 {sT0}, {sBLK}, {sOWN}\ns_cmp_lg_u32 {sT0}, 29\ns_cbranch_scc1 L_nofo\ns_xor_b32 {sT1}, {sXG}, {128*256}\ns_xor_b32 {sT3}, {sXG}, {160*256}")
    poll("L_pf", lambda p: A(f"buffer_load_dwordx4 v[{G0}:{G0+3}], {vFA}, {WS_}, {sT1} offen {p}\nbuffer_load_dwordx4 v[{G0+4}:{G0+7}], {vFA}, {WS_}, {sT3} offen {p}"),
         [f"v{G0+3}", f"v{G0+7}"], sleep=psleep)
    for k in range(3): A(f"v_add_f32 v{G0+k}, v{G0+k}, v{G0+4+k}")
    A(f"s_mov_b32 vcc_lo, 0x0000ff00\ns_mov_b32 vcc_hi, 0x000000ff\nv_cndmask_b32 v{G0}, v{G0}, v{G0+1}, vcc")
    A(f"s_mov_b32 vcc_lo, 0x00ff0000\ns_mov_b32 vcc_hi, 0x0000ff00\nv_cndmask_b32 v{G0}, v{G0}, v{G0+2}, vcc\nv_add_f32 v{ZM+1}, v{ZM+1}, v{G0}\nL_nofo:")
    A(f"s_add_u32 {sXG}, {sXG}, 128\ns_mov_b32 {sFL}, 3\ns_cmp_eq_u32 {sBLK}, 29\ns_cbranch_scc1 L_take\ns_mov_b32 {sFL}, 1\nv_mov_b32 v{ZM}, v{ZM+2}")
    A(f"L_take:\nv_mov_b32_dpp v{G0+1}, v{ZM} row_ror:8 {DPP}\nv_cvt_pk_bf16_f32 v{G0}, v{ZM}, v{G0+1}\nv_mov_b32 v{ZM}, v{ZM+1}\nv_mov_b32 v{ZM+1}, v{ZM+2}")
    A(f"s_mov_b32 exec_lo, 0x00010001\ns_mov_b32 exec_hi, 1\nds_write_b32 {vYR}, v{G0}\ns_mov_b64 exec, -1\nv_add_u32 {vYR}, 16, {vYR}")
    A(f"s_sub_u32 {sFL}, {sFL}, 1\ns_cmp_gt_u32 {sFL}, 0\ns_cbranch_scc1 L_take")
    A("L_last:")
    A(f"s_cmp_lg_u32 {sBLK}, 31\ns_cbranch_scc1 L_next\ns_setprio 3\ns_waitcnt vmcnt(0)")
    A("L_next:")
    A(f"s_add_u32 {sBLK}, {sBLK}, 1\ns_waitcnt lgkmcnt(0)\ns_barrier\ns_branch L_blk")
    A("L_kpart:\ns_setprio 0")
    A(f"s_and_b32 {sT0}, {sBLK}, {BPS-1}\ns_cbranch_scc1 L_nosm")
    for w in range(4):
        for k in range(BPS): A(f"ds_read_b32 v{G0+BPS*w+k}, {vSC} offset:{4096*w+256*k}")
        if w == 1: A("s_waitcnt lgkmcnt(0)")
    A("s_waitcnt lgkmcnt(0)")
    for i in range(NR): A(f"v_cvt_pk_bf16_f32 v{G0+i}, 0, v{G0+i}")
    for i in range(NR): A(f"v_mul_f32 v{G0+i}, {sSCALE}, v{G0+i}")
    for i in range(NR): A(f"v_cvt_pk_bf16_f32 v{G0+i}, 0, v{G0+i}")
    for i in range(NR): A(f"v_mul_f32 v{G0+i}, {sLOG2E}, v{G0+i}")
    m0, m1, l0_, l1_ = f"v{G0+8}", f"v{G0+10}", f"v{G0+9}", f"v{G0+11}"
    for k, m in enumerate((m0, m1)): A(f"v_max_f32 {m}, v{G0+k}, v{G0+2+k}\nv_max3_f32 {m}, {m}, v{G0+4+k}, v{G0+6+k}")
    allred_lo("v_max_f32", [m0, m1]); allred_top("v_max_f32", [m0, m1], [t0, t1])
    A(f"s_cmp_eq_u32 {sBLK}, 12\ns_cbranch_scc1 L_sm1\nv_max_f32 {m0}, {m0}, {m1}\nv_mov_b32 {m1}, {m0}\ns_branch L_sm0\nL_sm1:")
    if rev:
        for w in range(4): A(f"v_mov_b32_dpp v{G0+2*w}, v{G0+2*w} row_half_mirror {DPP}")
    A("L_sm0:")
    for i in range(NR): A(f"v_sub_f32 v{G0+i}, v{G0+i}, {(m0, m1)[i%2]}")
    for i in range(NR): A(f"v_exp_f32 v{G0+i}, v{G0+i}")
    for k, l in enumerate((l0_, l1_)): A(f"v_add_f32 {l}, v{G0+k}, v{G0+2+k}\nv_add_f32 {l}, {l}, v{G0+4+k}\nv_add_f32 {l}, {l}, v{G0+6+k}")
    for i in range(NR): A(f"v_cvt_pk_bf16_f32 v{G0+i}, v{G0+i}, 0")
    for w in range(4):
        for k in range(BPS): A(f"ds_write_b32 {vSC}, v{G0+BPS*w+k} offset:{4096*w+256*k}")
    allred_lo("v_add_f32", [l0_, l1_]); allred_top("v_add_f32", [l0_, l1_], [t0, t1])
    A(f"s_cmp_eq_u32 {sBLK}, 12\ns_cbranch_scc1 L_sm2\nv_add_f32 {l0_}, {l0_}, {l1_}\ns_branch L_sm3")
    A(f"L_sm2:\nv_log_f32 {l1_}, {l1_}\nv_add_f32 {l1_}, {l1_}, {m1}\nds_write_b64 {vZ}, v[{G0+10}:{G0+11}] offset:{L_ML+64}\nL_sm3:")
    A(f"v_log_f32 {l0_}, {l0_}\nv_add_f32 {l0_}, {l0_}, {m0}\nds_write_b64 {vML}, v[{G0+8}:{G0+9}]")
    A(f"v_add_u32 {vSC}, {256*BPS}, {vSC}\nv_add_u32 {vML}, 8, {vML}")
    A("L_nosm:")
    if "Q" in skip: A("s_branch L_noq2")
    if tlb == 3:
        A(f"s_cmp_lg_u32 {sBLK}, 1\ns_cbranch_scc1 L_nopt"); page_touch(); A("L_nopt:")
    A(f"s_cmp_lg_u32 {sBLK}, 1\ns_cbranch_scc1 L_noq1\ns_cmp_lg_u32 {sS}, 0\ns_cbranch_scc1 L_next\ns_cmp_lt_u32 {sMEM}, 16\ns_cbranch_scc1 L_next")
    poll("L_go", gq(8, sHD), [f"v{G0+4*s+3}" for s in range(8)], sleep=psleep, first=op)
    for s in range(1, 8):
        for k in range(3): A(f"v_add_f32 v{G0+k}, v{G0+k}, v{G0+4*s+k}")
    for k in range(3): A(f"v_mov_b32_dpp v{G0+4+k}, v{G0+k} row_ror:8 {DPP}")
    for k in range(3): A(f"v_cvt_pk_bf16_f32 v{G0+k}, v{G0+k}, v{G0+4+k}")
    A(f"v_lshrrev_b32 v6, 4, {vLANE}\nv_lshl_add_u32 v6, v6, 3, {vB}\nv_lshlrev_b32 v6, 4, v6\ns_lshl_b32 {sT0}, {sLIN}, 6\ns_add_u32 {sT0}, {sT0}, {WS_QF}")
    A(f"s_mov_b32 exec_lo, 0x00ff00ff\ns_mov_b32 exec_hi, 0x00ff00ff\nbuffer_store_dwordx4 v[{G0}:{G0+3}], v6, {WS_}, {sT0} offen sc1\ns_mov_b64 exec, -1")
    A(f"s_waitcnt vmcnt(0)\ns_branch L_next\nL_noq1:\ns_cmp_lg_u32 {sBLK}, 2\ns_cbranch_scc1 L_noq2")
    A(f"s_lshl_b32 {sT1}, {sG}, 12\ns_add_u32 {sT1}, {sT1}, {WS_QF}")
    A(f"s_xor_b32 {sT3}, {sT1}, 8192")
    def gf(p):
        A(f"s_mov_b32 exec_hi, 0\nbuffer_load_dwordx4 v[{G0}:{G0+3}], v7, {WS_}, {sT3} offen offset:2560 {p}\ns_mov_b32 exec_hi, -1")
        for r in range(1, 4): A(f"buffer_load_dwordx4 v[{G0+4*r}:{G0+4*r+3}], v7, {WS_}, {sT1} offen offset:{1024*r} {p}")
    def again():
        A(f"s_cmp_lg_u32 {sT2}, {spin-nre}\ns_cbranch_scc1 L_nore\nbuffer_store_dwordx4 v[{QO}:{QO+3}], v7, {WS_}, {sHD} offen sc1\nL_nore:")
    A(f"v_lshrrev_b32 {vQW}, 5, {vLANE}\nv_mul_u32_u24 {vQW}, 384, {vQW}\nv_lshl_add_u32 {vQW}, {vB}, 4, {vQW}\nv_and_b32 v6, 3, {vA}\nv_lshl_add_u32 {vQW}, v6, 2, {vQW}")
    A(f"s_waitcnt lgkmcnt(0)\nv_mov_b32 v{G0+3}, {sTAG}")
    poll("L_gf", gf, [f"v{G0+4*r+3}" for r in range(4)], first=qp, sleep=psleep, hook=again)
    for r in range(1, 4):
        for k in range(3): A(f"ds_write_b32 {vQW}, v{G0+4*r+k} offset:{L_QB+768*r+128*k}")
    A("s_mov_b32 exec_hi, 0")
    for k in range(3): A(f"ds_write_b32 {vQW}, v{G0+k} offset:{L_QB+384*8+128*k}")
    A("s_mov_b32 exec_hi, -1\ns_branch L_next\nL_noq2:")
    A(f"s_cmp_lg_u32 {sBLK}, {NSEG+1}\ns_cbranch_scc1 L_nogu")
    A(f"v_mul_u32_u24 {vWA}, 20, {vLANE}\nv_add_u32 {vWA}, {L_W}, {vWA}")
    A(f"v_lshrrev_b32 {t0}, 4, {vLANE}\nv_lshl_add_u32 {t0}, {t0}, 3, {vB}\nv_and_b32 {t1}, 8, {vLANE}\nv_lshlrev_b32 {t1}, 1, {t1}")
    A(f"v_lshl_add_u32 {vH1S}, {t0}, 5, {t1}\nv_lshl_add_u32 {vH1G}, {t0}, 11, {t1}")
    A(f"s_lshl_b32 {sH1S}, {sLIN}, 11\ns_add_u32 {sH1S}, {sH1S}, {WS_H1}")
    A(f"s_lshl_b32 {sH1G}, {sX}, 16\ns_lshl_b32 {sT0}, {sC}, 5\ns_add_u32 {sH1G}, {sH1G}, {sT0}\ns_add_u32 {sH1G}, {sH1G}, {WS_H1}")
    A(f"v_mul_u32_u24 {vYW}, 40, {vLANE}\nv_lshrrev_b32 {vYR}, 1, {vLANE}\nv_and_b32 {vYR}, 8, {vYR}\nv_lshrrev_b32 {t0}, 3, {vLANE}\nv_and_or_b32 {vYR}, {t0}, 4, {vYR}\nv_add_u32 {vYR}, {L_U}, {vYR}\nv_mov_b32 v43, {vYR}")
    A(f"v_lshlrev_b32 {t0}, 4, {vB}\nv_lshl_add_u32 {vYG}, {vA}, 11, {t0}\nv_lshlrev_b32 {vXA}, 4, {vA}\nv_mov_b32 v41, {sTAG}\nv_mov_b32 v{ZS+3}, {sTAG}\nv_mov_b32 {vFA}, 96\nv_mov_b32 {t1}, 112\nv_cmp_lt_u32 vcc, 2, {vA}\nv_cndmask_b32 {vFA}, {vFA}, {t1}, vcc")
    A(f"s_add_u32 {sYS}, {sTAG}, 32\ns_lshr_b32 {sT1}, {sC}, 3")
    ybase(sYG, sT1)
    A(f"s_lshl_b32 {sT0}, {sX}, 16\ns_add_u32 {sYG}, {sYG}, {sT0}\ns_lshl_b32 {sT0}, {sS}, 7\ns_add_u32 {sYG}, {sYG}, {sT0}")
    A(f"s_lshl_b32 {sH3G}, {sC}, 10\ns_add_u32 {sH3G}, {sH3G}, {WS_H3}\ns_lshl_b32 {sT0}, {sX}, 7\ns_add_u32 {sH3S}, {sH3G}, {sT0}")
    A(f"s_lshl_b32 {sXS}, {sLIN}, 8\ns_add_u32 {sXS}, {sXS}, {WS_XX}\ns_xor_b32 {sXG}, {sXS}, {32*256}")
    A(f"s_add_u32 {sTG2}, {sTAG}, 1\ns_mov_b32 {sFL}, 0")
    A(f"v_mul_u32_u24 {t0}, 3, {vB}\ns_mul_i32 {sT0}, {sC}, 20\nv_add_lshl_u32 {t0}, {t0}, {sT0}, 1\nv_mov_b32 {t2}, {OOB}")
    A(f"v_cmp_gt_u32 vcc, 7, {vB}\nv_cndmask_b32 v{vOUT}, {t2}, {t0}, vcc\nv_cmp_gt_u32 vcc, 6, {vB}\nv_cndmask_b32 v{vOUT+1}, {t2}, {t0}, vcc")
    A(f"v_mov_b32 {t0}, {WS_EP}\nv_or_b32 {t1}, s2, {vLANE}\nv_cmp_eq_u32 vcc, 0, {t1}\nv_cndmask_b32 v{vOUT+2}, {t2}, {t0}, vcc")
    A(f"buffer_load_ushort v{XV}, v{vOUT}, {X_}, 0 offen\nbuffer_load_ushort v{XV+1}, v{vOUT}, {X_}, 0 offen offset:2\nbuffer_load_ushort v{XV+2}, v{vOUT+1}, {X_}, 0 offen offset:4")
    for i in range(10): A(f"v_mov_b32 v{YY+i}, 0")
    A("s_waitcnt vmcnt(0)")
    for e in range(3): A(f"v_lshlrev_b32 v{XV+e}, 16, v{XV+e}")
    srd_lo(X_, pOUT)
    A("s_branch L_next")
    A("L_nogu:")
    A(f"s_cmp_lg_u32 {sBLK}, 16\ns_cbranch_scc1 L_next")
    A(f"v_lshrrev_b32 v10, {LLP}, {vLANE}\nv_lshlrev_b32 v10, 3, v10\ns_waitcnt lgkmcnt(0)\nds_read_b64 v[{T+2}:{T+3}], v10 offset:{L_ML}\nds_read_b64 v[{G0}:{G0+1}], {vZ} offset:{L_ML+64}")
    A(f"s_lshl_b32 {sT1}, {sLIN}, 7\ns_add_u32 {sT1}, {sT1}, {WS_LS}\nv_and_b32 v11, {LP-1}, {vLANE}\nv_cmp_eq_u32 vcc, 0, v11")
    A(f"s_waitcnt lgkmcnt(0)\nv_mov_b32 {vM}, {t2}\nv_mov_b32 {t0}, {t3}\nv_mov_b32 {t1}, {sTAG}\nv_mov_b32 {t3}, {sTAG}")
    A(f"s_getreg_b32 {sLOC}, hwreg(HW_REG_XCC_ID)\nv_mov_b32 {t2}, {sLOC}\nv_lshlrev_b32 v10, 1, v10\nv_mov_b32 {vM8}, v{G0}")
    A(f"v_readlane_b32 {sT0}, v{G0+1}, 0\nv_writelane_b32 {t2}, {sT0}, 40\ns_mov_b64 exec, vcc")
    A(f"buffer_store_dwordx4 v[{T}:{T+3}], v10, {WS_}, {sT1} offen sc1\ns_mov_b64 exec, -1")
    A(f"v_lshl_add_u32 {vLS}, v11, 7, v10\ns_branch L_next")
    A("L_tail:")
    A(f"v_mov_b32_dpp v{G0+1}, {vZK} row_ror:8 {DPP}\nv_cvt_pk_bf16_f32 v{G0}, {vZK}, v{G0+1}")
    A(f"s_mov_b32 exec_lo, 0x00010001\ns_mov_b32 exec_hi, 1\nds_write_b32 v43, v{G0} offset:64\ns_mov_b64 exec, -1\ns_waitcnt lgkmcnt(0)")
    stamp(7)
    A("s_barrier")
    def g2(p):
        for r in range(4):
            A(f"s_add_u32 {sT0}, {sYG}, {8*2048*r}\nbuffer_load_dwordx4 v[{G0+4*r}:{G0+4*r+3}], {vYG}, {WS_}, {sT0} offen {p}")
    poll("L_p2", g2, [f"v{G0+4*r+3}" for r in range(4)], loc=True, tag=sYS)
    if stamps: A("s_memrealtime s[42:43]")
    for k in range(3): A(f"v_add_f32 v{G0+k}, v{G0+k}, v{G0+4+k}\nv_add_f32 v{G0+8+k}, v{G0+8+k}, v{G0+12+k}")
    for k in range(3): A(f"v_add_f32 v{G0+k}, v{G0+k}, v{G0+8+k}")
    def red_hi(b):
        for k in range(3): A(f"v_add_f32_dpp v{b+k}, v{b+k}, v{b+k} row_ror:8 {DPP}")
        allred_top("v_add_f32", [f"v{b+k}" for k in range(3)], [f"v{b+4+k}" for k in range(3)])
    red_hi(G0)
    A(f"s_cmp_eq_u32 {sS}, {sX}\ns_cbranch_scc1 L_red")
    A(f"s_mov_b64 exec, 0xff\nbuffer_store_dwordx4 v[{G0}:{G0+3}], v7, {WS_}, {sH3S} offen {p3s}\ns_mov_b64 exec, -1\ns_branch L_done")
    A("L_red:")
    BUF = [G0 + 16 + 4*k for k in range(np3)]
    for b in BUF:
        for k in range(3): A(f"v_mov_b32 v{b+k}, v{G0+k}")
    A(f"v_cmp_ne_u32 vcc, {sX}, {vA}\ns_mov_b32 {sT2}, {spin}\ns_mov_b64 exec, vcc")
    def l3(k): A(f"buffer_load_dwordx4 v[{BUF[k]}:{BUF[k]+3}], v7, {WS_}, {sH3G} offen {p3l}")
    for k in range(np3-1):
        l3(k); A(f"s_sleep {s3}")
    A("L_p3:")
    for k in range(np3):
        l3((k + np3 - 1) % np3)
        A(f"s_waitcnt vmcnt({np3-1})\nv_cmp_ne_u32 vcc, {sYS}, v{BUF[k]+3}\ns_cbranch_vccz L_p3d{k}")
    A(f"s_sub_u32 {sT2}, {sT2}, 1\ns_cbranch_scc0 L_p3")
    for k in reversed(range(np3)):
        A(f"L_p3d{k}:\ns_mov_b64 exec, -1")
        for e in range(3): A(f"v_add_f32_dpp v{G1+e}, v{BUF[k]+e}, v{BUF[k]+e} row_ror:8 {DPP}")
        if k: A("s_branch L_p3e")
    A("L_p3e:")
    if stamps: A("s_memrealtime s[48:49]")
    allred_top("v_add_f32", [f"v{G1+k}" for k in range(3)], [f"v{G1+4+k}" for k in range(3)])
    for e in range(3): A(f"v_add_f32 v{G1+e}, v{G1+e}, v{XV+e}")
    for e in range(3): A(f"v_cvt_pk_bf16_f32 v{G1+e}, v{G1+e}, 0")
    A("s_mov_b64 exec, 0xff")
    A(f"buffer_store_short v{G1}, v{vOUT}, {X_}, 0 offen\nbuffer_store_short v{G1+1}, v{vOUT}, {X_}, 0 offen offset:2\nbuffer_store_short v{G1+2}, v{vOUT+1}, {X_}, 0 offen offset:4")
    A(f"buffer_store_dword v41, v{vOUT+2}, {WS_}, 0 offen")
    A("s_mov_b64 exec, -1")
    A("L_done:")
    if diag is not None:
        wave, st, mult = diag
        stamp(8)
        A(f"s_cmp_lg_u32 s2, 0\ns_cbranch_scc1 L_end\ns_cmp_lg_u32 {sW}, {wave}\ns_cbranch_scc1 L_end")
        A(f"s_waitcnt lgkmcnt(0)\ns_sub_u32 {sT0}, s{sST+2*st}, s{sST}\ns_mul_i32 {sT0}, {sT0}, {mult}\ns_add_u32 {sT0}, {sT0}, 30000")
        A(f"s_min_u32 {sT0}, {sT0}, 200000")
        A(f"L_dg:\ns_memrealtime s[72:73]\ns_waitcnt lgkmcnt(0)\ns_sub_u32 {sT1}, s72, s{sST}\ns_cmp_lt_u32 {sT1}, {sT0}\ns_cbranch_scc1 L_dg")
    if stamps:
        stamp(8)
        A(f"s_mul_i32 {sT0}, s2, 5\ns_add_u32 {sT0}, {sT0}, {sW}\ns_lshl_b32 {sT0}, {sT0}, 6\ns_add_u32 {sT0}, {sT0}, {WS_ST}")
        A(f"s_getreg_b32 {sT1}, hwreg(HW_REG_XCC_ID)")
        A("s_waitcnt lgkmcnt(0)\nv_mov_b32 v4, 0")
        for i in range(9): A(f"v_writelane_b32 v4, s{sST+2*i}, {i}")
        A(f"v_writelane_b32 v4, s42, 9\nv_writelane_b32 v4, s48, 10\nv_writelane_b32 v4, s50, 11\nv_writelane_b32 v4, s47, 12")
        A(f"v_writelane_b32 v4, {sT1}, 15")
        A(f"v_lshlrev_b32 v5, 2, {vLANE}\ns_mov_b64 exec, 0xffff")
        A(f"buffer_store_dword v4, v5, {WS_}, {sT0} offen {'sc1' if diag2 else ''}")
    if diag3:
        A(f"s_mov_b64 exec, -1\ns_cmp_lg_u32 {sW}, 0\ns_cbranch_scc1 L_end\ns_lshl_b32 {sT0}, s2, 8\ns_add_u32 {sT0}, {sT0}, {WS_ST+0x40000}")
        A(f"buffer_store_dword v199, v5, {WS_}, {sT0} offen sc1\ns_cmp_lg_u32 s2, 0\ns_cbranch_scc1 L_end")
        A(f"L_dh3:\ns_memrealtime s[72:73]\ns_waitcnt lgkmcnt(0)\ns_sub_u32 {sT1}, s72, s{sST}\ns_cmp_lt_u32 {sT1}, 20000\ns_cbranch_scc1 L_dh3")
        A(f"v_mov_b32 v8, 0\ns_mov_b32 {sT0}, {WS_ST+0x40000}\ns_mov_b32 {sT1}, 256\nL_dl3:\nbuffer_load_dword v9, v5, {WS_}, {sT0} offen sc1\ns_waitcnt vmcnt(0)")
        A(f"v_subrev_u32 v9, s{sST}, v9\nv_add_u32 v8, v8, v9\ns_add_u32 {sT0}, {sT0}, 256\ns_sub_u32 {sT1}, {sT1}, 1\ns_cmp_lg_u32 {sT1}, 0\ns_cbranch_scc1 L_dl3")
        A(f"v_add_u32 v10, 4, v5\nds_bpermute_b32 v9, v10, v8\ns_waitcnt lgkmcnt(0)\nv_sub_u32 v9, v9, v8\nv_mul_u32_u24 v9, 10, v9\nv_lshrrev_b32 v9, 8, v9")
        A(f"v_lshlrev_b32 v10, 1, v5\nds_bpermute_b32 v11, v10, v9\nv_add_u32 v10, 4, v10\nds_bpermute_b32 v12, v10, v9\ns_waitcnt lgkmcnt(0)")
        A(f"v_min_u32 v11, 9999, v11\nv_min_u32 v12, 9999, v12\nv_mul_u32_u24 v11, 10000, v11\nv_add_u32 v11, v11, v12")
        srd(TA_, pDBG, 64)
        A(f"buffer_store_dword v11, v5, {TA_}, 0 offen")
    if diag2:
        role, st, op, role0, st0, op0, mult = diag2
        A(f"s_mov_b64 exec, -1\ns_cmp_lg_u32 s2, 0\ns_cbranch_scc1 L_end\ns_cmp_lg_u32 {sW}, 4\ns_cbranch_scc1 L_end")
        A(f"L_dh:\ns_memrealtime s[72:73]\ns_waitcnt lgkmcnt(0)\ns_sub_u32 {sT1}, s72, s{sST}\ns_cmp_lt_u32 {sT1}, 20000\ns_cbranch_scc1 L_dh")
        A(f"v_mul_u32_u24 v5, 320, {vLANE}")
        for k in range(4):
            A(f"s_mov_b32 {sT0}, {WS_ST + 64*320*k}\nbuffer_load_dword v{8+k}, v5, {WS_}, {sT0} offen offset:{64*role0+4*st0} sc1\nbuffer_load_dword v{12+k}, v5, {WS_}, {sT0} offen offset:{64*role+4*st} sc1")
        A("s_waitcnt vmcnt(0)")
        for k in range(8): A(f"v_subrev_u32 v{8+k}, s{sST}, v{8+k}")
        vop = {"max": "v_max_i32", "min": "v_min_i32", "mean": "v_add_u32"}[op]; vop0 = {"max": "v_max_i32", "min": "v_min_i32", "mean": "v_add_u32"}[op0]
        for k in range(1, 4): A(f"{vop0} v8, v8, v{8+k}\n{vop} v12, v12, v{12+k}")
        allred_lo(vop0, ["v8"]); allred_top(vop0, ["v8"], ["v9"])
        allred_lo(vop, ["v12"]); allred_top(vop, ["v12"], ["v13"])
        A(f"v_readfirstlane_b32 {sT0}, v12\nv_readfirstlane_b32 {sT1}, v8\ns_mul_i32 {sT0}, {sT0}, {mult}\ns_mul_i32 {sT1}, {sT1}, {mult}")
        if op == "mean": A(f"s_ashr_i32 {sT0}, {sT0}, 8")
        if op0 == "mean": A(f"s_ashr_i32 {sT1}, {sT1}, 8")
        A(f"s_sub_u32 {sT0}, {sT0}, {sT1}\ns_add_u32 {sT0}, {sT0}, 30000\ns_min_u32 {sT0}, {sT0}, 200000")
        A(f"L_dg2:\ns_memrealtime s[72:73]\ns_waitcnt lgkmcnt(0)\ns_sub_u32 {sT1}, s72, s{sST}\ns_cmp_lt_u32 {sT1}, {sT0}\ns_cbranch_scc1 L_dg2")
    A("L_end:\ns_endpgm")
    A('.section .rodata,"a"\n.p2align 6')
    A(f".amdhsa_kernel {KN}")
    nv4 = (NV+3)//4*4
    A(f".amdhsa_next_free_vgpr {nv4}\n.amdhsa_next_free_sgpr 102\n.amdhsa_accum_offset {nv4}")
    A(".amdhsa_group_segment_fixed_size 0\n.amdhsa_kernarg_size 96\n.amdhsa_user_sgpr_count 2")
    A(".amdhsa_user_sgpr_kernarg_segment_ptr 1\n.amdhsa_system_sgpr_workgroup_id_x 1")
    A(".amdhsa_float_denorm_mode_32 3\n.end_amdhsa_kernel")
    return A.finish()

if __name__ == "__main__":
    kw = eval("dict(" + (sys.argv[2] if len(sys.argv) > 2 else "") + ")")
    open(sys.argv[1], "w").write(gen(**kw))
```
